```python
import torch

def _softmax(x, axis=-1):
    return torch.softmax(x, dim=axis)
def _gelu(x):
    return torch.nn.functional.gelu(x, approximate="tanh")
def _silu(x):
    return torch.nn.functional.silu(x)
def _sigmoid(x):
    return torch.sigmoid(x)
def _layernorm(x, axis=-1, eps=1e-5):
    m = x.mean(dim=axis, keepdim=True)
    v = x.var(dim=axis, keepdim=True, unbiased=False)
    return (x - m) / torch.sqrt(v + eps)
def _scatter_add(tgt, idx, src, axis=0):
    return tgt.clone().index_add_(axis, idx, src)
def _segment_sum(src, seg, n):
    out = torch.zeros((n,) + src.shape[1:], dtype=src.dtype)
    return out.index_add_(0, seg, src)
def _pad(x, pw):
    flat = tuple(v for pair in reversed(pw) for v in pair)
    return torch.nn.functional.pad(x, flat)

kernel_name = 'gated_mix__spectral_gfnet__glu_gated_reglu__prompt'

def setup_inputs():

    _w = (lambda a: (lambda t: t.to(torch.bfloat16) if t.is_floating_point() else t)(torch.as_tensor(a)))
    def _A_setup():
        B, S, D = 1, 2048, 512
        Df = D // 2 + 1
        return {
            "x": _w((lambda *s: torch.randn(*s, dtype=torch.bfloat16) * 0.05)(B, S, D)),
            "w_r": _w((lambda *s: torch.randn(*s, dtype=torch.bfloat16) * 0.05)(S, Df) * 0.02),
            "w_i": _w((lambda *s: torch.randn(*s, dtype=torch.bfloat16) * 0.05)(S, Df) * 0.02),
        }
    _A_in = _A_setup()

    def _B_setup():
        B, S, D, F = 1, 2048, 512, 1792
        return {
            "x": _w((lambda *s: torch.randn(*s, dtype=torch.bfloat16) * 0.05)(B, S, D)),
            "W_gate": _w((lambda *s: torch.randn(*s, dtype=torch.bfloat16) * 0.2)(D, F) * (2.0 / D) ** 0.5),
            "W_up": _w((lambda *s: torch.randn(*s, dtype=torch.bfloat16) * 0.2)(D, F) * (2.0 / D) ** 0.5),
            "W_down": _w((lambda *s: torch.randn(*s, dtype=torch.bfloat16) * 0.2)(F, D) * (1.0 / F) ** 0.5),
        }
    _B_in = _B_setup()

    return {
        "A_x": _A_in["x"],
        "A_w_r": _A_in["w_r"],
        "A_w_i": _A_in["w_i"],
        "B_x": _B_in["x"],
        "B_W_gate": _B_in["W_gate"],
        "B_W_up": _B_in["W_up"],
        "B_W_down": _B_in["W_down"],
        "gate_w": _w((lambda *s: torch.randn(*s, dtype=torch.bfloat16) * 0.05)(512) * 16.0),
    }

def reference(A_x, A_w_r, A_w_i, B_x, B_W_gate, B_W_up, B_W_down, gate_w):
    def _A_ref(x, w_r, w_i):
        B, S, D = x.shape
        X = (lambda x, axes=(-2,-1): torch.fft.rfft2(x.float(), dim=axes))(x, axes=(-2, -1))
        W = w_r + 1j * w_i
        X = X * W
        y = (lambda x, s, axes=(-2,-1): torch.fft.irfft2(x, s=s, dim=axes).to(torch.bfloat16))(X, (S, D), axes=(-2, -1))
        return y

    def _B_ref(x, W_gate, W_up, W_down):
        gate = torch.einsum("bsd,df->bsf", x, W_gate)
        up = torch.einsum("bsd,df->bsf", x, W_up)
        gate = gate * (lambda x, dt: x.to(dt))(gate > 0, gate.dtype)
        h = gate * up
        return torch.einsum("bsf,fd->bsd", h, W_down)

    x = A_x
    g = _sigmoid((x * gate_w).sum(-1, keepdims=True))
    a = _A_ref(x, A_w_r, A_w_i)
    b = _B_ref(x, B_W_gate, B_W_up, B_W_down)
    return g * a + (1 - g) * b
```

```python
import re, struct

def f2u(x):
    return struct.unpack("<I", struct.pack("<f", float(x)))[0]
def flit(x):
    inl = {0.0: "0", 0.5: "0.5", -0.5: "-0.5", 1.0: "1.0", -1.0: "-1.0", 2.0: "2.0", -2.0: "-2.0", 4.0: "4.0", -4.0: "-4.0"}
    return inl[x] if x in inl else "0x%08x" % f2u(x)
def fhex(x):
    return "0x%08x" % f2u(x)
def R(k, i, n=1):
    return "%s%d" % (k, i) if n == 1 else "%s[%d:%d]" % (k, i, i + n - 1)
def V(i, n=1): return R("v", i, n)
def A(i, n=1): return R("a", i, n)
def S(i, n=1): return R("s", i, n)

_reg = re.compile(r"^-?\|?(?:abs\()?([vas])(?:(\d+)|\[(\d+):(\d+)\])")
def regs_of(op):
    op = op.strip()
    if op in ("vcc", "vcc_lo", "vcc_hi"): return {("s", 106), ("s", 107)}
    if op in ("exec", "exec_lo", "exec_hi"): return {("s", 126), ("s", 127)}
    if op == "m0": return {("s", 124)}
    m = _reg.match(op)
    if not m: return set()
    k = m.group(1)
    if m.group(2) is not None: return {(k, int(m.group(2)))}
    return {(k, i) for i in range(int(m.group(3)), int(m.group(4)) + 1)}

TRANS = ("v_exp_f32", "v_log_f32", "v_rcp_f32", "v_rsq_f32", "v_sqrt_f32", "v_sin_f32", "v_cos_f32")
class Ins:
    __slots__ = ("text", "tag", "raw", "op", "cls", "dst", "src", "srcc", "srcab", "dpp", "trans", "wide", "ldsdma", "sdata")
    def __init__(self, text, tag=None, raw=False):
        self.text = text; self.tag = tag; self.raw = raw
        t = text.split(";")[0].strip()
        self.dst = set(); self.src = set(); self.srcc = set(); self.srcab = set(); self.sdata = set()
        self.dpp = False; self.trans = False; self.wide = False; self.ldsdma = False
        if t.endswith(":") or t.startswith(".") or not t:
            self.op = ""; self.cls = "label"; return
        if t.startswith("@"):
            self.op = t; self.cls = "pseudo"; return
        parts = t.split(None, 1)
        op = self.op = parts[0]
        ops = [o.strip() for o in parts[1].split(",")] if len(parts) > 1 else []
        mods = ""
        if ops:
            sp = ops[-1].split(None, 1)
            ops[-1] = sp[0]; mods = sp[1] if len(sp) > 1 else ""
        rs = [regs_of(o) for o in ops]
        allr = set().union(*rs) if rs else set()
        if op.startswith("v_mfma"):
            self.cls = "mfma"; self.dst = rs[0]; self.srcab = rs[1] | rs[2]; self.srcc = rs[3]; self.src = self.srcab | self.srcc
        elif op.startswith("v_"):
            self.cls = "valu"; self.dst = set(rs[0]); self.src = set().union(*rs[1:]) if len(rs) > 1 else set()
            self.dpp = "_dpp" in op
            self.trans = any(op.startswith(x) for x in TRANS)
            if op.startswith(("v_fmac", "v_dot2c", "v_writelane")) or self.dpp or "sdwa" in op: self.src |= rs[0]
            if op.startswith("v_permlane"): self.dst = rs[0] | rs[1]; self.src = rs[0] | rs[1]
            if op.startswith(("v_add_co", "v_sub_co", "v_addc_co")): self.dst |= rs[1]
        elif op.startswith("ds_read"):
            self.cls = "ds"; self.dst = rs[0]; self.src = rs[1]
        elif op.startswith("ds_"):
            self.cls = "ds"; self.src = allr
        elif op.startswith(("buffer_load", "global_load")):
            self.cls = "vmem"
            if re.search(r"\blds\b", mods):
                self.ldsdma = True; self.src = allr | {("s", 124)}
            else:
                self.dst = rs[0]; self.src = set().union(*rs[1:])
                if "d16" in op: self.src |= rs[0]
        elif op.startswith(("buffer_store", "buffer_atomic")):
            self.cls = "vmem"; self.src = allr; self.sdata = rs[0]
            self.wide = "x4" in op or "x3" in op
        elif op.startswith(("s_load", "s_memtime", "s_memrealtime")):
            self.cls = "smem"; self.dst = rs[0]; self.src = set().union(*rs[1:]) if len(rs) > 1 else set()
        elif op.startswith(("s_cmp", "s_cbranch", "s_branch", "s_waitcnt", "s_nop", "s_barrier", "s_sleep", "s_endpgm", "s_setprio", "s_bitcmp")):
            self.cls = "salu"; self.src = allr
        elif op.startswith("s_"):
            self.cls = "salu"; self.dst = set(rs[0]); self.src = set().union(*rs[1:]) if len(rs) > 1 else set()
            if op.startswith(("s_addk", "s_mulk")): self.src |= rs[0]
            if "saveexec" in op: self.dst |= {("s", 126), ("s", 127)}
        else:
            raise ValueError("unknown instr: " + text)

def I(text, tag=None, raw=False):
    return [Ins(l.strip(), tag, raw) for l in text.strip().split("\n") if l.strip()]

def flat(x):
    out = []
    for e in x:
        if isinstance(e, (list, tuple)): out.extend(flat(e))
        else: out.append(e)
    return out

def weave(main, fill, start=0, end=None):
    if end is None: end = len(main)
    n = end - start
    out = [list(flat([g])) for g in main]
    for j, g in enumerate(fill):
        pos = start + (j * n) // max(1, len(fill))
        out[pos] = out[pos] + list(flat([g]))
    return out

def place(main, pos, group):
    main[pos] = list(flat([main[pos]])) + list(flat([group]))

def isv(rs): return {r for r in rs if r[0] in "va"}
def iss(rs): return {r for r in rs if r[0] == "s"}

def hazard_need(p, c):
    n = 0
    if p.cls == "valu":
        pv = isv(p.dst); ps = iss(p.dst)
        if c.cls == "mfma" and pv & c.src: n = max(n, 2)
        if c.cls == "valu":
            if c.dpp and pv & c.src: n = max(n, 2)
            if c.op.startswith("v_permlane") and pv & c.src: n = max(n, 2)
            if c.op.startswith(("v_readfirstlane", "v_readlane")) and pv & c.src: n = max(n, 1)
            if p.trans and not c.trans and pv & c.src: n = max(n, 1)
            if ("sdwa" in p.op) and pv & (c.src | c.dst): n = max(n, 1)
            if ps & c.src: n = max(n, 4 if c.op.startswith(("v_readlane", "v_writelane")) else 2)
            if p.op.startswith("v_dot2") and pv & (c.src | c.dst):
                same = c.op == p.op
                n = max(n, 3)
        if p.op.startswith("v_dot2") and c.cls in ("vmem", "ds", "mfma") and pv & c.src: n = max(n, 3)
        if c.cls == "vmem" and ps & c.src: n = max(n, 5)
        if c.cls in ("salu", "smem") and ps & c.src: n = max(n, 1)
    if p.cls == "mfma":
        big = "32x32" in p.op
        if c.cls == "mfma":
            if p.dst & c.srcab: n = max(n, 12 if big else 8)
            if p.dst & c.srcc and p.dst != c.srcc: n = max(n, 10 if big else 6)
            if p.dst & c.dst and not (p.dst == c.srcc and p.dst == c.dst): n = max(n, 10 if big else 6)
        elif c.cls in ("valu", "vmem", "ds"):
            if p.dst & (c.src | c.dst): n = max(n, 12 if big else 8)
            if c.cls == "valu" and p.srcc & c.dst: n = max(n, 7 if big else 3)
    if p.cls == "salu":
        if ("s", 124) in p.dst and c.ldsdma: n = max(n, 1)
        if p.dst & {("s", 126), ("s", 127)} and c.dpp: n = max(n, 5)
    if p.cls == "vmem" and p.wide and p.sdata & c.dst: n = max(n, 2)
    return n

def finalize(prog, stats=None):
    out = []
    vmq = []; lgq = []
    def emit_wait(vm, lg):
        parts = []
        if vm is not None: parts.append("vmcnt(%d)" % min(vm, 62))
        if lg is not None: parts.append("lgkmcnt(%d)" % min(lg, 14))
        out.append(Ins("s_waitcnt " + " ".join(parts)))
        if vm is not None: del vmq[:max(0, len(vmq) - min(vm, 62))]
        if lg is not None: del lgq[:max(0, len(lgq) - min(lg, 14))]
    nnop = 0
    for c in prog:
        if c.cls == "pseudo":
            w = c.op.split()
            if w[0] == "@wait":
                vm = lg = None
                for tg in w[1:]:
                    idx = [i for i, e in enumerate(vmq) if e.tag == tg]
                    if idx:
                        n = len(vmq) - 1 - idx[-1]; vm = n if vm is None else min(vm, n)
                    idx = [i for i, e in enumerate(lgq) if e.tag == tg]
                    if idx:
                        n = len(lgq) - 1 - idx[-1]; lg = n if lg is None else min(lg, n)
                if lg is not None and any(e.cls == "smem" for e in lgq): lg = 0
                if vm is not None or lg is not None: emit_wait(vm, lg)
            elif w[0] == "@waitlg0":
                if lgq: emit_wait(None, 0)
            elif w[0] == "@waitvm0":
                if vmq: emit_wait(0, None)
            elif w[0] == "@reset":
                vmq.clear(); lgq.clear()
            else:
                raise ValueError(c.op)
            continue
        if c.raw or c.cls == "label":
            out.append(c); continue
        touch = c.src | c.dst
        vm = lg = None
        for i in range(len(vmq) - 1, -1, -1):
            if vmq[i].dst & touch:
                vm = len(vmq) - 1 - i; break
        for i in range(len(lgq) - 1, -1, -1):
            if lgq[i].dst & touch:
                lg = len(lgq) - 1 - i; break
        if lg is not None and any(e.cls == "smem" for e in lgq): lg = 0
        if vm is not None or lg is not None: emit_wait(vm, lg)
        need = 0; dist = 0
        for p in reversed(out):
            if dist >= 12: break
            if p.cls == "label": continue
            if p.raw: continue
            h = hazard_need(p, c)
            if h - dist > need: need = h - dist
            dist += (int(p.text.split()[1]) + 1) if p.op == "s_nop" else 1
        if need > 0:
            out.append(Ins("s_nop %d" % (need - 1))); nnop += need
        out.append(c)
        if c.op == "s_waitcnt":
            m = re.search(r"vmcnt\((\d+)\)", c.text)
            if m: del vmq[:max(0, len(vmq) - int(m.group(1)))]
            m = re.search(r"lgkmcnt\((\d+)\)", c.text)
            if m: del lgq[:max(0, len(lgq) - int(m.group(1)))]
        if c.cls == "vmem": vmq.append(c)
        elif c.cls in ("ds", "smem"): lgq.append(c)
    if stats is not None:
        stats["nops"] = nnop; stats["n"] = len(out)
    return [("    " + e.text) if e.cls != "label" else e.text for e in out]
```

```python
import sys
sys.path.insert(0, "tools")
from prog import *

NAME = "gated_mix__spectral_gfnet__glu_gated_reglu__prompt_kernel"
WS_H, WS_X1, WS_U, WS_G, WS_FLAG, WS_CNT, WS_PROF = 0, 0x800000, 0xA00000, 0xC00000, 0xC10000, 0xC30000, 0xF000000
NCLR = 20
SPIN_LIMIT = 400000
SX, SWG, SWU, SWD, SWS, SOUT, SWR, SWI, SGW, SDBG = [S(8 + 4 * i, 4) for i in range(10)]
sW, sB12, sNI = "s4", "s5", "s6"
sXCD, sLOC, sL3, sNT, sBP, sXN = "s70", "s71", "s72", "s73", "s74", "s75"
sXO = [76, 77, 78, 79]
sK, sWo0, sWo1, sWbase, sLW, sWdo, sT0, sT1, sT2, sT3 = ["s%d" % i for i in range(80, 90)]
sMASK = S(90, 2)
sHI16 = "s92"
sRing = "s93"
sHo = "s94"
vXr2 = "v16"
vXA = [22, 23]
vLane, vL16, vHi, vX, vXr, vW = "v0", "v1", "v2", "v3", "v4", "v5"
vWT = [6, 7, 8, 9]
vDT = [10, 11, 12, 13]
vL16B, vWd, vP, vPA = "v14", "v15", "v16", "v17"
vT = [18, 19, 20, 21, 22, 23]
vTmp = list(range(24, 32))
LDS_RPF, LDS_RPI, LDS_R64I, LDS_STG = 128 * 1024, 136 * 1024, 144 * 1024, 152 * 1024
LDS_RED = 64 * 1024

class Gen:
    def __init__(self, prof=False, rot=0, **kw):
        self.prof = prof; self.rot = rot; self.kw = kw
        self.nl = 0; self.nstamp = 0
    def lab(self, b):
        self.nl += 1; return "L%s_%d" % (b, self.nl)
    def stamp(self, i):
        if not self.prof: return []
        return I("s_memrealtime %s" % S(48 + 2 * i, 2))
    def srd(self, name, lo, size):
        b = int(name[2:name.index(":")])
        return I("s_mov_b32 s%d, s%d\ns_mov_b32 s%d, s%d\ns_mov_b32 s%d, 0x%x\ns_mov_b32 s%d, 0x20000" % (b, lo, b + 1, lo + 1, b + 2, size, b + 3))
    def spin(self, load, expect, sleep=2):
        ok, sp = self.lab("ok"), self.lab("spin")
        cmp_ = "v_cmp_ne_u32 vcc, %d, %s" % (expect, vP)
        return I(cmp_) + I("""s_cbranch_vccz %s
s_mov_b32 s3, 0
%s:
s_sleep %d
%s
s_waitcnt vmcnt(0)
%s
s_add_u32 s3, s3, 1
s_cmp_lt_u32 s3, %d
s_cbranch_vccz %s
s_cbranch_scc1 %s
%s:""" % (ok, sp, sleep, load, cmp_, SPIN_LIMIT, ok, sp, ok), raw=True)

    def cosfrag(self, dst, spec, tmp, fix=None):
        g = []
        for i in range(8):
            d, K, b = spec[i]
            if K == 0: g += I("v_mov_b32 v%d, %s" % (tmp[i], b))
            else: g += I("v_fmamk_f32 v%d, %s, %s, %s" % (tmp[i], d, fhex(K), b))
        for i in range(8):
            if fix and i in fix: g += fix[i]
        for i in range(8):
            g += I("v_cos_f32 v%d, v%d" % (tmp[i], tmp[i]))
        for i in range(4):
            g += I("v_cvt_pk_bf16_f32 v%d, v%d, v%d" % (dst + i, tmp[2 * i], tmp[2 * i + 1]))
        return g

    def gen_G(self):
        d, a0 = V(vT[0]), V(vT[1])
        pre = I("""s_lshl_b32 %(t0)s, %(nt)s, 6
s_lshl_b32 %(t1)s, %(w)s, 4
s_add_u32 %(t0)s, %(t0)s, %(t1)s
v_add_u32 %(d)s, %(t0)s, %(l16)s
v_cvt_f32_u32 %(d)s, %(d)s
v_mul_f32 %(d)s, %(c512)s, %(d)s
v_lshrrev_b32 v24, 1, %(hi)s
v_lshlrev_b32 v24, 3, v24
v_cvt_f32_u32 v24, v24
v_and_b32 v25, 1, %(hi)s
v_cvt_f32_u32 v25, v25
v_mul_f32 v25, 0x3e800000, v25
v_fma_f32 %(a0)s, %(d)s, v24, v25
v_cmp_eq_u32 vcc, 1, %(hi)s
v_mul_f32 %(t2)s, 0x43800000, %(d)s
v_cndmask_b32 %(t2)s, %(a0)s, %(t2)s, vcc""" % dict(t0=sT0, t1=sT1, nt=sNT, w=sW, d=d, a0=a0, l16=vL16, hi=vHi, c512=fhex(1 / 512), t2=V(vT[2])))
        groups = [pre]
        for n in range(16):
            spec = [(d, 16 * n + i, a0) for i in range(8)]
            if n == 0: spec[0] = (d, 0, V(vT[2]))
            g = self.cosfrag(64 + 4 * n, spec, vTmp)
            groups += [g[0:8], g[8:12], g[12:16], g[16:20]]
        return groups

    def gen_R(self, t):
        fr = t; tm = list(range(t + 4, t + 12)); r = [V(t + 12 + i) for i in range(14)]
        adr = r[13]
        g = []
        g += I("s_lshl_b32 %s, %s, 11\nv_add_u32 %s, %s, %s" % (sT0, sW, adr, sT0, vL16B))
        g += I("v_add_u32 %s, %d, %s" % (adr, LDS_RPF, adr))
        g += I("v_cvt_f32_u32 %s, %s" % (r[12], vHi))
        g += I("s_cmp_eq_u32 %s, 0\ns_cselect_b64 %s, -1, 0" % (sBP, S(96, 2)))
        g += I("s_cselect_b32 %s, 32, 64" % sT1)
        g += I("""s_and_b32 %(t0)s, %(w)s, 1
s_lshl_b32 %(t0)s, %(t0)s, 4
v_add_u32 %(q)s, %(t0)s, %(l16)s
v_mul_lo_u32 %(k)s, %(q)s, %(t1)s
v_add_u32 %(k)s, %(p)s, %(k)s
s_lshr_b32 %(t2)s, %(w)s, 1
v_cvt_f32_u32 %(ph)s, %(t2)s
v_mul_f32 %(ph)s, 0xbe800000, %(ph)s
v_cvt_f32_u32 %(dl)s, %(k)s
v_mul_f32 %(dl)s, %(c)s, %(dl)s
s_cmp_eq_u32 %(t2)s, 1
s_cselect_b64 %(m2)s, -1, 0
v_cmp_eq_u32 vcc, 0, %(k)s
s_and_b64 vcc, vcc, %(m2)s
v_cndmask_b32 %(dl)s, %(dl)s, 0.5, vcc
v_cndmask_b32 %(ph)s, %(ph)s, 0, vcc
v_add_f32 %(h2)s, %(hf)s, %(hf)s
v_fma_f32 %(b0)s, %(dl)s, %(h2)s, %(ph)s
v_add_f32 %(b1)s, 0x3e800000, %(b0)s
v_cndmask_b32 %(b1)s, %(b1)s, %(b0)s, %(m0)s
v_and_b32 %(q)s, 1, %(q)s
v_cmp_eq_u32 vcc, 1, %(q)s
s_and_b64 vcc, vcc, %(m0)s
v_mov_b32 %(qt)s, 0x3e800000
v_cndmask_b32 %(d0)s, %(dl)s, 0, vcc
v_cndmask_b32 %(b0)s, %(b0)s, %(qt)s, vcc
v_cmp_eq_u32 vcc, 0, %(q)s
s_and_b64 vcc, vcc, %(m0)s
v_cndmask_b32 %(d1)s, %(dl)s, 0, vcc
v_cndmask_b32 %(b1)s, %(b1)s, %(qt)s, vcc""" % dict(t0=sT0, t1=sT1, t2=sT2, w=sW, l16=vL16, p=sBP, q=r[0], k=r[1], ph=r[2], dl=r[3], c=fhex(1 / 2048),
              m2=S(98, 2), m0=S(96, 2), hf=r[12], h2=r[11], b0=r[4], b1=r[5], d0=r[6], d1=r[7], qt=r[10]))
        groups = [g]
        for v in range(2):
            spec = [((r[6], r[7])[i & 1], 16 * v + 8 * (i // 4) + (i % 4) // 2, (r[4], r[5])[i & 1]) for i in range(8)]
            groups.append(self.cosfrag(fr, spec, tm) + I("ds_write_b128 %s, %s offset:%d" % (adr, V(fr, 4), v * 1024), tag="rtab"))
        g = I("""s_lshl_b32 %(t0)s, %(w)s, 3
v_lshrrev_b32 %(b)s, 1, %(l16)s
v_add_u32 %(b)s, %(t0)s, %(b)s
v_cvt_f32_u32 %(bf)s, %(b)s
v_mul_f32 %(bf)s, %(c)s, %(bf)s
v_cvt_f32_u32 %(x)s, %(t1)s
v_mul_f32 %(dl)s, %(bf)s, %(x)s
v_cvt_f32_u32 %(x)s, %(p)s
v_mul_f32 %(e0)s, %(bf)s, %(x)s
v_and_b32 %(cs)s, 1, %(l16)s
v_cvt_f32_u32 %(x)s, %(cs)s
v_mul_f32 %(x)s, 0x3e800000, %(x)s
v_cndmask_b32 %(x)s, %(x)s, 0, %(m0)s
v_add_f32 %(e0)s, %(e0)s, %(x)s
v_mul_f32 %(x)s, 4.0, %(hf)s
v_fmac_f32 %(e0)s, %(dl)s, %(x)s
v_add_f32 %(e1)s, 0xbe800000, %(e0)s
v_cmp_eq_u32 vcc, 0, %(cs)s
s_and_b64 vcc, vcc, %(m0)s
v_cndmask_b32 %(d1)s, %(dl)s, 0, vcc
v_cndmask_b32 %(o0)s, %(e0)s, %(qt)s, vcc
v_cndmask_b32 %(o1)s, %(e1)s, %(qt)s, vcc
s_and_b64 %(m2)s, vcc, 0xffff
v_cmp_eq_u32 vcc, 1, %(cs)s
s_and_b64 vcc, vcc, %(m0)s
v_cndmask_b32 %(d0)s, %(dl)s, 0, vcc
v_cndmask_b32 %(e0)s, %(e0)s, %(qt)s, vcc
v_cndmask_b32 %(e1)s, %(e1)s, %(qt)s, vcc
v_mul_f32 %(bf)s, 0x44800000, %(bf)s
v_cndmask_b32 %(bf)s, %(e1)s, %(bf)s, %(m2)s""" % dict(t0=sT0, t1=sT1, w=sW, l16=vL16, p=sBP, b=r[0], bf=r[1], x=r[2], dl=r[3], c=fhex(1 / 2048),
              e0=r[4], e1=r[5], d0=r[6], d1=r[7], o0=r[8], o1=r[9], cs=r[0], m0=S(96, 2), m2=S(98, 2), hf=r[12], qt=r[10]))
        groups.append(g)
        for v in range(2):
            spec = [((r[6], r[7])[i & 1], 16 * (i // 4) + i % 4, ((r[4], r[5]), (r[8], r[9]))[i & 1][v]) for i in range(8)]
            if v == 1: spec[0] = (r[6], 0, r[1])
            groups.append(self.cosfrag(fr, spec, tm) + I("ds_write_b128 %s, %s offset:%d" % (adr, V(fr, 4), 8192 + v * 1024), tag="rtab"))
        g = I("""s_lshl_b32 %(t0)s, %(w)s, 4
v_add_u32 %(a)s, %(t0)s, %(l16)s
v_cvt_f32_u32 %(a)s, %(a)s
v_mul_f32 %(dl)s, %(c)s, %(a)s
v_mul_f32 %(b0)s, %(dl)s, %(h2)s
v_add_f32 %(b1)s, 0xbe800000, %(b0)s
v_mul_f32 %(a)s, 0.5, %(a)s
v_cmp_eq_u32 vcc, 0, %(hi)s
v_cndmask_b32 %(a)s, %(b1)s, %(a)s, vcc""" % dict(t0=sT0, w=sW, l16=vL16, a=r[0], dl=r[3], c=fhex(1 / 64), b0=r[4], b1=r[5], h2=r[11], hi=vHi))
        groups.append(g)
        for v in range(2):
            spec = [(r[3], 16 * v + 8 * (i // 4) + (i % 4) // 2, (r[4], r[5])[i & 1]) for i in range(8)]
            if v == 0: spec[1] = (r[3], 0, r[0])
            groups.append(self.cosfrag(fr, spec, tm) + I("ds_write_b128 %s, %s offset:%d" % (adr, V(fr, 4), 16384 + v * 1024), tag="rtab"))
        return groups

    def gen_T(self, t):
        r = [V(t + 24 + i) for i in range(8)]
        g = I("""s_lshl_b32 %(t0)s, %(xn)s, 2
s_add_u32 %(t0)s, %(t0)s, %(w)s
s_lshl_b32 %(t0)s, %(t0)s, 4
v_and_b32 %(j)s, 11, %(l16)s
v_add_u32 %(j)s, %(t0)s, %(j)s
v_bfe_u32 %(im)s, %(l16)s, 2, 1
v_cvt_f32_u32 %(b1)s, %(im)s
v_mul_f32 %(b1)s, 0x3e800000, %(b1)s
v_cvt_f32_u32 %(d0)s, %(j)s
v_add_f32 %(d1)s, 4.0, %(d0)s
v_mul_f32 %(d0)s, %(c)s, %(d0)s
v_mul_f32 %(d1)s, %(c)s, %(d1)s
v_lshl_add_u32 %(j)s, %(j)s, 1, %(im)s
v_cmp_eq_u32 vcc, 1, %(j)s
v_lshlrev_b32 %(h8)s, 3, %(hi)s
v_cvt_f32_u32 %(h8)s, %(h8)s
v_cndmask_b32 %(d0)s, %(d0)s, 0.5, vcc
v_cndmask_b32 %(b0)s, %(b1)s, 0, vcc
v_fmac_f32 %(b0)s, %(d0)s, %(h8)s
v_fmac_f32 %(b1)s, %(d1)s, %(h8)s
s_lshl_b32 %(t0)s, %(w)s, 11
v_add_u32 %(adr)s, %(t0)s, %(l16b)s""" % dict(t0=sT0, xn=sXN, w=sW, j=r[0], im=r[1], l16=vL16, hi=vHi, d0=r[2], d1=r[3], b0=r[4], b1=r[5], h8=r[6], adr=r[7],
              c=fhex(1 / 512), l16b=vL16B))
        groups = [g]
        for n in range(8):
            for tt in range(2):
                fr = t + 12 * tt; tm = list(range(fr + 4, fr + 12))
                spec = [(r[2 + tt], 32 * n + i, r[4 + tt]) for i in range(8)]
                groups.append(self.cosfrag(fr, spec, tm) + I("ds_write_b128 %s, %s offset:%d" % (r[7], V(fr, 4), n * 8192 + tt * 1024), tag="ttab"))
        g = I("""s_lshl_b32 %(t0)s, %(w)s, 4
v_add_u32 %(sl)s, %(t0)s, %(l16)s
v_lshrrev_b32 %(d0)s, 1, %(sl)s
v_cvt_f32_u32 %(d0)s, %(d0)s
v_mul_f32 %(d0)s, %(c)s, %(d0)s
v_and_b32 %(b0)s, 1, %(sl)s
v_cvt_f32_u32 %(b0)s, %(b0)s
v_mul_f32 %(b0)s, 0xbe800000, %(b0)s
v_cmp_eq_u32 vcc, 1, %(sl)s
v_mul_f32 %(h8)s, 0.5, %(h8)s
v_add_u32 %(adr)s, %(stg)d, %(adr)s
v_cndmask_b32 %(d0)s, %(d0)s, 0.5, vcc
v_cndmask_b32 %(b0)s, %(b0)s, 0, vcc
v_fmac_f32 %(b0)s, %(d0)s, %(h8)s""" % dict(t0=sT0, w=sW, sl=r[0], l16=vL16, d0=r[2], b0=r[4], h8=r[6], adr=r[7], c=fhex(1 / 64), stg=LDS_STG))
        groups.append(g)
        for v in range(2):
            fr = t + 12 * v; tm = list(range(fr + 4, fr + 12))
            spec = [(r[2], 32 * v + 16 * (i // 4) + i % 4, r[4]) for i in range(8)]
            groups.append(self.cosfrag(fr, spec, tm) + I("ds_write_b128 %s, %s offset:%d" % (r[7], V(fr, 4), v * 1024), tag="ttab"))
        return groups

    def prologue(self):
        p = []
        if self.prof: p += I("s_memrealtime s[100:101]", raw=True)
        p += I("s_cmp_ge_u32 s2, 256\ns_cbranch_scc1 L_end")
        p += I("""s_load_dwordx16 s[48:63], s[0:1], 0
s_load_dwordx4 s[64:67], s[0:1], 64
s_load_dwordx2 s[68:69], s[0:1], 80
v_lshrrev_b32 v1, 6, v0
v_and_b32 v0, 63, v0
v_readfirstlane_b32 %(w)s, v1
v_and_b32 %(l16)s, 15, v0
v_lshrrev_b32 %(hi)s, 4, v0
s_and_b32 %(xcd)s, s2, 7
s_lshr_b32 %(loc)s, s2, 3
s_and_b32 %(l3)s, %(loc)s, 3
s_lshr_b32 %(nt)s, %(loc)s, 2
s_lshr_b32 %(xn)s, %(xcd)s, 1
s_lshl_b32 %(bp)s, %(xcd)s, 2
s_add_u32 %(bp)s, %(bp)s, %(l3)s
s_and_b32 %(b12)s, %(bp)s, 7
s_lshl_b32 %(b12)s, %(b12)s, 2
s_add_u32 %(b12)s, %(b12)s, %(w)s
s_lshl_b32 s76, %(b12)s, 10
s_add_u32 s77, s76, 0x80000
s_add_u32 s78, s76, 0x100000
s_add_u32 s79, s76, 0x180000
v_lshrrev_b32 %(x)s, 3, v0
v_lshlrev_b32 %(x)s, 15, %(x)s
v_and_b32 v24, 7, v0
v_xor_b32 v24, v24, %(hi)s
v_lshl_add_u32 %(x)s, v24, 4, %(x)s
v_lshlrev_b32 %(l16b)s, 4, v0
s_lshl_b32 %(lw)s, %(w)s, 10
s_lshl_b32 %(ring)s, %(w)s, 14
s_add_u32 %(ring)s, %(ring)s, 0x10000
s_mov_b32 %(hi16)s, 0xffff0000""" % dict(w=sW, l16=vL16, hi=vHi, xcd=sXCD, loc=sLOC, l3=sL3, nt=sNT, xn=sXN, bp=sBP, b12=sB12, x=vX, l16b=vL16B, lw=sLW, hi16=sHI16, ring=sRing))
        p += self.srd(SX, 48, 2097152) + self.srd(SWS, 68, 0x10000000) + self.srd(SDBG, 66, 256)
        l = self.lab("noclr")
        p += I("s_cmp_lt_u32 s2, %d\ns_cselect_b32 s95, 1, 0\ns_cmp_eq_u32 %s, 0\ns_cselect_b32 s95, s95, 0\ns_cmp_eq_u32 s95, 0" % (NCLR, sW))
        p += I("""s_cbranch_scc1 %s
v_lshlrev_b32 v24, 7, v0
v_mov_b32 v25, 0
s_lshl_b32 s3, s2, 13
s_add_u32 s3, s3, 0x%x
buffer_store_dword v25, v24, %s, s3 offen sc1
%s:""" % (l, WS_FLAG, SWS, l), raw=True)
        p += I("s_cmp_eq_u32 %s, 7\ns_cbranch_scc1 L_dft" % sNT)
        return p

    def rest_srds(self):
        return self.srd(SWD, 60, 1792 * 1024) + self.srd(SOUT, 64, 2097152) + self.srd(SWR, 50, 2048 * 514) + self.srd(SWI, 52, 2048 * 514) + self.srd(SGW, 62, 1024)

    def announce_clear(self):
        l = self.lab("noann")
        return I("s_cmp_eq_u32 s95, 0") + I("""s_cbranch_scc1 %s
v_mov_b32 v24, 0
v_mov_b32 v25, 1
s_lshl_b32 s3, s2, 2
s_mov_b64 exec, 1
buffer_store_dword v25, v24, %s, s3 offen sc1
s_mov_b64 exec, -1
%s:""" % (l, SDBG, l), raw=True)

    def xloads(self, du):
        g = []
        for m in range(4):
            for e in range(2):
                g.append(I("s_add_u32 m0, %s, %d" % (sRing, (du % 2) * 8192 + (2 * m + e) * 1024)) +
                         I("buffer_load_dwordx4 %s, %s, s%d offen lds" % ((vXr, vXr2)[e], SX, sXO[m]), tag="x%d" % du))
        if du >= 2: g[0] = I("@wait xf%d" % (du - 2)) + g[0]
        return g
    def xfrags(self, du):
        g = []
        for h in range(2):
            for m in range(4):
                g.append(I("ds_read_b128 %s, v%d offset:%d" % (A((du % 2) * 32 + h * 16 + m * 4, 4), vXA[h], (du % 2) * 8192 + m * 2048), tag="xf%d" % du))
        g[0] = I("@wait x%d" % du) + g[0]
        return g
    def kadv(self, du, ffn):
        g = []
        if du: g += I("s_add_u32 %s, %s, 1\ns_and_b32 %s, %s, 7" % (sK, sK, sK, sK))
        g += I("v_lshl_add_u32 %s, %s, 7, %s\nv_xor_b32 %s, 0x40040, %s" % (vXr, sK, vX, vXr2, vXr))
        if ffn:
            g += I("s_mul_i32 %s, %s, %d\ns_add_u32 %s, %s, %s\ns_add_u32 %s, %s, %d" % (sWo0, sK, 64 * 3584, sWo0, sWo0, sWbase, sWo1, sWo0, 32 * 3584))
        return g
    def wloads(self, du):
        g = []
        for h in range(2):
            for mat in range(2):
                g.append(I("s_add_u32 m0, %s, %d" % (sLW, ((2 * du + h) % 8) * 8192 + mat * 4096)) +
                         I("buffer_load_dwordx4 %s, %s, %s offen lds" % (vW, (SWG, SWU)[mat], (sWo0, sWo1)[h]), tag="w%d" % du))
        return g

    def wd_setup(self, base, nb):
        g = I("""v_lshrrev_b32 v24, 3, v0
v_bfe_u32 v25, v0, 1, 2
v_bfe_u32 v26, v0, 4, 2
v_xor_b32 v25, v25, v26
v_lshlrev_b32 v25, 5, v25
v_lshl_add_u32 v25, v24, 10, v25
v_and_b32 v24, 1, v0
v_lshl_add_u32 %(wd)s, v24, 4, v25
s_mul_i32 %(wdo)s, %(w)s, %(c)d
s_lshl_b32 %(t0)s, %(nt)s, 7
s_add_u32 %(wdo)s, %(wdo)s, %(t0)s
v_bfe_u32 v24, v0, 2, 3
v_lshrrev_b32 v25, 5, v0
v_lshlrev_b32 v25, 10, v25
v_lshl_add_u32 v25, v24, 7, v25
v_and_b32 v26, 3, v0
v_lshl_add_u32 v25, v26, 3, v25
v_add_u32 v25, %(ring)s, v25
v_lshrrev_b32 v24, 1, v24""" % dict(wd=vWd, wdo=sWdo, w=sW, c=448 * 1024, t0=sT0, nt=sNT, ring=sRing, rb=nb * 1024, base=base))
        for dl in range(4):
            g += I("s_add_u32 %s, %s, %d\ns_and_b32 %s, %s, 3\nv_xor_b32 v26, %s, v24\nv_lshl_add_u32 v%d, v26, 5, v25" % (sT0, sW, dl, sT0, sT0, sT0, vDT[dl]))
        return g
    def wd_dma(self, j, nb):
        g = []
        if j >= nb and (j % 4) == 0: g += I("@wait t%d" % ((j - nb) // 4))
        g += I("s_add_u32 m0, %s, %d" % (sRing, (j % nb) * 1024))
        if j: g += I("s_add_u32 %s, %s, 8192" % (sWdo, sWdo))
        g += I("buffer_load_dwordx4 %s, %s, %s offen lds" % (vWd, SWD, sWdo), tag="d%d" % (j // 4))
        return g
    def wd_reg(self, u, dl):
        return (96 + 16 * u if u < 8 else 16 * (u - 8)) + 4 * dl
    def wd_tr(self, u, nb):
        gs = []
        for dl in range(4):
            g = I("@wait d%d" % u) if dl == 0 else []
            for j4 in range(2):
                g += I("ds_read_b64_tr_b16 %s, v%d offset:%d" % (A(self.wd_reg(u, dl) + 2 * j4, 2), vDT[dl], ((4 * u + 2 * j4) % nb) * 1024), tag="t%d" % u)
            gs.append(g)
        return gs

    def side_loads(self):
        g0 = I("""s_cmp_eq_u32 %(p)s, 0
s_cselect_b32 %(t1)s, 32, 64
s_cselect_b64 %(m)s, 0xffff, 0
v_and_b32 v24, 31, v0
v_mul_lo_u32 v24, v24, %(t1)s
v_add_u32 v24, %(p)s, v24
v_sub_u32 v25, 0x800, v24
v_cmp_eq_u32 vcc, 0, v24
v_mov_b32 v26, 0x400
s_lshl_b32 %(t0)s, %(nt)s, 2
s_add_u32 %(t0)s, %(t0)s, %(w)s
v_cndmask_b32 v25, v25, v26, vcc
v_cmp_gt_u32 vcc, 32, v0
s_lshl_b32 %(t2)s, %(t0)s, 4
s_cselect_b32 %(t3)s, %(t2)s, 512
v_cndmask_b32 v24, v25, v24, vcc
v_mul_u32_u24 v24, 514, v24""" % dict(p=sBP, t0=sT0, t1=sT1, t2=sT2, t3=sT3, m=sMASK, nt=sNT, w=sW))
        gs = [g0 + I("buffer_load_dwordx4 v[64:67], v24, %s, %s offen" % (SWR, sT2)),
              I("buffer_load_dwordx4 v[68:71], v24, %s, %s offen" % (SWI, sT2)),
              I("buffer_load_ushort v72, v24, %s, %s offen" % (SWR, sT3)),
              I("buffer_load_ushort v73, v24, %s, %s offen" % (SWI, sT3))]
        g1 = I("""s_lshl_b32 %(t0)s, %(t0)s, 1
v_lshrrev_b32 v25, 5, v0
v_add_u32 %(e)s, %(t0)s, v25
v_and_b32 v25, 3, %(e)s
v_lshrrev_b32 v26, 2, %(e)s
v_lshl_add_u32 v25, v25, 4, v26
v_lshlrev_b32 v25, 15, v25
v_and_b32 v26, 31, v0
v_lshlrev_b32 v26, 4, v26
v_add_u32 v25, v25, v26
s_lshl_b32 %(t1)s, %(bp)s, 10""" % dict(t0=sT0, t1=sT1, e=V(vT[3]), bp=sBP))
        gs += [g1 + I("buffer_load_dwordx4 v[76:79], v25, %s, %s offen" % (SX, sT1)),
               I("buffer_load_dwordx4 v[80:83], v25, %s, %s offen offset:512" % (SX, sT1)),
               I("buffer_load_dwordx4 v[84:87], v26, %s, 0 offen" % SGW),
               I("buffer_load_dwordx4 v[88:91], v26, %s, 0 offen offset:512" % SGW),
               I("v_min_u32 %s, %d, v0\nv_lshlrev_b32 %s, 2, %s" % (vPA, NCLR - 1, vPA, vPA)) + I(self.gate_load())]
        return gs
    def gate_load(self):
        return "buffer_load_dword %s, %s, %s, 0 offen sc1" % (vP, vPA, SDBG)

    def gate_g(self):
        g = I("v_dot2_f32_bf16 v92, v76, v84, 0\nv_dot2_f32_bf16 v93, v77, v85, 0\nv_dot2_f32_bf16 v94, v78, v86, 0\nv_dot2_f32_bf16 v95, v79, v87, 0")
        g += I("v_dot2_f32_bf16 v92, v80, v88, v92\nv_dot2_f32_bf16 v93, v81, v89, v93\nv_dot2_f32_bf16 v94, v82, v90, v94\nv_dot2_f32_bf16 v95, v83, v91, v95")
        gs = [g, I("v_add_f32 v92, v92, v93\nv_add_f32 v94, v94, v95"), I("v_add_f32 v92, v92, v94")]
        for sh in (1, 2, 4, 8):
            gs.append(I("v_add_f32_dpp v92, v92, v92 row_shr:%d row_mask:0xf bank_mask:0xf bound_ctrl:1" % sh))
        gs.append(I("v_add_f32_dpp v92, v92, v92 row_bcast:15 row_mask:0xa bank_mask:0xf"))
        gs.append(I("v_mul_f32 v92, 0xbfb8aa3b, v92\nv_exp_f32 v92, v92\nv_lshlrev_b32 v93, 2, %s\nv_add_f32 v92, 1.0, v92\nv_rcp_f32 v92, v92" % V(vT[3])))
        gs.append(I("s_lshl_b32 %s, %s, 8\ns_add_u32 %s, %s, 0x%x\ns_mov_b32 exec_lo, 0x80000000\ns_mov_b32 exec_hi, 0x80000000" % (sT0, sBP, sT0, sT0, WS_G)) +
                  I("buffer_store_dword v92, v93, %s, %s offen sc1" % (SWS, sT0), tag="gst") + I("s_mov_b64 exec, -1"))
        return gs

    def coefs(self, stg):
        sc, scs = V(vT[4]), V(vT[5])
        g0 = I("""s_lshl_b32 %(t0)s, %(w)s, 12
s_add_u32 %(t0)s, %(t0)s, %(stg)d
v_lshl_add_u32 v24, v0, 5, %(t0)s
v_lshl_add_u32 v25, v0, 3, %(t0)s
ds_write_b128 v24, v[64:67]
ds_write_b128 v24, v[68:71] offset:2048
v_and_or_b32 v64, v64, %(hi16)s, v72
v_and_or_b32 v68, v68, %(hi16)s, v73
ds_write_b128 v24, v[64:67] offset:16
ds_write_b128 v24, v[68:71] offset:2064""" % dict(t0=sT0, w=sW, stg=stg, hi16=sHI16))
        g1 = []
        for arr in range(2):
            for side in range(2):
                for th in range(2):
                    g1 += I("ds_read_b64_tr_b16 %s, v25 offset:%d" % (V(32 + ((th * 2 + arr) * 2 + side) * 2, 2), arr * 2048 + side * 1024 + th * 512))
        g2 = I("""s_lshl_b32 %(t0)s, %(nt)s, 2
s_add_u32 %(t0)s, %(t0)s, %(w)s
v_and_b32 v26, 7, v0
v_or_b32 v26, %(t0)s, v26
v_cmp_eq_u32 vcc, 0, v26
v_mov_b32 %(sc)s, %(c19)s
v_mov_b32 v27, %(c20)s
v_bfe_u32 v26, v0, 3, 1
v_xor_b32 v26, 1, v26
v_lshl_or_b32 %(scs)s, v26, 31, %(sc)s
v_cndmask_b32 %(sc)s, %(sc)s, v27, vcc
v_cndmask_b32 %(scs)s, %(scs)s, 0, vcc""" % dict(t0=sT0, nt=sNT, w=sW, sc=sc, scs=scs, c19=fhex(2.0 ** -19), c20=fhex(2.0 ** -20)))
        gs = [g0, g1, g2]
        for th in range(2):
            for r in range(4):
                e = th * 4 + r
                g = []
                t = 48 + (e % 2) * 8
                for n, (arr, side) in enumerate([(0, 0), (0, 1), (1, 0), (1, 1)]):
                    src = 32 + ((th * 2 + arr) * 2 + side) * 2 + r // 2
                    g += I("v_and_b32 v%d, %s, v%d" % (t + n, sHI16, src) if r & 1 else "v_lshlrev_b32 v%d, 16, v%d" % (t + n, src))
                a_, b_, c_, d_ = 128 + e, 136 + e, 144 + e, 152 + e
                g += I("v_add_f32 v%d, v%d, v%d\nv_add_f32 v%d, v%d, v%d\nv_sub_f32 v%d, v%d, v%d\nv_sub_f32 v%d, v%d, v%d" % (
                    a_, t, t + 1, b_, t + 2, t + 3, c_, t + 3, t + 2, d_, t, t + 1))
                if e == 0:
                    g += I("v_cndmask_b32 v160, v%d, v%d, %s\nv_cndmask_b32 v161, v%d, v%d, %s" % (a_, t + 1, sMASK, b_, t + 3, sMASK))
                    g += I("v_cndmask_b32 v%d, v%d, v%d, %s\nv_cndmask_b32 v%d, v%d, v%d, %s" % (a_, a_, t, sMASK, b_, b_, t + 2, sMASK))
                    g += I("v_cndmask_b32 v%d, v%d, 0, %s\nv_cndmask_b32 v%d, v%d, 0, %s" % (c_, c_, sMASK, d_, d_, sMASK))
                    g += I("v_mul_f32 v160, %s, v160\nv_mul_f32 v161, %s, v161" % (sc, scs))
                g += I("v_mul_f32 v%d, %s, v%d\nv_mul_f32 v%d, %s, v%d\nv_mul_f32 v%d, %s, v%d\nv_mul_f32 v%d, %s, v%d" % (
                    a_, sc, a_, b_, scs, b_, c_, sc, c_, d_, scs, d_))
                gs.append(g)
        return gs

    def set_flag(self, tag):
        return (I("s_lshl_b32 %s, %s, 5\ns_add_u32 %s, %s, %s\ns_lshl_b32 %s, %s, 7\ns_add_u32 %s, %s, 0x%x\nv_mov_b32 v24, 0\nv_mov_b32 v25, 1" % (
                    sT0, sB12, sT0, sT0, sNI, sT0, sT0, sT0, sT0, WS_FLAG)) +
                I("@wait %s" % tag) + I("s_mov_b64 exec, 1") + I("buffer_store_dword v25, v24, %s, %s offen sc1" % (SWS, sT0)) + I("s_mov_b64 exec, -1"))

    def p12(self, ffn):
        nb = 16
        p = I("@reset")
        if ffn:
            p += self.srd(SWG, 56, 512 * 3584) + self.srd(SWU, 58, 512 * 3584)
            p += I("""s_mul_i32 %(ni)s, %(xn)s, 7
s_add_u32 %(ni)s, %(ni)s, %(nt)s
s_mul_i32 %(wb)s, %(w)s, %(c)d
s_lshl_b32 %(t0)s, %(ni)s, 7
s_add_u32 %(wb)s, %(wb)s, %(t0)s
v_lshrrev_b32 v24, 3, v0
v_mul_u32_u24 v24, 3584, v24
s_and_b32 %(t0)s, %(w)s, 1
s_lshl_b32 %(t0)s, %(t0)s, 1
v_bfe_u32 v25, v0, 4, 1
v_or_b32 v25, %(t0)s, v25
v_bfe_u32 v26, v0, 1, 2
v_xor_b32 v25, v25, v26
v_lshl_add_u32 v24, v25, 5, v24
v_and_b32 v25, 1, v0
v_lshl_add_u32 %(vw)s, v25, 4, v24""" % dict(ni=sNI, xn=sXN, nt=sNT, wb=sWbase, w=sW, c=8 * 3584, t0=sT0, vw=vW))
            if self.rot == 0: p += I("s_mov_b32 %s, 0" % sK)
            elif self.rot == 1: p += I("s_lshl_b32 %s, %s, 1\ns_add_u32 %s, %s, %s\ns_and_b32 %s, %s, 7" % (sK, sL3, sK, sK, sNT, sK, sK))
            elif self.rot == 2: p += I("s_xor_b32 %s, %s, %s\ns_and_b32 %s, %s, 1\ns_lshl_b32 %s, %s, 2" % (sK, sL3, sNT, sK, sK, sK, sK))
        else:
            p += I("s_add_u32 %s, %s, 28\ns_mov_b32 %s, 4" % (sNI, sXN, sK))
        for du in range(2):
            p += self.kadv(du, ffn)
            if ffn: p += flat(self.wloads(du))
            p += flat(self.xloads(du))
        p += self.rest_srds()
        p += self.stamp(0)
        p += self.wd_setup(65536, nb)
        p += I("""v_lshrrev_b32 v24, 1, %(l16)s
v_xor_b32 v24, v24, %(hi)s
v_lshlrev_b32 v24, 4, v24
v_lshl_add_u32 v24, %(l16)s, 7, v24
v_add_u32 v%(a0)d, %(ring)s, v24
v_xor_b32 v%(a1)d, 64, v%(a0)d""" % dict(l16=vL16, hi=vHi, ring=sRing, a0=vXA[0], a1=vXA[1]))
        if ffn:
            p += I("""v_lshlrev_b32 v24, 10, %(hi)s
v_bfe_u32 v25, v0, 2, 2
v_lshl_add_u32 v24, v25, 7, v24
v_and_b32 v25, 3, v0
v_lshl_add_u32 v24, v25, 3, v24
v_bfe_u32 v25, v0, 3, 2""" % dict(hi=vHi))
            for t in range(4):
                p += I("v_xor_b32 v26, %d, v25\nv_lshl_add_u32 v%d, v26, 5, v24" % (t, vWT[t]))
            p += flat(self.gen_R(128))
            p += I("@wait w0 rtab")
        else:
            p += flat(self.gen_T(128))
            p += I("v_and_b32 %s, 1, v0\nv_lshlrev_b32 %s, 31, %s" % (V(vWT[0]), V(vWT[0]), V(vWT[0])))
            p += I("@wait x0 ttab")
        p += I("s_barrier")
        p += self.announce_clear()
        p += self.stamp(1)

        def rd(phi):
            n, tau = divmod(phi, 8)
            if ffn:
                off = (n % 8) * 8192 + (tau & 1) * 4096
                pre = []
                return [pre + I("ds_read_b64_tr_b16 %s, v%d offset:%d" % (V(32 + 4 * tau, 2), vWT[tau // 2], off)),
                        I("ds_read_b64_tr_b16 %s, v%d offset:%d" % (V(34 + 4 * tau, 2), vWT[tau // 2], off + 512))]
            return [I("ds_read_b128 %s, %s offset:%d" % (V(32 + 4 * tau, 4), vL16B, (n % 8) * 8192 + tau * 1024))]
        for phi in range(4): p += flat(rd(phi))
        p += flat(self.xfrags(0))
        for du in range(8):
            main = []
            for h in range(2):
                n = 2 * du + h
                for tau in range(8):
                    for m in range(4):
                        acc = V(128 + (tau * 4 + m) * 4, 4)
                        xf = A((du % 2) * 32 + h * 16 + m * 4, 4); wf = V(32 + 4 * tau, 4)
                        g = []
                        if (not ffn) and n == 8:
                            pass
                        g += I("v_mfma_f32_16x16x32_bf16 %s, %s, %s, %s" % (acc, wf if ffn else xf, xf if ffn else wf, acc if n else "0"))
                        main.append(g)
            for i in range(16):
                phi = 16 * du + i + 4
                if phi < 128:
                    r = rd(phi)
                    if ffn and i == 12: r[0] = I("@wait w%d\ns_barrier" % (du + 1)) + r[0]
                    for k, g in enumerate(r): place(main, 4 * i + 2 * k, g)
            if not ffn and du in (3, 4):
                for q in range(32):
                    flip = I("\n".join("v_xor_b32 v%d, %s, v%d" % (128 + 4 * q + r, V(vWT[0]), 128 + 4 * q + r) for r in range(4)))
                    pos = 32 + q + 16
                    if du == 3 and pos < 64: place(main, pos, flip)
                    if du == 4 and pos >= 64: place(main, pos - 64, flip)
            if du < 7:
                for k, g in enumerate(self.xfrags(du + 1)): place(main, self.kw.get("xfpos", 45) + 2 * k, g)
            vm = []
            if du < 6:
                vm = (self.wloads(du + 2) if ffn else []) + self.xloads(du + 2)
                vm[0] = self.kadv(du + 2, ffn) + vm[0]
                main = weave(main, vm, 1, 61)
            elif du == 6:
                main = weave(main, self.side_loads(), 1, 25)
                dm = [self.wd_dma(j, nb) for j in range(8)]
                dm[0] = I("@wait xf6") + dm[0]
                main = weave(main, dm, 27, 63)
            else:
                dm = [self.wd_dma(j, nb) for j in range(8, nb)]
                dm[0] = I("@wait xf7") + dm[0]
                main = weave(main, dm, 5, 45)
                if not ffn:
                    rr = [I("ds_read_b128 %s, v24 offset:%d" % (A(224 + 4 * f, 4), f * 1024)) for f in range(8)]
                    rr[0] = I("v_add_u32 v24, %d, %s" % (LDS_STG, vL16B)) + rr[0]
                    main = weave(main, rr, 49, 63)
            p += flat(main)
        p += self.stamp(2)
        p += I("@waitlg0\ns_barrier")
        if ffn:
            pre = I("s_mul_i32 %s, %s, 56\ns_lshl_b32 %s, %s, 1\ns_add_u32 %s, %s, %s\ns_lshl_b32 %s, %s, 12\ns_add_u32 %s, %s, 4096" % (
                sT2, sB12, sT0, sNI, sT2, sT2, sT0, sT2, sT2, sT3, sT2))
            ep = []
            for u in range(2):
                for m in range(4):
                    g0, u0, g1, u1 = [128 + ((4 * u + k) * 4 + m) * 4 for k in range(4)]
                    g = []
                    for gg in (g0, g1):
                        g += I("\n".join("v_max_f32 v%d, 0, v%d" % (gg + r, gg + r) for r in range(4)))
                    ep.append(g); g = []
                    for gg, uu in ((g0, u0), (g1, u1)):
                        g += I("v_pk_mul_f32 %s, %s, %s\nv_pk_mul_f32 %s, %s, %s" % (V(gg, 2), V(gg, 2), V(uu, 2), V(gg + 2, 2), V(gg + 2, 2), V(uu + 2, 2)))
                    g += I("v_cvt_pk_bf16_f32 v%d, v%d, v%d\nv_cvt_pk_bf16_f32 v%d, v%d, v%d\nv_cvt_pk_bf16_f32 v%d, v%d, v%d\nv_cvt_pk_bf16_f32 v%d, v%d, v%d" % (
                        u0, g0, g0 + 1, u0 + 1, g0 + 2, g0 + 3, u0 + 2, g1, g1 + 1, u0 + 3, g1 + 2, g1 + 3))
                    g += I("buffer_store_dwordx4 %s, %s, %s, %s offen offset:%d sc1" % (V(u0, 4), vL16B, SWS, (sT2, sT3)[u], m * 1024), tag="pub")
                    ep.append(g)
            ep[0] = pre + ep[0]
        else:
            pre = I("""v_lshrrev_b32 v24, 1, %(l16)s
v_lshlrev_b32 v24, 16, v24
v_lshrrev_b32 v25, 1, %(hi)s
v_lshl_add_u32 v24, v25, 6, v24
v_and_b32 v25, 1, v0
v_lshl_add_u32 v24, v25, 5, v24
v_and_b32 v25, 1, %(hi)s
v_lshl_add_u32 %(xr)s, v25, 4, v24
s_lshl_b32 s76, %(xn)s, 14
s_lshl_b32 %(t0)s, %(b12)s, 7
s_add_u32 s76, s76, %(t0)s
s_add_u32 s76, s76, 0x%(x1)x
s_add_u32 s77, s76, 0x80000
s_add_u32 s78, s76, 0x100000
s_add_u32 s79, s76, 0x180000""" % dict(l16=vL16, hi=vHi, xr=vXr, xn=sXN, t0=sT0, b12=sB12, x1=WS_X1))
            def cv(t):
                pk = 32 + 8 * (t % 2)
                return I("\n".join("v_cvt_pk_bf16_f32 v%d, v%d, v%d" % (pk + i, 128 + 16 * t + 2 * i, 129 + 16 * t + 2 * i) for i in range(8)))
            def mm(t):
                pk = 32 + 8 * (t % 2); gs = []
                for v in range(2):
                    for sg in range(4):
                        d = V(128 + 16 * t + 4 * sg, 4)
                        gs.append(I("v_mfma_f32_16x16x32_bf16 %s, %s, %s, %s" % (d, V(pk + 4 * v, 4), A(224 + (2 * sg + v) * 4, 4), d if v else "0")))
                return gs
            def st(tp):
                gs = []
                for sg in range(4):
                    o = 48 + 4 * sg; d0 = 128 + 32 * tp + 4 * sg; d1 = d0 + 16
                    g = I("v_cvt_pk_bf16_f32 v%d, v%d, v%d\nv_cvt_pk_bf16_f32 v%d, v%d, v%d" % (o, d0, d0 + 1, o + 1, d0 + 2, d0 + 3))
                    gs.append(g)
                    g = I("v_cvt_pk_bf16_f32 v%d, v%d, v%d\nv_cvt_pk_bf16_f32 v%d, v%d, v%d" % (o + 2, d1, d1 + 1, o + 3, d1 + 2, d1 + 3))
                    g += I("buffer_store_dwordx4 %s, %s, %s, s%d offen sc1" % (V(o, 4), vXr, SWS, 76 + sg), tag="pub")
                    if tp < 3: g += I("s_add_u32 s%d, s%d, 4096" % (76 + sg, 76 + sg))
                    gs.append(g)
                return gs
            ep = [pre + cv(0)]
            for t in range(8):
                m_ = mm(t)
                if t < 7: m_ = weave(m_, [[x] for x in cv(t + 1)], 0, 8)
                if t % 2 == 1 and t >= 3: m_ = weave(m_, st(t // 2 - 1), 0, 8)
                ep += m_
            ep += st(3)
        ep = weave(ep, [g for u in range(4) for g in self.wd_tr(u, nb)])
        p += flat(ep)
        p += self.stamp(3)
        p += self.spin(self.gate_load(), 1)
        return p

    def tail(self, ffn):
        nb = 16
        p = []
        w1 = self.gate_g() + self.coefs(0)
        pump = [self.wd_dma(j, nb) for j in range(nb, nb + 16)]
        nxt_u, nxt_j = 4, nb + 16
        p += flat(weave(w1, pump))
        p += self.set_flag("pub")
        p += self.stamp(4)
        w2 = ([] if ffn else self.gen_R(192)) + self.gen_G()
        pump = []
        for u in range(nxt_u, 14):
            pump += self.wd_tr(u, nb)
            if u > nxt_u and nxt_j < 56:
                pump += [self.wd_dma(j, nb) for j in range(nxt_j, nxt_j + 4)]; nxt_j += 4
        assert nxt_j == 56
        p += flat(weave(w2, pump))
        p += I("""s_lshr_b32 %(t0)s, %(nt)s, 1
s_add_u32 %(t0)s, %(t0)s, 28
v_lshl_add_u32 v24, v0, 5, %(t0)s
s_mul_i32 %(t0)s, %(w)s, 7
s_lshl_b32 %(t1)s, %(bp)s, 5
s_add_u32 %(t0)s, %(t0)s, %(t1)s
v_and_b32 v25, 7, v0
v_min_u32 v25, 6, v25
v_add_u32 v25, %(t0)s, v25
v_cmp_gt_u32 vcc, 32, v0
s_mov_b32 %(t3)s, 0x%(fl)x
v_cndmask_b32 %(pa)s, v25, v24, vcc
v_lshlrev_b32 %(pa)s, 7, %(pa)s""" % dict(t0=sT0, t1=sT1, t3=sT3, nt=sNT, w=sW, bp=sBP, pa=vPA, fl=WS_FLAG))
        ld = "buffer_load_dword %s, %s, %s, %s offen sc1" % (vP, vPA, SWS, sT3)
        p += I(ld)
        p += I("""v_lshrrev_b32 v24, 2, v0
v_and_b32 v25, 3, v0
v_lshlrev_b32 v25, 4, v25
v_lshl_add_u32 v26, v24, 7, v25
s_lshl_b32 %(t0)s, %(nt)s, 13
s_lshr_b32 %(t1)s, %(w)s, 1
s_lshl_b32 %(t1)s, %(t1)s, 12
s_add_u32 %(t0)s, %(t0)s, %(t1)s
s_and_b32 %(t1)s, %(w)s, 1
s_lshl_b32 %(t1)s, %(t1)s, 6
s_add_u32 %(t0)s, %(t0)s, %(t1)s
s_lshl_b32 %(t1)s, %(bp)s, 7
s_add_u32 s76, %(t0)s, %(t1)s
s_and_b32 %(t1)s, %(bp)s, 4
s_lshl_b32 %(t1)s, %(t1)s, 4
s_xor_b32 s76, s76, %(t1)s
s_add_u32 s76, s76, 0x%(u)x
s_add_u32 s77, s76, 0x80000
s_add_u32 s78, s76, 0x100000
s_add_u32 s79, s76, 0x180000
s_lshl_b32 %(t1)s, %(bp)s, 16
s_add_u32 %(t0)s, %(t0)s, %(t1)s
s_add_u32 %(t0)s, %(t0)s, 0x%(x1)x
s_add_u32 %(t1)s, %(t0)s, 2048
s_lshl_b32 %(t2)s, %(w)s, 11
s_add_u32 %(t2)s, %(t2)s, %(stg)d
v_lshl_add_u32 v27, v0, 3, %(t2)s
s_mul_i32 %(ho)s, %(bp)s, 56
s_mul_i32 s3, %(w)s, 14
s_add_u32 %(ho)s, %(ho)s, s3
s_lshl_b32 %(ho)s, %(ho)s, 12
v_lshrrev_b32 v24, 1, %(l16)s
v_lshlrev_b32 v24, 16, v24
v_and_b32 v25, 1, v0
v_lshl_add_u32 v24, v25, 5, v24
v_lshl_add_u32 %(xr)s, %(hi)s, 3, v24
v_add_u32 v28, %(rpf)d, %(l16b)s""" % dict(t0=sT0, t1=sT1, t2=sT2, nt=sNT, w=sW, bp=sBP, u=WS_U, x1=WS_X1, stg=LDS_STG, ho=sHo, l16=vL16, hi=vHi, xr=vXr,
              rpf=LDS_RPF, l16b=vL16B))
        p += I("@waitlg0\ns_barrier")
        for f in range(8):
            p += I("ds_read_b128 %s, v28 offset:%d" % (A(224 + 4 * f, 4), f * 1024))
        p += self.stamp(5)
        p += self.spin(ld, 1)
        p += self.stamp(6)
        p += I("s_mov_b32 m0, %s" % sT2) + I("buffer_load_dwordx4 v26, %s, %s offen sc1 lds" % (SWS, sT0), tag="x1")
        p += I("s_add_u32 m0, %s, 1024" % sT2) + I("buffer_load_dwordx4 v26, %s, %s offen sc1 lds" % (SWS, sT1), tag="x1")
        ring = [192, 208, 224, 240, 32, 48]
        def hload(u, st):
            g = []
            if st == 0 and u: g += I("s_add_u32 %s, %s, 4096" % (sHo, sHo))
            return g + I("buffer_load_dwordx4 %s, %s, %s, %s offen offset:%d sc1" % (V(ring[u % 6] + 4 * st, 4), vL16B, SWS, sHo, st * 1024))
        for u in range(4):
            for st in range(4): p += hload(u, st)
        p += I("@wait x1")
        for k in range(4):
            p += I("ds_read_b64_tr_b16 %s, v27 offset:%d" % (V(164 + 2 * k, 2), 512 * k))
        for v in range(2):
            for tau in range(4):
                d = V(32 + 4 * tau, 4)
                p += I("v_mfma_f32_16x16x32_bf16 %s, %s, %s, %s" % (d, A(224 + (2 * tau + v) * 4, 4), V(164 + 4 * v, 4), d if v else "0"))
        for f in range(8):
            p += I("ds_read_b128 %s, v28 offset:%d" % (A(224 + 4 * f, 4), 8192 + f * 1024))
        dpp = "row_ror:8 row_mask:0xf bank_mask:0xf"
        for e in range(8): p += I("v_mul_f32 v%d, v%d, v%d" % (48 + e, 128 + e, 32 + e))
        for e in range(8): p += I("v_mul_f32 v%d, v%d, v%d" % (56 + e, 144 + e, 32 + e))
        for e in range(8): p += I("v_fmac_f32_dpp v%d, v%d, v%d %s" % (48 + e, 32 + e, 136 + e, dpp))
        for e in range(8): p += I("v_fmac_f32_dpp v%d, v%d, v%d %s" % (56 + e, 32 + e, 152 + e, dpp))
        for e in range(8): p += I("v_fma_f32 v%d, -v%d, v%d, v%d" % (48 + e, 144 + e, 40 + e, 48 + e))
        for e in range(8): p += I("v_fmac_f32 v%d, v%d, v%d" % (56 + e, 128 + e if e else 160, 40 + e))
        for e in range(8): p += I("v_fmac_f32_dpp v%d, -v%d, v%d %s" % (48 + e, 40 + e, 152 + e, dpp))
        for e in range(8): p += I("v_fmac_f32_dpp v%d, v%d, v%d %s" % (56 + e, 40 + e, 136 + e if e else 161, dpp))
        for i in range(8): p += I("v_cvt_pk_bf16_f32 v%d, v%d, v%d" % (172 + i, 48 + 2 * i, 49 + 2 * i))
        for v in range(2):
            for kt in range(4):
                d = V(32 + 4 * kt, 4)
                p += I("v_mfma_f32_16x16x32_bf16 %s, %s, %s, %s" % (d, V(172 + 4 * v, 4), A(224 + (2 * kt + v) * 4, 4), d if v else "0"))
        for st in range(4): pass
        for kt in range(4):
            p += I("v_cvt_pk_bf16_f32 v%d, v%d, v%d\nv_cvt_pk_bf16_f32 v%d, v%d, v%d" % (24 + 2 * kt, 32 + 4 * kt, 33 + 4 * kt, 25 + 2 * kt, 34 + 4 * kt, 35 + 4 * kt))
            p += I("buffer_store_dwordx2 %s, %s, %s, s%d offen sc1" % (V(24 + 2 * kt, 2), vXr, SWS, 76 + kt), tag="ust")
        p += self.stamp(7)
        main = []
        for u in range(14):
            for st in range(4):
                for dl in range(4):
                    d = V(128 + (dl * 4 + st) * 4, 4)
                    g = I("v_mfma_f32_16x16x32_bf16 %s, %s, %s, %s" % (d, A(self.wd_reg(u, dl), 4), V(ring[u % 6] + 4 * st, 4), d if u else "0"))
                    main.append(g)
        seq = [(u, st) for u in range(4, 14) for st in range(4)]
        for k, (u, st) in enumerate(seq):
            pos = max(k // 1 if k < 8 else 0, (u - 6) * 16 + st * 4 + 3) if u >= 6 else k
            pos = max(pos, k)
            place(main, pos, hload(u, st))
        sig = I("s_lshl_b32 %s, %s, 3\ns_add_u32 %s, %s, %s\ns_lshl_b32 %s, %s, 7\ns_add_u32 %s, %s, 0x%x\nv_mov_b32 %s, 0\nv_mov_b32 %s, 1" % (
            sT0, sBP, sT0, sT0, sNT, sT0, sT0, sT0, sT0, WS_CNT, V(vT[0]), V(vT[1])))
        l = self.lab("nosig")
        sig += I("@wait ust gst") + I("s_barrier\ns_cmp_lg_u32 %s, 0" % sW)
        sig += I("s_cbranch_scc1 %s\ns_mov_b64 exec, 1\nbuffer_store_dword %s, %s, %s, %s offen sc1\ns_mov_b64 exec, -1\n%s:" % (l, V(vT[1]), V(vT[0]), SWS, sT0, l), raw=True)
        place(main, self.kw.get("sigpos", 64), sig)
        misc = [I("v_add_u32 v28, %d, %s" % (LDS_R64I, vL16B))]
        misc += [I("ds_read_b128 %s, v28 offset:%d" % (A(224 + 4 * f, 4), f * 1024)) for f in range(8)]
        for dl in range(4):
            misc.append(I("s_add_u32 %s, %s, %d\ns_and_b32 %s, %s, 3\ns_mul_i32 %s, %s, 12288\ns_add_u32 %s, %s, %d\nv_add_u32 v%d, %s, %s" % (
                sT1, sW, dl, sT1, sT1, sT1, sT1, sT1, sT1, LDS_RED + max(0, dl - 1) * 4096, vDT[dl], sT1, vL16B)))
        misc.append(I("""v_lshrrev_b32 v29, 1, %(l16)s
v_lshlrev_b32 v29, 7, v29
v_lshrrev_b32 v30, 1, %(hi)s
v_bfe_u32 v31, v0, 3, 1
v_xor_b32 v30, v30, v31
v_lshl_add_u32 v29, v30, 6, v29""" % dict(l16=vL16, hi=vHi)))
        misc.append(I("""v_and_b32 v30, 1, v0
v_lshl_add_u32 v29, v30, 5, v29
v_and_b32 v30, 1, %(hi)s
v_lshl_add_u32 %(w)s, v30, 4, v29""" % dict(hi=vHi, w=vW)))
        misc.append(I("""s_lshl_b32 %(t2)s, %(bp)s, 16
s_add_u32 %(t2)s, %(t2)s, %(lw)s
s_add_u32 %(t2)s, %(t2)s, 0x%(u)x
v_lshlrev_b32 %(pa)s, 7, v0
s_lshl_b32 %(t3)s, %(lw)s, 3
s_add_u32 %(t3)s, %(t3)s, 0x%(cnt)x""" % dict(t2=sT2, t3=sT3, bp=sBP, lw=sLW, u=WS_U, pa=vPA, cnt=WS_CNT)))
        misc.append(I("""s_lshl_b32 s76, %(bp)s, 10
s_lshl_b32 %(t1)s, %(nt)s, 7
s_add_u32 s76, s76, %(t1)s
s_lshl_b32 %(t1)s, %(w)s, 19
s_add_u32 s76, s76, %(t1)s""" % dict(bp=sBP, t1=sT1, nt=sNT, w=sW)))
        misc.append(I("""s_add_u32 s77, s76, 0x40000
v_lshrrev_b32 v29, 3, v0
v_xor_b32 v30, v29, v0
v_and_b32 v30, 7, v30
v_lshlrev_b32 v29, 15, v29
v_lshl_add_u32 %(x)s, v30, 4, v29""" % dict(x=vX)))
        misc.append(I("""s_lshl_b32 %(t1)s, %(w)s, 1
v_lshrrev_b32 v29, 1, %(hi)s
v_add_u32 v29, %(t1)s, v29
v_xor_b32 v29, v29, v0
v_and_b32 v29, 7, v29
v_lshlrev_b32 v29, 4, v29""" % dict(t1=sT1, w=sW, hi=vHi)))
        misc.append(I("""v_lshl_add_u32 v29, %(l16)s, 7, v29
v_and_b32 v30, 1, %(hi)s
v_lshl_add_u32 v29, v30, 3, v29
v_add_u32 v%(ow)d, %(stg)d, v29
s_lshl_b32 %(t1)s, %(w)s, 11
s_add_u32 %(t1)s, %(t1)s, %(stg)d
v_add_u32 v%(orr)d, %(t1)s, %(l16b)s""" % dict(l16=vL16, hi=vHi, ow=vWT[0], orr=vWT[1], stg=LDS_STG, t1=sT1, w=sW, l16b=vL16B)))
        misc.append(I("s_lshl_b32 %s, %s, 8\ns_add_u32 %s, %s, 0x%x\nv_lshlrev_b32 v31, 4, %s" % (sWo0, sBP, sWo0, sWo0, WS_G, vL16)))
        main = weave(main, misc, 70, 126)
        ld2 = "buffer_load_dword %s, %s, %s, %s offen sc1" % (vP, vPA, SWS, sT3)
        pp = self.kw.get("pollpos", 160); cp = self.kw.get("chkpos", 200)
        place(main, pp, I(ld2))
        def udma(n):
            g = I("s_add_u32 m0, %s, %d" % (sLW, n * 4096))
            if n: g += I("s_add_u32 %s, %s, 4096" % (sT2, sT2))
            return g + I("buffer_load_dwordx4 %s, %s, %s offen sc1 lds" % (vL16B, SWS, sT2), tag="u%d" % (n // 4))
        place(main, cp, self.stamp(8) + self.spin(ld2, 1, sleep=4) + self.stamp(9))
        main = weave(main, [udma(n) for n in range(16)], cp, 224)
        p += flat(main)
        for dl in range(1, 4):
            for st in range(4):
                p += I("ds_write_b128 v%d, %s offset:%d" % (vDT[dl], V(128 + (dl * 4 + st) * 4, 4), st * 1024), tag="red")
        p += I("@wait red u0\ns_barrier")
        p += I("buffer_load_dwordx4 v[24:27], v31, %s, %s offen sc1" % (SWS, sWo0))
        def ard(n, sg):
            return I("ds_read_b128 %s, %s offset:%d" % (V(192 + ((n % 4) * 4 + sg) * 4, 4), vW, (n * 4 + sg) * 1024))
        LA = 8
        for k in range(LA): p += ard(k // 4, k % 4)
        main = []
        for n in range(16):
            for sg in range(4):
                d = V(32 + 4 * sg, 4)
                g = I("v_mfma_f32_16x16x32_bf16 %s, %s, %s, %s" % (d, V(192 + ((n % 4) * 4 + sg) * 4, 4), V(64 + 4 * n, 4), d if n else "0"))
                k = 4 * n + sg + LA
                if k < 64:
                    if k % 16 == 0: g += I("@wait u%d\ns_barrier" % (k // 16))
                    g += ard(k // 4, k % 4)
                main.append(g)
        red = [I("ds_read_b128 %s, v%d offset:%d" % (V(144 + 4 * k, 4), vDT[0], k * 1024)) for k in range(12)]
        main = weave(main, red, 0, 24)
        adds = [I("v_pk_add_f32 %s, %s, %s" % (V(128 + 2 * i, 2), V(128 + 2 * i, 2), V(144 + 16 * k + 2 * i, 2))) for k in range(3) for i in range(8)]
        main = weave(main, adds, 32, 62)
        p += flat(main)
        for i in range(8): p += I("v_cvt_pk_bf16_f32 v%d, v%d, v%d" % (48 + i, 32 + 2 * i, 33 + 2 * i))
        for v in range(2):
            for at in range(4):
                d = V(192 + 4 * at, 4)
                p += I("v_mfma_f32_16x16x32_bf16 %s, %s, %s, %s" % (d, V(48 + 4 * v, 4), A(224 + (2 * at + v) * 4, 4), d if v else "0"))
        for at in range(4):
            for r in range(4):
                p += I("v_fma_f32 v%d, -v%d, v%d, v%d" % (128 + 4 * at + r, 24 + at, 128 + 4 * at + r, 128 + 4 * at + r))
        for at in range(4):
            for r in range(4):
                p += I("v_fmac_f32 v%d, v%d, v%d" % (128 + 4 * at + r, 24 + at, 192 + 4 * at + r))
            p += I("v_cvt_pk_bf16_f32 v%d, v%d, v%d\nv_cvt_pk_bf16_f32 v%d, v%d, v%d" % (56 + 2 * at, 128 + 4 * at, 129 + 4 * at, 57 + 2 * at, 130 + 4 * at, 131 + 4 * at))
            p += I("ds_write_b64 v%d, %s offset:%d" % (vWT[0], V(56 + 2 * at, 2), at * 2048))
        p += I("@waitlg0\ns_barrier")
        for e in range(2): p += I("ds_read_b128 %s, v%d offset:%d" % (V(32 + 4 * e, 4), vWT[1], e * 1024))
        for e in range(2): p += I("buffer_store_dwordx4 %s, %s, %s, s%d offen %s" % (V(32 + 4 * e, 4), vX, SOUT, 76 + e, ("", "sc1", "nt")[self.kw.get("ost", 0)]))
        if self.prof:
            p += I("@waitvm0") + self.stamp(10) + I("s_waitcnt lgkmcnt(0)")
            p += I("s_lshl_b32 s3, s2, 2\ns_add_u32 s3, s3, %s\ns_lshl_b32 s3, s3, 6\ns_add_u32 s3, s3, 0x%x\nv_mov_b32 v0, 0\nv_mov_b32 v32, s100" % (sW, WS_PROF))
            for i in range(11): p += I("v_mov_b32 v%d, s%d" % (33 + i, 48 + 2 * i))
            p += I("s_mov_b64 exec, 1")
            for i in range(3): p += I("buffer_store_dwordx4 %s, v0, %s, s3 offen offset:%d" % (V(32 + 4 * i, 4), SWS, 16 * i))
        p += I("s_endpgm")
        return p

    def text(self):
        st = {}
        hdr = open("gated_mix__spectral_gfnet__glu_gated_reglu__prompt.s.ref").read().split("; Override launch")[0]
        out = [hdr.rstrip(), "; One persistent launch: 256 workgroups (one per CU) x 4 waves. Generated by tools/gen.py.",
               "; @launch grid=(256,1,1) block=(256,1,1) lds=163840", '.amdgcn_target "amdgcn-amd-amdhsa--gfx950"', ".text",
               ".globl " + NAME, ".p2align 8", ".type %s,@function" % NAME, NAME + ":"]
        prog = self.prologue() + self.p12(True) + self.tail(True) + I("L_dft:") + self.p12(False) + self.tail(False) + I("L_end:\ns_endpgm")
        out += finalize(prog, st)
        out += ['.section .rodata,"a"', ".p2align 6", ".amdhsa_kernel " + NAME, "  .amdhsa_next_free_vgpr 512", "  .amdhsa_next_free_sgpr 102",
                "  .amdhsa_accum_offset 256", "  .amdhsa_group_segment_fixed_size 0", "  .amdhsa_kernarg_size 88", "  .amdhsa_user_sgpr_count 2",
                "  .amdhsa_user_sgpr_kernarg_segment_ptr 1", "  .amdhsa_system_sgpr_workgroup_id_x 1", "  .amdhsa_float_denorm_mode_32 3", ".end_amdhsa_kernel"]
        self.stats = st
        return "\n".join(out) + "\n"

if __name__ == "__main__":
    import argparse
    ap = argparse.ArgumentParser()
    ap.add_argument("out"); ap.add_argument("--prof", action="store_true"); ap.add_argument("--opt", default="")
    a = ap.parse_args()
    kw = dict((k, int(v)) for k, v in (x.split("=") for x in a.opt.split(",") if x))
    g = Gen(prof=a.prof, **kw)
    open(a.out, "w").write(g.text())
    print(g.stats)
```

```python
import sys
sys.path.insert(0, "tools")
from prog import *

NAME = "gated_mix__spectral_gfnet__glu_gated_reglu__prompt_kernel"
WS_H, WS_X1, WS_U, WS_G, WS_FLAG, WS_CNT, WS_PROF = 0, 0x800000, 0xA00000, 0xC00000, 0xC10000, 0xC30000, 0xF000000
NCLR = 20
SPIN_LIMIT = 400000
SX, SWG, SWU, SWD, SWS, SOUT, SWR, SWI, SGW, SDBG = [S(8 + 4 * i, 4) for i in range(10)]
sW, sB12, sNI = "s4", "s5", "s6"
sXCD, sLOC, sL3, sNT, sBP, sXN = "s70", "s71", "s72", "s73", "s74", "s75"
sXO = [76, 77, 78, 79]
sK, sWo0, sWo1, sWbase, sLW, sWdo, sT0, sT1, sT2, sT3 = ["s%d" % i for i in range(80, 90)]
sMASK = S(90, 2)
sHI16 = "s92"
sRing = "s93"
sHo = "s94"
vXr2 = "v16"
vXA = [22, 23]
vLane, vL16, vHi, vX, vXr, vW = "v0", "v1", "v2", "v3", "v4", "v5"
vWT = [6, 7, 8, 9]
vDT = [10, 11, 12, 13]
vL16B, vWd, vP, vPA = "v14", "v15", "v16", "v17"
vT = [18, 19, 20, 21, 22, 23]
vTmp = list(range(24, 32))
LDS_RPF, LDS_RPI, LDS_R64I, LDS_STG = 128 * 1024, 136 * 1024, 144 * 1024, 152 * 1024
LDS_RED = 64 * 1024

class Gen:
    def __init__(self, prof=False, rot=0, **kw):
        self.prof = prof; self.rot = rot; self.kw = kw
        self.nl = 0; self.nstamp = 0
    def lab(self, b):
        self.nl += 1; return "L%s_%d" % (b, self.nl)
    def stamp(self, i):
        if not self.prof: return []
        if "diag" in self.kw and self.kw["diag"] != i: return []
        return I("%s %s" % ("s_memtime" if self.kw.get("cyc") else "s_memrealtime", S(48 + 2 * i, 2)))
    def srd(self, name, lo, size):
        b = int(name[2:name.index(":")])
        return I("s_mov_b32 s%d, s%d\ns_mov_b32 s%d, s%d\ns_mov_b32 s%d, 0x%x\ns_mov_b32 s%d, 0x20000" % (b, lo, b + 1, lo + 1, b + 2, size, b + 3))
    def spin(self, load, expect, sleep=2):
        ok, sp = self.lab("ok"), self.lab("spin")
        cmp_ = "v_cmp_ne_u32 vcc, %d, %s" % (expect, vP)
        return I(cmp_) + I("""s_cbranch_vccz %s
s_mov_b32 s3, 0
%s:
s_sleep %d
%s
s_waitcnt vmcnt(0)
%s
s_add_u32 s3, s3, 1
s_cmp_lt_u32 s3, %d
s_cbranch_vccz %s
s_cbranch_scc1 %s
%s:""" % (ok, sp, sleep, load, cmp_, SPIN_LIMIT, ok, sp, ok), raw=True)

    def cosfrag(self, dst, spec, tmp, fix=None):
        g = []
        for i in range(8):
            d, K, b = spec[i]
            if K == 0: g += I("v_mov_b32 v%d, %s" % (tmp[i], b))
            else: g += I("v_fmamk_f32 v%d, %s, %s, %s" % (tmp[i], d, fhex(K), b))
        for i in range(8):
            if fix and i in fix: g += fix[i]
        for i in range(8):
            g += I("v_cos_f32 v%d, v%d" % (tmp[i], tmp[i]))
        for i in range(4):
            g += I("v_cvt_pk_bf16_f32 v%d, v%d, v%d" % (dst + i, tmp[2 * i], tmp[2 * i + 1]))
        return g

    def gen_G(self):
        d, a0 = V(vT[0]), V(vT[1])
        pre = I("""s_lshl_b32 %(t0)s, %(nt)s, 6
s_lshl_b32 %(t1)s, %(w)s, 4
s_add_u32 %(t0)s, %(t0)s, %(t1)s
v_add_u32 %(d)s, %(t0)s, %(l16)s
v_cvt_f32_u32 %(d)s, %(d)s
v_mul_f32 %(d)s, %(c512)s, %(d)s
v_lshrrev_b32 v24, 1, %(hi)s
v_lshlrev_b32 v24, 3, v24
v_cvt_f32_u32 v24, v24
v_and_b32 v25, 1, %(hi)s
v_cvt_f32_u32 v25, v25
v_mul_f32 v25, 0x3e800000, v25
v_fma_f32 %(a0)s, %(d)s, v24, v25
v_cmp_eq_u32 vcc, 1, %(hi)s
v_mul_f32 %(t2)s, 0x43800000, %(d)s
v_cndmask_b32 %(t2)s, %(a0)s, %(t2)s, vcc""" % dict(t0=sT0, t1=sT1, nt=sNT, w=sW, d=d, a0=a0, l16=vL16, hi=vHi, c512=fhex(1 / 512), t2=V(vT[2])))
        groups = [pre]
        for n in range(16):
            spec = [(d, 16 * n + i, a0) for i in range(8)]
            if n == 0: spec[0] = (d, 0, V(vT[2]))
            g = self.cosfrag(64 + 4 * n, spec, vTmp)
            groups += [g[0:8], g[8:12], g[12:16], g[16:20]]
        return groups

    def gen_R(self, t):
        fr = t; tm = list(range(t + 4, t + 12)); r = [V(t + 12 + i) for i in range(14)]
        adr = r[13]
        g = []
        g += I("s_lshl_b32 %s, %s, 11\nv_add_u32 %s, %s, %s" % (sT0, sW, adr, sT0, vL16B))
        g += I("v_add_u32 %s, %d, %s" % (adr, LDS_RPF, adr))
        g += I("v_cvt_f32_u32 %s, %s" % (r[12], vHi))
        g += I("s_cmp_eq_u32 %s, 0\ns_cselect_b64 %s, -1, 0" % (sBP, S(96, 2)))
        g += I("s_cselect_b32 %s, 32, 64" % sT1)
        g += I("""s_and_b32 %(t0)s, %(w)s, 1
s_lshl_b32 %(t0)s, %(t0)s, 4
v_add_u32 %(q)s, %(t0)s, %(l16)s
v_mul_lo_u32 %(k)s, %(q)s, %(t1)s
v_add_u32 %(k)s, %(p)s, %(k)s
s_lshr_b32 %(t2)s, %(w)s, 1
v_cvt_f32_u32 %(ph)s, %(t2)s
v_mul_f32 %(ph)s, 0xbe800000, %(ph)s
v_cvt_f32_u32 %(dl)s, %(k)s
v_mul_f32 %(dl)s, %(c)s, %(dl)s
s_cmp_eq_u32 %(t2)s, 1
s_cselect_b64 %(m2)s, -1, 0
v_cmp_eq_u32 vcc, 0, %(k)s
s_and_b64 vcc, vcc, %(m2)s
v_cndmask_b32 %(dl)s, %(dl)s, 0.5, vcc
v_cndmask_b32 %(ph)s, %(ph)s, 0, vcc
v_add_f32 %(h2)s, %(hf)s, %(hf)s
v_fma_f32 %(b0)s, %(dl)s, %(h2)s, %(ph)s
v_add_f32 %(b1)s, 0x3e800000, %(b0)s
v_cndmask_b32 %(b1)s, %(b1)s, %(b0)s, %(m0)s
v_and_b32 %(q)s, 1, %(q)s
v_cmp_eq_u32 vcc, 1, %(q)s
s_and_b64 vcc, vcc, %(m0)s
v_mov_b32 %(qt)s, 0x3e800000
v_cndmask_b32 %(d0)s, %(dl)s, 0, vcc
v_cndmask_b32 %(b0)s, %(b0)s, %(qt)s, vcc
v_cmp_eq_u32 vcc, 0, %(q)s
s_and_b64 vcc, vcc, %(m0)s
v_cndmask_b32 %(d1)s, %(dl)s, 0, vcc
v_cndmask_b32 %(b1)s, %(b1)s, %(qt)s, vcc""" % dict(t0=sT0, t1=sT1, t2=sT2, w=sW, l16=vL16, p=sBP, q=r[0], k=r[1], ph=r[2], dl=r[3], c=fhex(1 / 2048),
              m2=S(98, 2), m0=S(96, 2), hf=r[12], h2=r[11], b0=r[4], b1=r[5], d0=r[6], d1=r[7], qt=r[10]))
        groups = [g]
        for v in range(2):
            spec = [((r[6], r[7])[i & 1], 16 * v + 8 * (i // 4) + (i % 4) // 2, (r[4], r[5])[i & 1]) for i in range(8)]
            groups.append(self.cosfrag(fr, spec, tm) + I("ds_write_b128 %s, %s offset:%d" % (adr, V(fr, 4), v * 1024), tag="rtab"))
        g = I("""s_lshl_b32 %(t0)s, %(w)s, 3
v_lshrrev_b32 %(b)s, 1, %(l16)s
v_add_u32 %(b)s, %(t0)s, %(b)s
v_cvt_f32_u32 %(bf)s, %(b)s
v_mul_f32 %(bf)s, %(c)s, %(bf)s
v_cvt_f32_u32 %(x)s, %(t1)s
v_mul_f32 %(dl)s, %(bf)s, %(x)s
v_cvt_f32_u32 %(x)s, %(p)s
v_mul_f32 %(e0)s, %(bf)s, %(x)s
v_and_b32 %(cs)s, 1, %(l16)s
v_cvt_f32_u32 %(x)s, %(cs)s
v_mul_f32 %(x)s, 0x3e800000, %(x)s
v_cndmask_b32 %(x)s, %(x)s, 0, %(m0)s
v_add_f32 %(e0)s, %(e0)s, %(x)s
v_mul_f32 %(x)s, 4.0, %(hf)s
v_fmac_f32 %(e0)s, %(dl)s, %(x)s
v_add_f32 %(e1)s, 0xbe800000, %(e0)s
v_cmp_eq_u32 vcc, 0, %(cs)s
s_and_b64 vcc, vcc, %(m0)s
v_cndmask_b32 %(d1)s, %(dl)s, 0, vcc
v_cndmask_b32 %(o0)s, %(e0)s, %(qt)s, vcc
v_cndmask_b32 %(o1)s, %(e1)s, %(qt)s, vcc
s_and_b64 %(m2)s, vcc, 0xffff
v_cmp_eq_u32 vcc, 1, %(cs)s
s_and_b64 vcc, vcc, %(m0)s
v_cndmask_b32 %(d0)s, %(dl)s, 0, vcc
v_cndmask_b32 %(e0)s, %(e0)s, %(qt)s, vcc
v_cndmask_b32 %(e1)s, %(e1)s, %(qt)s, vcc
v_mul_f32 %(bf)s, 0x44800000, %(bf)s
v_cndmask_b32 %(bf)s, %(e1)s, %(bf)s, %(m2)s""" % dict(t0=sT0, t1=sT1, w=sW, l16=vL16, p=sBP, b=r[0], bf=r[1], x=r[2], dl=r[3], c=fhex(1 / 2048),
              e0=r[4], e1=r[5], d0=r[6], d1=r[7], o0=r[8], o1=r[9], cs=r[0], m0=S(96, 2), m2=S(98, 2), hf=r[12], qt=r[10]))
        groups.append(g)
        for v in range(2):
            spec = [((r[6], r[7])[i & 1], 16 * (i // 4) + i % 4, ((r[4], r[5]), (r[8], r[9]))[i & 1][v]) for i in range(8)]
            if v == 1: spec[0] = (r[6], 0, r[1])
            groups.append(self.cosfrag(fr, spec, tm) + I("ds_write_b128 %s, %s offset:%d" % (adr, V(fr, 4), 8192 + v * 1024), tag="rtab"))
        g = I("""s_lshl_b32 %(t0)s, %(w)s, 4
v_add_u32 %(a)s, %(t0)s, %(l16)s
v_cvt_f32_u32 %(a)s, %(a)s
v_mul_f32 %(dl)s, %(c)s, %(a)s
v_mul_f32 %(b0)s, %(dl)s, %(h2)s
v_add_f32 %(b1)s, 0xbe800000, %(b0)s
v_mul_f32 %(a)s, 0.5, %(a)s
v_cmp_eq_u32 vcc, 0, %(hi)s
v_cndmask_b32 %(a)s, %(b1)s, %(a)s, vcc""" % dict(t0=sT0, w=sW, l16=vL16, a=r[0], dl=r[3], c=fhex(1 / 64), b0=r[4], b1=r[5], h2=r[11], hi=vHi))
        groups.append(g)
        for v in range(2):
            spec = [(r[3], 16 * v + 8 * (i // 4) + (i % 4) // 2, (r[4], r[5])[i & 1]) for i in range(8)]
            if v == 0: spec[1] = (r[3], 0, r[0])
            groups.append(self.cosfrag(fr, spec, tm) + I("ds_write_b128 %s, %s offset:%d" % (adr, V(fr, 4), 16384 + v * 1024), tag="rtab"))
        return groups

    def gen_T(self, t):
        r = [V(t + 24 + i) for i in range(8)]
        g = I("""s_lshl_b32 %(t0)s, %(xn)s, 2
s_add_u32 %(t0)s, %(t0)s, %(w)s
s_lshl_b32 %(t0)s, %(t0)s, 4
v_and_b32 %(j)s, 11, %(l16)s
v_add_u32 %(j)s, %(t0)s, %(j)s
v_bfe_u32 %(im)s, %(l16)s, 2, 1
v_cvt_f32_u32 %(b1)s, %(im)s
v_mul_f32 %(b1)s, 0x3e800000, %(b1)s
v_cvt_f32_u32 %(d0)s, %(j)s
v_add_f32 %(d1)s, 4.0, %(d0)s
v_mul_f32 %(d0)s, %(c)s, %(d0)s
v_mul_f32 %(d1)s, %(c)s, %(d1)s
v_lshl_add_u32 %(j)s, %(j)s, 1, %(im)s
v_cmp_eq_u32 vcc, 1, %(j)s
v_lshlrev_b32 %(h8)s, 3, %(hi)s
v_cvt_f32_u32 %(h8)s, %(h8)s
v_cndmask_b32 %(d0)s, %(d0)s, 0.5, vcc
v_cndmask_b32 %(b0)s, %(b1)s, 0, vcc
v_fmac_f32 %(b0)s, %(d0)s, %(h8)s
v_fmac_f32 %(b1)s, %(d1)s, %(h8)s
s_lshl_b32 %(t0)s, %(w)s, 11
v_add_u32 %(adr)s, %(t0)s, %(l16b)s""" % dict(t0=sT0, xn=sXN, w=sW, j=r[0], im=r[1], l16=vL16, hi=vHi, d0=r[2], d1=r[3], b0=r[4], b1=r[5], h8=r[6], adr=r[7],
              c=fhex(1 / 512), l16b=vL16B))
        groups = [g]
        for n in range(8):
            for tt in range(2):
                fr = t + 12 * tt; tm = list(range(fr + 4, fr + 12))
                spec = [(r[2 + tt], 32 * n + i, r[4 + tt]) for i in range(8)]
                groups.append(self.cosfrag(fr, spec, tm) + I("ds_write_b128 %s, %s offset:%d" % (r[7], V(fr, 4), n * 8192 + tt * 1024), tag="ttab"))
        g = I("""s_lshl_b32 %(t0)s, %(w)s, 4
v_add_u32 %(sl)s, %(t0)s, %(l16)s
v_lshrrev_b32 %(d0)s, 1, %(sl)s
v_cvt_f32_u32 %(d0)s, %(d0)s
v_mul_f32 %(d0)s, %(c)s, %(d0)s
v_and_b32 %(b0)s, 1, %(sl)s
v_cvt_f32_u32 %(b0)s, %(b0)s
v_mul_f32 %(b0)s, 0xbe800000, %(b0)s
v_cmp_eq_u32 vcc, 1, %(sl)s
v_mul_f32 %(h8)s, 0.5, %(h8)s
v_add_u32 %(adr)s, %(stg)d, %(adr)s
v_cndmask_b32 %(d0)s, %(d0)s, 0.5, vcc
v_cndmask_b32 %(b0)s, %(b0)s, 0, vcc
v_fmac_f32 %(b0)s, %(d0)s, %(h8)s""" % dict(t0=sT0, w=sW, sl=r[0], l16=vL16, d0=r[2], b0=r[4], h8=r[6], adr=r[7], c=fhex(1 / 64), stg=LDS_STG))
        groups.append(g)
        for v in range(2):
            fr = t + 12 * v; tm = list(range(fr + 4, fr + 12))
            spec = [(r[2], 32 * v + 16 * (i // 4) + i % 4, r[4]) for i in range(8)]
            groups.append(self.cosfrag(fr, spec, tm) + I("ds_write_b128 %s, %s offset:%d" % (r[7], V(fr, 4), v * 1024), tag="ttab"))
        return groups

    def prologue(self):
        p = []
        if self.prof: p += I("%s s[100:101]" % ("s_memtime" if self.kw.get("cyc") else "s_memrealtime"), raw=True)
        p += I("s_cmp_ge_u32 s2, 256\ns_cbranch_scc1 L_end")
        p += I("""s_load_dwordx16 s[48:63], s[0:1], 0
s_load_dwordx4 s[64:67], s[0:1], 64
s_load_dwordx2 s[68:69], s[0:1], 80
v_lshrrev_b32 v1, 6, v0
v_and_b32 v0, 63, v0
v_readfirstlane_b32 %(w)s, v1
v_and_b32 %(l16)s, 15, v0
v_lshrrev_b32 %(hi)s, 4, v0
s_and_b32 %(xcd)s, s2, 7
s_lshr_b32 %(loc)s, s2, 3
s_and_b32 %(l3)s, %(loc)s, 3
s_lshr_b32 %(nt)s, %(loc)s, 2
s_lshr_b32 %(xn)s, %(xcd)s, 1
s_lshl_b32 %(bp)s, %(xcd)s, 2
s_add_u32 %(bp)s, %(bp)s, %(l3)s
s_and_b32 %(b12)s, %(bp)s, 7
s_lshl_b32 %(b12)s, %(b12)s, 2
s_add_u32 %(b12)s, %(b12)s, %(w)s
s_lshl_b32 s76, %(b12)s, 10
s_add_u32 s77, s76, 0x80000
s_add_u32 s78, s76, 0x100000
s_add_u32 s79, s76, 0x180000
v_lshrrev_b32 %(x)s, 3, v0
v_lshlrev_b32 %(x)s, 15, %(x)s
v_and_b32 v24, 7, v0
v_xor_b32 v24, v24, %(hi)s
v_lshl_add_u32 %(x)s, v24, 4, %(x)s
v_lshlrev_b32 %(l16b)s, 4, v0
s_lshl_b32 %(lw)s, %(w)s, 10
s_lshl_b32 %(ring)s, %(w)s, 14
s_add_u32 %(ring)s, %(ring)s, 0x10000
s_mov_b32 %(hi16)s, 0xffff0000""" % dict(w=sW, l16=vL16, hi=vHi, xcd=sXCD, loc=sLOC, l3=sL3, nt=sNT, xn=sXN, bp=sBP, b12=sB12, x=vX, l16b=vL16B, lw=sLW, hi16=sHI16, ring=sRing))
        p += self.srd(SX, 48, 2097152) + self.srd(SWS, 68, 0x10000000) + self.srd(SDBG, 66, 256)
        l = self.lab("noclr")
        p += I("s_cmp_lt_u32 s2, %d\ns_cselect_b32 s95, 1, 0\ns_cmp_eq_u32 %s, 0\ns_cselect_b32 s95, s95, 0\ns_cmp_eq_u32 s95, 0" % (NCLR, sW))
        p += I("""s_cbranch_scc1 %s
v_lshlrev_b32 v24, 7, v0
v_mov_b32 v25, 0
s_lshl_b32 s3, s2, 13
s_add_u32 s3, s3, 0x%x
buffer_store_dword v25, v24, %s, s3 offen sc1
%s:""" % (l, WS_FLAG, SWS, l), raw=True)
        p += I("s_cmp_eq_u32 %s, 7\ns_cbranch_scc1 L_dft" % sNT)
        return p

    def rest_srds(self):
        return self.srd(SWD, 60, 1792 * 1024) + self.srd(SOUT, 64, 2097152) + self.srd(SWR, 50, 2048 * 514) + self.srd(SWI, 52, 2048 * 514) + self.srd(SGW, 62, 1024)

    def announce_clear(self):
        l = self.lab("noann")
        return I("s_cmp_eq_u32 s95, 0") + I("""s_cbranch_scc1 %s
v_mov_b32 v24, 0
v_mov_b32 v25, 1
s_lshl_b32 s3, s2, 2
s_mov_b64 exec, 1
buffer_store_dword v25, v24, %s, s3 offen sc1
s_mov_b64 exec, -1
%s:""" % (l, SDBG, l), raw=True)

    def xloads(self, du):
        g = []
        for m in range(4):
            for e in range(2):
                g.append(I("s_add_u32 m0, %s, %d" % (sRing, (du % 2) * 8192 + (2 * m + e) * 1024)) +
                         I("buffer_load_dwordx4 %s, %s, s%d offen lds" % ((vXr, vXr2)[e], SX, sXO[m]), tag="x%d" % du))
        if du >= 2: g[0] = I("@wait xf%d" % (du - 2)) + g[0]
        return g
    def xfrags(self, du):
        g = []
        for h in range(2):
            for m in range(4):
                g.append(I("ds_read_b128 %s, v%d offset:%d" % (A((du % 2) * 32 + h * 16 + m * 4, 4), vXA[h], (du % 2) * 8192 + m * 2048), tag="xf%d" % du))
        g[0] = I("@wait x%d" % du) + g[0]
        return g
    def kadv(self, du, ffn):
        g = []
        if du: g += I("s_add_u32 %s, %s, 1\ns_and_b32 %s, %s, 7" % (sK, sK, sK, sK))
        g += I("v_lshl_add_u32 %s, %s, 7, %s\nv_xor_b32 %s, 0x40040, %s" % (vXr, sK, vX, vXr2, vXr))
        if ffn:
            g += I("s_mul_i32 %s, %s, %d\ns_add_u32 %s, %s, %s\ns_add_u32 %s, %s, %d" % (sWo0, sK, 64 * 3584, sWo0, sWo0, sWbase, sWo1, sWo0, 32 * 3584))
        return g
    def wloads(self, du):
        g = []
        for h in range(2):
            for mat in range(2):
                g.append(I("s_add_u32 m0, %s, %d" % (sLW, ((2 * du + h) % 8) * 8192 + mat * 4096)) +
                         I("buffer_load_dwordx4 %s, %s, %s offen lds" % (vW, (SWG, SWU)[mat], (sWo0, sWo1)[h]), tag="w%d" % du))
        return g

    def wd_setup(self, base, nb):
        g = I("""v_lshrrev_b32 v24, 3, v0
v_bfe_u32 v25, v0, 1, 2
v_bfe_u32 v26, v0, 4, 2
v_xor_b32 v25, v25, v26
v_lshlrev_b32 v25, 5, v25
v_lshl_add_u32 v25, v24, 10, v25
v_and_b32 v24, 1, v0
v_lshl_add_u32 %(wd)s, v24, 4, v25
s_mul_i32 %(wdo)s, %(w)s, %(c)d
s_lshl_b32 %(t0)s, %(nt)s, 7
s_add_u32 %(wdo)s, %(wdo)s, %(t0)s
v_bfe_u32 v24, v0, 2, 3
v_lshrrev_b32 v25, 5, v0
v_lshlrev_b32 v25, 10, v25
v_lshl_add_u32 v25, v24, 7, v25
v_and_b32 v26, 3, v0
v_lshl_add_u32 v25, v26, 3, v25
v_add_u32 v25, %(ring)s, v25
v_lshrrev_b32 v24, 1, v24""" % dict(wd=vWd, wdo=sWdo, w=sW, c=448 * 1024, t0=sT0, nt=sNT, ring=sRing, rb=nb * 1024, base=base))
        for dl in range(4):
            g += I("s_add_u32 %s, %s, %d\ns_and_b32 %s, %s, 3\nv_xor_b32 v26, %s, v24\nv_lshl_add_u32 v%d, v26, 5, v25" % (sT0, sW, dl, sT0, sT0, sT0, vDT[dl]))
        return g
    def wd_dma(self, j, nb):
        g = []
        if j >= nb and (j % 4) == 0: g += I("@wait t%d" % ((j - nb) // 4))
        g += I("s_add_u32 m0, %s, %d" % (sRing, (j % nb) * 1024))
        if j: g += I("s_add_u32 %s, %s, 8192" % (sWdo, sWdo))
        g += I("buffer_load_dwordx4 %s, %s, %s offen lds" % (vWd, SWD, sWdo), tag="d%d" % (j // 4))
        return g
    def wd_reg(self, u, dl):
        return (96 + 16 * u if u < 8 else 16 * (u - 8)) + 4 * dl
    def wd_tr(self, u, nb):
        gs = []
        for dl in range(4):
            g = I("@wait d%d" % u) if dl == 0 else []
            for j4 in range(2):
                g += I("ds_read_b64_tr_b16 %s, v%d offset:%d" % (A(self.wd_reg(u, dl) + 2 * j4, 2), vDT[dl], ((4 * u + 2 * j4) % nb) * 1024), tag="t%d" % u)
            gs.append(g)
        return gs

    def side_loads(self):
        g0 = I("""s_cmp_eq_u32 %(p)s, 0
s_cselect_b32 %(t1)s, 32, 64
s_cselect_b64 %(m)s, 0xffff, 0
v_and_b32 v24, 31, v0
v_mul_lo_u32 v24, v24, %(t1)s
v_add_u32 v24, %(p)s, v24
v_sub_u32 v25, 0x800, v24
v_cmp_eq_u32 vcc, 0, v24
v_mov_b32 v26, 0x400
s_lshl_b32 %(t0)s, %(nt)s, 2
s_add_u32 %(t0)s, %(t0)s, %(w)s
v_cndmask_b32 v25, v25, v26, vcc
v_cmp_gt_u32 vcc, 32, v0
s_lshl_b32 %(t2)s, %(t0)s, 4
s_cselect_b32 %(t3)s, %(t2)s, 512
v_cndmask_b32 v24, v25, v24, vcc
v_mul_u32_u24 v24, 514, v24""" % dict(p=sBP, t0=sT0, t1=sT1, t2=sT2, t3=sT3, m=sMASK, nt=sNT, w=sW))
        gs = [g0 + I("buffer_load_dwordx4 v[64:67], v24, %s, %s offen" % (SWR, sT2)),
              I("buffer_load_dwordx4 v[68:71], v24, %s, %s offen" % (SWI, sT2)),
              I("buffer_load_ushort v72, v24, %s, %s offen" % (SWR, sT3)),
              I("buffer_load_ushort v73, v24, %s, %s offen" % (SWI, sT3))]
        g1 = I("""s_lshl_b32 %(t0)s, %(t0)s, 1
v_lshrrev_b32 v25, 5, v0
v_add_u32 %(e)s, %(t0)s, v25
v_and_b32 v25, 3, %(e)s
v_lshrrev_b32 v26, 2, %(e)s
v_lshl_add_u32 v25, v25, 4, v26
v_lshlrev_b32 v25, 15, v25
v_and_b32 v26, 31, v0
v_lshlrev_b32 v26, 4, v26
v_add_u32 v25, v25, v26
s_lshl_b32 %(t1)s, %(bp)s, 10""" % dict(t0=sT0, t1=sT1, e=V(vT[3]), bp=sBP))
        gs += [g1 + I("buffer_load_dwordx4 v[76:79], v25, %s, %s offen" % (SX, sT1)),
               I("buffer_load_dwordx4 v[80:83], v25, %s, %s offen offset:512" % (SX, sT1)),
               I("buffer_load_dwordx4 v[84:87], v26, %s, 0 offen" % SGW),
               I("buffer_load_dwordx4 v[88:91], v26, %s, 0 offen offset:512" % SGW),
               I("v_min_u32 %s, %d, v0\nv_lshlrev_b32 %s, 2, %s" % (vPA, NCLR - 1, vPA, vPA)) + I(self.gate_load())]
        return gs
    def gate_load(self):
        return "buffer_load_dword %s, %s, %s, 0 offen sc1" % (vP, vPA, SDBG)

    def gate_g(self):
        g = I("v_dot2_f32_bf16 v92, v76, v84, 0\nv_dot2_f32_bf16 v93, v77, v85, 0\nv_dot2_f32_bf16 v94, v78, v86, 0\nv_dot2_f32_bf16 v95, v79, v87, 0")
        g += I("v_dot2_f32_bf16 v92, v80, v88, v92\nv_dot2_f32_bf16 v93, v81, v89, v93\nv_dot2_f32_bf16 v94, v82, v90, v94\nv_dot2_f32_bf16 v95, v83, v91, v95")
        gs = [g, I("v_add_f32 v92, v92, v93\nv_add_f32 v94, v94, v95"), I("v_add_f32 v92, v92, v94")]
        for sh in (1, 2, 4, 8):
            gs.append(I("v_add_f32_dpp v92, v92, v92 row_shr:%d row_mask:0xf bank_mask:0xf bound_ctrl:1" % sh))
        gs.append(I("v_add_f32_dpp v92, v92, v92 row_bcast:15 row_mask:0xa bank_mask:0xf"))
        gs.append(I("v_mul_f32 v92, 0xbfb8aa3b, v92\nv_exp_f32 v92, v92\nv_lshlrev_b32 v93, 2, %s\nv_add_f32 v92, 1.0, v92\nv_rcp_f32 v92, v92" % V(vT[3])))
        gs.append(I("s_lshl_b32 %s, %s, 8\ns_add_u32 %s, %s, 0x%x\ns_mov_b32 exec_lo, 0x80000000\ns_mov_b32 exec_hi, 0x80000000" % (sT0, sBP, sT0, sT0, WS_G)) +
                  I("buffer_store_dword v92, v93, %s, %s offen sc1" % (SWS, sT0), tag="gst") + I("s_mov_b64 exec, -1"))
        return gs

    def coefs(self, stg):
        sc, scs = V(vT[4]), V(vT[5])
        g0 = I("""s_lshl_b32 %(t0)s, %(w)s, 12
s_add_u32 %(t0)s, %(t0)s, %(stg)d
v_lshl_add_u32 v24, v0, 5, %(t0)s
v_lshl_add_u32 v25, v0, 3, %(t0)s
ds_write_b128 v24, v[64:67]
ds_write_b128 v24, v[68:71] offset:2048
v_and_or_b32 v64, v64, %(hi16)s, v72
v_and_or_b32 v68, v68, %(hi16)s, v73
ds_write_b128 v24, v[64:67] offset:16
ds_write_b128 v24, v[68:71] offset:2064""" % dict(t0=sT0, w=sW, stg=stg, hi16=sHI16))
        g1 = []
        for arr in range(2):
            for side in range(2):
                for th in range(2):
                    g1 += I("ds_read_b64_tr_b16 %s, v25 offset:%d" % (V(32 + ((th * 2 + arr) * 2 + side) * 2, 2), arr * 2048 + side * 1024 + th * 512))
        g2 = I("""s_lshl_b32 %(t0)s, %(nt)s, 2
s_add_u32 %(t0)s, %(t0)s, %(w)s
v_and_b32 v26, 7, v0
v_or_b32 v26, %(t0)s, v26
v_cmp_eq_u32 vcc, 0, v26
v_mov_b32 %(sc)s, %(c19)s
v_mov_b32 v27, %(c20)s
v_bfe_u32 v26, v0, 3, 1
v_xor_b32 v26, 1, v26
v_lshl_or_b32 %(scs)s, v26, 31, %(sc)s
v_cndmask_b32 %(sc)s, %(sc)s, v27, vcc
v_cndmask_b32 %(scs)s, %(scs)s, 0, vcc""" % dict(t0=sT0, nt=sNT, w=sW, sc=sc, scs=scs, c19=fhex(2.0 ** -19), c20=fhex(2.0 ** -20)))
        gs = [g0, g1, g2]
        for th in range(2):
            for r in range(4):
                e = th * 4 + r
                g = []
                t = 48 + (e % 2) * 8
                for n, (arr, side) in enumerate([(0, 0), (0, 1), (1, 0), (1, 1)]):
                    src = 32 + ((th * 2 + arr) * 2 + side) * 2 + r // 2
                    g += I("v_and_b32 v%d, %s, v%d" % (t + n, sHI16, src) if r & 1 else "v_lshlrev_b32 v%d, 16, v%d" % (t + n, src))
                a_, b_, c_, d_ = 128 + e, 136 + e, 144 + e, 152 + e
                g += I("v_add_f32 v%d, v%d, v%d\nv_add_f32 v%d, v%d, v%d\nv_sub_f32 v%d, v%d, v%d\nv_sub_f32 v%d, v%d, v%d" % (
                    a_, t, t + 1, b_, t + 2, t + 3, c_, t + 3, t + 2, d_, t, t + 1))
                if e == 0:
                    g += I("v_cndmask_b32 v160, v%d, v%d, %s\nv_cndmask_b32 v161, v%d, v%d, %s" % (a_, t + 1, sMASK, b_, t + 3, sMASK))
                    g += I("v_cndmask_b32 v%d, v%d, v%d, %s\nv_cndmask_b32 v%d, v%d, v%d, %s" % (a_, a_, t, sMASK, b_, b_, t + 2, sMASK))
                    g += I("v_cndmask_b32 v%d, v%d, 0, %s\nv_cndmask_b32 v%d, v%d, 0, %s" % (c_, c_, sMASK, d_, d_, sMASK))
                    g += I("v_mul_f32 v160, %s, v160\nv_mul_f32 v161, %s, v161" % (sc, scs))
                g += I("v_mul_f32 v%d, %s, v%d\nv_mul_f32 v%d, %s, v%d\nv_mul_f32 v%d, %s, v%d\nv_mul_f32 v%d, %s, v%d" % (
                    a_, sc, a_, b_, scs, b_, c_, sc, c_, d_, scs, d_))
                gs.append(g)
        return gs

    def set_flag(self, tag):
        return (I("s_lshl_b32 %s, %s, 5\ns_add_u32 %s, %s, %s\ns_lshl_b32 %s, %s, 7\ns_add_u32 %s, %s, 0x%x\nv_mov_b32 v24, 0\nv_mov_b32 v25, 1" % (
                    sT0, sB12, sT0, sT0, sNI, sT0, sT0, sT0, sT0, WS_FLAG)) +
                I("@wait %s" % tag) + I("s_mov_b64 exec, 1") + I("buffer_store_dword v25, v24, %s, %s offen sc1" % (SWS, sT0)) + I("s_mov_b64 exec, -1"))

    def p12(self, ffn):
        nb = 16
        p = I("@reset")
        if ffn:
            p += self.srd(SWG, 56, 512 * 3584) + self.srd(SWU, 58, 512 * 3584)
            p += I("""s_mul_i32 %(ni)s, %(xn)s, 7
s_add_u32 %(ni)s, %(ni)s, %(nt)s
s_mul_i32 %(wb)s, %(w)s, %(c)d
s_lshl_b32 %(t0)s, %(ni)s, 7
s_add_u32 %(wb)s, %(wb)s, %(t0)s
v_lshrrev_b32 v24, 3, v0
v_mul_u32_u24 v24, 3584, v24
s_and_b32 %(t0)s, %(w)s, 1
s_lshl_b32 %(t0)s, %(t0)s, 1
v_bfe_u32 v25, v0, 4, 1
v_or_b32 v25, %(t0)s, v25
v_bfe_u32 v26, v0, 1, 2
v_xor_b32 v25, v25, v26
v_lshl_add_u32 v24, v25, 5, v24
v_and_b32 v25, 1, v0
v_lshl_add_u32 %(vw)s, v25, 4, v24""" % dict(ni=sNI, xn=sXN, nt=sNT, wb=sWbase, w=sW, c=8 * 3584, t0=sT0, vw=vW))
            if self.rot == 0: p += I("s_mov_b32 %s, 0" % sK)
            elif self.rot == 1: p += I("s_lshl_b32 %s, %s, 1\ns_add_u32 %s, %s, %s\ns_and_b32 %s, %s, 7" % (sK, sL3, sK, sK, sNT, sK, sK))
            elif self.rot == 2: p += I("s_xor_b32 %s, %s, %s\ns_and_b32 %s, %s, 1\ns_lshl_b32 %s, %s, 2" % (sK, sL3, sNT, sK, sK, sK, sK))
        else:
            p += I("s_add_u32 %s, %s, 28\ns_mov_b32 %s, 4" % (sNI, sXN, sK))
        for du in range(2):
            p += self.kadv(du, ffn)
            if ffn: p += flat(self.wloads(du))
            p += flat(self.xloads(du))
        p += self.rest_srds()
        p += self.stamp(0)
        p += self.wd_setup(65536, nb)
        p += I("""v_lshrrev_b32 v24, 1, %(l16)s
v_xor_b32 v24, v24, %(hi)s
v_lshlrev_b32 v24, 4, v24
v_lshl_add_u32 v24, %(l16)s, 7, v24
v_add_u32 v%(a0)d, %(ring)s, v24
v_xor_b32 v%(a1)d, 64, v%(a0)d""" % dict(l16=vL16, hi=vHi, ring=sRing, a0=vXA[0], a1=vXA[1]))
        if ffn:
            p += I("""v_lshlrev_b32 v24, 10, %(hi)s
v_bfe_u32 v25, v0, 2, 2
v_lshl_add_u32 v24, v25, 7, v24
v_and_b32 v25, 3, v0
v_lshl_add_u32 v24, v25, 3, v24
v_bfe_u32 v25, v0, 3, 2""" % dict(hi=vHi))
            for t in range(4):
                p += I("v_xor_b32 v26, %d, v25\nv_lshl_add_u32 v%d, v26, 5, v24" % (t, vWT[t]))
            p += flat(self.gen_R(128))
            p += I("@wait w0 rtab")
        else:
            p += flat(self.gen_T(128))
            p += I("v_and_b32 %s, 1, v0\nv_lshlrev_b32 %s, 31, %s" % (V(vWT[0]), V(vWT[0]), V(vWT[0])))
            p += I("@wait x0 ttab")
        p += I("s_barrier")
        p += self.announce_clear()
        p += self.stamp(1)

        def rd(phi):
            n, tau = divmod(phi, 8)
            if ffn:
                off = (n % 8) * 8192 + (tau & 1) * 4096
                pre = []
                return [pre + I("ds_read_b64_tr_b16 %s, v%d offset:%d" % (V(32 + 4 * tau, 2), vWT[tau // 2], off)),
                        I("ds_read_b64_tr_b16 %s, v%d offset:%d" % (V(34 + 4 * tau, 2), vWT[tau // 2], off + 512))]
            return [I("ds_read_b128 %s, %s offset:%d" % (V(32 + 4 * tau, 4), vL16B, (n % 8) * 8192 + tau * 1024))]
        for phi in range(4): p += flat(rd(phi))
        p += flat(self.xfrags(0))
        for du in range(8):
            main = []
            for h in range(2):
                n = 2 * du + h
                for tau in range(8):
                    for m in range(4):
                        acc = V(128 + (tau * 4 + m) * 4, 4)
                        xf = A((du % 2) * 32 + h * 16 + m * 4, 4); wf = V(32 + 4 * tau, 4)
                        g = []
                        if (not ffn) and n == 8:
                            pass
                        g += I("v_mfma_f32_16x16x32_bf16 %s, %s, %s, %s" % (acc, wf if ffn else xf, xf if ffn else wf, acc if n else "0"))
                        main.append(g)
            for i in range(16):
                phi = 16 * du + i + 4
                if phi < 128:
                    r = rd(phi)
                    if ffn and i == 12: r[0] = I("@wait w%d\ns_barrier" % (du + 1)) + r[0]
                    for k, g in enumerate(r): place(main, 4 * i + 2 * k, g)
            if not ffn and du in (3, 4):
                for q in range(32):
                    flip = I("\n".join("v_xor_b32 v%d, %s, v%d" % (128 + 4 * q + r, V(vWT[0]), 128 + 4 * q + r) for r in range(4)))
                    pos = 32 + q + 16
                    if du == 3 and pos < 64: place(main, pos, flip)
                    if du == 4 and pos >= 64: place(main, pos - 64, flip)
            if du < 7:
                for k, g in enumerate(self.xfrags(du + 1)): place(main, self.kw.get("xfpos", 45) + 2 * k, g)
            vm = []
            if du < 6:
                vm = (self.wloads(du + 2) if ffn else []) + self.xloads(du + 2)
                vm[0] = self.kadv(du + 2, ffn) + vm[0]
                main = weave(main, vm, 1, 61)
            elif du == 6:
                main = weave(main, self.side_loads(), 1, 25)
                dm = [self.wd_dma(j, nb) for j in range(8)]
                dm[0] = I("@wait xf6") + dm[0]
                main = weave(main, dm, 27, 63)
            else:
                dm = [self.wd_dma(j, nb) for j in range(8, nb)]
                dm[0] = I("@wait xf7") + dm[0]
                main = weave(main, dm, 5, 45)
                if not ffn:
                    rr = [I("ds_read_b128 %s, v24 offset:%d" % (A(224 + 4 * f, 4), f * 1024)) for f in range(8)]
                    rr[0] = I("v_add_u32 v24, %d, %s" % (LDS_STG, vL16B)) + rr[0]
                    main = weave(main, rr, 49, 63)
            p += flat(main)
        p += self.stamp(2)
        p += I("@waitlg0\ns_barrier")
        if ffn:
            pre = I("s_mul_i32 %s, %s, 56\ns_lshl_b32 %s, %s, 1\ns_add_u32 %s, %s, %s\ns_lshl_b32 %s, %s, 12\ns_add_u32 %s, %s, 4096" % (
                sT2, sB12, sT0, sNI, sT2, sT2, sT0, sT2, sT2, sT3, sT2))
            ep = []
            for u in range(2):
                for m in range(4):
                    g0, u0, g1, u1 = [128 + ((4 * u + k) * 4 + m) * 4 for k in range(4)]
                    g = []
                    for gg in (g0, g1):
                        g += I("\n".join("v_max_f32 v%d, 0, v%d" % (gg + r, gg + r) for r in range(4)))
                    ep.append(g); g = []
                    for gg, uu in ((g0, u0), (g1, u1)):
                        g += I("v_pk_mul_f32 %s, %s, %s\nv_pk_mul_f32 %s, %s, %s" % (V(gg, 2), V(gg, 2), V(uu, 2), V(gg + 2, 2), V(gg + 2, 2), V(uu + 2, 2)))
                    g += I("v_cvt_pk_bf16_f32 v%d, v%d, v%d\nv_cvt_pk_bf16_f32 v%d, v%d, v%d\nv_cvt_pk_bf16_f32 v%d, v%d, v%d\nv_cvt_pk_bf16_f32 v%d, v%d, v%d" % (
                        u0, g0, g0 + 1, u0 + 1, g0 + 2, g0 + 3, u0 + 2, g1, g1 + 1, u0 + 3, g1 + 2, g1 + 3))
                    g += I("buffer_store_dwordx4 %s, %s, %s, %s offen offset:%d sc1" % (V(u0, 4), vL16B, SWS, (sT2, sT3)[u], m * 1024), tag="pub")
                    ep.append(g)
            ep[0] = pre + ep[0]
        else:
            pre = I("""v_lshrrev_b32 v24, 1, %(l16)s
v_lshlrev_b32 v24, 16, v24
v_lshrrev_b32 v25, 1, %(hi)s
v_lshl_add_u32 v24, v25, 6, v24
v_and_b32 v25, 1, v0
v_lshl_add_u32 v24, v25, 5, v24
v_and_b32 v25, 1, %(hi)s
v_lshl_add_u32 %(xr)s, v25, 4, v24
s_lshl_b32 s76, %(xn)s, 14
s_lshl_b32 %(t0)s, %(b12)s, 7
s_add_u32 s76, s76, %(t0)s
s_add_u32 s76, s76, 0x%(x1)x
s_add_u32 s77, s76, 0x80000
s_add_u32 s78, s76, 0x100000
s_add_u32 s79, s76, 0x180000""" % dict(l16=vL16, hi=vHi, xr=vXr, xn=sXN, t0=sT0, b12=sB12, x1=WS_X1))
            def cv(t):
                pk = 32 + 8 * (t % 2)
                return I("\n".join("v_cvt_pk_bf16_f32 v%d, v%d, v%d" % (pk + i, 128 + 16 * t + 2 * i, 129 + 16 * t + 2 * i) for i in range(8)))
            def mm(t):
                pk = 32 + 8 * (t % 2); gs = []
                for v in range(2):
                    for sg in range(4):
                        d = V(128 + 16 * t + 4 * sg, 4)
                        gs.append(I("v_mfma_f32_16x16x32_bf16 %s, %s, %s, %s" % (d, V(pk + 4 * v, 4), A(224 + (2 * sg + v) * 4, 4), d if v else "0")))
                return gs
            def st(tp):
                gs = []
                for sg in range(4):
                    o = 48 + 4 * sg; d0 = 128 + 32 * tp + 4 * sg; d1 = d0 + 16
                    g = I("v_cvt_pk_bf16_f32 v%d, v%d, v%d\nv_cvt_pk_bf16_f32 v%d, v%d, v%d" % (o, d0, d0 + 1, o + 1, d0 + 2, d0 + 3))
                    gs.append(g)
                    g = I("v_cvt_pk_bf16_f32 v%d, v%d, v%d\nv_cvt_pk_bf16_f32 v%d, v%d, v%d" % (o + 2, d1, d1 + 1, o + 3, d1 + 2, d1 + 3))
                    g += I("buffer_store_dwordx4 %s, %s, %s, s%d offen sc1" % (V(o, 4), vXr, SWS, 76 + sg), tag="pub")
                    if tp < 3: g += I("s_add_u32 s%d, s%d, 4096" % (76 + sg, 76 + sg))
                    gs.append(g)
                return gs
            ep = [pre + cv(0)]
            for t in range(8):
                m_ = mm(t)
                if t < 7: m_ = weave(m_, [[x] for x in cv(t + 1)], 0, 8)
                if t % 2 == 1 and t >= 3: m_ = weave(m_, st(t // 2 - 1), 0, 8)
                ep += m_
            ep += st(3)
        ep = weave(ep, [g for u in range(4) for g in self.wd_tr(u, nb)])
        p += flat(ep)
        p += self.stamp(3)
        p += self.spin(self.gate_load(), 1)
        return p

    def tail(self, ffn):
        nb = 16
        p = []
        w1 = self.gate_g() + self.coefs(0)
        pump = [self.wd_dma(j, nb) for j in range(nb, nb + 16)]
        nxt_u, nxt_j = 4, nb + 16
        p += flat(weave(w1, pump))
        p += self.set_flag("pub")
        p += self.stamp(4)
        w2 = ([] if ffn else self.gen_R(192)) + self.gen_G()
        pump = []
        for u in range(nxt_u, 14):
            pump += self.wd_tr(u, nb)
            if u > nxt_u and nxt_j < 56:
                pump += [self.wd_dma(j, nb) for j in range(nxt_j, nxt_j + 4)]; nxt_j += 4
        assert nxt_j == 56
        p += flat(weave(w2, pump))
        p += I("""s_lshr_b32 %(t0)s, %(nt)s, 1
s_add_u32 %(t0)s, %(t0)s, 28
v_lshl_add_u32 v24, v0, 5, %(t0)s
s_mul_i32 %(t0)s, %(w)s, 7
s_lshl_b32 %(t1)s, %(bp)s, 5
s_add_u32 %(t0)s, %(t0)s, %(t1)s
v_and_b32 v25, 7, v0
v_min_u32 v25, 6, v25
v_add_u32 v25, %(t0)s, v25
v_cmp_gt_u32 vcc, 32, v0
s_mov_b32 %(t3)s, 0x%(fl)x
v_cndmask_b32 %(pa)s, v25, v24, vcc
v_lshlrev_b32 %(pa)s, 7, %(pa)s""" % dict(t0=sT0, t1=sT1, t3=sT3, nt=sNT, w=sW, bp=sBP, pa=vPA, fl=WS_FLAG))
        ld = "buffer_load_dword %s, %s, %s, %s offen sc1" % (vP, vPA, SWS, sT3)
        p += I(ld)
        p += I("""v_lshrrev_b32 v24, 2, v0
v_and_b32 v25, 3, v0
v_lshlrev_b32 v25, 4, v25
v_lshl_add_u32 v26, v24, 7, v25
s_lshl_b32 %(t0)s, %(nt)s, 13
s_lshr_b32 %(t1)s, %(w)s, 1
s_lshl_b32 %(t1)s, %(t1)s, 12
s_add_u32 %(t0)s, %(t0)s, %(t1)s
s_and_b32 %(t1)s, %(w)s, 1
s_lshl_b32 %(t1)s, %(t1)s, 6
s_add_u32 %(t0)s, %(t0)s, %(t1)s
s_lshl_b32 %(t1)s, %(bp)s, 7
s_add_u32 s76, %(t0)s, %(t1)s
s_and_b32 %(t1)s, %(bp)s, 4
s_lshl_b32 %(t1)s, %(t1)s, 4
s_xor_b32 s76, s76, %(t1)s
s_add_u32 s76, s76, 0x%(u)x
s_add_u32 s77, s76, 0x80000
s_add_u32 s78, s76, 0x100000
s_add_u32 s79, s76, 0x180000
s_lshl_b32 %(t1)s, %(bp)s, 16
s_add_u32 %(t0)s, %(t0)s, %(t1)s
s_add_u32 %(t0)s, %(t0)s, 0x%(x1)x
s_add_u32 %(t1)s, %(t0)s, 2048
s_lshl_b32 %(t2)s, %(w)s, 11
s_add_u32 %(t2)s, %(t2)s, %(stg)d
v_lshl_add_u32 v27, v0, 3, %(t2)s
s_mul_i32 %(ho)s, %(bp)s, 56
s_mul_i32 s3, %(w)s, 14
s_add_u32 %(ho)s, %(ho)s, s3
s_lshl_b32 %(ho)s, %(ho)s, 12
v_lshrrev_b32 v24, 1, %(l16)s
v_lshlrev_b32 v24, 16, v24
v_and_b32 v25, 1, v0
v_lshl_add_u32 v24, v25, 5, v24
v_lshl_add_u32 %(xr)s, %(hi)s, 3, v24
v_add_u32 v28, %(rpf)d, %(l16b)s""" % dict(t0=sT0, t1=sT1, t2=sT2, nt=sNT, w=sW, bp=sBP, u=WS_U, x1=WS_X1, stg=LDS_STG, ho=sHo, l16=vL16, hi=vHi, xr=vXr,
              rpf=LDS_RPF, l16b=vL16B))
        p += I("@waitlg0\ns_barrier")
        for f in range(8):
            p += I("ds_read_b128 %s, v28 offset:%d" % (A(224 + 4 * f, 4), f * 1024))
        p += self.stamp(5)
        p += self.spin(ld, 1)
        p += self.stamp(6)
        p += I("s_mov_b32 m0, %s" % sT2) + I("buffer_load_dwordx4 v26, %s, %s offen sc1 lds" % (SWS, sT0), tag="x1")
        p += I("s_add_u32 m0, %s, 1024" % sT2) + I("buffer_load_dwordx4 v26, %s, %s offen sc1 lds" % (SWS, sT1), tag="x1")
        ring = [192, 208, 224, 240, 32, 48]
        def hload(u, st):
            g = []
            if st == 0 and u: g += I("s_add_u32 %s, %s, 4096" % (sHo, sHo))
            return g + I("buffer_load_dwordx4 %s, %s, %s, %s offen offset:%d sc1" % (V(ring[u % 6] + 4 * st, 4), vL16B, SWS, sHo, st * 1024))
        for u in range(4):
            for st in range(4): p += hload(u, st)
        p += I("@wait x1")
        for k in range(4):
            p += I("ds_read_b64_tr_b16 %s, v27 offset:%d" % (V(164 + 2 * k, 2), 512 * k))
        for v in range(2):
            for tau in range(4):
                d = V(32 + 4 * tau, 4)
                p += I("v_mfma_f32_16x16x32_bf16 %s, %s, %s, %s" % (d, A(224 + (2 * tau + v) * 4, 4), V(164 + 4 * v, 4), d if v else "0"))
        for f in range(8):
            p += I("ds_read_b128 %s, v28 offset:%d" % (A(224 + 4 * f, 4), 8192 + f * 1024))
        dpp = "row_ror:8 row_mask:0xf bank_mask:0xf"
        for e in range(8): p += I("v_mul_f32 v%d, v%d, v%d" % (48 + e, 128 + e, 32 + e))
        for e in range(8): p += I("v_mul_f32 v%d, v%d, v%d" % (56 + e, 144 + e, 32 + e))
        for e in range(8): p += I("v_fmac_f32_dpp v%d, v%d, v%d %s" % (48 + e, 32 + e, 136 + e, dpp))
        for e in range(8): p += I("v_fmac_f32_dpp v%d, v%d, v%d %s" % (56 + e, 32 + e, 152 + e, dpp))
        for e in range(8): p += I("v_fma_f32 v%d, -v%d, v%d, v%d" % (48 + e, 144 + e, 40 + e, 48 + e))
        for e in range(8): p += I("v_fmac_f32 v%d, v%d, v%d" % (56 + e, 128 + e if e else 160, 40 + e))
        for e in range(8): p += I("v_fmac_f32_dpp v%d, -v%d, v%d %s" % (48 + e, 40 + e, 152 + e, dpp))
        for e in range(8): p += I("v_fmac_f32_dpp v%d, v%d, v%d %s" % (56 + e, 40 + e, 136 + e if e else 161, dpp))
        for i in range(8): p += I("v_cvt_pk_bf16_f32 v%d, v%d, v%d" % (172 + i, 48 + 2 * i, 49 + 2 * i))
        for v in range(2):
            for kt in range(4):
                d = V(32 + 4 * kt, 4)
                p += I("v_mfma_f32_16x16x32_bf16 %s, %s, %s, %s" % (d, V(172 + 4 * v, 4), A(224 + (2 * kt + v) * 4, 4), d if v else "0"))
        for st in range(4): pass
        for kt in range(4):
            p += I("v_cvt_pk_bf16_f32 v%d, v%d, v%d\nv_cvt_pk_bf16_f32 v%d, v%d, v%d" % (24 + 2 * kt, 32 + 4 * kt, 33 + 4 * kt, 25 + 2 * kt, 34 + 4 * kt, 35 + 4 * kt))
            p += I("buffer_store_dwordx2 %s, %s, %s, s%d offen sc1" % (V(24 + 2 * kt, 2), vXr, SWS, 76 + kt), tag="ust")
        p += self.stamp(7)
        main = []
        for u in range(14):
            for st in range(4):
                for dl in range(4):
                    d = V(128 + (dl * 4 + st) * 4, 4)
                    g = I("v_mfma_f32_16x16x32_bf16 %s, %s, %s, %s" % (d, A(self.wd_reg(u, dl), 4), V(ring[u % 6] + 4 * st, 4), d if u else "0"))
                    main.append(g)
        seq = [(u, st) for u in range(4, 14) for st in range(4)]
        for k, (u, st) in enumerate(seq):
            pos = max(k // 1 if k < 8 else 0, (u - 6) * 16 + st * 4 + 3) if u >= 6 else k
            pos = max(pos, k)
            place(main, pos, hload(u, st))
        sig = I("s_lshl_b32 %s, %s, 3\ns_add_u32 %s, %s, %s\ns_lshl_b32 %s, %s, 7\ns_add_u32 %s, %s, 0x%x\nv_mov_b32 %s, 0\nv_mov_b32 %s, 1" % (
            sT0, sBP, sT0, sT0, sNT, sT0, sT0, sT0, sT0, WS_CNT, V(vT[0]), V(vT[1])))
        l = self.lab("nosig")
        sig += I("@wait ust gst") + I("s_barrier\ns_cmp_lg_u32 %s, 0" % sW)
        sig += I("s_cbranch_scc1 %s\ns_mov_b64 exec, 1\nbuffer_store_dword %s, %s, %s, %s offen sc1\ns_mov_b64 exec, -1\n%s:" % (l, V(vT[1]), V(vT[0]), SWS, sT0, l), raw=True)
        place(main, self.kw.get("sigpos", 64), sig)
        misc = [I("v_add_u32 v28, %d, %s" % (LDS_R64I, vL16B))]
        misc += [I("ds_read_b128 %s, v28 offset:%d" % (A(224 + 4 * f, 4), f * 1024)) for f in range(8)]
        for dl in range(4):
            misc.append(I("s_add_u32 %s, %s, %d\ns_and_b32 %s, %s, 3\ns_mul_i32 %s, %s, 12288\ns_add_u32 %s, %s, %d\nv_add_u32 v%d, %s, %s" % (
                sT1, sW, dl, sT1, sT1, sT1, sT1, sT1, sT1, LDS_RED + max(0, dl - 1) * 4096, vDT[dl], sT1, vL16B)))
        misc.append(I("""v_lshrrev_b32 v29, 1, %(l16)s
v_lshlrev_b32 v29, 7, v29
v_lshrrev_b32 v30, 1, %(hi)s
v_bfe_u32 v31, v0, 3, 1
v_xor_b32 v30, v30, v31
v_lshl_add_u32 v29, v30, 6, v29""" % dict(l16=vL16, hi=vHi)))
        misc.append(I("""v_and_b32 v30, 1, v0
v_lshl_add_u32 v29, v30, 5, v29
v_and_b32 v30, 1, %(hi)s
v_lshl_add_u32 %(w)s, v30, 4, v29""" % dict(hi=vHi, w=vW)))
        misc.append(I("""s_lshl_b32 %(t2)s, %(bp)s, 16
s_add_u32 %(t2)s, %(t2)s, %(lw)s
s_add_u32 %(t2)s, %(t2)s, 0x%(u)x
v_lshlrev_b32 %(pa)s, 7, v0
s_lshl_b32 %(t3)s, %(lw)s, 3
s_add_u32 %(t3)s, %(t3)s, 0x%(cnt)x""" % dict(t2=sT2, t3=sT3, bp=sBP, lw=sLW, u=WS_U, pa=vPA, cnt=WS_CNT)))
        misc.append(I("""s_lshl_b32 s76, %(bp)s, 10
s_lshl_b32 %(t1)s, %(nt)s, 7
s_add_u32 s76, s76, %(t1)s
s_lshl_b32 %(t1)s, %(w)s, 19
s_add_u32 s76, s76, %(t1)s""" % dict(bp=sBP, t1=sT1, nt=sNT, w=sW)))
        misc.append(I("""s_add_u32 s77, s76, 0x40000
v_lshrrev_b32 v29, 3, v0
v_xor_b32 v30, v29, v0
v_and_b32 v30, 7, v30
v_lshlrev_b32 v29, 15, v29
v_lshl_add_u32 %(x)s, v30, 4, v29""" % dict(x=vX)))
        misc.append(I("""s_lshl_b32 %(t1)s, %(w)s, 1
v_lshrrev_b32 v29, 1, %(hi)s
v_add_u32 v29, %(t1)s, v29
v_xor_b32 v29, v29, v0
v_and_b32 v29, 7, v29
v_lshlrev_b32 v29, 4, v29""" % dict(t1=sT1, w=sW, hi=vHi)))
        misc.append(I("""v_lshl_add_u32 v29, %(l16)s, 7, v29
v_and_b32 v30, 1, %(hi)s
v_lshl_add_u32 v29, v30, 3, v29
v_add_u32 v%(ow)d, %(stg)d, v29
s_lshl_b32 %(t1)s, %(w)s, 11
s_add_u32 %(t1)s, %(t1)s, %(stg)d
v_add_u32 v%(orr)d, %(t1)s, %(l16b)s""" % dict(l16=vL16, hi=vHi, ow=vWT[0], orr=vWT[1], stg=LDS_STG, t1=sT1, w=sW, l16b=vL16B)))
        misc.append(I("s_lshl_b32 %s, %s, 8\ns_add_u32 %s, %s, 0x%x\nv_lshlrev_b32 v31, 4, %s" % (sWo0, sBP, sWo0, sWo0, WS_G, vL16)))
        main = weave(main, misc, 70, 126)
        ld2 = "buffer_load_dword %s, %s, %s, %s offen sc1" % (vP, vPA, SWS, sT3)
        pp = self.kw.get("pollpos", 160); cp = self.kw.get("chkpos", 200)
        place(main, pp, I(ld2))
        def udma(n):
            g = I("s_add_u32 m0, %s, %d" % (sLW, n * 4096))
            if n: g += I("s_add_u32 %s, %s, 4096" % (sT2, sT2))
            return g + I("buffer_load_dwordx4 %s, %s, %s offen sc1 lds" % (vL16B, SWS, sT2), tag="u%d" % (n // 4))
        place(main, cp, self.stamp(8) + self.spin(ld2, 1, sleep=4) + self.stamp(9))
        main = weave(main, [udma(n) for n in range(16)], cp, 224)
        p += flat(main)
        for dl in range(1, 4):
            for st in range(4):
                p += I("ds_write_b128 v%d, %s offset:%d" % (vDT[dl], V(128 + (dl * 4 + st) * 4, 4), st * 1024), tag="red")
        p += I("@wait red u0\ns_barrier")
        p += I("buffer_load_dwordx4 v[24:27], v31, %s, %s offen sc1" % (SWS, sWo0))
        def ard(n, sg):
            return I("ds_read_b128 %s, %s offset:%d" % (V(192 + ((n % 4) * 4 + sg) * 4, 4), vW, (n * 4 + sg) * 1024))
        LA = 8
        for k in range(LA): p += ard(k // 4, k % 4)
        main = []
        for n in range(16):
            for sg in range(4):
                d = V(32 + 4 * sg, 4)
                g = I("v_mfma_f32_16x16x32_bf16 %s, %s, %s, %s" % (d, V(192 + ((n % 4) * 4 + sg) * 4, 4), V(64 + 4 * n, 4), d if n else "0"))
                k = 4 * n + sg + LA
                if k < 64:
                    if k % 16 == 0: g += I("@wait u%d\ns_barrier" % (k // 16))
                    g += ard(k // 4, k % 4)
                main.append(g)
        red = [I("ds_read_b128 %s, v%d offset:%d" % (V(144 + 4 * k, 4), vDT[0], k * 1024)) for k in range(12)]
        main = weave(main, red, 0, 24)
        adds = [I("v_pk_add_f32 %s, %s, %s" % (V(128 + 2 * i, 2), V(128 + 2 * i, 2), V(144 + 16 * k + 2 * i, 2))) for k in range(3) for i in range(8)]
        main = weave(main, adds, 32, 62)
        p += flat(main)
        for i in range(8): p += I("v_cvt_pk_bf16_f32 v%d, v%d, v%d" % (48 + i, 32 + 2 * i, 33 + 2 * i))
        for v in range(2):
            for at in range(4):
                d = V(192 + 4 * at, 4)
                p += I("v_mfma_f32_16x16x32_bf16 %s, %s, %s, %s" % (d, V(48 + 4 * v, 4), A(224 + (2 * at + v) * 4, 4), d if v else "0"))
        for at in range(4):
            for r in range(4):
                p += I("v_fma_f32 v%d, -v%d, v%d, v%d" % (128 + 4 * at + r, 24 + at, 128 + 4 * at + r, 128 + 4 * at + r))
        for at in range(4):
            for r in range(4):
                p += I("v_fmac_f32 v%d, v%d, v%d" % (128 + 4 * at + r, 24 + at, 192 + 4 * at + r))
            p += I("v_cvt_pk_bf16_f32 v%d, v%d, v%d\nv_cvt_pk_bf16_f32 v%d, v%d, v%d" % (56 + 2 * at, 128 + 4 * at, 129 + 4 * at, 57 + 2 * at, 130 + 4 * at, 131 + 4 * at))
            p += I("ds_write_b64 v%d, %s offset:%d" % (vWT[0], V(56 + 2 * at, 2), at * 2048))
        p += I("@waitlg0\ns_barrier")
        for e in range(2): p += I("ds_read_b128 %s, v%d offset:%d" % (V(32 + 4 * e, 4), vWT[1], e * 1024))
        for e in range(2): p += I("buffer_store_dwordx4 %s, %s, %s, s%d offen %s" % (V(32 + 4 * e, 4), vX, SOUT, 76 + e, ("", "sc1", "nt")[self.kw.get("ost", 0)]))
        if "diag" in self.kw:
            i = self.kw["diag"]; l = self.lab("dg")
            who = self.kw.get("who", 0)
            use = i >= 0 and (who == 0 or (who == 1) == ffn)
            p += I("@waitvm0") + self.stamp(10) + I("s_waitcnt lgkmcnt(0)")
            p += I("s_add_u32 s3, %s, 5000" % ("s%d" % (48 + 2 * i) if use else "s100"))
            p += I("%s:\ns_sleep 1\ns_memrealtime s[98:99]\ns_waitcnt lgkmcnt(0)\ns_sub_u32 s98, s98, s3\ns_cmp_lt_i32 s98, 0\ns_cbranch_scc1 %s" % (l, l), raw=True)
        elif self.prof:
            p += I("@waitvm0") + self.stamp(10) + I("s_waitcnt lgkmcnt(0)")
            p += I("s_lshl_b32 s3, s2, 2\ns_add_u32 s3, s3, %s\ns_lshl_b32 s3, s3, 6\ns_add_u32 s3, s3, 0x%x\nv_mov_b32 v0, 0\nv_mov_b32 v32, s100" % (sW, WS_PROF))
            for i in range(11): p += I("v_mov_b32 v%d, s%d" % (33 + i, 48 + 2 * i))
            p += I("s_mov_b64 exec, 1")
            for i in range(3): p += I("buffer_store_dwordx4 %s, v0, %s, s3 offen offset:%d" % (V(32 + 4 * i, 4), SWS, 16 * i))
        p += I("s_endpgm")
        return p

    def text(self):
        st = {}
        hdr = open("gated_mix__spectral_gfnet__glu_gated_reglu__prompt.s.ref").read().split("; Override launch")[0]
        out = [hdr.rstrip(), "; One persistent launch: 256 workgroups (one per CU) x 4 waves. Generated by tools/gen.py.",
               "; @launch grid=(256,1,1) block=(256,1,1) lds=163840", '.amdgcn_target "amdgcn-amd-amdhsa--gfx950"', ".text",
               ".globl " + NAME, ".p2align 8", ".type %s,@function" % NAME, NAME + ":"]
        prog = self.prologue() + self.p12(True) + self.tail(True) + I("L_dft:") + self.p12(False) + self.tail(False) + I("L_end:\ns_endpgm")
        out += finalize(prog, st)
        out += ['.section .rodata,"a"', ".p2align 6", ".amdhsa_kernel " + NAME, "  .amdhsa_next_free_vgpr 512", "  .amdhsa_next_free_sgpr 102",
                "  .amdhsa_accum_offset 256", "  .amdhsa_group_segment_fixed_size 0", "  .amdhsa_kernarg_size 88", "  .amdhsa_user_sgpr_count 2",
                "  .amdhsa_user_sgpr_kernarg_segment_ptr 1", "  .amdhsa_system_sgpr_workgroup_id_x 1", "  .amdhsa_float_denorm_mode_32 3", ".end_amdhsa_kernel"]
        self.stats = st
        return "\n".join(out) + "\n"

if __name__ == "__main__":
    import argparse
    ap = argparse.ArgumentParser()
    ap.add_argument("out"); ap.add_argument("--prof", action="store_true"); ap.add_argument("--opt", default="")
    a = ap.parse_args()
    kw = dict((k, int(v)) for k, v in (x.split("=") for x in a.opt.split(",") if x))
    g = Gen(prof=a.prof, **kw)
    open(a.out, "w").write(g.text())
    print(g.stats)
```

```python
import re, struct

def f2u(x):
    return struct.unpack("<I", struct.pack("<f", float(x)))[0]
def flit(x):
    inl = {0.0: "0", 0.5: "0.5", -0.5: "-0.5", 1.0: "1.0", -1.0: "-1.0", 2.0: "2.0", -2.0: "-2.0", 4.0: "4.0", -4.0: "-4.0"}
    return inl[x] if x in inl else "0x%08x" % f2u(x)
def fhex(x):
    return "0x%08x" % f2u(x)
def R(k, i, n=1):
    return "%s%d" % (k, i) if n == 1 else "%s[%d:%d]" % (k, i, i + n - 1)
def V(i, n=1): return R("v", i, n)
def A(i, n=1): return R("a", i, n)
def S(i, n=1): return R("s", i, n)

_reg = re.compile(r"^-?\|?(?:abs\()?([vas])(?:(\d+)|\[(\d+):(\d+)\])")
def regs_of(op):
    op = op.strip()
    if op in ("vcc", "vcc_lo", "vcc_hi"): return {("s", 106), ("s", 107)}
    if op in ("exec", "exec_lo", "exec_hi"): return {("s", 126), ("s", 127)}
    if op == "m0": return {("s", 124)}
    m = _reg.match(op)
    if not m: return set()
    k = m.group(1)
    if m.group(2) is not None: return {(k, int(m.group(2)))}
    return {(k, i) for i in range(int(m.group(3)), int(m.group(4)) + 1)}

TRANS = ("v_exp_f32", "v_log_f32", "v_rcp_f32", "v_rsq_f32", "v_sqrt_f32", "v_sin_f32", "v_cos_f32")
class Ins:
    __slots__ = ("text", "tag", "raw", "op", "cls", "dst", "src", "srcc", "srcab", "dpp", "trans", "wide", "ldsdma", "sdata")
    def __init__(self, text, tag=None, raw=False):
        self.text = text; self.tag = tag; self.raw = raw
        t = text.split(";")[0].strip()
        self.dst = set(); self.src = set(); self.srcc = set(); self.srcab = set(); self.sdata = set()
        self.dpp = False; self.trans = False; self.wide = False; self.ldsdma = False
        if t.endswith(":") or t.startswith(".") or not t:
            self.op = ""; self.cls = "label"; return
        if t.startswith("@"):
            self.op = t; self.cls = "pseudo"; return
        parts = t.split(None, 1)
        op = self.op = parts[0]
        body = re.sub(r"\s(op_sel|op_sel_hi|neg_lo|neg_hi):\[[^\]]*\]", "", parts[1]) if len(parts) > 1 else ""
        ops = [o.strip() for o in body.split(",")] if body else []
        mods = ""
        if ops:
            sp = ops[-1].split(None, 1)
            ops[-1] = sp[0]; mods = sp[1] if len(sp) > 1 else ""
        rs = [regs_of(o) for o in ops]
        allr = set().union(*rs) if rs else set()
        if op.startswith("v_mfma"):
            self.cls = "mfma"; self.dst = rs[0]; self.srcab = rs[1] | rs[2]; self.srcc = rs[3]; self.src = self.srcab | self.srcc
        elif op.startswith("v_"):
            self.cls = "valu"; self.dst = set(rs[0]); self.src = set().union(*rs[1:]) if len(rs) > 1 else set()
            self.dpp = "_dpp" in op
            self.trans = any(op.startswith(x) for x in TRANS)
            if op.startswith(("v_fmac", "v_dot2c", "v_writelane")) or self.dpp or "sdwa" in op: self.src |= rs[0]
            if op.startswith("v_permlane"): self.dst = rs[0] | rs[1]; self.src = rs[0] | rs[1]
            if op.startswith(("v_add_co", "v_sub_co", "v_addc_co")): self.dst |= rs[1]
        elif op.startswith("ds_read"):
            self.cls = "ds"; self.dst = rs[0]; self.src = rs[1]
        elif op.startswith("ds_"):
            self.cls = "ds"; self.src = allr
        elif op.startswith(("buffer_load", "global_load")):
            self.cls = "vmem"
            if re.search(r"\blds\b", mods):
                self.ldsdma = True; self.src = allr | {("s", 124)}
            else:
                self.dst = rs[0]; self.src = set().union(*rs[1:])
                if "d16" in op: self.src |= rs[0]
        elif op.startswith(("buffer_store", "buffer_atomic")):
            self.cls = "vmem"; self.src = allr; self.sdata = rs[0]
            self.wide = "x4" in op or "x3" in op
        elif op.startswith(("s_load", "s_memtime", "s_memrealtime")):
            self.cls = "smem"; self.dst = rs[0]; self.src = set().union(*rs[1:]) if len(rs) > 1 else set()
        elif op.startswith(("s_cmp", "s_cbranch", "s_branch", "s_waitcnt", "s_nop", "s_barrier", "s_sleep", "s_endpgm", "s_setprio", "s_bitcmp")):
            self.cls = "salu"; self.src = allr
        elif op.startswith("s_"):
            self.cls = "salu"; self.dst = set(rs[0]); self.src = set().union(*rs[1:]) if len(rs) > 1 else set()
            if op.startswith(("s_addk", "s_mulk")): self.src |= rs[0]
            if "saveexec" in op: self.dst |= {("s", 126), ("s", 127)}
        else:
            raise ValueError("unknown instr: " + text)

def I(text, tag=None, raw=False):
    return [Ins(l.strip(), tag, raw) for l in text.strip().split("\n") if l.strip()]

def flat(x):
    out = []
    for e in x:
        if isinstance(e, (list, tuple)): out.extend(flat(e))
        else: out.append(e)
    return out

def weave(main, fill, start=0, end=None):
    if end is None: end = len(main)
    n = end - start
    out = [list(flat([g])) for g in main]
    for j, g in enumerate(fill):
        pos = start + (j * n) // max(1, len(fill))
        out[pos] = out[pos] + list(flat([g]))
    return out

def place(main, pos, group):
    main[pos] = list(flat([main[pos]])) + list(flat([group]))

def isv(rs): return {r for r in rs if r[0] in "va"}
def iss(rs): return {r for r in rs if r[0] == "s"}

def hazard_need(p, c):
    n = 0
    if p.cls == "valu":
        pv = isv(p.dst); ps = iss(p.dst)
        if c.cls == "mfma" and pv & c.src: n = max(n, 2)
        if c.cls == "valu":
            if c.dpp and pv & c.src: n = max(n, 2)
            if c.op.startswith("v_permlane") and pv & c.src: n = max(n, 2)
            if c.op.startswith(("v_readfirstlane", "v_readlane")) and pv & c.src: n = max(n, 1)
            if p.trans and not c.trans and pv & c.src: n = max(n, 1)
            if ("sdwa" in p.op) and pv & (c.src | c.dst): n = max(n, 1)
            if ps & c.src: n = max(n, 4 if c.op.startswith(("v_readlane", "v_writelane")) else 2)
            if p.op.startswith("v_dot2") and pv & (c.src | c.dst):
                same = c.op == p.op
                n = max(n, 3)
        if p.op.startswith("v_dot2") and c.cls in ("vmem", "ds", "mfma") and pv & c.src: n = max(n, 3)
        if c.cls == "vmem" and ps & c.src: n = max(n, 5)
        if c.cls in ("salu", "smem") and ps & c.src: n = max(n, 1)
    if p.cls == "mfma":
        big = "32x32" in p.op
        if c.cls == "mfma":
            if p.dst & c.srcab: n = max(n, 12 if big else 8)
            if p.dst & c.srcc and p.dst != c.srcc: n = max(n, 10 if big else 6)
            if p.dst & c.dst and not (p.dst == c.srcc and p.dst == c.dst): n = max(n, 10 if big else 6)
        elif c.cls in ("valu", "vmem", "ds"):
            if p.dst & (c.src | c.dst): n = max(n, 12 if big else 8)
            if c.cls == "valu" and p.srcc & c.dst: n = max(n, 7 if big else 3)
    if p.cls == "salu":
        if ("s", 124) in p.dst and c.ldsdma: n = max(n, 1)
        if p.dst & {("s", 126), ("s", 127)} and c.dpp: n = max(n, 5)
    if p.cls == "vmem" and p.wide and p.sdata & c.dst: n = max(n, 2)
    return n

def finalize(prog, stats=None):
    out = []
    vmq = []; lgq = []
    def emit_wait(vm, lg):
        parts = []
        if vm is not None: parts.append("vmcnt(%d)" % min(vm, 62))
        if lg is not None: parts.append("lgkmcnt(%d)" % min(lg, 14))
        out.append(Ins("s_waitcnt " + " ".join(parts)))
        if vm is not None: del vmq[:max(0, len(vmq) - min(vm, 62))]
        if lg is not None: del lgq[:max(0, len(lgq) - min(lg, 14))]
    nnop = 0; seen = set()
    for c in prog:
        if c.cls == "pseudo":
            w = c.op.split()
            if w[0] in ("@must", "@need"):
                for tg in w[1:]: assert tg in seen, "wait for %s before it was issued" % tg
            if w[0] in ("@wait", "@need", "@must"):
                vm = lg = None
                for tg in w[1:]:
                    idx = [i for i, e in enumerate(vmq) if e.tag == tg]
                    if idx:
                        n = len(vmq) - 1 - idx[-1]; vm = n if vm is None else min(vm, n)
                    idx = [i for i, e in enumerate(lgq) if e.tag == tg]
                    if idx:
                        n = len(lgq) - 1 - idx[-1]; lg = n if lg is None else min(lg, n)
                if lg is not None and any(e.cls == "smem" for e in lgq): lg = 0
                if vm is not None or lg is not None: emit_wait(vm, lg)
            elif w[0] == "@waitlg0":
                if lgq: emit_wait(None, 0)
            elif w[0] == "@waitvm0":
                if vmq: emit_wait(0, None)
            elif w[0] == "@reset":
                vmq.clear(); lgq.clear(); seen.clear()
            else:
                raise ValueError(c.op)
            continue
        if c.raw or c.cls == "label":
            out.append(c); continue
        touch = c.src | c.dst
        vm = lg = None
        for i in range(len(vmq) - 1, -1, -1):
            if vmq[i].dst & touch:
                vm = len(vmq) - 1 - i; break
        for i in range(len(lgq) - 1, -1, -1):
            if lgq[i].dst & touch:
                lg = len(lgq) - 1 - i; break
        if lg is not None and any(e.cls == "smem" for e in lgq): lg = 0
        if vm is not None or lg is not None: emit_wait(vm, lg)
        need = 0; dist = 0
        for p in reversed(out):
            if dist >= 12: break
            if p.cls == "label": continue
            if p.raw: continue
            h = hazard_need(p, c)
            if h - dist > need: need = h - dist
            dist += (int(p.text.split()[1]) + 1) if p.op == "s_nop" else 1
        if need > 0:
            out.append(Ins("s_nop %d" % (need - 1))); nnop += need
        out.append(c)
        if c.op == "s_waitcnt":
            m = re.search(r"vmcnt\((\d+)\)", c.text)
            if m: del vmq[:max(0, len(vmq) - int(m.group(1)))]
            m = re.search(r"lgkmcnt\((\d+)\)", c.text)
            if m: del lgq[:max(0, len(lgq) - int(m.group(1)))]
        seen.add(c.tag)
        if c.cls == "vmem": vmq.append(c)
        elif c.cls in ("ds", "smem"): lgq.append(c)
    if stats is not None:
        stats["nops"] = nnop; stats["n"] = len(out)
    return [("    " + e.text) if e.cls != "label" else e.text for e in out]

def icost(x):
    if x.cls == "label": return 0
    if x.raw: return 1 if x.op.startswith("s_cbranch_vccz") and x.tag == "first" else 0
    if x.cls == "pseudo": return 1 if x.op.startswith(("@wait", "@must")) else 0
    if x.trans: return 2
    if x.op.startswith("v_pk_"): return 5
    if x.op.startswith("v_dot2"): return 2
    return 1
def scalarish(x): return x.cls in ("salu", "pseudo", "label", "smem")
def gap_over(items):
    c = sum(icost(x) for x in items)
    cap = 3 if all(scalarish(x) for x in items) else 2
    nds = sum(1 for x in items if x.cls == "ds")
    return max(0, c - cap, nds - 1)
class Gaps:
    def __init__(self, mf):
        self.m = [flat([g]) for g in mf]; self.f = [[] for _ in mf]
    def __len__(self): return len(self.m)
    def put(self, pos, g): self.f[pos] += flat([g])
    def stream(self, groups, start, end, spread=True):
        n = len(groups); last = start
        for j, g in enumerate(groups):
            g = flat([g])
            want = max(last, start + (j * (end - start)) // n if spread else last)
            lim = max(want, end - 1 - (n - 1 - j) // 2)
            best = None
            for pos in range(want, min(lim, len(self.m) - 1) + 1):
                add = gap_over(self.f[pos] + g) - gap_over(self.f[pos])
                if best is None or add < best[0]: best = (add, pos)
                if add <= gap_over(g) or pos >= want + 12: break
            pos = best[1] if best else min(want, len(self.m) - 1)
            self.f[pos] += g; last = pos
        return last
    def out(self):
        o = []
        for m, f in zip(self.m, self.f): o += m + f
        return o

def estimate(lines):
    res = []; cyc = 0; nm = 0; gap = None; over = 0
    for l in lines:
        x = Ins(l.strip())
        if x.cls == "label" or x.text.startswith("; mark"):
            continue
        if x.cls == "mfma":
            if gap is not None: cyc += 16 + 4 * gap_over(gap); over += gap_over(gap)
            gap = []; nm += 1
        elif gap is not None: gap.append(x)
    return nm, over
```

```python
import sys
sys.path.insert(0, "tools")
from prog import *

NAME = "gated_mix__spectral_gfnet__glu_gated_reglu__prompt_kernel"
WS_H, WS_X1, WS_U, WS_G, WS_FLAG, WS_CNT, WS_PROF = 0, 0x800000, 0xA00000, 0xC38000, 0xC10000, 0xC30000, 0xF000000
NCLR = 21
SPIN_LIMIT = 100000
MF = "v_mfma_f32_16x16x32_bf16"
SX, SWG, SWU, SWD, SWS, SOUT, SWR, SWI, SGW, SDBG = [S(8 + 4 * i, 4) for i in range(10)]
NM = dict(w="s4", b12="s5", ni="s6", rot="s7", xcd="s70", loc="s71", wds="s70", wde="s71", l3="s72", nt="s73", bp="s74", xn="s75",
          hs="s80", lw4="s80", wo0="s81", wo1="s82", he="s83", wb="s83", k="s94", lw="s84", wdo="s85", t0="s86", t1="s87", t2="s88", t3="s89",
          mask="s[90:91]", hi16="s92", ring="s93", ho="s94", clr="s95", m1="s[96:97]", m2="s[98:99]",
          l16="v1", hi="v2", x="v3", xr="v4", vw="v5", l16b="v14", wd="v15", p="v16", xr2="v16", pa="v17",
          SX=SX, SWG=SWG, SWU=SWU, SWD=SWD, SWS=SWS, SOUT=SOUT, SWR=SWR, SWI=SWI, SGW=SGW, SDBG=SDBG)
vWT = [6, 7, 8, 9]; vDT = [10, 11, 12, 13]; vXA = [22, 23]; vWD = [15, 29, 30, 31]
LDS_RPF, LDS_RPI, LDS_R64I, LDS_STG, LDS_RED = 128 * 1024, 136 * 1024, 144 * 1024, 152 * 1024, 64 * 1024
GB, CO, ACCV = 64, 32, 48
CA2, CB2 = 20, 21
RING = [192, 208, 224, 240, 32]

def J(text, tag=None, raw=False, **kw):
    d = dict(NM); d.update(kw)
    return I(text.format(**d), tag, raw)
def single(g): return [[x] for x in flat(g)]
def chunks(g):
    g = flat(g); out = []; i = 0
    while i < len(g):
        j = i
        if g[i].op.startswith("v_cmp") and ("s", 106) in g[i].dst:
            k = i + 1
            while k < len(g) and not (g[k].op.startswith("v_cmp") and ("s", 106) in g[k].dst):
                if ("s", 106) in g[k].src: j = k
                k += 1
            j = i
        while j + 1 < len(g) and g[j + 1].op.startswith(("s_cselect", "s_subb", "s_addc")): j += 1
        out.append(g[i:j + 1]); i = j + 1
    return out
def cvt(d, a, b): return I("v_cvt_pk_bf16_f32 v%d, v%d, v%d" % (d, a, b))

_seen = set()
def seen_tag(t):
    r = t in _seen; _seen.add(t); return r

class Gen:
    def __init__(self, prof=False, **kw):
        self.prof = prof; self.kw = kw; self.nl = 0
    def o(self, k, d): return self.kw.get(k, d)
    def lab(self, b):
        self.nl += 1; return "L%s_%d" % (b, self.nl)
    def clk(self): return "s_memtime" if self.o("cyc", 0) else "s_memrealtime"
    def stamp(self, i, mode=0):
        if not self.prof or self.o("diag", i) != i or (self.o("pm", 0) != mode and i != 10): return []
        return I("%s %s" % (self.clk(), S(48 + 2 * i, 2)), raw=True)
    def srd(self, name, lo, size, back=0):
        b = int(name[2:name.index(":")])
        if back: g = I("s_sub_u32 s%d, s%d, %d\ns_subb_u32 s%d, s%d, 0" % (b, lo, back, b + 1, lo + 1))
        else: g = I("s_mov_b64 %s, %s" % (S(b, 2), S(lo, 2)))
        return g
    def srd_const(self, name, size):
        b = int(name[2:name.index(":")])
        return I("s_mov_b32 s%d, 0x%x\ns_mov_b32 s%d, 0x20000" % (b + 2, size, b + 3))
    def spin(self, load, sleep=2):
        ok, sp = self.lab("ok"), self.lab("spin")
        cmp_ = "v_cmp_ne_u32 vcc, 1, v16"
        return I(cmp_) + I("s_cbranch_vccz %s" % ok, tag="first", raw=True) + I("""s_mov_b32 s3, 0
%s:
s_sleep %d
%s
s_waitcnt vmcnt(0)
%s
s_add_u32 s3, s3, 1
s_cmp_lt_u32 s3, %d
s_cbranch_vccz %s
s_cbranch_scc1 %s
%s:""" % (sp, sleep, load, cmp_, SPIN_LIMIT, ok, sp, ok), raw=True)

    def cheb(self, X, Y, K, pk=True):
        if not pk: return I("\n".join("v_fma_f32 v%d, v%d, v%d, -v%d" % (X + q, K, Y + q, X + q) for q in range(8)))
        return I("\n".join("v_pk_fma_f32 %s, %s, %s, %s neg_lo:[0,0,1] neg_hi:[0,0,1]" % (V(X + 2 * q, 2), V(K, 2), V(Y + 2 * q, 2), V(X + 2 * q, 2)) for q in range(4)))
    def direct(self, X, spec):
        g = []; src = []
        for i, (d, K, b) in enumerate(spec):
            if K == 0: src.append(b)
            else:
                g += I("v_fmamk_f32 v%d, %s, %s, %s" % (X + i, d, fhex(K), b)); src.append("v%d" % (X + i))
        return g + I("\n".join("v_cos_f32 v%d, %s" % (X + i, src[i]) for i in range(8)))
    def pack(self, dst, X, first=None):
        return flat([cvt(dst + q, first if (q == 0 and first) else X + 2 * q, X + 2 * q + 1) for q in range(4)])

    def gen_G(self, t, pk):
        X, Y, K = t, t + 8, t + 16
        d, a0 = V(t + 18), V(t + 19)
        pre = J("""s_lshl_b32 {t0}, {nt}, 6
s_lshl_b32 {t1}, {w}, 4
s_add_u32 {t0}, {t0}, {t1}
v_add_u32 {d}, {t0}, {l16}
v_cvt_f32_u32 {d}, {d}
v_mul_f32 {d}, {c512}, {d}
v_mul_f32 {k0}, 0x41800000, {d}
v_cos_f32 {k0}, {k0}
v_and_b32 {e0}, 2, {hi}
v_lshlrev_b32 {e0}, 2, {e0}
v_cvt_f32_u32 {e0}, {e0}
v_and_b32 {e1}, 1, {hi}
v_cvt_f32_u32 {a0}, {e1}
v_mul_f32 {a0}, 0x3e800000, {a0}
v_fmac_f32 {a0}, {d}, {e0}
v_add_f32 {k0}, {k0}, {k0}
v_and_b32 {e0}, {e1}, v0
v_mov_b32 {k1}, {k0}
v_lshl_or_b32 {e0}, {e0}, 31, 0.5""", d=d, a0=a0, c512=fhex(1 / 512), k0=V(K), k1=V(K + 1), e0=V(t + 20), e1=V(t + 21))
        kap = [2 * (i & 3) + (i >> 2) for i in range(8)]
        gs = [pre, self.direct(X, [(d, kap[i], a0) for i in range(8)]), self.direct(Y, [(d, 16 + kap[i], a0) for i in range(8)]),
              J("v_cmp_gt_u32 vcc, 2, {hi}") + self.pack(GB + 4, Y) + I("v_cndmask_b32 v%d, v%d, v%d, vcc" % (t + 20, X, t + 20)) + self.pack(GB, X, first=t + 20)]
        for n in range(2, 16):
            a, b = (X, Y) if n % 2 == 0 else (Y, X)
            gs.append(self.cheb(a, b, K, pk) + self.pack(GB + 4 * n, a))
        return gs

    def gen_R(self, part, t):
        X = t; r = [V(t + 8 + i) for i in range(14)]
        n = dict(q=r[0], k=r[1], ph=r[2], dl=r[3], b0=r[4], b1=r[5], d0=r[6], d1=r[7], o0=r[8], o1=r[9], qt=r[10], h2=r[11], hf=r[12], adr=r[13],
                 c=fhex(1 / 2048), c64=fhex(1 / 64), base=LDS_RPF + 8192 * part)
        g = J("""s_lshl_b32 {t0}, {w}, 11
s_add_u32 {t0}, {t0}, {base}
v_add_u32 {adr}, {t0}, {l16b}
v_cvt_f32_u32 {hf}, {hi}
v_mov_b32 {qt}, 0x3e800000""", **n)
        if part < 2: g += J("s_cmp_eq_u32 {bp}, 0\ns_cselect_b64 {m1}, -1, 0\ns_cselect_b32 {t1}, 32, 64")
        masks = J("s_and_b32 vcc_lo, s96, 0xaaaaaaaa\ns_mov_b32 vcc_hi, vcc_lo\ns_andn2_b64 {m2}, {m1}, vcc")
        if part == 0:
            g += J("""s_and_b32 {t0}, {w}, 1
s_lshl_b32 {t0}, {t0}, 4
v_add_u32 {q}, {t0}, {l16}
v_mul_u32_u24 {k}, {t1}, {q}
v_add_u32 {k}, {bp}, {k}
s_lshr_b32 {t2}, {w}, 1
s_cselect_b64 {m2}, -1, 0
v_cmp_eq_u32 vcc, 0, {k}
v_cvt_f32_u32 {ph}, {t2}
v_mul_f32 {ph}, 0xbe800000, {ph}
v_cvt_f32_u32 {dl}, {k}
v_mul_f32 {dl}, {c}, {dl}
s_and_b64 vcc, vcc, {m2}
v_cndmask_b32 {dl}, {dl}, 0.5, vcc
v_cndmask_b32 {ph}, {ph}, 0, vcc
v_add_f32 {h2}, {hf}, {hf}
v_fma_f32 {b0}, {dl}, {h2}, {ph}
v_add_f32 {b1}, {qt}, {b0}
v_cndmask_b32 {b1}, {b1}, {b0}, {m1}""", **n) + masks + J("""v_cndmask_b32 {d0}, {dl}, 0, vcc
v_cndmask_b32 {b0}, {b0}, {qt}, vcc
v_cndmask_b32 {d1}, {dl}, 0, {m2}
v_cndmask_b32 {b1}, {b1}, {qt}, {m2}""", **n)
            specs = [[((r[6], r[7])[i & 1], 16 * v + 8 * (i // 4) + (i % 4) // 2, (r[4], r[5])[i & 1]) for i in range(8)] for v in range(2)]
        elif part == 1:
            g += masks + J("""s_lshl_b32 {t0}, {w}, 3
v_lshrrev_b32 {q}, 1, {l16}
v_add_u32 {q}, {t0}, {q}
v_cvt_f32_u32 {k}, {q}
v_mul_f32 {k}, {c}, {k}
v_cvt_f32_u32 {ph}, {t1}
v_mul_f32 {dl}, {k}, {ph}
v_cvt_f32_u32 {ph}, {bp}
v_mul_f32 {b0}, {k}, {ph}
v_and_b32 {q}, 1, v0
v_cvt_f32_u32 {ph}, {q}
v_cndmask_b32 {ph}, {ph}, 0, {m1}
v_fmac_f32 {b0}, {qt}, {ph}
v_mul_f32 {ph}, 4.0, {hf}
v_fmac_f32 {b0}, {dl}, {ph}
v_sub_f32 {b1}, {b0}, {qt}
v_cndmask_b32 {d1}, {dl}, 0, {m2}
v_cndmask_b32 {o0}, {b0}, {qt}, {m2}
v_cndmask_b32 {o1}, {b1}, {qt}, {m2}
s_and_b64 {m2}, {m2}, 0xffff
v_cndmask_b32 {d0}, {dl}, 0, vcc
v_cndmask_b32 {b0}, {b0}, {qt}, vcc
v_cndmask_b32 {b1}, {b1}, {qt}, vcc
v_mul_f32 {k}, 0x44800000, {k}
v_cndmask_b32 {k}, {b1}, {k}, {m2}""", **n)
            specs = [[((r[6], r[7])[i & 1], 16 * (i // 4) + i % 4, ((r[4], r[5]), (r[8], r[9]))[i & 1][v]) for i in range(8)] for v in range(2)]
            specs[1][0] = (r[6], 0, r[1])
        else:
            g += J("""s_lshl_b32 {t0}, {w}, 4
v_add_u32 {q}, {t0}, {l16}
v_cvt_f32_u32 {q}, {q}
v_mul_f32 {dl}, {c64}, {q}
v_add_f32 {h2}, {hf}, {hf}
v_mul_f32 {b0}, {dl}, {h2}
v_sub_f32 {b1}, {b0}, {qt}
v_mul_f32 {q}, 0.5, {q}
s_mov_b64 {m2}, 0xffff
v_cndmask_b32 {q}, {b1}, {q}, {m2}""", **n)
            specs = [[(r[3], 16 * v + 8 * (i // 4) + (i % 4) // 2, (r[4], r[5])[i & 1]) for i in range(8)] for v in range(2)]
            specs[0][1] = (r[3], 0, r[0])
        for v in range(2):
            g += self.direct(X, specs[v]) + self.pack(X, X) + I("ds_write_b128 %s, %s offset:%d" % (r[13], V(X, 4), v * 1024), tag="rtab")
        return chunks(g)

    def gen_T(self):
        r = [V(176 + i) for i in range(8)]
        gs = [J("""s_lshr_b32 {t0}, {xn}, 1
s_lshl_b32 {t0}, {t0}, 2
s_add_u32 {t0}, {t0}, {w}
s_lshl_b32 {t0}, {t0}, 5
s_and_b32 {t1}, {xn}, 1
s_add_u32 {t0}, {t0}, {t1}
v_lshl_add_u32 {j}, {l16}, 1, {t0}
v_cvt_f32_u32 {d0}, {j}
v_cmp_eq_u32 vcc, 0, {j}
v_mul_f32 {d0}, {c}, {d0}
v_mov_b32 {b1}, 0x3e800000
s_lshl_b32 {t0}, {wb}, 6
v_lshl_add_u32 {h4}, {hi}, 2, {t0}
v_cvt_f32_u32 {h4}, {h4}
v_cndmask_b32 {d1}, {d0}, 0.5, vcc
v_cndmask_b32 {b1}, {b1}, 0, vcc
v_mul_f32 {b0}, {d0}, {h4}
v_fmac_f32 {b1}, {d1}, {h4}
v_mul_f32 v168, 0x42000000, {d0}
v_mul_f32 v170, 0x42000000, {d1}
v_cos_f32 v168, v168
v_cos_f32 v170, v170
s_lshl_b32 {t0}, {w}, 11
v_add_u32 {adr}, {t0}, {l16b}
v_add_f32 v168, v168, v168
v_add_f32 v170, v170, v170
v_mov_b32 v169, v168
v_mov_b32 v171, v170""", j=r[0], d0=r[2], d1=r[3], b0=r[4], b1=r[5], h4=r[6], adr=r[7], c=fhex(1 / 512))]
        for n in range(8):
            for tt in range(2):
                X, Y = 128 + 16 * tt, 136 + 16 * tt
                a, b = (X, Y) if n % 2 == 0 else (Y, X)
                g = self.direct(a, [(r[2 + tt], 32 * n + 16 * (i // 4) + i % 4, r[4 + tt]) for i in range(8)]) if n < 2 else self.cheb(a, b, 168 + 2 * tt)
                gs.append(g + self.pack(160 + 4 * tt, a) + I("ds_write_b128 %s, %s offset:%d" % (r[7], V(160 + 4 * tt, 4), n * 8192 + tt * 1024), tag="ttab"))
        sel = J("""s_lshl_b32 {t1}, {t1}, 15
v_lshrrev_b32 v24, 1, {hi}
v_mul_u32_u24 v24, {t1}, v24
v_or_b32 v24, 0x3f80, v24
v_and_b32 v25, 1, v0
v_lshlrev_b32 v25, 4, v25
v_lshlrev_b32 v24, v25, v24
v_lshrrev_b32 v25, 1, {l16}
v_and_b32 v26, 1, {hi}
v_lshlrev_b32 v27, 2, v26
v_xor_b32 v27, v25, v27
v_cmp_eq_u32 vcc, 0, v27
v_cmp_eq_u32 {m1}, 1, v27
v_cmp_eq_u32 {m2}, 2, v27
v_cndmask_b32 v20, 0, v24, vcc
v_cmp_eq_u32 vcc, 3, v27
v_cndmask_b32 v21, 0, v24, {m1}
v_cndmask_b32 v22, 0, v24, {m2}
v_cndmask_b32 v23, 0, v24, vcc
v_xor_b32 v24, v26, v25
v_lshlrev_b32 v24, 4, v24
v_lshl_add_u32 v24, {l16}, 7, v24
v_lshrrev_b32 v25, 1, {hi}
v_lshl_add_u32 v24, v25, 11, v24
v_add_u32 v6, {ring}, v24
v_xor_b32 v7, 32, v6
v_xor_b32 v8, 64, v6
v_xor_b32 v9, 0x60, v6""")
        late = J("""s_lshl_b32 {t0}, {w}, 4
v_add_u32 v24, {t0}, {l16}
v_lshrrev_b32 v18, 1, v24
v_cvt_f32_u32 v18, v18
v_mul_f32 v18, {c}, v18
v_and_b32 v19, 1, v24
v_cvt_f32_u32 v19, v19
v_mul_f32 v19, 0xbe800000, v19
v_cmp_eq_u32 vcc, 1, v24
v_lshlrev_b32 v24, 2, {hi}
v_cvt_f32_u32 v24, v24
s_lshl_b32 {t0}, {w}, 11
s_add_u32 {t0}, {t0}, {stg}
v_cndmask_b32 v18, v18, 0.5, vcc
v_cndmask_b32 v19, v19, 0, vcc
v_fmac_f32 v19, v18, v24
v_add_u32 {pa}, {t0}, {l16b}""", c=fhex(1 / 64), stg=LDS_STG)
        for v in range(2):
            late += self.direct(24, [("v18", 32 * v + 16 * (i // 4) + i % 4, "v19") for i in range(8)]) + self.pack(24, 24) + \
                    J("ds_write_b128 {pa}, v[24:27] offset:{o}", tag="r64f", o=v * 1024)
        return gs, sel, late

    def wd_setup(self):
        g = J("""v_lshrrev_b32 v24, 3, v0
v_bfe_u32 v25, v0, 1, 2
v_xor_b32 v25, v25, {hi}
v_lshlrev_b32 v25, 5, v25
v_lshl_add_u32 v25, v24, 10, v25
v_and_b32 v24, 1, v0
v_lshl_add_u32 {wd}, v24, 4, v25
v_add_u32 v29, 7168, {wd}
v_add_u32 v30, 7168, v29
v_add_u32 v31, 7168, v30
s_mul_i32 {wds}, {w}, {c}
s_lshl_b32 {t0}, {nt}, 7
s_add_u32 {wds}, {wds}, {t0}
s_add_u32 {wde}, {wds}, {c}
v_bfe_u32 v24, v0, 2, 3
v_lshrrev_b32 v25, 5, v0
v_lshlrev_b32 v25, 10, v25
v_lshl_add_u32 v25, v24, 7, v25
v_and_b32 v26, 3, v0
v_lshl_add_u32 v25, v26, 3, v25
v_add_u32 v25, {ring}, v25
v_lshrrev_b32 v24, 1, v24
v_xor_b32 v24, {w}, v24
v_lshl_add_u32 v10, v24, 5, v25
v_xor_b32 v11, 32, v10
v_xor_b32 v12, 64, v10
v_xor_b32 v13, 0x60, v10
s_mul_i32 {rot}, {nt}, {ra}""", c=448 * 1024, ra=self.o("rnt", 0))
        if self.o("rl3", 0) == 1: g += J("s_mul_i32 {t0}, {l3}, 7\ns_add_u32 {t0}, {t0}, 1\ns_lshr_b32 {t0}, {t0}, 1\ns_add_u32 {rot}, {rot}, {t0}")
        if self.o("rl3", 0) == 2: g += J("s_and_b32 {t0}, {l3}, 1\ns_mul_i32 {t0}, {t0}, 7\ns_add_u32 {rot}, {rot}, {t0}")
        g += J("s_sub_u32 {t0}, {rot}, 14\ns_cselect_b32 {rot}, {rot}, {t0}\ns_lshl_b32 {t0}, {rot}, 15\ns_add_u32 {wdo}, {wds}, {t0}")
        return g
    def loc(self, u):
        if self.ffn: return (0, None) if 8 <= u < 12 else (1, None if u < 4 else u - 4 if u < 8 else u - 8)
        return (1 - (u // 4) % 2, u - 8 if u >= 8 else None)
    def D(self, u, pre=None):
        reg, prev = self.loc(u); gs = []
        if u: gs += [J("s_add_u32 {wdo}, {wdo}, 0x8000"), J("s_cmp_ge_u32 {wdo}, {wde}\ns_cselect_b32 {wdo}, {wds}, {wdo}")]
        gs.append(J("s_add_u32 m0, {ring}, {o}", o=((u % 4) * 4096 - (0 if reg else 65536)) & 0xFFFFFFFF))
        if prev is not None: gs.append(I("@must t%d" % prev))
        if pre: gs.append(pre)
        gs += [J("buffer_load_dwordx4 v{r}, {SWD}, {wdo} offen offset:{o} lds", tag="d%d" % u, r=vWD[k], o=1024 * k) for k in range(4)]
        return gs
    def wd_reg(self, u, dl): return (160 + 16 * u if u < 2 else 16 * (u - 2) if u < 12 else 16 * u) + 4 * dl
    def T(self, u):
        gs = []
        if self.loc(u)[0] != (self.loc(u - 1)[0] if u else 1): gs += single(I("\n".join("v_xor_b32 v%d, 0x10000, v%d" % (r, r) for r in vDT)))
        gs.append(I("@must d%d" % u))
        for dl in range(4):
            for j4 in range(2):
                gs.append(I("ds_read_b64_tr_b16 %s, v%d offset:%d" % (A(self.wd_reg(u, dl) + 2 * j4, 2), vDT[dl], (u % 4) * 4096 + j4 * 2048), tag="t%d" % u))
        return gs
    def DD(self, a, b): return [g for u in range(a, b) for g in self.D(u)]
    def TT(self, a, b): return [g for u in range(a, b) for g in self.T(u)]

    def g_loads(self):
        return single(J("""s_lshl_b32 {t0}, {nt}, 2
s_add_u32 {t0}, {t0}, {w}
s_lshl_b32 {t0}, {t0}, 1
v_lshrrev_b32 v25, 5, v0
v_add_u32 v43, {t0}, v25
v_and_b32 v25, 3, v43
v_lshrrev_b32 v26, 2, v43
v_lshl_add_u32 v25, v25, 4, v26
v_and_b32 v61, 0x1f0, {l16b}
v_lshl_add_u32 v60, v25, 15, v61
v_lshl_add_u32 v60, {bp}, 10, v60
buffer_load_dwordx4 v[44:47], v60, {SX}, 0 offen offset:2048
buffer_load_dwordx4 v[48:51], v60, {SX}, 0 offen offset:2560
buffer_load_dwordx4 v[52:55], v61, {SGW}, 0 offen
buffer_load_dwordx4 v[56:59], v61, {SGW}, 0 offen offset:512""", tag="gld"))
    def g_calc(self):
        g = I("@wait gld")
        g += I("\n".join("v_dot2_f32_bf16 v%d, v%d, v%d, 0" % (60 + i, 44 + i, 52 + i) for i in range(4)))
        g += I("\n".join("v_dot2_f32_bf16 v%d, v%d, v%d, v%d" % (60 + i, 48 + i, 56 + i, 60 + i) for i in range(4)))
        g += I("v_lshlrev_b32 v43, 2, v43\nv_add_f32 v60, v60, v61\nv_add_f32 v62, v62, v63\nv_add_f32 v60, v60, v62")
        for sh in (1, 2, 4, 8):
            g += I("v_add_f32_dpp v60, v60, v60 row_shr:%d row_mask:0xf bank_mask:0xf bound_ctrl:1" % sh)
        g += I("v_add_f32_dpp v60, v60, v60 row_bcast:15 row_mask:0xa bank_mask:0xf")
        g += I("v_mul_f32 v60, 0xbfb8aa3b, v60\nv_exp_f32 v60, v60\nv_add_f32 v60, 1.0, v60\nv_rcp_f32 v60, v60")
        return single(g)
    def g_store(self):
        return J("s_lshl_b32 {t0}, {bp}, 8\ns_add_u32 {t0}, {t0}, {g}\ns_mov_b32 exec_lo, 0x80000000\ns_mov_b32 exec_hi, 0x80000000", g=WS_G) + \
               J("buffer_store_dword v60, v43, {SWS}, {t0} offen sc1", tag="gst") + I("s_mov_b64 exec, -1")
    def c_loads(self, acc=False):
        return chunks(J(self.creg(acc, """s_cmp_eq_u32 {bp}, 0
s_cselect_b32 {t1}, 32, 64
s_cselect_b64 {mask}, 0xffff, 0
s_and_b32 {t0}, {w}, 1
s_lshl_b32 {t0}, {t0}, 4
v_lshrrev_b32 v27, 2, v0
v_add_u32 v27, {t0}, v27
v_mul_u32_u24 v27, {t1}, v27
v_add_u32 v27, {bp}, v27
v_cmp_eq_u32 vcc, 0, v27
v_sub_u32 v28, 0x800, v27
v_mov_b32 v26, 0x400
s_cmp_lt_u32 {w}, 2
s_cselect_b64 {m1}, -1, 0
v_cndmask_b32 v28, v28, v26, vcc
v_cndmask_b32 v27, v28, v27, {m1}
v_mul_u32_u24 v27, 514, v27
v_and_b32 v28, 48, {l16b}
s_lshl_b32 {t2}, {nt}, 6
s_cselect_b32 {t3}, {t2}, 512
v_add3_u32 v20, v28, v27, {t2}
v_add_u32 v21, {t3}, v27
buffer_load_dwordx4 v[32:35], v20, {SWR}, 0 offen
buffer_load_dwordx4 v[36:39], v20, {SWI}, 0 offen
buffer_load_ushort v40, v21, {SWR}, 0 offen
buffer_load_ushort v41, v21, {SWI}, 0 offen"""), tag="cld"))
    def creg(self, acc, t):
        if not acc: return t
        for a, b in (("v[32:35]", "a[64:67]"), ("v[36:39]", "a[68:71]"), ("v40", "a72"), ("v41", "a73"), ("v20", "v10"), ("v21", "v11")): t = t.replace(a, b)
        return t
    def c_stage(self):
        g = J("""s_mul_i32 {t0}, {w}, 1280
s_add_u32 {t0}, {t0}, {stg}
v_lshrrev_b32 v27, 2, v0
v_lshl_add_u32 v28, v27, 4, {l16b}
v_add_u32 v28, {t0}, v28
s_mov_b32 {t2}, 0x05040100
s_mov_b32 {t3}, 0x07060302
s_mov_b32 s96, 0x11111111
s_mov_b32 s97, 0x11111111
@wait cld""", stg=self.cstg)
        for arr in range(2):
            s_, d_ = 32 + 4 * arr, 128 + 4 * arr
            g += J("v_perm_b32 v{d0}, v{s1}, v{s0}, {t2}\nv_perm_b32 v{d1}, v{s3}, v{s2}, {t2}\nv_perm_b32 v{d2}, v{s1}, v{s0}, {t3}\nv_perm_b32 v{d3}, v{s3}, v{s2}, {t3}",
                   d0=d_, d1=d_ + 1, d2=d_ + 2, d3=d_ + 3, s0=s_, s1=s_ + 1, s2=s_ + 2, s3=s_ + 3)
            g += I("ds_write_b128 v28, %s offset:%d" % (V(d_, 4), arr * 5120), tag="cst")
            g += J("v_and_or_b32 v{d}, v{d}, {hi16}, v{q}", d=d_, q=40 + arr)
        return single(g) + [J("s_mov_b64 exec, {m1}") + I("ds_write_b64 v28, v[128:129] offset:64\nds_write_b64 v28, v[132:133] offset:5184", tag="cst") + I("s_mov_b64 exec, -1")]
    def c_calc(self):
        g = J("""s_cmp_eq_u32 {w}, 0
s_cselect_b32 {t1}, 2, 4
s_lshl_b32 {t0}, {w}, 4
v_and_b32 v26, 3, v0
v_cmp_eq_u32 vcc, {t1}, v26
v_and_b32 v28, 1, v0
v_lshl_add_u32 v28, v28, 3, {t0}
v_lshrrev_b32 v27, 2, v0
v_mul_u32_u24 v27, 80, v27
v_cndmask_b32 v28, v28, 64, vcc
s_mov_b32 {t0}, {stg}
v_add3_u32 v27, v27, v28, {t0}""", stg=self.cstg)
        for th in range(2):
            for arr in range(2):
                for side in range(2):
                    g += I("ds_read_b64_tr_b16 %s, v27 offset:%d" % (V(128 + ((th * 2 + arr) * 2 + side) * 2, 2), arr * 5120 + side * 2560 + th * 1280), tag="crd")
        q = I("@wait crd")
        for th in range(2):
            for r in range(4):
                e = th * 4 + r
                t = 144 + (e % 2) * 4
                for n, (arr, side) in enumerate([(0, 0), (0, 1), (1, 0), (1, 1)]):
                    src = 128 + ((th * 2 + arr) * 2 + side) * 2 + r // 2
                    q += J("v_and_b32 v{d}, {hi16}, v{s}" if r & 1 else "v_lshlrev_b32 v{d}, 16, v{s}", d=t + n, s=src)
                a_, b_, c_, d_ = CO + e, CO + 8 + e, CO + 16 + e, CO + 24 + e
                q += I("v_add_f32 v%d, v%d, v%d\nv_add_f32 v%d, v%d, v%d\nv_sub_f32 v%d, v%d, v%d\nv_sub_f32 v%d, v%d, v%d" % (
                    a_, t, t + 1, b_, t + 2, t + 3, c_, t + 3, t + 2, d_, t, t + 1))
                if e == 0:
                    q += J("""v_cndmask_b32 v{a2}, v{a}, v{t1_}, {mask}
v_cndmask_b32 v{b2}, v{b}, v{t3_}, {mask}
v_cndmask_b32 v{a}, v{a}, v{t0_}, {mask}
v_cndmask_b32 v{b}, v{b}, v{t2_}, {mask}
v_cndmask_b32 v{c}, v{c}, 0, {mask}
v_cndmask_b32 v{d}, v{d}, 0, {mask}""", a2=CA2, b2=CB2, a=a_, b=b_, c=c_, d=d_, t0_=t, t1_=t + 1, t2_=t + 2, t3_=t + 3)
        return chunks(g), single(q)

    GATE_LD = "buffer_load_dword v16, v17, %s, 0 offen sc1" % SDBG
    POLL_LD = "buffer_load_dword v16, v17, %s, s82 offen sc1" % SWS
    def gate_ld(self):
        return single(J("v_min_u32 {pa}, {n}, v0\nv_lshlrev_b32 {pa}, 2, {pa}", n=NCLR - 1) + I(self.GATE_LD, tag="poll"))
    def x1_addr(self):
        return single(J("""s_lshr_b32 {t0}, {nt}, 2
s_lshl_b32 {t0}, {t0}, 8
s_lshl_b32 {t1}, {w}, 15
s_add_u32 {t0}, {t0}, {t1}
s_add_u32 {wo1}, {t0}, {fl}
v_lshrrev_b32 {pa}, 3, v0
v_lshlrev_b32 {pa}, 12, {pa}
v_bfe_u32 v18, v0, 2, 1
v_lshl_add_u32 {pa}, v18, 7, {pa}""", fl=WS_FLAG + 28 * 128))
    def rp_reads(self):
        return [J("v_add_u32 v19, {a}, {l16b}", a=LDS_RPF)] + \
               [I("ds_read_b128 %s, v19 offset:%d" % (A((224 if f < 8 else 160) + 4 * f, 4), f * 1024), tag="rp") for f in range(16)]
    def flag_addr(self):
        return J("s_lshl_b32 {wo0}, {b12}, 5\ns_add_u32 {wo0}, {wo0}, {ni}\ns_lshl_b32 {wo0}, {wo0}, 7\ns_add_u32 {wo0}, {wo0}, {fl}", fl=WS_FLAG)
    def set_flag(self):
        return I("v_mov_b32 v24, 1\n@wait pub\ns_mov_b64 exec, 1") + J("buffer_store_dword v24, v0, {SWS}, {wo0} offen sc1") + I("s_mov_b64 exec, -1")

    def prologue(self):
        p = []
        if self.prof: p += I("%s s[100:101]" % self.clk(), raw=True)
        p += J("""s_load_dwordx16 s[48:63], s[0:1], 0
s_cmp_ge_u32 s2, 256
s_cbranch_scc1 L_end
s_load_dwordx4 s[64:67], s[0:1], 64
s_load_dwordx2 s[68:69], s[0:1], 80
s_getpc_b64 {m1}
L_pc:
v_lshlrev_b32 v24, 3, v0
v_readfirstlane_b32 {w}, v0
s_lshr_b32 {loc}, s2, 3
v_lshl_add_u32 v24, {loc}, 11, v24
v_min_u32 v24, L_end-L_pc, v24
global_load_dword v31, v24, {m1}
v_and_b32 v0, 63, v0
v_and_b32 {l16}, 15, v0
v_lshrrev_b32 {hi}, 4, v0
s_lshr_b32 {w}, {w}, 6
s_and_b32 {xcd}, s2, 7
s_and_b32 {l3}, {loc}, 3
s_lshr_b32 {nt}, {loc}, 2
s_lshr_b32 {xn}, {xcd}, 1
s_lshl_b32 {bp}, {xcd}, 2
s_add_u32 {bp}, {bp}, {l3}
s_and_b32 {b12}, {bp}, 7
s_lshl_b32 {b12}, {b12}, 2
s_add_u32 {b12}, {b12}, {w}
s_lshl_b32 s76, {b12}, 10
v_lshrrev_b32 v25, 3, v0
v_and_b32 v24, 7, v0
v_xor_b32 v24, v24, {hi}
v_lshlrev_b32 v24, 4, v24
v_lshl_add_u32 {x}, v25, 15, v24
v_xor_b32 v18, 0x40040, {x}
v_subrev_u32 v18, 0x400, v18
s_lshl_b32 {ring}, {w}, 14
s_add_u32 {ring}, {ring}, 0x10000""")
        if "probe" in self.kw:
            k = self.kw["probe"]
            p += I("s_waitcnt lgkmcnt(0) vmcnt(0)\ns_mov_b64 s[44:45], s[%d:%d]\ns_mov_b32 s46, 0x100000\ns_mov_b32 s47, 0x20000" % (48 + 2 * k, 49 + 2 * k))
            p += J("s_lshl_b32 s3, s2, 2\ns_add_u32 s3, s3, {w}\ns_lshl_b32 s3, s3, 7\nv_mov_b32 v26, 0\ns_memrealtime s[96:97]\ns_waitcnt lgkmcnt(0)")
            if "pbw" in self.kw:
                p += I("s_mov_b32 s46, 0x10000000\ns_lshl_b32 s3, s3, 7\ns_add_u32 s3, s3, %d\nv_lshlrev_b32 v26, 4, v0" % (self.kw["pbw"] << 20))
                for i in range(16):
                    op = "buffer_store_dwordx4 v[128:131], v26, s[44:47], s3 offen sc1" if self.o("pst", 0) else "buffer_load_dwordx4 v[%d:%d], v26, s[44:47], s3 offen" % (128 + 4 * i, 131 + 4 * i)
                    p += I(op + "\ns_add_u32 s3, s3, 1024")
                p += I("s_waitcnt vmcnt(0)")
            else:
                for i in range(8): p += I("buffer_load_dword v27, v26, s[44:47], s3 offen\ns_waitcnt vmcnt(0)\ns_add_u32 s3, s3, 0x20000")
            p += I("s_memrealtime s[98:99]\ns_waitcnt lgkmcnt(0)\ns_sub_u32 s98, s98, s96\ns_add_u32 s100, s100, s98")
        p += self.srd_const(SX, 2097152 + 2048)
        p += J("s_cmp_eq_u32 {nt}, 7\ns_cbranch_scc1 L_dft")
        return p
    def common2(self):
        p = J("v_lshlrev_b32 {l16b}, 4, v0\ns_lshl_b32 {lw}, {loc}, 2\ns_add_u32 {lw}, {lw}, {w}\ns_mul_i32 s3, {xcd}, 112\ns_add_u32 {lw}, {lw}, s3\ns_lshl_b32 {lw}, {lw}, 11\ns_mov_b32 {hi16}, 0xffff0000")
        for nm, lo, sz in ((SWS, 68, 0x10000000), (SDBG, 66, 256), (SWD, 60, 1792 * 1024), (SOUT, 64, 2097152), (SWR, 50, 2048 * 514), (SWI, 52, 2048 * 514), (SGW, 62, 1024)):
            p += self.srd(nm, lo, sz) + self.srd_const(nm, sz)
        return p

    def p12f(self):
        self.ffn = True; self.cstg = LDS_RPF
        def wl(du):
            gs = []
            if du == 1: gs += single(J("s_add_u32 {k}, {k}, 1\ns_and_b32 {k}, {k}, 7"))
            gs += single(J("s_mul_i32 {wo0}, {k}, {c}\ns_add_u32 {wo0}, {wo0}, {wb}\ns_add_u32 {wo1}, {wo0}, {c2}", c=64 * 3584, c2=32 * 3584 - 2048))
            gs.append(J("s_add_u32 m0, {lw4}, {o}", o=(du % 4) * 16384))
            for h in range(2):
                for mat in range(2):
                    gs.append(J("buffer_load_dwordx4 {vw}, {srd}, {so} offen offset:{o} lds", tag="w%d" % du, srd=(SWG, SWU)[mat], so=NM["wo%d" % h], o=(2 * h + mat) * 1024))
            return gs
        def xl(du):
            gs = []
            if du >= 2: gs += single(J("s_add_u32 {k}, {k}, 1\ns_and_b32 {k}, {k}, 7"))
            gs += single(J("v_lshl_add_u32 {xr}, {k}, 7, {x}\nv_lshl_add_u32 {xr2}, {k}, 7, v18"))
            for m in range(4):
                if m % 2 == 0: gs.append(J("s_add_u32 m0, {ring}, {o}", o=(du % 2) * 8192 + m * 2048))
                for e in range(2):
                    g = J("buffer_load_dwordx4 {r}, {SX}, s{so} offen offset:{o} lds", tag="x%d" % du, r=NM[("xr", "xr2")[e]], so=76 + m, o=((m & 1) * 2 + e) * 1024)
                    if du >= 2 and m == 0 and e == 0: g = I("@need xf%d" % (du - 2)) + g
                    gs.append(g)
            return gs
        def xf(du):
            return [I("@wait x%d" % du)] + [I("ds_read_b128 %s, v%d offset:%d" % (A((du % 4) * 32 + h * 16 + m * 4, 4), vXA[h], (du % 2) * 8192 + m * 2048), tag="xf%d" % du)
                                           for h in range(2) for m in range(4)]
        p = J("""s_and_b32 {t0}, {nt}, {mp}
s_lshl_b32 {t0}, {t0}, 19
s_add_u32 s76, s76, {t0}
s_xor_b32 s77, s76, 0x80000
s_xor_b32 s79, s76, 0x180000
s_xor_b32 s78, s76, 0x100000
s_add_u32 s76, s76, 0x800
s_add_u32 s78, s78, 0x800
s_lshl_b32 {k}, {xcd}, 2
s_add_u32 {k}, {k}, {xcd}
s_and_b32 {k}, {k}, {km}
s_mul_i32 {ni}, {xn}, 7
s_add_u32 {ni}, {ni}, {nt}
s_mul_i32 {wb}, {w}, {c}
s_lshl_b32 {t0}, {ni}, 7
s_add_u32 {wb}, {wb}, {t0}
v_mul_u32_u24 v24, 3584, v25
s_and_b32 {t0}, {w}, 1
s_lshl_b32 {t0}, {t0}, 1
v_and_or_b32 v25, {hi}, 1, {t0}
v_bfe_u32 v26, v0, 1, 2
v_xor_b32 v25, v25, v26
v_lshl_add_u32 v24, v25, 5, v24
v_and_b32 v25, 1, v0
v_lshl_add_u32 {vw}, v25, 4, v24
s_lshl_b32 {lw4}, {w}, 12""", c=8 * 3584, mp=self.o("mp", 3), km=self.o("km", 6))
        kr = self.o("kr", 0)
        if kr == 1: p += J("s_lshl_b32 {k}, {l3}, 1\ns_add_u32 {k}, {k}, {nt}\ns_and_b32 {k}, {k}, 7")
        if kr == 2: p += J("s_xor_b32 {t0}, {l3}, {nt}\ns_and_b32 {t0}, {t0}, 1\ns_lshl_b32 {t0}, {t0}, 2\ns_lshl_b32 {k}, {xcd}, 1\ns_add_u32 {k}, {k}, {xn}\ns_and_b32 {k}, {k}, 3\ns_add_u32 {k}, {k}, {t0}")
        if kr == 3: p += J("s_add_u32 {t0}, {l3}, {nt}\ns_and_b32 {t0}, {t0}, 3\ns_lshl_b32 {t0}, {t0}, 1\ns_add_u32 {k}, {xcd}, {xn}\ns_and_b32 {k}, {k}, 1\ns_add_u32 {k}, {k}, {t0}")
        p += self.srd_const(SWG, 512 * 3584) + self.srd_const(SWU, 512 * 3584 + 1024)
        w0 = wl(0); x0 = xl(0)
        p += flat(w0[:4] + x0[:2]) + self.srd(SWG, 56, 0) + self.srd(SWU, 58, 0, back=1024) + self.srd(SX, 48, 0, back=2048)
        p += flat(w0[4:]) + flat(x0[2:])
        p += self.common2()
        p += self.stamp(0)
        l = self.lab("noclr")
        p += J("s_cmp_lt_u32 s2, {n}\ns_cselect_b32 {clr}, {w}, 1\ns_cmp_lg_u32 {clr}, 0", n=NCLR)
        p += J("""s_cbranch_scc1 {l}
v_lshlrev_b32 v24, 7, v0
v_mov_b32 v25, 0
s_lshl_b32 s3, s2, 13
s_add_u32 s3, s3, {fl}
buffer_store_dword v25, v24, {SWS}, s3 offen sc1
s_nop 1
{l}:""", raw=True, l=l, fl=WS_FLAG)
        st = [J("""v_lshrrev_b32 v24, 1, {l16}
v_xor_b32 v24, v24, {hi}
v_lshlrev_b32 v24, 4, v24
v_lshl_add_u32 v24, {l16}, 7, v24
v_add_u32 v22, {ring}, v24
v_xor_b32 v23, 64, v22
v_lshlrev_b32 v24, 12, {hi}
v_bfe_u32 v25, v0, 2, 2
v_lshl_add_u32 v24, v25, 7, v24
v_and_b32 v25, 3, v0
v_lshl_add_u32 v24, v25, 3, v24
v_bfe_u32 v25, v0, 3, 2
v_lshl_add_u32 v6, v25, 5, v24
v_xor_b32 v7, 32, v6
v_xor_b32 v8, 64, v6
v_xor_b32 v9, 0x60, v6""")]
        cl, gl = self.c_loads(), self.g_loads()
        cpos = self.o("cpos", 2)
        gwt = [J("buffer_load_dword a171, {l16b}, {SGW}, 0 offen")]
        st = single(st) + cl[:-4] + self.gen_R(0, 128) + self.gen_R(1, 160)
        l1 = wl(1) + xl(1); n1 = self.o("n1", 15)
        p += flat(weave(st, l1[:n1], self.o("l1pos", 100), len(st)))
        p += I("@wait w0 x0\ns_barrier")
        p += self.stamp(1)
        units = {0: "E0 L0 E1 L1 E2 L2 E3 E4 L3 E5 E6 L4 E7 L5 L6 L7", 1: "E0 L0 E1 L1 E2 L2 E3 L3 E4 E5 L4 E6 E7 L5 L6 L7",
                 2: "E0 L0 E1 L1 E2 L2 E3 L3 E4 E5 L4 E6 L5 E7 L6 L7", 3: "E0 L0 E1 L1 E2 L2 E3 L3 E4 L4 E5 L5 E6 E7 L6 L7"}[self.o("us", 0)].split()
        seq = [(2 * int(u[1]) + h, tau + (4 if u[0] == "L" else 0)) for u in units for h in range(2) for tau in range(4)]
        U = dict((u, 32 * i) for i, u in enumerate(units))
        LA = 5
        def rd(k):
            n, tau = seq[k]
            off = ((n // 2) % 4) * 16384 + ((n & 1) * 2 + (tau & 1)) * 1024
            return [I("ds_read_b64_tr_b16 %s, v%d offset:%d" % (A(128 + 4 * (k % 8) + 2 * j4, 2), vWT[tau // 2], off + 512 * j4), tag="f%d" % k) for j4 in range(2)]
        x0 = xf(0)
        p += flat(rd(0) + x0[:5] + rd(1) + rd(2) + x0[5:] + rd(3) + rd(4))
        mf = []
        for k, (n, tau) in enumerate(seq):
            for m in range(4):
                acc = V(128 + (tau * 4 + m) * 4, 4)
                mf.append(I("%s %s, %s, %s, %s" % (MF, acc, A(128 + 4 * (k % 8), 4), A(((n // 2) % 4) * 32 + (n & 1) * 16 + m * 4, 4), acc if n else "0")))
        G = Gaps(mf)
        for k in range(128):
            if k + LA < 128:
                r = rd(k + LA); G.put(4 * k, r[0]); G.put(4 * k + 2, r[1])
            if k % 2 == 1 and k + 1 < 128: G.put(4 * k + 3, I("@wait f%d" % (k + 2)))
        bar = {}
        for du in range(1, 8):
            bar[du] = U["E%d" % du] - 4 * LA - 1
            G.put(bar[du], I("@wait w%d rtab\ns_barrier" % du))
        lead = G.stream(l1[n1:], 0, 12, spread=False) if l1[n1:] else 0
        aa = [[0, 52, 104, 156, 208, 260], [0, 60, 118, 172, 224, 276], [0, 64, 124, 180, 234, 288], [0, 64, 128, 192, 250, 306], [0, 64, 128, 192, 256, 320]][self.o("aa", 1)]
        aa = dict(zip(range(2, 10), aa + [aa[-1] + 54, aa[-1] + 108]))
        xfe = {}
        for du in range(1, 8):
            e = min(aa[du + 2], U["E%d" % du]) - 2
            assert du < 4 or e - 18 >= U["L%d" % (du - 4)] + 32
            xfe[du] = G.stream(xf(du), e - 18, e)
        last = lead
        for du in range(2, 8):
            a0 = max(aa[du], last + 1)
            last = G.stream(xl(du), a0, a0 + 36)
            w0_ = last + 1
            if du >= 4: w0_ = max(w0_, min(b for b in bar.values() if b >= U["L%d" % (du - 4)] + 32) + 1)
            tr_ = {3: [0], 4: [1], 5: [2, 3], 6: [4, 5], 7: [6, 7]}.get(du, [])
            cd = self.o("cdu", 2)
            ex = [] if cpos != 2 else [cl[-4], cl[-2]] + gwt if du == cd else [cl[-3], cl[-1]] if du == cd + 1 else []
            if cpos == 3 and du == cd: ex = cl[-4:] + gwt
            last = G.stream(wl(du) + ex + [g for r in tr_ for g in self.touch(r)] + (self.retouch() if du == 7 else []), w0_, w0_ + 16 + 4 * len(tr_))
            assert last < bar[du] - 4, (du, last, bar[du])
        vend = last
        l = self.lab("noann")
        ann = J("s_cmp_lg_u32 {clr}, 0") + J("""s_cbranch_scc1 {l}
v_mov_b32 v17, 1
s_lshl_b32 s3, s2, 2
s_mov_b64 exec, 1
buffer_store_dword v17, v0, {SDBG}, s3 offen sc1
s_mov_b64 exec, -1
{l}:""", raw=True, l=l)
        G.put(62, ann)
        G.stream(self.rp_reads(), 130, 230)
        e0 = U["E7"] + 32
        e = G.stream(self.gate_ld() + (cl[-4:] if cpos == 0 else []), vend + 1, vend + 12)
        e1 = vend
        d0 = max(e, e1, xfe[6] + 4, vend + self.o("d0gap", 40))
        e = G.stream(self.D(0, I("@need xf6")) + self.D(1), d0, d0 + 32)
        d2 = max(e + 1, xfe[7] + 4)
        e = G.stream(self.D(2, I("@need xf7")) + self.D(3), d2, d2 + 32)
        G.stream(single(J("s_mul_i32 {t2}, {b12}, 56\ns_lshl_b32 {t0}, {ni}, 1\ns_add_u32 {t2}, {t2}, {t0}\ns_lshl_b32 {t2}, {t2}, 2\ns_and_b32 {t0}, {nt}, {mp}\ns_add_u32 {t2}, {t2}, {t0}\ns_lshl_b32 {t2}, {t2}, 10", mp=self.o("mp", 3)) + self.flag_addr()) +
                 [I("@wait poll") + self.spin(self.GATE_LD)] + self.x1_addr(), e1 + 1, e0)
        nin = self.o("nin", 2)
        t0_ = max(e + 1, U["L4"] + 32 if nin > 2 else 0, d0 + self.o("t0gap", 70))
        t0_ = min(t0_, 470)
        G.stream(self.TT(0, nin) + self.DD(4, 4 + nin), t0_, 506)
        gs_ = 18 - self.o("gsplit", 4)
        G.stream(chunks(self.wd_setup()) + chunks(self.gen_G(42, False)[:gs_]), 4, e0, spread=False)
        def epi(u, m, pk):
            g0, u0, g1_, u1 = [128 + ((4 * u + k) * 4 + m) * 4 for k in range(4)]
            g = []
            for gg in (g0, g1_): g += I("\n".join("v_max_f32 v%d, 0, v%d" % (gg + r, gg + r) for r in range(4)))
            for gg, uu in ((g0, u0), (g1_, u1)):
                if pk: g += I("v_pk_mul_f32 %s, %s, %s\nv_pk_mul_f32 %s, %s, %s" % (V(gg, 2), V(gg, 2), V(uu, 2), V(gg + 2, 2), V(gg + 2, 2), V(uu + 2, 2)))
                else: g += I("\n".join("v_mul_f32 v%d, v%d, v%d" % (gg + r, gg + r, uu + r) for r in range(4)))
            g += cvt(u0, g0, g0 + 1) + cvt(u0 + 1, g0 + 2, g0 + 3) + cvt(u0 + 2, g1_, g1_ + 1) + cvt(u0 + 3, g1_ + 2, g1_ + 3)
            return J("s_xor_b32 {t3}, {t2}, {o}", o=u * 4096 + m * 1024) + g + J("buffer_store_dwordx4 {r}, {l16b}, {SWS}, {t3} offen sc1", tag="pub", r=V(u0, 4))
        G.stream(single([epi(0, m, False) for m in range(4)]), e0 + 2, min(512, e0 + self.o("espan", 84)))
        for i in range(8): G.put(64 * i, self.stamp(i, 1))
        G.put(480, self.stamp(8, 1)); G.put(511, self.stamp(9, 1))
        p += G.out()
        p += self.stamp(2)
        ep = [epi(1, m, True) for m in range(4)]
        p += flat(weave([[]] + ep, self.TT(nin, 4)))
        p += I(self.POLL_LD, tag="poll")
        if cpos == 1: p += flat(cl[-4:])
        p += self.stamp(3)
        p += self.stamp(0, 3) + flat(self.gen_G(42, True)[gs_:]) + flat(gl) + self.stamp(1, 3)
        c1, c2 = self.c_calc()
        n1_ = min(8, 4 + nin + self.o("nw1", 2)); n2_ = min(12, n1_ + self.o("nw2", 3))
        if cpos != 1:
            p += flat(weave(self.c_stage() + self.gen_R(2, 160), self.DD(4 + nin, n1_)))
            p += self.stamp(2, 3) + I("@wait cst\ns_barrier") + self.stamp(3, 3) + flat(c1)
            p += self.x1_pre() + self.stamp(4, 3) + self.set_flag() + self.stamp(4) + self.x1_fetch() + self.stamp(5, 3)
            p += flat(weave(self.g_calc() + [self.g_store()] + c2 + self.setup(), self.DD(n1_, n2_)))
        else:
            p += flat(weave(self.gen_R(2, 160), self.DD(4 + nin, n1_)))
            p += self.x1_pre() + self.set_flag() + self.stamp(4) + self.x1_fetch()
            p += flat(self.c_stage()) + I("@wait cst\ns_barrier") + flat(c1)
            p += flat(weave(self.g_calc() + [self.g_store()] + self.setup() + c2, self.DD(n1_, n2_)))
        return p + self.tail(True, 4, n2_)

    def p12d(self):
        self.ffn = False; self.cstg = LDS_R64I
        def dma(Q, m):
            gs = [J("s_add_u32 m0, {ring}, {o}", o=m * 4096)]
            if m == 0:
                gs = single(J("v_lshl_add_u32 {xr}, {k}, 7, {x}\nv_lshl_add_u32 {xr2}, {k}, 7, {vw}")) + gs
                if Q: gs = single(J("s_add_u32 {k}, {k}, 1\ns_and_b32 {k}, {k}, 3")) + gs
            for hf in range(2):
                for e in range(2):
                    g = J("buffer_load_dwordx4 {r}, {srd}, s{so} offen offset:{o} lds", tag="x%d_%d" % (Q, m), r=NM[("xr", "xr2")[e]], srd=(SX, SWG)[hf], so=76 + m, o=(2 * hf + e) * 1024)
                    if Q and not hf and not e: g = I("@need xf%d_%d" % (Q - 1, m)) + g
                    gs.append(g)
            return gs
        def raw(Q, m):
            return [I("@wait x%d_%d" % (Q, m))] + [I("ds_read_b128 %s, v%d offset:%d" % (A(16 * m + 4 * f, 4), vWT[f], m * 4096), tag="xf%d_%d" % (Q, m)) for f in range(4)]
        def fold(Q, m):
            return [I("%s %s, v[20:23], %s, 0" % (MF, V(48 + 4 * f, 4), A(16 * m + 4 * f, 4))) for f in range(4)]
        def fcv(Q, m):
            return [cvt(64 + (Q % 2) * 32 + (q // 4) * 16 + m * 4 + q % 4, 48 + 2 * q, 49 + 2 * q) for q in range(8)]
        p = I("@reset") + J("""s_add_u32 s76, s76, 0x800
s_add_u32 s77, s76, 0x80000
s_add_u32 s78, s76, 0x100000
s_add_u32 s79, s76, 0x180000
s_add_u32 {ni}, {xn}, 28
s_and_b32 {k}, {xcd}, {km}
s_mov_b32 {wb}, {k}
v_mov_b32 {vw}, v18""", km=self.o("km", 6) & 2)
        p += self.srd_const(SWG, 2097152 + 3584) + I("s_waitcnt lgkmcnt(0)") + self.srd(SX, 48, 0, back=2048) + self.srd(SWG, 48, 0, back=3584)
        p += flat([dma(0, m) for m in range(3)])
        p += self.common2()
        p += self.stamp(0)
        tg, sel, late = self.gen_T()
        cl = self.c_loads(True)
        tg = tg[:1] + [sel + flat(cl[:-4])] + tg[1:]
        r0 = self.o("r0", 4)
        place(tg, r0 - 1, dma(0, 3))
        for m in range(3):
            place(tg, r0 + 4 * m, raw(0, m)); place(tg, r0 + 4 * m + 1, dma(1, m))
        p += flat(tg)
        p += I("@wait ttab\ns_barrier")
        p += self.stamp(1)
        seq = [(2 * Q + h, tau) for Q in range(3) for h in range(2) for tau in range(8)] + [(6 + h, 2 * tp + tt) for tp in range(4) for tt in range(2) for h in range(2)]
        def rd(k):
            n, tau = seq[k]
            return I("ds_read_b128 %s, %s offset:%d" % (V(32 + 4 * (k % 4), 4), NM["l16b"], n * 8192 + tau * 1024), tag="f%d" % k)
        p += rd(0) + rd(1) + rd(2)
        p += flat(fold(0, 0) + raw(0, 3) + fcv(0, 0) + fold(0, 1) + dma(1, 3) + fcv(0, 1) + fold(0, 2) + fcv(0, 2) + fold(0, 3) + fcv(0, 3))
        def mm(k, m):
            n, tau = seq[k]; acc = V(128 + (tau * 4 + m) * 4, 4)
            return I("%s %s, %s, %s, %s" % (MF, acc, V(64 + ((n // 2) % 2) * 32 + (n & 1) * 16 + m * 4, 4), V(32 + 4 * (k % 4), 4), acc if n else "0"))
        mf = []; at = {}
        for k in range(48):
            Q, i = divmod(k, 16)
            at[k] = len(mf); mf += [mm(k, m) for m in range(4)]
            if i % 4 == 1:
                at["fold", Q + 1, i // 4] = len(mf); mf += fold(Q + 1, i // 4)
        PKR = (64, 72, 80, 88)
        def s2(t):
            return [I("%s %s, %s, %s, %s" % (MF, V(128 + 16 * t + 4 * sg, 4), V(PKR[t % 4] + 4 * v, 4), A(224 + (2 * sg + v) * 4, 4), V(128 + 16 * t + 4 * sg, 4) if v else "0"))
                    for v in range(2) for sg in range(4)]
        for tp in range(5):
            if tp < 4:
                for k in range(48 + 4 * tp, 52 + 4 * tp):
                    at[k] = len(mf); mf += [mm(k, m) for m in range(4)]
                at["done", tp] = len(mf)
            if tp:
                at["s2", tp - 1] = len(mf); mf += s2(2 * tp - 2) + s2(2 * tp - 1)
        G = Gaps(mf)
        for k in range(64):
            if k + 3 < 64: G.put(at[k], rd(k + 3))
            if k: G.put(at[k] - 1, I("@wait f%d" % k))
        for Q in range(1, 4):
            for m in range(4):
                f = at["fold", Q, m]
                G.stream(raw(Q, m), max(0, f - 12), f - 3, spread=False)
                G.put(f - 1, I("@wait xf%d_%d" % (Q, m)))
                G.stream(fcv(Q, m), f + 5, f + 12, spread=False)
                if Q < 3: G.stream(dma(Q + 1, m) + (cl[-4:] if (Q, m) == (self.o("dcq", 2), 3) else []), f, f + 8)
        G.stream(single(J("s_mul_i32 {wb}, {wb}, 0x40004000") + flat([J("v_xor_b32 v{r}, {wb}, v{r}", r=20 + i) for i in range(4)])), at["fold", 1, 3] + 4, at["fold", 2, 0] - 2, spread=False)
        G.stream(single(late), 2, 156)
        rr = [I("@wait r64f\ns_barrier"), J("v_add_u32 v24, {a}, {l16b}", a=LDS_STG)] + [I("ds_read_b128 %s, v24 offset:%d" % (A(224 + 4 * f, 4), f * 1024)) for f in range(8)]
        pre = J("""v_lshrrev_b32 v24, 1, {l16}
v_lshlrev_b32 v24, 16, v24
v_lshl_add_u32 v24, {hi}, 5, v24
v_and_b32 v25, 1, v0
v_lshl_add_u32 {xr}, v25, 4, v24
s_lshr_b32 s76, {xn}, 1
s_lshl_b32 s76, s76, 15
s_lshl_b32 {t0}, {b12}, 8
s_add_u32 s76, s76, {t0}
s_and_b32 {t0}, {xn}, 1
s_lshl_b32 {t0}, {t0}, 7
s_add_u32 s76, s76, {t0}
s_add_u32 s76, s76, {x1}
s_add_u32 s77, s76, 0x80000
s_add_u32 s78, s76, 0x100000
s_add_u32 s79, s76, 0x180000""", x1=WS_X1) + self.flag_addr()
        G.stream(rr + single(pre) + self.gate_ld(), 170, 250)
        def cv(t): return [cvt(PKR[t % 4] + i, 128 + 16 * t + 2 * i, 129 + 16 * t + 2 * i) for i in range(8)]
        def st(tp):
            gs = []
            for sg in range(4):
                o = 48 + 4 * sg; d0 = 128 + 32 * tp + 4 * sg; d1 = d0 + 16
                gs += [cvt(o, d0, d0 + 1), cvt(o + 1, d0 + 2, d0 + 3), cvt(o + 2, d1, d1 + 1), cvt(o + 3, d1 + 2, d1 + 3),
                       J("buffer_store_dwordx4 {r}, {xr}, {SWS}, s{so} offen sc1", tag="pub", r=V(o, 4), so=76 + sg)]
                if tp < 3: gs.append(I("s_add_u32 s%d, s%d, 8192" % (76 + sg, 76 + sg)))
            return gs
        for tp in range(4):
            G.stream(cv(2 * tp) + cv(2 * tp + 1), at["done", tp] - 4, at["s2", tp] - 1, spread=False)
        for tp in range(3):
            G.stream(st(tp), at["s2", tp] + 17, at["s2", tp + 1] + 15)
        for i in range(10): G.put(min(40 * i, len(G) - 1), self.stamp(i, 1))
        p += G.out()
        p += self.stamp(2)
        p += flat(st(3))
        p += self.stamp(3)
        p += self.spin(self.GATE_LD)
        p += I("\n".join("v_accvgpr_read_b32 v%d, a%d" % (32 + i, 64 + i) for i in range(10))) + self.wd_setup() + flat(self.gen_R(0, 128) + self.gen_R(1, 160))
        p += self.set_flag()
        p += self.stamp(4)
        p += flat(self.g_loads()) + I("@waitlg0\ns_barrier")
        c1, c2 = self.c_calc()
        p += flat(weave(self.c_stage() + self.rp_reads() + self.g_calc(), self.DD(0, 2)))
        p += self.g_store() + I("@wait cst\ns_barrier") + flat(c1 + self.x1_addr())
        p += flat(weave(c2, self.DD(2, 3)))
        p += I(self.POLL_LD, tag="poll")
        p += flat(weave(self.gen_G(128, True), self.DD(3, 5)))
        p += I("s_barrier")
        p += self.x1_pre() + self.x1_fetch()
        p += flat(weave(self.gen_R(2, 160) + self.setup(), self.DD(5, 8) + self.TT(0, 2)))
        return p + self.tail(False, 2, 8)

    def touch(self, r):
        if r >= self.o("touch", 8): return []
        gs = [I("v_lshlrev_b32 v17, 5, v0")] if r == 0 else [J("s_add_u32 {lw}, {lw}, 0x38000"), J("s_sub_u32 s3, {lw}, 0x1c0000\ns_cselect_b32 {lw}, {lw}, s3")]
        return gs + [J("buffer_load_dword a{d}, v17, {SWD}, {lw} offen", d=160 + r)]
    def retouch(self):
        if not self.o("retouch", 1): return []
        l = self.lab("pc")
        return [J("s_getpc_b64 {m2}\n{l}:\ns_lshr_b32 s3, s2, 3\ns_lshl_b32 s3, s3, 2", l=l)] + single(J("""s_add_u32 s3, s3, {w}
s_lshl_b32 s3, s3, 9
v_lshl_add_u32 v28, v0, 3, s3
v_min_u32 v28, L_end-{l}, v28
global_load_dword a170, v28, {m2}""", l=l))

    def x1_pre(self):
        return J("""s_lshl_b32 {t0}, {bp}, 3
s_add_u32 {t0}, {t0}, {nt}
s_lshl_b32 {t0}, {t0}, 13
s_lshl_b32 {t2}, {w}, 11
s_add_u32 {t0}, {t0}, {t2}
s_add_u32 {t0}, {t0}, {x1}
s_add_u32 m0, {t2}, {stg}""", x1=WS_X1, stg=LDS_STG)

    def x1_fetch(self):
        return self.spin(self.POLL_LD) + J("buffer_load_dwordx4 {l16b}, {SWS}, {t0} offen sc1 lds\nbuffer_load_dwordx4 {l16b}, {SWS}, {t0} offen offset:1024 sc1 lds", tag="x1") + self.stamp(5)
    def setup(self):
        setup = J("""s_lshl_b32 {t0}, {nt}, 11
s_lshr_b32 {t1}, {w}, 1
s_lshl_b32 {t1}, {t1}, 10
s_add_u32 {t0}, {t0}, {t1}
s_lshr_b32 {t1}, {bp}, 2
s_xor_b32 {t1}, {t1}, {w}
s_and_b32 {t1}, {t1}, 1
s_lshl_b32 {t1}, {t1}, 6
s_add_u32 {t0}, {t0}, {t1}
s_and_b32 {t1}, {bp}, 7
s_lshl_b32 {t1}, {t1}, 7
s_add_u32 {t0}, {t0}, {t1}
s_lshr_b32 {t1}, {bp}, 3
s_lshl_b32 {t1}, {t1}, 14
s_add_u32 s76, {t0}, {t1}
s_add_u32 s76, s76, {u}
s_add_u32 s77, s76, 0x80000
s_add_u32 s78, s76, 0x100000
s_add_u32 s79, s76, 0x180000
v_lshrrev_b32 v24, 1, {l16}
v_lshlrev_b32 v26, 16, v24
v_and_b32 v25, 1, v0
v_lshl_add_u32 v26, v25, 5, v26
v_lshl_add_u32 {xr}, {hi}, 3, v26
v_lshlrev_b32 v24, 7, v24
v_lshl_add_u32 v24, v25, 5, v24
v_lshrrev_b32 v26, 1, {hi}
v_bfe_u32 v28, v0, 3, 1
v_xor_b32 v26, v26, v28
v_lshl_add_u32 v24, v26, 6, v24
v_and_b32 v26, 1, {hi}
v_lshl_add_u32 {vw}, v26, 4, v24
v_xor_b32 v28, 1, v28
v_lshl_or_b32 v18, v28, 31, 1.0
s_lshl_b32 {t0}, {nt}, 2
s_add_u32 {t0}, {t0}, {w}
v_and_or_b32 v28, v0, 7, {t0}
v_cmp_eq_u32 vcc, 0, v28
s_lshl_b32 {t0}, {w}, 5
s_add_u32 {t0}, {t0}, {stg}
v_lshrrev_b32 v24, 3, v0
v_cndmask_b32 v18, v18, 0, vcc
v_lshl_add_u32 v27, v24, 8, {t0}
v_lshl_add_u32 v27, v25, 7, v27
v_bfe_u32 v25, v0, 1, 2
v_lshl_add_u32 v27, v25, 3, v27
s_mul_i32 {hs}, {bp}, 56
s_mul_i32 {t0}, {w}, 14
s_add_u32 {hs}, {hs}, {t0}
s_lshl_b32 {hs}, {hs}, 12
s_add_u32 {he}, {hs}, {hl}
s_lshl_b32 {ho}, {rot}, 12
s_add_u32 {ho}, {ho}, {hs}
s_mul_i32 {t0}, {w}, 7
s_lshl_b32 {t1}, {bp}, 5
s_add_u32 {t0}, {t0}, {t1}
s_lshl_b32 {t0}, {t0}, 7
s_add_u32 {wo1}, {t0}, {fl}
v_min_u32 {pa}, 6, v24
v_lshlrev_b32 {pa}, 7, {pa}
v_xor_b32 v25, v24, v0
v_and_b32 v25, 7, v25
v_lshlrev_b32 v24, 15, v24
v_lshl_add_u32 {x}, v25, 4, v24
s_lshl_b32 {t1}, {w}, 1
v_lshrrev_b32 v24, 1, {hi}
v_add_u32 v24, {t1}, v24
v_xor_b32 v24, v24, v0
v_and_b32 v24, 7, v24
v_lshlrev_b32 v24, 4, v24
v_lshl_add_u32 v24, {l16}, 7, v24
v_lshl_add_u32 v24, v26, 3, v24
v_add_u32 v6, {stg}, v24
s_lshl_b32 {t1}, {w}, 11
s_add_u32 {t1}, {t1}, {stg}
v_add_u32 v7, {t1}, {l16b}
v_lshlrev_b32 v8, 4, {l16}
v_add_u32 v9, {r64}, {l16b}
s_lshl_b32 {wo0}, {bp}, 3
s_add_u32 {wo0}, {wo0}, {nt}
s_lshl_b32 {wo0}, {wo0}, 7
s_add_u32 {wo0}, {wo0}, {cnt}
v_mov_b32 v19, 1""", u=WS_U, stg=LDS_STG, hl=14 * 4096, fl=WS_FLAG, r64=LDS_R64I, cnt=WS_CNT)
        return single(setup)
    def tail(self, ffn, nxt_t, nxt_d):
        st = dict(t=nxt_t, d=nxt_d)
        def pump(nd):
            gs = []
            for _ in range(nd):
                if st["d"] >= 14: break
                nx = self.loc(min(13, st["d"] + 1))[1]; pv = self.loc(st["d"])[1]
                while st["t"] <= max(-1 if nx is None else nx, -1 if pv is None else pv):
                    gs += self.T(st["t"]); st["t"] += 1
                gs += self.D(st["d"]); st["d"] += 1
            return gs
        p = []
        p += self.stamp(6, 3) + I("@wait x1 rtab\ns_barrier") + self.stamp(7, 3)
        p += I(self.POLL_LD, tag="poll")
        XF, DD, PP, EE, PK, UP = 128, 136, 152, 168, 184, 128
        for k in range(4):
            p += I("ds_read_b64_tr_b16 %s, v27 offset:%d" % (V(XF + 2 * k, 2), 2048 * k))
        pm = pump(1)
        mf = [I("%s %s, %s, %s, %s" % (MF, V(DD + 4 * tau, 4), A(224 + (2 * tau + v) * 4, 4), V(XF + 4 * v, 4), V(DD + 4 * tau, 4) if v else "0")) for v in range(2) for tau in range(4)]
        G = Gaps(mf)
        if pm: G.stream(pm, 0, 8)
        p += G.out()
        p += flat([I("ds_read_b128 %s, v9 offset:%d" % (A(224 + 4 * f, 4), f * 1024)) for f in range(8)])
        dpp = "row_ror:8 row_mask:0xf bank_mask:0xf"
        cA, cB, cC, cD = CO, CO + 8, CO + 16, CO + 24
        def pk(op, d, a, b, neg=False):
            g = []
            for e in range(0, 8, 2):
                if op == "mul": g += I("v_pk_mul_f32 %s, %s, %s" % (V(d + e, 2), V(a + e, 2), V(b + e, 2)))
                else: g += I("v_pk_fma_f32 %s, %s, %s, %s%s" % (V(d + e, 2), V(a + e, 2), V(b + e, 2), V(d + e, 2), " neg_lo:[1,0,0] neg_hi:[1,0,0]" if neg else ""))
            return g
        head = p + self.stamp(8, 3); p = []
        for e in range(16): p += I("v_mul_f32_dpp v%d, v%d, v18 %s" % (PP + e, DD + e, dpp))
        p += pk("mul", EE, cA, DD) + pk("mul", EE + 8, cC, DD) + pk("fma", EE, cB, PP) + I("v_mov_b32 v%d, v%d\nv_mov_b32 v%d, v%d" % (cA, CA2, cB, CB2))
        p += pk("fma", EE + 8, cD, PP) + pk("fma", EE, cC, DD + 8, True) + pk("fma", EE + 8, cA, DD + 8) + pk("fma", EE, cD, PP + 8, True) + pk("fma", EE + 8, cB, PP + 8)
        p = head + flat(weave(single(p), pump(self.o("pump3", 1))))
        p += self.pack(PK, EE)
        mf = [I("%s %s, %s, %s, %s" % (MF, V(DD + 4 * kt, 4), V(PK + 4 * v, 4), A(192 + (2 * kt + v) * 4, 4), V(DD + 4 * kt, 4) if v else "0")) for v in range(2) for kt in range(4)]
        q = self.pack(PK + 4, EE + 8)
        p += q[:2]
        G = Gaps(mf); G.put(0, q[2:])
        NR = len(RING)
        def hload(u, s_):
            gs = []
            if s_ == 0 and u: gs += [J("s_add_u32 {ho}, {ho}, 4096"), J("s_cmp_ge_u32 {ho}, {he}\ns_cselect_b32 {ho}, {hs}, {ho}")]
            return gs + [J("buffer_load_dwordx4 {r}, {l16b}, {SWS}, {ho} offen offset:{o} sc1", tag="h%d_%d" % (u, s_), r=V(RING[u % NR] + 4 * s_, 4), o=s_ * 1024)]
        p += G.out()
        post = J("""s_lshl_b32 {t2}, {bp}, 16
s_lshl_b32 {t3}, {w}, 14
s_add_u32 {t2}, {t2}, {t3}
s_add_u32 {t2}, {t2}, {u}
s_lshl_b32 {t0}, {bp}, 8
s_add_u32 {t0}, {t0}, {g}""", u=WS_U, g=WS_G)
        p += post
        for kt in range(4):
            p += cvt(UP + 2 * kt, DD + 4 * kt, DD + 4 * kt + 1) + cvt(UP + 2 * kt + 1, DD + 4 * kt + 2, DD + 4 * kt + 3)
            p += J("buffer_store_dwordx2 {r}, {xr}, {SWS}, s{so} offen sc1", tag="ust", r=V(UP + 2 * kt, 2), so=76 + kt)
        p += self.stamp(6) + self.stamp(9, 3)
        p += flat(pump(self.o("pump2", 1)))
        p += self.spin(self.POLL_LD)
        p += self.stamp(7)
        npre = self.o("npre", 3)
        hl = [g for u in range(npre) for s_ in range(4) for g in hload(u, s_)]
        tpre = max(st["t"], min(st["d"], self.o("tpre", 8)))
        p += flat(weave(hl, self.TT(st["t"], tpre))); st["t"] = tpre
        p += J("""s_lshl_b32 s76, {bp}, 10
s_lshl_b32 {t1}, {nt}, 7
s_add_u32 s76, s76, {t1}
s_lshl_b32 {t1}, {w}, 19
s_add_u32 s76, s76, {t1}
s_add_u32 s77, s76, 0x40000
s_lshl_b32 {wo1}, {w}, 13
s_add_u32 {wo1}, {wo1}, {cnt}
v_lshlrev_b32 {pa}, 7, v0""", cnt=WS_CNT)
        redadr = []
        for dl in range(4):
            redadr += J("s_xor_b32 {t1}, {w}, {dl}\ns_mul_i32 {t1}, {t1}, 12288\ns_add_u32 {t1}, {t1}, {o}\nv_add_u32 v{r}, {t1}, {l16b}", dl=dl, o=LDS_RED + max(0, dl - 1) * 4096, r=vDT[dl])
        l = self.lab("nosig")
        p += I("@wait ust gst") + J("s_barrier\ns_cmp_lg_u32 {w}, 0")
        p += J("s_cbranch_scc1 {l}\ns_mov_b64 exec, 1\nbuffer_store_dword v19, v0, {SWS}, {wo0} offen sc1\ns_mov_b64 exec, -1\n{l}:", raw=True, l=l)
        ndef = self.o("ndef", 2)
        pp, cp, s5 = self.o("pollpos", 96), self.o("chkpos", 144), self.o("s5", 200)
        def m4(u, s_, dl):
            d = V(128 + (dl * 4 + s_) * 4, 4)
            return I("%s %s, %s, %s, %s" % (MF, d, A(self.wd_reg(u, dl), 4), V(RING[u % NR] + 4 * s_, 4), d if u else "0"))
        def m5(k):
            n, sg = divmod(k, 4); d = V(ACCV + 4 * sg, 4)
            return I("%s %s, %s, %s, %s" % (MF, d, A(self.wd_reg((k % 16) // 4, k % 4), 4), V(GB + 4 * n, 4), d if n else "0"))
        o4 = [(u, s_, dl) for u in range(14) for s_ in range(4) for dl in ((0, 1, 2, 3) if u < 14 - ndef else (1, 2, 3))]
        mf = []; at = {}; k5 = 0
        for i, key in enumerate(o4):
            at[key] = len(mf); mf.append(m4(*key))
            if i >= s5 and k5 < 64:
                at[k5] = len(mf); mf.append(m5(k5)); k5 += 1
        while k5 < 64:
            at[k5] = len(mf); mf.append(m5(k5)); k5 += 1
        nmain = len(mf)
        mf += [m4(u, s_, 0) for u in range(14 - ndef, 14) for s_ in range(4)]
        nfin = len(mf); AO = GB
        mf += [I("%s %s, %s, %s, %s" % (MF, V(AO + 4 * a_, 4), V(24 + 4 * v, 4), A(224 + (2 * a_ + v) * 4, 4), V(AO + 4 * a_, 4) if v else "0")) for v in range(2) for a_ in range(4)]
        G = Gaps(mf)
        for u in range(14):
            for s_ in range(4):
                f = at[(u, s_, 0 if u < 14 - ndef else 1)]
                if f: G.put(f - 1, I("@wait h%d_%d" % (u, s_)))
        LA = self.o("la5", 10)
        for k in range(64):
            pos = at[k - LA] if k >= LA else at[0] - (LA - k)
            if k % 16 == 0: G.put(pos - 1, I("@wait u%d\ns_barrier" % (k // 16)))
            G.put(pos, J("ds_read_b128 {r}, {vw} offset:{o}", tag="a%d" % k, r=A(self.wd_reg((k % 16) // 4, k % 4), 4), o=(k % 4) * 16384 + (k // 4) * 1024))
            if k % 2 == 0: G.put(at[k] - 1, I("@wait a%d" % (k + 1)))
        G.put(at[0] + 1, J("buffer_load_dwordx4 v[20:23], v8, {SWS}, {t0} offen sc1"))
        last = 0
        for k, (u, s_) in enumerate([(u, s_) for u in range(npre, 14) for s_ in range(4)]):
            want = max(last, 2 * k, at[(u - NR, s_, 3)] if u >= NR else 0)
            last = G.stream(hload(u, s_), want, want + 4, spread=False)
        late = pump(14)
        e = G.stream(late, 2, 2 + 3 * len(late)) if late else 0
        e = G.stream(self.TT(st["t"], 14) + single(redadr), max(e + 1, self.o("tpos", 40)), min(126, cp - 1))
        assert e < 128 and e < cp
        G.put(pp, I(self.POLL_LD, tag="poll"))
        G.put(cp, self.stamp(8) + I("@wait poll") + self.spin(self.POLL_LD, sleep=4))
        ud = [I("@must t13")]
        for c in range(4):
            ud += [J("s_add_u32 m0, {t3}, {o}", o=c * 4096)] + ([J("s_add_u32 {t2}, {t2}, 4096")] if c else [])
            ud += [J("buffer_load_dwordx4 {l16b}, {SWS}, {t2} offen offset:{o} sc1 lds", tag="u%d" % c, o=1024 * k) for k in range(4)]
        G.stream(ud, cp + 1, cp + self.o("udl", 40))
        wr = [I("ds_write_b128 v%d, %s offset:%d" % (vDT[dl], V(128 + (dl * 4 + s_) * 4, 4), s_ * 1024), tag="red") for s_ in range(4) for dl in (1, 2, 3)]
        last = 0
        for k, g in enumerate(wr): last = G.stream([g], max(last + 2, at[(13, k // 3, 3)] + 5), len(mf), spread=False)
        rb = None
        if last + 8 < nmain:
            rb = [I("@wait red\ns_barrier")] + [I("ds_read_b128 %s, v%d offset:%d" % (V(144 + 4 * k, 4), vDT[0], k * 1024)) for k in range(12)]
            G.stream(rb, last + 4, len(mf))
        G.stream(single(self.pack(24, ACCV) + self.pack(28, ACCV + 8)), max(at[63] + 4, nfin - 8), nfin - 1, spread=False)
        G.stream(single(I("\n".join("v_mul_f32 v%d, %s, v%d" % (GB + 16 + a_, fhex(2.0 ** -19), 20 + a_) for a_ in range(4)))), nmain, nfin)
        G.stream(single(I("\n".join("v_sub_f32 v%d, 1.0, v%d" % (GB + 24 + i, 20 + i // 2) for i in range(8)))), nfin, len(mf))
        assert at[0] - LA > 64 and at[63] < nmain
        for i in range(10): G.put(min(32 * i, len(G) - 1), self.stamp(i, 2))
        p += G.out()
        p += self.stamp(9)
        if rb is None:
            p += I("@wait red\ns_barrier")
            for k in range(12): p += I("ds_read_b128 %s, v%d offset:%d" % (V(144 + 4 * ((k % 3) * 4 + k // 3), 4), vDT[0], ((k % 3) * 4 + k // 3) * 1024))
        for i in range(16): p += I("v_mul_f32 v%d, v%d, v%d" % (AO + i, GB + 16 + i // 4, AO + i))
        for a_ in range(4):
            b = 128 + 4 * a_
            for hh in (0, 2): p += I("v_pk_add_f32 %s, %s, %s" % (V(b + hh, 2), V(b + hh, 2), V(b + 16 + hh, 2)))
            for hh in (0, 2): p += I("v_pk_add_f32 %s, %s, %s" % (V(b + 32 + hh, 2), V(b + 32 + hh, 2), V(b + 48 + hh, 2)))
            for hh in (0, 2): p += I("v_pk_add_f32 %s, %s, %s" % (V(b + hh, 2), V(b + hh, 2), V(b + 32 + hh, 2)))
            for hh in (0, 2): p += I("v_pk_fma_f32 %s, %s, %s, %s" % (V(b + hh, 2), V(b + hh, 2), V(GB + 24 + 2 * a_, 2), V(AO + 4 * a_ + hh, 2)))
            p += cvt(56 + 2 * a_, b, b + 1) + cvt(57 + 2 * a_, b + 2, b + 3)
            p += I("ds_write_b64 v6, %s offset:%d" % (V(56 + 2 * a_, 2), a_ * 2048))
        p += I("@waitlg0\ns_barrier")
        for e in range(2): p += I("ds_read_b128 %s, v7 offset:%d" % (V(32 + 4 * e, 4), e * 1024))
        for e in range(2): p += J("buffer_store_dwordx4 {r}, {x}, {SOUT}, s{so} offen {f}", r=V(32 + 4 * e, 4), so=76 + e, f=("", "sc1", "nt")[self.o("ost", 1)])
        return p + self.ending(ffn)

    def ending(self, ffn):
        p = []
        if "diag" in self.kw:
            i = self.kw["diag"]; l = self.lab("dg"); who = self.o("who", 0)
            use = i >= 0 and (who == 0 or (who == 1) == ffn)
            p += I("@waitvm0") + self.stamp(10) + I("s_waitcnt lgkmcnt(0)")
            p += I("s_add_u32 s3, %s, 5000" % ("s%d" % (48 + 2 * i) if use else "s100"))
            p += I("%s:\ns_sleep 1\ns_memrealtime s[98:99]\ns_waitcnt lgkmcnt(0)\ns_sub_u32 s98, s98, s3\ns_cmp_lt_i32 s98, 0\ns_cbranch_scc1 %s" % (l, l), raw=True)
        elif self.prof:
            p += I("@waitvm0") + self.stamp(10) + I("s_waitcnt lgkmcnt(0)")
            p += J("s_lshl_b32 s3, s2, 2\ns_add_u32 s3, s3, {w}\ns_lshl_b32 s3, s3, 6\ns_add_u32 s3, s3, {o}\nv_mov_b32 v32, s100", o=WS_PROF)
            for i in range(11): p += I("v_mov_b32 v%d, s%d" % (33 + i, 48 + 2 * i))
            p += I("s_mov_b64 exec, 1")
            for i in range(3): p += I("buffer_store_dwordx4 %s, v0, %s, s3 offen offset:%d" % (V(32 + 4 * i, 4), SWS, 16 * i))
        return p + I("s_endpgm")

    def text(self):
        st = {}
        hdr = open("gated_mix__spectral_gfnet__glu_gated_reglu__prompt.s.ref").read().split("; Override launch")[0]
        out = [hdr.rstrip(), "; One persistent launch: 256 workgroups (one per CU) x 4 waves. Written by my generator tools/gen3.py.",
               "; @launch grid=(256,1,1) block=(256,1,1) lds=163840", '.amdgcn_target "amdgcn-amd-amdhsa--gfx950"', ".text",
               ".globl " + NAME, ".p2align 8", ".type %s,@function" % NAME, NAME + ":"]
        prog = self.prologue() + self.p12f() + I("L_dft:") + self.p12d() + I("L_end:\ns_endpgm")
        x = self.o("strip", 0)
        if x & 1: prog = [i for i in prog if i.cls != "mfma"]
        if x & 2: prog = [i for i in prog if not (i.cls == "ds" and i.op.startswith("ds_read"))  or i.tag and not seen_tag(i.tag)]
        if x & 4: prog = [i if not (i.cls == "vmem" and i.tag == "pub") else Ins(i.text.replace("v14", "v0").replace("dwordx4", "dword").replace(i.text.split()[1], "v0,"), i.tag) for i in prog]
        body = finalize(prog, st)
        out += body
        out += ['.section .rodata,"a"', ".p2align 6", ".amdhsa_kernel " + NAME, "  .amdhsa_next_free_vgpr 512", "  .amdhsa_next_free_sgpr 102",
                "  .amdhsa_accum_offset 256", "  .amdhsa_group_segment_fixed_size 0", "  .amdhsa_kernarg_size 88", "  .amdhsa_user_sgpr_count 2",
                "  .amdhsa_user_sgpr_kernarg_segment_ptr 1", "  .amdhsa_system_sgpr_workgroup_id_x 1", "  .amdhsa_float_denorm_mode_32 3", ".end_amdhsa_kernel"]
        self.stats = st; self.body = body
        return "\n".join(out) + "\n"

if __name__ == "__main__":
    import argparse
    ap = argparse.ArgumentParser()
    ap.add_argument("out"); ap.add_argument("--prof", action="store_true"); ap.add_argument("--opt", default=""); ap.add_argument("--est", action="store_true")
    a = ap.parse_args()
    kw = dict((k, int(v)) for k, v in (x.split("=") for x in a.opt.split(",") if x))
    g = Gen(prof=a.prof, **kw)
    open(a.out, "w").write(g.text())
    print(g.stats)
    if a.est:
        row = []; gap = None; nm = 0; over = 0; skip = None
        for l in g.body:
            x = Ins(l.strip())
            if skip:
                if x.text == skip + ":": skip = None
                continue
            if x.op in ("s_cbranch_vccz", "s_cbranch_scc1") and "L_" not in x.text: skip = x.text.split()[1]
            if x.cls == "label":
                if x.text == "L_dft:": row.append(over); row.append("|"); nm = 0; over = 0; gap = None
                continue
            if x.cls == "mfma":
                if gap is not None and len(gap) < 14: over += gap_over(gap) + sum(int(y.text.split()[1]) for y in gap if y.op == "s_nop")
                gap = []; nm += 1
                if nm % 64 == 0: row.append(over); over = 0
            elif gap is not None: gap.append(x)
        print(row, over)
```

```python
import sys
sys.path.insert(0, "tools")
from prog import *

NAME = "gated_mix__spectral_gfnet__glu_gated_reglu__prompt_kernel"
WS_H, WS_X1, WS_U, WS_G, WS_FLAG, WS_CNT, WS_PROF = 0, 0x800000, 0xA00000, 0xC38000, 0xC10000, 0xC30000, 0xF000000
NCLR = 42
SPIN_LIMIT = 100000
MF = "v_mfma_f32_16x16x32_bf16"
SX, SWG, SWU, SWD, SWS, SOUT, SWR, SWI, SGW, SDBG = [S(8 + 4 * i, 4) for i in range(10)]
NM = dict(w="s4", b12="s5", ni="s6", rot="s7", xcd="s70", loc="s71", wds="s70", wde="s71", l3="s72", nt="s73", bp="s74", xn="s75",
          hs="s80", lw4="s80", wo0="s81", wo1="s82", he="s83", wb="s83", k="s94", lw="s84", wdo="s85", t0="s86", t1="s87", t2="s88", t3="s89",
          mask="s[90:91]", hi16="s92", ring="s93", ho="s94", clr="s95", m1="s[96:97]", m2="s[98:99]",
          l16="v1", hi="v2", x="v3", xr="v4", vw="v5", l16b="v14", wd="v15", p="v16", xr2="v16", pa="v17",
          SX=SX, SWG=SWG, SWU=SWU, SWD=SWD, SWS=SWS, SOUT=SOUT, SWR=SWR, SWI=SWI, SGW=SGW, SDBG=SDBG)
vWT = [6, 7, 8, 9]; vDT = [10, 11, 12, 13]; vXA = [22, 23]; vWD = [15, 29, 30, 31]
LDS_RPF, LDS_RPI, LDS_R64I, LDS_STG, LDS_RED = 128 * 1024, 136 * 1024, 144 * 1024, 152 * 1024, 64 * 1024
GB, CO, ACCV = 64, 32, 48
CA2, CB2 = 20, 21
RING = [192, 208, 224, 240, 32]

def J(text, tag=None, raw=False, **kw):
    d = dict(NM); d.update(kw)
    return I(text.format(**d), tag, raw)
def single(g): return [[x] for x in flat(g)]
def chunks(g):
    g = flat(g); out = []; i = 0
    while i < len(g):
        j = i
        if g[i].op.startswith("v_cmp") and ("s", 106) in g[i].dst:
            k = i + 1
            while k < len(g) and not (g[k].op.startswith("v_cmp") and ("s", 106) in g[k].dst):
                if ("s", 106) in g[k].src: j = k
                k += 1
            j = i
        while j + 1 < len(g) and g[j + 1].op.startswith(("s_cselect", "s_subb", "s_addc")): j += 1
        out.append(g[i:j + 1]); i = j + 1
    return out
def cvt(d, a, b): return I("v_cvt_pk_bf16_f32 v%d, v%d, v%d" % (d, a, b))

_seen = set()
def seen_tag(t):
    r = t in _seen; _seen.add(t); return r

class Gen:
    def __init__(self, prof=False, **kw):
        self.prof = prof; self.kw = kw; self.nl = 0
    def o(self, k, d): return self.kw.get(k, d)
    def lab(self, b):
        self.nl += 1; return "L%s_%d" % (b, self.nl)
    def clk(self): return "s_memtime" if self.o("cyc", 0) else "s_memrealtime"
    def stamp(self, i, mode=0):
        if not self.prof or self.o("diag", i) != i or (self.o("pm", 0) != mode and i != 10): return []
        return I("%s %s" % (self.clk(), S(48 + 2 * i, 2)), raw=True)
    def srd(self, name, lo, size, back=0):
        b = int(name[2:name.index(":")])
        if back: g = I("s_sub_u32 s%d, s%d, %d\ns_subb_u32 s%d, s%d, 0" % (b, lo, back, b + 1, lo + 1))
        else: g = I("s_mov_b64 %s, %s" % (S(b, 2), S(lo, 2)))
        return g
    def srd_const(self, name, size):
        b = int(name[2:name.index(":")])
        return I("s_mov_b32 s%d, 0x%x\ns_mov_b32 s%d, 0x20000" % (b + 2, size, b + 3))
    def spin(self, load, sleep=2):
        ok, sp = self.lab("ok"), self.lab("spin")
        cmp_ = "v_cmp_ne_u32 vcc, 1, v16"
        return I(cmp_) + I("s_cbranch_vccz %s" % ok, tag="first", raw=True) + I("""s_mov_b32 s3, 0
%s:
s_sleep %d
%s
s_waitcnt vmcnt(0)
%s
s_add_u32 s3, s3, 1
s_cmp_lt_u32 s3, %d
s_cbranch_vccz %s
s_cbranch_scc1 %s
%s:""" % (sp, sleep, load, cmp_, SPIN_LIMIT, ok, sp, ok), raw=True)

    def cheb(self, X, Y, K, pk=True):
        if not pk: return I("\n".join("v_fma_f32 v%d, v%d, v%d, -v%d" % (X + q, K, Y + q, X + q) for q in range(8)))
        return I("\n".join("v_pk_fma_f32 %s, %s, %s, %s neg_lo:[0,0,1] neg_hi:[0,0,1]" % (V(X + 2 * q, 2), V(K, 2), V(Y + 2 * q, 2), V(X + 2 * q, 2)) for q in range(4)))
    def direct(self, X, spec):
        g = []; src = []
        for i, (d, K, b) in enumerate(spec):
            if K == 0: src.append(b)
            else:
                g += I("v_fmamk_f32 v%d, %s, %s, %s" % (X + i, d, fhex(K), b)); src.append("v%d" % (X + i))
        return g + I("\n".join("v_cos_f32 v%d, %s" % (X + i, src[i]) for i in range(8)))
    def pack(self, dst, X, first=None):
        return flat([cvt(dst + q, first if (q == 0 and first) else X + 2 * q, X + 2 * q + 1) for q in range(4)])

    def gen_G(self, t, pk):
        X, Y, K = t, t + 8, t + 16
        d, a0 = V(t + 18), V(t + 19)
        pre = J("""s_lshl_b32 {t0}, {nt}, 6
s_lshl_b32 {t1}, {w}, 4
s_add_u32 {t0}, {t0}, {t1}
v_add_u32 {d}, {t0}, {l16}
v_cvt_f32_u32 {d}, {d}
v_mul_f32 {d}, {c512}, {d}
v_mul_f32 {k0}, 0x41800000, {d}
v_cos_f32 {k0}, {k0}
v_and_b32 {e0}, 2, {hi}
v_lshlrev_b32 {e0}, 2, {e0}
v_cvt_f32_u32 {e0}, {e0}
v_and_b32 {e1}, 1, {hi}
v_cvt_f32_u32 {a0}, {e1}
v_mul_f32 {a0}, 0x3e800000, {a0}
v_fmac_f32 {a0}, {d}, {e0}
v_add_f32 {k0}, {k0}, {k0}
v_and_b32 {e0}, {e1}, v0
v_mov_b32 {k1}, {k0}
v_lshl_or_b32 {e0}, {e0}, 31, 0.5""", d=d, a0=a0, c512=fhex(1 / 512), k0=V(K), k1=V(K + 1), e0=V(t + 20), e1=V(t + 21))
        kap = [2 * (i & 3) + (i >> 2) for i in range(8)]
        gs = [pre, self.direct(X, [(d, kap[i], a0) for i in range(8)]), self.direct(Y, [(d, 16 + kap[i], a0) for i in range(8)]),
              J("v_cmp_gt_u32 vcc, 2, {hi}") + self.pack(GB + 4, Y) + I("v_cndmask_b32 v%d, v%d, v%d, vcc" % (t + 20, X, t + 20)) + self.pack(GB, X, first=t + 20)]
        for n in range(2, 16):
            a, b = (X, Y) if n % 2 == 0 else (Y, X)
            gs.append(self.cheb(a, b, K, pk) + self.pack(GB + 4 * n, a))
        return gs

    def gen_R(self, part, t):
        X = t; r = [V(t + 8 + i) for i in range(14)]
        n = dict(q=r[0], k=r[1], ph=r[2], dl=r[3], b0=r[4], b1=r[5], d0=r[6], d1=r[7], o0=r[8], o1=r[9], qt=r[10], h2=r[11], hf=r[12], adr=r[13],
                 c=fhex(1 / 2048), c64=fhex(1 / 64), base=LDS_RPF + 8192 * part)
        g = J("""s_lshl_b32 {t0}, {w}, 11
s_add_u32 {t0}, {t0}, {base}
v_add_u32 {adr}, {t0}, {l16b}
v_cvt_f32_u32 {hf}, {hi}
v_mov_b32 {qt}, 0x3e800000""", **n)
        if part < 2: g += J("s_cmp_eq_u32 {bp}, 0\ns_cselect_b64 {m1}, -1, 0\ns_cselect_b32 {t1}, 32, 64")
        masks = J("s_and_b32 vcc_lo, s96, 0xaaaaaaaa\ns_mov_b32 vcc_hi, vcc_lo\ns_andn2_b64 {m2}, {m1}, vcc")
        if part == 0:
            g += J("""s_and_b32 {t0}, {w}, 1
s_lshl_b32 {t0}, {t0}, 4
v_add_u32 {q}, {t0}, {l16}
v_mul_u32_u24 {k}, {t1}, {q}
v_add_u32 {k}, {bp}, {k}
s_lshr_b32 {t2}, {w}, 1
s_cselect_b64 {m2}, -1, 0
v_cmp_eq_u32 vcc, 0, {k}
v_cvt_f32_u32 {ph}, {t2}
v_mul_f32 {ph}, 0xbe800000, {ph}
v_cvt_f32_u32 {dl}, {k}
v_mul_f32 {dl}, {c}, {dl}
s_and_b64 vcc, vcc, {m2}
v_cndmask_b32 {dl}, {dl}, 0.5, vcc
v_cndmask_b32 {ph}, {ph}, 0, vcc
v_add_f32 {h2}, {hf}, {hf}
v_fma_f32 {b0}, {dl}, {h2}, {ph}
v_add_f32 {b1}, {qt}, {b0}
v_cndmask_b32 {b1}, {b1}, {b0}, {m1}""", **n) + masks + J("""v_cndmask_b32 {d0}, {dl}, 0, vcc
v_cndmask_b32 {b0}, {b0}, {qt}, vcc
v_cndmask_b32 {d1}, {dl}, 0, {m2}
v_cndmask_b32 {b1}, {b1}, {qt}, {m2}""", **n)
            specs = [[((r[6], r[7])[i & 1], 16 * v + 8 * (i // 4) + (i % 4) // 2, (r[4], r[5])[i & 1]) for i in range(8)] for v in range(2)]
        elif part == 1:
            g += masks + J("""s_lshl_b32 {t0}, {w}, 3
v_lshrrev_b32 {q}, 1, {l16}
v_add_u32 {q}, {t0}, {q}
v_cvt_f32_u32 {k}, {q}
v_mul_f32 {k}, {c}, {k}
v_cvt_f32_u32 {ph}, {t1}
v_mul_f32 {dl}, {k}, {ph}
v_cvt_f32_u32 {ph}, {bp}
v_mul_f32 {b0}, {k}, {ph}
v_and_b32 {q}, 1, v0
v_cvt_f32_u32 {ph}, {q}
v_cndmask_b32 {ph}, {ph}, 0, {m1}
v_fmac_f32 {b0}, {qt}, {ph}
v_mul_f32 {ph}, 4.0, {hf}
v_fmac_f32 {b0}, {dl}, {ph}
v_sub_f32 {b1}, {b0}, {qt}
v_cndmask_b32 {d1}, {dl}, 0, {m2}
v_cndmask_b32 {o0}, {b0}, {qt}, {m2}
v_cndmask_b32 {o1}, {b1}, {qt}, {m2}
s_and_b64 {m2}, {m2}, 0xffff
v_cndmask_b32 {d0}, {dl}, 0, vcc
v_cndmask_b32 {b0}, {b0}, {qt}, vcc
v_cndmask_b32 {b1}, {b1}, {qt}, vcc
v_mul_f32 {k}, 0x44800000, {k}
v_cndmask_b32 {k}, {b1}, {k}, {m2}""", **n)
            specs = [[((r[6], r[7])[i & 1], 16 * (i // 4) + i % 4, ((r[4], r[5]), (r[8], r[9]))[i & 1][v]) for i in range(8)] for v in range(2)]
            specs[1][0] = (r[6], 0, r[1])
        else:
            g += J("""s_lshl_b32 {t0}, {w}, 4
v_add_u32 {q}, {t0}, {l16}
v_cvt_f32_u32 {q}, {q}
v_mul_f32 {dl}, {c64}, {q}
v_add_f32 {h2}, {hf}, {hf}
v_mul_f32 {b0}, {dl}, {h2}
v_sub_f32 {b1}, {b0}, {qt}
v_mul_f32 {q}, 0.5, {q}
s_mov_b64 {m2}, 0xffff
v_cndmask_b32 {q}, {b1}, {q}, {m2}""", **n)
            specs = [[(r[3], 16 * v + 8 * (i // 4) + (i % 4) // 2, (r[4], r[5])[i & 1]) for i in range(8)] for v in range(2)]
            specs[0][1] = (r[3], 0, r[0])
        for v in range(2):
            g += self.direct(X, specs[v]) + self.pack(X, X) + I("ds_write_b128 %s, %s offset:%d" % (r[13], V(X, 4), v * 1024), tag="rtab")
        return chunks(g)

    def gen_T(self):
        r = [V(176 + i) for i in range(8)]
        gs = [J("""s_lshr_b32 {t0}, {xn}, 1
s_lshl_b32 {t0}, {t0}, 2
s_add_u32 {t0}, {t0}, {w}
s_lshl_b32 {t0}, {t0}, 5
s_and_b32 {t1}, {xn}, 1
s_add_u32 {t0}, {t0}, {t1}
v_lshl_add_u32 {j}, {l16}, 1, {t0}
v_cvt_f32_u32 {d0}, {j}
v_cmp_eq_u32 vcc, 0, {j}
v_mul_f32 {d0}, {c}, {d0}
v_mov_b32 {b1}, 0x3e800000
s_lshl_b32 {t0}, {wb}, 6
v_lshl_add_u32 {h4}, {hi}, 2, {t0}
v_cvt_f32_u32 {h4}, {h4}
v_cndmask_b32 {d1}, {d0}, 0.5, vcc
v_cndmask_b32 {b1}, {b1}, 0, vcc
v_mul_f32 {b0}, {d0}, {h4}
v_fmac_f32 {b1}, {d1}, {h4}
v_mul_f32 v168, 0x42000000, {d0}
v_mul_f32 v170, 0x42000000, {d1}
v_cos_f32 v168, v168
v_cos_f32 v170, v170
s_lshl_b32 {t0}, {w}, 11
v_add_u32 {adr}, {t0}, {l16b}
v_add_f32 v168, v168, v168
v_add_f32 v170, v170, v170
v_mov_b32 v169, v168
v_mov_b32 v171, v170""", j=r[0], d0=r[2], d1=r[3], b0=r[4], b1=r[5], h4=r[6], adr=r[7], c=fhex(1 / 512))]
        for n in range(8):
            for tt in range(2):
                X, Y = 128 + 16 * tt, 136 + 16 * tt
                a, b = (X, Y) if n % 2 == 0 else (Y, X)
                g = self.direct(a, [(r[2 + tt], 32 * n + 16 * (i // 4) + i % 4, r[4 + tt]) for i in range(8)]) if n < 2 else self.cheb(a, b, 168 + 2 * tt)
                gs.append(g + self.pack(160 + 4 * tt, a) + I("ds_write_b128 %s, %s offset:%d" % (r[7], V(160 + 4 * tt, 4), n * 8192 + tt * 1024), tag="ttab"))
        sel = J("""s_lshl_b32 {t1}, {t1}, 15
v_lshrrev_b32 v24, 1, {hi}
v_mul_u32_u24 v24, {t1}, v24
v_or_b32 v24, 0x3f80, v24
v_and_b32 v25, 1, v0
v_lshlrev_b32 v25, 4, v25
v_lshlrev_b32 v24, v25, v24
v_lshrrev_b32 v25, 1, {l16}
v_and_b32 v26, 1, {hi}
v_lshlrev_b32 v27, 2, v26
v_xor_b32 v27, v25, v27
v_cmp_eq_u32 vcc, 0, v27
v_cmp_eq_u32 {m1}, 1, v27
v_cmp_eq_u32 {m2}, 2, v27
v_cndmask_b32 v20, 0, v24, vcc
v_cmp_eq_u32 vcc, 3, v27
v_cndmask_b32 v21, 0, v24, {m1}
v_cndmask_b32 v22, 0, v24, {m2}
v_cndmask_b32 v23, 0, v24, vcc
v_xor_b32 v24, v26, v25
v_lshlrev_b32 v24, 4, v24
v_lshl_add_u32 v24, {l16}, 7, v24
v_lshrrev_b32 v25, 1, {hi}
v_lshl_add_u32 v24, v25, 11, v24
v_add_u32 v6, {ring}, v24
v_xor_b32 v7, 32, v6
v_xor_b32 v8, 64, v6
v_xor_b32 v9, 0x60, v6""")
        late = J("""s_lshl_b32 {t0}, {w}, 4
v_add_u32 v24, {t0}, {l16}
v_lshrrev_b32 v18, 1, v24
v_cvt_f32_u32 v18, v18
v_mul_f32 v18, {c}, v18
v_and_b32 v19, 1, v24
v_cvt_f32_u32 v19, v19
v_mul_f32 v19, 0xbe800000, v19
v_cmp_eq_u32 vcc, 1, v24
v_lshlrev_b32 v24, 2, {hi}
v_cvt_f32_u32 v24, v24
s_lshl_b32 {t0}, {w}, 11
s_add_u32 {t0}, {t0}, {stg}
v_cndmask_b32 v18, v18, 0.5, vcc
v_cndmask_b32 v19, v19, 0, vcc
v_fmac_f32 v19, v18, v24
v_add_u32 {pa}, {t0}, {l16b}""", c=fhex(1 / 64), stg=LDS_STG)
        for v in range(2):
            late += self.direct(24, [("v18", 32 * v + 16 * (i // 4) + i % 4, "v19") for i in range(8)]) + self.pack(24, 24) + \
                    J("ds_write_b128 {pa}, v[24:27] offset:{o}", tag="r64f", o=v * 1024)
        return gs, sel, late

    def wd_setup(self):
        g = J("""v_lshrrev_b32 v24, 3, v0
v_bfe_u32 v25, v0, 1, 2
v_xor_b32 v25, v25, {hi}
v_lshlrev_b32 v25, 5, v25
v_lshl_add_u32 v25, v24, 10, v25
v_and_b32 v24, 1, v0
v_lshl_add_u32 {wd}, v24, 4, v25
v_add_u32 v29, 7168, {wd}
v_add_u32 v30, 7168, v29
v_add_u32 v31, 7168, v30
s_mul_i32 {wds}, {w}, {c}
s_lshl_b32 {t0}, {nt}, 7
s_add_u32 {wds}, {wds}, {t0}
s_add_u32 {wde}, {wds}, {c}
v_bfe_u32 v24, v0, 2, 3
v_lshrrev_b32 v25, 5, v0
v_lshlrev_b32 v25, 10, v25
v_lshl_add_u32 v25, v24, 7, v25
v_and_b32 v26, 3, v0
v_lshl_add_u32 v25, v26, 3, v25
v_add_u32 v25, {ring}, v25
v_lshrrev_b32 v24, 1, v24
v_xor_b32 v24, {w}, v24
v_lshl_add_u32 v10, v24, 5, v25
v_xor_b32 v11, 32, v10
v_xor_b32 v12, 64, v10
v_xor_b32 v13, 0x60, v10
s_mul_i32 {rot}, {nt}, {ra}""", c=448 * 1024, ra=self.o("rnt", 0))
        if self.o("rl3", 0) == 1: g += J("s_mul_i32 {t0}, {l3}, 7\ns_add_u32 {t0}, {t0}, 1\ns_lshr_b32 {t0}, {t0}, 1\ns_add_u32 {rot}, {rot}, {t0}")
        if self.o("rl3", 0) == 2: g += J("s_and_b32 {t0}, {l3}, 1\ns_mul_i32 {t0}, {t0}, 7\ns_add_u32 {rot}, {rot}, {t0}")
        g += J("s_sub_u32 {t0}, {rot}, 14\ns_cselect_b32 {rot}, {rot}, {t0}\ns_lshl_b32 {t0}, {rot}, 15\ns_add_u32 {wdo}, {wds}, {t0}")
        return g
    def loc(self, u):
        if self.ffn: return (0, None) if 8 <= u < 12 else (1, None if u < 4 else u - 4 if u < 8 else u - 8)
        return (1 - (u // 4) % 2, u - 8 if u >= 8 else None)
    def D(self, u, pre=None):
        reg, prev = self.loc(u); gs = []
        if u: gs += [J("s_add_u32 {wdo}, {wdo}, 0x8000"), J("s_cmp_ge_u32 {wdo}, {wde}\ns_cselect_b32 {wdo}, {wds}, {wdo}")]
        gs.append(J("s_add_u32 m0, {ring}, {o}", o=((u % 4) * 4096 - (0 if reg else 65536)) & 0xFFFFFFFF))
        if prev is not None: gs.append(I("@must t%d" % prev))
        if pre: gs.append(pre)
        gs += [J("buffer_load_dwordx4 v{r}, {SWD}, {wdo} offen offset:{o} lds", tag="d%d" % u, r=vWD[k], o=1024 * k) for k in range(4)]
        return gs
    def wd_reg(self, u, dl): return (160 + 16 * u if u < 2 else 16 * (u - 2) if u < 12 else 16 * u) + 4 * dl
    def T(self, u):
        gs = []
        if self.loc(u)[0] != (self.loc(u - 1)[0] if u else 1): gs += single(I("\n".join("v_xor_b32 v%d, 0x10000, v%d" % (r, r) for r in vDT)))
        gs.append(I("@must d%d" % u))
        for dl in range(4):
            for j4 in range(2):
                gs.append(I("ds_read_b64_tr_b16 %s, v%d offset:%d" % (A(self.wd_reg(u, dl) + 2 * j4, 2), vDT[dl], (u % 4) * 4096 + j4 * 2048), tag="t%d" % u))
        return gs
    def DD(self, a, b): return [g for u in range(a, b) for g in self.D(u)]
    def TT(self, a, b): return [g for u in range(a, b) for g in self.T(u)]

    def g_loads(self):
        return single(J("""s_lshl_b32 {t0}, {nt}, 2
s_add_u32 {t0}, {t0}, {w}
s_lshl_b32 {t0}, {t0}, 1
v_lshrrev_b32 v25, 5, v0
v_add_u32 v236, {t0}, v25
v_and_b32 v25, 3, v236
v_lshrrev_b32 v26, 2, v236
v_lshl_add_u32 v25, v25, 4, v26
v_and_b32 v233, 0x1f0, {l16b}
v_lshl_add_u32 v232, v25, 15, v233
v_lshl_add_u32 v232, {bp}, 10, v232
buffer_load_dwordx4 v[216:219], v232, {SX}, 0 offen offset:2048
buffer_load_dwordx4 v[220:223], v232, {SX}, 0 offen offset:2560
buffer_load_dwordx4 v[224:227], v233, {SGW}, 0 offen
buffer_load_dwordx4 v[228:231], v233, {SGW}, 0 offen offset:512""", tag="gld"))
    def g_calc(self):
        g = I("@wait gld")
        g += I("\n".join("v_dot2_f32_bf16 v%d, v%d, v%d, 0" % (232 + i, 216 + i, 224 + i) for i in range(4)))
        g += I("\n".join("v_dot2_f32_bf16 v%d, v%d, v%d, v%d" % (232 + i, 220 + i, 228 + i, 232 + i) for i in range(4)))
        g += I("v_lshlrev_b32 v236, 2, v236\nv_add_f32 v232, v232, v233\nv_add_f32 v234, v234, v235\nv_add_f32 v232, v232, v234")
        for sh in (1, 2, 4, 8):
            g += I("v_add_f32_dpp v232, v232, v232 row_shr:%d row_mask:0xf bank_mask:0xf bound_ctrl:1" % sh)
        g += I("v_add_f32_dpp v232, v232, v232 row_bcast:15 row_mask:0xa bank_mask:0xf")
        g += I("v_mul_f32 v232, 0xbfb8aa3b, v232\nv_exp_f32 v232, v232\nv_add_f32 v232, 1.0, v232\nv_rcp_f32 v232, v232")
        return single(g)
    def g_store(self):
        return J("s_lshl_b32 {t0}, {bp}, 8\ns_add_u32 {t0}, {t0}, {g}\ns_mov_b32 exec_lo, 0x80000000\ns_mov_b32 exec_hi, 0x80000000", g=WS_G) + \
               J("buffer_store_dword v232, v236, {SWS}, {t0} offen sc1", tag="gst") + I("s_mov_b64 exec, -1")
    def c_loads(self, acc=False):
        return chunks(J(self.creg(acc, """s_cmp_eq_u32 {bp}, 0
s_cselect_b32 {t1}, 32, 64
s_cselect_b64 {mask}, 0xffff, 0
s_and_b32 {t0}, {w}, 1
s_lshl_b32 {t0}, {t0}, 4
v_lshrrev_b32 v27, 2, v0
v_add_u32 v27, {t0}, v27
v_mul_u32_u24 v27, {t1}, v27
v_add_u32 v27, {bp}, v27
v_cmp_eq_u32 vcc, 0, v27
v_sub_u32 v28, 0x800, v27
v_mov_b32 v26, 0x400
s_cmp_lt_u32 {w}, 2
s_cselect_b64 {m1}, -1, 0
v_cndmask_b32 v28, v28, v26, vcc
v_cndmask_b32 v27, v28, v27, {m1}
v_mul_u32_u24 v27, 514, v27
v_and_b32 v28, 48, {l16b}
s_lshl_b32 {t2}, {nt}, 6
s_cselect_b32 {t3}, {t2}, 512
v_add3_u32 v20, v28, v27, {t2}
v_add_u32 v21, {t3}, v27
buffer_load_dwordx4 v[32:35], v20, {SWR}, 0 offen
buffer_load_dwordx4 v[36:39], v20, {SWI}, 0 offen
buffer_load_ushort v40, v21, {SWR}, 0 offen
buffer_load_ushort v41, v21, {SWI}, 0 offen"""), tag="cld"))
    def creg(self, acc, t):
        if not acc: return t
        for a, b in (("v[32:35]", "a[64:67]"), ("v[36:39]", "a[68:71]"), ("v40", "a72"), ("v41", "a73"), ("v20", "v10"), ("v21", "v11")): t = t.replace(a, b)
        return t
    def c_stage(self):
        g = J("""s_mul_i32 {t0}, {w}, 1280
s_add_u32 {t0}, {t0}, {stg}
v_lshrrev_b32 v27, 2, v0
v_lshl_add_u32 v28, v27, 4, {l16b}
v_add_u32 v28, {t0}, v28
s_mov_b32 {t2}, 0x05040100
s_mov_b32 {t3}, 0x07060302
s_mov_b32 s96, 0x11111111
s_mov_b32 s97, 0x11111111
@wait cld""", stg=self.cstg)
        for arr in range(2):
            s_, d_ = 32 + 4 * arr, 192 + 4 * arr
            g += J("v_perm_b32 v{d0}, v{s1}, v{s0}, {t2}\nv_perm_b32 v{d1}, v{s3}, v{s2}, {t2}\nv_perm_b32 v{d2}, v{s1}, v{s0}, {t3}\nv_perm_b32 v{d3}, v{s3}, v{s2}, {t3}",
                   d0=d_, d1=d_ + 1, d2=d_ + 2, d3=d_ + 3, s0=s_, s1=s_ + 1, s2=s_ + 2, s3=s_ + 3)
            g += I("ds_write_b128 v28, %s offset:%d" % (V(d_, 4), arr * 5120), tag="cst")
            g += J("v_and_or_b32 v{d}, v{d}, {hi16}, v{q}", d=d_, q=40 + arr)
        return single(g) + [J("s_mov_b64 exec, {m1}") + I("ds_write_b64 v28, v[192:193] offset:64\nds_write_b64 v28, v[196:197] offset:5184", tag="cst") + I("s_mov_b64 exec, -1")]
    def c_calc(self):
        g = J("""s_cmp_eq_u32 {w}, 0
s_cselect_b32 {t1}, 2, 4
s_lshl_b32 {t0}, {w}, 4
v_and_b32 v26, 3, v0
v_cmp_eq_u32 vcc, {t1}, v26
v_and_b32 v28, 1, v0
v_lshl_add_u32 v28, v28, 3, {t0}
v_lshrrev_b32 v27, 2, v0
v_mul_u32_u24 v27, 80, v27
v_cndmask_b32 v28, v28, 64, vcc
s_mov_b32 {t0}, {stg}
v_add3_u32 v27, v27, v28, {t0}""", stg=self.cstg)
        for th in range(2):
            for arr in range(2):
                for side in range(2):
                    g += I("ds_read_b64_tr_b16 %s, v27 offset:%d" % (V(192 + ((th * 2 + arr) * 2 + side) * 2, 2), arr * 5120 + side * 2560 + th * 1280), tag="crd")
        q = I("@wait crd")
        for th in range(2):
            for r in range(4):
                e = th * 4 + r
                t = 208 + (e % 2) * 4
                for n, (arr, side) in enumerate([(0, 0), (0, 1), (1, 0), (1, 1)]):
                    src = 192 + ((th * 2 + arr) * 2 + side) * 2 + r // 2
                    q += J("v_and_b32 v{d}, {hi16}, v{s}" if r & 1 else "v_lshlrev_b32 v{d}, 16, v{s}", d=t + n, s=src)
                a_, b_, c_, d_ = CO + e, CO + 8 + e, CO + 16 + e, CO + 24 + e
                q += I("v_add_f32 v%d, v%d, v%d\nv_add_f32 v%d, v%d, v%d\nv_sub_f32 v%d, v%d, v%d\nv_sub_f32 v%d, v%d, v%d" % (
                    a_, t, t + 1, b_, t + 2, t + 3, c_, t + 3, t + 2, d_, t, t + 1))
                if e == 0:
                    q += J("""v_cndmask_b32 v{a2}, v{a}, v{t1_}, {mask}
v_cndmask_b32 v{b2}, v{b}, v{t3_}, {mask}
v_cndmask_b32 v{a}, v{a}, v{t0_}, {mask}
v_cndmask_b32 v{b}, v{b}, v{t2_}, {mask}
v_cndmask_b32 v{c}, v{c}, 0, {mask}
v_cndmask_b32 v{d}, v{d}, 0, {mask}""", a2=CA2, b2=CB2, a=a_, b=b_, c=c_, d=d_, t0_=t, t1_=t + 1, t2_=t + 2, t3_=t + 3)
        return chunks(g), single(q)

    GATE_LD = "buffer_load_dword v16, v17, %s, 0 offen sc1" % SDBG
    POLL_LD = "buffer_load_dword v16, v17, %s, s82 offen sc1" % SWS
    def gate_ld(self):
        return single(J("v_min_u32 {pa}, {n}, v0\nv_lshlrev_b32 {pa}, 2, {pa}", n=NCLR - 1) + I(self.GATE_LD, tag="poll"))
    def x1_addr(self):
        return single(J("""s_lshr_b32 {t0}, {nt}, 2
s_lshl_b32 {t0}, {t0}, 8
s_lshl_b32 {t1}, {w}, 15
s_add_u32 {t0}, {t0}, {t1}
s_add_u32 {wo1}, {t0}, {fl}
v_lshrrev_b32 {pa}, 3, v0
v_lshlrev_b32 {pa}, 12, {pa}
v_bfe_u32 v28, v0, 2, 1
v_lshl_add_u32 {pa}, v28, 7, {pa}""", fl=WS_FLAG + 28 * 128))
    def rp_reads(self):
        return [J("v_add_u32 v19, {a}, {l16b}", a=LDS_RPF)] + \
               [I("ds_read_b128 %s, v19 offset:%d" % (A((224 if f < 8 else 160) + 4 * f, 4), f * 1024), tag="rp") for f in range(16)]
    def flag_addr(self):
        return J("s_lshl_b32 {wo0}, {b12}, 5\ns_add_u32 {wo0}, {wo0}, {ni}\ns_lshl_b32 {wo0}, {wo0}, 7\ns_add_u32 {wo0}, {wo0}, {fl}", fl=WS_FLAG)
    def set_flag(self):
        return I("v_mov_b32 v24, 1\n@wait pub\ns_mov_b64 exec, 1") + J("buffer_store_dword v24, v0, {SWS}, {wo0} offen sc1") + I("s_mov_b64 exec, -1")

    def prologue(self):
        p = []
        if self.prof: p += I("%s s[100:101]" % self.clk(), raw=True)
        p += J("""s_load_dwordx16 s[48:63], s[0:1], 0
s_cmp_ge_u32 s2, 256
s_cbranch_scc1 L_end
s_load_dwordx4 s[64:67], s[0:1], 64
s_load_dwordx2 s[68:69], s[0:1], 80
s_getpc_b64 {m1}
L_pc:
v_lshlrev_b32 v24, 3, v0
v_readfirstlane_b32 {w}, v0
s_lshr_b32 {loc}, s2, 3
v_lshl_add_u32 v24, {loc}, 11, v24
v_min_u32 v24, L_end-L_pc, v24
global_load_dword v31, v24, {m1}
v_and_b32 v0, 63, v0
v_and_b32 {l16}, 15, v0
v_lshrrev_b32 {hi}, 4, v0
s_lshr_b32 {w}, {w}, 6
s_and_b32 {xcd}, s2, 7
s_and_b32 {l3}, {loc}, 3
s_lshr_b32 {nt}, {loc}, 2
s_lshr_b32 {xn}, {xcd}, 1
s_lshl_b32 {bp}, {xcd}, 2
s_add_u32 {bp}, {bp}, {l3}
s_and_b32 {b12}, {bp}, 7
s_lshl_b32 {b12}, {b12}, 2
s_add_u32 {b12}, {b12}, {w}
s_lshl_b32 s76, {b12}, 10
v_lshrrev_b32 v25, 3, v0
v_and_b32 v24, 7, v0
v_xor_b32 v24, v24, {hi}
v_lshlrev_b32 v24, 4, v24
v_lshl_add_u32 {x}, v25, 15, v24
v_xor_b32 v18, 0x40040, {x}
v_subrev_u32 v18, 0x400, v18
s_lshl_b32 {ring}, {w}, 14
s_add_u32 {ring}, {ring}, 0x10000""")
        if "probe" in self.kw:
            k = self.kw["probe"]
            p += I("s_waitcnt lgkmcnt(0) vmcnt(0)\ns_mov_b64 s[44:45], s[%d:%d]\ns_mov_b32 s46, 0x100000\ns_mov_b32 s47, 0x20000" % (48 + 2 * k, 49 + 2 * k))
            p += J("s_lshl_b32 s3, s2, 2\ns_add_u32 s3, s3, {w}\ns_lshl_b32 s3, s3, 7\nv_mov_b32 v26, 0\ns_memrealtime s[96:97]\ns_waitcnt lgkmcnt(0)")
            if "pbw" in self.kw:
                p += I("s_mov_b32 s46, 0x10000000\ns_lshl_b32 s3, s3, 7\ns_add_u32 s3, s3, %d\nv_lshlrev_b32 v26, 4, v0" % (self.kw["pbw"] << 20))
                for i in range(16):
                    op = "buffer_store_dwordx4 v[128:131], v26, s[44:47], s3 offen sc1" if self.o("pst", 0) else "buffer_load_dwordx4 v[%d:%d], v26, s[44:47], s3 offen" % (128 + 4 * i, 131 + 4 * i)
                    p += I(op + "\ns_add_u32 s3, s3, 1024")
                p += I("s_waitcnt vmcnt(0)")
            else:
                for i in range(8): p += I("buffer_load_dword v27, v26, s[44:47], s3 offen\ns_waitcnt vmcnt(0)\ns_add_u32 s3, s3, 0x20000")
            p += I("s_memrealtime s[98:99]\ns_waitcnt lgkmcnt(0)\ns_sub_u32 s98, s98, s96\ns_add_u32 s100, s100, s98")
        p += self.srd_const(SX, 2097152 + 2048)
        p += J("s_cmp_eq_u32 {nt}, 7\ns_cbranch_scc1 L_dft")
        return p
    def common2(self):
        p = J("v_lshlrev_b32 {l16b}, 4, v0\ns_lshl_b32 {lw}, {loc}, 2\ns_add_u32 {lw}, {lw}, {w}\ns_mul_i32 s3, {xcd}, 112\ns_add_u32 {lw}, {lw}, s3\ns_lshl_b32 {lw}, {lw}, 11\ns_mov_b32 {hi16}, 0xffff0000")
        for nm, lo, sz in ((SWS, 68, 0x10000000), (SDBG, 66, 256), (SWD, 60, 1792 * 1024), (SOUT, 64, 2097152), (SWR, 50, 2048 * 514), (SWI, 52, 2048 * 514), (SGW, 62, 1024)):
            p += self.srd(nm, lo, sz) + self.srd_const(nm, sz)
        return p

    def p12f(self):
        self.ffn = True; self.cstg = LDS_RPF
        def wl(du):
            gs = []
            if du == 1: gs += single(J("s_add_u32 {k}, {k}, 1\ns_and_b32 {k}, {k}, 7"))
            gs += single(J("s_mul_i32 {wo0}, {k}, {c}\ns_add_u32 {wo0}, {wo0}, {wb}\ns_add_u32 {wo1}, {wo0}, {c2}", c=64 * 3584, c2=32 * 3584 - 2048))
            gs.append(J("s_add_u32 m0, {lw4}, {o}", o=(du % 4) * 16384))
            for h in range(2):
                for mat in range(2):
                    gs.append(J("buffer_load_dwordx4 {vw}, {srd}, {so} offen offset:{o} lds", tag="w%d" % du, srd=(SWG, SWU)[mat], so=NM["wo%d" % h], o=(2 * h + mat) * 1024))
            return gs
        def xl(du):
            gs = []
            if du >= 2: gs += single(J("s_add_u32 {k}, {k}, 1\ns_and_b32 {k}, {k}, 7"))
            gs += single(J("v_lshl_add_u32 {xr}, {k}, 7, {x}\nv_lshl_add_u32 {xr2}, {k}, 7, v18"))
            for m in range(4):
                if m % 2 == 0: gs.append(J("s_add_u32 m0, {ring}, {o}", o=(du % 2) * 8192 + m * 2048))
                for e in range(2):
                    g = J("buffer_load_dwordx4 {r}, {SX}, s{so} offen offset:{o} lds", tag="x%d" % du, r=NM[("xr", "xr2")[e]], so=76 + m, o=((m & 1) * 2 + e) * 1024)
                    if du >= 2 and m == 0 and e == 0: g = I("@need xf%d" % (du - 2)) + g
                    gs.append(g)
            return gs
        def xf(du):
            return [I("@wait x%d" % du)] + [I("ds_read_b128 %s, v%d offset:%d" % (A((du % 4) * 32 + h * 16 + m * 4, 4), vXA[h], (du % 2) * 8192 + m * 2048), tag="xf%d" % du)
                                           for h in range(2) for m in range(4)]
        p = J("""s_and_b32 {t0}, {nt}, {mp}
s_lshl_b32 {t0}, {t0}, 19
s_add_u32 s76, s76, {t0}
s_xor_b32 s77, s76, 0x80000
s_xor_b32 s79, s76, 0x180000
s_xor_b32 s78, s76, 0x100000
s_add_u32 s76, s76, 0x800
s_add_u32 s78, s78, 0x800
s_lshl_b32 {k}, {xcd}, 2
s_add_u32 {k}, {k}, {xcd}
s_and_b32 {k}, {k}, {km}
s_mul_i32 {ni}, {xn}, 7
s_add_u32 {ni}, {ni}, {nt}
s_mul_i32 {wb}, {w}, {c}
s_lshl_b32 {t0}, {ni}, 7
s_add_u32 {wb}, {wb}, {t0}
v_mul_u32_u24 v24, 3584, v25
s_and_b32 {t0}, {w}, 1
s_lshl_b32 {t0}, {t0}, 1
v_and_or_b32 v25, {hi}, 1, {t0}
v_bfe_u32 v26, v0, 1, 2
v_xor_b32 v25, v25, v26
v_lshl_add_u32 v24, v25, 5, v24
v_and_b32 v25, 1, v0
v_lshl_add_u32 {vw}, v25, 4, v24
s_lshl_b32 {lw4}, {w}, 12""", c=8 * 3584, mp=self.o("mp", 3), km=self.o("km", 6))
        kr = self.o("kr", 2)
        if kr == 1: p += J("s_lshl_b32 {k}, {l3}, 1\ns_add_u32 {k}, {k}, {nt}\ns_and_b32 {k}, {k}, 7")
        if kr == 2: p += J("s_xor_b32 {t0}, {l3}, {nt}\ns_and_b32 {t0}, {t0}, 1\ns_lshl_b32 {t0}, {t0}, 2\ns_lshl_b32 {k}, {xcd}, 1\ns_add_u32 {k}, {k}, {xn}\ns_and_b32 {k}, {k}, 3\ns_add_u32 {k}, {k}, {t0}")
        if kr == 3: p += J("s_add_u32 {t0}, {l3}, {nt}\ns_and_b32 {t0}, {t0}, 3\ns_lshl_b32 {t0}, {t0}, 1\ns_add_u32 {k}, {xcd}, {xn}\ns_and_b32 {k}, {k}, 1\ns_add_u32 {k}, {k}, {t0}")
        p += self.srd_const(SWG, 512 * 3584) + self.srd_const(SWU, 512 * 3584 + 1024)
        w0 = wl(0); x0 = xl(0)
        p += flat(w0[:4] + x0[:2]) + self.srd(SWG, 56, 0) + self.srd(SWU, 58, 0, back=1024) + self.srd(SX, 48, 0, back=2048)
        p += flat(w0[4:]) + flat(x0[2:])
        p += self.common2()
        p += self.stamp(0)
        l = self.lab("noclr")
        p += J("s_cmp_lt_u32 s2, {n}\ns_cselect_b32 {clr}, {w}, 1", n=NCLR) + I("\n".join("v_accvgpr_write_b32 a%d, 0" % (180 + i) for i in range(4)))
        clear = J("s_cmp_ge_u32 s2, {n}", n=NCLR) + J("""s_cbranch_scc1 {l}
s_lshl2_add_u32 s3, s2, {w}
s_lshl_b32 s3, s3, 10
s_add_u32 s3, s3, {fl}
buffer_store_dwordx4 a[180:183], {l16b}, {SWS}, s3 offen sc1
{l}:""", raw=True, l=l, fl=WS_FLAG)
        st = [J("""v_lshrrev_b32 v24, 1, {l16}
v_xor_b32 v24, v24, {hi}
v_lshlrev_b32 v24, 4, v24
v_lshl_add_u32 v24, {l16}, 7, v24
v_add_u32 v22, {ring}, v24
v_xor_b32 v23, 64, v22
v_lshlrev_b32 v24, 12, {hi}
v_bfe_u32 v25, v0, 2, 2
v_lshl_add_u32 v24, v25, 7, v24
v_and_b32 v25, 3, v0
v_lshl_add_u32 v24, v25, 3, v24
v_bfe_u32 v25, v0, 3, 2
v_lshl_add_u32 v6, v25, 5, v24
v_xor_b32 v7, 32, v6
v_xor_b32 v8, 64, v6
v_xor_b32 v9, 0x60, v6""")]
        cl, gl = self.c_loads(), self.g_loads()
        cpos = self.o("cpos", 2)
        gwt = [J("buffer_load_dword a171, {l16b}, {SGW}, 0 offen")]
        st = single(st) + cl[:-4] + self.gen_R(0, 128) + self.gen_R(1, 160)
        l1 = wl(1) + xl(1); n1 = self.o("n1", 15)
        p += flat(weave(st, l1[:n1], self.o("l1pos", 100), len(st)))
        p += I("@wait w0 x0\ns_barrier")
        p += self.stamp(1)
        units = {0: "E0 L0 E1 L1 E2 L2 E3 E4 L3 E5 E6 L4 E7 L5 L6 L7", 1: "E0 L0 E1 L1 E2 L2 E3 L3 E4 E5 L4 E6 E7 L5 L6 L7",
                 2: "E0 L0 E1 L1 E2 L2 E3 L3 E4 E5 L4 E6 L5 E7 L6 L7", 3: "E0 L0 E1 L1 E2 L2 E3 L3 E4 L4 E5 L5 E6 E7 L6 L7"}[self.o("us", 0)].split()
        seq = [(2 * int(u[1]) + h, tau + (4 if u[0] == "L" else 0)) for u in units for h in range(2) for tau in range(4)]
        U = dict((u, 32 * i) for i, u in enumerate(units))
        LA = 5
        def rd(k):
            n, tau = seq[k]
            off = ((n // 2) % 4) * 16384 + ((n & 1) * 2 + (tau & 1)) * 1024
            return [I("ds_read_b64_tr_b16 %s, v%d offset:%d" % (A(128 + 4 * (k % 8) + 2 * j4, 2), vWT[tau // 2], off + 512 * j4), tag="f%d" % k) for j4 in range(2)]
        x0 = xf(0)
        p += flat(rd(0) + x0[:5] + rd(1) + rd(2) + x0[5:] + rd(3) + rd(4))
        mf = []
        for k, (n, tau) in enumerate(seq):
            for m in range(4):
                acc = V(128 + (tau * 4 + m) * 4, 4)
                mf.append(I("%s %s, %s, %s, %s" % (MF, acc, A(128 + 4 * (k % 8), 4), A(((n // 2) % 4) * 32 + (n & 1) * 16 + m * 4, 4), acc if n else "0")))
        G = Gaps(mf)
        for k in range(128):
            if k + LA < 128:
                r = rd(k + LA); G.put(4 * k, r[0]); G.put(4 * k + 2, r[1])
            if k % 2 == 1 and k + 1 < 128: G.put(4 * k + 3, I("@wait f%d" % (k + 2)))
        bar = {}
        for du in range(1, 8):
            bar[du] = U["E%d" % du] - 4 * LA - 1
            G.put(bar[du], I("@wait w%d rtab\ns_barrier" % du))
        lead = G.stream(l1[n1:], 0, 12, spread=False) if l1[n1:] else 0
        aa = [[0, 52, 104, 156, 208, 260], [0, 60, 118, 172, 224, 276], [0, 64, 124, 180, 234, 288], [0, 64, 128, 192, 250, 306], [0, 64, 128, 192, 256, 320]][self.o("aa", 1)]
        aa = dict(zip(range(2, 10), aa + [aa[-1] + 54, aa[-1] + 108]))
        xfe = {}
        for du in range(1, 8):
            e = min(aa[du + 2], U["E%d" % du]) - 2
            assert du < 4 or e - 18 >= U["L%d" % (du - 4)] + 32
            xfe[du] = G.stream(xf(du), e - 18, e)
        last = lead
        for du in range(2, 8):
            a0 = max(aa[du], last + 1)
            last = G.stream(([clear] if du == self.o("clrdu", 3) else []) + xl(du), a0, a0 + 36)
            w0_ = last + 1
            if du >= 4: w0_ = max(w0_, min(b for b in bar.values() if b >= U["L%d" % (du - 4)] + 32) + 1)
            tr_ = {3: [0], 4: [1], 5: [2, 3], 6: [4, 5], 7: [6, 7]}.get(du, [])
            cd = self.o("cdu", 2)
            ex = [] if cpos != 2 else [cl[-4], cl[-2]] + gwt if du == cd else [cl[-3], cl[-1]] if du == cd + 1 else []
            if cpos == 3 and du == cd: ex = cl[-4:] + gwt
            last = G.stream(wl(du) + ex + [g for r in tr_ for g in self.touch(r)] + (self.touch3() if du == self.o("t3du", 6) else []) + (self.retouch() if du == 7 else []), w0_, w0_ + 16 + 4 * len(tr_))
            assert last < bar[du] - 4, (du, last, bar[du])
        vend = last
        l = self.lab("noann")
        ann = J("s_cmp_lg_u32 {clr}, 0") + J("""s_cbranch_scc1 {l}
v_mov_b32 v27, 1
s_lshl_b32 s3, s2, 2
s_mov_b64 exec, 1
buffer_store_dword v27, v0, {SDBG}, s3 offen sc1
s_mov_b64 exec, -1
{l}:""", raw=True, l=l)
        G.put(bar[self.o("clrdu", 3)] + 2, ann)
        G.stream(self.rp_reads(), 130, 230)
        e0 = U["E7"] + 32
        e = G.stream(self.gate_ld() + (cl[-4:] if cpos == 0 else []), vend + 1, vend + 12)
        e1 = vend
        d0 = max(e, e1, xfe[6] + 4, vend + self.o("d0gap", 40))
        e = G.stream(self.D(0, I("@need xf6")) + self.D(1), d0, d0 + 32)
        d2 = max(e + 1, xfe[7] + 4)
        e = G.stream(self.D(2, I("@need xf7")) + self.D(3), d2, d2 + 32)
        G.stream(single(J("s_mul_i32 {t2}, {b12}, 56\ns_lshl_b32 {t0}, {ni}, 1\ns_add_u32 {t2}, {t2}, {t0}\ns_lshl_b32 {t2}, {t2}, 2\ns_and_b32 {t0}, {nt}, {mp}\ns_add_u32 {t2}, {t2}, {t0}\ns_lshl_b32 {t2}, {t2}, 10", mp=self.o("mp", 3)) + self.flag_addr()) +
                 [I("@wait poll") + self.spin(self.GATE_LD)] + self.x1_addr() + self.setupA(), e1 + 1, e0)
        late1 = self.o("x1late", 1)
        if not late1:
            G.put(self.o("xp", 500), I(self.POLL_LD, tag="poll"))
            G.stream(single(self.x1_pre()[:-1]), 490, 510)
        nin = self.o("nin", 2)
        t0_ = max(e + 1, U["L4"] + 32 if nin > 2 else 0, d0 + self.o("t0gap", 70))
        t0_ = min(t0_, 470)
        G.stream(self.TT(0, nin) + self.DD(4, 4 + nin), t0_, 506)
        gs_ = 18 - self.o("gsplit", 3)
        G.stream(chunks(self.wd_setup()) + chunks(self.gen_G(42, False)[:gs_]), 4, e0, spread=False)
        def epi(u, m, pk):
            g0, u0, g1_, u1 = [128 + ((4 * u + k) * 4 + m) * 4 for k in range(4)]
            g = []
            for gg in (g0, g1_): g += I("\n".join("v_max_f32 v%d, 0, v%d" % (gg + r, gg + r) for r in range(4)))
            for gg, uu in ((g0, u0), (g1_, u1)):
                if pk: g += I("v_pk_mul_f32 %s, %s, %s\nv_pk_mul_f32 %s, %s, %s" % (V(gg, 2), V(gg, 2), V(uu, 2), V(gg + 2, 2), V(gg + 2, 2), V(uu + 2, 2)))
                else: g += I("\n".join("v_mul_f32 v%d, v%d, v%d" % (gg + r, gg + r, uu + r) for r in range(4)))
            g += cvt(u0, g0, g0 + 1) + cvt(u0 + 1, g0 + 2, g0 + 3) + cvt(u0 + 2, g1_, g1_ + 1) + cvt(u0 + 3, g1_ + 2, g1_ + 3)
            return J("s_xor_b32 {t3}, {t2}, {o}", o=u * 4096 + m * 1024) + g + J("buffer_store_dwordx4 {r}, {l16b}, {SWS}, {t3} offen sc1", tag="pub", r=V(u0, 4))
        G.stream(single([epi(0, m, False) for m in range(4)]), e0 + 2, min(512, e0 + self.o("espan", 84)))
        for i in range(8): G.put(64 * i, self.stamp(i, 1))
        G.put(480, self.stamp(8, 1)); G.put(511, self.stamp(9, 1))
        p += G.out()
        p += self.stamp(2)
        ep = [epi(1, m, True) for m in range(4)]
        if not late1: p += self.x1_pre()[-1:] + self.x1_fetch()
        p += flat(weave([[]] + ep, self.TT(nin, 4)))
        if late1: p += I(self.POLL_LD, tag="poll")
        p += self.stamp(3) + self.stamp(0, 3)
        n1_ = min(8, 4 + nin + self.o("nw1", 1))
        p += flat(self.c_stage()) + self.stamp(1, 3) + flat(weave(self.gen_G(42, True)[gs_:] + gl, self.DD(4 + nin, n1_)))
        return p + self.tail(True, 4, n1_)

    def p12d(self):
        self.ffn = False; self.cstg = LDS_RPF
        def dma(Q, m):
            gs = [J("s_add_u32 m0, {ring}, {o}", o=m * 4096)]
            if m == 0:
                gs = single(J("v_lshl_add_u32 {xr}, {k}, 7, {x}\nv_lshl_add_u32 {xr2}, {k}, 7, {vw}")) + gs
                if Q: gs = single(J("s_add_u32 {k}, {k}, 1\ns_and_b32 {k}, {k}, 3")) + gs
            for hf in range(2):
                for e in range(2):
                    g = J("buffer_load_dwordx4 {r}, {srd}, s{so} offen offset:{o} lds", tag="x%d_%d" % (Q, m), r=NM[("xr", "xr2")[e]], srd=(SX, SWG)[hf], so=76 + m, o=(2 * hf + e) * 1024)
                    if Q and not hf and not e: g = I("@need xf%d_%d" % (Q - 1, m)) + g
                    gs.append(g)
            return gs
        def raw(Q, m):
            return [I("@wait x%d_%d" % (Q, m))] + [I("ds_read_b128 %s, v%d offset:%d" % (A(16 * m + 4 * f, 4), vWT[f], m * 4096), tag="xf%d_%d" % (Q, m)) for f in range(4)]
        def fold(Q, m):
            return [I("%s %s, v[20:23], %s, 0" % (MF, V(48 + 4 * f, 4), A(16 * m + 4 * f, 4))) for f in range(4)]
        def fcv(Q, m):
            return [cvt(64 + (Q % 2) * 32 + (q // 4) * 16 + m * 4 + q % 4, 48 + 2 * q, 49 + 2 * q) for q in range(8)]
        p = I("@reset") + J("""s_add_u32 s76, s76, 0x800
s_add_u32 s77, s76, 0x80000
s_add_u32 s78, s76, 0x100000
s_add_u32 s79, s76, 0x180000
s_add_u32 {ni}, {xn}, 28
s_and_b32 {k}, {xcd}, {km}
s_mov_b32 {wb}, {k}
v_mov_b32 {vw}, v18""", km=self.o("km", 6) & 2)
        p += self.srd_const(SWG, 2097152 + 3584) + I("s_waitcnt lgkmcnt(0)") + self.srd(SX, 48, 0, back=2048) + self.srd(SWG, 48, 0, back=3584)
        p += flat([dma(0, m) for m in range(3)])
        p += self.common2()
        p += self.stamp(0)
        tg, sel, late = self.gen_T()
        cl = self.c_loads(True)
        tg = tg[:1] + [sel + flat(cl[:-4])] + tg[1:]
        r0 = self.o("r0", 4)
        place(tg, r0 - 1, dma(0, 3))
        for m in range(3):
            place(tg, r0 + 4 * m, raw(0, m)); place(tg, r0 + 4 * m + 1, dma(1, m))
        for i, k in enumerate((1, 3, 4, 5, 8, 9, 12, 13, 17)): place(tg, k, self.stamp(i, 4))
        p += flat(tg)
        p += I("@wait ttab\ns_barrier")
        p += self.stamp(1)
        seq = [(2 * Q + h, tau) for Q in range(3) for h in range(2) for tau in range(8)] + [(6 + h, 2 * tp + tt) for tp in range(4) for tt in range(2) for h in range(2)]
        def rd(k):
            n, tau = seq[k]
            return I("ds_read_b128 %s, %s offset:%d" % (V(32 + 4 * (k % 4), 4), NM["l16b"], n * 8192 + tau * 1024), tag="f%d" % k)
        p += rd(0) + rd(1) + rd(2)
        p += flat(fold(0, 0) + raw(0, 3) + fcv(0, 0) + fold(0, 1) + dma(1, 3) + fcv(0, 1) + fold(0, 2) + fcv(0, 2) + fold(0, 3) + fcv(0, 3))
        p += self.stamp(9, 4)
        def mm(k, m):
            n, tau = seq[k]; acc = V(128 + (tau * 4 + m) * 4, 4)
            return I("%s %s, %s, %s, %s" % (MF, acc, V(64 + ((n // 2) % 2) * 32 + (n & 1) * 16 + m * 4, 4), V(32 + 4 * (k % 4), 4), acc if n else "0"))
        mf = []; at = {}
        for k in range(48):
            Q, i = divmod(k, 16)
            at[k] = len(mf); mf += [mm(k, m) for m in range(4)]
            if i % 4 == 1:
                at["fold", Q + 1, i // 4] = len(mf); mf += fold(Q + 1, i // 4)
        PKR = (64, 72, 80, 88)
        def s2(t):
            return [I("%s %s, %s, %s, %s" % (MF, V(128 + 16 * t + 4 * sg, 4), V(PKR[t % 4] + 4 * v, 4), A(224 + (2 * sg + v) * 4, 4), V(128 + 16 * t + 4 * sg, 4) if v else "0"))
                    for v in range(2) for sg in range(4)]
        for tp in range(5):
            if tp < 4:
                for k in range(48 + 4 * tp, 52 + 4 * tp):
                    at[k] = len(mf); mf += [mm(k, m) for m in range(4)]
                at["done", tp] = len(mf)
            if tp:
                at["s2", tp - 1] = len(mf); mf += s2(2 * tp - 2) + s2(2 * tp - 1)
        G = Gaps(mf)
        for k in range(64):
            if k + 3 < 64: G.put(at[k], rd(k + 3))
            if k: G.put(at[k] - 1, I("@wait f%d" % k))
        for Q in range(1, 4):
            for m in range(4):
                f = at["fold", Q, m]
                G.stream(raw(Q, m), max(0, f - 12), f - 3, spread=False)
                G.put(f - 1, I("@wait xf%d_%d" % (Q, m)))
                G.stream(fcv(Q, m), f + 5, f + 12, spread=False)
                if Q < 3: G.stream(dma(Q + 1, m) + (cl[-4:] if (Q, m) == (self.o("dcq", 2), 3) else []), f, f + 8)
        G.stream(single(J("s_mul_i32 {wb}, {wb}, 0x40004000") + flat([J("v_xor_b32 v{r}, {wb}, v{r}", r=20 + i) for i in range(4)])), at["fold", 1, 3] + 4, at["fold", 2, 0] - 2, spread=False)
        G.stream(single(late), 2, 156)
        rr = [I("@wait r64f\ns_barrier"), J("v_add_u32 v24, {a}, {l16b}", a=LDS_STG)] + [I("ds_read_b128 %s, v24 offset:%d" % (A(224 + 4 * f, 4), f * 1024)) for f in range(8)]
        pre = J("""v_lshrrev_b32 v24, 1, {l16}
v_lshlrev_b32 v24, 16, v24
v_lshl_add_u32 v24, {hi}, 5, v24
v_and_b32 v25, 1, v0
v_lshl_add_u32 {xr}, v25, 4, v24
s_lshr_b32 s76, {xn}, 1
s_lshl_b32 s76, s76, 15
s_lshl_b32 {t0}, {b12}, 8
s_add_u32 s76, s76, {t0}
s_and_b32 {t0}, {xn}, 1
s_lshl_b32 {t0}, {t0}, 7
s_add_u32 s76, s76, {t0}
s_add_u32 s76, s76, {x1}
s_add_u32 s77, s76, 0x80000
s_add_u32 s78, s76, 0x100000
s_add_u32 s79, s76, 0x180000""", x1=WS_X1) + self.flag_addr()
        G.stream(rr + single(pre) + self.gate_ld(), 170, 250)
        def cv(t): return [cvt(PKR[t % 4] + i, 128 + 16 * t + 2 * i, 129 + 16 * t + 2 * i) for i in range(8)]
        def st(tp):
            gs = []
            for sg in range(4):
                o = 48 + 4 * sg; d0 = 128 + 32 * tp + 4 * sg; d1 = d0 + 16
                gs += [cvt(o, d0, d0 + 1), cvt(o + 1, d0 + 2, d0 + 3), cvt(o + 2, d1, d1 + 1), cvt(o + 3, d1 + 2, d1 + 3),
                       J("buffer_store_dwordx4 {r}, {xr}, {SWS}, s{so} offen sc1", tag="pub", r=V(o, 4), so=76 + sg)]
                if tp < 3: gs.append(I("s_add_u32 s%d, s%d, 8192" % (76 + sg, 76 + sg)))
            return gs
        for tp in range(4):
            G.stream(cv(2 * tp) + cv(2 * tp + 1), at["done", tp] - 4, at["s2", tp] - 1, spread=False)
        for tp in range(3):
            G.stream(st(tp), at["s2", tp] + 17, at["s2", tp + 1] + 15)
        for i in range(10): G.put(min(40 * i, len(G) - 1), self.stamp(i, 1))
        p += G.out()
        p += self.stamp(2)
        p += flat(st(3))
        p += self.stamp(3)
        p += self.spin(self.GATE_LD)
        p += I("\n".join("v_accvgpr_read_b32 v%d, a%d" % (32 + i, 64 + i) for i in range(10))) + self.wd_setup() + flat(self.gen_R(0, 128) + self.gen_R(1, 160))
        p += self.set_flag()
        p += self.stamp(4)
        p += I("@waitlg0\ns_barrier")
        gG = self.gen_G(128, True)
        p += flat(weave(self.rp_reads() + self.x1_addr() + gG[:8], self.DD(0, 2)))
        late1 = self.o("x1late", 1)
        if not late1: p += I(self.POLL_LD, tag="poll")
        p += flat(weave(gG[8:] + self.setupA(), self.DD(2, 4)))
        p += I("@wait rp\ns_barrier")
        if not late1: p += self.x1_pre() + self.x1_fetch()
        p += flat(weave(self.c_stage() + self.g_loads() + self.TT(0, 2), self.DD(4, 6)))
        if late1: p += I(self.POLL_LD, tag="poll")
        return p + self.tail(False, 2, 6)

    def touch(self, r):
        if r >= self.o("touch", 1): return []
        gs = [I("v_lshlrev_b32 v17, 5, v0")] if r == 0 else [J("s_add_u32 {lw}, {lw}, 0x38000"), J("s_sub_u32 s3, {lw}, 0x1c0000\ns_cselect_b32 {lw}, {lw}, s3")]
        return gs + [J("buffer_load_dword a{d}, v17, {SWD}, {lw} offen", d=160 + r)]
    def touch3(self):
        if not self.o("touch3", 1): return []
        return [J("s_lshr_b32 s3, s2, 3\ns_lshl2_add_u32 s3, s3, {w}\ns_lshl_b32 s3, s3, 14"), J("v_and_b32 v28, 60, v0"), J("v_lshlrev_b32 v28, 8, v28"),
                J("buffer_load_dword a172, v28, {SWD}, s3 offen offset:384")]
    def retouch(self):
        if not self.o("retouch", 1): return []
        l = self.lab("pc")
        return [J("s_getpc_b64 {m2}\n{l}:\ns_lshr_b32 s3, s2, 3\ns_lshl_b32 s3, s3, 2", l=l)] + single(J("""s_add_u32 s3, s3, {w}
s_lshl_b32 s3, s3, 9
v_lshl_add_u32 v28, v0, 3, s3
v_min_u32 v28, L_end-{l}, v28
global_load_dword a170, v28, {m2}""", l=l))

    def x1_pre(self):
        return J("""s_lshl_b32 {t0}, {bp}, 3
s_add_u32 {t0}, {t0}, {nt}
s_lshl_b32 {t0}, {t0}, 13
s_lshl_b32 {t1}, {w}, 11
s_add_u32 {t0}, {t0}, {t1}
s_add_u32 {t0}, {t0}, {x1}
s_add_u32 m0, {t1}, {stg}""", x1=WS_X1, stg=LDS_STG)

    def x1_fetch(self):
        return self.spin(self.POLL_LD) + J("buffer_load_dwordx4 {l16b}, {SWS}, {t0} offen sc1 lds\nbuffer_load_dwordx4 {l16b}, {SWS}, {t0} offen offset:1024 sc1 lds", tag="x1") + self.stamp(5)
    def setupA(self):
        return single(J("""s_lshl_b32 s76, {nt}, 1
s_lshr_b32 {t1}, {w}, 1
s_add_u32 s76, s76, {t1}
s_lshr_b32 {t1}, {bp}, 3
s_lshl_b32 {t1}, {t1}, 4
s_add_u32 s76, s76, {t1}
s_lshl_b32 s76, s76, 3
s_and_b32 {t1}, {bp}, 7
s_add_u32 s76, s76, {t1}
s_lshr_b32 {t1}, {bp}, 2
s_xor_b32 {t1}, {t1}, {w}
s_and_b32 {t1}, {t1}, 1
s_lshl1_add_u32 s76, s76, {t1}
s_lshl_b32 s76, s76, 6
s_add_u32 s76, s76, {u}
s_add_u32 s77, s76, 0x80000
s_add_u32 s78, s76, 0x100000
s_add_u32 s79, s76, 0x180000
v_lshrrev_b32 v24, 1, {l16}
v_lshlrev_b32 v26, 16, v24
v_and_b32 v25, 1, v0
v_lshl_add_u32 v26, v25, 5, v26
v_lshl_add_u32 {xr}, {hi}, 3, v26
s_lshl2_add_u32 {t0}, {nt}, {w}
v_and_or_b32 v28, v0, 7, {t0}
v_cmp_eq_u32 vcc, 0, v28
v_bfe_u32 v28, v0, 3, 1
v_xor_b32 v28, 1, v28
v_lshl_or_b32 v18, v28, 31, 1.0
s_lshl_b32 {t0}, {w}, 5
s_add_u32 {t0}, {t0}, {stg}
v_lshrrev_b32 v24, 3, v0
v_cndmask_b32 v18, v18, 0, vcc
v_lshl_add_u32 v19, v24, 8, {t0}
v_lshl_add_u32 v19, v25, 7, v19
v_bfe_u32 v25, v0, 1, 2
v_lshl_add_u32 v19, v25, 3, v19""", u=WS_U, stg=LDS_STG))
    def setupB(self):
        return single(J("""s_mul_i32 {hs}, {bp}, 56
s_mul_i32 {t0}, {w}, 14
s_add_u32 {hs}, {hs}, {t0}
s_lshl_b32 {hs}, {hs}, 12
s_add_u32 {he}, {hs}, {hl}
s_lshl_b32 {ho}, {rot}, 12
s_add_u32 {ho}, {ho}, {hs}
s_mul_i32 {t0}, {w}, 7
s_lshl_b32 {t1}, {bp}, 5
s_add_u32 {t0}, {t0}, {t1}
s_lshl_b32 {t0}, {t0}, 7
s_add_u32 {wo1}, {t0}, {fl}
v_lshrrev_b32 v24, 3, v0
v_min_u32 {pa}, 6, v24
v_lshlrev_b32 {pa}, 7, {pa}
s_lshl3_add_u32 {wo0}, {bp}, {nt}
s_lshl_b32 {wo0}, {wo0}, 7
s_add_u32 {wo0}, {wo0}, {cnt}
v_mov_b32 v19, 1
v_add_u32 v9, {r64}, {l16b}""", hl=14 * 4096, fl=WS_FLAG, r64=LDS_R64I, cnt=WS_CNT))
    def setupC(self):
        return single(J("""s_lshl_b32 {wo1}, {w}, 13
s_add_u32 {wo1}, {wo1}, {cnt}
v_lshlrev_b32 {pa}, 7, v0
s_lshl_b32 {t2}, {bp}, 16
s_lshl_b32 {t3}, {w}, 14
s_add_u32 {t2}, {t2}, {t3}
s_add_u32 {t2}, {t2}, {u}
s_lshl_b32 {t0}, {bp}, 8
s_add_u32 {t0}, {t0}, {g}
v_lshrrev_b32 v24, 1, {l16}
v_lshlrev_b32 v24, 7, v24
v_and_b32 v25, 1, v0
v_lshl_add_u32 v24, v25, 5, v24
v_lshrrev_b32 v27, 1, {hi}
v_bfe_u32 v28, v0, 3, 1
v_xor_b32 v28, v27, v28
v_lshl_add_u32 v24, v28, 6, v24
v_and_b32 v26, 1, {hi}
v_lshl_add_u32 {vw}, v26, 4, v24
v_lshrrev_b32 v24, 3, v0
v_xor_b32 v25, v24, v0
v_and_b32 v25, 7, v25
v_lshlrev_b32 v24, 15, v24
v_lshl_add_u32 {x}, v25, 4, v24
v_lshl_add_u32 v24, {w}, 1, v27
v_xor_b32 v24, v24, v0
v_and_b32 v24, 7, v24
v_lshlrev_b32 v24, 4, v24
v_lshl_add_u32 v24, {l16}, 7, v24
v_lshl_add_u32 v24, v26, 3, v24
v_add_u32 v6, {stg}, v24
s_lshl_b32 {t1}, {w}, 11
s_add_u32 {t1}, {t1}, {stg}
v_add_u32 v7, {t1}, {l16b}
v_lshlrev_b32 v8, 4, {l16}
s_lshl3_add_u32 s76, {bp}, {nt}
s_lshl_b32 s76, s76, 7
s_lshl_b32 {t1}, {w}, 19
s_add_u32 s76, s76, {t1}
s_add_u32 s77, s76, 0x40000""", u=WS_U, g=WS_G, stg=LDS_STG, cnt=WS_CNT))
    def tail(self, ffn, nxt_t, nxt_d):
        st = dict(t=nxt_t, d=nxt_d)
        def pump(nd):
            gs = []
            for _ in range(nd):
                if st["d"] >= 14: break
                nx = self.loc(min(13, st["d"] + 1))[1]; pv = self.loc(st["d"])[1]
                while st["t"] <= max(-1 if nx is None else nx, -1 if pv is None else pv):
                    gs += self.T(st["t"]); st["t"] += 1
                gs += self.D(st["d"]); st["d"] += 1
            return gs
        def W(a, b): return flat(weave(a, b)) if b else flat(a)
        c1, c2 = self.c_calc()
        p = flat(c1[:-8])
        p += self.stamp(2, 3) + I("@wait x1 cst\ns_barrier") + self.stamp(3, 3)
        XF, DD, PP, EE, PK, UP = 128, 136, 152, 168, 184, 128
        p += flat(c1[-8:])
        late1 = self.o("x1late", 1)
        sB = self.setupB()
        if late1:
            p += W(self.gen_R(2, 160) + c2, pump(self.o("pump0", 0) if ffn else 2))
            p += self.x1_pre() + self.stamp(4, 3)
            if ffn: p += self.set_flag() + self.stamp(4)
            p += self.x1_fetch() + self.stamp(5, 3)
            p += W(self.g_calc() + [self.g_store()] + sB[:18] + sB[19:], pump(self.o("pump1", 2)))
            p += self.stamp(6, 3) + I("@wait x1 rtab\ns_barrier") + self.stamp(7, 3)
            if self.o("hp", 1) == 0: p += I(self.POLL_LD, tag="poll")
        for k in range(4):
            p += I("ds_read_b64_tr_b16 %s, v19 offset:%d" % (V(XF + 2 * k, 2), 2048 * k))
        mf = [I("%s %s, %s, %s, %s" % (MF, V(DD + 4 * tau, 4), A(224 + (2 * tau + v) * 4, 4), V(XF + 4 * v, 4), V(DD + 4 * tau, 4) if v else "0")) for v in range(2) for tau in range(4)]
        if late1:
            G = Gaps(mf); pm = pump(self.o("pump2", 1))
            if pm: G.stream(pm, 0, 8)
            p += G.out() + sB[18] + flat([I("ds_read_b128 %s, v9 offset:%d" % (A(224 + 4 * f, 4), f * 1024)) for f in range(8)])
            if self.o("hp", 1) == 1: p += I(self.POLL_LD, tag="poll")
        else: p += flat(weave(c2, mf, 12, 52)) + self.stamp(4, 3)
        dpp = "row_ror:8 row_mask:0xf bank_mask:0xf"
        cA, cB, cC, cD = CO, CO + 8, CO + 16, CO + 24
        def pk(op, d, a, b, neg=False):
            g = []
            for e in range(0, 8, 2):
                if op == "mul": g += I("v_pk_mul_f32 %s, %s, %s" % (V(d + e, 2), V(a + e, 2), V(b + e, 2)))
                else: g += I("v_pk_fma_f32 %s, %s, %s, %s%s" % (V(d + e, 2), V(a + e, 2), V(b + e, 2), V(d + e, 2), " neg_lo:[1,0,0] neg_hi:[1,0,0]" if neg else ""))
            return g
        fpos = -1 if late1 or not ffn else self.o("fpos", 1)
        if fpos == 0: p += self.set_flag() + self.stamp(4)
        q = []
        for e in range(16): q += I("v_mul_f32_dpp v%d, v%d, v18 %s" % (PP + e, DD + e, dpp))
        q += pk("mul", EE, cA, DD) + pk("mul", EE + 8, cC, DD) + pk("fma", EE, cB, PP) + I("v_mov_b32 v%d, v%d\nv_mov_b32 v%d, v%d" % (cA, CA2, cB, CB2))
        q += pk("fma", EE + 8, cD, PP) + pk("fma", EE, cC, DD + 8, True) + pk("fma", EE + 8, cA, DD + 8) + pk("fma", EE, cD, PP + 8, True) + pk("fma", EE + 8, cB, PP + 8)
        p += W(single(q), pump(self.o("pump3", 0)))
        p += self.pack(PK, EE)
        mf = [I("%s %s, %s, %s, %s" % (MF, V(DD + 4 * kt, 4), V(PK + 4 * v, 4), A(192 + (2 * kt + v) * 4, 4), V(DD + 4 * kt, 4) if v else "0")) for v in range(2) for kt in range(4)]
        q = self.pack(PK + 4, EE + 8)
        p += q[:2]
        G = Gaps(mf); G.put(0, q[2:])
        if not late1: G.stream(sB[:15], 1, 8, spread=False)
        elif self.o("hp", 1) == 2: G.put(1, I(self.POLL_LD, tag="poll"))
        p += G.out()
        if fpos == 1: p += self.set_flag() + self.stamp(4)
        for kt in range(4):
            p += cvt(UP + 2 * kt, DD + 4 * kt, DD + 4 * kt + 1) + cvt(UP + 2 * kt + 1, DD + 4 * kt + 2, DD + 4 * kt + 3)
            p += J("buffer_store_dwordx2 {r}, {xr}, {SWS}, s{so} offen sc1", tag="ust", r=V(UP + 2 * kt, 2), so=76 + kt)
        p += self.stamp(6) + self.stamp(8 if late1 else 5, 3)
        l = self.lab("nosig")
        usig = I("@wait ust gst rtab") + J("s_barrier\ns_cmp_lg_u32 {w}, 0") + \
               J("s_cbranch_scc1 {l}\ns_mov_b64 exec, 1\nbuffer_store_dword v19, v0, {SWS}, {wo0} offen sc1\ns_mov_b64 exec, -1\n{l}:", raw=True, l=l)
        if late1:
            p += flat(pump(self.o("pumpb", 1)))
        else:
            if fpos == 2: p += self.set_flag() + self.stamp(4)
            p += flat(self.g_calc()) + self.g_store() + flat(sB[15:])
            p += W(self.gen_R(2, 160), pump(self.o("pumpa", 4)))
            p += I(self.POLL_LD, tag="poll") + self.stamp(6, 3)
            tpre = max(st["t"], min(st["d"], self.o("tpre0", 6)))
            p += flat(self.TT(st["t"], tpre)); st["t"] = tpre
            p += flat(pump(self.o("pumpb", 2)))
            p += self.stamp(7, 3) + usig + self.stamp(8, 3)
        p += self.spin(self.POLL_LD)
        p += self.stamp(7) + self.stamp(9, 3)
        NR = len(RING)
        def hload(u, s_):
            gs = []
            if s_ == 0 and u: gs += [J("s_add_u32 {ho}, {ho}, 4096"), J("s_cmp_ge_u32 {ho}, {he}\ns_cselect_b32 {ho}, {hs}, {ho}")]
            return gs + [J("buffer_load_dwordx4 {r}, {l16b}, {SWS}, {ho} offen offset:{o} sc1", tag="h%d_%d" % (u, s_), r=V(RING[u % NR] + 4 * s_, 4), o=s_ * 1024)]
        npre = self.o("npre", 3)
        hl = [g for u in range(npre) for s_ in range(4) for g in hload(u, s_)]
        tpre = max(st["t"], min(st["d"], self.o("tpre", 8)))
        p += W(hl, ([] if late1 else [I("ds_read_b128 %s, v9 offset:%d" % (A(224 + 4 * f, 4), f * 1024)) for f in range(8)]) + self.setupC())
        p += flat(self.TT(st["t"], tpre)); st["t"] = tpre
        if late1: p += usig
        redadr = []
        for dl in range(4):
            redadr += J("s_xor_b32 {t1}, {w}, {dl}\ns_mul_i32 {t1}, {t1}, 12288\ns_add_u32 {t1}, {t1}, {o}\nv_add_u32 v{r}, {t1}, {l16b}", dl=dl, o=LDS_RED + max(0, dl - 1) * 4096, r=vDT[dl])
        ndef = self.o("ndef", 2)
        s5 = self.o("s5", 160)
        def m4(u, s_, dl):
            d = V(128 + (dl * 4 + s_) * 4, 4)
            return I("%s %s, %s, %s, %s" % (MF, d, A(self.wd_reg(u, dl), 4), V(RING[u % NR] + 4 * s_, 4), d if u else "0"))
        def m5(k):
            n, sg = divmod(k, 4); d = V(ACCV + 4 * sg, 4)
            return I("%s %s, %s, %s, %s" % (MF, d, A(self.wd_reg((k % 16) // 4, k % 4), 4), V(GB + 4 * n, 4), d if n else "0"))
        o4 = [(u, s_, dl) for u in range(14) for s_ in range(4) for dl in ((0, 1, 2, 3) if u < 14 - ndef else (1, 2, 3))]
        mf = []; at = {}; k5 = 0
        for i, key in enumerate(o4):
            at[key] = len(mf); mf.append(m4(*key))
            if i >= s5 and k5 < 64:
                at[k5] = len(mf); mf.append(m5(k5)); k5 += 1
        while k5 < 64:
            at[k5] = len(mf); mf.append(m5(k5)); k5 += 1
        nmain = len(mf)
        mf += [m4(u, s_, 0) for u in range(14 - ndef, 14) for s_ in range(4)]
        nfin = len(mf); AO = GB
        mf += [I("%s %s, %s, %s, %s" % (MF, V(AO + 4 * a_, 4), V(24 + 4 * v, 4), A(224 + (2 * a_ + v) * 4, 4), V(AO + 4 * a_, 4) if v else "0")) for v in range(2) for a_ in range(4)]
        G = Gaps(mf)
        for u in range(14):
            for s_ in range(4):
                f = at[(u, s_, 0 if u < 14 - ndef else 1)]
                if f: G.put(f - 1, I("@wait h%d_%d" % (u, s_)))
        LA = self.o("la5", 10)
        for k in range(64):
            pos = at[k - LA] if k >= LA else at[0] - (LA - k)
            if k % 16 == 0: G.put(pos - 1, I("@must u%d t13\ns_barrier" % (k // 16)))
            G.put(pos, J("ds_read_b128 {r}, {vw} offset:{o}", tag="a%d" % k, r=A(self.wd_reg((k % 16) // 4, k % 4), 4), o=(k % 4) * 16384 + (k // 4) * 1024))
            if k % 2 == 0: G.put(at[k] - 1, I("@wait a%d" % (k + 1)))
        G.put(at[0] + 1, J("buffer_load_dwordx4 v[20:23], v8, {SWS}, {t0} offen sc1"))
        hd = self.o("hd", 3) * 16
        def ud(c):
            return [J("s_add_u32 m0, {t3}, {o}", o=c * 4096)] + ([J("s_add_u32 {t2}, {t2}, 4096")] if c else []) + \
                   [J("buffer_load_dwordx4 {l16b}, {SWS}, {t2} offen offset:{o} sc1 lds", tag="u%d" % c, o=1024 * k) for k in range(4)]
        tlast = 12 if ffn else 14
        items = [(at[(u, 0, 0 if u < 14 - ndef else 1)], 1, u) for u in range(npre, 14)] + [(at[16 * c] - LA - 1, 0, c) for c in range(4)]
        nl = 14 - st["d"]
        items += [(16 * npre + k * self.o("lsp", 8) - 1, 2, k) for k in range(nl)]
        items.sort()
        last = 0; dend = 0; cp = None
        for need, kind, u in items:
            want = max(last, need - hd)
            if kind == 1:
                for s_ in range(4):
                    w_ = max(last, want + 4 * s_, at[(u - NR, s_, 3)] if u >= NR else 0)
                    last = G.stream(hload(u, s_), w_, w_ + 4, spread=False)
            elif kind == 2:
                last = dend = G.stream(pump(1), want, want + 10)
            else:
                if u == 0:
                    cp = want
                    e = G.stream(self.TT(st["t"], tlast), max(min(dend + 24, cp - 5 * (tlast - st["t"])), 1), cp - 1)
                    assert e < cp and e < 128
                    G.put(cp - self.o("pgap", 36), I(self.POLL_LD, tag="poll"))
                    G.put(cp, self.stamp(8) + I("@wait poll") + self.spin(self.POLL_LD, sleep=4) + I("@must t%d" % (tlast - 1)))
                last = G.stream(ud(u), want + 1, want + 13)
        e = G.stream(self.TT(max(tlast, st["t"]), 14) + single(redadr), e + 1, at[0] - LA - 2)
        assert e < at[0] - LA - 1
        wr = [I("ds_write_b128 v%d, %s offset:%d" % (vDT[dl], V(128 + (dl * 4 + s_) * 4, 4), s_ * 1024), tag="red") for s_ in range(4) for dl in (1, 2, 3)]
        last = 0
        for k, g in enumerate(wr): last = G.stream([g], max(last + 2, at[(13, k // 3, 3)] + 5), len(mf), spread=False)
        rb = None
        if last + 8 < nmain:
            rb = [I("@wait red\ns_barrier")] + [I("ds_read_b128 %s, v%d offset:%d" % (V(144 + 4 * k, 4), vDT[0], k * 1024)) for k in range(12)]
            G.stream(rb, last + 4, len(mf))
        G.stream(single(self.pack(24, ACCV) + self.pack(28, ACCV + 8)), max(at[63] + 4, nfin - 8), nfin - 1, spread=False)
        G.stream(single(I("\n".join("v_mul_f32 v%d, %s, v%d" % (GB + 16 + a_, fhex(2.0 ** -19), 20 + a_) for a_ in range(4)))), nmain, nfin)
        G.stream(single(I("\n".join("v_sub_f32 v%d, 1.0, v%d" % (GB + 24 + i, 20 + i // 2) for i in range(8)))), nfin, len(mf))
        assert at[0] - LA > 64 and at[63] < nmain
        for i in range(10): G.put(min(32 * i, len(G) - 1), self.stamp(i, 2))
        p += G.out()
        p += self.stamp(9)
        if rb is None:
            p += I("@wait red\ns_barrier")
            for k in range(12): p += I("ds_read_b128 %s, v%d offset:%d" % (V(144 + 4 * ((k % 3) * 4 + k // 3), 4), vDT[0], ((k % 3) * 4 + k // 3) * 1024))
        for i in range(16): p += I("v_mul_f32 v%d, v%d, v%d" % (AO + i, GB + 16 + i // 4, AO + i))
        for a_ in range(4):
            b = 128 + 4 * a_
            for hh in (0, 2): p += I("v_pk_add_f32 %s, %s, %s" % (V(b + hh, 2), V(b + hh, 2), V(b + 16 + hh, 2)))
            for hh in (0, 2): p += I("v_pk_add_f32 %s, %s, %s" % (V(b + 32 + hh, 2), V(b + 32 + hh, 2), V(b + 48 + hh, 2)))
            for hh in (0, 2): p += I("v_pk_add_f32 %s, %s, %s" % (V(b + hh, 2), V(b + hh, 2), V(b + 32 + hh, 2)))
            for hh in (0, 2): p += I("v_pk_fma_f32 %s, %s, %s, %s" % (V(b + hh, 2), V(b + hh, 2), V(GB + 24 + 2 * a_, 2), V(AO + 4 * a_ + hh, 2)))
            p += cvt(56 + 2 * a_, b, b + 1) + cvt(57 + 2 * a_, b + 2, b + 3)
            p += I("ds_write_b64 v6, %s offset:%d" % (V(56 + 2 * a_, 2), a_ * 2048))
        p += I("@waitlg0\ns_barrier")
        for e in range(2): p += I("ds_read_b128 %s, v7 offset:%d" % (V(32 + 4 * e, 4), e * 1024))
        for e in range(2): p += J("buffer_store_dwordx4 {r}, {x}, {SOUT}, s{so} offen {f}", r=V(32 + 4 * e, 4), so=76 + e, f=("", "sc1", "nt")[self.o("ost", 1)])
        return p + self.ending(ffn)

    def ending(self, ffn):
        p = []
        if "diag" in self.kw:
            i = self.kw["diag"]; l = self.lab("dg"); who = self.o("who", 0)
            use = i >= 0 and (who == 0 or (who == 1) == ffn)
            p += I("@waitvm0") + self.stamp(10) + I("s_waitcnt lgkmcnt(0)")
            p += I("s_add_u32 s3, %s, 5000" % ("s%d" % (48 + 2 * i) if use else "s100"))
            p += I("%s:\ns_sleep 1\ns_memrealtime s[98:99]\ns_waitcnt lgkmcnt(0)\ns_sub_u32 s98, s98, s3\ns_cmp_lt_i32 s98, 0\ns_cbranch_scc1 %s" % (l, l), raw=True)
        elif self.prof:
            p += I("@waitvm0") + self.stamp(10) + I("s_waitcnt lgkmcnt(0)")
            p += J("s_lshl_b32 s3, s2, 2\ns_add_u32 s3, s3, {w}\ns_lshl_b32 s3, s3, 6\ns_add_u32 s3, s3, {o}\nv_mov_b32 v32, s100", o=WS_PROF)
            for i in range(11): p += I("v_mov_b32 v%d, s%d" % (33 + i, 48 + 2 * i))
            p += I("s_mov_b64 exec, 1")
            for i in range(3): p += I("buffer_store_dwordx4 %s, v0, %s, s3 offen offset:%d" % (V(32 + 4 * i, 4), SWS, 16 * i))
        return p + I("s_endpgm")

    def text(self):
        st = {}
        hdr = open("gated_mix__spectral_gfnet__glu_gated_reglu__prompt.s.ref").read().split("; Override launch")[0]
        out = [hdr.rstrip(), "; One persistent launch: 256 workgroups (one per CU) x 4 waves. Written by my generator tools/gen3.py.",
               "; @launch grid=(256,1,1) block=(256,1,1) lds=163840", '.amdgcn_target "amdgcn-amd-amdhsa--gfx950"', ".text",
               ".globl " + NAME, ".p2align 8", ".type %s,@function" % NAME, NAME + ":"]
        prog = self.prologue() + self.p12f() + I("L_dft:") + self.p12d() + I("L_end:\ns_endpgm")
        x = self.o("strip", 0)
        if x & 1: prog = [i for i in prog if i.cls != "mfma"]
        if x & 2: prog = [i for i in prog if not (i.cls == "ds" and i.op.startswith("ds_read"))  or i.tag and not seen_tag(i.tag)]
        if x & 4: prog = [i if not (i.cls == "vmem" and i.tag == "pub") else Ins(i.text.replace("v14", "v0").replace("dwordx4", "dword").replace(i.text.split()[1], "v0,"), i.tag) for i in prog]
        import re as _re
        for bit, pat in ((8, r"d\d+$"), (16, r"h\d+_"), (32, r"u\d$"), (64, r"cld$"), (128, r"w\d$"), (256, r"x\d$")):
            if x & bit: prog = [Ins("s_nop 0", i.tag) if i.cls == "vmem" and i.tag and _re.match(pat, i.tag) and "sc1 lds" not in (i.text if bit == 256 else "") else i for i in prog]
        body = finalize(prog, st)
        out += body
        out += ['.section .rodata,"a"', ".p2align 6", ".amdhsa_kernel " + NAME, "  .amdhsa_next_free_vgpr 512", "  .amdhsa_next_free_sgpr 102",
                "  .amdhsa_accum_offset 256", "  .amdhsa_group_segment_fixed_size 0", "  .amdhsa_kernarg_size 88", "  .amdhsa_user_sgpr_count 2",
                "  .amdhsa_user_sgpr_kernarg_segment_ptr 1", "  .amdhsa_system_sgpr_workgroup_id_x 1", "  .amdhsa_float_denorm_mode_32 3", ".end_amdhsa_kernel"]
        self.stats = st; self.body = body
        return "\n".join(out) + "\n"

if __name__ == "__main__":
    import argparse
    ap = argparse.ArgumentParser()
    ap.add_argument("out"); ap.add_argument("--prof", action="store_true"); ap.add_argument("--opt", default=""); ap.add_argument("--est", action="store_true")
    a = ap.parse_args()
    kw = dict((k, int(v)) for k, v in (x.split("=") for x in a.opt.split(",") if x))
    g = Gen(prof=a.prof, **kw)
    open(a.out, "w").write(g.text())
    print(g.stats)
    if a.est:
        row = []; gap = None; nm = 0; over = 0; skip = None
        for l in g.body:
            x = Ins(l.strip())
            if skip:
                if x.text == skip + ":": skip = None
                continue
            if x.op in ("s_cbranch_vccz", "s_cbranch_scc1") and "L_" not in x.text: skip = x.text.split()[1]
            if x.cls == "label":
                if x.text == "L_dft:": row.append(over); row.append("|"); nm = 0; over = 0; gap = None
                continue
            if x.cls == "mfma":
                if gap is not None and len(gap) < 14: over += gap_over(gap) + sum(int(y.text.split()[1]) for y in gap if y.op == "s_nop")
                gap = []; nm += 1
                if nm % 64 == 0: row.append(over); over = 0
            elif gap is not None: gap.append(x)
        print(row, over)
```

```python
import re, struct

def f2u(x):
    return struct.unpack("<I", struct.pack("<f", float(x)))[0]
def flit(x):
    inl = {0.0: "0", 0.5: "0.5", -0.5: "-0.5", 1.0: "1.0", -1.0: "-1.0", 2.0: "2.0", -2.0: "-2.0", 4.0: "4.0", -4.0: "-4.0"}
    return inl[x] if x in inl else "0x%08x" % f2u(x)
def fhex(x):
    return "0x%08x" % f2u(x)
def R(k, i, n=1):
    return "%s%d" % (k, i) if n == 1 else "%s[%d:%d]" % (k, i, i + n - 1)
def V(i, n=1): return R("v", i, n)
def A(i, n=1): return R("a", i, n)
def S(i, n=1): return R("s", i, n)

_reg = re.compile(r"^-?\|?(?:abs\()?([vas])(?:(\d+)|\[(\d+):(\d+)\])")
def regs_of(op):
    op = op.strip()
    if op in ("vcc", "vcc_lo", "vcc_hi"): return {("s", 106), ("s", 107)}
    if op in ("exec", "exec_lo", "exec_hi"): return {("s", 126), ("s", 127)}
    if op == "m0": return {("s", 124)}
    m = _reg.match(op)
    if not m: return set()
    k = m.group(1)
    if m.group(2) is not None: return {(k, int(m.group(2)))}
    return {(k, i) for i in range(int(m.group(3)), int(m.group(4)) + 1)}

TRANS = ("v_exp_f32", "v_log_f32", "v_rcp_f32", "v_rsq_f32", "v_sqrt_f32", "v_sin_f32", "v_cos_f32")
class Ins:
    __slots__ = ("text", "tag", "raw", "op", "cls", "dst", "src", "srcc", "srcab", "dpp", "trans", "wide", "ldsdma", "sdata")
    def __init__(self, text, tag=None, raw=False):
        self.text = text; self.tag = tag; self.raw = raw
        t = text.split(";")[0].strip()
        self.dst = set(); self.src = set(); self.srcc = set(); self.srcab = set(); self.sdata = set()
        self.dpp = False; self.trans = False; self.wide = False; self.ldsdma = False
        if t.endswith(":") or t.startswith(".") or not t:
            self.op = ""; self.cls = "label"; return
        if t.startswith("@"):
            self.op = t; self.cls = "pseudo"; return
        parts = t.split(None, 1)
        op = self.op = parts[0]
        body = re.sub(r"\s(op_sel|op_sel_hi|neg_lo|neg_hi):\[[^\]]*\]", "", parts[1]) if len(parts) > 1 else ""
        ops = [o.strip() for o in body.split(",")] if body else []
        mods = ""
        if ops:
            sp = ops[-1].split(None, 1)
            ops[-1] = sp[0]; mods = sp[1] if len(sp) > 1 else ""
        rs = [regs_of(o) for o in ops]
        allr = set().union(*rs) if rs else set()
        if op.startswith("v_mfma"):
            self.cls = "mfma"; self.dst = rs[0]; self.srcab = rs[1] | rs[2]; self.srcc = rs[3]; self.src = self.srcab | self.srcc
        elif op.startswith("v_"):
            self.cls = "valu"; self.dst = set(rs[0]); self.src = set().union(*rs[1:]) if len(rs) > 1 else set()
            self.dpp = "_dpp" in op
            self.trans = any(op.startswith(x) for x in TRANS)
            if op.startswith(("v_fmac", "v_dot2c", "v_writelane")) or self.dpp or "sdwa" in op: self.src |= rs[0]
            if op.startswith("v_permlane"): self.dst = rs[0] | rs[1]; self.src = rs[0] | rs[1]
            if op.startswith(("v_add_co", "v_sub_co", "v_addc_co")): self.dst |= rs[1]
        elif op.startswith("ds_read"):
            self.cls = "ds"; self.dst = rs[0]; self.src = rs[1]
        elif op.startswith("ds_"):
            self.cls = "ds"; self.src = allr
        elif op.startswith(("buffer_load", "global_load")):
            self.cls = "vmem"
            if re.search(r"\blds\b", mods):
                self.ldsdma = True; self.src = allr | {("s", 124)}
            else:
                self.dst = rs[0]; self.src = set().union(*rs[1:])
                if "d16" in op: self.src |= rs[0]
        elif op.startswith(("buffer_store", "buffer_atomic")):
            self.cls = "vmem"; self.src = allr; self.sdata = rs[0]
            self.wide = "x4" in op or "x3" in op
        elif op.startswith(("s_load", "s_memtime", "s_memrealtime")):
            self.cls = "smem"; self.dst = rs[0]; self.src = set().union(*rs[1:]) if len(rs) > 1 else set()
        elif op.startswith(("s_cmp", "s_cbranch", "s_branch", "s_waitcnt", "s_nop", "s_barrier", "s_sleep", "s_endpgm", "s_setprio", "s_bitcmp")):
            self.cls = "salu"; self.src = allr
        elif op.startswith("s_"):
            self.cls = "salu"; self.dst = set(rs[0]); self.src = set().union(*rs[1:]) if len(rs) > 1 else set()
            if op.startswith(("s_addk", "s_mulk")): self.src |= rs[0]
            if "saveexec" in op: self.dst |= {("s", 126), ("s", 127)}
        else:
            raise ValueError("unknown instr: " + text)

def I(text, tag=None, raw=False):
    return [Ins(l.strip(), tag, raw) for l in text.strip().split("\n") if l.strip()]

def flat(x):
    out = []
    for e in x:
        if isinstance(e, (list, tuple)): out.extend(flat(e))
        else: out.append(e)
    return out

def weave(main, fill, start=0, end=None):
    if end is None: end = len(main)
    n = end - start
    out = [list(flat([g])) for g in main]
    for j, g in enumerate(fill):
        pos = start + (j * n) // max(1, len(fill))
        out[pos] = out[pos] + list(flat([g]))
    return out

def place(main, pos, group):
    main[pos] = list(flat([main[pos]])) + list(flat([group]))

def isv(rs): return {r for r in rs if r[0] in "va"}
def iss(rs): return {r for r in rs if r[0] == "s"}

def hazard_need(p, c):
    n = 0
    if p.cls == "valu":
        pv = isv(p.dst); ps = iss(p.dst)
        if c.cls == "mfma" and pv & c.src: n = max(n, 2)
        if c.cls == "valu":
            if c.dpp and pv & c.src: n = max(n, 2)
            if c.op.startswith("v_permlane") and pv & c.src: n = max(n, 2)
            if c.op.startswith(("v_readfirstlane", "v_readlane")) and pv & c.src: n = max(n, 1)
            if p.trans and not c.trans and pv & c.src: n = max(n, 1)
            if ("sdwa" in p.op) and pv & (c.src | c.dst): n = max(n, 1)
            if ps & c.src: n = max(n, 4 if c.op.startswith(("v_readlane", "v_writelane")) else 2)
            if p.op.startswith("v_dot2") and pv & (c.src | c.dst):
                same = c.op == p.op
                n = max(n, 3)
        if p.op.startswith("v_dot2") and c.cls in ("vmem", "ds", "mfma") and pv & c.src: n = max(n, 3)
        if c.cls == "vmem" and ps & c.src: n = max(n, 5)
        if c.cls in ("salu", "smem") and ps & c.src: n = max(n, 1)
    if p.cls == "mfma":
        big = "32x32" in p.op
        if c.cls == "mfma":
            if p.dst & c.srcab: n = max(n, 12 if big else 8)
            if p.dst & c.srcc and p.dst != c.srcc: n = max(n, 10 if big else 6)
            if p.dst & c.dst and not (p.dst == c.srcc and p.dst == c.dst): n = max(n, 10 if big else 6)
        elif c.cls in ("valu", "vmem", "ds"):
            if p.dst & (c.src | c.dst): n = max(n, 12 if big else 8)
            if c.cls == "valu" and p.srcc & c.dst: n = max(n, 7 if big else 3)
    if p.cls == "salu":
        if ("s", 124) in p.dst and c.ldsdma: n = max(n, 1)
        if p.dst & {("s", 126), ("s", 127)} and c.dpp: n = max(n, 5)
    if p.cls == "vmem" and p.wide and p.sdata & c.dst: n = max(n, 2)
    return n

def finalize(prog, stats=None):
    out = []
    vmq = []; lgq = []
    def emit_wait(vm, lg):
        parts = []
        if vm is not None: parts.append("vmcnt(%d)" % min(vm, 62))
        if lg is not None: parts.append("lgkmcnt(%d)" % min(lg, 14))
        out.append(Ins("s_waitcnt " + " ".join(parts)))
        if vm is not None: del vmq[:max(0, len(vmq) - min(vm, 62))]
        if lg is not None: del lgq[:max(0, len(lgq) - min(lg, 14))]
    nnop = 0; seen = set()
    for c in prog:
        if c.cls == "pseudo":
            w = c.op.split()
            if w[0] in ("@must", "@need"):
                for tg in w[1:]: assert tg in seen, "wait for %s before it was issued" % tg
            if w[0] in ("@wait", "@need", "@must"):
                vm = lg = None
                for tg in w[1:]:
                    idx = [i for i, e in enumerate(vmq) if e.tag == tg]
                    if idx:
                        n = len(vmq) - 1 - idx[-1]; vm = n if vm is None else min(vm, n)
                    idx = [i for i, e in enumerate(lgq) if e.tag == tg]
                    if idx:
                        n = len(lgq) - 1 - idx[-1]; lg = n if lg is None else min(lg, n)
                if lg is not None and any(e.cls == "smem" for e in lgq): lg = 0
                if vm is not None or lg is not None: emit_wait(vm, lg)
            elif w[0] == "@waitlg0":
                if lgq: emit_wait(None, 0)
            elif w[0] == "@waitvm0":
                if vmq: emit_wait(0, None)
            elif w[0] == "@skip": pass
            elif w[0] == "@save":
                saved = (list(vmq), list(lgq), set(seen))
            elif w[0] == "@restore":
                vmq[:] = saved[0]; lgq[:] = saved[1]; seen.clear(); seen.update(saved[2])
            elif w[0] == "@reset":
                vmq.clear(); lgq.clear(); seen.clear()
            else:
                raise ValueError(c.op)
            continue
        if c.raw or c.cls == "label":
            out.append(c); continue
        touch = c.src | c.dst
        vm = lg = None
        for i in range(len(vmq) - 1, -1, -1):
            if vmq[i].dst & touch:
                vm = len(vmq) - 1 - i; break
        for i in range(len(lgq) - 1, -1, -1):
            if lgq[i].dst & touch:
                lg = len(lgq) - 1 - i; break
        if lg is not None and any(e.cls == "smem" for e in lgq): lg = 0
        if vm is not None or lg is not None: emit_wait(vm, lg)
        need = 0; dist = 0
        for p in reversed(out):
            if dist >= 12: break
            if p.cls == "label": continue
            if p.raw: continue
            h = hazard_need(p, c)
            if h - dist > need: need = h - dist
            dist += (int(p.text.split()[1]) + 1) if p.op == "s_nop" else 1
        if need > 0:
            out.append(Ins("s_nop %d" % (need - 1))); nnop += need
        out.append(c)
        if c.op == "s_waitcnt":
            m = re.search(r"vmcnt\((\d+)\)", c.text)
            if m: del vmq[:max(0, len(vmq) - int(m.group(1)))]
            m = re.search(r"lgkmcnt\((\d+)\)", c.text)
            if m: del lgq[:max(0, len(lgq) - int(m.group(1)))]
        seen.add(c.tag)
        if c.cls == "vmem": vmq.append(c)
        elif c.cls in ("ds", "smem"): lgq.append(c)
    if stats is not None:
        stats["nops"] = nnop; stats["n"] = len(out)
    return [("    " + e.text) if e.cls != "label" else e.text for e in out]

def icost(x):
    if x.cls == "label": return 0
    if x.raw: return 1 if x.op.startswith("s_cbranch_vccz") and x.tag == "first" else 0
    if x.cls == "pseudo": return 1 if x.op.startswith(("@wait", "@must")) else 0
    if x.trans: return 2
    if x.op.startswith("v_pk_"): return 5
    if x.op.startswith("v_dot2"): return 2
    return 1
def scalarish(x): return x.cls in ("salu", "pseudo", "label", "smem")
def gap_over(items):
    c = sum(icost(x) for x in items)
    cap = 3 if all(scalarish(x) for x in items) else 2
    nds = sum(1 for x in items if x.cls == "ds")
    return max(0, c - cap, nds - 1)
class Gaps:
    def __init__(self, mf):
        self.m = [flat([g]) for g in mf]; self.f = [[] for _ in mf]
    def __len__(self): return len(self.m)
    def put(self, pos, g): self.f[pos] += flat([g])
    def stream(self, groups, start, end, spread=True):
        n = len(groups); last = start
        for j, g in enumerate(groups):
            g = flat([g])
            want = max(last, start + (j * (end - start)) // n if spread else last)
            lim = max(want, end - 1 - (n - 1 - j) // 2)
            best = None
            for pos in range(want, min(lim, len(self.m) - 1) + 1):
                add = gap_over(self.f[pos] + g) - gap_over(self.f[pos])
                if best is None or add < best[0]: best = (add, pos)
                if add <= gap_over(g) or pos >= want + 12: break
            pos = best[1] if best else min(want, len(self.m) - 1)
            self.f[pos] += g; last = pos
        return last
    def out(self):
        o = []
        for m, f in zip(self.m, self.f): o += m + f
        return o

def estimate(lines):
    res = []; cyc = 0; nm = 0; gap = None; over = 0
    for l in lines:
        x = Ins(l.strip())
        if x.cls == "label" or x.text.startswith("; mark"):
            continue
        if x.cls == "mfma":
            if gap is not None: cyc += 16 + 4 * gap_over(gap); over += gap_over(gap)
            gap = []; nm += 1
        elif gap is not None: gap.append(x)
    return nm, over

def align8(lines):
    import subprocess, tempfile, os
    src = '.amdgcn_target "amdgcn-amd-amdhsa--gfx950"\n.text\n' + "\n".join(lines) + "\n"
    r = subprocess.run(["llvm-mc", "-triple=amdgcn-amd-amdhsa", "-mcpu=gfx950", "-show-encoding"], input=src, capture_output=True, text=True)
    assert r.returncode == 0, r.stderr[:2000]
    enc = [l for l in r.stdout.split("\n") if "; encoding:" in l]
    idx = [i for i, l in enumerate(lines) if not l.strip().endswith(":") and not l.strip().startswith(";")]
    assert len(enc) == len(idx)
    size = {}; e32 = {}
    for i, l in zip(idx, enc):
        size[i] = l.split("encoding: [")[1].count(",") + 1
        mn = l.split()[0]
        e32[i] = mn.endswith("_e32") and not mn.startswith(("v_readfirstlane", "v_permlane", "v_dot2c", "v_nop"))
    out = list(lines); off = 0; cand = None; ins = {}; n1 = n2 = 0
    ismf = [lines[i].split()[0].startswith("v_mfma") for i in idx]
    for k, i in enumerate(idx):
        if size[i] == 4:
            if e32[i]: cand = i
        else:
            if off % 8 == 4 and not any(ismf[max(0, k - 3):k + 4]):
                run = 0
                while k + run < len(idx) and size[idx[k + run]] == 8: run += 1
                if cand is not None:
                    t = out[cand].split(None, 1); out[cand] = "    " + t[0] + "_e64 " + t[1]; off += 4; n1 += 1
                elif run >= 600:
                    ins[i] = True; off += 4; n2 += 1
            cand = None
        off += size[i]
    res = []
    for i, l in enumerate(out):
        if i in ins: res.append("    s_nop 0")
        res.append(l)
    return res, (n1, n2)
```

```python
import sys
sys.path.insert(0, "tools")
from prog import *

NAME = "gated_mix__spectral_gfnet__glu_gated_reglu__prompt_kernel"
WS_H, WS_X1, WS_U, WS_G, WS_FLAG, WS_CNT, WS_PROF = 0, 0x800000, 0xA00000, 0xC38000, 0xC10000, 0xC30000, 0xF000000
NCLR = 50
WS_PF, WS_P = 0xC3A000, 0xD00000
SPIN_LIMIT = 100000
MF = "v_mfma_f32_16x16x32_bf16"
SX, SWG, SWU, SWD, SWS, SOUT, SWR, SWI, SGW, SDBG = [S(8 + 4 * i, 4) for i in range(10)]
NM = dict(w="s4", b12="s5", ni="s6", rot="s7", xcd="s70", loc="s71", wds="s70", wde="s71", l3="s72", nt="s73", bp="s74", xn="s75",
          hs="s80", lw4="s80", wo0="s81", wo1="s82", he="s83", wb="s83", k="s94", lw="s84", wdo="s85", t0="s86", t1="s87", t2="s88", t3="s89",
          mask="s[90:91]", hi16="s92", ring="s93", ho="s94", clr="s95", m1="s[96:97]", m2="s[98:99]",
          l16="v1", hi="v2", x="v3", xr="v4", vw="v5", l16b="v14", wd="v15", p="v16", xr2="v16", pa="v17",
          SX=SX, SWG=SWG, SWU=SWU, SWD=SWD, SWS=SWS, SOUT=SOUT, SWR=SWR, SWI=SWI, SGW=SGW, SDBG=SDBG)
vWT = [6, 7, 8, 9]; vDT = [10, 11, 12, 13]; vXA = [22, 23]; vWD = [15, 29, 30, 31]
LDS_RPF, LDS_RPI, LDS_R64I, LDS_STG, LDS_RED = 128 * 1024, 136 * 1024, 144 * 1024, 152 * 1024, 64 * 1024
GB, CO, ACCV = 64, 32, 48
CA2, CB2 = 20, 21
RING = [192, 208, 224, 240, 32]

def J(text, tag=None, raw=False, **kw):
    d = dict(NM); d.update(kw)
    return I(text.format(**d), tag, raw)
def single(g): return [[x] for x in flat(g)]
def chunks(g):
    g = flat(g); out = []; i = 0
    while i < len(g):
        j = i
        if g[i].op.startswith("v_cmp") and ("s", 106) in g[i].dst:
            k = i + 1
            while k < len(g) and not (g[k].op.startswith("v_cmp") and ("s", 106) in g[k].dst):
                if ("s", 106) in g[k].src: j = k
                k += 1
            j = i
        while j + 1 < len(g) and g[j + 1].op.startswith(("s_cselect", "s_subb", "s_addc")): j += 1
        out.append(g[i:j + 1]); i = j + 1
    return out
def cvt(d, a, b): return I("v_cvt_pk_bf16_f32 v%d, v%d, v%d" % (d, a, b))

_seen = set()
def seen_tag(t):
    r = t in _seen; _seen.add(t); return r

class Gen:
    def __init__(self, prof=False, **kw):
        self.prof = prof; self.kw = kw; self.nl = 0
        self.pair = kw.get("pair", 4); self.NU = 7 if self.pair else 14
    def o(self, k, d): return self.kw.get(k, d)
    def lab(self, b):
        self.nl += 1; return "L%s_%d" % (b, self.nl)
    def clk(self): return "s_memtime" if self.o("cyc", 0) else "s_memrealtime"
    def stamp(self, i, mode=0):
        if not self.prof or self.o("diag", i) != i or (self.o("pm", 0) != mode and i != 10): return []
        return I("%s %s" % (self.clk(), S(48 + 2 * i, 2)), raw=True)
    def srd(self, name, lo, size, back=0):
        b = int(name[2:name.index(":")])
        if back: g = I("s_sub_u32 s%d, s%d, %d\ns_subb_u32 s%d, s%d, 0" % (b, lo, back, b + 1, lo + 1))
        else: g = I("s_mov_b64 %s, %s" % (S(b, 2), S(lo, 2)))
        return g
    def srd_const(self, name, size):
        b = int(name[2:name.index(":")])
        return I("s_mov_b32 s%d, 0x%x\ns_mov_b32 s%d, 0x20000" % (b + 2, size, b + 3))
    def spin(self, load, sleep=2):
        ok, sp = self.lab("ok"), self.lab("spin")
        cmp_ = "v_cmp_ne_u32 vcc, 1, v16"
        return I(cmp_) + I("s_cbranch_vccz %s" % ok, tag="first", raw=True) + I("""s_mov_b32 s3, 0
%s:
s_sleep %d
%s
s_waitcnt vmcnt(0)
%s
s_add_u32 s3, s3, 1
s_cmp_lt_u32 s3, %d
s_cbranch_vccz %s
s_cbranch_scc1 %s
%s:""" % (sp, sleep, load, cmp_, SPIN_LIMIT, ok, sp, ok), raw=True)

    def cheb(self, X, Y, K, pk=True):
        if not pk: return I("\n".join("v_fma_f32 v%d, v%d, v%d, -v%d" % (X + q, K, Y + q, X + q) for q in range(8)))
        return I("\n".join("v_pk_fma_f32 %s, %s, %s, %s neg_lo:[0,0,1] neg_hi:[0,0,1]" % (V(X + 2 * q, 2), V(K, 2), V(Y + 2 * q, 2), V(X + 2 * q, 2)) for q in range(4)))
    def direct(self, X, spec):
        g = []; src = []
        for i, (d, K, b) in enumerate(spec):
            if K == 0: src.append(b)
            else:
                g += I("v_fmamk_f32 v%d, %s, %s, %s" % (X + i, d, fhex(K), b)); src.append("v%d" % (X + i))
        return g + I("\n".join("v_cos_f32 v%d, %s" % (X + i, src[i]) for i in range(8)))
    def pack(self, dst, X, first=None):
        return flat([cvt(dst + q, first if (q == 0 and first) else X + 2 * q, X + 2 * q + 1) for q in range(4)])

    def gen_G(self, t, pk):
        X, Y, K = t, t + 8, t + 16
        d, a0 = V(t + 18), V(t + 19)
        pre = J("""s_lshl_b32 {t0}, {nt}, 6
s_lshl_b32 {t1}, {w}, 4
s_add_u32 {t0}, {t0}, {t1}
v_add_u32 {d}, {t0}, {l16}
v_cvt_f32_u32 {d}, {d}
v_mul_f32 {d}, {c512}, {d}
v_mul_f32 {k0}, 0x41800000, {d}
v_cos_f32 {k0}, {k0}
v_and_b32 {e0}, 2, {hi}
v_lshlrev_b32 {e0}, 2, {e0}
v_cvt_f32_u32 {e0}, {e0}
v_and_b32 {e1}, 1, {hi}
v_cvt_f32_u32 {a0}, {e1}
v_mul_f32 {a0}, 0x3e800000, {a0}
v_fmac_f32 {a0}, {d}, {e0}
v_add_f32 {k0}, {k0}, {k0}
v_and_b32 {e0}, {e1}, v0
v_mov_b32 {k1}, {k0}
v_lshl_or_b32 {e0}, {e0}, 31, 0.5""", d=d, a0=a0, c512=fhex(1 / 512), k0=V(K), k1=V(K + 1), e0=V(t + 20), e1=V(t + 21))
        kap = [2 * (i & 3) + (i >> 2) for i in range(8)]
        gs = [pre, self.direct(X, [(d, kap[i], a0) for i in range(8)]), self.direct(Y, [(d, 16 + kap[i], a0) for i in range(8)]),
              J("v_cmp_gt_u32 vcc, 2, {hi}") + self.pack(GB + 4, Y) + I("v_cndmask_b32 v%d, v%d, v%d, vcc" % (t + 20, X, t + 20)) + self.pack(GB, X, first=t + 20)]
        for n in range(2, 16):
            a, b = (X, Y) if n % 2 == 0 else (Y, X)
            gs.append(self.cheb(a, b, K, pk) + self.pack(GB + 4 * n, a))
        return gs

    def gen_R(self, part, t, base=None):
        X = t; r = [V(t + 8 + i) for i in range(14)]
        n = dict(q=r[0], k=r[1], ph=r[2], dl=r[3], b0=r[4], b1=r[5], d0=r[6], d1=r[7], o0=r[8], o1=r[9], qt=r[10], h2=r[11], hf=r[12], adr=r[13],
                 c=fhex(1 / 2048), c64=fhex(1 / 64), base=LDS_RPF + 8192 * part if base is None else base)
        g = J("""s_lshl_b32 {t0}, {w}, 11
s_add_u32 {t0}, {t0}, {base}
v_add_u32 {adr}, {t0}, {l16b}
v_cvt_f32_u32 {hf}, {hi}
v_mov_b32 {qt}, 0x3e800000""", **n)
        if part < 2: g += J("s_cmp_eq_u32 {bp}, 0\ns_cselect_b64 {m1}, -1, 0\ns_cselect_b32 {t1}, 32, 64")
        masks = J("s_and_b32 vcc_lo, s96, 0xaaaaaaaa\ns_mov_b32 vcc_hi, vcc_lo\ns_andn2_b64 {m2}, {m1}, vcc")
        if part == 0:
            g += J("""s_and_b32 {t0}, {w}, 1
s_lshl_b32 {t0}, {t0}, 4
v_add_u32 {q}, {t0}, {l16}
v_mul_u32_u24 {k}, {t1}, {q}
v_add_u32 {k}, {bp}, {k}
s_lshr_b32 {t2}, {w}, 1
s_cselect_b64 {m2}, -1, 0
v_cmp_eq_u32 vcc, 0, {k}
v_cvt_f32_u32 {ph}, {t2}
v_mul_f32 {ph}, 0xbe800000, {ph}
v_cvt_f32_u32 {dl}, {k}
v_mul_f32 {dl}, {c}, {dl}
s_and_b64 vcc, vcc, {m2}
v_cndmask_b32 {dl}, {dl}, 0.5, vcc
v_cndmask_b32 {ph}, {ph}, 0, vcc
v_add_f32 {h2}, {hf}, {hf}
v_fma_f32 {b0}, {dl}, {h2}, {ph}
v_add_f32 {b1}, {qt}, {b0}
v_cndmask_b32 {b1}, {b1}, {b0}, {m1}""", **n) + masks + J("""v_cndmask_b32 {d0}, {dl}, 0, vcc
v_cndmask_b32 {b0}, {b0}, {qt}, vcc
v_cndmask_b32 {d1}, {dl}, 0, {m2}
v_cndmask_b32 {b1}, {b1}, {qt}, {m2}""", **n)
            specs = [[((r[6], r[7])[i & 1], 16 * v + 8 * (i // 4) + (i % 4) // 2, (r[4], r[5])[i & 1]) for i in range(8)] for v in range(2)]
        elif part == 1:
            g += masks + J("""s_lshl_b32 {t0}, {w}, 3
v_lshrrev_b32 {q}, 1, {l16}
v_add_u32 {q}, {t0}, {q}
v_cvt_f32_u32 {k}, {q}
v_mul_f32 {k}, {c}, {k}
v_cvt_f32_u32 {ph}, {t1}
v_mul_f32 {dl}, {k}, {ph}
v_cvt_f32_u32 {ph}, {bp}
v_mul_f32 {b0}, {k}, {ph}
v_and_b32 {q}, 1, v0
v_cvt_f32_u32 {ph}, {q}
v_cndmask_b32 {ph}, {ph}, 0, {m1}
v_fmac_f32 {b0}, {qt}, {ph}
v_mul_f32 {ph}, 4.0, {hf}
v_fmac_f32 {b0}, {dl}, {ph}
v_sub_f32 {b1}, {b0}, {qt}
v_cndmask_b32 {d1}, {dl}, 0, {m2}
v_cndmask_b32 {o0}, {b0}, {qt}, {m2}
v_cndmask_b32 {o1}, {b1}, {qt}, {m2}
s_and_b64 {m2}, {m2}, 0xffff
v_cndmask_b32 {d0}, {dl}, 0, vcc
v_cndmask_b32 {b0}, {b0}, {qt}, vcc
v_cndmask_b32 {b1}, {b1}, {qt}, vcc
v_mul_f32 {k}, 0x44800000, {k}
v_cndmask_b32 {k}, {b1}, {k}, {m2}""", **n)
            specs = [[((r[6], r[7])[i & 1], 16 * (i // 4) + i % 4, ((r[4], r[5]), (r[8], r[9]))[i & 1][v]) for i in range(8)] for v in range(2)]
            specs[1][0] = (r[6], 0, r[1])
        else:
            g += J("""s_lshl_b32 {t0}, {w}, 4
v_add_u32 {q}, {t0}, {l16}
v_cvt_f32_u32 {q}, {q}
v_mul_f32 {dl}, {c64}, {q}
v_add_f32 {h2}, {hf}, {hf}
v_mul_f32 {b0}, {dl}, {h2}
v_sub_f32 {b1}, {b0}, {qt}
v_mul_f32 {q}, 0.5, {q}
s_mov_b64 {m2}, 0xffff
v_cndmask_b32 {q}, {b1}, {q}, {m2}""", **n)
            specs = [[(r[3], 16 * v + 8 * (i // 4) + (i % 4) // 2, (r[4], r[5])[i & 1]) for i in range(8)] for v in range(2)]
            specs[0][1] = (r[3], 0, r[0])
        for v in range(2):
            g += self.direct(X, specs[v]) + self.pack(X, X) + I("ds_write_b128 %s, %s offset:%d" % (r[13], V(X, 4), v * 1024), tag="rtab")
        return chunks(g)

    def gen_T(self):
        r = [V(112 + i) for i in range(8)]
        gs = [J("""s_lshr_b32 {t0}, {xn}, 1
s_lshl_b32 {t0}, {t0}, 2
s_add_u32 {t0}, {t0}, {w}
s_lshl_b32 {t0}, {t0}, 5
s_and_b32 {t1}, {xn}, 1
s_add_u32 {t0}, {t0}, {t1}
v_lshl_add_u32 {j}, {l16}, 1, {t0}
v_cvt_f32_u32 {d0}, {j}
v_cmp_eq_u32 vcc, 0, {j}
v_mul_f32 {d0}, {c}, {d0}
v_mov_b32 {b1}, 0x3e800000
s_lshl_b32 {t0}, {wb}, 6
v_lshl_add_u32 {h4}, {hi}, 2, {t0}
v_cvt_f32_u32 {h4}, {h4}
v_cndmask_b32 {d1}, {d0}, 0.5, vcc
v_cndmask_b32 {b1}, {b1}, 0, vcc
v_mul_f32 {b0}, {d0}, {h4}
v_fmac_f32 {b1}, {d1}, {h4}
v_mul_f32 v104, 0x42000000, {d0}
v_mul_f32 v106, 0x42000000, {d1}
v_cos_f32 v104, v104
v_cos_f32 v106, v106
s_lshl_b32 {t0}, {w}, 11
v_add_u32 {adr}, {t0}, {l16b}
v_add_f32 v104, v104, v104
v_add_f32 v106, v106, v106
v_mov_b32 v105, v104
v_mov_b32 v107, v106""", j=r[0], d0=r[2], d1=r[3], b0=r[4], b1=r[5], h4=r[6], adr=r[7], c=fhex(1 / 512))]
        for n in range(8):
            for tt in range(2):
                X, Y = 64 + 16 * tt, 72 + 16 * tt
                a, b = (X, Y) if n % 2 == 0 else (Y, X)
                g = self.direct(a, [(r[2 + tt], 32 * n + 16 * (i // 4) + i % 4, r[4 + tt]) for i in range(8)]) if n < 2 else self.cheb(a, b, 104 + 2 * tt, n < self.o("ntp", 8))
                gs.append(g + self.pack(96 + 4 * tt, a) + I("ds_write_b128 %s, %s offset:%d" % (r[7], V(96 + 4 * tt, 4), n * 8192 + tt * 1024), tag="ttab%d" % (n // 2)))
        sel = J("""s_lshl_b32 {t1}, {t1}, 15
v_lshrrev_b32 v24, 1, {hi}
v_mul_u32_u24 v24, {t1}, v24
v_or_b32 v24, 0x3f80, v24
v_and_b32 v25, 1, v0
v_lshlrev_b32 v25, 4, v25
v_lshlrev_b32 v24, v25, v24
v_lshrrev_b32 v25, 1, {l16}
v_and_b32 v26, 1, {hi}
v_lshlrev_b32 v27, 2, v26
v_xor_b32 v27, v25, v27
v_cmp_eq_u32 vcc, 0, v27
v_cmp_eq_u32 {m1}, 1, v27
v_cmp_eq_u32 {m2}, 2, v27
v_cndmask_b32 v20, 0, v24, vcc
v_cmp_eq_u32 vcc, 3, v27
v_cndmask_b32 v21, 0, v24, {m1}
v_cndmask_b32 v22, 0, v24, {m2}
v_cndmask_b32 v23, 0, v24, vcc
v_xor_b32 v24, v26, v25
v_lshlrev_b32 v24, 4, v24
v_lshl_add_u32 v24, {l16}, 7, v24
v_lshrrev_b32 v25, 1, {hi}
v_lshl_add_u32 v24, v25, 11, v24
v_add_u32 v6, {ring}, v24
v_xor_b32 v7, 32, v6
v_xor_b32 v8, 64, v6
v_xor_b32 v9, 0x60, v6""")
        late = J("""s_lshl_b32 {t0}, {w}, 4
v_add_u32 v24, {t0}, {l16}
v_lshrrev_b32 v18, 1, v24
v_cvt_f32_u32 v18, v18
v_mul_f32 v18, {c}, v18
v_and_b32 v19, 1, v24
v_cvt_f32_u32 v19, v19
v_mul_f32 v19, 0xbe800000, v19
v_cmp_eq_u32 vcc, 1, v24
v_lshlrev_b32 v24, 2, {hi}
v_cvt_f32_u32 v24, v24
s_lshl_b32 {t0}, {w}, 11
s_add_u32 {t0}, {t0}, {stg}
v_cndmask_b32 v18, v18, 0.5, vcc
v_cndmask_b32 v19, v19, 0, vcc
v_fmac_f32 v19, v18, v24
v_add_u32 {pa}, {t0}, {l16b}""", c=fhex(1 / 64), stg=LDS_STG)
        for v in range(2):
            late += self.direct(24, [("v18", 32 * v + 16 * (i // 4) + i % 4, "v19") for i in range(8)]) + self.pack(24, 24) + \
                    J("ds_write_b128 {pa}, v[24:27] offset:{o}", tag="r64f", o=v * 1024)
        return gs, sel, late

    def wd_setup(self):
        g = J("""v_lshrrev_b32 v24, 3, v0
v_bfe_u32 v25, v0, 1, 2
v_xor_b32 v25, v25, {hi}
v_lshlrev_b32 v25, 5, v25
v_lshl_add_u32 v25, v24, 10, v25
v_and_b32 v24, 1, v0
v_lshl_add_u32 {wd}, v24, 4, v25
v_add_u32 v29, 7168, {wd}
v_add_u32 v30, 7168, v29
v_add_u32 v31, 7168, v30
s_mul_i32 {wds}, {w}, {c}
s_lshl_b32 {t0}, {nt}, 7
s_add_u32 {wds}, {wds}, {t0}
s_add_u32 {wde}, {wds}, {c}
v_bfe_u32 v24, v0, 2, 3
v_lshrrev_b32 v25, 5, v0
v_lshlrev_b32 v25, 10, v25
v_lshl_add_u32 v25, v24, 7, v25
v_and_b32 v26, 3, v0
v_lshl_add_u32 v25, v26, 3, v25
v_add_u32 v25, {ring}, v25
v_lshrrev_b32 v24, 1, v24
v_xor_b32 v24, {w}, v24
v_lshl_add_u32 v10, v24, 5, v25
v_xor_b32 v11, 32, v10
v_xor_b32 v12, 64, v10
v_xor_b32 v13, 0x60, v10
s_mul_i32 {rot}, {nt}, {ra}""", c=448 * 1024, ra=self.o("rnt", 0))
        if self.pair:
            g = [x for x in g if x.cls != "salu"]
            return g + J("s_and_b32 {t0}, {bp}, {m}\ns_cselect_b32 {t0}, 28, 0\ns_mul_i32 {rot}, {w}, 7\ns_add_u32 {rot}, {rot}, {t0}\ns_lshl_b32 {wds}, {rot}, 8\ns_add_u32 {wds}, {wds}, {nt}\ns_lshl_b32 {wds}, {wds}, 7", m=self.pair)
        if self.o("rl3", 0) == 1: g += J("s_mul_i32 {t0}, {l3}, 7\ns_add_u32 {t0}, {t0}, 1\ns_lshr_b32 {t0}, {t0}, 1\ns_add_u32 {rot}, {rot}, {t0}")
        if self.o("rl3", 0) == 2: g += J("s_and_b32 {t0}, {l3}, 1\ns_mul_i32 {t0}, {t0}, 7\ns_add_u32 {rot}, {rot}, {t0}")
        if self.o("xo", 0) >= 0:
            return g[:-1] + J(("s_add_u32 {rot}, {nt}, {l3}" if self.o("xnt", 0) else "s_mov_b32 {rot}, {l3}") + "\ns_and_b32 {rot}, {rot}, {m}\ns_lshl_b32 {wde}, {rot}, 15", m=self.o("xo", 0))
        g += J("s_sub_u32 {t0}, {rot}, 14\ns_cselect_b32 {rot}, {rot}, {t0}\ns_lshl_b32 {t0}, {rot}, 15\ns_add_u32 {wdo}, {wds}, {t0}")
        return g
    def loc(self, u):
        if self.pair: return (1, u - 4 if u >= 4 else None, u % 4)
        a, n = (8, self.o("nA", 2)) if self.ffn else (4, 4)
        if a <= u < a + n: return (0, None, (u - a + 4 - n) % 4)
        r1 = [v for v in range(14) if not a <= v < a + n]; k = r1.index(u)
        return (1, r1[k - 4] if k >= 4 else None, k % 4)
    def D(self, u, pre=None):
        reg, prev, slot = (self.loc(u) + (u % 4,))[:3]; gs = []
        if self.pair: gs.append(J("s_add_u32 {wdo}, {wds}, {o}", o=u << 15))
        elif self.o("xo", 0) >= 0:
            if u == 12: gs.append(J("s_and_b32 {wde}, {wde}, 0x8000"))
            gs += [J("s_xor_b32 {wdo}, {wde}, {o}", o=u << 15), J("s_add_u32 {wdo}, {wdo}, {wds}")]
        elif u: gs += [J("s_add_u32 {wdo}, {wdo}, 0x8000"), J("s_cmp_ge_u32 {wdo}, {wde}\ns_cselect_b32 {wdo}, {wds}, {wdo}")]
        gs.append(J("s_add_u32 m0, {ring}, {o}", o=(slot * 4096 - (0 if reg else 65536)) & 0xFFFFFFFF))
        if prev is not None: gs.append(I("@must t%d" % prev))
        if pre: gs.append(pre)
        gs += [J("buffer_load_dwordx4 v{r}, {SWD}, {wdo} offen offset:{o} lds", tag="d%d" % u, r=vWD[k], o=1024 * k) for k in range(4)]
        return gs
    def wd_reg(self, u, dl): return (160 + 16 * u if u < 2 else 16 * (u - 2) if u < 12 else 16 * u) + 4 * dl
    def T(self, u):
        gs = []
        if self.loc(u)[0] != (self.loc(u - 1)[0] if u else 1): gs += single(I("\n".join("v_xor_b32 v%d, 0x10000, v%d" % (r, r) for r in vDT)))
        gs.append(I("@must d%d" % u))
        for dl in range(4):
            for j4 in range(2):
                gs.append(I("ds_read_b64_tr_b16 %s, v%d offset:%d" % (A(self.wd_reg(u, dl) + 2 * j4, 2), vDT[dl], (self.loc(u) + (u % 4,))[2] * 4096 + j4 * 2048), tag="t%d" % u))
        return gs
    def DD(self, a, b): return [g for u in range(a, b) for g in self.D(u)]
    def TT(self, a, b): return [g for u in range(a, b) for g in self.T(u)]

    def g_loads(self):
        return single(J("""s_lshl_b32 {t0}, {nt}, 2
s_add_u32 {t0}, {t0}, {w}
s_lshl_b32 {t0}, {t0}, 1
v_lshrrev_b32 v25, 5, v0
v_add_u32 v236, {t0}, v25
v_and_b32 v25, 3, v236
v_lshrrev_b32 v26, 2, v236
v_lshl_add_u32 v25, v25, 4, v26
v_and_b32 v233, 0x1f0, {l16b}
v_lshl_add_u32 v232, v25, 15, v233
v_lshl_add_u32 v232, {bp}, 10, v232
buffer_load_dwordx4 v[216:219], v232, {SX}, 0 offen offset:2048
buffer_load_dwordx4 v[220:223], v232, {SX}, 0 offen offset:2560
buffer_load_dwordx4 v[224:227], v233, {SGW}, 0 offen
buffer_load_dwordx4 v[228:231], v233, {SGW}, 0 offen offset:512""", tag="gld"))
    def g_calc(self):
        g = I("@wait gld")
        g += I("\n".join("v_dot2_f32_bf16 v%d, v%d, v%d, 0" % (232 + i, 216 + i, 224 + i) for i in range(4)))
        g += I("\n".join("v_dot2_f32_bf16 v%d, v%d, v%d, v%d" % (232 + i, 220 + i, 228 + i, 232 + i) for i in range(4)))
        g += I("v_lshlrev_b32 v236, 2, v236\nv_add_f32 v232, v232, v233\nv_add_f32 v234, v234, v235\nv_add_f32 v232, v232, v234")
        for sh in (1, 2, 4, 8):
            g += I("v_add_f32_dpp v232, v232, v232 row_shr:%d row_mask:0xf bank_mask:0xf bound_ctrl:1" % sh)
        g += I("v_add_f32_dpp v232, v232, v232 row_bcast:15 row_mask:0xa bank_mask:0xf")
        g += I("v_mul_f32 v232, 0xbfb8aa3b, v232\nv_exp_f32 v232, v232\nv_add_f32 v232, 1.0, v232\nv_rcp_f32 v232, v232")
        return single(g)
    def g_store(self):
        return J("s_lshl_b32 {t0}, {bp}, 8\ns_add_u32 {t0}, {t0}, {g}\ns_mov_b32 exec_lo, 0x80000000\ns_mov_b32 exec_hi, 0x80000000", g=WS_G) + \
               J("buffer_store_dword v232, v236, {SWS}, {t0} offen sc1", tag="gst") + I("s_mov_b64 exec, -1")
    def c_loads(self, acc=False):
        return chunks(J(self.creg(acc, """s_cmp_eq_u32 {bp}, 0
s_cselect_b32 {t1}, 32, 64
s_cselect_b64 {mask}, 0xffff, 0
s_and_b32 {t0}, {w}, 1
s_lshl_b32 {t0}, {t0}, 4
v_lshrrev_b32 v27, 2, v0
v_add_u32 v27, {t0}, v27
v_mul_u32_u24 v27, {t1}, v27
v_add_u32 v27, {bp}, v27
v_cmp_eq_u32 vcc, 0, v27
v_sub_u32 v28, 0x800, v27
v_mov_b32 v26, 0x400
s_cmp_lt_u32 {w}, 2
s_cselect_b64 {m1}, -1, 0
v_cndmask_b32 v28, v28, v26, vcc
v_cndmask_b32 v27, v28, v27, {m1}
v_mul_u32_u24 v27, 514, v27
v_and_b32 v28, 48, {l16b}
s_lshl_b32 {t2}, {nt}, 6
s_cselect_b32 {t3}, {t2}, 512
v_add3_u32 v20, v28, v27, {t2}
v_add_u32 v21, {t3}, v27
buffer_load_dwordx4 v[32:35], v20, {SWR}, 0 offen
buffer_load_dwordx4 v[36:39], v20, {SWI}, 0 offen
buffer_load_ushort v40, v21, {SWR}, 0 offen
buffer_load_ushort v41, v21, {SWI}, 0 offen"""), tag="cld"))
    def creg(self, acc, t):
        if not acc: return t
        for a, b in (("v[32:35]", "a[32:35]"), ("v[36:39]", "a[36:39]"), ("v40", "a40"), ("v41", "a41"), ("v20", "v10"), ("v21", "v11")): t = t.replace(a, b)
        return t
    def c_stage(self):
        g = J("""s_mul_i32 {t0}, {w}, 1280
s_add_u32 {t0}, {t0}, {stg}
v_lshrrev_b32 v27, 2, v0
v_lshl_add_u32 v28, v27, 4, {l16b}
v_add_u32 v28, {t0}, v28
s_mov_b32 {t2}, 0x05040100
s_mov_b32 {t3}, 0x07060302
s_mov_b32 s96, 0x11111111
s_mov_b32 s97, 0x11111111
@wait cld""", stg=self.cstg)
        for arr in range(2):
            s_, d_ = 32 + 4 * arr, 192 + 4 * arr
            g += J("v_perm_b32 v{d0}, v{s1}, v{s0}, {t2}\nv_perm_b32 v{d1}, v{s3}, v{s2}, {t2}\nv_perm_b32 v{d2}, v{s1}, v{s0}, {t3}\nv_perm_b32 v{d3}, v{s3}, v{s2}, {t3}",
                   d0=d_, d1=d_ + 1, d2=d_ + 2, d3=d_ + 3, s0=s_, s1=s_ + 1, s2=s_ + 2, s3=s_ + 3)
            g += I("ds_write_b128 v28, %s offset:%d" % (V(d_, 4), arr * 5120), tag="cst")
            g += J("v_and_or_b32 v{d}, v{d}, {hi16}, v{q}", d=d_, q=40 + arr)
        return single(g) + [J("s_mov_b64 exec, {m1}") + I("ds_write_b64 v28, v[192:193] offset:64\nds_write_b64 v28, v[196:197] offset:5184", tag="cst") + I("s_mov_b64 exec, -1")]
    def c_calc(self):
        g = J("""s_cmp_eq_u32 {w}, 0
s_cselect_b32 {t1}, 2, 4
s_lshl_b32 {t0}, {w}, 4
v_and_b32 v26, 3, v0
v_cmp_eq_u32 vcc, {t1}, v26
v_and_b32 v28, 1, v0
v_lshl_add_u32 v28, v28, 3, {t0}
v_lshrrev_b32 v27, 2, v0
v_mul_u32_u24 v27, 80, v27
v_cndmask_b32 v28, v28, 64, vcc
s_mov_b32 {t0}, {stg}
v_add3_u32 v27, v27, v28, {t0}""", stg=self.cstg)
        for th in range(2):
            for arr in range(2):
                for side in range(2):
                    g += I("ds_read_b64_tr_b16 %s, v27 offset:%d" % (V(192 + ((th * 2 + arr) * 2 + side) * 2, 2), arr * 5120 + side * 2560 + th * 1280), tag="crd")
        q = I("@wait crd")
        for th in range(2):
            for r in range(4):
                e = th * 4 + r
                t = 208 + (e % 2) * 4
                for n, (arr, side) in enumerate([(0, 0), (0, 1), (1, 0), (1, 1)]):
                    src = 192 + ((th * 2 + arr) * 2 + side) * 2 + r // 2
                    q += J("v_and_b32 v{d}, {hi16}, v{s}" if r & 1 else "v_lshlrev_b32 v{d}, 16, v{s}", d=t + n, s=src)
                a_, b_, c_, d_ = CO + e, CO + 8 + e, CO + 16 + e, CO + 24 + e
                q += I("v_add_f32 v%d, v%d, v%d\nv_add_f32 v%d, v%d, v%d\nv_sub_f32 v%d, v%d, v%d\nv_sub_f32 v%d, v%d, v%d" % (
                    a_, t, t + 1, b_, t + 2, t + 3, c_, t + 3, t + 2, d_, t, t + 1))
                if e == 0:
                    q += J("""v_cndmask_b32 v{a2}, v{a}, v{t1_}, {mask}
v_cndmask_b32 v{b2}, v{b}, v{t3_}, {mask}
v_cndmask_b32 v{a}, v{a}, v{t0_}, {mask}
v_cndmask_b32 v{b}, v{b}, v{t2_}, {mask}
v_cndmask_b32 v{c}, v{c}, 0, {mask}
v_cndmask_b32 v{d}, v{d}, 0, {mask}""", a2=CA2, b2=CB2, a=a_, b=b_, c=c_, d=d_, t0_=t, t1_=t + 1, t2_=t + 2, t3_=t + 3)
        return chunks(g), single(q)

    GATE_LD = "buffer_load_dword v16, v17, %s, 0 offen sc1" % SDBG
    POLL_LD = "buffer_load_dword v16, v17, %s, s82 offen sc1" % SWS
    def gate_ld(self):
        return single(J("v_min_u32 {pa}, {n}, v0\nv_lshlrev_b32 {pa}, 2, {pa}", n=NCLR - 1) + I(self.GATE_LD, tag="poll"))
    def x1_addr(self):
        return single(J("""s_lshr_b32 {t0}, {nt}, 2
s_lshl_b32 {t0}, {t0}, 8
s_lshl_b32 {t1}, {w}, 15
s_add_u32 {t0}, {t0}, {t1}
s_add_u32 {wo1}, {t0}, {fl}
v_lshrrev_b32 {pa}, 3, v0
v_lshlrev_b32 {pa}, 12, {pa}
v_bfe_u32 v28, v0, 2, 1
v_lshl_add_u32 {pa}, v28, 7, {pa}""", fl=WS_FLAG + 28 * 128))
    def rp_reads(self):
        return [J("v_add_u32 v19, {a}, {l16b}", a=LDS_RPF)] + \
               [I("ds_read_b128 %s, v19 offset:%d" % (A((224 if f < 8 else 160) + 4 * f, 4), f * 1024), tag="rp") for f in range(16)]
    def flag_addr(self):
        return J("s_lshl_b32 {wo0}, {b12}, 5\ns_add_u32 {wo0}, {wo0}, {ni}\ns_lshl_b32 {wo0}, {wo0}, 7\ns_add_u32 {wo0}, {wo0}, {fl}", fl=WS_FLAG)
    def set_flag(self):
        return I("v_mov_b32 v24, 1\n@wait pub\ns_mov_b64 exec, 1") + J("buffer_store_dword v24, v0, {SWS}, {wo0} offen sc1") + I("s_mov_b64 exec, -1")

    def prologue(self):
        p = []
        if self.prof: p += I("%s s[100:101]" % self.clk(), raw=True)
        p += J("""s_load_dwordx16 s[48:63], s[0:1], 0
s_cmp_ge_u32 s2, 256
s_cbranch_scc1 L_end
s_load_dwordx4 s[64:67], s[0:1], 64
s_load_dwordx2 s[68:69], s[0:1], 80
s_getpc_b64 {m1}
L_pc:
v_lshlrev_b32 v24, 3, v0
v_readfirstlane_b32 {w}, v0
s_lshr_b32 {loc}, s2, 3
v_lshl_add_u32 v24, {loc}, 11, v24
v_min_u32 v24, L_end-L_pc, v24
global_load_dword v31, v24, {m1}
v_and_b32 v0, 63, v0
v_and_b32 {l16}, 15, v0
v_lshrrev_b32 {hi}, 4, v0
s_lshr_b32 {w}, {w}, 6
s_and_b32 {xcd}, s2, 7
s_and_b32 {l3}, {loc}, 3
s_lshr_b32 {nt}, {loc}, 2
s_lshr_b32 {xn}, {xcd}, 1
s_lshl_b32 {bp}, {xcd}, 2
s_add_u32 {bp}, {bp}, {l3}
s_and_b32 {b12}, {bp}, 7
s_lshl_b32 {b12}, {b12}, 2
s_add_u32 {b12}, {b12}, {w}
s_lshl_b32 s76, {b12}, 10
v_lshrrev_b32 v25, 3, v0
v_and_b32 v24, 7, v0
v_xor_b32 v24, v24, {hi}
v_lshlrev_b32 v24, 4, v24
v_lshl_add_u32 {x}, v25, 15, v24
v_xor_b32 v18, 0x40040, {x}
v_subrev_u32 v18, 0x400, v18
s_lshl_b32 {ring}, {w}, 14
s_add_u32 {ring}, {ring}, 0x10000""")
        if "probe" in self.kw:
            k = self.kw["probe"]
            p += I("s_waitcnt lgkmcnt(0) vmcnt(0)\ns_mov_b64 s[44:45], s[%d:%d]\ns_mov_b32 s46, 0x100000\ns_mov_b32 s47, 0x20000" % (48 + 2 * k, 49 + 2 * k))
            p += J("s_lshl_b32 s3, s2, 2\ns_add_u32 s3, s3, {w}\ns_lshl_b32 s3, s3, 7\nv_mov_b32 v26, 0\ns_memrealtime s[96:97]\ns_waitcnt lgkmcnt(0)")
            if "pbw" in self.kw:
                p += I("s_mov_b32 s46, 0x10000000\ns_lshl_b32 s3, s3, 7\ns_add_u32 s3, s3, %d\nv_lshlrev_b32 v26, 4, v0" % (self.kw["pbw"] << 20))
                for i in range(16):
                    op = "buffer_store_dwordx4 v[128:131], v26, s[44:47], s3 offen sc1" if self.o("pst", 0) else "buffer_load_dwordx4 v[%d:%d], v26, s[44:47], s3 offen" % (128 + 4 * i, 131 + 4 * i)
                    p += I(op + "\ns_add_u32 s3, s3, 1024")
                p += I("s_waitcnt vmcnt(0)")
            else:
                for i in range(8): p += I("buffer_load_dword v27, v26, s[44:47], s3 offen\ns_waitcnt vmcnt(0)\ns_add_u32 s3, s3, 0x20000")
            p += I("s_memrealtime s[98:99]\ns_waitcnt lgkmcnt(0)\ns_sub_u32 s98, s98, s96\ns_add_u32 s100, s100, s98")
        p += self.srd_const(SX, 2097152 + 2048)
        p += J("s_cmp_eq_u32 {nt}, 7\ns_cbranch_scc1 L_dft")
        return p
    def common2(self):
        p = J("v_lshlrev_b32 {l16b}, 4, v0\ns_lshl_b32 {lw}, {loc}, 2\ns_add_u32 {lw}, {lw}, {w}\ns_mul_i32 s3, {xcd}, 112\ns_add_u32 {lw}, {lw}, s3\ns_lshl_b32 {lw}, {lw}, 11\ns_mov_b32 {hi16}, 0xffff0000")
        for nm, lo, sz in ((SWS, 68, 0x10000000), (SDBG, 66, 256), (SWD, 60, 1792 * 1024), (SOUT, 64, 2097152), (SWR, 50, 2048 * 514), (SWI, 52, 2048 * 514), (SGW, 62, 1024)):
            p += self.srd(nm, lo, sz) + self.srd_const(nm, sz)
        return p

    def p12f(self):
        self.ffn = True; self.cstg = LDS_RPF
        def kadv(du):
            kr = self.o("kr", 2)
            if kr == 4: return single(J("s_xor_b32 {k}, {k}, 1" if du & 1 else "s_xor_b32 {k}, {k}, 1\ns_add_u32 {k}, {k}, 2\ns_and_b32 {k}, {k}, 7"))
            if kr == 5: return single(J("s_xor_b32 {k}, {k}, %d" % (du ^ (du - 1))))
            return single(J("s_add_u32 {k}, {k}, 1\ns_and_b32 {k}, {k}, 7"))
        def wl(du):
            gs = []
            if du == 1: gs += kadv(du)
            gs += single(J("s_mul_i32 {wo0}, {k}, {c}\ns_add_u32 {wo0}, {wo0}, {wb}\ns_add_u32 {wo1}, {wo0}, {c2}", c=64 * 3584, c2=32 * 3584 - 2048))
            gs.append(J("s_add_u32 m0, {lw4}, {o}", o=(du % 4) * 16384))
            for h in range(2):
                for mat in range(2):
                    gs.append(J("buffer_load_dwordx4 {vw}, {srd}, {so} offen offset:{o} lds", tag="w%d" % du, srd=(SWG, SWU)[mat], so=NM["wo%d" % h], o=(2 * h + mat) * 1024))
            return gs
        def xl(du):
            gs = []
            if du >= 2: gs += kadv(du)
            gs += single(J("v_lshl_add_u32 {xr}, {k}, 7, {x}\nv_lshl_add_u32 {xr2}, {k}, 7, v18"))
            for m in range(4):
                if m % 2 == 0: gs.append(J("s_add_u32 m0, {ring}, {o}", o=(du % 2) * 8192 + m * 2048))
                for e in range(2):
                    g = J("buffer_load_dwordx4 {r}, {SX}, s{so} offen offset:{o} lds", tag="x%d" % du, r=NM[("xr", "xr2")[e]], so=76 + m, o=((m & 1) * 2 + e) * 1024)
                    if du >= 2 and m == 0 and e == 0: g = I("@need xf%d" % (du - 2)) + g
                    gs.append(g)
            return gs
        def xf(du):
            return [I("@wait x%d" % du)] + [I("ds_read_b128 %s, v%d offset:%d" % (A((du % 4) * 32 + h * 16 + m * 4, 4), vXA[h], (du % 2) * 8192 + m * 2048), tag="xf%d" % du)
                                           for h in range(2) for m in range(4)]
        p = J("""s_and_b32 {t0}, {nt}, {mp}
s_lshl_b32 {t0}, {t0}, 19
s_add_u32 s76, s76, {t0}
s_xor_b32 s77, s76, 0x80000
s_xor_b32 s79, s76, 0x180000
s_xor_b32 s78, s76, 0x100000
s_add_u32 s76, s76, 0x800
s_add_u32 s78, s78, 0x800
s_lshl_b32 {k}, {xcd}, 2
s_add_u32 {k}, {k}, {xcd}
s_and_b32 {k}, {k}, {km}
s_mul_i32 {ni}, {xn}, 7
s_add_u32 {ni}, {ni}, {nt}
s_mul_i32 {wb}, {w}, {c}
s_lshl_b32 {t0}, {ni}, 7
s_add_u32 {wb}, {wb}, {t0}
v_mul_u32_u24 v24, 3584, v25
s_and_b32 {t0}, {w}, 1
s_lshl_b32 {t0}, {t0}, 1
v_and_or_b32 v25, {hi}, 1, {t0}
v_bfe_u32 v26, v0, 1, 2
v_xor_b32 v25, v25, v26
v_lshl_add_u32 v24, v25, 5, v24
v_and_b32 v25, 1, v0
v_lshl_add_u32 {vw}, v25, 4, v24
s_lshl_b32 {lw4}, {w}, 12""", c=8 * 3584, mp=self.o("mp", 3), km=self.o("km", 6))
        kr = self.o("kr", 2)
        if kr == 4: p += J("s_lshr_b32 {t0}, {nt}, {sh}\ns_xor_b32 {t0}, {l3}, {t0}\ns_and_b32 {t0}, {t0}, 1\ns_add_u32 {k}, {k}, {t0}", sh=self.o("ksh", 2))
        if kr == 5: p += J("s_add_u32 {t0}, {l3}, {nt}\ns_and_b32 {t0}, {t0}, 3\ns_add_u32 {k}, {xcd}, {xn}\ns_and_b32 {k}, {k}, 1\ns_lshl2_add_u32 {k}, {k}, {t0}")
        if kr == 1: p += J("s_lshl_b32 {k}, {l3}, 1\ns_add_u32 {k}, {k}, {nt}\ns_and_b32 {k}, {k}, 7")
        if kr == 2: p += J("s_xor_b32 {t0}, {l3}, {nt}\ns_and_b32 {t0}, {t0}, 1\ns_lshl_b32 {t0}, {t0}, 2\ns_lshl_b32 {k}, {xcd}, 1\ns_add_u32 {k}, {k}, {xn}\ns_and_b32 {k}, {k}, 3\ns_add_u32 {k}, {k}, {t0}")
        if kr == 3: p += J("s_add_u32 {t0}, {l3}, {nt}\ns_and_b32 {t0}, {t0}, 3\ns_lshl_b32 {t0}, {t0}, 1\ns_add_u32 {k}, {xcd}, {xn}\ns_and_b32 {k}, {k}, 1\ns_add_u32 {k}, {k}, {t0}")
        p += self.srd_const(SWG, 512 * 3584) + self.srd_const(SWU, 512 * 3584 + 1024)
        w0 = wl(0); x0 = xl(0)
        p += flat(w0[:4] + x0[:2]) + self.srd(SWG, 56, 0) + self.srd(SWU, 58, 0, back=1024) + self.srd(SX, 48, 0, back=2048)
        p += flat(w0[4:]) + flat(x0[2:])
        p += self.common2()
        p += self.stamp(0)
        l = self.lab("noclr")
        p += J("s_sub_u32 s3, s2, 128\ns_cmp_lt_u32 s3, {n}\ns_cselect_b32 {clr}, {w}, 4", n=NCLR) + I("\n".join("v_accvgpr_write_b32 a%d, 0" % (180 + i) for i in range(4)))
        clear = J("s_cmp_eq_u32 {clr}, 4") + J("""s_cbranch_scc1 {l}
s_lshl2_add_u32 s3, s2, {w}
s_lshl_b32 s3, s3, 10
s_add_u32 s3, s3, {fl}
buffer_store_dwordx4 a[180:183], {l16b}, {SWS}, s3 offen sc1
{l}:""", raw=True, l=l, fl=WS_FLAG - 128 * 4096)
        st = [J("""v_lshrrev_b32 v24, 1, {l16}
v_xor_b32 v24, v24, {hi}
v_lshlrev_b32 v24, 4, v24
v_lshl_add_u32 v24, {l16}, 7, v24
v_add_u32 v22, {ring}, v24
v_xor_b32 v23, 64, v22
v_lshlrev_b32 v24, 12, {hi}
v_bfe_u32 v25, v0, 2, 2
v_lshl_add_u32 v24, v25, 7, v24
v_and_b32 v25, 3, v0
v_lshl_add_u32 v24, v25, 3, v24
v_bfe_u32 v25, v0, 3, 2
v_lshl_add_u32 v6, v25, 5, v24
v_xor_b32 v7, 32, v6
v_xor_b32 v8, 64, v6
v_xor_b32 v9, 0x60, v6""")]
        cl, gl = self.c_loads(), self.g_loads()
        cpos = self.o("cpos", 2)
        gwt = [J("buffer_load_dword a171, {l16b}, {SGW}, 0 offen")]
        rip = self.rip = self.o("rip", 1) and self.o("x1late", 0)
        st = single(st) + cl[:-4] + self.gen_R(0, 128) + ([] if rip else self.gen_R(1, 160))
        l1 = wl(1) + xl(1); n1 = self.o("n1", 15) - (self.o("kr", 2) >= 4)
        p += flat(weave(st, l1[:n1], self.o("l1pos", 60 if rip else 100), len(st)))
        p += I("@wait w0 x0\ns_barrier")
        p += self.stamp(1)
        units = {0: "E0 L0 E1 L1 E2 L2 E3 E4 L3 E5 E6 L4 E7 L5 L6 L7", 1: "E0 L0 E1 L1 E2 L2 E3 L3 E4 E5 L4 E6 E7 L5 L6 L7",
                 2: "E0 L0 E1 L1 E2 L2 E3 L3 E4 E5 L4 E6 L5 E7 L6 L7", 3: "E0 L0 E1 L1 E2 L2 E3 L3 E4 L4 E5 L5 E6 E7 L6 L7"}[self.o("us", 0)].split()
        seq = [(2 * int(u[1]) + h, tau + (4 if u[0] == "L" else 0)) for u in units for h in range(2) for tau in range(4)]
        U = dict((u, 32 * i) for i, u in enumerate(units))
        LA = 5
        def rd(k):
            n, tau = seq[k]
            off = ((n // 2) % 4) * 16384 + ((n & 1) * 2 + (tau & 1)) * 1024
            return [I("ds_read_b64_tr_b16 %s, v%d offset:%d" % (A(128 + 4 * (k % 8) + 2 * j4, 2), vWT[tau // 2], off + 512 * j4), tag="f%d" % k) for j4 in range(2)]
        x0 = xf(0)
        p += flat(rd(0) + x0[:5] + rd(1) + rd(2) + x0[5:] + rd(3) + rd(4))
        mf = []
        for k, (n, tau) in enumerate(seq):
            for m in range(4):
                acc = V(128 + (tau * 4 + m) * 4, 4)
                mf.append(I("%s %s, %s, %s, %s" % (MF, acc, A(128 + 4 * (k % 8), 4), A(((n // 2) % 4) * 32 + (n & 1) * 16 + m * 4, 4), acc if n else "0")))
        G = Gaps(mf)
        for k in range(128):
            if k + LA < 128:
                r = rd(k + LA); G.put(4 * k, r[0]); G.put(4 * k + 2, r[1])
            if k % 2 == 1 and k + 1 < 128: G.put(4 * k + 3, I("@wait f%d" % (k + 2)))
        bar = {}
        for du in range(1, 8):
            bar[du] = U["E%d" % du] - 4 * LA - 1
            G.put(bar[du], I("@wait w%d rtab\ns_barrier" % du))
        lead = G.stream(l1[n1:], 0, 12, spread=False) if l1[n1:] else 0
        aa = [[0, 52, 104, 156, 208, 260], [0, 60, 118, 172, 224, 276], [0, 64, 124, 180, 234, 288], [0, 64, 128, 192, 250, 306], [0, 64, 128, 192, 256, 320]][self.o("aa", 1)]
        aa = dict(zip(range(2, 10), aa + [aa[-1] + 54, aa[-1] + 108]))
        xfe = {}
        for du in range(1, 8):
            e = min(aa[du + 2], U["E%d" % du]) - 2
            assert du < 4 or e - 18 >= U["L%d" % (du - 4)] + 32
            xfe[du] = G.stream(xf(du), e - 18, e)
        last = lead
        for du in range(2, 8):
            a0 = max(aa[du], last + 1)
            last = G.stream(([clear] if du == self.o("clrdu", 2) else []) + xl(du), a0, a0 + 36)
            w0_ = last + 1
            if du >= 4: w0_ = max(w0_, min(b for b in bar.values() if b >= U["L%d" % (du - 4)] + 32) + 1)
            tr_ = {3: [0], 4: [1], 5: [2, 3], 6: [4, 5], 7: [6, 7]}.get(du, [])
            cd = self.o("cdu", 2)
            ex = [] if cpos != 2 else [cl[-4], cl[-2]] + gwt if du == cd else [cl[-3], cl[-1]] if du == cd + 1 else []
            if cpos == 3 and du == cd: ex = cl[-4:] + gwt
            last = G.stream(wl(du) + ex + [g for r in tr_ for g in self.touch(r)] + (self.touch3() if du == self.o("t3du", 6) else []) + (self.retouch() if du == 7 else []), w0_, w0_ + 16 + 4 * len(tr_))
            assert last < bar[du] - 4, (du, last, bar[du])
        vend = last
        l = self.lab("noann")
        ann = J("s_cmp_lg_u32 {clr}, 0") + J("""s_cbranch_scc1 {l}
v_mov_b32 v27, 1
s_lshl_b32 s3, s2, 2
s_sub_u32 s3, s3, 512
s_mov_b64 exec, 1
buffer_store_dword v27, v0, {SDBG}, s3 offen sc1
s_mov_b64 exec, -1
{l}:""", raw=True, l=l)
        G.put(bar[self.o("clrdu", 2)] + 2, ann)
        G.stream(self.rp_reads()[:9 if rip else 17], 130, 230)
        e0 = U["E7"] + 32
        e = G.stream(self.gate_ld() + (cl[-4:] if cpos == 0 else []), vend + 1, vend + 12)
        e1 = vend
        d0 = max(e, e1, xfe[6] + 4, vend + self.o("d0gap", 10))
        e = G.stream(self.D(0, I("@need xf6")) + self.D(1), d0, d0 + 32)
        d2 = max(e + 1, xfe[7] + 4)
        e = G.stream(self.D(2, I("@need xf7")) + self.D(3), d2, d2 + 32)
        G.stream(single(J("s_and_b32 {t0}, {nt}, {mp}\ns_lshl2_add_u32 {t2}, {b12}, {t0}\ns_lshl_b32 {t2}, {t2}, 5\ns_add_u32 {t2}, {t2}, {ni}\ns_lshl_b32 {t2}, {t2}, 11", mp=self.o("mp", 3)) + self.flag_addr()) +
                 [I("@wait poll") + self.spin(self.GATE_LD)] + self.x1_addr() + self.setupA(), e1 + 1, min(e0, self.o("xp", 465) + 30))
        late1 = self.o("x1late", 0)
        if not late1:
            G.put(self.o("xp", 465), I(self.POLL_LD, tag="poll"))
            G.stream(single(self.x1_pre()[:-1]), 490, 510)
        nin = self.o("nin", 1)
        t0_ = max(e + 1, U["L4"] + 32 if nin > 2 else 0, d0 + self.o("t0gap", 70))
        t0_ = min(t0_, 470)
        G.stream(self.TT(0, nin) + self.DD(4, 4 + nin), t0_, 506)
        gs_ = 18 - self.o("gsplit", 3)
        G.stream(chunks(self.wd_setup()) + chunks(self.gen_G(42, False)[:gs_]), 4, e0, spread=False)
        def epi(u, m, pk):
            g0, u0, g1_, u1 = [128 + ((4 * u + k) * 4 + m) * 4 for k in range(4)]
            g = []
            for gg in (g0, g1_): g += I("\n".join("v_max_f32 v%d, 0, v%d" % (gg + r, gg + r) for r in range(4)))
            for gg, uu in ((g0, u0), (g1_, u1)):
                if pk: g += I("v_pk_mul_f32 %s, %s, %s\nv_pk_mul_f32 %s, %s, %s" % (V(gg, 2), V(gg, 2), V(uu, 2), V(gg + 2, 2), V(gg + 2, 2), V(uu + 2, 2)))
                else: g += I("\n".join("v_mul_f32 v%d, v%d, v%d" % (gg + r, gg + r, uu + r) for r in range(4)))
            g += cvt(u0, g0, g0 + 1) + cvt(u0 + 1, g0 + 2, g0 + 3) + cvt(u0 + 2, g1_, g1_ + 1) + cvt(u0 + 3, g1_ + 2, g1_ + 3)
            return J("s_xor_b32 {t3}, {t2}, {o}", o=u * 1024 + m * 65536) + g + J("buffer_store_dwordx4 {r}, {l16b}, {SWS}, {t3} offen sc1", tag="pub", r=V(u0, 4))
        G.stream(single([epi(0, m, False) for m in range(4)]), e0 + 2, min(512, e0 + self.o("espan", 84)))
        for i in range(8): G.put(64 * i, self.stamp(i, 1))
        G.put(480, self.stamp(8, 1)); G.put(511, self.stamp(9, 1))
        p += G.out()
        p += self.stamp(2)
        ep = [epi(1, m, True) for m in range(4)]
        if not late1: p += self.x1_pre()[-1:] + self.x1_fetch()
        p += flat(weave([[]] + ep, self.TT(nin, 4)))
        if late1: p += I(self.POLL_LD, tag="poll")
        p += self.stamp(3) + self.stamp(0, 3)
        n1_ = min(8, 4 + nin + self.o("nw1", 0))
        p += flat(self.c_stage()) + self.stamp(1, 3) + flat(weave(self.gen_G(42, True)[gs_:] + gl, self.DD(4 + nin, n1_)))
        return p + self.tail(True, 4, n1_)

    def p12d(self):
        self.ffn = False; self.cstg = LDS_RPF; self.rip = 0
        def dma(s_):
            Q, m = divmod(s_, 4)
            gs = [J("s_add_u32 m0, {ring}, {o}", o=m * 4096)]
            if m == 0:
                gs = single(J("v_lshl_add_u32 {xr}, {k}, 7, {x}\nv_lshl_add_u32 {xr2}, {k}, 7, {vw}")) + gs
                if Q: gs = single(J("s_add_u32 {k}, {k}, 1\ns_and_b32 {k}, {k}, 3")) + gs
            for hf in range(2):
                for e in range(2):
                    g = J("buffer_load_dwordx4 {r}, {srd}, s{so} offen offset:{o} lds", tag="x_%d" % s_, r=NM[("xr", "xr2")[e]], srd=(SX, SWG)[hf], so=76 + m, o=(2 * hf + e) * 1024)
                    if Q and not hf and not e: g = I("@need xf_%d" % (s_ - 4)) + g
                    gs.append(g)
            return gs
        def raw(s_):
            return [I("@must x_%d" % s_)] + [I("ds_read_b128 %s, v%d offset:%d" % (A(16 * (s_ % 2) + 4 * f, 4), vWT[f], (s_ % 4) * 4096), tag="xf_%d" % s_) for f in range(4)]
        def fold(s_):
            return [I("%s %s, v[20:23], %s, 0" % (MF, V(48 + 4 * f, 4), A(16 * (s_ % 2) + 4 * f, 4))) for f in range(4)]
        def fcv(s_):
            return [cvt(32 + (s_ % 2) * 8 + q, 48 + 2 * q, 49 + 2 * q) for q in range(8)]
        def trd(Q):
            return [I("ds_read_b128 %s, %s offset:%d" % (A(64 + 64 * (Q % 2) + 4 * f, 4), NM["l16b"], Q * 16384 + f * 1024), tag="tq%d" % Q) for f in range(16)]
        p = I("@reset") + J("""s_add_u32 s76, s76, 0x800
s_add_u32 s77, s76, 0x80000
s_add_u32 s78, s76, 0x100000
s_add_u32 s79, s76, 0x180000
s_add_u32 {ni}, {xn}, 28
s_and_b32 {k}, {xcd}, {km}
s_mov_b32 {wb}, {k}
v_mov_b32 {vw}, v18
v_lshlrev_b32 {l16b}, 4, v0""", km=self.o("km", 6) & 2)
        tg, sel, late = self.gen_T()
        cl = self.c_loads(True)
        npk = self.o("npk", 0)
        p += self.srd_const(SWG, 2097152 + 3584) + flat(tg[:npk]) + I("s_waitcnt lgkmcnt(0)") + self.srd(SX, 48, 0, back=2048) + self.srd(SWG, 48, 0, back=3584)
        p += flat([dma(m) for m in range(3)])
        ntp = self.o("ntp", 8); tl = tg[1 + 2 * ntp:]; tg = tg[npk:1 + 2 * ntp]
        place(tg, len(tg) - self.o("d3", 1), dma(3))
        if self.o("pm", 0) == 4:
            p += self.common2()
            for i, k in enumerate((0, 1, 2, 3, 4, 5, 6, 7, 8)): place(tg, k, self.stamp(i, 4))
        p += flat(tg) + sel + (self.common2() if self.o("pm", 0) != 4 else []) + self.stamp(0) + self.stamp(9, 4)
        p += I("@waitlg0\ns_barrier") + self.stamp(1)
        t0_ = trd(0)
        p += flat(t0_[:8] + raw(0) + t0_[8:] + fold(0) + dma(4) + raw(1) + fcv(0))
        def mm(s_, h, tau):
            Q, m = divmod(s_, 4); acc = V(128 + (tau * 4 + m) * 4, 4)
            return I("%s %s, %s, %s, %s" % (MF, acc, V(32 + (s_ % 2) * 8 + 4 * h, 4), A(64 + 64 * (Q % 2) + (h * 8 + tau) * 4, 4), acc if Q or h else "0"))
        mf = []; at = {}
        for s_ in range(15):
            at[s_] = len(mf); mf += [mm(s_, 0, tau) for tau in range(6)]
            at["fold", s_ + 1] = len(mf); mf += fold(s_ + 1) + [mm(s_, 0, tau) for tau in (6, 7)] + [mm(s_, 1, tau) for tau in range(8)]
        at[15] = len(mf); mf += [mm(15, h, 4 * g + t) for g in range(2) for h in range(2) for t in range(4)]
        def s2(t):
            return [I("%s %s, %s, %s, %s" % (MF, V(128 + 16 * t + 4 * sg, 4), V(64 + 8 * t + 4 * v, 4), A(224 + (2 * sg + v) * 4, 4), V(128 + 16 * t + 4 * sg, 4) if v else "0"))
                    for v in range(2) for sg in range(4)]
        for t in range(8):
            at["s2", t] = len(mf); mf += s2(t)
        G = Gaps(mf)
        for s_ in range(1, 16):
            f = at["fold", s_]
            if s_ > 1: G.stream(raw(s_), f - self.o("rawa", 11), f - 4, spread=False)
            G.put(f - 1, I("@wait xf_%d" % s_))
            G.stream(fcv(s_), f + 6, f + 12, spread=False)
            if s_ + 4 < 16: G.stream(dma(s_ + 4) + (cl[-4:] if s_ + 4 == self.o("dcs", 16) else []), f, f + 8)
        for Q in range(1, 4):
            G.stream(trd(Q), at[4 * Q - 4] + 2, at[4 * Q] - 8); G.put(at[4 * Q] - 1, I("@wait tq%d" % Q))
        G.stream(single(J("s_mul_i32 {wb}, {wb}, 0x40004000") + flat([J("v_xor_b32 v{r}, {wb}, v{r}", r=20 + i) for i in range(4)])), at["fold", 7] + 4, at["fold", 8] - 2, spread=False)
        for Q in range(ntp // 2, 4):
            G.stream(single(tl[4 * Q - 2 * ntp:4 * Q - 2 * ntp + 4]), at[4 * Q - 8] + 1, at[4 * Q - 4] - 6)
            G.put(at[4 * Q - 4] + 1, I("@must ttab%d\ns_barrier" % Q))
        e = G.stream((cl[:-4] if self.o("dcs", 16) < 16 else []) + single(late), 2 if ntp == 8 else at[8], at[12] + 6)
        rr = [I("@wait r64f\ns_barrier"), J("v_add_u32 v24, {a}, {l16b}", a=LDS_STG)] + [I("ds_read_b128 %s, v24 offset:%d" % (A(224 + 4 * f, 4), f * 1024)) for f in range(8)]
        G.stream(rr, e + 6, at[15])
        pre = J("""v_lshrrev_b32 v26, 2, {l16}
v_lshlrev_b32 v26, 17, v26
v_lshl_add_u32 v26, {hi}, 6, v26
v_and_b32 v25, 3, v0
v_lshl_add_u32 {xr}, v25, 4, v26
s_lshr_b32 s76, {xn}, 1
s_lshl_b32 s76, s76, 7
s_add_u32 s76, s76, {b12}
s_and_b32 {t0}, {xn}, 1
s_lshl1_add_u32 s76, s76, {t0}
s_lshl_b32 s76, s76, 8
s_add_u32 s76, s76, {x1}
s_add_u32 s77, s76, 0x80000
s_add_u32 s78, s76, 0x100000
s_add_u32 s79, s76, 0x180000""", x1=WS_X1) + self.flag_addr()
        G.stream(single(pre), e + 1, at[15])
        G.stream(self.gate_ld(), at["s2", 0] + 8, at["s2", 2])
        def cv(t, m): return [cvt(64 + 8 * t + 2 * m + i, 128 + 16 * t + 4 * m + 2 * i, 129 + 16 * t + 4 * m + 2 * i) for i in range(2)]
        for m in range(3):
            G.stream([g for t in range(8) for g in cv(t, m)], at[13 + m] + 1, at[13 + m] + (19 if m < 2 else 11), spread=False)
        G.stream([g for t in range(4) for g in cv(t, 3)], at[15] + 10, at["s2", 0] + 2, spread=False)
        G.stream([g for t in range(4, 8) for g in cv(t, 3)], at["s2", 0] + 3, at["s2", 2], spread=False)
        def st(tp):
            gs = []
            for sg in range(4):
                o = 32 + 16 * (tp % 2) + 4 * sg; d0 = 128 + 32 * tp + 4 * sg; d1 = d0 + 16
                gs += [cvt(o, d0, d0 + 1), cvt(o + 1, d0 + 2, d0 + 3), cvt(o + 2, d1, d1 + 1), cvt(o + 3, d1 + 2, d1 + 3),
                       J("buffer_store_dwordx4 {r}, {xr}, {SWS}, s{so} offen sc1", tag="pub", r=V(o, 4), so=76 + sg)]
                if tp < 3: gs.append(I("s_add_u32 s%d, s%d, 16384" % (76 + sg, 76 + sg)))
            return gs
        for tp in range(3):
            G.stream(st(tp), at["s2", 2 * tp + 2] + 1, at["s2", 2 * tp + 2] + 16, spread=False)
        for i in range(10): G.put(min(40 * i, len(G) - 1), self.stamp(i, 1))
        p += G.out()
        p += self.stamp(2)
        p += flat(st(3))
        p += self.stamp(3)
        p += self.spin(self.GATE_LD)
        p += self.wd_setup() + flat(self.gen_R(0, 128))
        p += self.set_flag()
        p += self.stamp(4)
        if self.o("dcs", 16) < 16: p += I("\n".join("v_accvgpr_read_b32 v%d, a%d" % (32 + i, 32 + i) for i in range(10)))
        else: p += flat(self.c_loads())
        p += flat(self.gen_R(1, 160))
        p += I("@waitlg0\ns_barrier")
        nd = self.o("dnd", 2)
        p += flat(weave(self.rp_reads() + self.x1_addr() + self.setupA(), self.DD(0, nd)))
        p += I("@wait rp\ns_barrier")
        p += flat(self.g_loads() + self.c_stage())
        p += I(self.POLL_LD, tag="poll")
        return p + self.tail(False, 0, nd)

    def touch(self, r):
        if r >= self.o("touch", 1): return []
        gs = [I("v_lshlrev_b32 v17, 5, v0")] if r == 0 else [J("s_add_u32 {lw}, {lw}, 0x38000"), J("s_sub_u32 s3, {lw}, 0x1c0000\ns_cselect_b32 {lw}, {lw}, s3")]
        return gs + [J("buffer_load_dword a{d}, v17, {SWD}, {lw} offen", d=160 + r)]
    def touch3(self):
        if not self.o("touch3", 1): return []
        return [J("s_lshr_b32 s3, s2, 3\ns_lshl2_add_u32 s3, s3, {w}\ns_lshl_b32 s3, s3, 14"), J("v_and_b32 v28, 60, v0"), J("v_lshlrev_b32 v28, 8, v28"),
                J("buffer_load_dword a172, v28, {SWD}, s3 offen offset:384")]
    def retouch(self):
        if not self.o("retouch", 1): return []
        l = self.lab("pc")
        return [J("s_getpc_b64 {m2}\n{l}:\ns_lshr_b32 s3, s2, 3\ns_lshl_b32 s3, s3, 2", l=l)] + single(J("""s_add_u32 s3, s3, {w}
s_lshl_b32 s3, s3, 9
v_lshl_add_u32 v28, v0, 3, s3
v_min_u32 v28, L_end-{l}, v28
global_load_dword a170, v28, {m2}""", l=l))

    def x1_pre(self):
        return J("""s_lshr_b32 {t0}, {bp}, 1
s_lshl3_add_u32 {t0}, {t0}, {nt}
s_lshl2_add_u32 {t0}, {t0}, {w}
s_lshl_b32 {t0}, {t0}, 7
s_and_b32 {t1}, {bp}, 1
s_add_u32 {t0}, {t0}, {t1}
s_lshl_b32 {t0}, {t0}, 5
s_add_u32 {t0}, {t0}, {x1}
v_and_b32 v26, 62, v0
v_lshl_add_u32 v26, v26, 4, {l16b}
v_add_u32 v25, 0x400, v26
s_lshl_b32 {t1}, {w}, 11
s_add_u32 m0, {t1}, {stg}""", x1=WS_X1, stg=LDS_STG)

    def x1_fetch(self):
        return self.spin(self.POLL_LD) + J("buffer_load_dwordx4 v26, {SWS}, {t0} offen sc1 lds\nbuffer_load_dwordx4 v25, {SWS}, {t0} offen offset:1024 sc1 lds", tag="x1") + self.stamp(5)
    def setupA(self):
        return single(J("""s_lshl_b32 s76, {nt}, 1
s_lshr_b32 {t1}, {w}, 1
s_add_u32 s76, s76, {t1}
s_lshr_b32 {t1}, {bp}, 3
s_lshl_b32 {t1}, {t1}, 4
s_add_u32 s76, s76, {t1}
s_lshl_b32 s76, s76, 3
s_and_b32 {t1}, {bp}, 7
s_add_u32 s76, s76, {t1}
s_lshr_b32 {t1}, {bp}, 2
s_xor_b32 {t1}, {t1}, {w}
s_and_b32 {t1}, {t1}, 1
s_lshl1_add_u32 s76, s76, {t1}
s_lshl_b32 s76, s76, 6
s_add_u32 s76, s76, {u}
s_add_u32 s77, s76, 0x80000
s_add_u32 s78, s76, 0x100000
s_add_u32 s79, s76, 0x180000
v_lshrrev_b32 v24, 1, {l16}
v_lshlrev_b32 v26, 16, v24
v_and_b32 v25, 1, v0
v_lshl_add_u32 v26, v25, 5, v26
v_lshl_add_u32 {xr}, {hi}, 3, v26
s_lshl2_add_u32 {t0}, {nt}, {w}
v_and_or_b32 v28, v0, 7, {t0}
v_cmp_eq_u32 vcc, 0, v28
v_bfe_u32 v28, v0, 3, 1
v_xor_b32 v28, 1, v28
v_lshl_or_b32 v18, v28, 31, 1.0
s_lshl_b32 {t0}, {w}, 5
s_add_u32 {t0}, {t0}, {stg}
v_lshrrev_b32 v24, 3, v0
v_cndmask_b32 v18, v18, 0, vcc
v_lshl_add_u32 v19, v24, 8, {t0}
v_lshl_add_u32 v19, v25, 7, v19
v_bfe_u32 v25, v0, 1, 2
v_lshl_add_u32 v19, v25, 3, v19""", u=WS_U, stg=LDS_STG))
    def setupB(self):
        if self.pair: return single(J("""s_lshl_b32 {he}, {bp}, 8
s_add_u32 {he}, {he}, {rot}
s_lshl_b32 {he}, {he}, 10
s_xor_b32 {hs}, {he}, {hx}
s_andn2_b32 {t1}, {bp}, {m}
s_lshl_b32 {t1}, {t1}, 5
s_lshr_b32 {t0}, {rot}, 1
s_add_u32 {t0}, {t0}, {t1}
s_lshl_b32 {t0}, {t0}, 7
s_add_u32 {wo1}, {t0}, {fl}
v_lshrrev_b32 v24, 5, v0
v_mul_u32_u24 v24, {fx}, v24
v_bfe_u32 {pa}, v0, 3, 2
v_lshl_add_u32 {pa}, {pa}, 7, v24
s_nop 0
s_lshl3_add_u32 {wo0}, {bp}, {nt}
s_lshl_b32 {wo0}, {wo0}, {ush}
s_add_u32 {wo0}, {wo0}, {cnt}
v_mov_b32 v19, 1
v_add_u32 v9, {r64}, {l16b}""", hx=self.pair << 18, m=self.pair, fx=self.pair << 12, fl=WS_FLAG, r64=LDS_R64I, cnt=WS_CNT, ush=self.o("ush", 5)))
        return single(J("""s_lshl_b32 {hs}, {bp}, 8
s_mul_i32 {t0}, {w}, 14
s_add_u32 {hs}, {hs}, {t0}
s_lshl_b32 {hs}, {hs}, 10
s_nop 0
s_nop 0
s_nop 0
s_mul_i32 {t0}, {w}, 7
s_lshl_b32 {t1}, {bp}, 5
s_add_u32 {t0}, {t0}, {t1}
s_lshl_b32 {t0}, {t0}, 7
s_add_u32 {wo1}, {t0}, {fl}
v_lshrrev_b32 v24, 3, v0
v_min_u32 {pa}, 6, v24
v_lshlrev_b32 {pa}, 7, {pa}
s_lshl3_add_u32 {wo0}, {bp}, {nt}
s_lshl_b32 {wo0}, {wo0}, {ush}
s_add_u32 {wo0}, {wo0}, {cnt}
v_mov_b32 v19, 1
v_add_u32 v9, {r64}, {l16b}""", hl=14 * 4096, fl=WS_FLAG, r64=LDS_R64I, cnt=WS_CNT, ush=self.o("ush", 5)))
    def setupC(self):
        return single(J("""s_lshl_b32 {wo1}, {w}, {ush6}
s_add_u32 {wo1}, {wo1}, {cnt}
v_lshlrev_b32 {pa}, {ush}, v0
s_lshl_b32 {t2}, {bp}, 16
s_lshl_b32 {t3}, {w}, 14
s_add_u32 {t2}, {t2}, {t3}
s_add_u32 {t2}, {t2}, {u}
s_lshl_b32 {t0}, {bp}, 8
s_add_u32 {t0}, {t0}, {g}
v_lshrrev_b32 v24, 1, {l16}
v_lshlrev_b32 v24, 7, v24
v_and_b32 v25, 1, v0
v_lshl_add_u32 v24, v25, 5, v24
v_lshrrev_b32 v27, 1, {hi}
v_bfe_u32 v28, v0, 3, 1
v_xor_b32 v28, v27, v28
v_lshl_add_u32 v24, v28, 6, v24
v_and_b32 v26, 1, {hi}
v_lshl_add_u32 {vw}, v26, 4, v24
v_lshrrev_b32 v24, 3, v0
v_xor_b32 v25, v24, v0
v_and_b32 v25, 7, v25
v_lshlrev_b32 v24, 15, v24
v_lshl_add_u32 {x}, v25, 4, v24
v_lshl_add_u32 v24, {w}, 1, v27
v_xor_b32 v24, v24, v0
v_and_b32 v24, 7, v24
v_lshlrev_b32 v24, 4, v24
v_lshl_add_u32 v24, {l16}, 7, v24
v_lshl_add_u32 v24, v26, 3, v24
v_add_u32 v6, {stg}, v24
s_lshl_b32 {t1}, {w}, 10
s_add_u32 {t1}, {t1}, {stg}
v_add_u32 v7, {t1}, {l16b}
v_lshlrev_b32 v8, 4, {l16}
s_lshl3_add_u32 s76, {bp}, {nt}
s_lshl_b32 s76, s76, 7
s_lshl_b32 {t1}, {w}, 18
s_add_u32 s76, s76, {t1}
s_add_u32 s77, s76, 0x100000""", u=WS_U, g=WS_G, stg=LDS_STG, cnt=WS_CNT, ush=self.o("ush", 5), ush6=self.o("ush", 5) + 6))
    def tail(self, ffn, nxt_t, nxt_d):
        st = dict(t=nxt_t, d=nxt_d)
        def pump(nd):
            gs = []
            for _ in range(nd):
                if st["d"] >= self.NU: break
                nx = self.loc(min(self.NU - 1, st["d"] + 1))[1]; pv = self.loc(st["d"])[1]
                while st["t"] <= max(-1 if nx is None else nx, -1 if pv is None else pv):
                    gs += self.T(st["t"]); st["t"] += 1
                gs += self.D(st["d"]); st["d"] += 1
            return gs
        def W(a, b): return flat(weave(a, b)) if b else flat(a)
        c1, c2 = self.c_calc()
        p = flat(c1[:-8])
        p += self.stamp(2, 3) + I("@wait x1 cst\ns_barrier") + self.stamp(3, 3)
        XF, DD, PP, EE, PK, UP = 128, 136, 152, 168, 184, 128
        p += flat(c1[-8:])
        late1 = self.o("x1late", 0) or not ffn
        sB = self.setupB()
        if late1:
            rip = self.rip; gcs = self.g_calc() + [self.g_store()]
            nc2 = self.o("nc2", 71) if ffn else 71
            p += W(([] if rip else self.gen_R(2, 160)) + c2[:nc2], pump(self.o("pump0", 0) if ffn else 1))
            p += self.x1_pre() + self.stamp(4, 3)
            if ffn: p += self.set_flag() + self.stamp(4)
            p += self.x1_fetch() + self.stamp(5, 3)
            p += W(c2[nc2:] + (self.gen_R(1, 160, LDS_R64I) if rip else gcs) + sB[:18] + sB[19:], pump(self.o("pump1", 2)))
            p += self.stamp(6, 3) + I("@wait x1 rtab\ns_barrier") + self.stamp(7, 3)
            if self.o("hp", 1) == 0 and ffn: p += I(self.POLL_LD, tag="poll")
        for k in range(4):
            p += I("ds_read_b64_tr_b16 %s, v19 offset:%d" % (V(XF + 2 * k, 2), 2048 * k))
        mf = [I("%s %s, %s, %s, %s" % (MF, V(DD + 4 * tau, 4), A(224 + (2 * tau + v) * 4, 4), V(XF + 4 * v, 4), V(DD + 4 * tau, 4) if v else "0")) for v in range(2) for tau in range(4)]
        if late1:
            G = Gaps(mf); pm = pump(self.o("pump2", 1))
            if pm: G.stream(pm, 0, 8)
            p += G.out() + sB[18] + flat([I("ds_read_b128 %s, v9 offset:%d" % (A((192 if rip else 224) + 4 * f, 4), f * 1024)) for f in range(8)])
            if self.o("hp", 1) == 1 and ffn: p += I(self.POLL_LD, tag="poll")
        else: p += flat(weave(c2, mf, 12, 52)) + self.stamp(4, 3)
        dpp = "row_ror:8 row_mask:0xf bank_mask:0xf"
        cA, cB, cC, cD = CO, CO + 8, CO + 16, CO + 24
        def pk(op, d, a, b, neg=False):
            g = []
            for e in range(0, 8, 2):
                if op == "mul": g += I("v_pk_mul_f32 %s, %s, %s" % (V(d + e, 2), V(a + e, 2), V(b + e, 2)))
                else: g += I("v_pk_fma_f32 %s, %s, %s, %s%s" % (V(d + e, 2), V(a + e, 2), V(b + e, 2), V(d + e, 2), " neg_lo:[1,0,0] neg_hi:[1,0,0]" if neg else ""))
            return g
        fpos = -1 if late1 or not ffn else self.o("fpos", 0)
        if fpos == 0: p += self.set_flag() + self.stamp(4)
        q = []
        for e in range(16): q += I("v_mul_f32_dpp v%d, v%d, v18 %s" % (PP + e, DD + e, dpp))
        q += pk("mul", EE, cA, DD) + pk("mul", EE + 8, cC, DD) + pk("fma", EE, cB, PP) + I("v_mov_b32 v%d, v%d\nv_mov_b32 v%d, v%d" % (cA, CA2, cB, CB2))
        q += pk("fma", EE + 8, cD, PP) + pk("fma", EE, cC, DD + 8, True) + pk("fma", EE + 8, cA, DD + 8) + pk("fma", EE, cD, PP + 8, True) + pk("fma", EE + 8, cB, PP + 8)
        p += W(single(q), pump(self.o("pump3", 0)))
        p += self.pack(PK, EE)
        mf = [I("%s %s, %s, %s, %s" % (MF, V(DD + 4 * kt, 4), V(PK + 4 * v, 4), A(192 + (2 * kt + v) * 4, 4), V(DD + 4 * kt, 4) if v else "0")) for v in range(2) for kt in range(4)]
        q = self.pack(PK + 4, EE + 8)
        p += q[:2]
        G = Gaps(mf); G.put(0, q[2:])
        if not late1: G.stream(sB[:15], 1, 8, spread=False)
        elif self.o("hp", 1) == 2 and ffn: G.put(1, I(self.POLL_LD, tag="poll"))
        p += G.out()
        if fpos == 1: p += self.set_flag() + self.stamp(4)
        for kt in range(4):
            p += cvt(UP + 2 * kt, DD + 4 * kt, DD + 4 * kt + 1) + cvt(UP + 2 * kt + 1, DD + 4 * kt + 2, DD + 4 * kt + 3)
            p += J("buffer_store_dwordx2 {r}, {xr}, {SWS}, s{so} offen sc1", tag="ust", r=V(UP + 2 * kt, 2), so=76 + kt)
        p += self.stamp(6) + self.stamp(8 if late1 else 5, 3)
        l = self.lab("nosig")
        usig = I("@wait ust gst rtab") + J("s_barrier\ns_cmp_lg_u32 {w}, 0") + \
               J("s_cbranch_scc1 {l}\ns_mov_b64 exec, 1\nbuffer_store_dword v19, v0, {SWS}, {wo0} offen sc1\ns_mov_b64 exec, -1\n{l}:", raw=True, l=l)
        if late1:
            if not ffn:
                gG = self.gen_G(136, True)
                p += W(gG[:8], pump(2)) + usig + W(gG[8:], pump(3)) + flat(pump(2)) + I(self.POLL_LD, tag="poll") + flat(pump(9))
                usig = []
            else: p += W(gcs + self.gen_R(2, 160, LDS_RPF), pump(self.o("pumpb", 2))) if rip else flat(pump(self.o("pumpb", 2)))
            if rip: usig += J("v_add_u32 v9, {a}, {l16b}", a=LDS_RPF) + flat([I("ds_read_b128 %s, v9 offset:%d" % (A(224 + 4 * f, 4), f * 1024)) for f in range(8)])
            if self.o("hp", 1) == 3 and ffn: p += I(self.POLL_LD, tag="poll")
            p += flat(pump(self.o("pumpc", 0)))
            if self.o("upos", 0) == 0: p += usig
        else:
            if fpos == 2: p += self.set_flag() + self.stamp(4)
            p += flat(self.g_calc()) + self.g_store() + flat(sB[15:])
            p += W(self.gen_R(2, 160), pump(self.o("pumpa", 2)))
            r64 = flat([I("ds_read_b128 %s, v9 offset:%d" % (A(224 + 4 * f, 4), f * 1024)) for f in range(8)])
            ue = self.o("ue", 1)
            if ue == 1: p += self.stamp(6, 3) + usig + r64 + self.stamp(7, 3)
            p += I(self.POLL_LD, tag="poll")
            if ue == 2: p += self.stamp(6, 3) + usig + r64 + self.stamp(7, 3)
            tpre = max(st["t"], min(st["d"], self.o("tpre0", 6)))
            p += flat(self.TT(st["t"], tpre)); st["t"] = tpre
            p += flat(pump(self.o("pumpb", 2)))
            if ue == 0: p += usig + r64
            p += self.stamp(8, 3)
        xo = self.o("xo", 0)
        if xo > 0: p += J("v_lshl_add_u32 v44, {rot}, 10, {l16b}\nv_xor_b32 v45, 0x400, v44\nv_xor_b32 v46, 0x800, v44\nv_xor_b32 v47, 0xc00, v44\nv_and_b32 v4, 0x7ff, v44\nv_and_b32 v18, 0x7ff, v45")
        p += self.spin(self.POLL_LD)
        p += self.stamp(7) + self.stamp(9, 3)
        if self.pair: return p + self.p4pair(ffn, st, pump, W)
        NS = 16; na = self.o("na", 8)
        order = [(u, s_) for u0 in range(0, na, 2) for s_ in range(4) for u in (u0, u0 + 1)] + [(u, s_) for s_ in range(4) for u in range(na, 14)]
        pos_ = dict((x_, k) for k, x_ in enumerate(order))
        hb = [None]
        def hload(k):
            u, s_ = order[k]; gs = []; o = s_ * 65536 + u * 1024
            if hb[0] is None or not hb[0] <= o < hb[0] + 4096:
                hb[0] = o; gs.append(J("s_add_u32 {ho}, {hs}, {o}", o=o))
            return gs + [J("buffer_load_dwordx4 {r}, {l16b}, {SWS}, {ho} offen offset:{o} sc1", tag="h%d" % k, r=V(192 + 4 * (k % NS), 4), o=o - hb[0])]
        npre = self.o("npre", 12)
        redadr = []
        for dl in range(4):
            redadr += J("s_xor_b32 {t1}, {w}, {dl}\ns_mul_i32 {t1}, {t1}, 3072\ns_add_u32 {t1}, {t1}, {o}\nv_add_u32 v{r}, {t1}, {l16b}", dl=dl, o=76 * 1024 + max(0, dl - 1) * 1024, r=32 + dl)
        ro = [61440, 0, 12288, 24576]
        p += W([g for k in range(npre) for g in hload(k)], self.setupC())
        tpre = max(st["t"], min(st["d"], self.o("tpre", 4)))
        p += flat(self.TT(st["t"], tpre)); st["t"] = tpre
        if late1 and self.o("upos", 0) == 1: p += usig
        s5 = self.o("s5", 80); AO = GB; LA = self.o("la5", 10); PK5 = 36
        def m4(k, dl):
            u, s_ = order[k]; d = V(128 + (dl * 4 + s_) * 4, 4)
            return I("%s %s, %s, %s, %s" % (MF, d, A(self.wd_reg(u, dl), 4), V(192 + 4 * (k % NS), 4), d if u else "0"))
        ar = lambda k: A(self.wd_reg((k % 16) // 4, k % 4), 4)
        def m5(k):
            n, sg = divmod(k, 4); d = V(ACCV + 4 * sg, 4)
            return I("%s %s, %s, %s, %s" % (MF, d, ar(k), V(GB + 4 * n, 4), d if n else "0"))
        mf = []; at = {}; k5 = 0; fin = None
        for i in range(224):
            k, dl = divmod(i, 4)
            if order[k][0] == 13: dl = (dl + 1) % 4
            at[(k, i % 4)] = len(mf); mf.append(m4(k, dl))
            if i >= s5 and k5 < 64:
                at[k5] = len(mf); mf.append(m5(k5)); k5 += 1
            if k5 == 64 and fin is None and len(mf) >= at[63] + 12:
                fin = len(mf)
                mf += [I("%s %s, %s, %s, %s" % (MF, V(AO + 4 * a_, 4), V(PK5 + 4 * v, 4), A(224 + (2 * a_ + v) * 4, 4), V(AO + 4 * a_, 4) if v else "0")) for v in range(2) for a_ in range(4)]
        assert at[0] - LA >= 64 and na >= 4
        G = Gaps(mf); N = len(mf)
        for k in range(1, 56): G.put(at[(k, 0)] - 1, I("@wait h%d" % k))
        for k in range(64):
            pos = at[k - LA] if k >= LA else at[0] - (LA - k)
            if k % 16 == 0: G.put(pos - 1, I("@must u%d\ns_barrier" % (k // 16)))
            G.put(pos, J("ds_read_b128 {r}, {vw} offset:{o}", tag="a%d" % k, r=ar(k), o=(k % 4) * 16384 + (k // 4) * 1024))
            if k % 2 == 0: G.put(at[k] - 1, I("@wait a%d" % (k + 1)))
        G.put(at[0] + 1, J("buffer_load_dwordx4 v[20:23], v8, {SWS}, {t0} offen sc1"))
        hd = self.o("hd", 48)
        def ud(c):
            return [J("s_add_u32 m0, {t3}, {o}", o=c * 4096)] + ([J("s_add_u32 {t2}, {t2}, 4096")] if c else []) + \
                   [J("buffer_load_dwordx4 {l16b}, {SWS}, {t2} offen offset:{o} sc1 lds", tag="u%d" % c, o=1024 * k) for k in range(4)]
        use = lambda u: at[(pos_[(u, 0)], 0)]
        occ = lambda c: max([u for u in range(14) if self.loc(u)[0] == 0 and self.loc(u)[2] == c] + [-1])
        items = [(at[(k, 0)], 1, k) for k in range(npre, 56)] + [(at[16 * c] - (2 if c else 1) * LA - 1, 0, c) for c in range(4)]
        for n_, u in enumerate(range(st["d"], 14)):
            lim = use(u) - 24
            if self.loc(u)[0] == 0: lim = min(lim, at[16 * self.loc(u)[2]] - 2 * LA - hd - 20)
            items.append((min(lim, hd + self.o("l0", 0) + n_ * self.o("lsp", 16)), 2, u))
        items.sort()
        last = 0; dpos = {}; upos_ = {}
        for need, kind, k in items:
            want = max(last, need - hd)
            if kind == 1:
                w_ = max(want, last + 1, at[(k - NS, 3)] if k >= NS else 0)
                last = G.stream(hload(k), w_, w_ + 4, spread=False)
            elif kind == 2:
                dpos[k] = want; last = G.stream(self.D(k), want + 1, want + 9); dpos[k, "e"] = last
            else:
                upos_[k] = want
                if k == 0:
                    G.put(max(0, want - self.o("pgap", 30)), I(self.POLL_LD, tag="poll"))
                    G.put(want, self.stamp(8) + I("@wait poll") + self.spin(self.POLL_LD, sleep=4))
                last = G.stream(([I("@must t%d" % occ(k))] if occ(k) >= 0 else []) + ud(k), want + 1, want + 11)
        dl_ = {}
        for u in range(13, st["t"] - 1, -1):
            d_ = min([use(u) - 3] + [dpos[v] for v in range(14) if v in dpos and self.loc(v)[1] == u] + [upos_[c] for c in range(4) if occ(c) == u])
            dl_[u] = min(d_, dl_[u + 1] - 5) if u < 13 else d_
        e = 0; tearly = []
        for u in range(st["t"], 14):
            if dl_[u] < 8:
                assert u not in dpos
                tearly += self.T(u); continue
            a_ = max(e, dl_[u] - 14, 0)
            assert a_ > dpos.get((u, "e"), -1), (u, a_, dpos)
            e = G.stream(self.T(u), a_, dl_[u], spread=False)
            assert e <= dl_[u]
        p += flat(tearly)
        G.stream(single(redadr), 8, 60)
        def red_w(s_): return [I("ds_write_b128 v%d, %s offset:%d" % (32 + dl, V(128 + (dl * 4 + s_) * 4, 4), ro[s_]), tag="rw%d" % s_) for dl in (1, 2, 3)]
        def red_r(s_): return [I("ds_read_b128 %s, v32 offset:%d" % (V(128 + (dl * 4 + s_) * 4, 4), ro[s_] + (dl - 1) * 1024), tag="rr%d" % s_) for dl in (1, 2, 3)]
        def red_a(s_):
            b = 128 + 4 * s_
            return single([I("v_add_f32 v%d, v%d, v%d" % (b + o + r, b + o + r, b + o + q + r)) for o, q in ((0, 16), (32, 16), (0, 32)) for r in range(4)])
        def mix(a_):
            b = 128 + 4 * a_
            return single(I("\n".join("v_fma_f32 v%d, v%d, v%d, v%d" % (b + r, b + r, 20 + a_, AO + 4 * a_ + r) for r in range(4))) +
                          cvt(56 + 2 * a_, b, b + 1) + cvt(57 + 2 * a_, b + 2, b + 3) + I("ds_write_b64 v6, %s offset:%d" % (V(56 + 2 * a_, 2), a_ * 2048), tag="ow%d" % a_))
        G.stream(single(self.pack(PK5, ACCV) + self.pack(PK5 + 4, ACCV + 8)), at[63] + 4, fin - 1, spread=False)
        gm = I("\n".join("v_mul_f32 v%d, %s, v%d" % (GB + 16 + a_, fhex(2.0 ** -19), 20 + a_) for a_ in range(4)))
        gm += I("\n".join("v_sub_f32 v%d, 1.0, v%d" % (20 + a_, 20 + a_) for a_ in range(4)))
        bars = {}; rend = {}
        for s_ in range(3):
            e = at[(pos_[(13, s_)], 3)]
            e = G.stream(red_w(s_), e + 3, e + 9)
            bars[s_] = e + 4
            G.put(e + 4, I("@must rw%d t13%s\ns_barrier" % (s_, " ow1" if s_ == 2 else "")))
            e = G.stream(red_r(s_) + ([I("ds_read_b128 v[36:39], v7")] if s_ == 2 else []), e + 5, e + 10, spread=False)
            if s_ < 2:
                G.put(e + 5, I("@wait rr%d" % s_))
                rend[s_] = G.stream(red_a(s_), e + 6, e + 16, spread=False)
        e = G.stream(single(gm), fin, fin + 8, spread=False)
        e = G.stream(single(I("\n".join("v_mul_f32 v%d, v%d, v%d" % (AO + i, GB + 16 + i // 4, AO + i) for i in range(16)))), max(e, fin + 9), fin + 24, spread=False)
        e = G.stream(mix(0), max(e, rend[0]) + 1, bars[2] - 6, spread=False)
        e = G.stream(mix(1), max(e, rend[1]) + 1, bars[2] - 1, spread=False)
        assert e < bars[2]
        ost = lambda h_: J("buffer_store_dwordx4 {r}, {x}, {SOUT}, s{so} offen {f}", r=V(36 + 4 * h_, 4), so=76 + h_, f=("", "sc1", "nt")[self.o("ost", 1)])
        ra = red_a(2); nfit = max(0, min(12, 2 * (N - bars[2] - 11)))
        if nfit: G.stream(ra[:nfit], bars[2] + 10, N, spread=False)
        for i in range(10): G.put(min(32 * i, len(G) - 1), self.stamp(i, 2))
        p += G.out()
        p += self.stamp(9)
        p += ost(0) + flat(weave(red_w(3), ra[nfit:] + mix(2))) + I("@wait rw3\ns_barrier") + flat(red_r(3))
        for o, q in ((0, 16), (32, 16), (0, 32)):
            for hh in (0, 2): p += I("v_pk_add_f32 %s, %s, %s" % (V(140 + o + hh, 2), V(140 + o + hh, 2), V(140 + o + q + hh, 2)))
        p += flat(mix(3)) + I("@waitlg0\ns_barrier\nds_read_b128 v[40:43], v7 offset:4096") + ost(1)
        return p + self.ending(ffn)

    def p4pair(self, ffn, st, pump, W):
        NS = 16; hb = [None]
        def hload(k):
            t, u = divmod(k, 7); gs = []; o = (t % 4) * 65536 + u * 1024
            if u % 4 == 0:
                hb[0] = o; gs.append(J("s_add_u32 {ho}, {b}, {o}", o=o, b=NM["hs" if t < 4 else "he"]))
            return gs + [J("buffer_load_dwordx4 {r}, {l16b}, {SWS}, {ho} offen offset:{o} sc1", tag="h%d" % k, r=V(192 + 4 * (k % NS), 4), o=o - hb[0])]
        npre = self.o("npre", 12)
        adr = []
        for dl in range(4):
            adr += J("s_xor_b32 {t1}, {w}, {dl}\ns_mul_i32 {t1}, {t1}, 3072\ns_add_u32 {t1}, {t1}, {o}\nv_add_u32 v{r}, {t1}, {l16b}", dl=dl, o=76 * 1024 + max(0, dl - 1) * 1024, r=32 + dl)
        adr += J("""s_lshl3_add_u32 {t1}, {bp}, {nt}
s_lshl_b32 {wo0}, {t1}, 7
s_add_u32 {wo0}, {wo0}, {pf}
s_lshl2_add_u32 s78, {t1}, {w}
s_lshl_b32 s78, s78, 12
s_xor_b32 s79, s78, {px}
s_add_u32 s78, s78, {pb}
s_add_u32 s79, s79, {pb}""", pf=WS_PF, pb=WS_P, px=self.pair << 17)
        ro = [61440, 0, 12288, 24576]
        p = flat(pump(7)) + W([g for k in range(npre) for g in hload(k)], self.setupC() + single(adr))
        p += flat(self.TT(st["t"], 7))
        s5 = self.o("s5", 116); AO = GB; LA = self.o("la5", 10); PK5 = 36; RC = GB + 24
        def m4(k, dl):
            t, u = divmod(k, 7); d = V(128 + (dl * 4 + t % 4) * 4, 4)
            return I("%s %s, %s, %s, %s" % (MF, d, A(self.wd_reg(u, dl), 4), V(192 + 4 * (k % NS), 4), d if u else "0"))
        ar = lambda k: A(80 + 4 * (k % 16), 4)
        def m5(k):
            n, sg = divmod(k, 4); d = V(ACCV + 4 * sg, 4)
            return I("%s %s, %s, %s, %s" % (MF, d, ar(k), V(GB + 4 * n, 4), d if n else "0"))
        mf = []; at = {}; k5 = 0; fin = None
        for i in range(224):
            k, dl = divmod(i, 4)
            if k % 7 == 6: dl = (dl + 1) % 4
            at[(k, i % 4)] = len(mf); mf.append(m4(k, dl))
            if i >= s5 and k5 < 64:
                at[k5] = len(mf); mf.append(m5(k5)); k5 += 1
            if k5 == 64 and fin is None and len(mf) >= at[63] + 12:
                fin = len(mf)
                mf += [I("%s %s, %s, %s, %s" % (MF, V(AO + 4 * a_, 4), V(PK5 + 4 * v, 4), A(224 + (2 * a_ + v) * 4, 4), V(AO + 4 * a_, 4) if v else "0")) for v in range(2) for a_ in range(4)]
        G = Gaps(mf); N = len(mf)
        for k in range(1, 56): G.put(at[(k, 0)] - 1, I("@wait h%d" % k))
        for k in range(64):
            pos = at[k - LA] if k >= LA else at[0] - (LA - k)
            if k % 16 == 0: G.put(pos - 1, I("@must u%d\ns_barrier" % (k // 16)))
            G.put(pos, J("ds_read_b128 {r}, {vw} offset:{o}", tag="a%d" % k, r=ar(k), o=(k % 4) * 16384 + (k // 4) * 1024))
            if k % 2 == 0: G.put(at[k] - 1, I("@wait a%d" % (k + 1)))
        G.put(at[0] + 1, J("buffer_load_dwordx4 v[20:23], v8, {SWS}, {t0} offen sc1"))
        hd = self.o("hd", 48)
        def ud(c):
            return [J("s_add_u32 m0, {t3}, {o}", o=c * 4096)] + ([J("s_add_u32 {t2}, {t2}, 4096")] if c else []) + \
                   [J("buffer_load_dwordx4 {l16b}, {SWS}, {t2} offen offset:{o} sc1 lds", tag="u%d" % c, o=1024 * k) for k in range(4)]
        items = sorted([(at[(k, 0)], 1, k) for k in range(npre, 56)] + [(at[16 * c] - (2 if c else 1) * LA - 1, 0, c) for c in range(4)])
        last = 0
        for need, kind, k in items:
            want = max(last, need - hd)
            if kind == 1:
                w_ = max(want, last + 1, at[(k - NS, 3)] if k >= NS else 0)
                last = G.stream(hload(k), w_, w_ + 4, spread=False)
            else:
                if k == 0:
                    G.put(max(0, want - self.o("pgap", 30)), I(self.POLL_LD, tag="poll"))
                    G.put(want, self.stamp(8) + I("@wait poll") + self.spin(self.POLL_LD, sleep=4))
                    G.stream(single(J("s_xor_b32 {wo1}, {wo0}, {o}\nv_mov_b32 {pa}, 0", o=self.pair << 10)), want + 1, want + 20)
                last = G.stream(ud(k), want + 1, want + 11)
        def red_w(t): return [I("ds_write_b128 v%d, %s offset:%d" % (32 + dl, V(128 + (dl * 4 + t % 4) * 4, 4), ro[t % 4]), tag="rw%d" % t) for dl in (1, 2, 3)]
        def red_r(t): return [I("ds_read_b128 %s, v32 offset:%d" % (V(128 + (dl * 4 + t % 4) * 4, 4), ro[t % 4] + (dl - 1) * 1024), tag="rr%d" % t) for dl in (1, 2, 3)]
        def red_a(t):
            b = 128 + 4 * (t % 4)
            return single([I("v_add_f32 v%d, v%d, v%d" % (b + o + r, b + o + r, b + o + q + r)) for o, q in ((0, 16), (32, 16), (0, 32)) for r in range(4)])
        def mix(a_):
            b = 128 + 4 * a_
            return single(I("v_pk_add_f32 %s, %s, %s\nv_pk_add_f32 %s, %s, %s" % (V(b, 2), V(b, 2), V(RC + 4 * a_, 2), V(b + 2, 2), V(b + 2, 2), V(RC + 4 * a_ + 2, 2))) +
                          I("\n".join("v_fma_f32 v%d, v%d, v%d, v%d" % (b + r, b + r, 20 + a_, AO + 4 * a_ + r) for r in range(4))) +
                          cvt(56 + 2 * a_, b, b + 1) + cvt(57 + 2 * a_, b + 2, b + 3) + I("ds_write_b64 v6, %s offset:%d" % (V(56 + 2 * a_, 2), a_ * 2048), tag="ow%d" % a_))
        left = []; sent = 0
        for t in range(7):
            e = at[(7 * t + 6, 3)]
            e = G.stream(red_w(t), e + 3, e + 9)
            G.put(e + 4, I("@must rw%d t6\ns_barrier" % t))
            e = G.stream(red_r(t), e + 5, e + 10, spread=False)
            ra = red_a(t); nfit = max(0, min(12, 2 * (N - e - 7)))
            G.put(e + 5, I("@wait rr%d" % t))
            e = G.stream(ra[:nfit], e + 6, min(N, e + 16), spread=False); left = ra[nfit:]
            if t < 4: sent = G.stream([J("buffer_store_dwordx4 {r}, {l16b}, {SWS}, s79 offen offset:{o} sc1", tag="snd", r=V(128 + 4 * t, 4), o=t * 1024)], e + 1, e + 4)
            assert t >= 4 or sent + 2 < at[(7 * (t + 4), 0)]
        l = self.lab("nop")
        fp = sent + self.o("sgap", 44)
        G.put(fp, I("@must snd") + J("s_barrier\ns_cmp_lg_u32 {w}, 0") +
              J("s_cbranch_scc1 {l}\ns_mov_b64 exec, 1\nbuffer_store_dword v19, v0, {SWS}, {wo0} offen sc1\ns_mov_b64 exec, -1\n{l}:", raw=True, l=l))
        rc = N - self.o("rc", 40); assert rc > at[40] and rc - self.o("rgap", 30) > fp
        G.put(rc - self.o("rgap", 30), I(self.POLL_LD, tag="poll"))
        G.put(rc, I("@wait poll") + self.spin(self.POLL_LD))
        G.stream([J("buffer_load_dwordx4 {r}, {l16b}, {SWS}, s78 offen offset:{o} sc1", r=V(RC + 4 * t, 4), o=t * 1024) for t in range(4)], rc + 1, rc + 6, spread=False)
        G.stream(single(self.pack(PK5, ACCV) + self.pack(PK5 + 4, ACCV + 8)), at[63] + 4, fin - 1, spread=False)
        gm = I("\n".join("v_mul_f32 v%d, %s, v%d" % (GB + 16 + a_, fhex(2.0 ** -19), 20 + a_) for a_ in range(4)))
        gm += I("\n".join("v_sub_f32 v%d, 1.0, v%d" % (20 + a_, 20 + a_) for a_ in range(4)))
        e = G.stream(single(gm), fin, fin + 8, spread=False)
        e = G.stream(single(I("\n".join("v_mul_f32 v%d, v%d, v%d" % (AO + i, GB + 16 + i // 4, AO + i) for i in range(16)))), max(e, fin + 9), min(N, fin + 30), spread=False)
        ost = lambda h_: J("buffer_store_dwordx4 {r}, {x}, {SOUT}, s{so} offen {f}", r=V(36 + 4 * h_, 4), so=76 + h_, f=("", "sc1", "nt")[self.o("ost", 1)])
        for i in range(10): G.put(min(32 * i, len(G) - 1), self.stamp(i, 2))
        go = G.out(); x_ = self.o("strip", 0)
        if x_ & 1024: go = [i for i in go if i.op != "s_barrier"]
        if x_ & 2048: go = [Ins("s_nop 0", i.tag) if i.cls == "ds" and i.tag and i.tag[:2] in ("rw", "rr") else i for i in go]
        if x_ & 4096: go = [i for i in go if not (i.raw and "s_mem" not in i.op)]
        p += go
        p += self.stamp(9)
        p += flat(left) + flat(weave(red_w(7), mix(0) + mix(1))) + I("@wait rw7 ow1\ns_barrier") + flat(red_r(7)) + I("ds_read_b128 v[36:39], v7") + flat(mix(2))
        for o, q in ((0, 16), (32, 16), (0, 32)):
            for hh in (0, 2): p += I("v_pk_add_f32 %s, %s, %s" % (V(140 + o + hh, 2), V(140 + o + hh, 2), V(140 + o + q + hh, 2)))
        p += ost(0) + flat(mix(3)) + I("@waitlg0\ns_barrier\nds_read_b128 v[40:43], v7 offset:4096") + ost(1)
        return p + self.ending(ffn)

    def ending(self, ffn):
        p = []
        if "diag" in self.kw:
            i = self.kw["diag"]; l = self.lab("dg"); who = self.o("who", 0)
            use = i >= 0 and (who == 0 or (who == 1) == ffn)
            p += I("@waitvm0") + self.stamp(10) + I("s_waitcnt lgkmcnt(0)")
            p += I("s_add_u32 s3, %s, 5000" % ("s%d" % (48 + 2 * i) if use else "s100"))
            p += I("%s:\ns_sleep 1\ns_memrealtime s[98:99]\ns_waitcnt lgkmcnt(0)\ns_sub_u32 s98, s98, s3\ns_cmp_lt_i32 s98, 0\ns_cbranch_scc1 %s" % (l, l), raw=True)
        elif self.prof:
            p += I("@waitvm0") + self.stamp(10) + I("s_waitcnt lgkmcnt(0)")
            p += J("s_lshl_b32 s3, s2, 2\ns_add_u32 s3, s3, {w}\ns_lshl_b32 s3, s3, 6\ns_add_u32 s3, s3, {o}\nv_mov_b32 v32, s100", o=WS_PROF)
            for i in range(11): p += I("v_mov_b32 v%d, s%d" % (33 + i, 48 + 2 * i))
            p += I("s_mov_b64 exec, 1")
            for i in range(3): p += I("buffer_store_dwordx4 %s, v0, %s, s3 offen offset:%d" % (V(32 + 4 * i, 4), SWS, 16 * i))
        return p + I("s_endpgm")

    def text(self):
        st = {}
        hdr = open("gated_mix__spectral_gfnet__glu_gated_reglu__prompt.s.ref").read().split("; Override launch")[0]
        out = [hdr.rstrip(), "; One persistent launch: 256 workgroups (one per CU) x 4 waves. Written by my own generator scripts.",
               "; @launch grid=(256,1,1) block=(256,1,1) lds=163840", '.amdgcn_target "amdgcn-amd-amdhsa--gfx950"', ".text",
               ".globl " + NAME, ".p2align 8", ".type %s,@function" % NAME, NAME + ":"]
        prog = self.prologue() + self.p12f() + I("L_dft:") + self.p12d() + I("L_end:\ns_endpgm")
        x = self.o("strip", 0)
        if x & 1: prog = [i for i in prog if i.cls != "mfma"]
        if x & 2: prog = [i for i in prog if not (i.cls == "ds" and i.op.startswith("ds_read"))  or i.tag and not seen_tag(i.tag)]
        if x & 4: prog = [i if not (i.cls == "vmem" and i.tag == "pub") else Ins(i.text.replace("v14", "v0").replace("dwordx4", "dword").replace(i.text.split()[1], "v0,"), i.tag) for i in prog]
        import re as _re
        for bit, pat in ((8, r"d\d+$"), (16, r"h\d+"), (512, r"snd"), (32, r"u\d$"), (64, r"cld$"), (128, r"w\d$"), (256, r"x\d$")):
            if x & bit: prog = [Ins("s_nop 0", i.tag) if i.cls == "vmem" and i.tag and _re.match(pat, i.tag) and "sc1 lds" not in (i.text if bit == 256 else "") else i for i in prog]
        body = finalize(prog, st)
        if self.o("al", 1): body, st["align"] = align8(body)
        out += body
        out += ['.section .rodata,"a"', ".p2align 6", ".amdhsa_kernel " + NAME, "  .amdhsa_next_free_vgpr 512", "  .amdhsa_next_free_sgpr 102",
                "  .amdhsa_accum_offset 256", "  .amdhsa_group_segment_fixed_size 0", "  .amdhsa_kernarg_size 88", "  .amdhsa_user_sgpr_count 2",
                "  .amdhsa_user_sgpr_kernarg_segment_ptr 1", "  .amdhsa_system_sgpr_workgroup_id_x 1", "  .amdhsa_float_denorm_mode_32 3", ".end_amdhsa_kernel"]
        self.stats = st; self.body = body
        return "\n".join(out) + "\n"

def main(Gen):
    import argparse
    ap = argparse.ArgumentParser()
    ap.add_argument("out"); ap.add_argument("--prof", action="store_true"); ap.add_argument("--opt", default=""); ap.add_argument("--est", action="store_true")
    a = ap.parse_args()
    kw = dict((k, int(v)) for k, v in (x.split("=") for x in a.opt.split(",") if x))
    g = Gen(prof=a.prof, **kw)
    open(a.out, "w").write(g.text())
    print(g.stats)
    if a.est:
        row = []; gap = None; nm = 0; over = 0; skip = None
        for l in g.body:
            x = Ins(l.strip())
            if skip:
                if x.text == skip + ":": skip = None
                continue
            if x.op in ("s_cbranch_vccz", "s_cbranch_scc1") and "L_" not in x.text: skip = x.text.split()[1]
            if x.cls == "label":
                if x.text == "L_dft:": row.append(over); row.append("|"); nm = 0; over = 0; gap = None
                continue
            if x.cls == "mfma":
                if gap is not None and len(gap) < 14: over += gap_over(gap) + sum(int(y.text.split()[1]) for y in gap if y.op == "s_nop")
                gap = []; nm += 1
                if nm % 64 == 0: row.append(over); over = 0
            elif gap is not None: gap.append(x)
        print(row, over)

if __name__ == "__main__":
    main(Gen)
```

```python
import sys
sys.path.insert(0, "tools")
from prog import *

NAME = "gated_mix__spectral_gfnet__glu_gated_reglu__prompt_kernel"
WS_H, WS_X1, WS_U, WS_G, WS_FLAG, WS_CNT, WS_PROF = 0, 0x800000, 0xA00000, 0xC38000, 0xC10000, 0xC30000, 0xF000000
NCLR = 58
WS_PF, WS_EF, WS_P = 0xC3A000, 0xC42000, 0xD00000
SPIN_LIMIT = 100000
MF = "v_mfma_f32_16x16x32_bf16"
SX, SWG, SWU, SWD, SWS, SOUT, SWR, SWI, SGW, SDBG = [S(8 + 4 * i, 4) for i in range(10)]
NM = dict(w="s4", b12="s5", ni="s6", rot="s7", xcd="s70", loc="s71", wds="s70", wde="s71", l3="s72", nt="s73", bp="s74", xn="s75",
          hs="s80", lw4="s80", wo0="s81", wo1="s82", he="s83", wb="s83", k="s94", lw="s84", wdo="s85", t0="s86", t1="s87", t2="s88", t3="s89",
          mask="s[90:91]", hi16="s92", ring="s93", ho="s94", clr="s95", m1="s[96:97]", m2="s[98:99]",
          l16="v1", hi="v2", x="v3", xr="v4", vw="v5", l16b="v14", wd="v15", p="v16", xr2="v16", pa="v17",
          SX=SX, SWG=SWG, SWU=SWU, SWD=SWD, SWS=SWS, SOUT=SOUT, SWR=SWR, SWI=SWI, SGW=SGW, SDBG=SDBG)
vWT = [6, 7, 8, 9]; vDT = [10, 11, 12, 13]; vXA = [22, 23]; vWD = [15, 29, 30, 31]
LDS_RPF, LDS_RPI, LDS_R64I, LDS_STG, LDS_RED = 128 * 1024, 136 * 1024, 144 * 1024, 152 * 1024, 64 * 1024
GB, CO, ACCV = 64, 32, 48
CA2, CB2 = 20, 21
RING = [192, 208, 224, 240, 32]

def J(text, tag=None, raw=False, **kw):
    d = dict(NM); d.update(kw)
    return I(text.format(**d), tag, raw)
def single(g): return [[x] for x in flat(g)]
def chunks(g):
    g = flat(g); out = []; i = 0
    while i < len(g):
        j = i
        if g[i].op.startswith("v_cmp") and ("s", 106) in g[i].dst:
            k = i + 1
            while k < len(g) and not (g[k].op.startswith("v_cmp") and ("s", 106) in g[k].dst):
                if ("s", 106) in g[k].src: j = k
                k += 1
            j = i
        while j + 1 < len(g) and g[j + 1].op.startswith(("s_cselect", "s_subb", "s_addc")): j += 1
        out.append(g[i:j + 1]); i = j + 1
    return out
def cvt(d, a, b): return I("v_cvt_pk_bf16_f32 v%d, v%d, v%d" % (d, a, b))

_seen = set()
def seen_tag(t):
    r = t in _seen; _seen.add(t); return r

class Gen:
    def __init__(self, prof=False, **kw):
        self.prof = prof; self.kw = kw; self.nl = 0
        self.pair = kw.get("pair", 4); self.NU = 7 if self.pair else 14; self.ef = kw.get("ef", 0) and self.pair
    def o(self, k, d): return self.kw.get(k, d)
    def lab(self, b):
        self.nl += 1; return "L%s_%d" % (b, self.nl)
    def clk(self): return "s_memtime" if self.o("cyc", 0) else "s_memrealtime"
    def stamp(self, i, mode=0):
        if not self.prof or self.o("diag", i) != i or (self.o("pm", 0) != mode and i != 10): return []
        return I("%s %s" % (self.clk(), S(48 + 2 * i, 2)), raw=True)
    def srd(self, name, lo, size, back=0):
        b = int(name[2:name.index(":")])
        if back: g = I("s_sub_u32 s%d, s%d, %d\ns_subb_u32 s%d, s%d, 0" % (b, lo, back, b + 1, lo + 1))
        else: g = I("s_mov_b64 %s, %s" % (S(b, 2), S(lo, 2)))
        return g
    def srd_const(self, name, size):
        b = int(name[2:name.index(":")])
        return I("s_mov_b32 s%d, 0x%x\ns_mov_b32 s%d, 0x20000" % (b + 2, size, b + 3))
    def spin(self, load, sleep=2):
        ok, sp = self.lab("ok"), self.lab("spin")
        cmp_ = "v_cmp_ne_u32 vcc, 1, v16"
        return I(cmp_) + I("s_cbranch_vccz %s" % ok, tag="first", raw=True) + I("""s_mov_b32 s3, 0
%s:
s_sleep %d
%s
s_waitcnt vmcnt(0)
%s
s_add_u32 s3, s3, 1
s_cmp_lt_u32 s3, %d
s_cbranch_vccz %s
s_cbranch_scc1 %s
%s:""" % (sp, sleep, load, cmp_, SPIN_LIMIT, ok, sp, ok), raw=True)

    def cheb(self, X, Y, K, pk=True):
        if not pk: return I("\n".join("v_fma_f32 v%d, v%d, v%d, -v%d" % (X + q, K, Y + q, X + q) for q in range(8)))
        return I("\n".join("v_pk_fma_f32 %s, %s, %s, %s neg_lo:[0,0,1] neg_hi:[0,0,1]" % (V(X + 2 * q, 2), V(K, 2), V(Y + 2 * q, 2), V(X + 2 * q, 2)) for q in range(4)))
    def direct(self, X, spec):
        g = []; src = []
        for i, (d, K, b) in enumerate(spec):
            if K == 0: src.append(b)
            else:
                g += I("v_fmamk_f32 v%d, %s, %s, %s" % (X + i, d, fhex(K), b)); src.append("v%d" % (X + i))
        return g + I("\n".join("v_cos_f32 v%d, %s" % (X + i, src[i]) for i in range(8)))
    def pack(self, dst, X, first=None):
        return flat([cvt(dst + q, first if (q == 0 and first) else X + 2 * q, X + 2 * q + 1) for q in range(4)])

    def gen_G(self, t, pk):
        X, Y, K = t, t + 8, t + 16
        d, a0 = V(t + 18), V(t + 19)
        pre = J("""s_lshl_b32 {t0}, {nt}, 6
s_lshl_b32 {t1}, {w}, 4
s_add_u32 {t0}, {t0}, {t1}
v_add_u32 {d}, {t0}, {l16}
v_cvt_f32_u32 {d}, {d}
v_mul_f32 {d}, {c512}, {d}
v_mul_f32 {k0}, 0x41800000, {d}
v_cos_f32 {k0}, {k0}
v_and_b32 {e0}, 2, {hi}
v_lshlrev_b32 {e0}, 2, {e0}
v_cvt_f32_u32 {e0}, {e0}
v_and_b32 {e1}, 1, {hi}
v_cvt_f32_u32 {a0}, {e1}
v_mul_f32 {a0}, 0x3e800000, {a0}
v_fmac_f32 {a0}, {d}, {e0}
v_add_f32 {k0}, {k0}, {k0}
v_and_b32 {e0}, {e1}, v0
v_mov_b32 {k1}, {k0}
v_lshl_or_b32 {e0}, {e0}, 31, 0.5""", d=d, a0=a0, c512=fhex(1 / 512), k0=V(K), k1=V(K + 1), e0=V(t + 20), e1=V(t + 21))
        kap = [2 * (i & 3) + (i >> 2) for i in range(8)]
        gs = [pre, self.direct(X, [(d, kap[i], a0) for i in range(8)]), self.direct(Y, [(d, 16 + kap[i], a0) for i in range(8)]),
              J("v_cmp_gt_u32 vcc, 2, {hi}") + self.pack(GB + 4, Y) + I("v_cndmask_b32 v%d, v%d, v%d, vcc" % (t + 20, X, t + 20)) + self.pack(GB, X, first=t + 20)]
        for n in range(2, 16):
            a, b = (X, Y) if n % 2 == 0 else (Y, X)
            gs.append(self.cheb(a, b, K, pk) + self.pack(GB + 4 * n, a))
        return gs

    def gen_R(self, part, t, base=None):
        X = t; r = [V(t + 8 + i) for i in range(14)]
        n = dict(q=r[0], k=r[1], ph=r[2], dl=r[3], b0=r[4], b1=r[5], d0=r[6], d1=r[7], o0=r[8], o1=r[9], qt=r[10], h2=r[11], hf=r[12], adr=r[13],
                 c=fhex(1 / 2048), c64=fhex(1 / 64), base=LDS_RPF + 8192 * part if base is None else base)
        g = J("""s_lshl_b32 {t0}, {w}, 11
s_add_u32 {t0}, {t0}, {base}
v_add_u32 {adr}, {t0}, {l16b}
v_cvt_f32_u32 {hf}, {hi}
v_mov_b32 {qt}, 0x3e800000""", **n)
        if part < 2: g += J("s_cmp_eq_u32 {bp}, 0\ns_cselect_b64 {m1}, -1, 0\ns_cselect_b32 {t1}, 32, 64")
        masks = J("s_and_b32 vcc_lo, s96, 0xaaaaaaaa\ns_mov_b32 vcc_hi, vcc_lo\ns_andn2_b64 {m2}, {m1}, vcc")
        if part == 0:
            g += J("""s_and_b32 {t0}, {w}, 1
s_lshl_b32 {t0}, {t0}, 4
v_add_u32 {q}, {t0}, {l16}
v_mul_u32_u24 {k}, {t1}, {q}
v_add_u32 {k}, {bp}, {k}
s_lshr_b32 {t2}, {w}, 1
s_cselect_b64 {m2}, -1, 0
v_cmp_eq_u32 vcc, 0, {k}
v_cvt_f32_u32 {ph}, {t2}
v_mul_f32 {ph}, 0xbe800000, {ph}
v_cvt_f32_u32 {dl}, {k}
v_mul_f32 {dl}, {c}, {dl}
s_and_b64 vcc, vcc, {m2}
v_cndmask_b32 {dl}, {dl}, 0.5, vcc
v_cndmask_b32 {ph}, {ph}, 0, vcc
v_add_f32 {h2}, {hf}, {hf}
v_fma_f32 {b0}, {dl}, {h2}, {ph}
v_add_f32 {b1}, {qt}, {b0}
v_cndmask_b32 {b1}, {b1}, {b0}, {m1}""", **n) + masks + J("""v_cndmask_b32 {d0}, {dl}, 0, vcc
v_cndmask_b32 {b0}, {b0}, {qt}, vcc
v_cndmask_b32 {d1}, {dl}, 0, {m2}
v_cndmask_b32 {b1}, {b1}, {qt}, {m2}""", **n)
            specs = [[((r[6], r[7])[i & 1], 16 * v + 8 * (i // 4) + (i % 4) // 2, (r[4], r[5])[i & 1]) for i in range(8)] for v in range(2)]
        elif part == 1:
            g += masks + J("""s_lshl_b32 {t0}, {w}, 3
v_lshrrev_b32 {q}, 1, {l16}
v_add_u32 {q}, {t0}, {q}
v_cvt_f32_u32 {k}, {q}
v_mul_f32 {k}, {c}, {k}
v_cvt_f32_u32 {ph}, {t1}
v_mul_f32 {dl}, {k}, {ph}
v_cvt_f32_u32 {ph}, {bp}
v_mul_f32 {b0}, {k}, {ph}
v_and_b32 {q}, 1, v0
v_cvt_f32_u32 {ph}, {q}
v_cndmask_b32 {ph}, {ph}, 0, {m1}
v_fmac_f32 {b0}, {qt}, {ph}
v_mul_f32 {ph}, 4.0, {hf}
v_fmac_f32 {b0}, {dl}, {ph}
v_sub_f32 {b1}, {b0}, {qt}
v_cndmask_b32 {d1}, {dl}, 0, {m2}
v_cndmask_b32 {o0}, {b0}, {qt}, {m2}
v_cndmask_b32 {o1}, {b1}, {qt}, {m2}
s_and_b64 {m2}, {m2}, 0xffff
v_cndmask_b32 {d0}, {dl}, 0, vcc
v_cndmask_b32 {b0}, {b0}, {qt}, vcc
v_cndmask_b32 {b1}, {b1}, {qt}, vcc
v_mul_f32 {k}, 0x44800000, {k}
v_cndmask_b32 {k}, {b1}, {k}, {m2}""", **n)
            specs = [[((r[6], r[7])[i & 1], 16 * (i // 4) + i % 4, ((r[4], r[5]), (r[8], r[9]))[i & 1][v]) for i in range(8)] for v in range(2)]
            specs[1][0] = (r[6], 0, r[1])
        else:
            g += J("""s_lshl_b32 {t0}, {w}, 4
v_add_u32 {q}, {t0}, {l16}
v_cvt_f32_u32 {q}, {q}
v_mul_f32 {dl}, {c64}, {q}
v_add_f32 {h2}, {hf}, {hf}
v_mul_f32 {b0}, {dl}, {h2}
v_sub_f32 {b1}, {b0}, {qt}
v_mul_f32 {q}, 0.5, {q}
s_mov_b64 {m2}, 0xffff
v_cndmask_b32 {q}, {b1}, {q}, {m2}""", **n)
            specs = [[(r[3], 16 * v + 8 * (i // 4) + (i % 4) // 2, (r[4], r[5])[i & 1]) for i in range(8)] for v in range(2)]
            specs[0][1] = (r[3], 0, r[0])
        for v in range(2):
            g += self.direct(X, specs[v]) + self.pack(X, X) + I("ds_write_b128 %s, %s offset:%d" % (r[13], V(X, 4), v * 1024), tag="rtab")
        return chunks(g)

    def gen_T(self):
        r = [V(112 + i) for i in range(8)]
        gs = [J("""s_lshr_b32 {t0}, {xn}, 1
s_lshl_b32 {t0}, {t0}, 2
s_add_u32 {t0}, {t0}, {w}
s_lshl_b32 {t0}, {t0}, 5
s_and_b32 {t1}, {xn}, 1
s_add_u32 {t0}, {t0}, {t1}
v_lshl_add_u32 {j}, {l16}, 1, {t0}
v_cvt_f32_u32 {d0}, {j}
v_cmp_eq_u32 vcc, 0, {j}
v_mul_f32 {d0}, {c}, {d0}
v_mov_b32 {b1}, 0x3e800000
s_lshl_b32 {t0}, {wb}, 6
v_lshl_add_u32 {h4}, {hi}, 2, {t0}
v_cvt_f32_u32 {h4}, {h4}
v_cndmask_b32 {d1}, {d0}, 0.5, vcc
v_cndmask_b32 {b1}, {b1}, 0, vcc
v_mul_f32 {b0}, {d0}, {h4}
v_fmac_f32 {b1}, {d1}, {h4}
v_mul_f32 v104, 0x42000000, {d0}
v_mul_f32 v106, 0x42000000, {d1}
v_cos_f32 v104, v104
v_cos_f32 v106, v106
s_lshl_b32 {t0}, {w}, 11
v_add_u32 {adr}, {t0}, {l16b}
v_add_f32 v104, v104, v104
v_add_f32 v106, v106, v106
v_mov_b32 v105, v104
v_mov_b32 v107, v106""", j=r[0], d0=r[2], d1=r[3], b0=r[4], b1=r[5], h4=r[6], adr=r[7], c=fhex(1 / 512))]
        for n in range(8):
            for tt in range(2):
                X, Y = 64 + 16 * tt, 72 + 16 * tt
                a, b = (X, Y) if n % 2 == 0 else (Y, X)
                g = self.direct(a, [(r[2 + tt], 32 * n + 16 * (i // 4) + i % 4, r[4 + tt]) for i in range(8)]) if n < 2 else self.cheb(a, b, 104 + 2 * tt, n < self.o("ntp", 8))
                gs.append(g + self.pack(96 + 4 * tt, a) + I("ds_write_b128 %s, %s offset:%d" % (r[7], V(96 + 4 * tt, 4), n * 8192 + tt * 1024), tag="ttab%d" % (n // 2)))
        sel = J("""s_lshl_b32 {t1}, {t1}, 15
v_lshrrev_b32 v24, 1, {hi}
v_mul_u32_u24 v24, {t1}, v24
v_or_b32 v24, 0x3f80, v24
v_and_b32 v25, 1, v0
v_lshlrev_b32 v25, 4, v25
v_lshlrev_b32 v24, v25, v24
v_lshrrev_b32 v25, 1, {l16}
v_and_b32 v26, 1, {hi}
v_lshlrev_b32 v27, 2, v26
v_xor_b32 v27, v25, v27
v_cmp_eq_u32 vcc, 0, v27
v_cmp_eq_u32 {m1}, 1, v27
v_cmp_eq_u32 {m2}, 2, v27
v_cndmask_b32 v20, 0, v24, vcc
v_cmp_eq_u32 vcc, 3, v27
v_cndmask_b32 v21, 0, v24, {m1}
v_cndmask_b32 v22, 0, v24, {m2}
v_cndmask_b32 v23, 0, v24, vcc
v_xor_b32 v24, v26, v25
v_lshlrev_b32 v24, 4, v24
v_lshl_add_u32 v24, {l16}, 7, v24
v_lshrrev_b32 v25, 1, {hi}
v_lshl_add_u32 v24, v25, 11, v24
v_add_u32 v6, {ring}, v24
v_xor_b32 v7, 32, v6
v_xor_b32 v8, 64, v6
v_xor_b32 v9, 0x60, v6""")
        late = J("""s_lshl_b32 {t0}, {w}, 4
v_add_u32 v24, {t0}, {l16}
v_lshrrev_b32 v18, 1, v24
v_cvt_f32_u32 v18, v18
v_mul_f32 v18, {c}, v18
v_and_b32 v19, 1, v24
v_cvt_f32_u32 v19, v19
v_mul_f32 v19, 0xbe800000, v19
v_cmp_eq_u32 vcc, 1, v24
v_lshlrev_b32 v24, 2, {hi}
v_cvt_f32_u32 v24, v24
s_lshl_b32 {t0}, {w}, 11
s_add_u32 {t0}, {t0}, {stg}
v_cndmask_b32 v18, v18, 0.5, vcc
v_cndmask_b32 v19, v19, 0, vcc
v_fmac_f32 v19, v18, v24
v_add_u32 {pa}, {t0}, {l16b}""", c=fhex(1 / 64), stg=LDS_STG)
        for v in range(2):
            late += self.direct(24, [("v18", 32 * v + 16 * (i // 4) + i % 4, "v19") for i in range(8)]) + self.pack(24, 24) + \
                    J("ds_write_b128 {pa}, v[24:27] offset:{o}", tag="r64f", o=v * 1024)
        return gs, sel, late

    def wd_setup(self):
        g = J("""v_lshrrev_b32 v24, 3, v0
v_bfe_u32 v25, v0, 1, 2
v_xor_b32 v25, v25, {hi}
v_lshlrev_b32 v25, 5, v25
v_lshl_add_u32 v25, v24, 10, v25
v_and_b32 v24, 1, v0
v_lshl_add_u32 {wd}, v24, 4, v25
v_add_u32 v29, 7168, {wd}
v_add_u32 v30, 7168, v29
v_add_u32 v31, 7168, v30
s_mul_i32 {wds}, {w}, {c}
s_lshl_b32 {t0}, {nt}, 7
s_add_u32 {wds}, {wds}, {t0}
s_add_u32 {wde}, {wds}, {c}
v_bfe_u32 v24, v0, 2, 3
v_lshrrev_b32 v25, 5, v0
v_lshlrev_b32 v25, 10, v25
v_lshl_add_u32 v25, v24, 7, v25
v_and_b32 v26, 3, v0
v_lshl_add_u32 v25, v26, 3, v25
v_add_u32 v25, {ring}, v25
v_lshrrev_b32 v24, 1, v24
v_xor_b32 v24, {w}, v24
v_lshl_add_u32 v10, v24, 5, v25
v_xor_b32 v11, 32, v10
v_xor_b32 v12, 64, v10
v_xor_b32 v13, 0x60, v10
s_mul_i32 {rot}, {nt}, {ra}""", c=448 * 1024, ra=self.o("rnt", 0))
        if self.pair:
            g = [x for x in g if x.cls != "salu"]
            return g + J("s_and_b32 {t0}, {bp}, {m}\ns_cselect_b32 {t0}, 28, 0\ns_mul_i32 {rot}, {w}, 7\ns_add_u32 {rot}, {rot}, {t0}\ns_lshl_b32 {wds}, {rot}, 8\ns_add_u32 {wds}, {wds}, {nt}\ns_lshl_b32 {wds}, {wds}, 7\ns_and_b32 {wde}, {rot}, 1\ns_lshl_b32 {wde}, {wde}, 15", m=self.pair)
        if self.o("rl3", 0) == 1: g += J("s_mul_i32 {t0}, {l3}, 7\ns_add_u32 {t0}, {t0}, 1\ns_lshr_b32 {t0}, {t0}, 1\ns_add_u32 {rot}, {rot}, {t0}")
        if self.o("rl3", 0) == 2: g += J("s_and_b32 {t0}, {l3}, 1\ns_mul_i32 {t0}, {t0}, 7\ns_add_u32 {rot}, {rot}, {t0}")
        if self.o("xo", 0) >= 0:
            return g[:-1] + J(("s_add_u32 {rot}, {nt}, {l3}" if self.o("xnt", 0) else "s_mov_b32 {rot}, {l3}") + "\ns_and_b32 {rot}, {rot}, {m}\ns_lshl_b32 {wde}, {rot}, 15", m=self.o("xo", 0))
        g += J("s_sub_u32 {t0}, {rot}, 14\ns_cselect_b32 {rot}, {rot}, {t0}\ns_lshl_b32 {t0}, {rot}, 15\ns_add_u32 {wdo}, {wds}, {t0}")
        return g
    def loc(self, u):
        if self.pair: return (1, u - 4 if u >= 4 else None, u % 4)
        a, n = (8, self.o("nA", 2)) if self.ffn else (4, 4)
        if a <= u < a + n: return (0, None, (u - a + 4 - n) % 4)
        r1 = [v for v in range(14) if not a <= v < a + n]; k = r1.index(u)
        return (1, r1[k - 4] if k >= 4 else None, k % 4)
    def D(self, u, pre=None):
        reg, prev, slot = (self.loc(u) + (u % 4,))[:3]; gs = []
        if self.ef and u < 6: gs += [J("s_xor_b32 {wdo}, {wde}, {o}", o=(2 * (u % 3) + u // 3) << 15), J("s_add_u32 {wdo}, {wdo}, {wds}")]
        elif self.pair: gs.append(J("s_add_u32 {wdo}, {wds}, {o}", o=u << 15))
        elif self.o("xo", 0) >= 0:
            if u == 12: gs.append(J("s_and_b32 {wde}, {wde}, 0x8000"))
            gs += [J("s_xor_b32 {wdo}, {wde}, {o}", o=u << 15), J("s_add_u32 {wdo}, {wdo}, {wds}")]
        elif u: gs += [J("s_add_u32 {wdo}, {wdo}, 0x8000"), J("s_cmp_ge_u32 {wdo}, {wde}\ns_cselect_b32 {wdo}, {wds}, {wdo}")]
        gs.append(J("s_add_u32 m0, {ring}, {o}", o=(slot * 4096 - (0 if reg else 65536)) & 0xFFFFFFFF))
        if prev is not None: gs.append(I("@must t%d" % prev))
        if pre: gs.append(pre)
        gs += [J("buffer_load_dwordx4 v{r}, {SWD}, {wdo} offen offset:{o} lds", tag="d%d" % u, r=vWD[k], o=1024 * k) for k in range(4)]
        return gs
    def wd_reg(self, u, dl): return (160 + 16 * u if u < 2 else 16 * (u - 2) if u < 12 else 16 * u) + 4 * dl
    def T(self, u):
        gs = []
        if self.loc(u)[0] != (self.loc(u - 1)[0] if u else 1): gs += single(I("\n".join("v_xor_b32 v%d, 0x10000, v%d" % (r, r) for r in vDT)))
        gs.append(I("@must d%d" % u))
        for dl in range(4):
            for j4 in range(2):
                gs.append(I("ds_read_b64_tr_b16 %s, v%d offset:%d" % (A(self.wd_reg(u, dl) + 2 * j4, 2), vDT[dl], (self.loc(u) + (u % 4,))[2] * 4096 + j4 * 2048), tag="t%d" % u))
        return gs
    def DD(self, a, b): return [g for u in range(a, b) for g in self.D(u)]
    def TT(self, a, b): return [g for u in range(a, b) for g in self.T(u)]

    def g_loads(self):
        return single(J("""s_lshl_b32 {t0}, {nt}, 2
s_add_u32 {t0}, {t0}, {w}
s_lshl_b32 {t0}, {t0}, 1
v_lshrrev_b32 v25, 5, v0
v_add_u32 v236, {t0}, v25
v_and_b32 v25, 3, v236
v_lshrrev_b32 v26, 2, v236
v_lshl_add_u32 v25, v25, 4, v26
v_and_b32 v233, 0x1f0, {l16b}
v_lshl_add_u32 v232, v25, 15, v233
v_lshl_add_u32 v232, {bp}, 10, v232
buffer_load_dwordx4 v[216:219], v232, {SX}, 0 offen offset:2048
buffer_load_dwordx4 v[220:223], v232, {SX}, 0 offen offset:2560
buffer_load_dwordx4 v[224:227], v233, {SGW}, 0 offen
buffer_load_dwordx4 v[228:231], v233, {SGW}, 0 offen offset:512""", tag="gld"))
    def g_calc(self):
        g = I("@wait gld")
        g += I("\n".join("v_dot2_f32_bf16 v%d, v%d, v%d, 0" % (232 + i, 216 + i, 224 + i) for i in range(4)))
        g += I("\n".join("v_dot2_f32_bf16 v%d, v%d, v%d, v%d" % (232 + i, 220 + i, 228 + i, 232 + i) for i in range(4)))
        g += I("v_lshlrev_b32 v236, 2, v236\nv_add_f32 v232, v232, v233\nv_add_f32 v234, v234, v235\nv_add_f32 v232, v232, v234")
        for sh in (1, 2, 4, 8):
            g += I("v_add_f32_dpp v232, v232, v232 row_shr:%d row_mask:0xf bank_mask:0xf bound_ctrl:1" % sh)
        g += I("v_add_f32_dpp v232, v232, v232 row_bcast:15 row_mask:0xa bank_mask:0xf")
        g += I("v_mul_f32 v232, 0xbfb8aa3b, v232\nv_exp_f32 v232, v232\nv_add_f32 v232, 1.0, v232\nv_rcp_f32 v232, v232")
        return single(g)
    def g_store(self):
        return J("s_lshl_b32 {t0}, {bp}, 8\ns_add_u32 {t0}, {t0}, {g}\ns_mov_b32 exec_lo, 0x80000000\ns_mov_b32 exec_hi, 0x80000000", g=WS_G) + \
               J("buffer_store_dword v232, v236, {SWS}, {t0} offen sc1", tag="gst") + I("s_mov_b64 exec, -1")
    def c_loads(self, acc=False):
        return chunks(J(self.creg(acc, """s_cmp_eq_u32 {bp}, 0
s_cselect_b32 {t1}, 32, 64
s_cselect_b64 {mask}, 0xffff, 0
s_and_b32 {t0}, {w}, 1
s_lshl_b32 {t0}, {t0}, 4
v_lshrrev_b32 v27, 2, v0
v_add_u32 v27, {t0}, v27
v_mul_u32_u24 v27, {t1}, v27
v_add_u32 v27, {bp}, v27
v_cmp_eq_u32 vcc, 0, v27
v_sub_u32 v28, 0x800, v27
v_mov_b32 v26, 0x400
s_cmp_lt_u32 {w}, 2
s_cselect_b64 {m1}, -1, 0
v_cndmask_b32 v28, v28, v26, vcc
v_cndmask_b32 v27, v28, v27, {m1}
v_mul_u32_u24 v27, 514, v27
v_and_b32 v28, 48, {l16b}
s_lshl_b32 {t2}, {nt}, 6
s_cselect_b32 {t3}, {t2}, 512
s_cmp_eq_u32 {nt}, {n6}
s_cselect_b32 {t3}, 448, {t3}
s_cmp_eq_u32 {nt}, {n5}
s_cselect_b32 {t3}, 510, {t3}
v_add3_u32 v20, v28, v27, {t2}
v_add_u32 v21, {t3}, v27
buffer_load_dwordx4 v[32:35], v20, {SWR}, 0 offen
buffer_load_dwordx4 v[36:39], v20, {SWI}, 0 offen
buffer_load_ushort v40, v21, {SWR}, 0 offen
buffer_load_ushort v41, v21, {SWI}, 0 offen"""), tag="cld", n6=6 if self.o("dt", 1) else 9, n5=5 if self.o("dt", 1) else 9))
    def creg(self, acc, t):
        if not acc: return t
        for a, b in (("v[32:35]", "a[32:35]"), ("v[36:39]", "a[36:39]"), ("v40", "a40"), ("v41", "a41"), ("v20", "v10"), ("v21", "v11")): t = t.replace(a, b)
        return t
    def c_stage(self):
        g = J("""s_mul_i32 {t0}, {w}, 1280
s_add_u32 {t0}, {t0}, {stg}
v_lshrrev_b32 v27, 2, v0
v_lshl_add_u32 v28, v27, 4, {l16b}
v_add_u32 v28, {t0}, v28
s_mov_b32 {t2}, 0x05040100
s_mov_b32 {t3}, 0x07060302
s_mov_b32 s96, 0x11111111
s_mov_b32 s97, 0x11111111
@wait cld""", stg=self.cstg)
        for arr in range(2):
            s_, d_ = 32 + 4 * arr, 192 + 4 * arr
            g += J("v_perm_b32 v{d0}, v{s1}, v{s0}, {t2}\nv_perm_b32 v{d1}, v{s3}, v{s2}, {t2}\nv_perm_b32 v{d2}, v{s1}, v{s0}, {t3}\nv_perm_b32 v{d3}, v{s3}, v{s2}, {t3}",
                   d0=d_, d1=d_ + 1, d2=d_ + 2, d3=d_ + 3, s0=s_, s1=s_ + 1, s2=s_ + 2, s3=s_ + 3)
            g += I("ds_write_b128 v28, %s offset:%d" % (V(d_, 4), arr * 5120), tag="cst")
            g += J("v_and_or_b32 v{d}, v{d}, {hi16}, v{q}", d=d_, q=40 + arr)
        return single(g) + [J("s_mov_b64 exec, {m1}") + I("ds_write_b64 v28, v[192:193] offset:64\nds_write_b64 v28, v[196:197] offset:5184", tag="cst") + I("s_mov_b64 exec, -1")]
    def c_calc(self):
        g = J("""s_or_b32 {t1}, {w}, {nt}
s_cselect_b32 {t1}, 4, 2
s_lshl_b32 {t0}, {w}, 4
v_and_b32 v26, 3, v0
v_cmp_eq_u32 vcc, {t1}, v26
v_and_b32 v28, 1, v0
v_lshl_add_u32 v28, v28, 3, {t0}
v_lshrrev_b32 v27, 2, v0
v_mul_u32_u24 v27, 80, v27
v_cndmask_b32 v28, v28, 64, vcc
s_mov_b32 {t0}, {stg}
v_add3_u32 v27, v27, v28, {t0}""", stg=self.cstg)
        for th in range(2):
            for arr in range(2):
                for side in range(2):
                    g += I("ds_read_b64_tr_b16 %s, v27 offset:%d" % (V(192 + ((th * 2 + arr) * 2 + side) * 2, 2), arr * 5120 + side * 2560 + th * 1280), tag="crd")
        q = I("@wait crd")
        for th in range(2):
            for r in range(4):
                e = th * 4 + r
                t = 208 + (e % 2) * 4
                for n, (arr, side) in enumerate([(0, 0), (0, 1), (1, 0), (1, 1)]):
                    src = 192 + ((th * 2 + arr) * 2 + side) * 2 + r // 2
                    q += J("v_and_b32 v{d}, {hi16}, v{s}" if r & 1 else "v_lshlrev_b32 v{d}, 16, v{s}", d=t + n, s=src)
                a_, b_, c_, d_ = CO + e, CO + 8 + e, CO + 16 + e, CO + 24 + e
                q += I("v_add_f32 v%d, v%d, v%d\nv_add_f32 v%d, v%d, v%d\nv_sub_f32 v%d, v%d, v%d\nv_sub_f32 v%d, v%d, v%d" % (
                    a_, t, t + 1, b_, t + 2, t + 3, c_, t + 3, t + 2, d_, t, t + 1))
                if e == 0:
                    q += J("""v_cndmask_b32 v{a2}, v{a}, v{t1_}, {mask}
v_cndmask_b32 v{b2}, v{b}, v{t3_}, {mask}
v_cndmask_b32 v{a}, v{a}, v{t0_}, {mask}
v_cndmask_b32 v{b}, v{b}, v{t2_}, {mask}
v_cndmask_b32 v{c}, v{c}, 0, {mask}
v_cndmask_b32 v{d}, v{d}, 0, {mask}""", a2=CA2, b2=CB2, a=a_, b=b_, c=c_, d=d_, t0_=t, t1_=t + 1, t2_=t + 2, t3_=t + 3)
        return chunks(g), single(q)

    GATE_LD = "buffer_load_dword v16, v17, %s, 0 offen sc1" % SDBG
    POLL_LD = "buffer_load_dword v16, v17, %s, s82 offen sc1" % SWS
    def gate_ld(self):
        return single(J("v_min_u32 {pa}, {n}, v0\nv_lshlrev_b32 {pa}, 2, {pa}", n=NCLR - 1) + I(self.GATE_LD, tag="poll"))
    def x1_addr(self):
        return single(J("""s_lshr_b32 {t0}, {nt}, 2
s_lshl_b32 {t0}, {t0}, 8
s_lshl_b32 {t1}, {w}, 15
s_add_u32 {t0}, {t0}, {t1}
s_add_u32 {wo1}, {t0}, {fl}
v_lshrrev_b32 {pa}, 3, v0
v_lshlrev_b32 {pa}, 12, {pa}
v_bfe_u32 v28, v0, 2, 1
v_lshl_add_u32 {pa}, v28, 7, {pa}""", fl=WS_FLAG + 28 * 128))
    def rp_reads(self):
        return [J("v_add_u32 v19, {a}, {l16b}", a=LDS_RPF)] + \
               [I("ds_read_b128 %s, v19 offset:%d" % (A((224 if f < 8 else 160) + 4 * f, 4), f * 1024), tag="rp") for f in range(16)]
    def flag_addr(self):
        return J("s_lshl_b32 {wo0}, {b12}, 5\ns_add_u32 {wo0}, {wo0}, {ni}\ns_lshl_b32 {wo0}, {wo0}, 7\ns_add_u32 {wo0}, {wo0}, {fl}", fl=WS_FLAG)
    def set_flag(self):
        return I("v_mov_b32 v24, 1\n@wait pub\ns_mov_b64 exec, 1") + J("buffer_store_dword v24, v0, {SWS}, {wo0} offen sc1") + I("s_mov_b64 exec, -1")

    def prologue(self):
        p = []
        if self.prof: p += I("%s s[100:101]" % self.clk(), raw=True)
        p += J("""s_load_dwordx16 s[48:63], s[0:1], 0
s_cmp_ge_u32 s2, 256
s_cbranch_scc1 L_end
s_load_dwordx4 s[64:67], s[0:1], 64
s_load_dwordx2 s[68:69], s[0:1], 80
s_getpc_b64 {m1}
L_pc:
v_lshlrev_b32 v24, 3, v0
v_readfirstlane_b32 {w}, v0
s_lshr_b32 {loc}, s2, 3
v_lshl_add_u32 v24, {loc}, 11, v24
v_min_u32 v24, L_end-L_pc, v24
global_load_dword v31, v24, {m1}
v_and_b32 v0, 63, v0
v_and_b32 {l16}, 15, v0
v_lshrrev_b32 {hi}, 4, v0
s_lshr_b32 {w}, {w}, 6
s_and_b32 {xcd}, s2, 7
s_and_b32 {l3}, {loc}, 3
s_lshr_b32 {nt}, {loc}, 2
s_lshr_b32 {xn}, {xcd}, 1
s_lshl_b32 {bp}, {xcd}, 2
s_add_u32 {bp}, {bp}, {l3}
s_and_b32 {b12}, {bp}, 7
s_lshl_b32 {b12}, {b12}, 2
s_add_u32 {b12}, {b12}, {w}
s_lshl_b32 s76, {b12}, 10
v_lshrrev_b32 v25, 3, v0
v_and_b32 v24, 7, v0
v_xor_b32 v24, v24, {hi}
v_lshlrev_b32 v24, 4, v24
v_lshl_add_u32 {x}, v25, 15, v24
v_xor_b32 v18, 0x40040, {x}
v_subrev_u32 v18, 0x400, v18
s_lshl_b32 {ring}, {w}, 14
s_add_u32 {ring}, {ring}, 0x10000""")
        if "probe" in self.kw:
            k = self.kw["probe"]
            p += I("s_waitcnt lgkmcnt(0) vmcnt(0)\ns_mov_b64 s[44:45], s[%d:%d]\ns_mov_b32 s46, 0x100000\ns_mov_b32 s47, 0x20000" % (48 + 2 * k, 49 + 2 * k))
            p += J("s_lshl_b32 s3, s2, 2\ns_add_u32 s3, s3, {w}\ns_lshl_b32 s3, s3, 7\nv_mov_b32 v26, 0\ns_memrealtime s[96:97]\ns_waitcnt lgkmcnt(0)")
            if "pbw" in self.kw:
                p += I("s_mov_b32 s46, 0x10000000\ns_lshl_b32 s3, s3, 7\ns_add_u32 s3, s3, %d\nv_lshlrev_b32 v26, 4, v0" % (self.kw["pbw"] << 20))
                for i in range(16):
                    op = "buffer_store_dwordx4 v[128:131], v26, s[44:47], s3 offen sc1" if self.o("pst", 0) else "buffer_load_dwordx4 v[%d:%d], v26, s[44:47], s3 offen" % (128 + 4 * i, 131 + 4 * i)
                    p += I(op + "\ns_add_u32 s3, s3, 1024")
                p += I("s_waitcnt vmcnt(0)")
            else:
                for i in range(8): p += I("buffer_load_dword v27, v26, s[44:47], s3 offen\ns_waitcnt vmcnt(0)\ns_add_u32 s3, s3, 0x20000")
            p += I("s_memrealtime s[98:99]\ns_waitcnt lgkmcnt(0)\ns_sub_u32 s98, s98, s96\ns_add_u32 s100, s100, s98")
        p += self.srd_const(SX, 2097152 + 2048)
        p += J("s_cmp_eq_u32 {nt}, 7\ns_cbranch_scc1 L_dft")
        return p
    def common2(self):
        p = J("v_lshlrev_b32 {l16b}, 4, v0\ns_lshl_b32 {lw}, {loc}, 2\ns_add_u32 {lw}, {lw}, {w}\ns_mul_i32 s3, {xcd}, 112\ns_add_u32 {lw}, {lw}, s3\ns_lshl_b32 {lw}, {lw}, 11\ns_mov_b32 {hi16}, 0xffff0000")
        for nm, lo, sz in ((SWS, 68, 0x10000000), (SDBG, 66, 256), (SWD, 60, 1792 * 1024), (SOUT, 64, 2097152), (SWR, 50, 2048 * 514), (SWI, 52, 2048 * 514), (SGW, 62, 1024)):
            p += self.srd(nm, lo, sz) + self.srd_const(nm, sz)
        return p

    def p12f(self):
        self.ffn = True; self.cstg = LDS_RPF
        def kadv(du):
            kr = self.o("kr", 2)
            if kr == 4: return single(J("s_xor_b32 {k}, {k}, 1" if du & 1 else "s_xor_b32 {k}, {k}, 1\ns_add_u32 {k}, {k}, 2\ns_and_b32 {k}, {k}, 7"))
            if kr == 5: return single(J("s_xor_b32 {k}, {k}, %d" % (du ^ (du - 1))))
            return single(J("s_add_u32 {k}, {k}, 1\ns_and_b32 {k}, {k}, 7"))
        def wl(du):
            gs = []
            if du == 1: gs += kadv(du)
            gs += single(J("s_mul_i32 {wo0}, {k}, {c}\ns_add_u32 {wo0}, {wo0}, {wb}\ns_add_u32 {wo1}, {wo0}, {c2}", c=64 * 3584, c2=32 * 3584 - 2048))
            gs.append(J("s_add_u32 m0, {lw4}, {o}", o=(du % 4) * 16384))
            for h in range(2):
                for mat in range(2):
                    gs.append(J("buffer_load_dwordx4 {vw}, {srd}, {so} offen offset:{o} lds", tag="w%d" % du, srd=(SWG, SWU)[mat], so=NM["wo%d" % h], o=(2 * h + mat) * 1024))
            return gs
        def xl(du):
            gs = []
            if du >= 2: gs += kadv(du)
            gs += single(J("v_lshl_add_u32 {xr}, {k}, 7, {x}\nv_lshl_add_u32 {xr2}, {k}, 7, v18"))
            for m in range(4):
                if m % 2 == 0: gs.append(J("s_add_u32 m0, {ring}, {o}", o=(du % 2) * 8192 + m * 2048))
                for e in range(2):
                    g = J("buffer_load_dwordx4 {r}, {SX}, s{so} offen offset:{o} lds", tag="x%d" % du, r=NM[("xr", "xr2")[e]], so=76 + m, o=((m & 1) * 2 + e) * 1024)
                    if du >= 2 and m == 0 and e == 0: g = I("@need xf%d" % (du - 2)) + g
                    gs.append(g)
            return gs
        def xf(du):
            return [I("@wait x%d" % du)] + [I("ds_read_b128 %s, v%d offset:%d" % (A((du % 4) * 32 + h * 16 + m * 4, 4), vXA[h], (du % 2) * 8192 + m * 2048), tag="xf%d" % du)
                                           for h in range(2) for m in range(4)]
        p = J("""s_and_b32 {t0}, {nt}, {mp}
s_lshl_b32 {t0}, {t0}, 19
s_add_u32 s76, s76, {t0}
s_xor_b32 s77, s76, 0x80000
s_xor_b32 s79, s76, 0x180000
s_xor_b32 s78, s76, 0x100000
s_add_u32 s76, s76, 0x800
s_add_u32 s78, s78, 0x800
s_lshl_b32 {k}, {xcd}, 2
s_add_u32 {k}, {k}, {xcd}
s_and_b32 {k}, {k}, {km}
s_mul_i32 {ni}, {xn}, 7
s_add_u32 {ni}, {ni}, {nt}
s_mul_i32 {wb}, {w}, {c}
s_lshl_b32 {t0}, {ni}, 7
s_add_u32 {wb}, {wb}, {t0}
v_mul_u32_u24 v24, 3584, v25
s_and_b32 {t0}, {w}, 1
s_lshl_b32 {t0}, {t0}, 1
v_and_or_b32 v25, {hi}, 1, {t0}
v_bfe_u32 v26, v0, 1, 2
v_xor_b32 v25, v25, v26
v_lshl_add_u32 v24, v25, 5, v24
v_and_b32 v25, 1, v0
v_lshl_add_u32 {vw}, v25, 4, v24
s_lshl_b32 {lw4}, {w}, 12""", c=8 * 3584, mp=self.o("mp", 3), km=self.o("km", 6))
        kr = self.o("kr", 2)
        if kr == 4: p += J("s_lshr_b32 {t0}, {nt}, {sh}\ns_xor_b32 {t0}, {l3}, {t0}\ns_and_b32 {t0}, {t0}, 1\ns_add_u32 {k}, {k}, {t0}", sh=self.o("ksh", 2))
        if kr == 5: p += J("s_add_u32 {t0}, {l3}, {nt}\ns_and_b32 {t0}, {t0}, 3\ns_add_u32 {k}, {xcd}, {xn}\ns_and_b32 {k}, {k}, 1\ns_lshl2_add_u32 {k}, {k}, {t0}")
        if kr == 1: p += J("s_lshl_b32 {k}, {l3}, 1\ns_add_u32 {k}, {k}, {nt}\ns_and_b32 {k}, {k}, 7")
        if kr == 2: p += J("s_xor_b32 {t0}, {l3}, {nt}\ns_and_b32 {t0}, {t0}, 1\ns_lshl_b32 {t0}, {t0}, 2\ns_lshl_b32 {k}, {xcd}, 1\ns_add_u32 {k}, {k}, {xn}\ns_and_b32 {k}, {k}, 3\ns_add_u32 {k}, {k}, {t0}")
        if kr == 3: p += J("s_add_u32 {t0}, {l3}, {nt}\ns_and_b32 {t0}, {t0}, 3\ns_lshl_b32 {t0}, {t0}, 1\ns_add_u32 {k}, {xcd}, {xn}\ns_and_b32 {k}, {k}, 1\ns_add_u32 {k}, {k}, {t0}")
        p += self.srd_const(SWG, 512 * 3584) + self.srd_const(SWU, 512 * 3584 + 1024)
        w0 = wl(0); x0 = xl(0)
        p += flat(w0[:4] + x0[:2]) + self.srd(SWG, 56, 0) + self.srd(SWU, 58, 0, back=1024) + self.srd(SX, 48, 0, back=2048)
        p += flat(w0[4:]) + flat(x0[2:])
        p += self.common2()
        p += self.stamp(0)
        l = self.lab("noclr")
        p += J("s_sub_u32 s3, s2, 128\ns_cmp_lt_u32 s3, {n}\ns_cselect_b32 {clr}, {w}, 4", n=NCLR) + I("\n".join("v_accvgpr_write_b32 a%d, 0" % (180 + i) for i in range(4)))
        clear = J("s_cmp_eq_u32 {clr}, 4") + J("""s_cbranch_scc1 {l}
s_lshl2_add_u32 s3, s2, {w}
s_lshl_b32 s3, s3, 10
s_add_u32 s3, s3, {fl}
buffer_store_dwordx4 a[180:183], {l16b}, {SWS}, s3 offen sc1
{l}:""", raw=True, l=l, fl=WS_FLAG - 128 * 4096)
        st = [J("""v_lshrrev_b32 v24, 1, {l16}
v_xor_b32 v24, v24, {hi}
v_lshlrev_b32 v24, 4, v24
v_lshl_add_u32 v24, {l16}, 7, v24
v_add_u32 v22, {ring}, v24
v_xor_b32 v23, 64, v22
v_lshlrev_b32 v24, 12, {hi}
v_bfe_u32 v25, v0, 2, 2
v_lshl_add_u32 v24, v25, 7, v24
v_and_b32 v25, 3, v0
v_lshl_add_u32 v24, v25, 3, v24
v_bfe_u32 v25, v0, 3, 2
v_lshl_add_u32 v6, v25, 5, v24
v_xor_b32 v7, 32, v6
v_xor_b32 v8, 64, v6
v_xor_b32 v9, 0x60, v6""")]
        cl, gl = self.c_loads(), self.g_loads()
        cpos = self.o("cpos", 2)
        gwt = [J("buffer_load_dword a171, {l16b}, {SGW}, 0 offen")]
        rip = self.rip = self.o("rip", 1) and self.o("x1late", 0)
        st = single(st) + cl[:-4] + self.gen_R(0, 128) + ([] if rip else self.gen_R(1, 160)) + (self.gen_R(2, 192) if self.o("r2p", 1 if self.ef else 0) else [])
        l1 = wl(1) + xl(1); n1 = self.o("n1", 15) - (self.o("kr", 2) >= 4)
        p += flat(weave(st, l1[:n1], self.o("l1pos", 60 if rip else 130), len(st)))
        p += I("@wait w0 x0\ns_barrier")
        p += self.stamp(1)
        units = {0: "E0 L0 E1 L1 E2 L2 E3 E4 L3 E5 E6 L4 E7 L5 L6 L7", 1: "E0 L0 E1 L1 E2 L2 E3 L3 E4 E5 L4 E6 E7 L5 L6 L7",
                 2: "E0 L0 E1 L1 E2 L2 E3 L3 E4 E5 L4 E6 L5 E7 L6 L7", 3: "E0 L0 E1 L1 E2 L2 E3 L3 E4 L4 E5 L5 E6 E7 L6 L7"}[self.o("us", 1)].split()
        seq = [(2 * int(u[1]) + h, tau + (4 if u[0] == "L" else 0)) for u in units for h in range(2) for tau in range(4)]
        U = dict((u, 32 * i) for i, u in enumerate(units))
        LA = 5
        def rd(k):
            n, tau = seq[k]
            off = ((n // 2) % 4) * 16384 + ((n & 1) * 2 + (tau & 1)) * 1024
            return [I("ds_read_b64_tr_b16 %s, v%d offset:%d" % (A(128 + 4 * (k % 8) + 2 * j4, 2), vWT[tau // 2], off + 512 * j4), tag="f%d" % k) for j4 in range(2)]
        x0 = xf(0)
        p += flat(rd(0) + x0[:5] + rd(1) + rd(2) + x0[5:] + rd(3) + rd(4))
        mf = []
        for k, (n, tau) in enumerate(seq):
            for m in range(4):
                acc = V(128 + (tau * 4 + m) * 4, 4)
                mf.append(I("%s %s, %s, %s, %s" % (MF, acc, A(128 + 4 * (k % 8), 4), A(((n // 2) % 4) * 32 + (n & 1) * 16 + m * 4, 4), acc if n else "0")))
        G = Gaps(mf)
        for k in range(128):
            if k + LA < 128:
                r = rd(k + LA); G.put(4 * k, r[0]); G.put(4 * k + 2, r[1])
            if k % 2 == 1 and k + 1 < 128: G.put(4 * k + 3, I("@wait f%d" % (k + 2)))
        bar = {}
        for du in range(1, 8):
            bar[du] = U["E%d" % du] - 4 * LA - 1
            G.put(bar[du], I("@wait w%d rtab\ns_barrier" % du))
        lead = G.stream(l1[n1:], 0, 12, spread=False) if l1[n1:] else 0
        aa = [[0, 52, 104, 156, 208, 260], [0, 60, 118, 172, 224, 276], [0, 64, 124, 180, 234, 288], [0, 64, 128, 192, 250, 306], [0, 64, 128, 192, 256, 320], [0, 46, 110, 172, 230, 286], [0, 46, 104, 164, 222, 278]][self.o("aa", 2)]
        aa = dict(zip(range(2, 10), aa + [aa[-1] + 54, aa[-1] + 108]))
        xfe = {}
        for du in range(1, 8):
            e = min(aa[du + 2], U["E%d" % du]) - 2
            assert du < 4 or e - 18 >= U["L%d" % (du - 4)] + 32
            xfe[du] = G.stream(xf(du), e - 18, e)
        last = lead
        for du in range(2, 8):
            a0 = max(aa[du], last + 1)
            last = G.stream(([clear] if du == self.o("clrdu", 2) else []) + xl(du), a0, a0 + (self.o("xs", 16) if du <= self.o("xsd", 4) else 36))
            w0_ = last + 1
            if du >= 4: w0_ = max(w0_, min(b for b in bar.values() if b >= U["L%d" % (du - 4)] + 32) + 1)
            tr_ = {self.o("tdu", 3): [0]}.get(du, [])
            cd = self.o("cdu", 2)
            ex = [] if cpos != 2 else [cl[-4], cl[-2]] + gwt if du == cd else [cl[-3], cl[-1]] if du == cd + 1 else []
            if cpos == 3 and du == cd: ex = cl[-4:] + gwt
            last = G.stream(wl(du) + ex + [g for r in tr_ for g in self.touch(r)] + (self.touch3() if du == self.o("t3du", 6) else []) + (self.retouch() if du == 7 else []), w0_, w0_ + (self.o("wsp", 10) if du <= self.o("xsd", 4) else 16) + 4 * len(tr_))
            assert last < bar[du] - 4, (du, last, bar[du])
        vend = last
        l = self.lab("noann")
        ann = J("s_cmp_lg_u32 {clr}, 0") + J("""s_cbranch_scc1 {l}
v_mov_b32 v27, 1
s_lshl_b32 s3, s2, 2
s_sub_u32 s3, s3, 512
s_mov_b64 exec, 1
buffer_store_dword v27, v0, {SDBG}, s3 offen sc1
s_mov_b64 exec, -1
{l}:""", raw=True, l=l)
        G.put(bar[self.o("clrdu", 2)] + 2, ann)
        G.stream(self.rp_reads()[:9 if rip else 17], 130, 230)
        e0 = U["E7"] + 32
        e = G.stream(self.gate_ld() + (cl[-4:] if cpos == 0 else []), vend + 1, vend + 12)
        e1 = vend
        d0 = max(e, e1, xfe[6] + 4, vend + self.o("d0gap", 10))
        e = G.stream(self.D(0, I("@need xf6")) + self.D(1), d0, d0 + 32)
        d2 = max(e + 1, xfe[7] + 4)
        e = G.stream(self.D(2, I("@need xf7")) + self.D(3), d2, d2 + 32)
        G.stream(single(J("s_and_b32 {t0}, {nt}, {mp}\ns_lshl2_add_u32 {t2}, {b12}, {t0}\ns_lshl_b32 {t2}, {t2}, 5\ns_add_u32 {t2}, {t2}, {ni}\ns_lshl_b32 {t2}, {t2}, 11", mp=self.o("mp", 3)) + self.flag_addr()) + self.setupA() +
                 [I("@wait poll") + self.spin(self.GATE_LD)] + self.x1_addr(), e1 + 1, min(e0, self.o("xp", 470) + 30))
        late1 = self.o("x1late", 0)
        if not late1:
            G.put(self.o("xp", 470), I(self.POLL_LD, tag="poll"))
            G.stream(single(self.x1_pre()[:-1]), 490, 510)
        nin = self.o("nin", 1)
        t0_ = max(e + 1, U["L4"] + 32 if nin > 2 else 0, d0 + self.o("t0gap", 70))
        t0_ = min(t0_, 470)
        G.stream(self.TT(0, nin) + self.DD(4, 4 + nin), t0_, 506)
        gs_ = 18 - self.o("gsplit", 5)
        G.stream(chunks(self.wd_setup()) + chunks(self.gen_G(42, False)[:gs_]), 4, e0, spread=False)
        def epi(u, m, pk):
            g0, u0, g1_, u1 = [128 + ((4 * u + k) * 4 + m) * 4 for k in range(4)]
            g = []
            for gg in (g0, g1_): g += I("\n".join("v_max_f32 v%d, 0, v%d" % (gg + r, gg + r) for r in range(4)))
            for gg, uu in ((g0, u0), (g1_, u1)):
                if pk: g += I("v_pk_mul_f32 %s, %s, %s\nv_pk_mul_f32 %s, %s, %s" % (V(gg, 2), V(gg, 2), V(uu, 2), V(gg + 2, 2), V(gg + 2, 2), V(uu + 2, 2)))
                else: g += I("\n".join("v_mul_f32 v%d, v%d, v%d" % (gg + r, gg + r, uu + r) for r in range(4)))
            g += cvt(u0, g0, g0 + 1) + cvt(u0 + 1, g0 + 2, g0 + 3) + cvt(u0 + 2, g1_, g1_ + 1) + cvt(u0 + 3, g1_ + 2, g1_ + 3)
            return J("s_xor_b32 {t3}, {t2}, {o}", o=u * 1024 + m * 65536) + g + J("buffer_store_dwordx4 {r}, {l16b}, {SWS}, {t3} offen sc1", tag="pub" if u else "pue", r=V(u0, 4))
        G.stream(single([epi(0, m, False) for m in range(4)]), e0 + 2, min(512, e0 + self.o("espan", 60 if self.ef else 76)))
        if self.ef:
            l = self.lab("noe")
            G.put(self.o("efp", 509), I("@must pue") + J("s_barrier\ns_cmp_lg_u32 {w}, 0") + J("""s_cbranch_scc1 {l}
s_lshl3_add_u32 s3, {b12}, {ni}
s_lshl_b32 s3, s3, 7
s_add_u32 s3, s3, {ef}
v_mov_b32 v24, 1
s_mov_b64 exec, 1
buffer_store_dword v24, v0, {SWS}, s3 offen sc1
s_mov_b64 exec, -1
{l}:""", raw=True, l=l, ef=WS_EF))
        for i in range(8): G.put(64 * i, self.stamp(i, 1))
        G.put(480, self.stamp(8, 1)); G.put(511, self.stamp(9, 1))
        p += G.out()
        p += self.stamp(2)
        ep = [epi(1, m, True) for m in range(4)]
        mid = self.o("mid", 0)
        if not late1: ep.insert(mid, self.x1_pre()[-1:] + self.x1_fetch())
        p += flat(weave([[]] + ep, self.TT(nin, 4)) if mid else weave(ep, self.TT(nin, 4)))
        if late1: p += I(self.POLL_LD, tag="poll")
        p += self.stamp(3) + self.stamp(0, 3)
        n1_ = min(8, 4 + nin + self.o("nw1", 0))
        p += flat(self.c_stage()) + self.stamp(1, 3) + flat(weave(self.gen_G(42, True)[gs_:] + gl, self.DD(4 + nin, n1_)))
        return p + self.tail(True, 4, n1_)

    def p12d(self):
        self.ffn = False; self.cstg = LDS_RPF; self.rip = 0
        def dma(s_):
            Q, m = divmod(s_, 4)
            gs = [J("s_add_u32 m0, {ring}, {o}", o=m * 4096)]
            if m == 0:
                gs = single(J("v_lshl_add_u32 {xr}, {k}, 7, {x}\nv_lshl_add_u32 {xr2}, {k}, 7, {vw}")) + gs
                if Q: gs = single(J("s_add_u32 {k}, {k}, 1\ns_and_b32 {k}, {k}, 3")) + gs
            for hf in range(2):
                for e in range(2):
                    g = J("buffer_load_dwordx4 {r}, {srd}, s{so} offen offset:{o} lds", tag="x_%d" % s_, r=NM[("xr", "xr2")[e]], srd=(SX, SWG)[hf], so=76 + m, o=(2 * hf + e) * 1024)
                    if Q and not hf and not e: g = I("@need xf_%d" % (s_ - 4)) + g
                    gs.append(g)
            return gs
        def raw(s_):
            return [I("@must x_%d" % s_)] + [I("ds_read_b128 %s, v%d offset:%d" % (A(16 * (s_ % 2) + 4 * f, 4), vWT[f], (s_ % 4) * 4096), tag="xf_%d" % s_) for f in range(4)]
        def fold(s_):
            return [I("%s %s, v[20:23], %s, 0" % (MF, V(48 + 4 * f, 4), A(16 * (s_ % 2) + 4 * f, 4))) for f in range(4)]
        def fcv(s_):
            return [cvt(32 + (s_ % 2) * 8 + q, 48 + 2 * q, 49 + 2 * q) for q in range(8)]
        def trd(Q):
            return [I("ds_read_b128 %s, %s offset:%d" % (A(64 + 64 * (Q % 2) + 4 * f, 4), NM["l16b"], Q * 16384 + f * 1024), tag="tq%d" % Q) for f in range(16)]
        p = I("@reset") + J("""s_add_u32 s76, s76, 0x800
s_add_u32 s77, s76, 0x80000
s_add_u32 s78, s76, 0x100000
s_add_u32 s79, s76, 0x180000
s_add_u32 {ni}, {xn}, 28
s_and_b32 {k}, {xcd}, {km}
s_mov_b32 {wb}, {k}
v_mov_b32 {vw}, v18
v_lshlrev_b32 {l16b}, 4, v0""", km=self.o("km", 6) & 2)
        tg, sel, late = self.gen_T()
        cl = self.c_loads(True)
        npk = self.o("npk", 0)
        p += self.srd_const(SWG, 2097152 + 3584) + flat(tg[:npk]) + I("s_waitcnt lgkmcnt(0)") + self.srd(SX, 48, 0, back=2048) + self.srd(SWG, 48, 0, back=3584)
        p += flat([dma(m) for m in range(3)])
        ntp = self.o("ntp", 8); tl = tg[1 + 2 * ntp:]; tg = tg[npk:1 + 2 * ntp]
        place(tg, len(tg) - self.o("d3", 1), dma(3))
        if self.o("pm", 0) == 4:
            p += self.common2()
            for i, k in enumerate((0, 1, 2, 3, 4, 5, 6, 7, 8)): place(tg, k, self.stamp(i, 4))
        p += flat(tg) + sel + (self.common2() if self.o("pm", 0) != 4 else []) + self.stamp(0) + self.stamp(9, 4)
        p += I("@waitlg0\ns_barrier") + self.stamp(1)
        t0_ = trd(0)
        p += flat(t0_[:8] + raw(0) + t0_[8:] + fold(0) + dma(4) + raw(1) + fcv(0))
        def mm(s_, h, tau):
            Q, m = divmod(s_, 4); acc = V(128 + (tau * 4 + m) * 4, 4)
            return I("%s %s, %s, %s, %s" % (MF, acc, V(32 + (s_ % 2) * 8 + 4 * h, 4), A(64 + 64 * (Q % 2) + (h * 8 + tau) * 4, 4), acc if Q or h else "0"))
        mf = []; at = {}
        for s_ in range(15):
            at[s_] = len(mf); mf += [mm(s_, 0, tau) for tau in range(6)]
            at["fold", s_ + 1] = len(mf); mf += fold(s_ + 1) + [mm(s_, 0, tau) for tau in (6, 7)] + [mm(s_, 1, tau) for tau in range(8)]
        at[15] = len(mf); mf += [mm(15, h, 4 * g + t) for g in range(2) for h in range(2) for t in range(4)]
        def s2(t):
            return [I("%s %s, %s, %s, %s" % (MF, V(128 + 16 * t + 4 * sg, 4), V(64 + 8 * t + 4 * v, 4), A(224 + (2 * sg + v) * 4, 4), V(128 + 16 * t + 4 * sg, 4) if v else "0"))
                    for v in range(2) for sg in range(4)]
        for t in range(8):
            at["s2", t] = len(mf); mf += s2(t)
        G = Gaps(mf)
        for s_ in range(1, 16):
            f = at["fold", s_]
            if s_ > 1: G.stream(raw(s_), f - self.o("rawa", 11), f - 4, spread=False)
            G.put(f - 1, I("@wait xf_%d" % s_))
            G.stream(fcv(s_), f + 6, f + 12, spread=False)
            if s_ + 4 < 16: G.stream(dma(s_ + 4) + (cl[-4:] if s_ + 4 == self.o("dcs", 16) else []), f, f + 8)
        for Q in range(1, 4):
            G.stream(trd(Q), at[4 * Q - 4] + 2, at[4 * Q] - 8); G.put(at[4 * Q] - 1, I("@wait tq%d" % Q))
        G.stream(single(J("s_mul_i32 {wb}, {wb}, 0x40004000") + flat([J("v_xor_b32 v{r}, {wb}, v{r}", r=20 + i) for i in range(4)])), at["fold", 7] + 4, at["fold", 8] - 2, spread=False)
        for Q in range(ntp // 2, 4):
            G.stream(single(tl[4 * Q - 2 * ntp:4 * Q - 2 * ntp + 4]), at[4 * Q - 8] + 1, at[4 * Q - 4] - 6)
            G.put(at[4 * Q - 4] + 1, I("@must ttab%d\ns_barrier" % Q))
        e = G.stream((cl[:-4] if self.o("dcs", 16) < 16 else []) + single(late), 2 if ntp == 8 else at[8], at[12] + 6)
        rr = [I("@wait r64f\ns_barrier"), J("v_add_u32 v24, {a}, {l16b}", a=LDS_STG)] + [I("ds_read_b128 %s, v24 offset:%d" % (A(224 + 4 * f, 4), f * 1024)) for f in range(8)]
        G.stream(rr, e + 6, at[15])
        pre = J("""v_lshrrev_b32 v26, 2, {l16}
v_lshlrev_b32 v26, 17, v26
v_lshl_add_u32 v26, {hi}, 6, v26
v_and_b32 v25, 3, v0
v_lshl_add_u32 {xr}, v25, 4, v26
s_lshr_b32 s76, {xn}, 1
s_lshl_b32 s76, s76, 7
s_add_u32 s76, s76, {b12}
s_and_b32 {t0}, {xn}, 1
s_lshl1_add_u32 s76, s76, {t0}
s_lshl_b32 s76, s76, 8
s_add_u32 s76, s76, {x1}
s_add_u32 s77, s76, 0x80000
s_add_u32 s78, s76, 0x100000
s_add_u32 s79, s76, 0x180000""", x1=WS_X1) + self.flag_addr()
        G.stream(single(pre), e + 1, at[15])
        G.stream(self.gate_ld(), at["s2", 0] + 8, at["s2", 2])
        def cv(t, m): return [cvt(64 + 8 * t + 2 * m + i, 128 + 16 * t + 4 * m + 2 * i, 129 + 16 * t + 4 * m + 2 * i) for i in range(2)]
        for m in range(3):
            G.stream([g for t in range(8) for g in cv(t, m)], at[13 + m] + 1, at[13 + m] + (19 if m < 2 else 11), spread=False)
        G.stream([g for t in range(4) for g in cv(t, 3)], at[15] + 10, at["s2", 0] + 2, spread=False)
        G.stream([g for t in range(4, 8) for g in cv(t, 3)], at["s2", 0] + 3, at["s2", 2], spread=False)
        def st(tp):
            gs = []
            for sg in range(4):
                o = 32 + 16 * (tp % 2) + 4 * sg; d0 = 128 + 32 * tp + 4 * sg; d1 = d0 + 16
                gs += [cvt(o, d0, d0 + 1), cvt(o + 1, d0 + 2, d0 + 3), cvt(o + 2, d1, d1 + 1), cvt(o + 3, d1 + 2, d1 + 3),
                       J("buffer_store_dwordx4 {r}, {xr}, {SWS}, s{so} offen sc1", tag="pub", r=V(o, 4), so=76 + sg)]
                if tp < 3: gs.append(I("s_add_u32 s%d, s%d, 16384" % (76 + sg, 76 + sg)))
            return gs
        for tp in range(3):
            G.stream(st(tp), at["s2", 2 * tp + 2] + 1, at["s2", 2 * tp + 2] + 16, spread=False)
        for i in range(10): G.put(min(40 * i, len(G) - 1), self.stamp(i, 1))
        p += G.out()
        p += self.stamp(2)
        p += flat(st(3))
        p += self.stamp(3)
        p += self.spin(self.GATE_LD)
        p += self.wd_setup() + flat(self.gen_R(0, 128))
        p += self.set_flag()
        p += self.stamp(4)
        if self.o("dcs", 16) < 16: p += I("\n".join("v_accvgpr_read_b32 v%d, a%d" % (32 + i, 32 + i) for i in range(10)))
        else: p += flat(self.c_loads())
        p += flat(self.gen_R(1, 160))
        p += I("@waitlg0\ns_barrier")
        nd = self.o("dnd", 2)
        p += flat(weave(self.rp_reads() + self.x1_addr() + self.setupA(), self.DD(0, nd)))
        p += I("@wait rp\ns_barrier")
        p += flat(self.g_loads() + self.c_stage())
        p += I(self.POLL_LD, tag="poll")
        return p + self.tail(False, 0, nd)

    def touch(self, r):
        if r >= self.o("touch", 1): return []
        gs = [I("v_lshlrev_b32 v17, 5, v0")] if r == 0 else [J("s_add_u32 {lw}, {lw}, 0x38000"), J("s_sub_u32 s3, {lw}, 0x1c0000\ns_cselect_b32 {lw}, {lw}, s3")]
        return gs + [J("buffer_load_dword a{d}, v17, {SWD}, {lw} offen", d=160 + r)]
    def touch3(self):
        if not self.o("touch3", 1): return []
        return [J("s_lshr_b32 s3, s2, 3\ns_lshl2_add_u32 s3, s3, {w}\ns_lshl_b32 s3, s3, 14"), J("v_and_b32 v28, 60, v0"), J("v_lshlrev_b32 v28, 8, v28"),
                J("buffer_load_dword a172, v28, {SWD}, s3 offen offset:384")]
    def retouch(self):
        if not self.o("retouch", 1): return []
        l = self.lab("pc")
        return [J("s_getpc_b64 {m2}\n{l}:\ns_lshr_b32 s3, s2, 3\ns_lshl_b32 s3, s3, 2", l=l)] + single(J("""s_add_u32 s3, s3, {w}
s_lshl_b32 s3, s3, 9
v_lshl_add_u32 v28, v0, 3, s3
v_min_u32 v28, L_end-{l}, v28
global_load_dword a170, v28, {m2}""", l=l))

    def x1_pre(self):
        return J("""s_lshr_b32 {t0}, {bp}, 1
s_lshl3_add_u32 {t0}, {t0}, {nt}
s_lshl2_add_u32 {t0}, {t0}, {w}
s_lshl_b32 {t0}, {t0}, 7
s_and_b32 {t1}, {bp}, 1
s_add_u32 {t0}, {t0}, {t1}
s_lshl_b32 {t0}, {t0}, 5
s_add_u32 {t0}, {t0}, {x1}
v_and_b32 v26, 62, v0
v_lshl_add_u32 v26, v26, 4, {l16b}
v_add_u32 v25, 0x400, v26
s_lshl_b32 {t1}, {w}, 11
s_add_u32 m0, {t1}, {stg}""", x1=WS_X1, stg=LDS_STG)

    def x1_fetch(self):
        return self.spin(self.POLL_LD) + J("buffer_load_dwordx4 v26, {SWS}, {t0} offen sc1 lds\nbuffer_load_dwordx4 v25, {SWS}, {t0} offen offset:1024 sc1 lds", tag="x1") + self.stamp(5)
    def setupA(self):
        return single(J("""s_lshl_b32 s76, {nt}, 1
s_lshr_b32 {t1}, {w}, 1
s_add_u32 s76, s76, {t1}
s_lshr_b32 {t1}, {bp}, 3
s_lshl_b32 {t1}, {t1}, 4
s_add_u32 s76, s76, {t1}
s_lshl_b32 s76, s76, 3
s_and_b32 {t1}, {bp}, 7
s_add_u32 s76, s76, {t1}
s_lshr_b32 {t1}, {bp}, 2
s_xor_b32 {t1}, {t1}, {w}
s_and_b32 {t1}, {t1}, 1
s_lshl1_add_u32 s76, s76, {t1}
s_lshl_b32 s76, s76, 6
s_add_u32 s76, s76, {u}
s_add_u32 s77, s76, 0x80000
s_add_u32 s78, s76, 0x100000
s_add_u32 s79, s76, 0x180000
v_lshrrev_b32 v24, 1, {l16}
v_lshlrev_b32 v26, 16, v24
v_and_b32 v25, 1, v0
v_lshl_add_u32 v26, v25, 5, v26
v_lshl_add_u32 {xr}, {hi}, 3, v26
s_lshl2_add_u32 {t0}, {nt}, {w}
v_and_or_b32 v28, v0, 7, {t0}
v_cmp_eq_u32 vcc, 0, v28
v_bfe_u32 v28, v0, 3, 1
v_xor_b32 v28, 1, v28
v_lshl_or_b32 v18, v28, 31, 1.0
s_lshl_b32 {t0}, {w}, 5
s_add_u32 {t0}, {t0}, {stg}
v_lshrrev_b32 v24, 3, v0
v_cndmask_b32 v18, v18, 0, vcc
v_lshl_add_u32 v19, v24, 8, {t0}
v_lshl_add_u32 v19, v25, 7, v19
v_bfe_u32 v25, v0, 1, 2
v_lshl_add_u32 v19, v25, 3, v19""", u=WS_U, stg=LDS_STG))
    def setupB(self):
        if self.pair: return single(J("""s_lshl_b32 {he}, {bp}, 8
s_add_u32 {he}, {he}, {rot}
s_lshl_b32 {he}, {he}, 10
s_xor_b32 {hs}, {he}, {hx}
s_andn2_b32 {t1}, {bp}, {m}
s_lshl_b32 {t1}, {t1}, 5
s_lshr_b32 {t0}, {rot}, 1
s_add_u32 {t0}, {t0}, {t1}
s_lshl_b32 {t0}, {t0}, 7
s_add_u32 {wo1}, {t0}, {fl}
v_lshrrev_b32 v24, 5, v0
v_mul_u32_u24 v24, {fx}, v24
v_bfe_u32 {pa}, v0, 3, 2
v_lshl_add_u32 {pa}, {pa}, 7, v24
s_nop 0
s_lshl3_add_u32 {wo0}, {bp}, {nt}
s_lshl_b32 {wo0}, {wo0}, {ush}
s_add_u32 {wo0}, {wo0}, {cnt}
v_mov_b32 v19, 1
v_add_u32 v9, {r64}, {l16b}""", hx=self.pair << 18, m=self.pair, fx=self.pair << 12, fl=WS_FLAG, r64=LDS_R64I, cnt=WS_CNT, ush=self.o("ush", 5)))
        return single(J("""s_lshl_b32 {hs}, {bp}, 8
s_mul_i32 {t0}, {w}, 14
s_add_u32 {hs}, {hs}, {t0}
s_lshl_b32 {hs}, {hs}, 10
s_nop 0
s_nop 0
s_nop 0
s_mul_i32 {t0}, {w}, 7
s_lshl_b32 {t1}, {bp}, 5
s_add_u32 {t0}, {t0}, {t1}
s_lshl_b32 {t0}, {t0}, 7
s_add_u32 {wo1}, {t0}, {fl}
v_lshrrev_b32 v24, 3, v0
v_min_u32 {pa}, 6, v24
v_lshlrev_b32 {pa}, 7, {pa}
s_lshl3_add_u32 {wo0}, {bp}, {nt}
s_lshl_b32 {wo0}, {wo0}, {ush}
s_add_u32 {wo0}, {wo0}, {cnt}
v_mov_b32 v19, 1
v_add_u32 v9, {r64}, {l16b}""", hl=14 * 4096, fl=WS_FLAG, r64=LDS_R64I, cnt=WS_CNT, ush=self.o("ush", 5)))
    def setupC(self):
        return single(J("""s_lshl_b32 {wo1}, {w}, {ush6}
s_add_u32 {wo1}, {wo1}, {cnt}
v_lshlrev_b32 {pa}, {ush}, v0
s_lshl_b32 {t2}, {bp}, 16
s_lshl_b32 {t3}, {w}, 14
s_add_u32 {t2}, {t2}, {t3}
s_add_u32 {t2}, {t2}, {u}
s_lshl_b32 {t0}, {bp}, 8
s_add_u32 {t0}, {t0}, {g}
v_lshrrev_b32 v24, 1, {l16}
v_lshlrev_b32 v24, 7, v24
v_and_b32 v25, 1, v0
v_lshl_add_u32 v24, v25, 5, v24
v_lshrrev_b32 v27, 1, {hi}
v_bfe_u32 v28, v0, 3, 1
v_xor_b32 v28, v27, v28
v_lshl_add_u32 v24, v28, 6, v24
v_and_b32 v26, 1, {hi}
v_lshl_add_u32 {vw}, v26, 4, v24
v_lshrrev_b32 v24, 3, v0
v_xor_b32 v25, v24, v0
v_and_b32 v25, 7, v25
v_lshlrev_b32 v24, 15, v24
v_lshl_add_u32 {x}, v25, 4, v24
v_lshl_add_u32 v24, {w}, 1, v27
v_xor_b32 v24, v24, v0
v_and_b32 v24, 7, v24
v_lshlrev_b32 v24, 4, v24
v_lshl_add_u32 v24, {l16}, 7, v24
v_lshl_add_u32 v24, v26, 3, v24
v_add_u32 v6, {stg}, v24
s_lshl_b32 {t1}, {w}, 10
s_add_u32 {t1}, {t1}, {stg}
v_add_u32 v7, {t1}, {l16b}
v_lshlrev_b32 v8, 4, {l16}
s_lshl3_add_u32 s76, {bp}, {nt}
s_lshl_b32 s76, s76, 7
s_lshl_b32 {t1}, {w}, 18
s_add_u32 s76, s76, {t1}
s_add_u32 s77, s76, 0x100000""", u=WS_U, g=WS_G, stg=LDS_STG, cnt=WS_CNT, ush=self.o("ush", 5), ush6=self.o("ush", 5) + 6))
    def tail(self, ffn, nxt_t, nxt_d):
        st = dict(t=nxt_t, d=nxt_d)
        def pump(nd):
            gs = []
            for _ in range(nd):
                if st["d"] >= self.NU: break
                nx = self.loc(min(self.NU - 1, st["d"] + 1))[1]; pv = self.loc(st["d"])[1]
                while st["t"] <= max(-1 if nx is None else nx, -1 if pv is None else pv):
                    gs += self.T(st["t"]); st["t"] += 1
                gs += self.D(st["d"]); st["d"] += 1
            return gs
        def W(a, b): return flat(weave(a, b)) if b else flat(a)
        c1, c2 = self.c_calc()
        p = flat(c1[:-8])
        mid2 = ffn and self.o("mid", 0) >= 2 and not self.o("x1late", 0)
        p += self.stamp(2, 3) + I("@wait cst\ns_barrier" if mid2 else "@wait x1 cst\ns_barrier") + self.stamp(3, 3)
        if ffn and not self.o("x1late", 0) and self.o("fpos", 0) == 3: p += self.set_flag() + self.stamp(4)
        XF, DD, PP, EE, PK, UP = 128, 136, 152, 168, 184, 128
        p += flat(c1[-8:])
        late1 = self.o("x1late", 0) or not ffn
        sB = self.setupB()
        if late1:
            rip = self.rip; gcs = self.g_calc() + [self.g_store()]
            nc2 = self.o("nc2", 71) if ffn else 71
            p += W(([] if rip else self.gen_R(2, 160)) + c2[:nc2], pump(self.o("pump0", 0) if ffn else 1))
            p += self.x1_pre() + self.stamp(4, 3)
            if ffn: p += self.set_flag() + self.stamp(4)
            p += self.x1_fetch() + self.stamp(5, 3)
            p += W(c2[nc2:] + (self.gen_R(1, 160, LDS_R64I) if rip else gcs) + sB[:18] + sB[19:], pump(self.o("pump1", 2)))
            p += self.stamp(6, 3) + I("@wait x1 rtab\ns_barrier") + self.stamp(7, 3)
            if self.o("hp", 1) == 0 and ffn: p += I(self.POLL_LD, tag="poll")
        if mid2:
            nc = self.o("nc3", 55)
            p += flat(c2[:nc]); c2 = c2[nc:]
            if self.o("mid", 0) == 4: p += self.set_flag() + self.stamp(4)
            p += I("@wait x1\ns_barrier")
        for k in range(4):
            p += I("ds_read_b64_tr_b16 %s, v19 offset:%d" % (V(XF + 2 * k, 2), 2048 * k))
        mf = [I("%s %s, %s, %s, %s" % (MF, V(DD + 4 * tau, 4), A(224 + (2 * tau + v) * 4, 4), V(XF + 4 * v, 4), V(DD + 4 * tau, 4) if v else "0")) for v in range(2) for tau in range(4)]
        if late1:
            G = Gaps(mf); pm = pump(self.o("pump2", 1))
            if pm: G.stream(pm, 0, 8)
            p += G.out() + sB[18] + flat([I("ds_read_b128 %s, v9 offset:%d" % (A((192 if rip else 224) + 4 * f, 4), f * 1024)) for f in range(8)])
            if self.o("hp", 1) == 1 and ffn: p += I(self.POLL_LD, tag="poll")
        elif mid2: p += flat(c2[:8]) + flat(weave(mf, c2[8:])) + self.stamp(4, 3)
        else: p += flat(weave(c2, mf, 12, 52)) + self.stamp(4, 3)
        dpp = "row_ror:8 row_mask:0xf bank_mask:0xf"
        cA, cB, cC, cD = CO, CO + 8, CO + 16, CO + 24
        def pk(op, d, a, b, neg=False):
            g = []
            for e in range(0, 8, 2):
                if op == "mul": g += I("v_pk_mul_f32 %s, %s, %s" % (V(d + e, 2), V(a + e, 2), V(b + e, 2)))
                else: g += I("v_pk_fma_f32 %s, %s, %s, %s%s" % (V(d + e, 2), V(a + e, 2), V(b + e, 2), V(d + e, 2), " neg_lo:[1,0,0] neg_hi:[1,0,0]" if neg else ""))
            return g
        fpos = -1 if late1 or not ffn or self.o("mid", 0) == 4 else self.o("fpos", 0)
        if fpos == 0: p += self.set_flag() + self.stamp(4)
        eadr = J("""s_xor_b32 {t1}, {bp}, {m}
s_lshr_b32 {t1}, {t1}, 2
s_lshl_b32 {t1}, {t1}, 6
s_add_u32 {t1}, {t1}, {rot}
s_add_u32 {t1}, {t1}, 1
s_lshr_b32 {t1}, {t1}, 1
s_lshl_b32 {t1}, {t1}, 7
s_add_u32 {wo1}, {t1}, {ef}
v_min_u32 {pa}, 2, {hi}
v_lshlrev_b32 {pa}, 7, {pa}""", m=self.pair, ef=WS_EF)
        if self.ef and not late1: p += eadr + I(self.POLL_LD, tag="poll") + flat(self.g_calc()) + self.g_store()
        q = []
        for e in range(16): q += I("v_mul_f32_dpp v%d, v%d, v18 %s" % (PP + e, DD + e, dpp))
        q += pk("mul", EE, cA, DD) + pk("mul", EE + 8, cC, DD) + pk("fma", EE, cB, PP) + I("v_mov_b32 v%d, v%d\nv_mov_b32 v%d, v%d" % (cA, CA2, cB, CB2))
        q += pk("fma", EE + 8, cD, PP) + pk("fma", EE, cC, DD + 8, True) + pk("fma", EE + 8, cA, DD + 8) + pk("fma", EE, cD, PP + 8, True) + pk("fma", EE + 8, cB, PP + 8)
        p += W(single(q), pump(self.o("pump3", 2 if self.ef else 0)))
        p += self.pack(PK, EE)
        mf = [I("%s %s, %s, %s, %s" % (MF, V(DD + 4 * kt, 4), V(PK + 4 * v, 4), A(192 + (2 * kt + v) * 4, 4), V(DD + 4 * kt, 4) if v else "0")) for v in range(2) for kt in range(4)]
        q = self.pack(PK + 4, EE + 8)
        p += q[:2]
        G = Gaps(mf); G.put(0, q[2:])
        if not late1: G.stream(sB[:4 if self.ef else 15], 1, 8, spread=False)
        elif self.o("hp", 1) == 2 and ffn: G.put(1, I(self.POLL_LD, tag="poll"))
        p += G.out()
        if fpos == 1: p += self.set_flag() + self.stamp(4)
        for kt in range(4):
            p += cvt(UP + 2 * kt, DD + 4 * kt, DD + 4 * kt + 1) + cvt(UP + 2 * kt + 1, DD + 4 * kt + 2, DD + 4 * kt + 3)
            p += J("buffer_store_dwordx2 {r}, {xr}, {SWS}, s{so} offen sc1", tag="ust", r=V(UP + 2 * kt, 2), so=76 + kt)
        p += self.stamp(6) + self.stamp(8 if late1 else 5, 3)
        l = self.lab("nosig")
        usig = I("@wait ust gst rtab") + J("s_barrier\ns_cmp_lg_u32 {w}, 0") + \
               J("s_cbranch_scc1 {l}\ns_mov_b64 exec, 1\nbuffer_store_dword v19, v0, {SWS}, {wo0} offen sc1\ns_mov_b64 exec, -1\n{l}:", raw=True, l=l)
        if late1:
            if not ffn:
                gG = self.gen_G(136, True)
                p += W(gG[:8], pump(2)) + usig + W(gG[8:], pump(3)) + flat(pump(2)) + (eadr if self.ef else []) + I(self.POLL_LD, tag="poll") + flat(pump(9))
                usig = []
            else: p += W(gcs + self.gen_R(2, 160, LDS_RPF), pump(self.o("pumpb", 2))) if rip else flat(pump(self.o("pumpb", 2)))
            if rip: usig += J("v_add_u32 v9, {a}, {l16b}", a=LDS_RPF) + flat([I("ds_read_b128 %s, v9 offset:%d" % (A(224 + 4 * f, 4), f * 1024)) for f in range(8)])
            if self.o("hp", 1) == 3 and ffn: p += I(self.POLL_LD, tag="poll")
            p += flat(pump(self.o("pumpc", 0)))
            if self.o("upos", 0) == 0: p += usig
        elif self.ef:
            pass
        else:
            if fpos == 2: p += self.set_flag() + self.stamp(4)
            p += flat(self.g_calc()) + self.g_store() + flat(sB[15:])
            p += W([[]] if self.o("r2p", 1 if self.ef else 0) else self.gen_R(2, 160), pump(self.o("pumpa", 1)))
            r64 = flat([I("ds_read_b128 %s, v9 offset:%d" % (A(224 + 4 * f, 4), f * 1024)) for f in range(8)])
            ue = self.o("ue", 2)
            if ue == 1: p += self.stamp(6, 3) + usig + r64 + self.stamp(7, 3)
            p += I(self.POLL_LD, tag="poll")
            if ue == 2: p += self.stamp(6, 3) + usig + r64 + self.stamp(7, 3)
            tpre = max(st["t"], min(st["d"], self.o("tpre0", 6)))
            p += flat(self.TT(st["t"], tpre)); st["t"] = tpre
            p += flat(pump(self.o("pumpb", 2)))
            if ue == 0: p += usig + r64
            p += self.stamp(8, 3)
        xo = self.o("xo", 0)
        if xo > 0: p += J("v_lshl_add_u32 v44, {rot}, 10, {l16b}\nv_xor_b32 v45, 0x400, v44\nv_xor_b32 v46, 0x800, v44\nv_xor_b32 v47, 0xc00, v44\nv_and_b32 v4, 0x7ff, v44\nv_and_b32 v18, 0x7ff, v45")
        if not (self.o("strip", 0) & 8192 and ffn): p += self.spin(self.POLL_LD)
        p += self.stamp(7) + self.stamp(9, 3)
        if self.ef:
            r64 = [I("ds_read_b128 %s, v9 offset:%d" % (A(224 + 4 * f, 4), f * 1024)) for f in range(8)]
            assert self.o("r2p", 1 if self.ef else 0)
            return p + self.p4pair(ffn, st, pump, W, sB[4:14], [] if late1 else sB[15:] + r64, [] if late1 else [usig])
        if self.pair: return p + self.p4pair(ffn, st, pump, W)
        NS = 16; na = self.o("na", 8)
        order = [(u, s_) for u0 in range(0, na, 2) for s_ in range(4) for u in (u0, u0 + 1)] + [(u, s_) for s_ in range(4) for u in range(na, 14)]
        pos_ = dict((x_, k) for k, x_ in enumerate(order))
        hb = [None]
        def hload(k):
            u, s_ = order[k]; gs = []; o = s_ * 65536 + u * 1024
            if hb[0] is None or not hb[0] <= o < hb[0] + 4096:
                hb[0] = o; gs.append(J("s_add_u32 {ho}, {hs}, {o}", o=o))
            return gs + [J("buffer_load_dwordx4 {r}, {l16b}, {SWS}, {ho} offen offset:{o} sc1", tag="h%d" % k, r=V(192 + 4 * (k % NS), 4), o=o - hb[0])]
        npre = self.o("npre", 12)
        redadr = []
        for dl in range(4):
            redadr += J("s_xor_b32 {t1}, {w}, {dl}\ns_mul_i32 {t1}, {t1}, 3072\ns_add_u32 {t1}, {t1}, {o}\nv_add_u32 v{r}, {t1}, {l16b}", dl=dl, o=76 * 1024 + max(0, dl - 1) * 1024, r=32 + dl)
        ro = [61440 if self.rip else 53248, 0, 12288, 24576]
        p += W([g for k in range(npre) for g in hload(k)], self.setupC())
        tpre = max(st["t"], min(st["d"], self.o("tpre", 4)))
        p += flat(self.TT(st["t"], tpre)); st["t"] = tpre
        if late1 and self.o("upos", 0) == 1: p += usig
        s5 = self.o("s5", 80); AO = GB; LA = self.o("la5", 10); PK5 = 36
        def m4(k, dl):
            u, s_ = order[k]; d = V(128 + (dl * 4 + s_) * 4, 4)
            return I("%s %s, %s, %s, %s" % (MF, d, A(self.wd_reg(u, dl), 4), V(192 + 4 * (k % NS), 4), d if u else "0"))
        ar = lambda k: A(self.wd_reg((k % 16) // 4, k % 4), 4)
        def m5(k):
            n, sg = divmod(k, 4); d = V(ACCV + 4 * sg, 4)
            return I("%s %s, %s, %s, %s" % (MF, d, ar(k), V(GB + 4 * n, 4), d if n else "0"))
        mf = []; at = {}; k5 = 0; fin = None
        for i in range(224):
            k, dl = divmod(i, 4)
            if order[k][0] == 13: dl = (dl + 1) % 4
            at[(k, i % 4)] = len(mf); mf.append(m4(k, dl))
            if i >= s5 and k5 < 64:
                at[k5] = len(mf); mf.append(m5(k5)); k5 += 1
            if k5 == 64 and fin is None and len(mf) >= at[63] + 12:
                fin = len(mf)
                mf += [I("%s %s, %s, %s, %s" % (MF, V(AO + 4 * a_, 4), V(PK5 + 4 * v, 4), A(224 + (2 * a_ + v) * 4, 4), V(AO + 4 * a_, 4) if v else "0")) for v in range(2) for a_ in range(4)]
        assert at[0] - LA >= 64 and na >= 4
        G = Gaps(mf); N = len(mf)
        for k in range(1, 56): G.put(at[(k, 0)] - 1, I("@must h%d" % k))
        for k in range(64):
            pos = at[k - LA] if k >= LA else at[0] - (LA - k)
            if k % 16 == 0: G.put(pos - 1, I("@must u%d\ns_barrier" % (k // 16)))
            G.put(pos, J("ds_read_b128 {r}, {vw} offset:{o}", tag="a%d" % k, r=ar(k), o=(k % 4) * 16384 + (k // 4) * 1024))
            if k % 2 == 0: G.put(at[k] - 1, I("@wait a%d" % (k + 1)))
        G.put(at[0] + 1, J("buffer_load_dwordx4 v[20:23], v8, {SWS}, {t0} offen sc1"))
        hd = self.o("hd", 48)
        def ud(c):
            return [J("s_add_u32 m0, {t3}, {o}", o=c * 4096)] + ([J("s_add_u32 {t2}, {t2}, 4096")] if c else []) + \
                   [J("buffer_load_dwordx4 {l16b}, {SWS}, {t2} offen offset:{o} sc1 lds", tag="u%d" % c, o=1024 * k) for k in range(4)]
        use = lambda u: at[(pos_[(u, 0)], 0)]
        occ = lambda c: max([u for u in range(14) if self.loc(u)[0] == 0 and self.loc(u)[2] == c] + [-1])
        items = [(at[(k, 0)], 1, k) for k in range(npre, 56)] + [(at[16 * c] - (2 if c else 1) * LA - 1, 0, c) for c in range(4)]
        for n_, u in enumerate(range(st["d"], 14)):
            lim = use(u) - 24
            if self.loc(u)[0] == 0: lim = min(lim, at[16 * self.loc(u)[2]] - 2 * LA - hd - 20)
            items.append((min(lim, hd + self.o("l0", 0) + n_ * self.o("lsp", 16)), 2, u))
        items.sort()
        last = 0; dpos = {}; upos_ = {}
        for need, kind, k in items:
            want = max(last, need - hd)
            if kind == 1:
                w_ = max(want, last + 1, at[(k - NS, 3)] if k >= NS else 0)
                last = G.stream(hload(k), w_, w_ + 4, spread=False)
            elif kind == 2:
                dpos[k] = want; last = G.stream(self.D(k), want + 1, want + 9); dpos[k, "e"] = last
            else:
                upos_[k] = want
                if k == 0:
                    G.put(max(0, want - self.o("pgap", 44)), I(self.POLL_LD, tag="poll"))
                    G.put(want, self.stamp(8) + I("@wait poll") + self.spin(self.POLL_LD, sleep=4))
                last = G.stream(([I("@must t%d" % occ(k))] if occ(k) >= 0 else []) + ud(k), want + 1, want + 11)
        dl_ = {}
        for u in range(13, st["t"] - 1, -1):
            d_ = min([use(u) - 3] + [dpos[v] for v in range(14) if v in dpos and self.loc(v)[1] == u] + [upos_[c] for c in range(4) if occ(c) == u])
            dl_[u] = min(d_, dl_[u + 1] - 5) if u < 13 else d_
        e = 0; tearly = []
        for u in range(st["t"], 14):
            if dl_[u] < 8:
                assert u not in dpos
                tearly += self.T(u); continue
            a_ = max(e, dl_[u] - 14, 0)
            assert a_ > dpos.get((u, "e"), -1), (u, a_, dpos)
            e = G.stream(self.T(u), a_, dl_[u], spread=False)
            assert e <= dl_[u]
        p += flat(tearly)
        G.stream(single(redadr), 8, 60)
        def red_w(s_): return [I("ds_write_b128 v%d, %s offset:%d" % (32 + dl, V(128 + (dl * 4 + s_) * 4, 4), ro[s_]), tag="rw%d" % s_) for dl in (1, 2, 3)]
        def red_r(s_): return [I("ds_read_b128 %s, v32 offset:%d" % (V(128 + (dl * 4 + s_) * 4, 4), ro[s_] + (dl - 1) * 1024), tag="rr%d" % s_) for dl in (1, 2, 3)]
        def red_a(s_):
            b = 128 + 4 * s_
            return single([I("v_add_f32 v%d, v%d, v%d" % (b + o + r, b + o + r, b + o + q + r)) for o, q in ((0, 16), (32, 16), (0, 32)) for r in range(4)])
        def mix(a_):
            b = 128 + 4 * a_
            return single(I("\n".join("v_fma_f32 v%d, v%d, v%d, v%d" % (b + r, b + r, 20 + a_, AO + 4 * a_ + r) for r in range(4))) +
                          cvt(56 + 2 * a_, b, b + 1) + cvt(57 + 2 * a_, b + 2, b + 3) + I("ds_write_b64 v6, %s offset:%d" % (V(56 + 2 * a_, 2), a_ * 2048), tag="ow%d" % a_))
        G.stream(single(self.pack(PK5, ACCV) + self.pack(PK5 + 4, ACCV + 8)), at[63] + 4, fin - 1, spread=False)
        gm = I("\n".join("v_mul_f32 v%d, %s, v%d" % (GB + 16 + a_, fhex(2.0 ** -19), 20 + a_) for a_ in range(4)))
        gm += I("\n".join("v_sub_f32 v%d, 1.0, v%d" % (20 + a_, 20 + a_) for a_ in range(4)))
        bars = {}; rend = {}
        for s_ in range(3):
            e = at[(pos_[(13, s_)], 3)]
            e = G.stream(red_w(s_), e + 3, e + 9)
            bars[s_] = e + 4
            G.put(e + 4, I("@must rw%d t13%s\ns_barrier" % (s_, " ow1" if s_ == 2 else "")))
            e = G.stream(red_r(s_) + ([I("ds_read_b128 v[36:39], v7")] if s_ == 2 else []), e + 5, e + 10, spread=False)
            if s_ < 2:
                G.put(e + 5, I("@wait rr%d" % s_))
                rend[s_] = G.stream(red_a(s_), e + 6, e + 16, spread=False)
        e = G.stream(single(gm), fin, fin + 8, spread=False)
        e = G.stream(single(I("\n".join("v_mul_f32 v%d, v%d, v%d" % (AO + i, GB + 16 + i // 4, AO + i) for i in range(16)))), max(e, fin + 9), fin + 24, spread=False)
        e = G.stream(mix(0), max(e, rend[0]) + 1, bars[2] - 6, spread=False)
        e = G.stream(mix(1), max(e, rend[1]) + 1, bars[2] - 1, spread=False)
        assert e < bars[2]
        ost = lambda h_: J("buffer_store_dwordx4 {r}, {x}, {SOUT}, s{so} offen {f}", r=V(36 + 4 * h_, 4), so=76 + h_, f=("", "sc1", "nt")[self.o("ost", 1)])
        ra = red_a(2); nfit = max(0, min(12, 2 * (N - bars[2] - 11)))
        if nfit: G.stream(ra[:nfit], bars[2] + 10, N, spread=False)
        for i in range(10): G.put(min(32 * i, len(G) - 1), self.stamp(i, 2))
        p += G.out()
        p += self.stamp(9)
        p += ost(0) + flat(weave(red_w(3), ra[nfit:] + mix(2))) + I("@wait rw3\ns_barrier") + flat(red_r(3))
        for o, q in ((0, 16), (32, 16), (0, 32)):
            for hh in (0, 2): p += I("v_pk_add_f32 %s, %s, %s" % (V(140 + o + hh, 2), V(140 + o + hh, 2), V(140 + o + q + hh, 2)))
        p += flat(mix(3)) + I("@waitlg0\ns_barrier\nds_read_b128 v[40:43], v7 offset:4096") + ost(1)
        return p + self.ending(ffn)

    def p4pair(self, ffn, st, pump, W, ladr=None, fill=None, usig=None):
        NS = 16; hb = [None]; ef = self.ef
        order = [(t, u) for t in range(8) for u in range(7)]
        if ef: order = [(t, u) for t in range(4) for u in range(3)] + [(t, u) for t in range(4) for u in range(3, 7)] + [(t, u) for t in range(4, 8) for u in (0, 3, 1, 4, 2, 5, 6)]
        pos_ = dict((x_, k) for k, x_ in enumerate(order))
        def hload(k):
            t, u = order[k]; gs = []
            o = t * 65536 + (2 * (u % 3) if ef and u < 6 else u) * 1024
            if hb[0] is None or not hb[0] <= o < hb[0] + 4096:
                hb[0] = o; gs.append(J("s_add_u32 {ho}, {b}, {o}", o=o & 0x3ffff, b=NM["hs" if t < 4 else "he"]))
            return gs + [J("buffer_load_dwordx4 {r}, {a}, {SWS}, {ho} offen offset:{o} sc1", tag="h%d" % k, r=V(192 + 4 * (k % NS), 4), o=o - hb[0],
                           a=("v44", "v45")[u // 3] if ef and u < 6 else NM["l16b"])]
        npre = self.o("npre", 12)
        adr = []
        for dl in range(4):
            adr += J("s_xor_b32 {t1}, {w}, {dl}\ns_mul_i32 {t1}, {t1}, 3072\ns_add_u32 {t1}, {t1}, {o}\nv_add_u32 v{r}, {t1}, {l16b}", dl=dl, o=76 * 1024 + max(0, dl - 1) * 1024, r=32 + dl)
        adr += J("""s_lshl3_add_u32 {t1}, {bp}, {nt}
s_lshl_b32 {wo0}, {t1}, 7
s_add_u32 {wo0}, {wo0}, {pf}
s_lshl2_add_u32 s78, {t1}, {w}
s_lshl_b32 s78, s78, 12
s_xor_b32 s79, s78, {px}
s_add_u32 s78, s78, {pb}
s_add_u32 s79, s79, {pb}""", pf=WS_PF, pb=WS_P, px=self.pair << 17)
        ro = [61440 if self.rip else 53248, 0, 12288, 24576]
        sC = self.setupC()
        if ef:
            npre = 12
            p = J("s_lshr_b32 {t1}, {wde}, 5\nv_add_u32 v44, {t1}, {l16b}\nv_xor_b32 v45, 0x400, v44") + flat([hload(k) for k in range(npre)])
            p += flat(ladr + fill + pump(7)) + flat(self.TT(st["t"], 3)); st["t"] = max(st["t"], 3)
        else:
            p = flat(pump(7)) + W([g for k in range(npre) for g in hload(k)], sC + single(adr))
            p += flat(self.TT(st["t"], 7))
        s5 = self.o("s5", 128); AO = GB; LA = self.o("la5", 10); PK5 = 36; RC = GB + 24
        def m4(k, dl):
            t, u = order[k]; d = V(128 + (dl * 4 + t % 4) * 4, 4)
            return I("%s %s, %s, %s, %s" % (MF, d, A(self.wd_reg(u, dl), 4), V(192 + 4 * (k % NS), 4), d if u else "0"))
        ar = lambda k: A(80 + 4 * (k % 16), 4)
        def m5(k):
            n, sg = divmod(k, 4); d = V(ACCV + 4 * sg, 4)
            return I("%s %s, %s, %s, %s" % (MF, d, ar(k), V(GB + 4 * n, 4), d if n else "0"))
        mf = []; at = {}; k5 = 0; fin = None
        for i in range(224):
            k, dl = divmod(i, 4)
            if order[k][1] == 6: dl = (dl + 1) % 4
            at[(k, i % 4)] = len(mf); mf.append(m4(k, dl))
            if i >= s5 and k5 < 64:
                at[k5] = len(mf); mf.append(m5(k5)); k5 += 1
            if k5 == 64 and fin is None and len(mf) >= at[63] + 12:
                fin = len(mf)
                mf += [I("%s %s, %s, %s, %s" % (MF, V(AO + 4 * a_, 4), V(PK5 + 4 * v, 4), A(224 + (2 * a_ + v) * 4, 4), V(AO + 4 * a_, 4) if v else "0")) for v in range(2) for a_ in range(4)]
        G = Gaps(mf); N = len(mf)
        for k in range(1, 56): G.put(at[(k, 0)] - 1, I("@must h%d" % k))
        for k in range(64):
            pos = at[k - LA] if k >= LA else at[0] - (LA - k)
            if k % 16 == 0: G.put(pos - 1, I("@must u%d\ns_barrier" % (k // 16)))
            G.put(pos, J("ds_read_b128 {r}, {vw} offset:{o}", tag="a%d" % k, r=ar(k), o=(k % 4) * 16384 + (k // 4) * 1024))
            if k % 2 == 0: G.put(at[k] - 1, I("@wait a%d" % (k + 1)))
        G.put(at[0] + 1, J("buffer_load_dwordx4 v[20:23], v8, {SWS}, {t0} offen sc1"))
        hd = self.o("hd", 48)
        def ud(c):
            return [J("s_add_u32 m0, {t3}, {o}", o=c * 4096)] + ([J("s_add_u32 {t2}, {t2}, 4096")] if c else []) + \
                   [J("buffer_load_dwordx4 {l16b}, {SWS}, {t2} offen offset:{o} sc1 lds", tag="u%d" % c, o=1024 * k) for k in range(4)]
        items = sorted([(at[(k, 0)], 1, k) for k in range(npre, 56)] + [(at[16 * c] - (2 if c else 1) * LA - 1, 0, c) for c in range(4)])
        last = 0
        if ef:
            up = self.o("up", 4)
            if usig: G.put(up, usig[0] + self.stamp(6, 3))
            G.put(self.o("lp", 2), I(self.POLL_LD, tag="poll"))
            last = self.o("lc", 24)
            G.put(last, I("@wait poll") + self.spin(self.POLL_LD) + self.stamp(7, 3))
            G.stream(sC[:3], last + 1, last + 5, spread=False)
            e = G.stream(self.TT(st["t"], 7), 8, 46) if st["t"] < 7 else 0
            assert e < 47
            e = G.stream(sC[3:9] + single(adr) + sC[9:], up + 1, 60, spread=False)
        for need, kind, k in items:
            want = max(last, need - hd)
            if kind == 1:
                w_ = max(want, last + 1, at[(k - NS, 3)] if k >= NS else 0)
                last = G.stream(hload(k), w_, w_ + 4, spread=False)
            else:
                if k == 0:
                    G.put(max(self.o("lc", 24) + 6 if ef else 0, want - self.o("pgap", 44)), I(self.POLL_LD, tag="poll"))
                    G.put(want, self.stamp(8) + I("@wait poll") + self.spin(self.POLL_LD, sleep=4))
                    G.stream(single(J("s_xor_b32 {wo1}, {wo0}, {o}\nv_mov_b32 {pa}, 0", o=self.pair << 10)), want + 1, want + 20)
                last = G.stream(ud(k), want + 1, want + 11)
        def red_w(t): return [I("ds_write_b128 v%d, %s offset:%d" % (32 + dl, V(128 + (dl * 4 + t % 4) * 4, 4), ro[t % 4]), tag="rw%d" % t) for dl in (1, 2, 3)]
        def red_r(t): return [I("ds_read_b128 %s, v32 offset:%d" % (V(128 + (dl * 4 + t % 4) * 4, 4), ro[t % 4] + (dl - 1) * 1024), tag="rr%d" % t) for dl in (1, 2, 3)]
        def red_a(t):
            b = 128 + 4 * (t % 4)
            return single([I("v_add_f32 v%d, v%d, v%d" % (b + o + r, b + o + r, b + o + q + r)) for o, q in ((0, 16), (32, 16), (0, 32)) for r in range(4)])
        def mix(a_):
            b = 128 + 4 * a_
            return single(I("v_pk_add_f32 %s, %s, %s\nv_pk_add_f32 %s, %s, %s" % (V(b, 2), V(b, 2), V(RC + 4 * a_, 2), V(b + 2, 2), V(b + 2, 2), V(RC + 4 * a_ + 2, 2))) +
                          I("\n".join("v_fma_f32 v%d, v%d, v%d, v%d" % (b + r, b + r, 20 + a_, AO + 4 * a_ + r) for r in range(4))) +
                          cvt(56 + 2 * a_, b, b + 1) + cvt(57 + 2 * a_, b + 2, b + 3) + I("ds_write_b64 v6, %s offset:%d" % (V(56 + 2 * a_, 2), a_ * 2048), tag="ow%d" % a_))
        left = []; sent = 0; b16 = self.o("b16", 1); wg = self.o("wg", 4)
        rounds = {0: [[0], [1], [2], [3], [4], [5], [6]], 1: [[0, 1], [2, 3], [4, 5], [6]], 2: [[0, 1], [2, 3], [4, 5, 6]], 3: [[0, 1, 2], [3], [4, 5, 6]]}[self.o("rnd", 1)]
        if len(rounds[0]) > 1: G.put(at[(pos_[(1, 6)], 0)] - self.o("eb", 10), I("@must t6\ns_barrier"))
        for rd_ in rounds:
            for t in rd_:
                e = at[(pos_[(t, 6)], 3)]
                e = G.stream(red_w(t), e + 3, e + (9 if t == rd_[-1] else 20))
            G.put(e + wg, I("@must rw%d t6\ns_barrier" % rd_[-1]))
            e = G.stream([g for t in rd_ for g in red_r(t)], e + wg + 1, e + wg + 2 + 4 * len(rd_), spread=False)
            e0_ = e + 5 - 3 * (len(rd_) - 1)
            for t in rd_:
                ra = [I("@wait rr%d" % t)] + red_a(t); nfit = 0 if left else max(0, min(13, 2 * (N - e0_ - 2)))
                if nfit: e0_ = G.stream(ra[:nfit], e0_, min(N, e0_ + 11), spread=False)
                left += ra[nfit:]
                if t < 4 and b16:
                    o = 24 + 4 * (t // 2) + 2 * (t & 1); b = 128 + 4 * t
                    e0_ = sent = G.stream([cvt(o, b, b + 1), cvt(o + 1, b + 2, b + 3)] + ([J("buffer_store_dwordx4 {r}, {l16b}, {SWS}, s79 offen offset:{o} sc1", tag="snd", r=V(o - 2, 4), o=(t // 2) * 1024)] if t & 1 else []), e0_, e0_ + 4, spread=False)
                elif t < 4: sent = G.stream([J("buffer_store_dwordx4 {r}, {l16b}, {SWS}, s79 offen offset:{o} sc1", tag="snd", r=V(128 + 4 * t, 4), o=t * 1024)], e0_ + 1, e0_ + 4)
                assert t >= 4 or sent + 2 < at[(pos_[(t + 4, 0)], 0)]
        l = self.lab("nop")
        fp = sent + self.o("sgap", 44)
        G.put(fp, I("@must snd") + J("s_barrier\ns_cmp_lg_u32 {w}, 0") +
              J("s_cbranch_scc1 {l}\ns_mov_b64 exec, 1\nbuffer_store_dword v19, v0, {SWS}, {wo0} offen sc1\ns_mov_b64 exec, -1\n{l}:", raw=True, l=l))
        rc = N - self.o("rc", 40); assert rc > at[40] and rc - self.o("rgap", 30) > fp
        G.put(rc - self.o("rgap", 30), I(self.POLL_LD, tag="poll"))
        G.put(rc, I("@wait poll") + self.spin(self.POLL_LD))
        G.stream([J("buffer_load_dwordx4 {r}, {l16b}, {SWS}, s78 offen offset:{o} sc1", r=V((24 if b16 else RC) + 4 * t, 4), o=t * 1024) for t in range(2 if b16 else 4)], rc + 1, rc + 6, spread=False)
        if b16: left += single([J("v_lshlrev_b32 v{d0}, 16, v{s}\nv_and_b32 v{d1}, {hi16}, v{s}", d0=RC + 2 * i, d1=RC + 2 * i + 1, s=24 + i) for i in range(8)])
        G.stream(single(self.pack(PK5, ACCV) + self.pack(PK5 + 4, ACCV + 8)), at[63] + 4, fin - 1, spread=False)
        gm = I("\n".join("v_mul_f32 v%d, %s, v%d" % (GB + 16 + a_, fhex(2.0 ** -19), 20 + a_) for a_ in range(4)))
        gm += I("\n".join("v_sub_f32 v%d, 1.0, v%d" % (20 + a_, 20 + a_) for a_ in range(4)))
        e = G.stream(single(gm), fin, fin + 8, spread=False)
        e = G.stream(single(I("\n".join("v_mul_f32 v%d, v%d, v%d" % (AO + i, GB + 16 + i // 4, AO + i) for i in range(16)))), max(e, fin + 9), min(N, fin + 30), spread=False)
        ost = lambda h_: J("buffer_store_dwordx4 {r}, {x}, {SOUT}, s{so} offen {f}", r=V(36 + 4 * h_, 4), so=76 + h_, f=("", "sc1", "nt")[self.o("ost", 1)])
        for i in range(10): G.put(min(32 * i, len(G) - 1), self.stamp(i, 2))
        go = G.out(); x_ = self.o("strip", 0)
        if x_ & 1024: go = [i for i in go if i.op != "s_barrier"]
        if x_ & 2048: go = [Ins("s_nop 0", i.tag) if i.cls == "ds" and i.tag and i.tag[:2] in ("rw", "rr") else i for i in go]
        if x_ & 4096: go = [i for i in go if not (i.raw and "s_mem" not in i.op)]
        p += go
        p += self.stamp(9)
        p += flat(left) + flat(weave(red_w(7), mix(0) + mix(1))) + I("@wait rw7 ow1\ns_barrier") + flat(red_r(7)) + I("ds_read_b128 v[36:39], v7") + flat(mix(2))
        for o, q in ((0, 16), (32, 16), (0, 32)):
            for hh in (0, 2): p += I("v_pk_add_f32 %s, %s, %s" % (V(140 + o + hh, 2), V(140 + o + hh, 2), V(140 + o + q + hh, 2)))
        p += ost(0) + flat(mix(3)) + I("@waitlg0\ns_barrier\nds_read_b128 v[40:43], v7 offset:4096") + ost(1)
        return p + self.ending(ffn)

    def ending(self, ffn):
        p = []
        if "diag" in self.kw:
            i = self.kw["diag"]; l = self.lab("dg"); who = self.o("who", 0)
            use = i >= 0 and (who == 0 or (who == 1) == ffn)
            p += I("@waitvm0") + self.stamp(10) + I("s_waitcnt lgkmcnt(0)")
            p += I("s_add_u32 s3, %s, 5000" % ("s%d" % (48 + 2 * i) if use else "s100"))
            p += I("%s:\ns_sleep 1\ns_memrealtime s[98:99]\ns_waitcnt lgkmcnt(0)\ns_sub_u32 s98, s98, s3\ns_cmp_lt_i32 s98, 0\ns_cbranch_scc1 %s" % (l, l), raw=True)
        elif self.prof:
            p += I("@waitvm0") + self.stamp(10) + I("s_waitcnt lgkmcnt(0)")
            p += J("s_lshl_b32 s3, s2, 2\ns_add_u32 s3, s3, {w}\ns_lshl_b32 s3, s3, 6\ns_add_u32 s3, s3, {o}\nv_mov_b32 v32, s100", o=WS_PROF)
            for i in range(11): p += I("v_mov_b32 v%d, s%d" % (33 + i, 48 + 2 * i))
            p += I("s_mov_b64 exec, 1")
            for i in range(3): p += I("buffer_store_dwordx4 %s, v0, %s, s3 offen offset:%d" % (V(32 + 4 * i, 4), SWS, 16 * i))
        return p + I("s_endpgm")

    def text(self):
        st = {}
        hdr = open("gated_mix__spectral_gfnet__glu_gated_reglu__prompt.s.ref").read().split("; Override launch")[0]
        out = [hdr.rstrip(), "; One persistent launch: 256 workgroups (one per CU) x 4 waves. Written by my own generator scripts.",
               "; @launch grid=(256,1,1) block=(256,1,1) lds=163840", '.amdgcn_target "amdgcn-amd-amdhsa--gfx950"', ".text",
               ".globl " + NAME, ".p2align 8", ".type %s,@function" % NAME, NAME + ":"]
        prog = self.prologue() + self.p12f() + I("L_dft:") + self.p12d() + I("L_end:\ns_endpgm")
        x = self.o("strip", 0)
        if x & 1: prog = [i for i in prog if i.cls != "mfma"]
        if x & 2: prog = [i for i in prog if not (i.cls == "ds" and i.op.startswith("ds_read"))  or i.tag and not seen_tag(i.tag)]
        if x & 4: prog = [i if not (i.cls == "vmem" and i.tag == "pub") else Ins(i.text.replace("v14", "v0").replace("dwordx4", "dword").replace(i.text.split()[1], "v0,"), i.tag) for i in prog]
        import re as _re
        for bit, pat in ((8, r"d\d+$"), (16, r"h\d+"), (512, r"snd"), (32, r"u\d$"), (64, r"cld$"), (128, r"w\d$"), (256, r"x\d$")):
            if x & bit: prog = [Ins("s_nop 0", i.tag) if i.cls == "vmem" and i.tag and _re.match(pat, i.tag) and "sc1 lds" not in (i.text if bit == 256 else "") else i for i in prog]
        body = finalize(prog, st)
        if self.o("al", 1): body, st["align"] = align8(body)
        out += body
        out += ['.section .rodata,"a"', ".p2align 6", ".amdhsa_kernel " + NAME, "  .amdhsa_next_free_vgpr 512", "  .amdhsa_next_free_sgpr 102",
                "  .amdhsa_accum_offset 256", "  .amdhsa_group_segment_fixed_size 0", "  .amdhsa_kernarg_size 88", "  .amdhsa_user_sgpr_count 2",
                "  .amdhsa_user_sgpr_kernarg_segment_ptr 1", "  .amdhsa_system_sgpr_workgroup_id_x 1", "  .amdhsa_float_denorm_mode_32 3", ".end_amdhsa_kernel"]
        self.stats = st; self.body = body
        return "\n".join(out) + "\n"

def main(Gen):
    import argparse
    ap = argparse.ArgumentParser()
    ap.add_argument("out"); ap.add_argument("--prof", action="store_true"); ap.add_argument("--opt", default=""); ap.add_argument("--est", action="store_true")
    a = ap.parse_args()
    kw = dict((k, int(v)) for k, v in (x.split("=") for x in a.opt.split(",") if x))
    g = Gen(prof=a.prof, **kw)
    open(a.out, "w").write(g.text())
    print(g.stats)
    if a.est:
        row = []; gap = None; nm = 0; over = 0; skip = None
        for l in g.body:
            x = Ins(l.strip())
            if skip:
                if x.text == skip + ":": skip = None
                continue
            if x.op in ("s_cbranch_vccz", "s_cbranch_scc1") and "L_" not in x.text: skip = x.text.split()[1]
            if x.cls == "label":
                if x.text == "L_dft:": row.append(over); row.append("|"); nm = 0; over = 0; gap = None
                continue
            if x.cls == "mfma":
                if gap is not None and len(gap) < 14: over += gap_over(gap) + sum(int(y.text.split()[1]) for y in gap if y.op == "s_nop")
                gap = []; nm += 1
                if nm % 64 == 0: row.append(over); over = 0
            elif gap is not None: gap.append(x)
        print(row, over)

if __name__ == "__main__":
    main(Gen)
```

```python
import sys
sys.path.insert(0, "tools")
from prog import *

NAME = "gated_mix__spectral_gfnet__glu_gated_reglu__prompt_kernel"
WS_H, WS_X1, WS_U, WS_G, WS_FLAG, WS_CNT, WS_PROF = 0, 0x800000, 0xA00000, 0xC38000, 0xC10000, 0xC30000, 0xF000000
NCLR = 58 if 'ef=1' in ' '.join(sys.argv) else 50
WS_PF, WS_EF, WS_P = 0xC3A000, 0xC42000, 0xD00000
SPIN_LIMIT = 300000
MF = "v_mfma_f32_16x16x32_bf16"
SX, SWG, SWU, SWD, SWS, SOUT, SWR, SWI, SGW, SDBG = [S(8 + 4 * i, 4) for i in range(10)]
NM = dict(w="s4", b12="s5", ni="s6", rot="s7", xcd="s70", loc="s71", wds="s70", wde="s71", l3="s72", nt="s73", bp="s74", xn="s75",
          hs="s80", lw4="s80", wo0="s81", wo1="s82", he="s83", wb="s83", k="s94", lw="s84", wdo="s85", t0="s86", t1="s87", t2="s88", t3="s89",
          mask="s[90:91]", hi16="s92", ring="s93", ho="s94", clr="s95", jb="s0", sh="s1", m1="s[96:97]", m2="s[98:99]",
          l16="v1", hi="v2", x="v3", xr="v4", vw="v5", l16b="v14", wd="v15", p="v16", xr2="v16", pa="v17",
          SX=SX, SWG=SWG, SWU=SWU, SWD=SWD, SWS=SWS, SOUT=SOUT, SWR=SWR, SWI=SWI, SGW=SGW, SDBG=SDBG)
vWT = [6, 7, 8, 9]; vDT = [10, 11, 12, 13]; vXA = [22, 23]; vWD = [15, 29, 30, 31]
LDS_RPF, LDS_RPI, LDS_R64I, LDS_STG, LDS_RED = 128 * 1024, 136 * 1024, 144 * 1024, 152 * 1024, 64 * 1024
GB, CO, ACCV = 64, 32, 48
CA2, CB2 = 20, 21
RING = [192, 208, 224, 240, 32]

def J(text, tag=None, raw=False, **kw):
    d = dict(NM); d.update(kw)
    return I(text.format(**d), tag, raw)
def single(g): return [[x] for x in flat(g)]
def chunks(g):
    g = flat(g); out = []; i = 0
    while i < len(g):
        j = i
        if g[i].op.startswith("v_cmp") and ("s", 106) in g[i].dst:
            k = i + 1
            while k < len(g) and not (g[k].op.startswith("v_cmp") and ("s", 106) in g[k].dst):
                if ("s", 106) in g[k].src: j = k
                k += 1
            j = i
        while j + 1 < len(g) and g[j + 1].op.startswith(("s_cselect", "s_subb", "s_addc")): j += 1
        out.append(g[i:j + 1]); i = j + 1
    return out
def cvt(d, a, b): return I("v_cvt_pk_bf16_f32 v%d, v%d, v%d" % (d, a, b))

_seen = set()
def seen_tag(t):
    r = t in _seen; _seen.add(t); return r

class Gen:
    def __init__(self, prof=False, **kw):
        self.prof = prof; self.kw = kw; self.nl = 0
        self.pair = kw.get("pair", 4); self.NU = 7 if self.pair else 14; self.ef = kw.get("ef", 0) and self.pair
    def o(self, k, d): return self.kw.get(k, d)
    def lab(self, b):
        self.nl += 1; return "L%s_%d" % (b, self.nl)
    def clk(self): return "s_memtime" if self.o("cyc", 0) else "s_memrealtime"
    def stamp(self, i, mode=0):
        if not self.prof or self.o("diag", i) != i or (self.o("pm", 0) != mode and i != 10): return []
        return I("%s %s" % (self.clk(), S(48 + 2 * i, 2)), raw=True)
    def srd(self, name, lo, size, back=0):
        b = int(name[2:name.index(":")])
        if back: g = I("s_sub_u32 s%d, s%d, %d\ns_subb_u32 s%d, s%d, 0" % (b, lo, back, b + 1, lo + 1))
        else: g = I("s_mov_b64 %s, %s" % (S(b, 2), S(lo, 2)))
        return g
    def srd_const(self, name, size):
        b = int(name[2:name.index(":")])
        return I("s_mov_b32 s%d, 0x%x\ns_mov_b32 s%d, 0x20000" % (b + 2, size, b + 3))
    def spin(self, load, sleep=None):
        if sleep is None: sleep = self.o("sl", 0)
        ok, sp = self.lab("ok"), self.lab("spin")
        cmp_ = "v_cmp_ne_u32 vcc, 1, v16"
        return I(cmp_) + I("s_cbranch_vccz %s" % ok, tag="first", raw=True) + I("""s_mov_b32 s3, 0
%s:
%s%s
s_waitcnt vmcnt(0)
%s
s_add_u32 s3, s3, 1
s_cmp_lt_u32 s3, %d
s_cbranch_vccz %s
s_cbranch_scc1 %s
%s:""" % (sp, "s_sleep %d\n" % sleep if sleep else "", load, cmp_, SPIN_LIMIT, ok, sp, ok), raw=True)

    def cheb(self, X, Y, K, pk=True):
        if not pk: return I("\n".join("v_fma_f32 v%d, v%d, v%d, -v%d" % (X + q, K, Y + q, X + q) for q in range(8)))
        return I("\n".join("v_pk_fma_f32 %s, %s, %s, %s neg_lo:[0,0,1] neg_hi:[0,0,1]" % (V(X + 2 * q, 2), V(K, 2), V(Y + 2 * q, 2), V(X + 2 * q, 2)) for q in range(4)))
    def direct(self, X, spec):
        g = []; src = []
        for i, (d, K, b) in enumerate(spec):
            if K == 0: src.append(b)
            else:
                g += I("v_fmamk_f32 v%d, %s, %s, %s" % (X + i, d, fhex(K), b)); src.append("v%d" % (X + i))
        return g + I("\n".join("v_cos_f32 v%d, %s" % (X + i, src[i]) for i in range(8)))
    def pack(self, dst, X, first=None):
        return flat([cvt(dst + q, first if (q == 0 and first) else X + 2 * q, X + 2 * q + 1) for q in range(4)])

    def gen_G(self, t, pk):
        X, Y, K = t, t + 8, t + 16
        d, a0 = V(t + 18), V(t + 19)
        pre = J("""s_lshl_b32 {t0}, {nt}, 6
s_lshl_b32 {t1}, {w}, 4
s_add_u32 {t0}, {t0}, {t1}
v_add_u32 {d}, {t0}, {l16}
v_cvt_f32_u32 {d}, {d}
v_mul_f32 {d}, {c512}, {d}
v_mul_f32 {k0}, 0x41800000, {d}
v_cos_f32 {k0}, {k0}
v_and_b32 {e0}, 2, {hi}
v_lshlrev_b32 {e0}, 2, {e0}
v_cvt_f32_u32 {e0}, {e0}
v_and_b32 {e1}, 1, {hi}
v_cvt_f32_u32 {a0}, {e1}
v_mul_f32 {a0}, 0x3e800000, {a0}
v_fmac_f32 {a0}, {d}, {e0}
v_add_f32 {k0}, {k0}, {k0}
v_and_b32 {e0}, {e1}, v0
v_mov_b32 {k1}, {k0}
v_lshl_or_b32 {e0}, {e0}, 31, 0.5""", d=d, a0=a0, c512=fhex(1 / 512), k0=V(K), k1=V(K + 1), e0=V(t + 20), e1=V(t + 21))
        kap = [2 * (i & 3) + (i >> 2) for i in range(8)]
        gs = [pre, self.direct(X, [(d, kap[i], a0) for i in range(8)]), self.direct(Y, [(d, 16 + kap[i], a0) for i in range(8)]),
              J("v_cmp_gt_u32 vcc, 2, {hi}") + self.pack(GB + 4, Y) + I("v_cndmask_b32 v%d, v%d, v%d, vcc" % (t + 20, X, t + 20)) + self.pack(GB, X, first=t + 20)]
        for n in range(2, 16):
            a, b = (X, Y) if n % 2 == 0 else (Y, X)
            gs.append(self.cheb(a, b, K, pk) + self.pack(GB + 4 * n, a))
        return gs

    def gen_R(self, part, t, base=None):
        X = t; r = [V(t + 8 + i) for i in range(14)]
        n = dict(q=r[0], k=r[1], ph=r[2], dl=r[3], b0=r[4], b1=r[5], d0=r[6], d1=r[7], o0=r[8], o1=r[9], qt=r[10], h2=r[11], hf=r[12], adr=r[13],
                 c=fhex(1 / 2048), c64=fhex(1 / 64), base=LDS_RPF + 8192 * part if base is None else base)
        g = J("""s_lshl_b32 {t0}, {w}, 11
s_add_u32 {t0}, {t0}, {base}
v_add_u32 {adr}, {t0}, {l16b}
v_cvt_f32_u32 {hf}, {hi}
v_mov_b32 {qt}, 0x3e800000""", **n)
        if part < 2: g += J("s_cmp_eq_u32 {bp}, 0\ns_cselect_b64 {m1}, -1, 0\ns_cselect_b32 {t1}, 32, 64")
        masks = J("s_and_b32 vcc_lo, s96, 0xaaaaaaaa\ns_mov_b32 vcc_hi, vcc_lo\ns_andn2_b64 {m2}, {m1}, vcc")
        if part == 0:
            g += J("""s_and_b32 {t0}, {w}, 1
s_lshl_b32 {t0}, {t0}, 4
v_add_u32 {q}, {t0}, {l16}
v_mul_u32_u24 {k}, {t1}, {q}
v_add_u32 {k}, {bp}, {k}
s_lshr_b32 {t2}, {w}, 1
s_cselect_b64 {m2}, -1, 0
v_cmp_eq_u32 vcc, 0, {k}
v_cvt_f32_u32 {ph}, {t2}
v_mul_f32 {ph}, 0xbe800000, {ph}
v_cvt_f32_u32 {dl}, {k}
v_mul_f32 {dl}, {c}, {dl}
s_and_b64 vcc, vcc, {m2}
v_cndmask_b32 {dl}, {dl}, 0.5, vcc
v_cndmask_b32 {ph}, {ph}, 0, vcc
v_add_f32 {h2}, {hf}, {hf}
v_fma_f32 {b0}, {dl}, {h2}, {ph}
v_add_f32 {b1}, {qt}, {b0}
v_cndmask_b32 {b1}, {b1}, {b0}, {m1}""", **n) + masks + J("""v_cndmask_b32 {d0}, {dl}, 0, vcc
v_cndmask_b32 {b0}, {b0}, {qt}, vcc
v_cndmask_b32 {d1}, {dl}, 0, {m2}
v_cndmask_b32 {b1}, {b1}, {qt}, {m2}""", **n)
            specs = [[((r[6], r[7])[i & 1], 16 * v + 8 * (i // 4) + (i % 4) // 2, (r[4], r[5])[i & 1]) for i in range(8)] for v in range(2)]
        elif part == 1:
            g += masks + J("""s_lshl_b32 {t0}, {w}, 3
v_lshrrev_b32 {q}, 1, {l16}
v_add_u32 {q}, {t0}, {q}
v_cvt_f32_u32 {k}, {q}
v_mul_f32 {k}, {c}, {k}
v_cvt_f32_u32 {ph}, {t1}
v_mul_f32 {dl}, {k}, {ph}
v_cvt_f32_u32 {ph}, {bp}
v_mul_f32 {b0}, {k}, {ph}
v_and_b32 {q}, 1, v0
v_cvt_f32_u32 {ph}, {q}
v_cndmask_b32 {ph}, {ph}, 0, {m1}
v_fmac_f32 {b0}, {qt}, {ph}
v_mul_f32 {ph}, 4.0, {hf}
v_fmac_f32 {b0}, {dl}, {ph}
v_sub_f32 {b1}, {b0}, {qt}
v_cndmask_b32 {d1}, {dl}, 0, {m2}
v_cndmask_b32 {o0}, {b0}, {qt}, {m2}
v_cndmask_b32 {o1}, {b1}, {qt}, {m2}
s_and_b64 {m2}, {m2}, 0xffff
v_cndmask_b32 {d0}, {dl}, 0, vcc
v_cndmask_b32 {b0}, {b0}, {qt}, vcc
v_cndmask_b32 {b1}, {b1}, {qt}, vcc
v_mul_f32 {k}, 0x44800000, {k}
v_cndmask_b32 {k}, {b1}, {k}, {m2}""", **n)
            specs = [[((r[6], r[7])[i & 1], 16 * (i // 4) + i % 4, ((r[4], r[5]), (r[8], r[9]))[i & 1][v]) for i in range(8)] for v in range(2)]
            specs[1][0] = (r[6], 0, r[1])
        else:
            g += J("""s_lshl_b32 {t0}, {w}, 4
v_add_u32 {q}, {t0}, {l16}
v_cvt_f32_u32 {q}, {q}
v_mul_f32 {dl}, {c64}, {q}
v_add_f32 {h2}, {hf}, {hf}
v_mul_f32 {b0}, {dl}, {h2}
v_sub_f32 {b1}, {b0}, {qt}
v_mul_f32 {q}, 0.5, {q}
s_mov_b64 {m2}, 0xffff
v_cndmask_b32 {q}, {b1}, {q}, {m2}""", **n)
            specs = [[(r[3], 16 * v + 8 * (i // 4) + (i % 4) // 2, (r[4], r[5])[i & 1]) for i in range(8)] for v in range(2)]
            specs[0][1] = (r[3], 0, r[0])
        for v in range(2):
            g += self.direct(X, specs[v]) + self.pack(X, X) + I("ds_write_b128 %s, %s offset:%d" % (r[13], V(X, 4), v * 1024), tag="rtab")
        return chunks(g)

    def gen_T(self):
        r = [V(112 + i) for i in range(8)]
        gs = [J("""s_lshr_b32 {t0}, {xn}, 1
s_lshl_b32 {t0}, {t0}, 2
s_add_u32 {t0}, {t0}, {w}
s_lshl_b32 {t0}, {t0}, 5
s_and_b32 {t1}, {xn}, 1
s_add_u32 {t0}, {t0}, {t1}
v_lshl_add_u32 {j}, {l16}, 1, {t0}
v_cvt_f32_u32 {d0}, {j}
v_cmp_eq_u32 vcc, 0, {j}
v_mul_f32 {d0}, {c}, {d0}
v_mov_b32 {b1}, 0x3e800000
s_lshl_b32 {t0}, {wb}, 6
v_lshl_add_u32 {h4}, {hi}, 2, {t0}
v_cvt_f32_u32 {h4}, {h4}
v_cndmask_b32 {d1}, {d0}, 0.5, vcc
v_cndmask_b32 {b1}, {b1}, 0, vcc
v_mul_f32 {b0}, {d0}, {h4}
v_fmac_f32 {b1}, {d1}, {h4}
v_mul_f32 v104, 0x42000000, {d0}
v_mul_f32 v106, 0x42000000, {d1}
v_cos_f32 v104, v104
v_cos_f32 v106, v106
s_lshl_b32 {t0}, {w}, 11
v_add_u32 {adr}, {t0}, {l16b}
v_add_f32 v104, v104, v104
v_add_f32 v106, v106, v106
v_mov_b32 v105, v104
v_mov_b32 v107, v106""", j=r[0], d0=r[2], d1=r[3], b0=r[4], b1=r[5], h4=r[6], adr=r[7], c=fhex(1 / 512))]
        for n in range(8):
            for tt in range(2):
                X, Y = 64 + 16 * tt, 72 + 16 * tt
                a, b = (X, Y) if n % 2 == 0 else (Y, X)
                g = self.direct(a, [(r[2 + tt], 32 * n + 16 * (i // 4) + i % 4, r[4 + tt]) for i in range(8)]) if n < 2 else self.cheb(a, b, 104 + 2 * tt, n < self.o("ntp", 8))
                gs.append(g + self.pack(96 + 4 * tt, a) + I("ds_write_b128 %s, %s offset:%d" % (r[7], V(96 + 4 * tt, 4), n * 8192 + tt * 1024), tag="ttab%d" % (n // 2)))
        sel = J("""s_lshl_b32 {t1}, {t1}, 15
v_lshrrev_b32 v24, 1, {hi}
v_mul_u32_u24 v24, {t1}, v24
v_or_b32 v24, 0x3f80, v24
v_and_b32 v25, 1, v0
v_lshlrev_b32 v25, 4, v25
v_lshlrev_b32 v24, v25, v24
v_lshrrev_b32 v25, 1, {l16}
v_and_b32 v26, 1, {hi}
v_lshlrev_b32 v27, 2, v26
v_xor_b32 v27, v25, v27
v_cmp_eq_u32 vcc, 0, v27
v_cmp_eq_u32 {m1}, 1, v27
v_cmp_eq_u32 {m2}, 2, v27
v_cndmask_b32 v20, 0, v24, vcc
v_cmp_eq_u32 vcc, 3, v27
v_cndmask_b32 v21, 0, v24, {m1}
v_cndmask_b32 v22, 0, v24, {m2}
v_cndmask_b32 v23, 0, v24, vcc
v_xor_b32 v24, v26, v25
v_lshlrev_b32 v24, 4, v24
v_lshl_add_u32 v24, {l16}, 7, v24
v_lshrrev_b32 v25, 1, {hi}
v_lshl_add_u32 v24, v25, 11, v24
v_add_u32 v6, {ring}, v24
v_xor_b32 v7, 32, v6
v_xor_b32 v8, 64, v6
v_xor_b32 v9, 0x60, v6""")
        late = J("""s_lshl_b32 {t0}, {w}, 4
v_add_u32 v24, {t0}, {l16}
v_lshrrev_b32 v18, 1, v24
v_cvt_f32_u32 v18, v18
v_mul_f32 v18, {c}, v18
v_and_b32 v19, 1, v24
v_cvt_f32_u32 v19, v19
v_mul_f32 v19, 0xbe800000, v19
v_cmp_eq_u32 vcc, 1, v24
v_lshlrev_b32 v24, 2, {hi}
v_cvt_f32_u32 v24, v24
s_lshl_b32 {t0}, {w}, 11
s_add_u32 {t0}, {t0}, {stg}
v_cndmask_b32 v18, v18, 0.5, vcc
v_cndmask_b32 v19, v19, 0, vcc
v_fmac_f32 v19, v18, v24
v_add_u32 {pa}, {t0}, {l16b}""", c=fhex(1 / 64), stg=LDS_STG)
        for v in range(2):
            late += self.direct(24, [("v18", 32 * v + 16 * (i // 4) + i % 4, "v19") for i in range(8)]) + self.pack(24, 24) + \
                    J("ds_write_b128 {pa}, v[24:27] offset:{o}", tag="r64f", o=v * 1024)
        return gs, sel, late

    def wd_setup(self):
        g = J("""v_lshrrev_b32 v24, 3, v0
v_bfe_u32 v25, v0, 1, 2
v_xor_b32 v25, v25, {hi}
v_lshlrev_b32 v25, 5, v25
v_lshl_add_u32 v25, v24, 10, v25
v_and_b32 v24, 1, v0
v_lshl_add_u32 {wd}, v24, 4, v25
v_add_u32 v29, 7168, {wd}
v_add_u32 v30, 7168, v29
v_add_u32 v31, 7168, v30
s_mul_i32 {wds}, {w}, {c}
s_lshl_b32 {t0}, {nt}, 7
s_add_u32 {wds}, {wds}, {t0}
s_add_u32 {wde}, {wds}, {c}
v_bfe_u32 v24, v0, 2, 3
v_lshrrev_b32 v25, 5, v0
v_lshlrev_b32 v25, 10, v25
v_lshl_add_u32 v25, v24, 7, v25
v_and_b32 v26, 3, v0
v_lshl_add_u32 v25, v26, 3, v25
v_add_u32 v25, {ring}, v25
v_lshrrev_b32 v24, 1, v24
v_xor_b32 v24, {w}, v24
v_lshl_add_u32 v10, v24, 5, v25
v_xor_b32 v11, 32, v10
v_xor_b32 v12, 64, v10
v_xor_b32 v13, 0x60, v10
s_mul_i32 {rot}, {nt}, {ra}""", c=448 * 1024, ra=self.o("rnt", 0))
        if self.pair:
            g = [x for x in g if x.cls != "salu"]
            return g + J("s_and_b32 {t0}, {bp}, {m}\ns_cselect_b32 {t0}, 28, 0\ns_mul_i32 {rot}, {w}, 7\ns_add_u32 {rot}, {rot}, {t0}\ns_lshl_b32 {wds}, {rot}, 8\ns_add_u32 {wds}, {wds}, {nt}\ns_lshl_b32 {wds}, {wds}, 7\ns_and_b32 {wde}, {rot}, 1\ns_lshl_b32 {wde}, {wde}, 15", m=self.pair)
        if self.o("rl3", 0) == 1: g += J("s_mul_i32 {t0}, {l3}, 7\ns_add_u32 {t0}, {t0}, 1\ns_lshr_b32 {t0}, {t0}, 1\ns_add_u32 {rot}, {rot}, {t0}")
        if self.o("rl3", 0) == 2: g += J("s_and_b32 {t0}, {l3}, 1\ns_mul_i32 {t0}, {t0}, 7\ns_add_u32 {rot}, {rot}, {t0}")
        if self.o("xo", 0) >= 0:
            return g[:-1] + J(("s_add_u32 {rot}, {nt}, {l3}" if self.o("xnt", 0) else "s_mov_b32 {rot}, {l3}") + "\ns_and_b32 {rot}, {rot}, {m}\ns_lshl_b32 {wde}, {rot}, 15", m=self.o("xo", 0))
        g += J("s_sub_u32 {t0}, {rot}, 14\ns_cselect_b32 {rot}, {rot}, {t0}\ns_lshl_b32 {t0}, {rot}, 15\ns_add_u32 {wdo}, {wds}, {t0}")
        return g
    def loc(self, u):
        if self.pair: return (1, u - 4 if u >= 4 else None, u % 4)
        a, n = (8, self.o("nA", 2)) if self.ffn else (4, 4)
        if a <= u < a + n: return (0, None, (u - a + 4 - n) % 4)
        r1 = [v for v in range(14) if not a <= v < a + n]; k = r1.index(u)
        return (1, r1[k - 4] if k >= 4 else None, k % 4)
    def D(self, u, pre=None):
        reg, prev, slot = (self.loc(u) + (u % 4,))[:3]; gs = []
        if self.ef and u < 6: gs += [J("s_xor_b32 {wdo}, {wde}, {o}", o=(2 * (u % 3) + u // 3) << 15), J("s_add_u32 {wdo}, {wdo}, {wds}")]
        elif self.pair: gs.append(J("s_add_u32 {wdo}, {wds}, {o}", o=u << 15))
        elif self.o("xo", 0) >= 0:
            if u == 12: gs.append(J("s_and_b32 {wde}, {wde}, 0x8000"))
            gs += [J("s_xor_b32 {wdo}, {wde}, {o}", o=u << 15), J("s_add_u32 {wdo}, {wdo}, {wds}")]
        elif u: gs += [J("s_add_u32 {wdo}, {wdo}, 0x8000"), J("s_cmp_ge_u32 {wdo}, {wde}\ns_cselect_b32 {wdo}, {wds}, {wdo}")]
        gs.append(J("s_add_u32 m0, {ring}, {o}", o=(slot * 4096 - (0 if reg else 65536)) & 0xFFFFFFFF))
        if prev is not None: gs.append(I("@must t%d" % prev))
        if pre: gs.append(pre)
        gs += [J("buffer_load_dwordx4 v{r}, {SWD}, {wdo} offen offset:{o} lds", tag="d%d" % u, r=vWD[k], o=1024 * k) for k in range(4)]
        return gs
    def wd_reg(self, u, dl): return (160 + 16 * u if u < 2 else 16 * (u - 2) if u < 12 else 16 * u) + 4 * dl
    def T(self, u):
        gs = []
        if self.loc(u)[0] != (self.loc(u - 1)[0] if u else 1): gs += single(I("\n".join("v_xor_b32 v%d, 0x10000, v%d" % (r, r) for r in vDT)))
        gs.append(I("@must d%d" % u))
        for dl in range(4):
            for j4 in range(2):
                gs.append(I("ds_read_b64_tr_b16 %s, v%d offset:%d" % (A(self.wd_reg(u, dl) + 2 * j4, 2), vDT[dl], (self.loc(u) + (u % 4,))[2] * 4096 + j4 * 2048), tag="t%d" % u))
        return gs
    def DD(self, a, b): return [g for u in range(a, b) for g in self.D(u)]
    def TT(self, a, b): return [g for u in range(a, b) for g in self.T(u)]

    def g_loads(self):
        return single(J("""s_lshl_b32 {t0}, {nt}, 2
s_add_u32 {t0}, {t0}, {w}
s_lshl_b32 {t0}, {t0}, 1
v_lshrrev_b32 v25, 5, v0
v_add_u32 v236, {t0}, v25
v_and_b32 v25, 3, v236
v_lshrrev_b32 v26, 2, v236
v_lshl_add_u32 v25, v25, 4, v26
v_and_b32 v233, 0x1f0, {l16b}
v_lshl_add_u32 v232, v25, 15, v233
v_lshl_add_u32 v232, {bp}, 10, v232
buffer_load_dwordx4 v[216:219], v232, {SX}, 0 offen offset:2048
buffer_load_dwordx4 v[220:223], v232, {SX}, 0 offen offset:2560
buffer_load_dwordx4 v[224:227], v233, {SGW}, 0 offen
buffer_load_dwordx4 v[228:231], v233, {SGW}, 0 offen offset:512""", tag="gld"))
    def g_calc(self):
        g = I("@wait gld")
        g += I("\n".join("v_dot2_f32_bf16 v%d, v%d, v%d, 0" % (232 + i, 216 + i, 224 + i) for i in range(4)))
        g += I("\n".join("v_dot2_f32_bf16 v%d, v%d, v%d, v%d" % (232 + i, 220 + i, 228 + i, 232 + i) for i in range(4)))
        g += I("v_lshlrev_b32 v236, 2, v236\nv_add_f32 v232, v232, v233\nv_add_f32 v234, v234, v235\nv_add_f32 v232, v232, v234")
        for sh in (1, 2, 4, 8):
            g += I("v_add_f32_dpp v232, v232, v232 row_shr:%d row_mask:0xf bank_mask:0xf bound_ctrl:1" % sh)
        g += I("v_add_f32_dpp v232, v232, v232 row_bcast:15 row_mask:0xa bank_mask:0xf")
        g += I("v_mul_f32 v232, 0xbfb8aa3b, v232\nv_exp_f32 v232, v232\nv_add_f32 v232, 1.0, v232\nv_rcp_f32 v232, v232")
        return single(g)
    def g_store(self):
        return J("s_lshl_b32 {t0}, {bp}, 8\ns_add_u32 {t0}, {t0}, {g}\ns_mov_b32 exec_lo, 0x80000000\ns_mov_b32 exec_hi, 0x80000000", g=WS_G) + \
               J("buffer_store_dword v232, v236, {SWS}, {t0} offen sc1", tag="gst") + I("s_mov_b64 exec, -1")
    def c_loads(self, acc=False):
        return chunks(J(self.creg(acc, """s_cmp_eq_u32 {bp}, 0
s_cselect_b32 {t1}, 32, 64
s_cselect_b64 {mask}, 0xffff, 0
s_and_b32 {t0}, {w}, 1
s_lshl_b32 {t0}, {t0}, 4
v_lshrrev_b32 v27, 2, v0
v_add_u32 v27, {t0}, v27
v_mul_u32_u24 v27, {t1}, v27
v_add_u32 v27, {bp}, v27
v_cmp_eq_u32 vcc, 0, v27
v_sub_u32 v28, 0x800, v27
v_mov_b32 v26, 0x400
s_cmp_lt_u32 {w}, 2
s_cselect_b64 {m1}, -1, 0
v_cndmask_b32 v28, v28, v26, vcc
v_cndmask_b32 v27, v28, v27, {m1}
v_mul_u32_u24 v27, 514, v27
v_and_b32 v28, 48, {l16b}
s_lshl_b32 {t2}, {jb}, 6
s_sub_u32 {t2}, {t2}, {sh}
v_add3_u32 v20, v28, v27, {t2}""")))
    def c_fetch(self, arr):
        l = self.lab("ev"); srd = (SWR, SWI)[arr]
        g = [J("s_cmp_eq_u32 {sh}, 0") + J("s_cbranch_scc1 {l}\nbuffer_load_dword v{d}, v20, {srd}, 0 offen offset:16\n{l}:", raw=True, l=l, d=40 + arr, srd=srd),
             J("buffer_load_dwordx4 {r}, v20, {srd}, 0 offen", tag="cld", r=V(32 + 4 * arr, 4), srd=srd)]
        if not self.ffn: g.append(J("buffer_load_ushort v{d}, v27, {srd}, 0 offen offset:512", tag="cld", d=42 + arr, srd=srd))
        return g
    def creg(self, acc, t): return t
    def c_stage(self):
        g = J("""s_mul_i32 {t0}, {w}, 1280
s_add_u32 {t0}, {t0}, {stg}
v_lshrrev_b32 v27, 2, v0
v_lshl_add_u32 v28, v27, 4, {l16b}
v_add_u32 v28, {t0}, v28
s_mov_b32 {t2}, 0x05040100
s_mov_b32 {t3}, 0x07060302
s_mov_b32 s96, 0x11111111
s_mov_b32 s97, 0x11111111
@wait cld""", stg=self.cstg)
        for arr in range(2):
            s_, d_ = 32 + 4 * arr, 192 + 4 * arr
            g += flat([J("v_alignbyte_b32 v{a}, v{b}, v{a}, {sh}", a=s_ + i, b=s_ + i + 1 if i < 3 else 40 + arr) for i in range(4)])
            g += J("v_perm_b32 v{d0}, v{s1}, v{s0}, {t2}\nv_perm_b32 v{d1}, v{s3}, v{s2}, {t2}\nv_perm_b32 v{d2}, v{s1}, v{s0}, {t3}\nv_perm_b32 v{d3}, v{s3}, v{s2}, {t3}",
                   d0=d_, d1=d_ + 1, d2=d_ + 2, d3=d_ + 3, s0=s_, s1=s_ + 1, s2=s_ + 2, s3=s_ + 3)
            g += I("ds_write_b128 v28, %s offset:%d" % (V(d_, 4), arr * 5120), tag="cst")
            if not self.ffn: g += J("v_and_or_b32 v{d}, v{d}, {hi16}, v{q}", d=d_, q=42 + arr)
        if self.ffn: return single([x for x in g if "0x11111111" not in x.text])
        return single(g) + [J("s_mov_b64 exec, {m1}") + I("ds_write_b64 v28, v[192:193] offset:64\nds_write_b64 v28, v[196:197] offset:5184", tag="cst") + I("s_mov_b64 exec, -1")]
    def c_calc(self):
        g = J("""s_or_b32 {t1}, {w}, {jb}
s_cselect_b32 {t1}, 4, 2
s_lshl_b32 {t0}, {w}, 4
v_and_b32 v26, 3, v0
v_cmp_eq_u32 vcc, {t1}, v26
v_and_b32 v28, 1, v0
v_lshl_add_u32 v28, v28, 3, {t0}
v_lshrrev_b32 v27, 2, v0
v_mul_u32_u24 v27, 80, v27
v_cndmask_b32 v28, v28, 64, vcc
s_mov_b32 {t0}, {stg}
v_add3_u32 v27, v27, v28, {t0}""", stg=self.cstg)
        for th in range(2):
            for arr in range(2):
                for side in range(2):
                    g += I("ds_read_b64_tr_b16 %s, v27 offset:%d" % (V(192 + ((th * 2 + arr) * 2 + side) * 2, 2), arr * 5120 + side * 2560 + th * 1280), tag="crd")
        q = I("@wait crd")
        for th in range(2):
            for r in range(4):
                e = th * 4 + r
                t = 208 + (e % 2) * 4
                for n, (arr, side) in enumerate([(0, 0), (0, 1), (1, 0), (1, 1)]):
                    src = 192 + ((th * 2 + arr) * 2 + side) * 2 + r // 2
                    q += J("v_and_b32 v{d}, {hi16}, v{s}" if r & 1 else "v_lshlrev_b32 v{d}, 16, v{s}", d=t + n, s=src)
                a_, b_, c_, d_ = CO + e, CO + 8 + e, CO + 16 + e, CO + 24 + e
                q += I("v_add_f32 v%d, v%d, v%d\nv_add_f32 v%d, v%d, v%d\nv_sub_f32 v%d, v%d, v%d\nv_sub_f32 v%d, v%d, v%d" % (
                    a_, t, t + 1, b_, t + 2, t + 3, c_, t + 3, t + 2, d_, t, t + 1))
                if e == 0:
                    q += J("""v_cndmask_b32 v{a2}, v{a}, v{t1_}, {mask}
v_cndmask_b32 v{b2}, v{b}, v{t3_}, {mask}
v_cndmask_b32 v{a}, v{a}, v{t0_}, {mask}
v_cndmask_b32 v{b}, v{b}, v{t2_}, {mask}
v_cndmask_b32 v{c}, v{c}, 0, {mask}
v_cndmask_b32 v{d}, v{d}, 0, {mask}""", a2=CA2, b2=CB2, a=a_, b=b_, c=c_, d=d_, t0_=t, t1_=t + 1, t2_=t + 2, t3_=t + 3)
        return chunks(g), single(q)

    GATE_LD = "buffer_load_dword v16, v17, %s, 0 offen sc1" % SDBG
    POLL_LD = "buffer_load_dword v16, v17, %s, s82 offen sc1" % SWS
    def gate_ld(self):
        return single(J("v_min_u32 {pa}, {n}, v0\nv_lshlrev_b32 {pa}, 2, {pa}", n=NCLR - 1) + I(self.GATE_LD, tag="poll"))
    def x1_addr(self):
        return single(J("""s_lshr_b32 {t0}, {jb}, 2
s_lshl_b32 {t0}, {t0}, 8
s_lshl_b32 {t1}, {w}, 15
s_add_u32 {t0}, {t0}, {t1}
s_add_u32 {wo1}, {t0}, {fl}
v_lshrrev_b32 {pa}, 3, v0
v_lshlrev_b32 {pa}, 12, {pa}
v_bfe_u32 v28, v0, 2, 1
v_lshl_add_u32 {pa}, v28, 7, {pa}""", fl=WS_FLAG + 28 * 128))
    def rp_reads(self):
        return [J("v_add_u32 v19, {a}, {l16b}", a=LDS_RPF)] + \
               [I("ds_read_b128 %s, v19 offset:%d" % (A((224 if f < 8 else 160) + 4 * f, 4), f * 1024), tag="rp") for f in range(16)]
    def flag_addr(self):
        return J("s_lshl_b32 {wo0}, {b12}, 5\ns_add_u32 {wo0}, {wo0}, {ni}\ns_lshl_b32 {wo0}, {wo0}, 7\ns_add_u32 {wo0}, {wo0}, {fl}", fl=WS_FLAG)
    def set_flag(self):
        return I("v_mov_b32 v24, 1\n@wait pub\ns_mov_b64 exec, 1") + J("buffer_store_dword v24, v0, {SWS}, {wo0} offen sc1") + I("s_mov_b64 exec, -1")

    def prologue(self):
        p = []
        if self.prof: p += I("%s s[100:101]" % self.clk(), raw=True)
        p += J("""s_load_dwordx16 s[48:63], s[0:1], 0
s_cmp_ge_u32 s2, 256
s_cbranch_scc1 L_end
s_load_dwordx4 s[64:67], s[0:1], 64
s_load_dwordx2 s[68:69], s[0:1], 80
s_getpc_b64 {m1}
L_pc:
v_lshlrev_b32 v24, 3, v0
v_readfirstlane_b32 {w}, v0
s_lshr_b32 {loc}, s2, 3
v_lshl_add_u32 v24, {loc}, 11, v24
v_min_u32 v24, L_end-L_pc, v24
global_load_dword v31, v24, {m1}
v_and_b32 v0, 63, v0
v_and_b32 {l16}, 15, v0
v_lshrrev_b32 {hi}, 4, v0
s_lshr_b32 {w}, {w}, 6
s_and_b32 {xcd}, s2, 7
s_and_b32 {l3}, {loc}, 3
s_lshr_b32 {nt}, {loc}, 2
s_lshr_b32 {xn}, {xcd}, 1
s_lshl_b32 {bp}, {xcd}, 2
s_add_u32 {bp}, {bp}, {l3}
s_and_b32 {b12}, {bp}, 7
s_lshl_b32 {b12}, {b12}, 2
s_add_u32 {b12}, {b12}, {w}
s_lshl_b32 s76, {b12}, 10
v_lshrrev_b32 v25, 3, v0
v_and_b32 v24, 7, v0
v_xor_b32 v24, v24, {hi}
v_lshlrev_b32 v24, 4, v24
v_lshl_add_u32 {x}, v25, 15, v24
v_xor_b32 v18, 0x40040, {x}
v_subrev_u32 v18, 0x400, v18
s_lshl_b32 {ring}, {w}, 14
s_add_u32 {ring}, {ring}, 0x10000""")
        if "probe" in self.kw:
            k = self.kw["probe"]
            p += I("s_waitcnt lgkmcnt(0) vmcnt(0)\ns_mov_b64 s[44:45], s[%d:%d]\ns_mov_b32 s46, 0x100000\ns_mov_b32 s47, 0x20000" % (48 + 2 * k, 49 + 2 * k))
            p += J("s_lshl_b32 s3, s2, 2\ns_add_u32 s3, s3, {w}\ns_lshl_b32 s3, s3, 7\nv_mov_b32 v26, 0\ns_memrealtime s[96:97]\ns_waitcnt lgkmcnt(0)")
            if "pbw" in self.kw:
                p += I("s_mov_b32 s46, 0x10000000\ns_lshl_b32 s3, s3, 7\ns_add_u32 s3, s3, %d\nv_lshlrev_b32 v26, 4, v0" % (self.kw["pbw"] << 20))
                for i in range(16):
                    op = "buffer_store_dwordx4 v[128:131], v26, s[44:47], s3 offen sc1" if self.o("pst", 0) else "buffer_load_dwordx4 v[%d:%d], v26, s[44:47], s3 offen" % (128 + 4 * i, 131 + 4 * i)
                    p += I(op + "\ns_add_u32 s3, s3, 1024")
                p += I("s_waitcnt vmcnt(0)")
            else:
                for i in range(8): p += I("buffer_load_dword v27, v26, s[44:47], s3 offen\ns_waitcnt vmcnt(0)\ns_add_u32 s3, s3, 0x20000")
            p += I("s_memrealtime s[98:99]\ns_waitcnt lgkmcnt(0)\ns_sub_u32 s98, s98, s96\ns_add_u32 s100, s100, s98")
        p += self.srd_const(SX, 2097152 + 2048)
        p += J("s_cmp_eq_u32 {nt}, 7\ns_cbranch_scc1 L_dft")
        return p
    def common2(self):
        p = J("v_lshlrev_b32 {l16b}, 4, v0\ns_lshl_b32 {lw}, {loc}, 2\ns_add_u32 {lw}, {lw}, {w}\ns_mul_i32 s3, {xcd}, 112\ns_add_u32 {lw}, {lw}, s3\ns_lshl_b32 {lw}, {lw}, 11\ns_mov_b32 {hi16}, 0xffff0000\ns_add_u32 {jb}, {nt}, 1\ns_and_b32 {jb}, {jb}, 7\ns_and_b32 {sh}, {bp}, 1\ns_lshl_b32 {sh}, {sh}, 1")
        for nm, lo, sz in ((SWS, 68, 0x10000000), (SDBG, 66, 256), (SWD, 60, 1792 * 1024), (SOUT, 64, 2097152), (SWR, 50, 2048 * 514), (SWI, 52, 2048 * 514), (SGW, 62, 1024)):
            p += self.srd(nm, lo, sz) + self.srd_const(nm, sz)
        return p

    def p12f(self):
        self.ffn = True; self.cstg = LDS_RPF
        def kadv(du):
            kr = self.o("kr", 2)
            if kr == 4: return single(J("s_xor_b32 {k}, {k}, 1" if du & 1 else "s_xor_b32 {k}, {k}, 1\ns_add_u32 {k}, {k}, 2\ns_and_b32 {k}, {k}, 7"))
            if kr == 5: return single(J("s_xor_b32 {k}, {k}, %d" % (du ^ (du - 1))))
            return single(J("s_add_u32 {k}, {k}, 1\ns_and_b32 {k}, {k}, 7"))
        def wl(du):
            gs = []
            if du == 1: gs += kadv(du)
            gs += single(J("s_mul_i32 {wo0}, {k}, {c}\ns_add_u32 {wo0}, {wo0}, {wb}\ns_add_u32 {wo1}, {wo0}, {c2}", c=64 * 3584, c2=32 * 3584 - 2048))
            gs.append(J("s_add_u32 m0, {lw4}, {o}", o=(du % 4) * 16384))
            for h in range(2):
                for mat in range(2):
                    gs.append(J("buffer_load_dwordx4 {vw}, {srd}, {so} offen offset:{o} lds", tag="w%d" % du, srd=(SWG, SWU)[mat], so=NM["wo%d" % h], o=(2 * h + mat) * 1024))
            return gs
        def xl(du):
            gs = []
            if du >= 2: gs += kadv(du)
            gs += single(J("v_lshl_add_u32 {xr}, {k}, 7, {x}\nv_lshl_add_u32 {xr2}, {k}, 7, v18"))
            for m in range(4):
                if m % 2 == 0: gs.append(J("s_add_u32 m0, {ring}, {o}", o=(du % 2) * 8192 + m * 2048))
                for e in range(2):
                    g = J("buffer_load_dwordx4 {r}, {SX}, s{so} offen offset:{o} lds", tag="x%d" % du, r=NM[("xr", "xr2")[e]], so=76 + m, o=((m & 1) * 2 + e) * 1024)
                    if du >= 2 and m == 0 and e == 0: g = I("@need xf%d" % (du - 2)) + g
                    gs.append(g)
            return gs
        def xf(du):
            return [I("@wait x%d" % du)] + [I("ds_read_b128 %s, v%d offset:%d" % (A((du % 4) * 32 + h * 16 + m * 4, 4), vXA[h], (du % 2) * 8192 + m * 2048), tag="xf%d" % du)
                                           for h in range(2) for m in range(4)]
        p = J("""s_and_b32 {t0}, {nt}, {mp}
s_lshl_b32 {t0}, {t0}, 19
s_add_u32 s76, s76, {t0}
s_xor_b32 s77, s76, 0x80000
s_xor_b32 s79, s76, 0x180000
s_xor_b32 s78, s76, 0x100000
s_add_u32 s76, s76, 0x800
s_add_u32 s78, s78, 0x800
s_lshl_b32 {k}, {xcd}, 2
s_add_u32 {k}, {k}, {xcd}
s_and_b32 {k}, {k}, {km}
s_mul_i32 {ni}, {xn}, 7
s_add_u32 {ni}, {ni}, {nt}
s_mul_i32 {wb}, {w}, {c}
s_lshl_b32 {t0}, {ni}, 7
s_add_u32 {wb}, {wb}, {t0}
v_mul_u32_u24 v24, 3584, v25
s_and_b32 {t0}, {w}, 1
s_lshl_b32 {t0}, {t0}, 1
v_and_or_b32 v25, {hi}, 1, {t0}
v_bfe_u32 v26, v0, 1, 2
v_xor_b32 v25, v25, v26
v_lshl_add_u32 v24, v25, 5, v24
v_and_b32 v25, 1, v0
v_lshl_add_u32 {vw}, v25, 4, v24
s_lshl_b32 {lw4}, {w}, 12""", c=8 * 3584, mp=self.o("mp", 3), km=self.o("km", 6))
        kr = self.o("kr", 2)
        if kr == 4: p += J("s_lshr_b32 {t0}, {nt}, {sh}\ns_xor_b32 {t0}, {l3}, {t0}\ns_and_b32 {t0}, {t0}, 1\ns_add_u32 {k}, {k}, {t0}", sh=self.o("ksh", 2))
        if kr == 5: p += J("s_add_u32 {t0}, {l3}, {nt}\ns_and_b32 {t0}, {t0}, 3\ns_add_u32 {k}, {xcd}, {xn}\ns_and_b32 {k}, {k}, 1\ns_lshl2_add_u32 {k}, {k}, {t0}")
        if kr == 1: p += J("s_lshl_b32 {k}, {l3}, 1\ns_add_u32 {k}, {k}, {nt}\ns_and_b32 {k}, {k}, 7")
        if kr == 2: p += J("s_xor_b32 {t0}, {l3}, {nt}\ns_and_b32 {t0}, {t0}, 1\ns_lshl_b32 {t0}, {t0}, 2\ns_lshl_b32 {k}, {xcd}, 1\ns_add_u32 {k}, {k}, {xn}\ns_and_b32 {k}, {k}, 3\ns_add_u32 {k}, {k}, {t0}")
        if kr == 3: p += J("s_add_u32 {t0}, {l3}, {nt}\ns_and_b32 {t0}, {t0}, 3\ns_lshl_b32 {t0}, {t0}, 1\ns_add_u32 {k}, {xcd}, {xn}\ns_and_b32 {k}, {k}, 1\ns_add_u32 {k}, {k}, {t0}")
        p += self.srd_const(SWG, 512 * 3584) + self.srd_const(SWU, 512 * 3584 + 1024)
        w0 = wl(0); x0 = xl(0)
        p += flat(w0[:4] + x0[:2]) + self.srd(SWG, 56, 0) + self.srd(SWU, 58, 0, back=1024) + self.srd(SX, 48, 0, back=2048)
        p += flat(w0[4:]) + flat(x0[2:])
        p += self.common2()
        p += self.stamp(0)
        l = self.lab("noclr")
        p += J("s_sub_u32 s3, s2, 128\ns_cmp_lt_u32 s3, {n}\ns_cselect_b32 {clr}, {w}, 4", n=NCLR) + I("\n".join("v_accvgpr_write_b32 a%d, 0" % (180 + i) for i in range(4)))
        clear = J("s_cmp_eq_u32 {clr}, 4") + J("""s_cbranch_scc1 {l}
s_lshl2_add_u32 s3, s2, {w}
s_lshl_b32 s3, s3, 10
s_add_u32 s3, s3, {fl}
buffer_store_dwordx4 a[180:183], {l16b}, {SWS}, s3 offen sc1
{l}:""", raw=True, l=l, fl=WS_FLAG - 128 * 4096)
        st = [J("""v_lshrrev_b32 v24, 1, {l16}
v_xor_b32 v24, v24, {hi}
v_lshlrev_b32 v24, 4, v24
v_lshl_add_u32 v24, {l16}, 7, v24
v_add_u32 v22, {ring}, v24
v_xor_b32 v23, 64, v22
v_lshlrev_b32 v24, 12, {hi}
v_bfe_u32 v25, v0, 2, 2
v_lshl_add_u32 v24, v25, 7, v24
v_and_b32 v25, 3, v0
v_lshl_add_u32 v24, v25, 3, v24
v_bfe_u32 v25, v0, 3, 2
v_lshl_add_u32 v6, v25, 5, v24
v_xor_b32 v7, 32, v6
v_xor_b32 v8, 64, v6
v_xor_b32 v9, 0x60, v6""")]
        cl, gl = self.c_loads() + self.c_fetch(0) + self.c_fetch(1), self.g_loads()
        cpos = self.o("cpos", 2)
        gwt = [J("buffer_load_dword a171, {l16b}, {SGW}, 0 offen")]
        rip = self.rip = self.o("rip", 1) and self.o("x1late", 0)
        st = single(st) + cl[:-4] + self.gen_R(0, 128) + ([] if rip else self.gen_R(1, 160)) + (self.gen_R(2, 192) if self.o("r2p", 0) == 1 else [])
        l1 = wl(1) + xl(1); n1 = self.o("n1", 15) - (self.o("kr", 2) >= 4)
        p += flat(weave(st, l1[:n1], self.o("l1pos", 60 if rip else 130), len(st)))
        p += I("@wait w0 x0\ns_barrier")
        p += self.stamp(1)
        units = {0: "E0 L0 E1 L1 E2 L2 E3 E4 L3 E5 E6 L4 E7 L5 L6 L7", 1: "E0 L0 E1 L1 E2 L2 E3 L3 E4 E5 L4 E6 E7 L5 L6 L7",
                 2: "E0 L0 E1 L1 E2 L2 E3 L3 E4 E5 L4 E6 L5 E7 L6 L7", 3: "E0 L0 E1 L1 E2 L2 E3 L3 E4 L4 E5 L5 E6 E7 L6 L7"}[self.o("us", 1)].split()
        seq = [(2 * int(u[1]) + h, tau + (4 if u[0] == "L" else 0)) for u in units for h in range(2) for tau in range(4)]
        U = dict((u, 32 * i) for i, u in enumerate(units))
        LA = 5
        def rd(k):
            n, tau = seq[k]
            off = ((n // 2) % 4) * 16384 + ((n & 1) * 2 + (tau & 1)) * 1024
            return [I("ds_read_b64_tr_b16 %s, v%d offset:%d" % (A(128 + 4 * (k % 8) + 2 * j4, 2), vWT[tau // 2], off + 512 * j4), tag="f%d" % k) for j4 in range(2)]
        x0 = xf(0)
        p += flat(rd(0) + x0[:5] + rd(1) + rd(2) + x0[5:] + rd(3) + rd(4))
        mf = []
        for k, (n, tau) in enumerate(seq):
            for m in range(4):
                acc = V(128 + (tau * 4 + m) * 4, 4)
                mf.append(I("%s %s, %s, %s, %s" % (MF, acc, A(128 + 4 * (k % 8), 4), A(((n // 2) % 4) * 32 + (n & 1) * 16 + m * 4, 4), acc if n else "0")))
        G = Gaps(mf)
        for k in range(128):
            if k + LA < 128:
                r = rd(k + LA); G.put(4 * k, r[0]); G.put(4 * k + 2, r[1])
            if k % 2 == 1 and k + 1 < 128: G.put(4 * k + 3, I("@wait f%d" % (k + 2)))
        bar = {}
        for du in range(1, 8):
            bar[du] = U["E%d" % du] - 4 * LA - 1
            G.put(bar[du], I("@wait w%d rtab\ns_barrier" % du))
        lead = G.stream(l1[n1:], 0, 12, spread=False) if l1[n1:] else 0
        aa = [[0, 52, 104, 156, 208, 260], [0, 60, 118, 172, 224, 276], [0, 64, 124, 180, 234, 288], [0, 64, 128, 192, 250, 306], [0, 64, 128, 192, 256, 320], [0, 46, 110, 172, 230, 286], [0, 46, 104, 164, 222, 278]][self.o("aa", 2)]
        aa = dict(zip(range(2, 10), aa + [aa[-1] + 54, aa[-1] + 108]))
        xfe = {}; xfs = {}
        for du in range(1, 8):
            e = min(aa[du + 2], U["E%d" % du]) - 2
            assert du < 4 or e - 18 >= U["L%d" % (du - 4)] + 32
            xfe[du] = G.stream(xf(du), e - 18, e); xfs[du] = e - 18
        last = lead
        for du in range(2, 8):
            a0 = max(aa[du], last + 1)
            last = G.stream(([clear] if du == self.o("clrdu", 2) else []) + xl(du), a0, a0 + (self.o("xs", 16) if du <= self.o("xsd", 3) else 36))
            w0_ = last + 1
            if du >= 4: w0_ = max(w0_, min(b for b in bar.values() if b >= U["L%d" % (du - 4)] + 32) + 1)
            tr_ = {self.o("tdu", 3): [0]}.get(du, [])
            cd = self.o("cdu", 2)
            ex = [] if cpos != 2 else cl[-4:-2] + gwt if du == cd else cl[-2:] if du == cd + 1 else []
            if cpos == 3 and du == cd: ex = cl[-4:] + gwt
            last = G.stream(wl(du) + ex + [g for r in tr_ for g in self.touch(r)] + (self.touch3() if du == self.o("t3du", 6) else []) + (self.retouch() if du == 7 else []), w0_, w0_ + (self.o("wsp", 10) if du <= self.o("xsd", 3) else 16) + 4 * len(tr_))
            assert last < bar[du] - 4, (du, last, bar[du])
        vend = last
        l = self.lab("noann")
        ann = J("s_cmp_lg_u32 {clr}, 0") + J("""s_cbranch_scc1 {l}
v_mov_b32 v27, 1
s_lshl_b32 s3, s2, 2
s_sub_u32 s3, s3, 512
s_mov_b64 exec, 1
buffer_store_dword v27, v0, {SDBG}, s3 offen sc1
s_mov_b64 exec, -1
{l}:""", raw=True, l=l)
        G.put(bar[self.o("clrdu", 2)] + 2, ann)
        G.stream(self.rp_reads()[:9 if rip else 17], 130, 230)
        e0 = U["E7"] + 32
        e = G.stream(self.gate_ld() + (cl[-4:] if cpos == 0 else []), vend + 1, vend + 12)
        e1 = vend
        d0 = max(e, e1, xfe[6] + 4, vend + self.o("d0gap", 10))
        e = G.stream(self.D(0, I("@need xf6")) + self.D(1), d0, d0 + 32)
        d2 = max(e + 1, xfe[7] + 4)
        e = G.stream(self.D(2, I("@need xf7")) + self.D(3), d2, d2 + 32)
        G.stream(single(J("s_and_b32 {t0}, {nt}, {mp}\ns_lshl2_add_u32 {t2}, {b12}, {t0}\ns_lshl_b32 {t2}, {t2}, 5\ns_add_u32 {t2}, {t2}, {ni}\ns_lshl_b32 {t2}, {t2}, 11", mp=self.o("mp", 3)) + self.flag_addr()) + self.setupA() +
                 [I("@wait poll") + self.spin(self.GATE_LD)] + self.x1_addr(), e1 + 1, min(e0, self.o("xp", 495) + 30))
        late1 = self.o("x1late", 0)
        if not late1:
            G.put(self.o("xp", 495), I(self.POLL_LD, tag="poll"))
            G.stream(single(self.x1_pre()[:-1]), 490, 510)
        nin = self.o("nin", 1)
        t0_ = max(e + 1, U["L4"] + 32 if nin > 2 else 0, d0 + self.o("t0gap", 70))
        t0_ = min(t0_, 470)
        G.stream(self.TT(0, nin) + self.DD(4, 4 + nin), t0_, 506)
        gs_ = 18 - self.o("gsplit", 5)
        bulk = self.o("bulk", 0)
        if bulk:
            gs_ = 18; gp = self.gen_G(42, True); b1 = self.o("b1", 6); bo = self.o("bo", 2)
            stall = lambda du: min(bar[du], xfs[du]) - bo
            G.put(stall(1), flat(gp[:b1])); G.put(stall(2), flat(gp[b1:]))
            if self.o("r2p", 0) == 2: G.put(stall(3), flat(self.gen_R(2, 42)))
            G.stream(chunks(self.wd_setup()), 200, vend)
        else: G.stream(chunks(self.wd_setup()) + chunks(self.gen_G(42, False)[:gs_]), 4, e0, spread=False)
        def epi(u, m, pk):
            g0, u0, g1_, u1 = [128 + ((4 * u + k) * 4 + m) * 4 for k in range(4)]
            g = []
            for gg in (g0, g1_): g += I("\n".join("v_max_f32 v%d, 0, v%d" % (gg + r, gg + r) for r in range(4)))
            for gg, uu in ((g0, u0), (g1_, u1)):
                if pk: g += I("v_pk_mul_f32 %s, %s, %s\nv_pk_mul_f32 %s, %s, %s" % (V(gg, 2), V(gg, 2), V(uu, 2), V(gg + 2, 2), V(gg + 2, 2), V(uu + 2, 2)))
                else: g += I("\n".join("v_mul_f32 v%d, v%d, v%d" % (gg + r, gg + r, uu + r) for r in range(4)))
            g += cvt(u0, g0, g0 + 1) + cvt(u0 + 1, g0 + 2, g0 + 3) + cvt(u0 + 2, g1_, g1_ + 1) + cvt(u0 + 3, g1_ + 2, g1_ + 3)
            return J("s_xor_b32 {t3}, {t2}, {o}", o=u * 1024 + m * 65536) + g + J("buffer_store_dwordx4 {r}, {l16b}, {SWS}, {t3} offen sc1", tag="pub" if u else "pue", r=V(u0, 4))
        G.stream(single([epi(0, m, False) for m in range(4)]), e0 + 2, min(512, e0 + self.o("espan", 60 if self.ef else 76)))
        if self.ef:
            l = self.lab("noe")
            G.put(self.o("efp", 509), I("@must pue") + J("s_barrier\ns_cmp_lg_u32 {w}, 0") + J("""s_cbranch_scc1 {l}
s_lshl3_add_u32 s3, {b12}, {ni}
s_lshl_b32 s3, s3, 7
s_add_u32 s3, s3, {ef}
v_mov_b32 v24, 1
s_mov_b64 exec, 1
buffer_store_dword v24, v0, {SWS}, s3 offen sc1
s_mov_b64 exec, -1
{l}:""", raw=True, l=l, ef=WS_EF))
        for i in range(8): G.put(64 * i, self.stamp(i, 1))
        G.put(480, self.stamp(8, 1)); G.put(511, self.stamp(9, 1))
        p += G.out()
        p += self.stamp(2)
        ep = [epi(1, m, True) for m in range(4)]
        if self.o("strip", 0) & 32768: ep = ep[:2]
        mid = self.o("mid", 2)
        if not late1: ep.insert(mid, self.x1_pre()[-1:] + self.x1_fetch())
        tpos = self.o("tep", 2); tt = self.TT(nin, 4) if tpos == 0 else []
        p += flat(weave([[]] + ep, tt) if mid else weave(ep, tt))
        if late1: p += I(self.POLL_LD, tag="poll")
        elif self.ef: p += self.eadr() + I(self.POLL_LD, tag="poll")
        p += self.stamp(3) + self.stamp(0, 3)
        n1_ = min(8, 4 + nin + self.o("nw1", 0))
        p += flat(self.c_stage()) + self.stamp(1, 3) + flat(weave(self.gen_G(42, True)[gs_:] + gl, self.DD(4 + nin, n1_)))
        if tpos == 1: p += flat(self.TT(nin, 4))
        return p + self.tail(True, nin if tpos == 2 else 4, n1_)

    def p12d(self):
        self.ffn = False; self.cstg = LDS_RPF; self.rip = 0
        def dma(s_):
            Q, m = divmod(s_, 4)
            gs = [J("s_add_u32 m0, {ring}, {o}", o=m * 4096)]
            if m == 0:
                gs = single(J("v_lshl_add_u32 {xr}, {k}, 7, {x}\nv_lshl_add_u32 {xr2}, {k}, 7, {vw}")) + gs
                if Q: gs = single(J("s_add_u32 {k}, {k}, 1\ns_and_b32 {k}, {k}, 3")) + gs
            for hf in range(2):
                for e in range(2):
                    g = J("buffer_load_dwordx4 {r}, {srd}, s{so} offen offset:{o} lds", tag="x_%d" % s_, r=NM[("xr", "xr2")[e]], srd=(SX, SWG)[hf], so=76 + m, o=(2 * hf + e) * 1024)
                    if Q and not hf and not e: g = I("@need xf_%d" % (s_ - 4)) + g
                    gs.append(g)
            return gs
        def raw(s_):
            return [I("@must x_%d" % s_)] + [I("ds_read_b128 %s, v%d offset:%d" % (A(16 * (s_ % 2) + 4 * f, 4), vWT[f], (s_ % 4) * 4096), tag="xf_%d" % s_) for f in range(4)]
        def fold(s_):
            return [I("%s %s, v[20:23], %s, 0" % (MF, V(48 + 4 * f, 4), A(16 * (s_ % 2) + 4 * f, 4))) for f in range(4)]
        def fcv(s_):
            return [cvt(32 + (s_ % 2) * 8 + q, 48 + 2 * q, 49 + 2 * q) for q in range(8)]
        def trd(Q):
            return [I("ds_read_b128 %s, %s offset:%d" % (A(64 + 64 * (Q % 2) + 4 * f, 4), NM["l16b"], Q * 16384 + f * 1024), tag="tq%d" % Q) for f in range(16)]
        p = I("@reset") + J("""s_add_u32 s76, s76, 0x800
s_add_u32 s77, s76, 0x80000
s_add_u32 s78, s76, 0x100000
s_add_u32 s79, s76, 0x180000
s_add_u32 {ni}, {xn}, 28
s_and_b32 {k}, {xcd}, {km}
s_mov_b32 {wb}, {k}
v_mov_b32 {vw}, v18
v_lshlrev_b32 {l16b}, 4, v0""", km=self.o("km", 6) & 2)
        tg, sel, late = self.gen_T()
        cl = self.c_loads(True)
        npk = self.o("npk", 0)
        p += self.srd_const(SWG, 2097152 + 3584) + flat(tg[:npk]) + I("s_waitcnt lgkmcnt(0)") + self.srd(SX, 48, 0, back=2048) + self.srd(SWG, 48, 0, back=3584)
        p += flat([dma(m) for m in range(3)])
        ntp = self.o("ntp", 8); tl = tg[1 + 2 * ntp:]; tg = tg[npk:1 + 2 * ntp]
        place(tg, len(tg) - self.o("d3", 1), dma(3))
        if self.o("pm", 0) == 4:
            p += self.common2()
            for i, k in enumerate((0, 1, 2, 3, 4, 5, 6, 7, 8)): place(tg, k, self.stamp(i, 4))
        p += flat(tg) + sel + (self.common2() if self.o("pm", 0) != 4 else []) + self.stamp(0) + self.stamp(9, 4)
        p += I("@waitlg0\ns_barrier") + self.stamp(1)
        t0_ = trd(0)
        p += flat(t0_[:8] + raw(0) + t0_[8:] + fold(0) + dma(4) + raw(1) + fcv(0))
        def mm(s_, h, tau):
            Q, m = divmod(s_, 4); acc = V(128 + (tau * 4 + m) * 4, 4)
            return I("%s %s, %s, %s, %s" % (MF, acc, V(32 + (s_ % 2) * 8 + 4 * h, 4), A(64 + 64 * (Q % 2) + (h * 8 + tau) * 4, 4), acc if Q or h else "0"))
        mf = []; at = {}
        for s_ in range(15):
            at[s_] = len(mf); mf += [mm(s_, 0, tau) for tau in range(6)]
            at["fold", s_ + 1] = len(mf); mf += fold(s_ + 1) + [mm(s_, 0, tau) for tau in (6, 7)] + [mm(s_, 1, tau) for tau in range(8)]
        at[15] = len(mf); mf += [mm(15, h, 4 * g + t) for g in range(2) for h in range(2) for t in range(4)]
        def s2(t):
            return [I("%s %s, %s, %s, %s" % (MF, V(128 + 16 * t + 4 * sg, 4), V(64 + 8 * t + 4 * v, 4), A(224 + (2 * sg + v) * 4, 4), V(128 + 16 * t + 4 * sg, 4) if v else "0"))
                    for v in range(2) for sg in range(4)]
        for t in range(8):
            at["s2", t] = len(mf); mf += s2(t)
        G = Gaps(mf)
        for s_ in range(1, 16):
            f = at["fold", s_]
            if s_ > 1: G.stream(raw(s_), f - self.o("rawa", 11), f - 4, spread=False)
            G.put(f - 1, I("@wait xf_%d" % s_))
            G.stream(fcv(s_), f + 6, f + 12, spread=False)
            if s_ + 4 < 16: G.stream(dma(s_ + 4) + (cl[-4:] if s_ + 4 == self.o("dcs", 16) else []), f, f + 8)
        for Q in range(1, 4):
            G.stream(trd(Q), at[4 * Q - 4] + 2, at[4 * Q] - 8); G.put(at[4 * Q] - 1, I("@wait tq%d" % Q))
        G.stream(single(J("s_mul_i32 {wb}, {wb}, 0x40004000") + flat([J("v_xor_b32 v{r}, {wb}, v{r}", r=20 + i) for i in range(4)])), at["fold", 7] + 4, at["fold", 8] - 2, spread=False)
        for Q in range(ntp // 2, 4):
            G.stream(single(tl[4 * Q - 2 * ntp:4 * Q - 2 * ntp + 4]), at[4 * Q - 8] + 1, at[4 * Q - 4] - 6)
            G.put(at[4 * Q - 4] + 1, I("@must ttab%d\ns_barrier" % Q))
        e = G.stream((cl[:-4] if self.o("dcs", 16) < 16 else []) + single(late), 2 if ntp == 8 else at[8], at[12] + 6)
        rr = [I("@wait r64f\ns_barrier"), J("v_add_u32 v24, {a}, {l16b}", a=LDS_STG)] + [I("ds_read_b128 %s, v24 offset:%d" % (A(224 + 4 * f, 4), f * 1024)) for f in range(8)]
        G.stream(rr, e + 6, at[15])
        pre = J("""v_lshrrev_b32 v26, 2, {l16}
v_lshlrev_b32 v26, 17, v26
v_lshl_add_u32 v26, {hi}, 6, v26
v_and_b32 v25, 3, v0
v_lshl_add_u32 {xr}, v25, 4, v26
s_lshr_b32 s76, {xn}, 1
s_lshl_b32 s76, s76, 7
s_add_u32 s76, s76, {b12}
s_and_b32 {t0}, {xn}, 1
s_lshl1_add_u32 s76, s76, {t0}
s_lshl_b32 s76, s76, 8
s_add_u32 s76, s76, {x1}
s_add_u32 s77, s76, 0x80000
s_add_u32 s78, s76, 0x100000
s_add_u32 s79, s76, 0x180000""", x1=WS_X1) + self.flag_addr()
        G.stream(single(pre), e + 1, at[15])
        G.stream(self.gate_ld(), at["s2", 0] + 8, at["s2", 2])
        def cv(t, m): return [cvt(64 + 8 * t + 2 * m + i, 128 + 16 * t + 4 * m + 2 * i, 129 + 16 * t + 4 * m + 2 * i) for i in range(2)]
        for m in range(3):
            G.stream([g for t in range(8) for g in cv(t, m)], at[13 + m] + 1, at[13 + m] + (19 if m < 2 else 11), spread=False)
        G.stream([g for t in range(4) for g in cv(t, 3)], at[15] + 10, at["s2", 0] + 2, spread=False)
        G.stream([g for t in range(4, 8) for g in cv(t, 3)], at["s2", 0] + 3, at["s2", 2], spread=False)
        def st(tp):
            gs = []
            for sg in range(4):
                o = 32 + 16 * (tp % 2) + 4 * sg; d0 = 128 + 32 * tp + 4 * sg; d1 = d0 + 16
                gs += [cvt(o, d0, d0 + 1), cvt(o + 1, d0 + 2, d0 + 3), cvt(o + 2, d1, d1 + 1), cvt(o + 3, d1 + 2, d1 + 3),
                       J("buffer_store_dwordx4 {r}, {xr}, {SWS}, s{so} offen sc1", tag="pub", r=V(o, 4), so=76 + sg)]
                if tp < 3: gs.append(I("s_add_u32 s%d, s%d, 16384" % (76 + sg, 76 + sg)))
            return gs
        for tp in range(3):
            G.stream(st(tp), at["s2", 2 * tp + 2] + 1, at["s2", 2 * tp + 2] + 16, spread=False)
        for i in range(10): G.put(min(40 * i, len(G) - 1), self.stamp(i, 1))
        p += G.out()
        p += self.stamp(2)
        p += flat(st(3))
        p += self.stamp(3)
        p += self.spin(self.GATE_LD)
        p += self.wd_setup() + flat(self.gen_R(0, 128))
        p += self.set_flag()
        p += self.stamp(4)
        if self.o("dcs", 16) < 16: p += I("\n".join("v_accvgpr_read_b32 v%d, a%d" % (32 + i, 32 + i) for i in range(10)))
        else: p += flat(self.c_loads() + self.c_fetch(0) + self.c_fetch(1))
        p += flat(self.gen_R(1, 160))
        p += I("@waitlg0\ns_barrier")
        nd = self.o("dnd", 2)
        p += flat(weave(self.rp_reads() + self.x1_addr() + self.setupA(), self.DD(0, nd)))
        p += I("@wait rp\ns_barrier")
        p += flat(self.g_loads() + self.c_stage())
        p += I(self.POLL_LD, tag="poll")
        return p + self.tail(False, 0, nd)

    def touch(self, r):
        if r >= self.o("touch", 1): return []
        gs = [I("v_lshlrev_b32 v17, 5, v0")] if r == 0 else [J("s_add_u32 {lw}, {lw}, 0x38000"), J("s_sub_u32 s3, {lw}, 0x1c0000\ns_cselect_b32 {lw}, {lw}, s3")]
        return gs + [J("buffer_load_dword a{d}, v17, {SWD}, {lw} offen", d=160 + r)]
    def touch3(self):
        if not self.o("touch3", 1): return []
        return [J("s_lshr_b32 s3, s2, 3\ns_lshl2_add_u32 s3, s3, {w}\ns_lshl_b32 s3, s3, 14"), J("v_and_b32 v28, 60, v0"), J("v_lshlrev_b32 v28, 8, v28"),
                J("buffer_load_dword a172, v28, {SWD}, s3 offen offset:384")]
    def retouch(self):
        if not self.o("retouch", 1): return []
        l = self.lab("pc")
        return [J("s_getpc_b64 {m2}\n{l}:\ns_lshr_b32 s3, s2, 3\ns_lshl_b32 s3, s3, 2", l=l)] + single(J("""s_add_u32 s3, s3, {w}
s_lshl_b32 s3, s3, 9
v_lshl_add_u32 v28, v0, 3, s3
v_min_u32 v28, L_end-{l}, v28
global_load_dword a170, v28, {m2}""", l=l))

    def x1_pre(self):
        return J("""s_lshr_b32 {t0}, {bp}, 1
s_lshl3_add_u32 {t0}, {t0}, {jb}
s_lshl2_add_u32 {t0}, {t0}, {w}
s_lshl_b32 {t0}, {t0}, 7
s_and_b32 {t1}, {bp}, 1
s_add_u32 {t0}, {t0}, {t1}
s_lshl_b32 {t0}, {t0}, 5
s_add_u32 {t0}, {t0}, {x1}
v_and_b32 v26, 62, v0
v_lshl_add_u32 v26, v26, 4, {l16b}
v_add_u32 v25, 0x400, v26
s_lshl_b32 {t1}, {w}, 11
s_add_u32 m0, {t1}, {stg}""", x1=WS_X1, stg=LDS_STG)

    def eadr(self):
        return J("""s_xor_b32 {t1}, {bp}, {m}
s_lshr_b32 {t1}, {t1}, 2
s_lshl_b32 {t1}, {t1}, 6
s_add_u32 {t1}, {t1}, {rot}
s_add_u32 {t1}, {t1}, 1
s_lshr_b32 {t1}, {t1}, 1
s_lshl_b32 {t1}, {t1}, 7
s_add_u32 {wo1}, {t1}, {ef}
v_min_u32 {pa}, 2, {hi}
v_lshlrev_b32 {pa}, 7, {pa}""", m=self.pair, ef=WS_EF)
    def x1_fetch(self):
        return self.spin(self.POLL_LD) + J("buffer_load_dwordx4 v26, {SWS}, {t0} offen sc1 lds\nbuffer_load_dwordx4 v25, {SWS}, {t0} offen offset:1024 sc1 lds", tag="x1") + self.stamp(5)
    def setupA(self):
        return single(J("""s_lshl_b32 s76, {jb}, 1
s_lshr_b32 {t1}, {w}, 1
s_add_u32 s76, s76, {t1}
s_lshr_b32 {t1}, {bp}, 3
s_lshl_b32 {t1}, {t1}, 4
s_add_u32 s76, s76, {t1}
s_lshl_b32 s76, s76, 3
s_and_b32 {t1}, {bp}, 7
s_add_u32 s76, s76, {t1}
s_lshr_b32 {t1}, {bp}, 2
s_xor_b32 {t1}, {t1}, {w}
s_and_b32 {t1}, {t1}, 1
s_lshl1_add_u32 s76, s76, {t1}
s_lshl_b32 s76, s76, 6
s_add_u32 s76, s76, {u}
s_add_u32 s77, s76, 0x80000
s_add_u32 s78, s76, 0x100000
s_add_u32 s79, s76, 0x180000
v_lshrrev_b32 v24, 1, {l16}
v_lshlrev_b32 v26, 16, v24
v_and_b32 v25, 1, v0
v_lshl_add_u32 v26, v25, 5, v26
v_lshl_add_u32 {xr}, {hi}, 3, v26
s_lshl2_add_u32 {t0}, {jb}, {w}
v_and_or_b32 v28, v0, 7, {t0}
v_cmp_eq_u32 vcc, 0, v28
v_bfe_u32 v28, v0, 3, 1
v_xor_b32 v28, 1, v28
v_lshl_or_b32 v18, v28, 31, 1.0
s_lshl_b32 {t0}, {w}, 5
s_add_u32 {t0}, {t0}, {stg}
v_lshrrev_b32 v24, 3, v0
v_cndmask_b32 v18, v18, 0, vcc
v_lshl_add_u32 v19, v24, 8, {t0}
v_lshl_add_u32 v19, v25, 7, v19
v_bfe_u32 v25, v0, 1, 2
v_lshl_add_u32 v19, v25, 3, v19""", u=WS_U, stg=LDS_STG))
    def setupB(self):
        if self.pair: return single(J("""s_lshl_b32 {he}, {bp}, 8
s_add_u32 {he}, {he}, {rot}
s_lshl_b32 {he}, {he}, 10
s_xor_b32 {hs}, {he}, {hx}
s_andn2_b32 {t1}, {bp}, {m}
s_lshl_b32 {t1}, {t1}, 5
s_lshr_b32 {t0}, {rot}, 1
s_add_u32 {t0}, {t0}, {t1}
s_lshl_b32 {t0}, {t0}, 7
s_add_u32 {wo1}, {t0}, {fl}
v_lshrrev_b32 v24, 5, v0
v_mul_u32_u24 v24, {fx}, v24
v_bfe_u32 {pa}, v0, 3, 2
v_lshl_add_u32 {pa}, {pa}, 7, v24
@skip
s_lshl3_add_u32 {wo0}, {bp}, {nt}
s_lshl_b32 {wo0}, {wo0}, {ush}
s_add_u32 {wo0}, {wo0}, {cnt}
v_mov_b32 v19, 1
v_add_u32 v9, {r64}, {l16b}""", hx=self.pair << 18, m=self.pair, fx=self.pair << 12, fl=WS_FLAG, r64=LDS_R64I, cnt=WS_CNT, ush=self.o("ush", 5)))
        return single(J("""s_lshl_b32 {hs}, {bp}, 8
s_mul_i32 {t0}, {w}, 14
s_add_u32 {hs}, {hs}, {t0}
s_lshl_b32 {hs}, {hs}, 10
s_nop 0
s_nop 0
s_nop 0
s_mul_i32 {t0}, {w}, 7
s_lshl_b32 {t1}, {bp}, 5
s_add_u32 {t0}, {t0}, {t1}
s_lshl_b32 {t0}, {t0}, 7
s_add_u32 {wo1}, {t0}, {fl}
v_lshrrev_b32 v24, 3, v0
v_min_u32 {pa}, 6, v24
v_lshlrev_b32 {pa}, 7, {pa}
s_lshl3_add_u32 {wo0}, {bp}, {nt}
s_lshl_b32 {wo0}, {wo0}, {ush}
s_add_u32 {wo0}, {wo0}, {cnt}
v_mov_b32 v19, 1
v_add_u32 v9, {r64}, {l16b}""", hl=14 * 4096, fl=WS_FLAG, r64=LDS_R64I, cnt=WS_CNT, ush=self.o("ush", 5)))
    def setupC(self):
        return single(J("""s_lshl_b32 {wo1}, {w}, {ush6}
s_add_u32 {wo1}, {wo1}, {cnt}
v_lshlrev_b32 {pa}, {ush}, v0
s_lshl_b32 {t2}, {bp}, 16
s_lshl_b32 {t3}, {w}, 14
s_add_u32 {t2}, {t2}, {t3}
s_add_u32 {t2}, {t2}, {u}
s_lshl_b32 {t0}, {bp}, 8
s_add_u32 {t0}, {t0}, {g}
v_lshrrev_b32 v24, 1, {l16}
v_lshlrev_b32 v24, 7, v24
v_and_b32 v25, 1, v0
v_lshl_add_u32 v24, v25, 5, v24
v_lshrrev_b32 v27, 1, {hi}
v_bfe_u32 v28, v0, 3, 1
v_xor_b32 v28, v27, v28
v_lshl_add_u32 v24, v28, 6, v24
v_and_b32 v26, 1, {hi}
v_lshl_add_u32 {vw}, v26, 4, v24
v_lshrrev_b32 v24, 3, v0
v_xor_b32 v25, v24, v0
v_and_b32 v25, 7, v25
v_lshlrev_b32 v24, 15, v24
v_lshl_add_u32 {x}, v25, 4, v24
v_lshl_add_u32 v24, {w}, 1, v27
v_xor_b32 v24, v24, v0
v_and_b32 v24, 7, v24
v_lshlrev_b32 v24, 4, v24
v_lshl_add_u32 v24, {l16}, 7, v24
v_lshl_add_u32 v24, v26, 3, v24
v_add_u32 v6, {stg}, v24
s_lshl_b32 {t1}, {w}, 10
s_add_u32 {t1}, {t1}, {stg}
v_add_u32 v7, {t1}, {l16b}
v_lshlrev_b32 v8, 4, {l16}
s_lshl3_add_u32 s76, {bp}, {nt}
s_lshl_b32 s76, s76, 7
s_lshl_b32 {t1}, {w}, 18
s_add_u32 s76, s76, {t1}
s_add_u32 s77, s76, 0x100000""", u=WS_U, g=WS_G, stg=LDS_STG, cnt=WS_CNT, ush=self.o("ush", 5), ush6=self.o("ush", 5) + 6))
    def tail(self, ffn, nxt_t, nxt_d):
        st = dict(t=nxt_t, d=nxt_d)
        def pump(nd):
            gs = []
            for _ in range(nd):
                if st["d"] >= self.NU: break
                nx = self.loc(min(self.NU - 1, st["d"] + 1))[1]; pv = self.loc(st["d"])[1]
                while st["t"] <= max(-1 if nx is None else nx, -1 if pv is None else pv):
                    gs += self.T(st["t"]); st["t"] += 1
                gs += self.D(st["d"]); st["d"] += 1
            return gs
        def W(a, b): return flat(weave(a, b)) if b else flat(a)
        self.after_h = []
        c1, c2 = self.c_calc()
        p = flat(c1[:-8])
        mid2 = ffn and self.o("mid", 2) >= 2 and not self.o("x1late", 0)
        p += self.stamp(2, 3) + I("@wait cst\ns_barrier" if mid2 else "@wait x1 cst\ns_barrier") + self.stamp(3, 3)
        if ffn and not self.o("x1late", 0) and self.o("fpos", 0) == 3: p += self.set_flag() + self.stamp(4)
        XF, DD, PP, EE, PK, UP = 128, 136, 152, 168, 184, 128
        p += flat(c1[-8:])
        late1 = self.o("x1late", 0) or not ffn
        sB = self.setupB()
        if late1:
            rip = self.rip; gcs = self.g_calc() + [self.g_store()]
            nc2 = self.o("nc2", 71) if ffn else 71
            p += W(([] if rip else self.gen_R(2, 160)) + c2[:nc2], pump(self.o("pump0", 0) if ffn else 1))
            p += self.x1_pre() + self.stamp(4, 3)
            if ffn: p += self.set_flag() + self.stamp(4)
            p += self.x1_fetch() + self.stamp(5, 3)
            p += W(c2[nc2:] + (self.gen_R(1, 160, LDS_R64I) if rip else gcs) + sB[:18] + sB[19:], pump(self.o("pump1", 2)))
            p += self.stamp(6, 3) + I("@wait x1 rtab\ns_barrier") + self.stamp(7, 3)
            if self.o("hp", 1) == 0 and ffn: p += I(self.POLL_LD, tag="poll")
        if mid2:
            nc = self.o("nc3", 55)
            p += flat(c2[:nc]); c2 = c2[nc:]
            if self.o("mid", 2) == 4: p += self.set_flag() + self.stamp(4)
            p += I("@wait x1\ns_barrier")
        for k in range(4):
            p += I("ds_read_b64_tr_b16 %s, v19 offset:%d" % (V(XF + 2 * k, 2), 2048 * k))
        mf = [I("%s %s, %s, %s, %s" % (MF, V(DD + 4 * tau, 4), A(224 + (2 * tau + v) * 4, 4), V(XF + 4 * v, 4), V(DD + 4 * tau, 4) if v else "0")) for v in range(2) for tau in range(4)]
        if late1:
            G = Gaps(mf); pm = pump(self.o("pump2", 1))
            if pm: G.stream(pm, 0, 8)
            p += G.out() + sB[18] + flat([I("ds_read_b128 %s, v9 offset:%d" % (A((192 if rip else 224) + 4 * f, 4), f * 1024)) for f in range(8)])
            if self.o("hp", 1) == 1 and ffn: p += I(self.POLL_LD, tag="poll")
        elif mid2: p += flat(c2[:8]) + flat(weave(mf, c2[8:])) + self.stamp(4, 3)
        else: p += flat(weave(c2, mf, 12, 52)) + self.stamp(4, 3)
        dpp = "row_ror:8 row_mask:0xf bank_mask:0xf"
        cA, cB, cC, cD = CO, CO + 8, CO + 16, CO + 24
        def pk(op, d, a, b, neg=False):
            g = []
            for e in range(0, 8, 2):
                if op == "mul": g += I("v_pk_mul_f32 %s, %s, %s" % (V(d + e, 2), V(a + e, 2), V(b + e, 2)))
                else: g += I("v_pk_fma_f32 %s, %s, %s, %s%s" % (V(d + e, 2), V(a + e, 2), V(b + e, 2), V(d + e, 2), " neg_lo:[1,0,0] neg_hi:[1,0,0]" if neg else ""))
            return g
        fpos = -1 if late1 or not ffn or self.o("mid", 2) == 4 else self.o("fpos", 0)
        if fpos == 0: p += self.set_flag() + self.stamp(4)
        eadr = self.eadr()
        early = []
        hint = J("""s_bitcmp1_b32 {nt}, 2
s_cselect_b32 {t0}, {he}, {hs}
s_and_b32 {t1}, {nt}, 3
s_lshl_b32 {t1}, {t1}, 16
s_add_u32 {t0}, {t0}, {t1}
s_lshr_b32 {t1}, {wde}, 5
s_add_u32 {t0}, {t0}, {t1}
v_min_u32 v25, 2, {hi}
v_lshlrev_b32 v25, 11, v25
v_lshl_add_u32 v25, {l16}, 6, v25
buffer_load_dword a144, v25, {SWS}, {t0} offen sc1""")
        if self.o("hint", 0) == 1 and not late1: p += flat(sB[:4]) + hint
        if self.ef and not late1:
            p += flat(self.g_calc()) + self.g_store() + flat(sB[:4]) + J("s_lshr_b32 {t1}, {wde}, 5\nv_add_u32 v5, {t1}, {l16b}") + self.spin(self.POLL_LD) + self.stamp(7) + self.stamp(9, 3)
            for k in range(12):
                t, u = divmod(k, 3)
                early.append((J("s_add_u32 {ho}, {hs}, {o}", o=t * 65536 + u * 2048) if u != 1 else []) +
                             J("buffer_load_dwordx4 {r}, v5, {SWS}, {ho} offen offset:{o} sc1", tag="h%d" % k, r=V(192 + 4 * k, 4), o=2048 if u == 1 else 0))
        q = []
        for e in range(16): q += I("v_mul_f32_dpp v%d, v%d, v18 %s" % (PP + e, DD + e, dpp))
        q += pk("mul", EE, cA, DD) + pk("mul", EE + 8, cC, DD) + pk("fma", EE, cB, PP) + I("v_mov_b32 v%d, v%d\nv_mov_b32 v%d, v%d" % (cA, CA2, cB, CB2))
        q += pk("fma", EE + 8, cD, PP) + pk("fma", EE, cC, DD + 8, True) + pk("fma", EE + 8, cA, DD + 8) + pk("fma", EE, cD, PP + 8, True) + pk("fma", EE + 8, cB, PP + 8)
        p += W(single(q), early + pump(self.o("pump3", 0)))
        p += self.pack(PK, EE)
        mf = [I("%s %s, %s, %s, %s" % (MF, V(DD + 4 * kt, 4), V(PK + 4 * v, 4), A(192 + (2 * kt + v) * 4, 4), V(DD + 4 * kt, 4) if v else "0")) for v in range(2) for kt in range(4)]
        q = self.pack(PK + 4, EE + 8)
        p += q[:2]
        G = Gaps(mf); G.put(0, q[2:])
        if not late1: G.stream(sB[4 if self.ef else 0:15], 1, 8, spread=False)
        elif self.o("hp", 1) == 2 and ffn: G.put(1, I(self.POLL_LD, tag="poll"))
        p += G.out()
        if fpos == 1: p += self.set_flag() + self.stamp(4)
        for kt in range(4):
            p += cvt(UP + 2 * kt, DD + 4 * kt, DD + 4 * kt + 1) + cvt(UP + 2 * kt + 1, DD + 4 * kt + 2, DD + 4 * kt + 3)
            p += J("buffer_store_dwordx2 {r}, {xr}, {SWS}, s{so} offen sc1", tag="ust", r=V(UP + 2 * kt, 2), so=76 + kt)
        if self.o("hint", 0) == 2 and not late1: p += hint
        p += self.stamp(6) + self.stamp(8 if late1 else 5, 3)
        l = self.lab("nosig")
        usig = I("@wait ust gst rtab") + J("s_barrier\ns_cmp_lg_u32 {w}, 0") + \
               J("s_cbranch_scc1 {l}\ns_mov_b64 exec, 1\nbuffer_store_dword v19, v0, {SWS}, {wo0} offen sc1\ns_mov_b64 exec, -1\n{l}:", raw=True, l=l)
        if late1:
            if not ffn:
                gG = self.gen_G(136, True)
                p += W(gG[:8], pump(2)) + usig + W(gG[8:], pump(3)) + flat(pump(2)) + (eadr if self.ef else []) + I(self.POLL_LD, tag="poll") + flat(pump(9))
                usig = []
            else: p += W(gcs + self.gen_R(2, 160, LDS_RPF), pump(self.o("pumpb", 2))) if rip else flat(pump(self.o("pumpb", 2)))
            if rip: usig += J("v_add_u32 v9, {a}, {l16b}", a=LDS_RPF) + flat([I("ds_read_b128 %s, v9 offset:%d" % (A(224 + 4 * f, 4), f * 1024)) for f in range(8)])
            if self.o("hp", 1) == 3 and ffn: p += I(self.POLL_LD, tag="poll")
            p += flat(pump(self.o("pumpc", 0)))
            if self.o("upos", 0) == 0: p += usig
        elif self.ef:
            pass
        else:
            if fpos == 2: p += self.set_flag() + self.stamp(4)
            p += flat(self.g_calc()) + self.g_store() + flat(sB[15:])
            ue = self.o("ue", 2)
            gr = [[]] if self.o("r2p", 0) else self.gen_R(2, 160)
            if ue >= 3: place(gr, min(len(gr) - 1, self.o("pq", 0)), I(self.POLL_LD, tag="poll"))
            p += W(gr, pump(self.o("pumpa", 1)))
            r64 = flat([I("ds_read_b128 %s, v9 offset:%d" % (A(224 + 4 * f, 4), f * 1024)) for f in range(8)])
            if ue == 1: p += self.stamp(6, 3) + usig + r64 + self.stamp(7, 3)
            if ue < 3: p += I(self.POLL_LD, tag="poll")
            if ue in (2, 3): p += self.stamp(6, 3) + usig + ([] if ue == 3 else r64) + self.stamp(7, 3)
            if ue == 3: self.after_h = r64
            if ue == 4: self.after_h = usig + r64
            tpre = max(st["t"], min(st["d"], self.o("tpre0", 6 if ue < 3 else 0)))
            p += flat(self.TT(st["t"], tpre)); st["t"] = tpre
            p += flat(pump(self.o("pumpb", 2)))
            if ue == 0: p += usig + r64
            p += self.stamp(8, 3)
        xo = self.o("xo", 0)
        if xo > 0: p += J("v_lshl_add_u32 v44, {rot}, 10, {l16b}\nv_xor_b32 v45, 0x400, v44\nv_xor_b32 v46, 0x800, v44\nv_xor_b32 v47, 0xc00, v44\nv_and_b32 v4, 0x7ff, v44\nv_and_b32 v18, 0x7ff, v45")
        if not early:
            if not (self.o("strip", 0) & 8192 and ffn): p += self.spin(self.POLL_LD)
            p += self.stamp(7) + self.stamp(9, 3)
        if self.ef:
            r64 = [I("ds_read_b128 %s, v9 offset:%d" % (A(224 + 4 * f, 4), f * 1024)) for f in range(8)]
            if late1: return p + self.p4pair(ffn, st, pump, W, sB[4:14], [], [])
            if self.o("r2p", 0): return p + self.p4pair(ffn, st, pump, W, None, sB[15:] + r64, [usig])
            return p + self.p4pair(ffn, st, pump, W, None, sB[15:] + self.gen_R(2, 32), [usig] + r64)
        if self.pair: return p + self.p4pair(ffn, st, pump, W)
        NS = 16; na = self.o("na", 8)
        order = [(u, s_) for u0 in range(0, na, 2) for s_ in range(4) for u in (u0, u0 + 1)] + [(u, s_) for s_ in range(4) for u in range(na, 14)]
        pos_ = dict((x_, k) for k, x_ in enumerate(order))
        hb = [None]
        def hload(k):
            u, s_ = order[k]; gs = []; o = s_ * 65536 + u * 1024
            if hb[0] is None or not hb[0] <= o < hb[0] + 4096:
                hb[0] = o; gs.append(J("s_add_u32 {ho}, {hs}, {o}", o=o))
            return gs + [J("buffer_load_dwordx4 {r}, {l16b}, {SWS}, {ho} offen offset:{o} sc1", tag="h%d" % k, r=V(192 + 4 * (k % NS), 4), o=o - hb[0])]
        npre = self.o("npre", 12)
        redadr = []
        for dl in range(4):
            redadr += J("s_xor_b32 {t1}, {w}, {dl}\ns_mul_i32 {t1}, {t1}, 3072\ns_add_u32 {t1}, {t1}, {o}\nv_add_u32 v{r}, {t1}, {l16b}", dl=dl, o=76 * 1024 + max(0, dl - 1) * 1024, r=32 + dl)
        ro = [61440 if self.rip else 53248, 0, 12288, 24576]
        p += W([g for k in range(npre) for g in hload(k)], self.setupC())
        tpre = max(st["t"], min(st["d"], self.o("tpre", 4)))
        p += flat(self.TT(st["t"], tpre)); st["t"] = tpre
        if late1 and self.o("upos", 0) == 1: p += usig
        s5 = self.o("s5", 80); AO = GB; LA = self.o("la5", 10); PK5 = 36
        def m4(k, dl):
            u, s_ = order[k]; d = V(128 + (dl * 4 + s_) * 4, 4)
            return I("%s %s, %s, %s, %s" % (MF, d, A(self.wd_reg(u, dl), 4), V(192 + 4 * (k % NS), 4), d if u else "0"))
        ar = lambda k: A(self.wd_reg((k % 16) // 4, k % 4), 4)
        def m5(k):
            n, sg = divmod(k, 4); d = V(ACCV + 4 * sg, 4)
            return I("%s %s, %s, %s, %s" % (MF, d, ar(k), V(GB + 4 * n, 4), d if n else "0"))
        mf = []; at = {}; k5 = 0; fin = None
        for i in range(224):
            k, dl = divmod(i, 4)
            if order[k][0] == 13: dl = (dl + 1) % 4
            at[(k, i % 4)] = len(mf); mf.append(m4(k, dl))
            if i >= s5 and k5 < 64:
                at[k5] = len(mf); mf.append(m5(k5)); k5 += 1
            if k5 == 64 and fin is None and len(mf) >= at[63] + 12:
                fin = len(mf)
                mf += [I("%s %s, %s, %s, %s" % (MF, V(AO + 4 * a_, 4), V(PK5 + 4 * v, 4), A(224 + (2 * a_ + v) * 4, 4), V(AO + 4 * a_, 4) if v else "0")) for v in range(2) for a_ in range(4)]
        assert at[0] - LA >= 64 and na >= 4
        G = Gaps(mf); N = len(mf)
        for k in range(1, 56): G.put(at[(k, 0)] - 1, I("@must h%d" % k))
        for k in range(64):
            pos = at[k - LA] if k >= LA else at[0] - (LA - k)
            if k % 16 == 0: G.put(pos - 1, I("@must u%d\ns_barrier" % (k // 16)))
            G.put(pos, J("ds_read_b128 {r}, {vw} offset:{o}", tag="a%d" % k, r=ar(k), o=(k % 4) * 16384 + (k // 4) * 1024))
            if k % 2 == 0: G.put(at[k] - 1, I("@wait a%d" % (k + 1)))
        G.put(at[0] + 1, J("buffer_load_dwordx4 v[20:23], v8, {SWS}, {t0} offen sc1"))
        hd = self.o("hd", 48)
        def ud(c):
            return [J("s_add_u32 m0, {t3}, {o}", o=c * 4096)] + ([J("s_add_u32 {t2}, {t2}, 4096")] if c else []) + \
                   [J("buffer_load_dwordx4 {l16b}, {SWS}, {t2} offen offset:{o} sc1 lds", tag="u%d" % c, o=1024 * k) for k in range(4)]
        use = lambda u: at[(pos_[(u, 0)], 0)]
        occ = lambda c: max([u for u in range(14) if self.loc(u)[0] == 0 and self.loc(u)[2] == c] + [-1])
        items = [(at[(k, 0)], 1, k) for k in range(npre, 56)] + [(at[16 * c] - (2 if c else 1) * LA - 1, 0, c) for c in range(4)]
        for n_, u in enumerate(range(st["d"], 14)):
            lim = use(u) - 24
            if self.loc(u)[0] == 0: lim = min(lim, at[16 * self.loc(u)[2]] - 2 * LA - hd - 20)
            items.append((min(lim, hd + self.o("l0", 0) + n_ * self.o("lsp", 16)), 2, u))
        items.sort()
        last = 0; dpos = {}; upos_ = {}
        for need, kind, k in items:
            want = max(last, need - hd)
            if kind == 1:
                w_ = max(want, last + 1, at[(k - NS, 3)] if k >= NS else 0)
                last = G.stream(hload(k), w_, w_ + 4, spread=False)
            elif kind == 2:
                dpos[k] = want; last = G.stream(self.D(k), want + 1, want + 9); dpos[k, "e"] = last
            else:
                upos_[k] = want
                if k == 0:
                    G.put(max(0, want - self.o("pgap", 44)), I(self.POLL_LD, tag="poll"))
                    G.put(want, self.stamp(8) + I("@wait poll") + self.spin(self.POLL_LD, sleep=self.o("slu", 0)))
                last = G.stream(([I("@must t%d" % occ(k))] if occ(k) >= 0 else []) + ud(k), want + 1, want + 11)
        dl_ = {}
        for u in range(13, st["t"] - 1, -1):
            d_ = min([use(u) - 3] + [dpos[v] for v in range(14) if v in dpos and self.loc(v)[1] == u] + [upos_[c] for c in range(4) if occ(c) == u])
            dl_[u] = min(d_, dl_[u + 1] - 5) if u < 13 else d_
        e = 0; tearly = []
        for u in range(st["t"], 14):
            if dl_[u] < 8:
                assert u not in dpos
                tearly += self.T(u); continue
            a_ = max(e, dl_[u] - 14, 0)
            assert a_ > dpos.get((u, "e"), -1), (u, a_, dpos)
            e = G.stream(self.T(u), a_, dl_[u], spread=False)
            assert e <= dl_[u]
        p += flat(tearly)
        G.stream(single(redadr), 8, 60)
        def red_w(s_): return [I("ds_write_b128 v%d, %s offset:%d" % (32 + dl, V(128 + (dl * 4 + s_) * 4, 4), ro[s_]), tag="rw%d" % s_) for dl in (1, 2, 3)]
        def red_r(s_): return [I("ds_read_b128 %s, v32 offset:%d" % (V(128 + (dl * 4 + s_) * 4, 4), ro[s_] + (dl - 1) * 1024), tag="rr%d" % s_) for dl in (1, 2, 3)]
        def red_a(s_):
            b = 128 + 4 * s_
            return single([I("v_add_f32 v%d, v%d, v%d" % (b + o + r, b + o + r, b + o + q + r)) for o, q in ((0, 16), (32, 16), (0, 32)) for r in range(4)])
        def mix(a_):
            b = 128 + 4 * a_
            return single(I("\n".join("v_fma_f32 v%d, v%d, v%d, v%d" % (b + r, b + r, 20 + a_, AO + 4 * a_ + r) for r in range(4))) +
                          cvt(56 + 2 * a_, b, b + 1) + cvt(57 + 2 * a_, b + 2, b + 3) + I("ds_write_b64 v6, %s offset:%d" % (V(56 + 2 * a_, 2), a_ * 2048), tag="ow%d" % a_))
        G.stream(single(self.pack(PK5, ACCV) + self.pack(PK5 + 4, ACCV + 8)), at[63] + 4, fin - 1, spread=False)
        gm = I("\n".join("v_mul_f32 v%d, %s, v%d" % (GB + 16 + a_, fhex(2.0 ** -19), 20 + a_) for a_ in range(4)))
        gm += I("\n".join("v_sub_f32 v%d, 1.0, v%d" % (20 + a_, 20 + a_) for a_ in range(4)))
        bars = {}; rend = {}
        for s_ in range(3):
            e = at[(pos_[(13, s_)], 3)]
            e = G.stream(red_w(s_), e + 3, e + 9)
            bars[s_] = e + 4
            G.put(e + 4, I("@must rw%d t13%s\ns_barrier" % (s_, " ow1" if s_ == 2 else "")))
            e = G.stream(red_r(s_) + ([I("ds_read_b128 v[36:39], v7")] if s_ == 2 else []), e + 5, e + 10, spread=False)
            if s_ < 2:
                G.put(e + 5, I("@wait rr%d" % s_))
                rend[s_] = G.stream(red_a(s_), e + 6, e + 16, spread=False)
        e = G.stream(single(gm), fin, fin + 8, spread=False)
        e = G.stream(single(I("\n".join("v_mul_f32 v%d, v%d, v%d" % (AO + i, GB + 16 + i // 4, AO + i) for i in range(16)))), max(e, fin + 9), fin + 24, spread=False)
        e = G.stream(mix(0), max(e, rend[0]) + 1, bars[2] - 6, spread=False)
        e = G.stream(mix(1), max(e, rend[1]) + 1, bars[2] - 1, spread=False)
        assert e < bars[2]
        ost = lambda h_: J("buffer_store_dwordx4 {r}, {x}, {SOUT}, s{so} offen {f}", r=V(36 + 4 * h_, 4), so=76 + h_, f=("", "sc1", "nt")[self.o("ost", 1)])
        ra = red_a(2); nfit = max(0, min(12, 2 * (N - bars[2] - 11)))
        if nfit: G.stream(ra[:nfit], bars[2] + 10, N, spread=False)
        for i in range(10): G.put(min(32 * i, len(G) - 1), self.stamp(i, 2))
        p += G.out()
        p += self.stamp(9)
        p += ost(0) + flat(weave(red_w(3), ra[nfit:] + mix(2))) + I("@wait rw3\ns_barrier") + flat(red_r(3))
        for o, q in ((0, 16), (32, 16), (0, 32)):
            for hh in (0, 2): p += I("v_pk_add_f32 %s, %s, %s" % (V(140 + o + hh, 2), V(140 + o + hh, 2), V(140 + o + q + hh, 2)))
        p += flat(mix(3)) + I("@waitlg0\ns_barrier\nds_read_b128 v[40:43], v7 offset:4096") + ost(1)
        return p + self.ending(ffn)

    def p4pair(self, ffn, st, pump, W, ladr=None, fill=None, usig=None):
        NS = 16; hb = [None]; ef = self.ef
        order = [(t, u) for t in range(8) for u in range(7)]
        if ef: order = [(t, u) for t in range(4) for u in range(3)] + [(t, u) for t in range(4) for u in range(3, 7)] + [(t, u) for t in range(4, 8) for u in (0, 3, 1, 4, 2, 5, 6)]
        pos_ = dict((x_, k) for k, x_ in enumerate(order))
        def hload(k):
            t, u = order[k]; gs = []
            o = t * 65536 + (2 * (u % 3) if ef and u < 6 else u) * 1024
            if hb[0] is None or not hb[0] <= o < hb[0] + 4096:
                hb[0] = o; gs.append(J("s_add_u32 {ho}, {b}, {o}", o=o & 0x3ffff, b=NM["hs" if t < 4 else "he"]))
            return gs + [J("buffer_load_dwordx4 {r}, {a}, {SWS}, {ho} offen offset:{o} sc1", tag="h%d" % k, r=V(192 + 4 * (k % NS), 4), o=o - hb[0],
                           a=("v44", "v45")[u // 3] if ef and u < 6 else NM["l16b"])]
        npre = self.o("npre", 12)
        adr = []
        for dl in range(4):
            adr += J("s_xor_b32 {t1}, {w}, {dl}\ns_mul_i32 {t1}, {t1}, 3072\ns_add_u32 {t1}, {t1}, {o}\nv_add_u32 v{r}, {t1}, {l16b}", dl=dl, o=76 * 1024 + max(0, dl - 1) * 1024, r=32 + dl)
        adr += J("""s_lshl3_add_u32 {t1}, {bp}, {nt}
s_lshl_b32 {wo0}, {t1}, 7
s_add_u32 {wo0}, {wo0}, {pf}
s_lshl2_add_u32 s78, {t1}, {w}
s_lshl_b32 s78, s78, 12
s_xor_b32 s79, s78, {px}
s_add_u32 s78, s78, {pb}
s_add_u32 s79, s79, {pb}""", pf=WS_PF, pb=WS_P, px=self.pair << 17)
        ro = [61440 if self.rip else 53248, 0, 12288, 24576]
        sC = self.setupC()
        if ef:
            npre = 12
            p = J("s_lshr_b32 {t1}, {wde}, 5\nv_add_u32 v44, {t1}, {l16b}\nv_xor_b32 v45, 0x400, v44")
            if ladr is not None: p += flat([hload(k) for k in range(npre)]) + flat(ladr) + flat(pump(7))
            else: p = W(fill, pump(7)) + p
            p += flat(self.TT(st["t"], 3)); st["t"] = max(st["t"], 3)
        else:
            if self.o("hfirst", 0): p = flat(pump(7)) + flat([hload(k) for k in range(npre)]) + self.after_h + W(sC + single(adr), self.TT(st["t"], 7))
            else: p = flat(pump(7)) + W([g for k in range(npre) for g in hload(k)], sC + single(adr[:16])) + self.after_h + adr[16:] + flat(self.TT(st["t"], 7))
        s5 = self.o("s5", 150); AO = GB; LA = self.o("la5", 10); PK5 = 36; RC = GB + 24
        def m4(k, dl):
            t, u = order[k]; d = V(128 + (dl * 4 + t % 4) * 4, 4)
            return I("%s %s, %s, %s, %s" % (MF, d, A(self.wd_reg(u, dl), 4), V(192 + 4 * (k % NS), 4), d if u else "0"))
        ar = lambda k: A(80 + 4 * (k % 16), 4)
        def m5(k):
            n, sg = divmod(k, 4); d = V(ACCV + 4 * sg, 4)
            return I("%s %s, %s, %s, %s" % (MF, d, ar(k), V(GB + 4 * n, 4), d if n else "0"))
        mf = []; at = {}; k5 = 0; fin = None
        for i in range(224):
            k, dl = divmod(i, 4)
            if order[k][1] == 6: dl = (dl + 1) % 4
            at[(k, i % 4)] = len(mf); mf.append(m4(k, dl))
            for _ in range(self.o("r5", 2)):
              if i >= s5 and k5 < 64:
                at[k5] = len(mf); mf.append(m5(k5)); k5 += 1
            if k5 == 64 and fin is None and len(mf) >= at[63] + 12:
                fin = len(mf)
                mf += [I("%s %s, %s, %s, %s" % (MF, V(AO + 4 * a_, 4), V(PK5 + 4 * v, 4), A(224 + (2 * a_ + v) * 4, 4), V(AO + 4 * a_, 4) if v else "0")) for v in range(2) for a_ in range(4)]
        G = Gaps(mf); N = len(mf)
        for k in range(1, 56): G.put(at[(k, 0)] - 1, I("@must h%d" % k))
        for k in range(64):
            pos = at[k - LA] if k >= LA else at[0] - (LA - k)
            if k % 16 == 0: G.put(pos - 1, I("@must u%d\ns_barrier" % (k // 16)))
            G.put(pos, J("ds_read_b128 {r}, {vw} offset:{o}", tag="a%d" % k, r=ar(k), o=(k % 4) * 16384 + (k // 4) * 1024))
            if k % 2 == 0: G.put(at[k] - 1, I("@wait a%d" % (k + 1)))
        G.put(at[0] + 1, J("buffer_load_dwordx4 v[20:23], v8, {SWS}, {t0} offen sc1"))
        hd = self.o("hd", 48)
        def ud(c):
            return [J("s_add_u32 m0, {t3}, {o}", o=c * 4096)] + ([J("s_add_u32 {t2}, {t2}, 4096")] if c else []) + \
                   [J("buffer_load_dwordx4 {l16b}, {SWS}, {t2} offen offset:{o} sc1 lds", tag="u%d" % c, o=1024 * k) for k in range(4)]
        items = sorted([(at[(k, 0)], 1, k) for k in range(npre, 56)] + [((at[16 * c - LA] if c else at[0] - LA) - 1, 0, c) for c in range(4)])
        last = 0
        if ef:
            up = self.o("up", 8)
            if usig: G.put(up, usig[0] + self.stamp(6, 3))
            if usig and usig[1:]: G.stream(usig[1:], 70, 110)
            G.put(self.o("lp", 10), I(self.POLL_LD, tag="poll"))
            last = self.o("lc", 40)
            G.put(last, I("@wait poll") + self.spin(self.POLL_LD) + self.stamp(7, 3))
            G.stream(sC[:3], last + 1, last + 5, spread=False)
            e = G.stream(self.TT(st["t"], 7), 8, 46) if st["t"] < 7 else 0
            assert e < 47
            e = G.stream(single(adr[:16]) + sC[3:], 0, 62, spread=False)
            G.stream(single(adr[16:]), max(e, up) + 1, 70, spread=False)
        for need, kind, k in items:
            want = max(last, need - hd)
            if kind == 1:
                w_ = max(want, last + 1, at[(k - NS, 3)] if k >= NS else 0)
                last = G.stream(hload(k), w_, w_ + 4, spread=False)
            else:
                if k == 0:
                    G.put(max(self.o("lc", 40) + 6 if ef else 0, want - self.o("pgap", 44)), I(self.POLL_LD, tag="poll"))
                    G.put(want, self.stamp(8) + I("@wait poll") + self.spin(self.POLL_LD, sleep=self.o("slu", 0)))
                    G.stream(single(J("s_xor_b32 {wo1}, {wo0}, {o}\nv_mov_b32 {pa}, 0", o=self.pair << 10)), want + 1, want + 20)
                last = G.stream(ud(k), want + 1, want + 11)
        def red_w(t): return [I("ds_write_b128 v%d, %s offset:%d" % (32 + dl, V(128 + (dl * 4 + t % 4) * 4, 4), ro[t % 4]), tag="rw%d" % t) for dl in (1, 2, 3)]
        def red_r(t): return [I("ds_read_b128 %s, v32 offset:%d" % (V(128 + (dl * 4 + t % 4) * 4, 4), ro[t % 4] + (dl - 1) * 1024), tag="rr%d" % t) for dl in (1, 2, 3)]
        def red_a(t):
            b = 128 + 4 * (t % 4)
            return single([I("v_add_f32 v%d, v%d, v%d" % (b + o + r, b + o + r, b + o + q + r)) for o, q in ((0, 16), (32, 16), (0, 32)) for r in range(4)])
        def mix(a_):
            b = 128 + 4 * a_
            return single(I("v_pk_add_f32 %s, %s, %s\nv_pk_add_f32 %s, %s, %s" % (V(b, 2), V(b, 2), V(RC + 4 * a_, 2), V(b + 2, 2), V(b + 2, 2), V(RC + 4 * a_ + 2, 2))) +
                          I("\n".join("v_fma_f32 v%d, v%d, v%d, v%d" % (b + r, b + r, 20 + a_, AO + 4 * a_ + r) for r in range(4))) +
                          cvt(56 + 2 * a_, b, b + 1) + cvt(57 + 2 * a_, b + 2, b + 3) + I("ds_write_b64 v6, %s offset:%d" % (V(56 + 2 * a_, 2), a_ * 2048), tag="ow%d" % a_))
        left = []; sent = 0; b16 = self.o("b16", 1); wg = self.o("wg", 4)
        rounds = {0: [[0], [1], [2], [3], [4], [5], [6]], 1: [[0, 1], [2, 3], [4, 5], [6]], 2: [[0, 1], [2, 3], [4, 5, 6]], 3: [[0, 1, 2], [3], [4, 5, 6]]}[self.o("rnd", 1)]
        if len(rounds[0]) > 1: G.put(at[(pos_[(1, 6)], 0)] - self.o("eb", 10), I("@must t6\ns_barrier"))
        for rd_ in rounds:
            for t in rd_:
                e = at[(pos_[(t, 6)], 3)]
                e = G.stream(red_w(t), e + 3, e + (9 if t == rd_[-1] else 20))
            G.put(e + wg, I("@must rw%d t6\ns_barrier" % rd_[-1]))
            e = G.stream([g for t in rd_ for g in red_r(t)], e + wg + 1, e + wg + 2 + 4 * len(rd_), spread=False)
            e0_ = e + 5 - 3 * (len(rd_) - 1)
            for t in rd_:
                ra = [I("@wait rr%d" % t)] + red_a(t); nfit = 0 if left else max(0, min(13, 2 * (N - e0_ - 2)))
                if nfit: e0_ = G.stream(ra[:nfit], e0_, min(N, e0_ + 11), spread=False)
                left += ra[nfit:]
                if t < 4 and b16:
                    o = 24 + 4 * (t // 2) + 2 * (t & 1); b = 128 + 4 * t
                    e0_ = sent = G.stream([cvt(o, b, b + 1), cvt(o + 1, b + 2, b + 3)] + ([J("buffer_store_dwordx4 {r}, {l16b}, {SWS}, s79 offen offset:{o} sc1", tag="snd", r=V(o - 2, 4), o=(t // 2) * 1024)] if t & 1 else []), e0_, e0_ + 4, spread=False)
                elif t < 4: sent = G.stream([J("buffer_store_dwordx4 {r}, {l16b}, {SWS}, s79 offen offset:{o} sc1", tag="snd", r=V(128 + 4 * t, 4), o=t * 1024)], e0_ + 1, e0_ + 4)
                assert t >= 4 or sent + 2 < at[(pos_[(t + 4, 0)], 0)]
        l = self.lab("nop")
        fp = sent + self.o("sgap", 44)
        G.put(fp, I("@must snd") + J("s_barrier\ns_cmp_lg_u32 {w}, 0") +
              J("s_cbranch_scc1 {l}\ns_mov_b64 exec, 1\nbuffer_store_dword v19, v0, {SWS}, {wo0} offen sc1\ns_mov_b64 exec, -1\n{l}:", raw=True, l=l))
        rc = N - self.o("rc", 40); assert (b16 or rc > at[40]) and rc - self.o("rgap", 30) > fp
        G.put(rc - self.o("rgap", 30), I(self.POLL_LD, tag="poll"))
        G.put(rc, I("@wait poll") + self.spin(self.POLL_LD))
        G.stream([J("buffer_load_dwordx4 {r}, {l16b}, {SWS}, s78 offen offset:{o} sc1", r=V((24 if b16 else RC) + 4 * t, 4), o=t * 1024) for t in range(2 if b16 else 4)], rc + 1, rc + 6, spread=False)
        if b16: left += single([J("v_lshlrev_b32 v{d0}, 16, v{s}\nv_and_b32 v{d1}, {hi16}, v{s}", d0=RC + 2 * i, d1=RC + 2 * i + 1, s=24 + i) for i in range(8)])
        G.stream(single(self.pack(PK5, ACCV) + self.pack(PK5 + 4, ACCV + 8)), at[63] + 4, fin - 1, spread=False)
        gm = I("\n".join("v_mul_f32 v%d, %s, v%d" % (GB + 16 + a_, fhex(2.0 ** -19), 20 + a_) for a_ in range(4)))
        gm += I("\n".join("v_sub_f32 v%d, 1.0, v%d" % (20 + a_, 20 + a_) for a_ in range(4)))
        e = G.stream(single(gm), fin, fin + 8, spread=False)
        e = G.stream(single(I("\n".join("v_mul_f32 v%d, v%d, v%d" % (AO + i, GB + 16 + i // 4, AO + i) for i in range(16)))), max(e, fin + 9), min(N, fin + 30), spread=False)
        ost = lambda h_: J("buffer_store_dwordx4 {r}, {x}, {SOUT}, s{so} offen {f}", r=V(36 + 4 * h_, 4), so=76 + h_, f=("", "sc1", "nt")[self.o("ost", 1)])
        for i in range(10): G.put(min(32 * i, len(G) - 1), self.stamp(i, 2))
        go = G.out(); x_ = self.o("strip", 0)
        if x_ & 1024: go = [i for i in go if i.op != "s_barrier"]
        if x_ & 2048: go = [Ins("s_nop 0", i.tag) if i.cls == "ds" and i.tag and i.tag[:2] in ("rw", "rr") else i for i in go]
        if x_ & 16384: go = [i for i in go if not (i.cls == "mfma" and i.text.split()[1] in ("v[48:51],", "v[52:55],", "v[56:59],", "v[60:63],")) and not (i.tag and i.tag[0] == "a")]
        if x_ & 4096: go = [i for i in go if not (i.raw and "s_mem" not in i.op)]
        p += go
        p += self.stamp(9)
        nl = self.o("nl", 4)
        p += flat(left[:nl]) + flat(weave(red_w(7), left[nl:] + mix(0) + mix(1), self.o("nl2", 0))) + I("@wait rw7 ow1\ns_barrier") + flat(red_r(7)) + I("ds_read_b128 v[36:39], v7") + flat(mix(2))
        for o, q in ((0, 16), (32, 16), (0, 32)):
            for hh in (0, 2): p += I("v_pk_add_f32 %s, %s, %s" % (V(140 + o + hh, 2), V(140 + o + hh, 2), V(140 + o + q + hh, 2)))
        p += ost(0) + flat(mix(3)) + I("@waitlg0\ns_barrier\nds_read_b128 v[40:43], v7 offset:4096") + ost(1)
        return p + self.ending(ffn)

    def ending(self, ffn):
        p = []
        if "diag" in self.kw:
            i = self.kw["diag"]; l = self.lab("dg"); who = self.o("who", 0)
            use = i >= 0 and (who == 0 or (who == 1) == ffn)
            p += I("@waitvm0") + self.stamp(10) + I("s_waitcnt lgkmcnt(0)")
            p += I("s_add_u32 s3, %s, 5000" % ("s%d" % (48 + 2 * i) if use else "s100"))
            if "dx" in self.kw: p += I("s_and_b32 s98, s2, 7\ns_cmp_eq_u32 s98, %d\ns_cselect_b32 s3, s3, s100" % self.kw["dx"])
            p += I("%s:\ns_sleep 1\ns_memrealtime s[98:99]\ns_waitcnt lgkmcnt(0)\ns_sub_u32 s98, s98, s3\ns_cmp_lt_i32 s98, 0\ns_cbranch_scc1 %s" % (l, l), raw=True)
        elif self.prof:
            p += I("@waitvm0") + self.stamp(10) + I("s_waitcnt lgkmcnt(0)")
            p += J("s_lshl_b32 s3, s2, 2\ns_add_u32 s3, s3, {w}\ns_lshl_b32 s3, s3, 6\ns_add_u32 s3, s3, {o}\nv_mov_b32 v32, s100", o=WS_PROF)
            for i in range(11): p += I("v_mov_b32 v%d, s%d" % (33 + i, 48 + 2 * i))
            p += I("s_mov_b64 exec, 1")
            for i in range(3): p += I("buffer_store_dwordx4 %s, v0, %s, s3 offen offset:%d" % (V(32 + 4 * i, 4), SWS, 16 * i))
        return p + I("s_endpgm")

    def text(self):
        st = {}
        hdr = open("gated_mix__spectral_gfnet__glu_gated_reglu__prompt.s.ref").read().split("; Override launch")[0]
        out = [hdr.rstrip(), "; One persistent launch: 256 workgroups (one per CU) x 4 waves. Written by my own generator scripts.",
               "; @launch grid=(256,1,1) block=(256,1,1) lds=163840", '.amdgcn_target "amdgcn-amd-amdhsa--gfx950"', ".text",
               ".globl " + NAME, ".p2align 8", ".type %s,@function" % NAME, NAME + ":"]
        prog = self.prologue() + self.p12f() + I("L_dft:") + self.p12d() + I("L_end:\ns_endpgm")
        x = self.o("strip", 0)
        if x & 1: prog = [i for i in prog if i.cls != "mfma"]
        if x & 2: prog = [i for i in prog if not (i.cls == "ds" and i.op.startswith("ds_read"))  or i.tag and not seen_tag(i.tag)]
        if x & 4: prog = [i if not (i.cls == "vmem" and i.tag == "pub") else Ins(i.text.replace("v14", "v0").replace("dwordx4", "dword").replace(i.text.split()[1], "v0,"), i.tag) for i in prog]
        import re as _re
        for bit, pat in ((8, r"d\d+$"), (16, r"h\d+"), (512, r"snd"), (32, r"u\d$"), (64, r"cld$"), (128, r"w\d$"), (256, r"x\d$")):
            if x & bit: prog = [Ins("s_nop 0", i.tag) if i.cls == "vmem" and i.tag and _re.match(pat, i.tag) and "sc1 lds" not in (i.text if bit == 256 else "") else i for i in prog]
        body = finalize(prog, st)
        if self.o("al", 1): body, st["align"] = align8(body)
        out += body
        out += ['.section .rodata,"a"', ".p2align 6", ".amdhsa_kernel " + NAME, "  .amdhsa_next_free_vgpr 512", "  .amdhsa_next_free_sgpr 102",
                "  .amdhsa_accum_offset 256", "  .amdhsa_group_segment_fixed_size 0", "  .amdhsa_kernarg_size 88", "  .amdhsa_user_sgpr_count 2",
                "  .amdhsa_user_sgpr_kernarg_segment_ptr 1", "  .amdhsa_system_sgpr_workgroup_id_x 1", "  .amdhsa_float_denorm_mode_32 3", ".end_amdhsa_kernel"]
        self.stats = st; self.body = body
        return "\n".join(out) + "\n"

def main(Gen):
    import argparse
    ap = argparse.ArgumentParser()
    ap.add_argument("out"); ap.add_argument("--prof", action="store_true"); ap.add_argument("--opt", default=""); ap.add_argument("--est", action="store_true")
    a = ap.parse_args()
    kw = dict((k, int(v)) for k, v in (x.split("=") for x in a.opt.split(",") if x))
    g = Gen(prof=a.prof, **kw)
    open(a.out, "w").write(g.text())
    print(g.stats)
    if a.est:
        row = []; gap = None; nm = 0; over = 0; skip = None
        for l in g.body:
            x = Ins(l.strip())
            if skip:
                if x.text == skip + ":": skip = None
                continue
            if x.op in ("s_cbranch_vccz", "s_cbranch_scc1") and "L_" not in x.text: skip = x.text.split()[1]
            if x.cls == "label":
                if x.text == "L_dft:": row.append(over); row.append("|"); nm = 0; over = 0; gap = None
                continue
            if x.cls == "mfma":
                if gap is not None and len(gap) < 14: over += gap_over(gap) + sum(int(y.text.split()[1]) for y in gap if y.op == "s_nop")
                gap = []; nm += 1
                if nm % 64 == 0: row.append(over); over = 0
            elif gap is not None: gap.append(x)
        print(row, over)

if __name__ == "__main__":
    main(Gen)
```

```python
import sys
sys.path.insert(0, "tools")
from prog import *

NAME = "gated_mix__spectral_gfnet__glu_gated_reglu__prompt_kernel"
WS_H, WS_X1, WS_U, WS_G, WS_FLAG, WS_CNT, WS_PROF = 0, 0x800000, 0xA00000, 0xC38000, 0xC10000, 0xC30000, 0xF000000
NCLR = 58 if 'ef=1' in ' '.join(sys.argv) else 50
WS_PF, WS_EF, WS_P = 0xC3A000, 0xC42000, 0xD00000
SPIN_LIMIT = 300000
MF = "v_mfma_f32_16x16x32_bf16"
SX, SWG, SWU, SWD, SWS, SOUT, SWR, SWI, SGW, SDBG = [S(8 + 4 * i, 4) for i in range(10)]
NM = dict(w="s4", b12="s5", ni="s6", rot="s7", xcd="s70", loc="s71", wds="s70", wde="s71", l3="s72", nt="s73", bp="s74", xn="s75",
          hs="s80", lw4="s80", wo0="s81", wo1="s82", he="s83", wb="s83", k="s94", lw="s84", wdo="s85", t0="s86", t1="s87", t2="s88", t3="s89",
          mask="s[90:91]", hi16="s92", ring="s93", ho="s94", clr="s95", jb="s0", sh="s1", m1="s[96:97]", m2="s[98:99]",
          l16="v1", hi="v2", x="v3", xr="v4", vw="v5", l16b="v14", wd="v15", p="v16", xr2="v16", pa="v17",
          SX=SX, SWG=SWG, SWU=SWU, SWD=SWD, SWS=SWS, SOUT=SOUT, SWR=SWR, SWI=SWI, SGW=SGW, SDBG=SDBG)
vWT = [6, 7, 8, 9]; vDT = [10, 11, 12, 13]; vXA = [22, 23]; vWD = [15, 29, 30, 31]
LDS_RPF, LDS_RPI, LDS_R64I, LDS_STG, LDS_RED = 128 * 1024, 136 * 1024, 144 * 1024, 152 * 1024, 64 * 1024
GB, CO, ACCV = 64, 32, 48
CA2, CB2 = 20, 21
RING = [192, 208, 224, 240, 32]

def J(text, tag=None, raw=False, **kw):
    d = dict(NM); d.update(kw)
    return I(text.format(**d), tag, raw)
def single(g): return [[x] for x in flat(g)]
def chunks(g):
    g = flat(g); out = []; i = 0
    while i < len(g):
        j = i
        if g[i].op.startswith("v_cmp") and ("s", 106) in g[i].dst:
            k = i + 1
            while k < len(g) and not (g[k].op.startswith("v_cmp") and ("s", 106) in g[k].dst):
                if ("s", 106) in g[k].src: j = k
                k += 1
            j = i
        while j + 1 < len(g) and g[j + 1].op.startswith(("s_cselect", "s_subb", "s_addc")): j += 1
        out.append(g[i:j + 1]); i = j + 1
    return out
def cvt(d, a, b): return I("v_cvt_pk_bf16_f32 v%d, v%d, v%d" % (d, a, b))

_seen = set()
def seen_tag(t):
    r = t in _seen; _seen.add(t); return r

class Gen:
    def __init__(self, prof=False, **kw):
        self.prof = prof; self.kw = kw; self.nl = 0; self.nsp = {}
        self.pair = kw.get("pair", 4); self.NU = 7 if self.pair else 14; self.ef = kw.get("ef", 0) and self.pair
    def o(self, k, d): return self.kw.get(k, d)
    def lab(self, b):
        self.nl += 1; return "L%s_%d" % (b, self.nl)
    def clk(self): return "s_memtime" if self.o("cyc", 0) else "s_memrealtime"
    def stamp(self, i, mode=0):
        if not self.prof or self.o("diag", i) != i or (self.o("pm", 0) != mode and i != 10): return []
        return I("%s %s" % (self.clk(), S(48 + 2 * i, 2)), raw=True)
    def srd(self, name, lo, size, back=0):
        b = int(name[2:name.index(":")])
        if back: g = I("s_sub_u32 s%d, s%d, %d\ns_subb_u32 s%d, s%d, 0" % (b, lo, back, b + 1, lo + 1))
        else: g = I("s_mov_b64 %s, %s" % (S(b, 2), S(lo, 2)))
        return g
    def srd_const(self, name, size):
        b = int(name[2:name.index(":")])
        return I("s_mov_b32 s%d, 0x%x\ns_mov_b32 s%d, 0x20000" % (b + 2, size, b + 3))
    def spin(self, load, sleep=None):
        if sleep is None: sleep = self.o("sl", 0)
        ok, sp = self.lab("ok"), self.lab("spin")
        cmp_ = "v_cmp_ne_u32 vcc, 1, v16"
        if self.prof and self.o("pm", 0) == 6 and not getattr(self, "_in", 0):
            self._in = 1; body = self.spin(load, sleep); self._in = 0
            k = self.nsp[self.ffn] = self.nsp.get(self.ffn, -1) + 1
            return I("s_mov_b32 s3, 0") + body + I("s_mul_i32 s3, s3, 100\ns_add_u32 s%d, s3, s100" % (48 + 2 * k))
        return I(cmp_) + I("s_cbranch_vccz %s" % ok, tag="first", raw=True) + I("""s_mov_b32 s3, 0
%s:
%s%s
s_waitcnt vmcnt(0)
%s
s_add_u32 s3, s3, 1
s_cmp_lt_u32 s3, %d
s_cbranch_vccz %s
s_cbranch_scc1 %s
%s:""" % (sp, "s_sleep %d\n" % sleep if sleep else "", load, cmp_, SPIN_LIMIT, ok, sp, ok), raw=True)

    def cheb(self, X, Y, K, pk=True):
        if not pk: return I("\n".join("v_fma_f32 v%d, v%d, v%d, -v%d" % (X + q, K, Y + q, X + q) for q in range(8)))
        return I("\n".join("v_pk_fma_f32 %s, %s, %s, %s neg_lo:[0,0,1] neg_hi:[0,0,1]" % (V(X + 2 * q, 2), V(K, 2), V(Y + 2 * q, 2), V(X + 2 * q, 2)) for q in range(4)))
    def direct(self, X, spec):
        g = []; src = []
        for i, (d, K, b) in enumerate(spec):
            if K == 0: src.append(b)
            else:
                g += I("v_fmamk_f32 v%d, %s, %s, %s" % (X + i, d, fhex(K), b)); src.append("v%d" % (X + i))
        return g + I("\n".join("v_cos_f32 v%d, %s" % (X + i, src[i]) for i in range(8)))
    def pack(self, dst, X, first=None):
        return flat([cvt(dst + q, first if (q == 0 and first) else X + 2 * q, X + 2 * q + 1) for q in range(4)])

    def gen_G(self, t, pk):
        X, Y, K = t, t + 8, t + 16
        d, a0 = V(t + 18), V(t + 19)
        pre = J("""s_lshl_b32 {t0}, {nt}, 6
s_lshl_b32 {t1}, {w}, 4
s_add_u32 {t0}, {t0}, {t1}
v_add_u32 {d}, {t0}, {l16}
v_cvt_f32_u32 {d}, {d}
v_mul_f32 {d}, {c512}, {d}
v_mul_f32 {k0}, 0x41800000, {d}
v_cos_f32 {k0}, {k0}
v_and_b32 {e0}, 2, {hi}
v_lshlrev_b32 {e0}, 2, {e0}
v_cvt_f32_u32 {e0}, {e0}
v_and_b32 {e1}, 1, {hi}
v_cvt_f32_u32 {a0}, {e1}
v_mul_f32 {a0}, 0x3e800000, {a0}
v_fmac_f32 {a0}, {d}, {e0}
v_add_f32 {k0}, {k0}, {k0}
v_and_b32 {e0}, {e1}, v0
v_mov_b32 {k1}, {k0}
v_lshl_or_b32 {e0}, {e0}, 31, 0.5""", d=d, a0=a0, c512=fhex(1 / 512), k0=V(K), k1=V(K + 1), e0=V(t + 20), e1=V(t + 21))
        kap = [2 * (i & 3) + (i >> 2) for i in range(8)]
        gs = [pre, self.direct(X, [(d, kap[i], a0) for i in range(8)]), self.direct(Y, [(d, 16 + kap[i], a0) for i in range(8)]),
              J("v_cmp_gt_u32 vcc, 2, {hi}") + self.pack(GB + 4, Y) + I("v_cndmask_b32 v%d, v%d, v%d, vcc" % (t + 20, X, t + 20)) + self.pack(GB, X, first=t + 20)]
        for n in range(2, 16):
            a, b = (X, Y) if n % 2 == 0 else (Y, X)
            gs.append(self.cheb(a, b, K, pk) + self.pack(GB + 4 * n, a))
        return gs

    def gen_R(self, part, t, base=None):
        X = t; r = [V(t + 8 + i) for i in range(14)]
        n = dict(q=r[0], k=r[1], ph=r[2], dl=r[3], b0=r[4], b1=r[5], d0=r[6], d1=r[7], o0=r[8], o1=r[9], qt=r[10], h2=r[11], hf=r[12], adr=r[13],
                 c=fhex(1 / 2048), c64=fhex(1 / 64), base=LDS_RPF + 8192 * part if base is None else base)
        g = J("""s_lshl_b32 {t0}, {w}, 11
s_add_u32 {t0}, {t0}, {base}
v_add_u32 {adr}, {t0}, {l16b}
v_cvt_f32_u32 {hf}, {hi}
v_mov_b32 {qt}, 0x3e800000""", **n)
        if part < 2: g += J("s_cmp_eq_u32 {bp}, 0\ns_cselect_b64 {m1}, -1, 0\ns_cselect_b32 {t1}, 32, 64")
        masks = J("s_and_b32 vcc_lo, s96, 0xaaaaaaaa\ns_mov_b32 vcc_hi, vcc_lo\ns_andn2_b64 {m2}, {m1}, vcc")
        if part == 0:
            g += J("""s_and_b32 {t0}, {w}, 1
s_lshl_b32 {t0}, {t0}, 4
v_add_u32 {q}, {t0}, {l16}
v_mul_u32_u24 {k}, {t1}, {q}
v_add_u32 {k}, {bp}, {k}
s_lshr_b32 {t2}, {w}, 1
s_cselect_b64 {m2}, -1, 0
v_cmp_eq_u32 vcc, 0, {k}
v_cvt_f32_u32 {ph}, {t2}
v_mul_f32 {ph}, 0xbe800000, {ph}
v_cvt_f32_u32 {dl}, {k}
v_mul_f32 {dl}, {c}, {dl}
s_and_b64 vcc, vcc, {m2}
v_cndmask_b32 {dl}, {dl}, 0.5, vcc
v_cndmask_b32 {ph}, {ph}, 0, vcc
v_add_f32 {h2}, {hf}, {hf}
v_fma_f32 {b0}, {dl}, {h2}, {ph}
v_add_f32 {b1}, {qt}, {b0}
v_cndmask_b32 {b1}, {b1}, {b0}, {m1}""", **n) + masks + J("""v_cndmask_b32 {d0}, {dl}, 0, vcc
v_cndmask_b32 {b0}, {b0}, {qt}, vcc
v_cndmask_b32 {d1}, {dl}, 0, {m2}
v_cndmask_b32 {b1}, {b1}, {qt}, {m2}""", **n)
            specs = [[((r[6], r[7])[i & 1], 16 * v + 8 * (i // 4) + (i % 4) // 2, (r[4], r[5])[i & 1]) for i in range(8)] for v in range(2)]
        elif part == 1:
            g += masks + J("""s_lshl_b32 {t0}, {w}, 3
v_lshrrev_b32 {q}, 1, {l16}
v_add_u32 {q}, {t0}, {q}
v_cvt_f32_u32 {k}, {q}
v_mul_f32 {k}, {c}, {k}
v_cvt_f32_u32 {ph}, {t1}
v_mul_f32 {dl}, {k}, {ph}
v_cvt_f32_u32 {ph}, {bp}
v_mul_f32 {b0}, {k}, {ph}
v_and_b32 {q}, 1, v0
v_cvt_f32_u32 {ph}, {q}
v_cndmask_b32 {ph}, {ph}, 0, {m1}
v_fmac_f32 {b0}, {qt}, {ph}
v_mul_f32 {ph}, 4.0, {hf}
v_fmac_f32 {b0}, {dl}, {ph}
v_sub_f32 {b1}, {b0}, {qt}
v_cndmask_b32 {d1}, {dl}, 0, {m2}
v_cndmask_b32 {o0}, {b0}, {qt}, {m2}
v_cndmask_b32 {o1}, {b1}, {qt}, {m2}
s_and_b64 {m2}, {m2}, 0xffff
v_cndmask_b32 {d0}, {dl}, 0, vcc
v_cndmask_b32 {b0}, {b0}, {qt}, vcc
v_cndmask_b32 {b1}, {b1}, {qt}, vcc
v_mul_f32 {k}, 0x44800000, {k}
v_cndmask_b32 {k}, {b1}, {k}, {m2}""", **n)
            specs = [[((r[6], r[7])[i & 1], 16 * (i // 4) + i % 4, ((r[4], r[5]), (r[8], r[9]))[i & 1][v]) for i in range(8)] for v in range(2)]
            specs[1][0] = (r[6], 0, r[1])
        else:
            g += J("""s_lshl_b32 {t0}, {w}, 4
v_add_u32 {q}, {t0}, {l16}
v_cvt_f32_u32 {q}, {q}
v_mul_f32 {dl}, {c64}, {q}
v_add_f32 {h2}, {hf}, {hf}
v_mul_f32 {b0}, {dl}, {h2}
v_sub_f32 {b1}, {b0}, {qt}
v_mul_f32 {q}, 0.5, {q}
s_mov_b64 {m2}, 0xffff
v_cndmask_b32 {q}, {b1}, {q}, {m2}""", **n)
            specs = [[(r[3], 16 * v + 8 * (i // 4) + (i % 4) // 2, (r[4], r[5])[i & 1]) for i in range(8)] for v in range(2)]
            specs[0][1] = (r[3], 0, r[0])
        for v in range(2):
            g += self.direct(X, specs[v]) + self.pack(X, X) + I("ds_write_b128 %s, %s offset:%d" % (r[13], V(X, 4), v * 1024), tag="rtab")
        return chunks(g)

    def gen_T(self):
        r = [V(112 + i) for i in range(8)]
        gs = [J("""s_lshr_b32 {t0}, {xn}, 1
s_lshl_b32 {t0}, {t0}, 2
s_add_u32 {t0}, {t0}, {w}
s_lshl_b32 {t0}, {t0}, 5
s_and_b32 {t1}, {xn}, 1
s_add_u32 {t0}, {t0}, {t1}
v_lshl_add_u32 {j}, {l16}, 1, {t0}
v_cvt_f32_u32 {d0}, {j}
v_cmp_eq_u32 vcc, 0, {j}
v_mul_f32 {d0}, {c}, {d0}
v_mov_b32 {b1}, 0x3e800000
s_lshl_b32 {t0}, {wb}, 6
v_lshl_add_u32 {h4}, {hi}, 2, {t0}
v_cvt_f32_u32 {h4}, {h4}
v_cndmask_b32 {d1}, {d0}, 0.5, vcc
v_cndmask_b32 {b1}, {b1}, 0, vcc
v_mul_f32 {b0}, {d0}, {h4}
v_fmac_f32 {b1}, {d1}, {h4}
v_mul_f32 v104, 0x42000000, {d0}
v_mul_f32 v106, 0x42000000, {d1}
v_cos_f32 v104, v104
v_cos_f32 v106, v106
s_lshl_b32 {t0}, {w}, 11
v_add_u32 {adr}, {t0}, {l16b}
v_add_f32 v104, v104, v104
v_add_f32 v106, v106, v106
v_mov_b32 v105, v104
v_mov_b32 v107, v106""", j=r[0], d0=r[2], d1=r[3], b0=r[4], b1=r[5], h4=r[6], adr=r[7], c=fhex(1 / 512))]
        for n in range(8):
            for tt in range(2):
                X, Y = 64 + 16 * tt, 72 + 16 * tt
                a, b = (X, Y) if n % 2 == 0 else (Y, X)
                g = self.direct(a, [(r[2 + tt], 32 * n + 16 * (i // 4) + i % 4, r[4 + tt]) for i in range(8)]) if n < 2 else self.cheb(a, b, 104 + 2 * tt, n < self.o("ntp", 8))
                gs.append(g + self.pack(96 + 4 * tt, a) + I("ds_write_b128 %s, %s offset:%d" % (r[7], V(96 + 4 * tt, 4), n * 8192 + tt * 1024), tag="ttab%d" % (n // 2)))
        sel = J("""s_lshl_b32 {t1}, {t1}, 15
v_lshrrev_b32 v24, 1, {hi}
v_mul_u32_u24 v24, {t1}, v24
v_or_b32 v24, 0x3f80, v24
v_and_b32 v25, 1, v0
v_lshlrev_b32 v25, 4, v25
v_lshlrev_b32 v24, v25, v24
v_lshrrev_b32 v25, 1, {l16}
v_and_b32 v26, 1, {hi}
v_lshlrev_b32 v27, 2, v26
v_xor_b32 v27, v25, v27
v_cmp_eq_u32 vcc, 0, v27
v_cmp_eq_u32 {m1}, 1, v27
v_cmp_eq_u32 {m2}, 2, v27
v_cndmask_b32 v20, 0, v24, vcc
v_cmp_eq_u32 vcc, 3, v27
v_cndmask_b32 v21, 0, v24, {m1}
v_cndmask_b32 v22, 0, v24, {m2}
v_cndmask_b32 v23, 0, v24, vcc
v_xor_b32 v24, v26, v25
v_lshlrev_b32 v24, 4, v24
v_lshl_add_u32 v24, {l16}, 7, v24
v_lshrrev_b32 v25, 1, {hi}
v_lshl_add_u32 v24, v25, 11, v24
v_add_u32 v6, {ring}, v24
v_xor_b32 v7, 32, v6
v_xor_b32 v8, 64, v6
v_xor_b32 v9, 0x60, v6""")
        late = J("""s_lshl_b32 {t0}, {w}, 4
v_add_u32 v24, {t0}, {l16}
v_lshrrev_b32 v18, 1, v24
v_cvt_f32_u32 v18, v18
v_mul_f32 v18, {c}, v18
v_and_b32 v19, 1, v24
v_cvt_f32_u32 v19, v19
v_mul_f32 v19, 0xbe800000, v19
v_cmp_eq_u32 vcc, 1, v24
v_lshlrev_b32 v24, 2, {hi}
v_cvt_f32_u32 v24, v24
s_lshl_b32 {t0}, {w}, 11
s_add_u32 {t0}, {t0}, {stg}
v_cndmask_b32 v18, v18, 0.5, vcc
v_cndmask_b32 v19, v19, 0, vcc
v_fmac_f32 v19, v18, v24
v_add_u32 {pa}, {t0}, {l16b}""", c=fhex(1 / 64), stg=LDS_STG)
        for v in range(2):
            late += self.direct(24, [("v18", 32 * v + 16 * (i // 4) + i % 4, "v19") for i in range(8)]) + self.pack(24, 24) + \
                    J("ds_write_b128 {pa}, v[24:27] offset:{o}", tag="r64f", o=v * 1024)
        return gs, sel, late

    def wd_setup(self):
        g = J("""v_lshrrev_b32 v24, 3, v0
v_bfe_u32 v25, v0, 1, 2
v_xor_b32 v25, v25, {hi}
v_lshlrev_b32 v25, 5, v25
v_lshl_add_u32 v25, v24, 10, v25
v_and_b32 v24, 1, v0
v_lshl_add_u32 {wd}, v24, 4, v25
v_add_u32 v29, 7168, {wd}
v_add_u32 v30, 7168, v29
v_add_u32 v31, 7168, v30
s_mul_i32 {wds}, {w}, {c}
s_lshl_b32 {t0}, {nt}, 7
s_add_u32 {wds}, {wds}, {t0}
s_add_u32 {wde}, {wds}, {c}
v_bfe_u32 v24, v0, 2, 3
v_lshrrev_b32 v25, 5, v0
v_lshlrev_b32 v25, 10, v25
v_lshl_add_u32 v25, v24, 7, v25
v_and_b32 v26, 3, v0
v_lshl_add_u32 v25, v26, 3, v25
v_add_u32 v25, {ring}, v25
v_lshrrev_b32 v24, 1, v24
v_xor_b32 v24, {w}, v24
v_lshl_add_u32 v10, v24, 5, v25
v_xor_b32 v11, 32, v10
v_xor_b32 v12, 64, v10
v_xor_b32 v13, 0x60, v10
s_mul_i32 {rot}, {nt}, {ra}""", c=448 * 1024, ra=self.o("rnt", 0))
        if self.pair:
            g = [x for x in g if x.cls != "salu"]
            return g + J("s_and_b32 {t0}, {bp}, {m}\ns_cselect_b32 {t0}, 28, 0\ns_mul_i32 {rot}, {w}, 7\ns_add_u32 {rot}, {rot}, {t0}\ns_lshl_b32 {wds}, {rot}, 8\ns_add_u32 {wds}, {wds}, {nt}\ns_lshl_b32 {wds}, {wds}, 7\ns_and_b32 {wde}, {rot}, 1\ns_lshl_b32 {wde}, {wde}, 15", m=self.pair)
        if self.o("rl3", 0) == 1: g += J("s_mul_i32 {t0}, {l3}, 7\ns_add_u32 {t0}, {t0}, 1\ns_lshr_b32 {t0}, {t0}, 1\ns_add_u32 {rot}, {rot}, {t0}")
        if self.o("rl3", 0) == 2: g += J("s_and_b32 {t0}, {l3}, 1\ns_mul_i32 {t0}, {t0}, 7\ns_add_u32 {rot}, {rot}, {t0}")
        if self.o("xo", 0) >= 0:
            return g[:-1] + J(("s_add_u32 {rot}, {nt}, {l3}" if self.o("xnt", 0) else "s_mov_b32 {rot}, {l3}") + "\ns_and_b32 {rot}, {rot}, {m}\ns_lshl_b32 {wde}, {rot}, 15", m=self.o("xo", 0))
        g += J("s_sub_u32 {t0}, {rot}, 14\ns_cselect_b32 {rot}, {rot}, {t0}\ns_lshl_b32 {t0}, {rot}, 15\ns_add_u32 {wdo}, {wds}, {t0}")
        return g
    def loc(self, u):
        if self.pair: return (1, u - 4 if u >= 4 else None, u % 4)
        a, n = (8, self.o("nA", 2)) if self.ffn else (4, 4)
        if a <= u < a + n: return (0, None, (u - a + 4 - n) % 4)
        r1 = [v for v in range(14) if not a <= v < a + n]; k = r1.index(u)
        return (1, r1[k - 4] if k >= 4 else None, k % 4)
    def D(self, u, pre=None):
        reg, prev, slot = (self.loc(u) + (u % 4,))[:3]; gs = []
        if self.ef and u < 6: gs += [J("s_xor_b32 {wdo}, {wde}, {o}", o=(2 * (u % 3) + u // 3) << 15), J("s_add_u32 {wdo}, {wdo}, {wds}")]
        elif self.pair: gs.append(J("s_add_u32 {wdo}, {wds}, {o}", o=u << 15))
        elif self.o("xo", 0) >= 0:
            if u == 12: gs.append(J("s_and_b32 {wde}, {wde}, 0x8000"))
            gs += [J("s_xor_b32 {wdo}, {wde}, {o}", o=u << 15), J("s_add_u32 {wdo}, {wdo}, {wds}")]
        elif u: gs += [J("s_add_u32 {wdo}, {wdo}, 0x8000"), J("s_cmp_ge_u32 {wdo}, {wde}\ns_cselect_b32 {wdo}, {wds}, {wdo}")]
        gs.append(J("s_add_u32 m0, {ring}, {o}", o=(slot * 4096 - (0 if reg else 65536)) & 0xFFFFFFFF))
        if prev is not None: gs.append(I("@must t%d" % prev))
        if pre: gs.append(pre)
        gs += [J("buffer_load_dwordx4 v{r}, {SWD}, {wdo} offen offset:{o} lds", tag="d%d" % u, r=vWD[k], o=1024 * k) for k in range(4)]
        return gs
    def wd_reg(self, u, dl): return (160 + 16 * u if u < 2 else 16 * (u - 2) if u < 12 else 16 * u) + 4 * dl
    def T(self, u):
        gs = []
        if self.loc(u)[0] != (self.loc(u - 1)[0] if u else 1): gs += single(I("\n".join("v_xor_b32 v%d, 0x10000, v%d" % (r, r) for r in vDT)))
        gs.append(I("@must d%d" % u))
        for dl in range(4):
            for j4 in range(2):
                gs.append(I("ds_read_b64_tr_b16 %s, v%d offset:%d" % (A(self.wd_reg(u, dl) + 2 * j4, 2), vDT[dl], (self.loc(u) + (u % 4,))[2] * 4096 + j4 * 2048), tag="t%d" % u))
        return gs
    def DD(self, a, b): return [g for u in range(a, b) for g in self.D(u)]
    def TT(self, a, b): return [g for u in range(a, b) for g in self.T(u)]

    def g_loads(self):
        return single(J("""s_lshl_b32 {t0}, {nt}, 2
s_add_u32 {t0}, {t0}, {w}
s_lshl_b32 {t0}, {t0}, 1
v_lshrrev_b32 v25, 5, v0
v_add_u32 v236, {t0}, v25
v_and_b32 v25, 3, v236
v_lshrrev_b32 v26, 2, v236
v_lshl_add_u32 v25, v25, 4, v26
v_and_b32 v233, 0x1f0, {l16b}
v_lshl_add_u32 v232, v25, 15, v233
v_lshl_add_u32 v232, {bp}, 10, v232
buffer_load_dwordx4 v[216:219], v232, {SX}, 0 offen offset:2048
buffer_load_dwordx4 v[220:223], v232, {SX}, 0 offen offset:2560
buffer_load_dwordx4 v[224:227], v233, {SGW}, 0 offen
buffer_load_dwordx4 v[228:231], v233, {SGW}, 0 offen offset:512""", tag="gld"))
    def g_calc(self):
        g = I("@wait gld")
        g += I("\n".join("v_dot2_f32_bf16 v%d, v%d, v%d, 0" % (232 + i, 216 + i, 224 + i) for i in range(4)))
        g += I("\n".join("v_dot2_f32_bf16 v%d, v%d, v%d, v%d" % (232 + i, 220 + i, 228 + i, 232 + i) for i in range(4)))
        g += I("v_lshlrev_b32 v236, 2, v236\nv_add_f32 v232, v232, v233\nv_add_f32 v234, v234, v235\nv_add_f32 v232, v232, v234")
        for sh in (1, 2, 4, 8):
            g += I("v_add_f32_dpp v232, v232, v232 row_shr:%d row_mask:0xf bank_mask:0xf bound_ctrl:1" % sh)
        g += I("v_add_f32_dpp v232, v232, v232 row_bcast:15 row_mask:0xa bank_mask:0xf")
        g += I("v_mul_f32 v232, 0xbfb8aa3b, v232\nv_exp_f32 v232, v232\nv_add_f32 v232, 1.0, v232\nv_rcp_f32 v232, v232")
        return single(g)
    def g_store(self):
        return J("s_lshl_b32 {t0}, {bp}, 8\ns_add_u32 {t0}, {t0}, {g}\ns_mov_b32 exec_lo, 0x80000000\ns_mov_b32 exec_hi, 0x80000000", g=WS_G) + \
               J("buffer_store_dword v232, v236, {SWS}, {t0} offen sc1", tag="gst") + I("s_mov_b64 exec, -1")
    def c_loads(self, acc=False):
        return chunks(J(self.creg(acc, """s_cmp_eq_u32 {bp}, 0
s_cselect_b32 {t1}, 32, 64
s_cselect_b64 {mask}, 0xffff, 0
s_and_b32 {t0}, {w}, 1
s_lshl_b32 {t0}, {t0}, 4
v_lshrrev_b32 v27, 2, v0
v_add_u32 v27, {t0}, v27
v_mul_u32_u24 v27, {t1}, v27
v_add_u32 v27, {bp}, v27
v_cmp_eq_u32 vcc, 0, v27
v_sub_u32 v28, 0x800, v27
v_mov_b32 v26, 0x400
s_cmp_lt_u32 {w}, 2
s_cselect_b64 {m1}, -1, 0
v_cndmask_b32 v28, v28, v26, vcc
v_cndmask_b32 v27, v28, v27, {m1}
v_mul_u32_u24 v27, 514, v27
v_and_b32 v28, 48, {l16b}
s_lshl_b32 {t2}, {jb}, 6
s_sub_u32 {t2}, {t2}, {sh}
v_add3_u32 v20, v28, v27, {t2}""")))
    def c_fetch(self, arr):
        l = self.lab("ev"); srd = (SWR, SWI)[arr]
        g = [J("s_cmp_eq_u32 {sh}, 0") + J("s_cbranch_scc1 {l}\nbuffer_load_dword v{d}, v20, {srd}, 0 offen offset:16\n{l}:", raw=True, l=l, d=40 + arr, srd=srd),
             J("buffer_load_dwordx4 {r}, v20, {srd}, 0 offen", tag="cld", r=V(32 + 4 * arr, 4), srd=srd)]
        if not self.ffn: g.append(J("buffer_load_ushort v{d}, v27, {srd}, 0 offen offset:512", tag="cld", d=42 + arr, srd=srd))
        return g
    def creg(self, acc, t): return t
    def c_stage(self):
        if self.cin:
            g = J("s_lshl_b32 {t2}, {w}, 10\ns_add_u32 {t2}, {t2}, {stg}\nv_add_u32 v28, {t2}, {l16b}\ns_mov_b32 {t2}, 0x05040100\ns_mov_b32 {t3}, 0x07060302\n@must cld", stg=self.cstg)
            for arr in range(2):
                s_ = 32 + 4 * arr; d_ = 24 if arr == 0 else 32
                g += flat([J("v_alignbyte_b32 v{a}, v{b}, v{a}, {sh}", a=s_ + i, b=s_ + i + 1 if i < 3 else 40 + arr) for i in range(4)])
                g += J("v_perm_b32 v{d0}, v{s1}, v{s0}, {t2}\nv_perm_b32 v{d1}, v{s3}, v{s2}, {t2}\nv_perm_b32 v{d2}, v{s1}, v{s0}, {t3}\nv_perm_b32 v{d3}, v{s3}, v{s2}, {t3}",
                       d0=d_, d1=d_ + 1, d2=d_ + 2, d3=d_ + 3, s0=s_, s1=s_ + 1, s2=s_ + 2, s3=s_ + 3)
                g += I("ds_write_b128 v28, %s offset:%d" % (V(d_, 4), arr * 4096), tag="rtab")
            return single(g)
        g = J("""s_mul_i32 {t0}, {w}, 1280
s_add_u32 {t0}, {t0}, {stg}
v_lshrrev_b32 v27, 2, v0
v_lshl_add_u32 v28, v27, 4, {l16b}
v_add_u32 v28, {t0}, v28
s_mov_b32 {t2}, 0x05040100
s_mov_b32 {t3}, 0x07060302
s_mov_b32 s96, 0x11111111
s_mov_b32 s97, 0x11111111
@wait cld""", stg=self.cstg)
        for arr in range(2):
            s_, d_ = 32 + 4 * arr, 192 + 4 * arr
            g += flat([J("v_alignbyte_b32 v{a}, v{b}, v{a}, {sh}", a=s_ + i, b=s_ + i + 1 if i < 3 else 40 + arr) for i in range(4)])
            g += J("v_perm_b32 v{d0}, v{s1}, v{s0}, {t2}\nv_perm_b32 v{d1}, v{s3}, v{s2}, {t2}\nv_perm_b32 v{d2}, v{s1}, v{s0}, {t3}\nv_perm_b32 v{d3}, v{s3}, v{s2}, {t3}",
                   d0=d_, d1=d_ + 1, d2=d_ + 2, d3=d_ + 3, s0=s_, s1=s_ + 1, s2=s_ + 2, s3=s_ + 3)
            g += I("ds_write_b128 v28, %s offset:%d" % (V(d_, 4), arr * 5120), tag="cst")
            if not self.ffn: g += J("v_and_or_b32 v{d}, v{d}, {hi16}, v{q}", d=d_, q=42 + arr)
        if self.ffn: return single([x for x in g if "0x11111111" not in x.text])
        return single(g) + [J("s_mov_b64 exec, {m1}") + I("ds_write_b64 v28, v[192:193] offset:64\nds_write_b64 v28, v[196:197] offset:5184", tag="cst") + I("s_mov_b64 exec, -1")]
    def c_calc(self):
        g = J("""s_or_b32 {t1}, {w}, {jb}
s_cselect_b32 {t1}, 4, 2
s_lshl_b32 {t0}, {w}, 4
v_and_b32 v26, 3, v0
v_cmp_eq_u32 vcc, {t1}, v26
v_and_b32 v28, 1, v0
v_lshl_add_u32 v28, v28, 3, {t0}
v_lshrrev_b32 v27, 2, v0
v_mul_u32_u24 v27, 80, v27
v_cndmask_b32 v28, v28, 64, vcc
s_mov_b32 {t0}, {stg}
v_add3_u32 v27, v27, v28, {t0}""", stg=self.cstg)
        rs = 80; tb = 192
        if self.cin:
            rs = 64; tb = 152
            g = J("s_lshl4_add_u32 {t0}, {w}, {stg}\nv_and_b32 v28, 1, v0\nv_lshl_add_u32 v28, v28, 3, {t0}\nv_lshrrev_b32 v27, 2, v0\nv_lshl_add_u32 v27, v27, 6, v28", stg=self.cstg)
        for th in range(2):
            for arr in range(2):
                for side in range(2):
                    g += I("ds_read_b64_tr_b16 %s, v27 offset:%d" % (V(tb + ((th * 2 + arr) * 2 + side) * 2, 2), (arr * 64 + side * 32 + th * 16) * rs), tag="crd")
        q = I("@wait crd")
        for th in range(2):
            for r in range(4):
                e = th * 4 + r
                t = tb + 16 + (e % 2) * 4
                for n, (arr, side) in enumerate([(0, 0), (0, 1), (1, 0), (1, 1)]):
                    src = tb + ((th * 2 + arr) * 2 + side) * 2 + r // 2
                    q += J("v_and_b32 v{d}, {hi16}, v{s}" if r & 1 else "v_lshlrev_b32 v{d}, 16, v{s}", d=t + n, s=src)
                a_, b_, c_, d_ = CO + e, CO + 8 + e, CO + 16 + e, CO + 24 + e
                q += I("v_add_f32 v%d, v%d, v%d\nv_add_f32 v%d, v%d, v%d\nv_sub_f32 v%d, v%d, v%d\nv_sub_f32 v%d, v%d, v%d" % (
                    a_, t, t + 1, b_, t + 2, t + 3, c_, t + 3, t + 2, d_, t, t + 1))
                if e == 0:
                    q += J("""v_cndmask_b32 v{a2}, v{a}, v{t1_}, {mask}
v_cndmask_b32 v{b2}, v{b}, v{t3_}, {mask}
v_cndmask_b32 v{a}, v{a}, v{t0_}, {mask}
v_cndmask_b32 v{b}, v{b}, v{t2_}, {mask}
v_cndmask_b32 v{c}, v{c}, 0, {mask}
v_cndmask_b32 v{d}, v{d}, 0, {mask}""", a2=CA2, b2=CB2, a=a_, b=b_, c=c_, d=d_, t0_=t, t1_=t + 1, t2_=t + 2, t3_=t + 3)
        return chunks(g), single(q)

    GATE_LD = "buffer_load_dword v16, v17, %s, 0 offen sc1" % SDBG
    POLL_LD = "buffer_load_dword v16, v17, %s, s82 offen sc1" % SWS
    def gate_ld(self):
        return single(J("v_min_u32 {pa}, {n}, v0\nv_lshlrev_b32 {pa}, 2, {pa}", n=NCLR - 1) + I(self.GATE_LD, tag="poll"))
    def x1_addr(self):
        return single(J("""s_lshr_b32 {t0}, {jb}, 2
s_lshl_b32 {t0}, {t0}, 8
s_lshl_b32 {t1}, {w}, 15
s_add_u32 {t0}, {t0}, {t1}
s_add_u32 {wo1}, {t0}, {fl}
v_lshrrev_b32 {pa}, 3, v0
v_lshlrev_b32 {pa}, 12, {pa}
v_bfe_u32 v28, v0, 2, 1
v_lshl_add_u32 {pa}, v28, 7, {pa}""", fl=WS_FLAG + 28 * 128))
    def rp_reads(self):
        return [J("v_add_u32 v19, {a}, {l16b}", a=LDS_RPF)] + \
               [I("ds_read_b128 %s, v19 offset:%d" % (A((224 if f < 8 else 160) + 4 * f, 4), f * 1024), tag="rp") for f in range(16)]
    def flag_addr(self):
        return J("s_lshl_b32 {wo0}, {b12}, 5\ns_add_u32 {wo0}, {wo0}, {ni}\ns_lshl_b32 {wo0}, {wo0}, 7\ns_add_u32 {wo0}, {wo0}, {fl}", fl=WS_FLAG)
    def set_flag(self):
        return I("v_mov_b32 v24, 1\n@wait pub\ns_mov_b64 exec, 1") + J("buffer_store_dword v24, v0, {SWS}, {wo0} offen sc1") + I("s_mov_b64 exec, -1")

    def prologue(self):
        p = []
        if self.prof: p += I("%s s[100:101]" % self.clk(), raw=True)
        p += J("""s_load_dwordx16 s[48:63], s[0:1], 0
s_cmp_ge_u32 s2, 256
s_cbranch_scc1 L_end
s_load_dwordx4 s[64:67], s[0:1], 64
s_load_dwordx2 s[68:69], s[0:1], 80
s_getpc_b64 {m1}
L_pc:
v_lshlrev_b32 v24, 3, v0
v_readfirstlane_b32 {w}, v0
s_lshr_b32 {loc}, s2, 3
v_lshl_add_u32 v24, {loc}, 11, v24
v_min_u32 v24, L_end-L_pc, v24
global_load_dword v31, v24, {m1}
v_and_b32 v0, 63, v0
v_and_b32 {l16}, 15, v0
v_lshrrev_b32 {hi}, 4, v0
s_lshr_b32 {w}, {w}, 6
s_and_b32 {xcd}, s2, 7
s_and_b32 {l3}, {loc}, 3
s_lshr_b32 {nt}, {loc}, 2
s_lshr_b32 {xn}, {xcd}, 1
s_lshl_b32 {bp}, {xcd}, 2
s_add_u32 {bp}, {bp}, {l3}
s_and_b32 {b12}, {bp}, 7
s_lshl_b32 {b12}, {b12}, 2
s_add_u32 {b12}, {b12}, {w}
s_lshl_b32 s76, {b12}, 10
v_lshrrev_b32 v25, 3, v0
v_and_b32 v24, 7, v0
v_xor_b32 v24, v24, {hi}
v_lshlrev_b32 v24, 4, v24
v_lshl_add_u32 {x}, v25, 15, v24
v_xor_b32 v18, 0x40040, {x}
v_subrev_u32 v18, 0x400, v18
s_lshl_b32 {ring}, {w}, 14
s_add_u32 {ring}, {ring}, 0x10000""")
        if "probe" in self.kw:
            k = self.kw["probe"]
            p += I("s_waitcnt lgkmcnt(0) vmcnt(0)\ns_mov_b64 s[44:45], s[%d:%d]\ns_mov_b32 s46, 0x100000\ns_mov_b32 s47, 0x20000" % (48 + 2 * k, 49 + 2 * k))
            p += J("s_lshl_b32 s3, s2, 2\ns_add_u32 s3, s3, {w}\ns_lshl_b32 s3, s3, 7\nv_mov_b32 v26, 0\ns_memrealtime s[96:97]\ns_waitcnt lgkmcnt(0)")
            if "pbw" in self.kw:
                p += I("s_mov_b32 s46, 0x10000000\ns_lshl_b32 s3, s3, 7\ns_add_u32 s3, s3, %d\nv_lshlrev_b32 v26, 4, v0" % (self.kw["pbw"] << 20))
                for i in range(16):
                    op = "buffer_store_dwordx4 v[128:131], v26, s[44:47], s3 offen sc1" if self.o("pst", 0) else "buffer_load_dwordx4 v[%d:%d], v26, s[44:47], s3 offen" % (128 + 4 * i, 131 + 4 * i)
                    p += I(op + "\ns_add_u32 s3, s3, 1024")
                p += I("s_waitcnt vmcnt(0)")
            else:
                for i in range(8): p += I("buffer_load_dword v27, v26, s[44:47], s3 offen\ns_waitcnt vmcnt(0)\ns_add_u32 s3, s3, 0x20000")
            p += I("s_memrealtime s[98:99]\ns_waitcnt lgkmcnt(0)\ns_sub_u32 s98, s98, s96\ns_add_u32 s100, s100, s98")
        p += self.srd_const(SX, 2097152 + 2048)
        p += J("s_cmp_eq_u32 {nt}, 7\ns_cbranch_scc1 L_dft")
        return p
    def common2(self):
        p = J("v_lshlrev_b32 {l16b}, 4, v0\ns_lshl_b32 {lw}, {loc}, 2\ns_add_u32 {lw}, {lw}, {w}\ns_mul_i32 s3, {xcd}, 112\ns_add_u32 {lw}, {lw}, s3\ns_lshl_b32 {lw}, {lw}, 11\ns_mov_b32 {hi16}, 0xffff0000\ns_add_u32 {jb}, {nt}, 1\ns_and_b32 {jb}, {jb}, 7\ns_and_b32 {sh}, {bp}, 1\ns_lshl_b32 {sh}, {sh}, 1")
        for nm, lo, sz in ((SWS, 68, 0x10000000), (SDBG, 66, 256), (SWD, 60, 1792 * 1024), (SOUT, 64, 2097152), (SWR, 50, 2048 * 514), (SWI, 52, 2048 * 514), (SGW, 62, 1024)):
            p += self.srd(nm, lo, sz) + self.srd_const(nm, sz)
        return p

    def p12f(self):
        self.ffn = True; self.cin = self.o("cin", 0); self.cstg = LDS_R64I if self.cin else LDS_RPF
        def kadv(du):
            kr = self.o("kr", 2)
            if kr == 4: return single(J("s_xor_b32 {k}, {k}, 1" if du & 1 else "s_xor_b32 {k}, {k}, 1\ns_add_u32 {k}, {k}, 2\ns_and_b32 {k}, {k}, 7"))
            if kr == 5: return single(J("s_xor_b32 {k}, {k}, %d" % (du ^ (du - 1))))
            return single(J("s_add_u32 {k}, {k}, 1\ns_and_b32 {k}, {k}, 7"))
        def wl(du):
            gs = []
            if du == 1: gs += kadv(du)
            gs += single(J("s_mul_i32 {wo0}, {k}, {c}\ns_add_u32 {wo0}, {wo0}, {wb}\ns_add_u32 {wo1}, {wo0}, {c2}", c=64 * 3584, c2=32 * 3584 - 2048))
            gs.append(J("s_add_u32 m0, {lw4}, {o}", o=(du % 4) * 16384))
            for h in range(2):
                for mat in range(2):
                    gs.append(J("buffer_load_dwordx4 {vw}, {srd}, {so} offen offset:{o} lds", tag="w%d" % du, srd=(SWG, SWU)[mat], so=NM["wo%d" % h], o=(2 * h + mat) * 1024))
            return gs
        def xl(du):
            gs = []
            if du >= 2: gs += kadv(du)
            gs += single(J("v_lshl_add_u32 {xr}, {k}, 7, {x}\nv_lshl_add_u32 {xr2}, {k}, 7, v18"))
            for m in range(4):
                if m % 2 == 0: gs.append(J("s_add_u32 m0, {ring}, {o}", o=(du % 2) * 8192 + m * 2048))
                for e in range(2):
                    g = J("buffer_load_dwordx4 {r}, {SX}, s{so} offen offset:{o} lds", tag="x%d" % du, r=NM[("xr", "xr2")[e]], so=76 + m, o=((m & 1) * 2 + e) * 1024)
                    if du >= 2 and m == 0 and e == 0: g = I("@need xf%d" % (du - 2)) + g
                    gs.append(g)
            return gs
        def xf(du):
            return [I("@wait x%d" % du)] + [I("ds_read_b128 %s, v%d offset:%d" % (A((du % 4) * 32 + h * 16 + m * 4, 4), vXA[h], (du % 2) * 8192 + m * 2048), tag="xf%d" % du)
                                           for h in range(2) for m in range(4)]
        p = J("""s_and_b32 {t0}, {nt}, {mp}
s_lshl_b32 {t0}, {t0}, 19
s_add_u32 s76, s76, {t0}
s_xor_b32 s77, s76, 0x80000
s_xor_b32 s79, s76, 0x180000
s_xor_b32 s78, s76, 0x100000
s_add_u32 s76, s76, 0x800
s_add_u32 s78, s78, 0x800
s_lshl_b32 {k}, {xcd}, 2
s_add_u32 {k}, {k}, {xcd}
s_and_b32 {k}, {k}, {km}
s_mul_i32 {ni}, {xn}, 7
s_add_u32 {ni}, {ni}, {nt}
s_mul_i32 {wb}, {w}, {c}
s_lshl_b32 {t0}, {ni}, 7
s_add_u32 {wb}, {wb}, {t0}
v_mul_u32_u24 v24, 3584, v25
s_and_b32 {t0}, {w}, 1
s_lshl_b32 {t0}, {t0}, 1
v_and_or_b32 v25, {hi}, 1, {t0}
v_bfe_u32 v26, v0, 1, 2
v_xor_b32 v25, v25, v26
v_lshl_add_u32 v24, v25, 5, v24
v_and_b32 v25, 1, v0
v_lshl_add_u32 {vw}, v25, 4, v24
s_lshl_b32 {lw4}, {w}, 12""", c=8 * 3584, mp=self.o("mp", 3), km=self.o("km", 6))
        kr = self.o("kr", 2)
        if kr == 4: p += J("s_lshr_b32 {t0}, {nt}, {sh}\ns_xor_b32 {t0}, {l3}, {t0}\ns_and_b32 {t0}, {t0}, 1\ns_add_u32 {k}, {k}, {t0}", sh=self.o("ksh", 2))
        if kr == 5: p += J("s_add_u32 {t0}, {l3}, {nt}\ns_and_b32 {t0}, {t0}, 3\ns_add_u32 {k}, {xcd}, {xn}\ns_and_b32 {k}, {k}, 1\ns_lshl2_add_u32 {k}, {k}, {t0}")
        if kr == 1: p += J("s_lshl_b32 {k}, {l3}, 1\ns_add_u32 {k}, {k}, {nt}\ns_and_b32 {k}, {k}, 7")
        if kr == 2: p += J("s_xor_b32 {t0}, {l3}, {nt}\ns_and_b32 {t0}, {t0}, 1\ns_lshl_b32 {t0}, {t0}, 2\ns_lshl_b32 {k}, {xcd}, 1\ns_add_u32 {k}, {k}, {xn}\ns_and_b32 {k}, {k}, 3\ns_add_u32 {k}, {k}, {t0}")
        if kr == 3: p += J("s_add_u32 {t0}, {l3}, {nt}\ns_and_b32 {t0}, {t0}, 3\ns_lshl_b32 {t0}, {t0}, 1\ns_add_u32 {k}, {xcd}, {xn}\ns_and_b32 {k}, {k}, 1\ns_add_u32 {k}, {k}, {t0}")
        p += self.srd_const(SWG, 512 * 3584) + self.srd_const(SWU, 512 * 3584 + 1024)
        w0 = wl(0); x0 = xl(0)
        p += flat(w0[:4] + x0[:2]) + self.srd(SWG, 56, 0) + self.srd(SWU, 58, 0, back=1024) + self.srd(SX, 48, 0, back=2048)
        p += flat(w0[4:]) + flat(x0[2:])
        p += self.common2()
        p += self.stamp(0)
        l = self.lab("noclr")
        p += J("s_sub_u32 s3, s2, 128\ns_cmp_lt_u32 s3, {n}\ns_cselect_b32 {clr}, {w}, 4", n=NCLR) + I("\n".join("v_accvgpr_write_b32 a%d, 0" % (180 + i) for i in range(4)))
        clear = J("s_cmp_eq_u32 {clr}, 4") + J("""s_cbranch_scc1 {l}
s_lshl2_add_u32 s3, s2, {w}
s_lshl_b32 s3, s3, 10
s_add_u32 s3, s3, {fl}
buffer_store_dwordx4 a[180:183], {l16b}, {SWS}, s3 offen sc1
{l}:""", raw=True, l=l, fl=WS_FLAG - 128 * 4096)
        st = [J("""v_lshrrev_b32 v24, 1, {l16}
v_xor_b32 v24, v24, {hi}
v_lshlrev_b32 v24, 4, v24
v_lshl_add_u32 v24, {l16}, 7, v24
v_add_u32 v22, {ring}, v24
v_xor_b32 v23, 64, v22
v_lshlrev_b32 v24, 12, {hi}
v_bfe_u32 v25, v0, 2, 2
v_lshl_add_u32 v24, v25, 7, v24
v_and_b32 v25, 3, v0
v_lshl_add_u32 v24, v25, 3, v24
v_bfe_u32 v25, v0, 3, 2
v_lshl_add_u32 v6, v25, 5, v24
v_xor_b32 v7, 32, v6
v_xor_b32 v8, 64, v6
v_xor_b32 v9, 0x60, v6""")]
        cl, gl = self.c_loads() + self.c_fetch(0) + self.c_fetch(1), self.g_loads()
        cpos = self.o("cpos", 2)
        gwt = [J("buffer_load_dword a171, {l16b}, {SGW}, 0 offen")]
        rip = self.rip = self.o("rip", 1) and self.o("x1late", 0)
        st = single(st) + cl[:-4] + self.gen_R(0, 128) + ([] if rip else self.gen_R(1, 160)) + (self.gen_R(2, 192) if self.o("r2p", 0) == 1 else [])
        l1 = wl(1) + xl(1); n1 = self.o("n1", 15) - (self.o("kr", 2) >= 4)
        p += flat(weave(st, l1[:n1], self.o("l1pos", 60 if rip else 130), len(st)))
        p += I("@wait w0 x0\ns_barrier")
        p += self.stamp(1)
        units = {0: "E0 L0 E1 L1 E2 L2 E3 E4 L3 E5 E6 L4 E7 L5 L6 L7", 1: "E0 L0 E1 L1 E2 L2 E3 L3 E4 E5 L4 E6 E7 L5 L6 L7",
                 2: "E0 L0 E1 L1 E2 L2 E3 L3 E4 E5 L4 E6 L5 E7 L6 L7", 3: "E0 L0 E1 L1 E2 L2 E3 L3 E4 L4 E5 L5 E6 E7 L6 L7"}[self.o("us", 1)].split()
        seq = [(2 * int(u[1]) + h, tau + (4 if u[0] == "L" else 0)) for u in units for h in range(2) for tau in range(4)]
        U = dict((u, 32 * i) for i, u in enumerate(units))
        LA = 5
        def rd(k):
            n, tau = seq[k]
            off = ((n // 2) % 4) * 16384 + ((n & 1) * 2 + (tau & 1)) * 1024
            return [I("ds_read_b64_tr_b16 %s, v%d offset:%d" % (A(128 + 4 * (k % 8) + 2 * j4, 2), vWT[tau // 2], off + 512 * j4), tag="f%d" % k) for j4 in range(2)]
        x0 = xf(0)
        p += flat(rd(0) + x0[:5] + rd(1) + rd(2) + x0[5:] + rd(3) + rd(4))
        mf = []
        for k, (n, tau) in enumerate(seq):
            for m in range(4):
                acc = V(128 + (tau * 4 + m) * 4, 4)
                mf.append(I("%s %s, %s, %s, %s" % (MF, acc, A(128 + 4 * (k % 8), 4), A(((n // 2) % 4) * 32 + (n & 1) * 16 + m * 4, 4), acc if n else "0")))
        G = Gaps(mf)
        for k in range(128):
            if k + LA < 128:
                r = rd(k + LA); G.put(4 * k, r[0]); G.put(4 * k + 2, r[1])
            if k % 2 == 1 and k + 1 < 128: G.put(4 * k + 3, I("@wait f%d" % (k + 2)))
        bar = {}
        for du in range(1, 8):
            bar[du] = U["E%d" % du] - 4 * LA - 1
            G.put(bar[du], I("@wait w%d rtab\ns_barrier" % du))
        lead = G.stream(l1[n1:], 0, 12, spread=False) if l1[n1:] else 0
        aa = [[0, 52, 104, 156, 208, 260], [0, 60, 118, 172, 224, 276], [0, 64, 124, 180, 234, 288], [0, 64, 128, 192, 250, 306], [0, 64, 128, 192, 256, 320], [0, 46, 110, 172, 230, 286], [0, 46, 104, 164, 222, 278]][self.o("aa", 2)]
        aa = dict(zip(range(2, 10), aa + [aa[-1] + 54, aa[-1] + 108]))
        xfe = {}; xfs = {}; span = {}
        for du in range(1, 8):
            e = min(aa[du + 2], U["E%d" % du]) - 2
            assert du < 4 or e - 18 >= U["L%d" % (du - 4)] + 32
            xfe[du] = G.stream(xf(du), e - 18, e); xfs[du] = e - 18
        last = lead
        for du in range(2, 8):
            a0 = max(aa[du], last + 1)
            last = G.stream(([clear] if du == self.o("clrdu", 2) else []) + xl(du), a0, a0 + (self.o("xs", 16) if du <= self.o("xsd", 4) else 36))
            w0_ = last + 1
            if du >= 4: w0_ = max(w0_, min(b for b in bar.values() if b >= U["L%d" % (du - 4)] + 32) + 1)
            tr_ = {self.o("tdu", 3): [0]}.get(du, [])
            cd = self.o("cdu", 2)
            ex = [] if cpos != 2 else cl[-4:-2] + gwt if du == cd else cl[-2:] if du == cd + 1 else []
            if cpos == 3 and du == cd: ex = cl[-4:] + gwt
            last = G.stream(wl(du) + ex + [g for r in tr_ for g in self.touch(r)] + (self.touch3() if du == self.o("t3du", 6) else []) + (self.keep(du) if du == self.o("ka", 9) else []) + (self.retouch() if du == 7 else []) + (self.pretouch(178, 28) if du == self.o("ptd", 2) else []), w0_, w0_ + (self.o("wsp", 10) if du <= self.o("xsd", 4) else 16) + 4 * len(tr_))
            assert last < bar[du] - 4, (du, last, bar[du])
            span[du] = (a0 if du > 2 else 0, last)
        vend = last
        l = self.lab("noann")
        ann = J("s_cmp_lg_u32 {clr}, 0") + J("""s_cbranch_scc1 {l}
v_mov_b32 v27, 1
s_lshl_b32 s3, s2, 2
s_sub_u32 s3, s3, 512
s_mov_b64 exec, 1
buffer_store_dword v27, v0, {SDBG}, s3 offen sc1
s_mov_b64 exec, -1
{l}:""", raw=True, l=l)
        G.put(bar[self.o("clrdu", 2)] + 2, ann)
        G.stream(self.rp_reads()[:9 if rip else 17], 130, 230)
        e0 = U["E7"] + 32
        e = G.stream(self.gate_ld() + (cl[-4:] if cpos == 0 else []), vend + 1, vend + 12)
        e1 = vend
        d0 = max(e, e1, xfe[6] + 4, vend + self.o("d0gap", 10))
        e = G.stream(self.D(0, I("@need xf6")) + self.D(1), d0, d0 + 32)
        d2 = max(e + 1, xfe[7] + 4)
        e = G.stream(self.D(2, I("@need xf7")) + self.D(3), d2, d2 + 32)
        G.stream(single(J("s_and_b32 {t0}, {nt}, {mp}\ns_lshl2_add_u32 {t2}, {b12}, {t0}\ns_lshl_b32 {t2}, {t2}, 5\ns_add_u32 {t2}, {t2}, {ni}\ns_lshl_b32 {t2}, {t2}, 11", mp=self.o("mp", 3)) + self.flag_addr()) + self.setupA() +
                 [I("@wait poll") + self.spin(self.GATE_LD)] + self.x1_addr(), e1 + 1, min(e0, self.o("xp", 495) + 30))
        late1 = self.o("x1late", 0)
        if not late1:
            G.put(self.o("xp", 495), I(self.POLL_LD, tag="poll"))
            G.stream(single(self.x1_pre()[:-1]), 490, 510)
        nin = self.o("nin", 1)
        t0_ = max(e + 1, U["L4"] + 32 if nin > 2 else 0, d0 + self.o("t0gap", 70))
        t0_ = min(t0_, 470)
        G.stream(self.TT(0, nin) + self.DD(4, 4 + nin), t0_, 506)
        gs_ = 18 - self.o("gsplit", 5)
        bulk = self.o("bulk", 0)
        if bulk:
            gs_ = 18; gp = self.gen_G(42, True); b1 = self.o("b1", 6); bo = self.o("bo", 2)
            stall = lambda du: min(bar[du], xfs[du]) - bo
            G.put(stall(1), flat(gp[:b1])); G.put(stall(2), flat(gp[b1:]))
            if self.o("r2p", 0) == 2: G.put(stall(3), flat(self.gen_R(2, 42)))
            G.stream(chunks(self.wd_setup()), 200, vend)
        elif self.o("fs", 0):
            q = (self.gen_R(2, 42) if self.o("r2p", 0) == 2 else []) + chunks(self.wd_setup()) + chunks(self.gen_G(42, False)[:gs_])
            e = 0
            for du, n in ((2, self.o("fs", 0)), (3, self.o("fs3", 0))):
                a_, b_ = span[du]
                for k, g in enumerate(q[:n]): G.put(a_ + k * (b_ - a_) // n, g)
                q = q[n:]
                if du == 2: m_ = self.o("fm", 20); G.stream(q[:m_], b_, span[3][0], spread=False); q = q[m_:]
            n4 = self.o("fs4", 0)
            if n4 or self.cin:
                m_ = self.o("fm", 20); G.stream(q[:m_], span[3][1], span[4][0], spread=False); q = q[m_:]
                q4 = q[:n4] + (self.c_stage() if self.cin else []); q = q[n4:]; a_, b_ = span[4]
                for k, g in enumerate(q4): G.put(a_ + k * (b_ - a_) // len(q4), g)
                if q: G.stream(q, self.o("gls", b_), e0, spread=False)
            else: G.stream(q, span[3][1] if self.o("fs3", 0) else span[3][0], e0, spread=False)
        elif self.o("ge", 0):
            ge = self.o("ge", 0); gn = self.gen_G(42, False)
            G.stream(chunks(self.wd_setup()) + chunks(gn[:ge]), 4, self.o("gee", 128), spread=False)
            if gs_ > ge: G.stream(chunks(gn[ge:gs_]), self.o("gls", 340), 500, spread=False)
        else: G.stream(chunks(self.wd_setup()) + chunks(self.gen_G(42, False)[:gs_]), 4, e0, spread=False)
        def epi(u, m, pk):
            g0, u0, g1_, u1 = [128 + ((4 * u + k) * 4 + m) * 4 for k in range(4)]
            g = []
            for gg in (g0, g1_): g += I("\n".join("v_max_f32 v%d, 0, v%d" % (gg + r, gg + r) for r in range(4)))
            for gg, uu in ((g0, u0), (g1_, u1)):
                if pk: g += I("v_pk_mul_f32 %s, %s, %s\nv_pk_mul_f32 %s, %s, %s" % (V(gg, 2), V(gg, 2), V(uu, 2), V(gg + 2, 2), V(gg + 2, 2), V(uu + 2, 2)))
                else: g += I("\n".join("v_mul_f32 v%d, v%d, v%d" % (gg + r, gg + r, uu + r) for r in range(4)))
            g += cvt(u0, g0, g0 + 1) + cvt(u0 + 1, g0 + 2, g0 + 3) + cvt(u0 + 2, g1_, g1_ + 1) + cvt(u0 + 3, g1_ + 2, g1_ + 3)
            return J("s_xor_b32 {t3}, {t2}, {o}", o=u * 1024 + m * 65536) + g + J("buffer_store_dwordx4 {r}, {l16b}, {SWS}, {t3} offen sc1", tag="pub" if u else "pue", r=V(u0, 4))
        G.stream(single([epi(0, m, False) for m in range(4)]), e0 + 2, min(512, e0 + self.o("espan", 60 if self.ef else 76)))
        if self.ef:
            l = self.lab("noe")
            G.put(self.o("efp", 509), I("@must pue") + J("s_barrier\ns_cmp_lg_u32 {w}, 0") + J("""s_cbranch_scc1 {l}
s_lshl3_add_u32 s3, {b12}, {ni}
s_lshl_b32 s3, s3, 7
s_add_u32 s3, s3, {ef}
v_mov_b32 v24, 1
s_mov_b64 exec, 1
buffer_store_dword v24, v0, {SWS}, s3 offen sc1
s_mov_b64 exec, -1
{l}:""", raw=True, l=l, ef=WS_EF))
        for i in range(8): G.put(64 * i, self.stamp(i, 1))
        G.put(480, self.stamp(8, 1)); G.put(511, self.stamp(9, 1))
        p += G.out()
        p += self.stamp(2)
        ep = [epi(1, m, True) for m in range(4)]
        if self.o("strip", 0) & 32768: ep = ep[:2]
        mid = self.o("mid", 2)
        if not late1: ep.insert(mid, self.x1_pre()[-1:] + self.x1_fetch())
        tpos = self.o("tep", 2); tt = self.TT(nin, 4) if tpos == 0 else []
        if self.cin: ep.append(flat(self.c_calc()[0]))
        p += flat(weave([[]] + ep, tt) if mid else weave(ep, tt))
        if late1: p += I(self.POLL_LD, tag="poll")
        elif self.ef: p += self.eadr() + I(self.POLL_LD, tag="poll")
        p += self.stamp(3) + self.stamp(0, 3)
        n1_ = min(8, 4 + nin + self.o("nw1", 0))
        p += ([] if self.cin else flat(self.c_stage())) + self.stamp(1, 3) + flat(weave(self.gen_G(42, True)[gs_:] + gl, self.DD(4 + nin, n1_)))
        if tpos == 1: p += flat(self.TT(nin, 4))
        return p + self.tail(True, nin if tpos == 2 else 4, n1_)

    def p12d(self):
        self.ffn = False; self.cstg = LDS_RPF; self.rip = 0; self.cin = 0
        def dma(s_):
            Q, m = divmod(s_, 4)
            gs = [J("s_add_u32 m0, {ring}, {o}", o=m * 4096)]
            if m == 0:
                gs = single(J("v_lshl_add_u32 {xr}, {k}, 7, {x}\nv_lshl_add_u32 {xr2}, {k}, 7, {vw}")) + gs
                if Q: gs = single(J("s_add_u32 {k}, {k}, 1\ns_and_b32 {k}, {k}, 3")) + gs
            for hf in range(2):
                for e in range(2):
                    g = J("buffer_load_dwordx4 {r}, {srd}, s{so} offen offset:{o} lds", tag="x_%d" % s_, r=NM[("xr", "xr2")[e]], srd=(SX, SWG)[hf], so=76 + m, o=(2 * hf + e) * 1024)
                    if Q and not hf and not e: g = I("@need xf_%d" % (s_ - 4)) + g
                    gs.append(g)
            return gs
        def raw(s_):
            return [I("@must x_%d" % s_)] + [I("ds_read_b128 %s, v%d offset:%d" % (A(16 * (s_ % 2) + 4 * f, 4), vWT[f], (s_ % 4) * 4096), tag="xf_%d" % s_) for f in range(4)]
        def fold(s_):
            return [I("%s %s, v[20:23], %s, 0" % (MF, V(48 + 4 * f, 4), A(16 * (s_ % 2) + 4 * f, 4))) for f in range(4)]
        def fcv(s_):
            return [cvt(32 + (s_ % 2) * 8 + q, 48 + 2 * q, 49 + 2 * q) for q in range(8)]
        def trd(Q):
            return [I("ds_read_b128 %s, %s offset:%d" % (A(64 + 64 * (Q % 2) + 4 * f, 4), NM["l16b"], Q * 16384 + f * 1024), tag="tq%d" % Q) for f in range(16)]
        p = I("@reset") + J("""s_add_u32 s76, s76, 0x800
s_add_u32 s77, s76, 0x80000
s_add_u32 s78, s76, 0x100000
s_add_u32 s79, s76, 0x180000
s_add_u32 {ni}, {xn}, 28
s_and_b32 {k}, {xcd}, {km}
s_mov_b32 {wb}, {k}
v_mov_b32 {vw}, v18
v_lshlrev_b32 {l16b}, 4, v0""", km=self.o("km", 6) & 2)
        tg, sel, late = self.gen_T()
        cl = self.c_loads(True)
        npk = self.o("npk", 0)
        p += self.srd_const(SWG, 2097152 + 3584) + flat(tg[:npk]) + I("s_waitcnt lgkmcnt(0)") + self.srd(SX, 48, 0, back=2048) + self.srd(SWG, 48, 0, back=3584)
        p += flat([dma(m) for m in range(3)])
        ntp = self.o("ntp", 8); tl = tg[1 + 2 * ntp:]; tg = tg[npk:1 + 2 * ntp]
        place(tg, len(tg) - self.o("d3", 1), dma(3))
        if self.o("pm", 0) == 4:
            p += self.common2()
            for i, k in enumerate((0, 1, 2, 3, 4, 5, 6, 7, 8)): place(tg, k, self.stamp(i, 4))
        p += flat(tg) + sel + (self.common2() if self.o("pm", 0) != 4 else []) + self.stamp(0) + self.stamp(9, 4)
        p += I("@waitlg0\ns_barrier") + self.stamp(1)
        t0_ = trd(0)
        p += flat(t0_[:8] + raw(0) + t0_[8:] + fold(0) + dma(4) + raw(1) + fcv(0))
        def mm(s_, h, tau):
            Q, m = divmod(s_, 4); acc = V(128 + (tau * 4 + m) * 4, 4)
            return I("%s %s, %s, %s, %s" % (MF, acc, V(32 + (s_ % 2) * 8 + 4 * h, 4), A(64 + 64 * (Q % 2) + (h * 8 + tau) * 4, 4), acc if Q or h else "0"))
        mf = []; at = {}
        for s_ in range(15):
            at[s_] = len(mf); mf += [mm(s_, 0, tau) for tau in range(6)]
            at["fold", s_ + 1] = len(mf); mf += fold(s_ + 1) + [mm(s_, 0, tau) for tau in (6, 7)] + [mm(s_, 1, tau) for tau in range(8)]
        at[15] = len(mf); mf += [mm(15, h, 4 * g + t) for g in range(2) for h in range(2) for t in range(4)]
        def s2(t):
            return [I("%s %s, %s, %s, %s" % (MF, V(128 + 16 * t + 4 * sg, 4), V(64 + 8 * t + 4 * v, 4), A(224 + (2 * sg + v) * 4, 4), V(128 + 16 * t + 4 * sg, 4) if v else "0"))
                    for v in range(2) for sg in range(4)]
        for t in range(8):
            at["s2", t] = len(mf); mf += s2(t)
        G = Gaps(mf)
        for s_ in range(1, 16):
            f = at["fold", s_]
            if s_ > 1: G.stream(raw(s_), f - self.o("rawa", 11), f - 4, spread=False)
            G.put(f - 1, I("@wait xf_%d" % s_))
            G.stream(fcv(s_), f + 6, f + 12, spread=False)
            if s_ + 4 < 16: G.stream(dma(s_ + 4) + (self.pretouch(46, 12) if s_ == 2 else []), f, f + 8)
        for Q in range(1, 4):
            G.stream(trd(Q), at[4 * Q - 4] + 2, at[4 * Q] - 8); G.put(at[4 * Q] - 1, I("@wait tq%d" % Q))
        G.stream(single(J("s_mul_i32 {wb}, {wb}, 0x40004000") + flat([J("v_xor_b32 v{r}, {wb}, v{r}", r=20 + i) for i in range(4)])), at["fold", 7] + 4, at["fold", 8] - 2, spread=False)
        for Q in range(ntp // 2, 4):
            G.stream(single(tl[4 * Q - 2 * ntp:4 * Q - 2 * ntp + 4]), at[4 * Q - 8] + 1, at[4 * Q - 4] - 6)
            G.put(at[4 * Q - 4] + 1, I("@must ttab%d\ns_barrier" % Q))
        e = G.stream((cl[:-4] if self.o("dcs", 16) < 16 else []) + single(late), 2 if ntp == 8 else at[8], at[12] + 6)
        rr = [I("@wait r64f\ns_barrier"), J("v_add_u32 v24, {a}, {l16b}", a=LDS_STG)] + [I("ds_read_b128 %s, v24 offset:%d" % (A(224 + 4 * f, 4), f * 1024)) for f in range(8)]
        G.stream(rr, e + 6, at[15])
        pre = J("""v_lshrrev_b32 v26, 2, {l16}
v_lshlrev_b32 v26, 17, v26
v_lshl_add_u32 v26, {hi}, 6, v26
v_and_b32 v25, 3, v0
v_lshl_add_u32 {xr}, v25, 4, v26
s_lshr_b32 s76, {xn}, 1
s_lshl_b32 s76, s76, 7
s_add_u32 s76, s76, {b12}
s_and_b32 {t0}, {xn}, 1
s_lshl1_add_u32 s76, s76, {t0}
s_lshl_b32 s76, s76, 8
s_add_u32 s76, s76, {x1}
s_add_u32 s77, s76, 0x80000
s_add_u32 s78, s76, 0x100000
s_add_u32 s79, s76, 0x180000""", x1=WS_X1) + self.flag_addr()
        G.stream(single(pre), e + 1, at[15])
        G.stream(self.gate_ld(), at["s2", 0] + 8, at["s2", 2])
        def cv(t, m): return [cvt(64 + 8 * t + 2 * m + i, 128 + 16 * t + 4 * m + 2 * i, 129 + 16 * t + 4 * m + 2 * i) for i in range(2)]
        for m in range(3):
            G.stream([g for t in range(8) for g in cv(t, m)], at[13 + m] + 1, at[13 + m] + (19 if m < 2 else 11), spread=False)
        G.stream([g for t in range(4) for g in cv(t, 3)], at[15] + 10, at["s2", 0] + 2, spread=False)
        G.stream([g for t in range(4, 8) for g in cv(t, 3)], at["s2", 0] + 3, at["s2", 2], spread=False)
        def st(tp):
            gs = []
            for sg in range(4):
                o = 32 + 16 * (tp % 2) + 4 * sg; d0 = 128 + 32 * tp + 4 * sg; d1 = d0 + 16
                gs += [cvt(o, d0, d0 + 1), cvt(o + 1, d0 + 2, d0 + 3), cvt(o + 2, d1, d1 + 1), cvt(o + 3, d1 + 2, d1 + 3),
                       J("buffer_store_dwordx4 {r}, {xr}, {SWS}, s{so} offen sc1", tag="pub", r=V(o, 4), so=76 + sg)]
                if tp < 3: gs.append(I("s_add_u32 s%d, s%d, 16384" % (76 + sg, 76 + sg)))
            return gs
        for tp in range(3):
            G.stream(st(tp), at["s2", 2 * tp + 2] + 1, at["s2", 2 * tp + 2] + 16, spread=False)
        for i in range(10): G.put(min(40 * i, len(G) - 1), self.stamp(i, 1))
        p += G.out()
        p += self.stamp(2)
        p += flat(st(3))
        p += self.stamp(3)
        p += self.spin(self.GATE_LD)
        p += self.wd_setup() + flat(self.gen_R(0, 128))
        p += self.set_flag()
        p += self.stamp(4)
        if self.o("dcs", 16) < 16: p += I("\n".join("v_accvgpr_read_b32 v%d, a%d" % (32 + i, 32 + i) for i in range(10)))
        else: p += flat(self.c_loads() + self.c_fetch(0) + self.c_fetch(1))
        p += flat(self.gen_R(1, 160))
        p += I("@waitlg0\ns_barrier")
        nd = self.o("dnd", 2)
        p += flat(weave(self.rp_reads() + self.x1_addr() + self.setupA(), self.DD(0, nd)))
        p += I("@wait rp\ns_barrier")
        p += flat(self.g_loads() + self.c_stage())
        p += I(self.POLL_LD, tag="poll")
        return p + self.tail(False, 0, nd)

    def touch(self, r):
        if r >= self.o("touch", 1): return []
        gs = [I("v_lshlrev_b32 v17, 5, v0")] if r == 0 else [J("s_add_u32 {lw}, {lw}, 0x38000"), J("s_sub_u32 s3, {lw}, 0x1c0000\ns_cselect_b32 {lw}, {lw}, s3")]
        return gs + [J("buffer_load_dword a{d}, v17, {SWD}, {lw} offen", d=160 + r)]
    def touch3(self):
        if not self.o("touch3", 1): return []
        return [J("s_lshr_b32 s3, s2, 3\ns_lshl2_add_u32 s3, s3, {w}\ns_lshl_b32 s3, s3, 14"), J("v_and_b32 v28, 60, v0"), J("v_lshlrev_b32 v28, 8, v28"),
                J("buffer_load_dword a172, v28, {SWD}, s3 offen offset:384")]
    def pretouch(self, d, r):
        pt = self.o("pt", 0); gs = []
        if pt & 1: gs += single(J("v_lshrrev_b32 v{r}, {a}, v0\nv_lshlrev_b32 v{r}, {b}, v{r}\ns_mov_b32 s3, 0x10f000\nbuffer_load_dword a{d}, v{r}, {SWS}, s3 offen", r=r, d=d, a=self.o("pta", 3), b=18 + self.o("pta", 3)))
        if pt & 4:
            g = self.o("ptg", 16); n = (17 << 20 >> g) // 128
            gs += single(J("v_min_u32 v{r}, {n}, v0\nv_lshlrev_b32 v{r}, {b}, v{r}\ns_lshr_b32 s3, s2, 3\ns_lshl2_add_u32 s3, s3, {w}\ns_lshl_b32 s3, s3, {g}\nbuffer_load_dword a{d}, v{r}, {SWS}, s3 offen offset:3968", r=r, d=d, n=n, b=g + 7, g=g))
        if pt & 2: gs += single(J("v_lshlrev_b32 v{r}, 19, {hi}\nbuffer_load_dword a{d}, v{r}, {SOUT}, 0 offen", r=r, d=d + 1))
        return gs
    def keep(self, du):
        sh = self.o("ksz", 5)
        if self.o("ksrc", 0) == 2: return [I("s_sleep %d" % sh)]
        if self.o("ksrc", 0) == 0:
            return single(J("s_lshl2_add_u32 s3, s2, {w}\ns_lshl_b32 s3, s3, {a}\ns_add_u32 s3, s3, {o}\nv_lshlrev_b32 v28, {b}, v0\nbuffer_load_dword a184, v28, {SWS}, s3 offen", o=32 << 20, a=sh + 6, b=sh))
        return chunks(J("s_lshr_b32 s3, s2, 3\ns_lshl2_add_u32 s3, s3, {w}\ns_lshl_b32 s3, s3, 13\nv_lshlrev_b32 v28, {b}, v0\nv_add_u32 v28, s3, v28\ns_and_b32 s3, {bp}, {m}\ns_cselect_b32 s3, 0xe0000, 0\nbuffer_load_dword a184, v28, {SWD}, s3 offen", b=sh, m=self.pair))
    def retouch(self):
        if not self.o("retouch", 1): return []
        l = self.lab("pc")
        return [J("s_getpc_b64 {m2}\n{l}:\ns_lshr_b32 s3, s2, 3\ns_lshl_b32 s3, s3, 2", l=l)] + single(J("""s_add_u32 s3, s3, {w}
s_lshl_b32 s3, s3, 9
v_lshl_add_u32 v28, v0, 3, s3
v_min_u32 v28, L_end-{l}, v28
global_load_dword a170, v28, {m2}""", l=l))

    def x1_pre(self):
        return J("""s_lshr_b32 {t0}, {bp}, 1
s_lshl3_add_u32 {t0}, {t0}, {jb}
s_lshl2_add_u32 {t0}, {t0}, {w}
s_lshl_b32 {t0}, {t0}, 7
s_and_b32 {t1}, {bp}, 1
s_add_u32 {t0}, {t0}, {t1}
s_lshl_b32 {t0}, {t0}, 5
s_add_u32 {t0}, {t0}, {x1}
v_and_b32 v26, 62, v0
v_lshl_add_u32 v26, v26, 4, {l16b}
v_add_u32 v25, 0x400, v26
s_lshl_b32 {t1}, {w}, 11
s_add_u32 m0, {t1}, {stg}""", x1=WS_X1, stg=LDS_STG)

    def eadr(self):
        return J("""s_xor_b32 {t1}, {bp}, {m}
s_lshr_b32 {t1}, {t1}, 2
s_lshl_b32 {t1}, {t1}, 6
s_add_u32 {t1}, {t1}, {rot}
s_add_u32 {t1}, {t1}, 1
s_lshr_b32 {t1}, {t1}, 1
s_lshl_b32 {t1}, {t1}, 7
s_add_u32 {wo1}, {t1}, {ef}
v_min_u32 {pa}, 2, {hi}
v_lshlrev_b32 {pa}, 7, {pa}""", m=self.pair, ef=WS_EF)
    def x1_fetch(self):
        return self.spin(self.POLL_LD) + J("buffer_load_dwordx4 v26, {SWS}, {t0} offen sc1 lds\nbuffer_load_dwordx4 v25, {SWS}, {t0} offen offset:1024 sc1 lds", tag="x1") + self.stamp(5)
    def setupA(self):
        return single(J("""s_lshl_b32 s76, {jb}, 1
s_lshr_b32 {t1}, {w}, 1
s_add_u32 s76, s76, {t1}
s_lshr_b32 {t1}, {bp}, 3
s_lshl_b32 {t1}, {t1}, 4
s_add_u32 s76, s76, {t1}
s_lshl_b32 s76, s76, 3
s_and_b32 {t1}, {bp}, 7
s_add_u32 s76, s76, {t1}
s_lshr_b32 {t1}, {bp}, 2
s_xor_b32 {t1}, {t1}, {w}
s_and_b32 {t1}, {t1}, 1
s_lshl1_add_u32 s76, s76, {t1}
s_lshl_b32 s76, s76, 6
s_add_u32 s76, s76, {u}
s_add_u32 s77, s76, 0x80000
s_add_u32 s78, s76, 0x100000
s_add_u32 s79, s76, 0x180000
v_lshrrev_b32 v24, 1, {l16}
v_lshlrev_b32 v26, 16, v24
v_and_b32 v25, 1, v0
v_lshl_add_u32 v26, v25, 5, v26
v_lshl_add_u32 {xr}, {hi}, 3, v26
s_lshl2_add_u32 {t0}, {jb}, {w}
v_and_or_b32 v28, v0, 7, {t0}
v_cmp_eq_u32 vcc, 0, v28
v_bfe_u32 v28, v0, 3, 1
v_xor_b32 v28, 1, v28
v_lshl_or_b32 v18, v28, 31, 1.0
s_lshl_b32 {t0}, {w}, 5
s_add_u32 {t0}, {t0}, {stg}
v_lshrrev_b32 v24, 3, v0
v_cndmask_b32 v18, v18, 0, vcc
v_lshl_add_u32 v19, v24, 8, {t0}
v_lshl_add_u32 v19, v25, 7, v19
v_bfe_u32 v25, v0, 1, 2
v_lshl_add_u32 v19, v25, 3, v19""", u=WS_U, stg=LDS_STG))
    def setupB(self):
        if self.pair: return single(J("""s_lshl_b32 {he}, {bp}, 8
s_add_u32 {he}, {he}, {rot}
s_lshl_b32 {he}, {he}, 10
s_xor_b32 {hs}, {he}, {hx}
s_andn2_b32 {t1}, {bp}, {m}
s_lshl_b32 {t1}, {t1}, 5
s_lshr_b32 {t0}, {rot}, 1
s_add_u32 {t0}, {t0}, {t1}
s_lshl_b32 {t0}, {t0}, 7
s_add_u32 {wo1}, {t0}, {fl}
v_lshrrev_b32 v24, 5, v0
v_mul_u32_u24 v24, {fx}, v24
v_bfe_u32 {pa}, v0, 3, 2
v_lshl_add_u32 {pa}, {pa}, 7, v24
@skip
s_lshl3_add_u32 {wo0}, {bp}, {nt}
s_lshl_b32 {wo0}, {wo0}, {ush}
s_add_u32 {wo0}, {wo0}, {cnt}
v_mov_b32 v19, 1
v_add_u32 v9, {r64}, {l16b}""", hx=self.pair << 18, m=self.pair, fx=self.pair << 12, fl=WS_FLAG, r64=LDS_R64I, cnt=WS_CNT, ush=self.o("ush", 5)))
        return single(J("""s_lshl_b32 {hs}, {bp}, 8
s_mul_i32 {t0}, {w}, 14
s_add_u32 {hs}, {hs}, {t0}
s_lshl_b32 {hs}, {hs}, 10
s_nop 0
s_nop 0
s_nop 0
s_mul_i32 {t0}, {w}, 7
s_lshl_b32 {t1}, {bp}, 5
s_add_u32 {t0}, {t0}, {t1}
s_lshl_b32 {t0}, {t0}, 7
s_add_u32 {wo1}, {t0}, {fl}
v_lshrrev_b32 v24, 3, v0
v_min_u32 {pa}, 6, v24
v_lshlrev_b32 {pa}, 7, {pa}
s_lshl3_add_u32 {wo0}, {bp}, {nt}
s_lshl_b32 {wo0}, {wo0}, {ush}
s_add_u32 {wo0}, {wo0}, {cnt}
v_mov_b32 v19, 1
v_add_u32 v9, {r64}, {l16b}""", hl=14 * 4096, fl=WS_FLAG, r64=LDS_R64I, cnt=WS_CNT, ush=self.o("ush", 5)))
    def setupC(self):
        return single(J("""s_lshl_b32 {wo1}, {w}, {ush6}
s_add_u32 {wo1}, {wo1}, {cnt}
v_lshlrev_b32 {pa}, {ush}, v0
s_lshl_b32 {t2}, {bp}, 16
s_lshl_b32 {t3}, {w}, 14
s_add_u32 {t2}, {t2}, {t3}
s_add_u32 {t2}, {t2}, {u}
s_lshl_b32 {t0}, {bp}, 8
s_add_u32 {t0}, {t0}, {g}
v_lshrrev_b32 v24, 1, {l16}
v_lshlrev_b32 v24, 7, v24
v_and_b32 v25, 1, v0
v_lshl_add_u32 v24, v25, 5, v24
v_lshrrev_b32 v27, 1, {hi}
v_bfe_u32 v28, v0, 3, 1
v_xor_b32 v28, v27, v28
v_lshl_add_u32 v24, v28, 6, v24
v_and_b32 v26, 1, {hi}
v_lshl_add_u32 {vw}, v26, 4, v24
v_lshrrev_b32 v24, 3, v0
v_xor_b32 v25, v24, v0
v_and_b32 v25, 7, v25
v_lshlrev_b32 v24, 15, v24
v_lshl_add_u32 {x}, v25, 4, v24
v_lshl_add_u32 v24, {w}, 1, v27
v_xor_b32 v24, v24, v0
v_and_b32 v24, 7, v24
v_lshlrev_b32 v24, 4, v24
v_lshl_add_u32 v24, {l16}, 7, v24
v_lshl_add_u32 v24, v26, 3, v24
v_add_u32 v6, {stg}, v24
s_lshl_b32 {t1}, {w}, 10
s_add_u32 {t1}, {t1}, {stg}
v_add_u32 v7, {t1}, {l16b}
v_lshlrev_b32 v8, 4, {l16}
s_lshl3_add_u32 s76, {bp}, {nt}
s_lshl_b32 s76, s76, 7
s_lshl_b32 {t1}, {w}, 18
s_add_u32 s76, s76, {t1}
s_add_u32 s77, s76, 0x100000""", u=WS_U, g=WS_G, stg=LDS_STG, cnt=WS_CNT, ush=self.o("ush", 5), ush6=self.o("ush", 5) + 6))
    def tail(self, ffn, nxt_t, nxt_d):
        st = dict(t=nxt_t, d=nxt_d)
        def pump(nd):
            gs = []
            for _ in range(nd):
                if st["d"] >= self.NU: break
                nx = self.loc(min(self.NU - 1, st["d"] + 1))[1]; pv = self.loc(st["d"])[1]
                while st["t"] <= max(-1 if nx is None else nx, -1 if pv is None else pv):
                    gs += self.T(st["t"]); st["t"] += 1
                gs += self.D(st["d"]); st["d"] += 1
            return gs
        def W(a, b): return flat(weave(a, b)) if b else flat(a)
        self.after_h = []
        c1, c2 = self.c_calc()
        p = flat(c1[:-8])
        mid2 = ffn and self.o("mid", 2) >= 2 and not self.o("x1late", 0)
        if self.cin: mid2 = True; p = []; c1 = []
        else: p += self.stamp(2, 3) + I("@wait cst\ns_barrier" if mid2 else "@wait x1 cst\ns_barrier") + self.stamp(3, 3)
        if ffn and not self.o("x1late", 0) and self.o("fpos", 0) == 3: p += self.set_flag() + self.stamp(4)
        XF, DD, PP, EE, PK, UP = 128, 136, 152, 168, 184, 128
        p += flat(c1[-8:])
        late1 = self.o("x1late", 0) or not ffn
        sB = self.setupB()
        if late1:
            rip = self.rip; gcs = self.g_calc() + [self.g_store()]
            nc2 = self.o("nc2", 71) if ffn else 71
            p += W(([] if rip else self.gen_R(2, 160)) + c2[:nc2], pump(self.o("pump0", 0) if ffn else 1))
            p += self.x1_pre() + self.stamp(4, 3)
            if ffn: p += self.set_flag() + self.stamp(4)
            p += self.x1_fetch() + self.stamp(5, 3)
            p += W(c2[nc2:] + (self.gen_R(1, 160, LDS_R64I) if rip else gcs) + sB[:18] + sB[19:], pump(self.o("pump1", 2)))
            p += self.stamp(6, 3) + I("@wait x1 rtab\ns_barrier") + self.stamp(7, 3)
            if self.o("hp", 1) == 0 and ffn: p += I(self.POLL_LD, tag="poll")
        if mid2:
            nc = self.o("nc3", 55)
            p += flat(c2[:nc]); c2 = c2[nc:]
            if self.o("mid", 2) == 4: p += self.set_flag() + self.stamp(4)
            p += I("@wait x1\ns_barrier")
        for k in range(4):
            p += I("ds_read_b64_tr_b16 %s, v19 offset:%d" % (V(XF + 2 * k, 2), 2048 * k))
        mf = [I("%s %s, %s, %s, %s" % (MF, V(DD + 4 * tau, 4), A(224 + (2 * tau + v) * 4, 4), V(XF + 4 * v, 4), V(DD + 4 * tau, 4) if v else "0")) for v in range(2) for tau in range(4)]
        if late1:
            G = Gaps(mf); pm = pump(self.o("pump2", 1))
            if pm: G.stream(pm, 0, 8)
            p += G.out() + sB[18] + flat([I("ds_read_b128 %s, v9 offset:%d" % (A((192 if rip else 224) + 4 * f, 4), f * 1024)) for f in range(8)])
            if self.o("hp", 1) == 1 and ffn: p += I(self.POLL_LD, tag="poll")
        elif mid2: p += flat(c2[:8]) + flat(weave(mf, c2[8:])) + self.stamp(4, 3)
        else: p += flat(weave(c2, mf, 12, 52)) + self.stamp(4, 3)
        dpp = "row_ror:8 row_mask:0xf bank_mask:0xf"
        cA, cB, cC, cD = CO, CO + 8, CO + 16, CO + 24
        def pk(op, d, a, b, neg=False):
            g = []
            for e in range(0, 8, 2):
                if op == "mul": g += I("v_pk_mul_f32 %s, %s, %s" % (V(d + e, 2), V(a + e, 2), V(b + e, 2)))
                else: g += I("v_pk_fma_f32 %s, %s, %s, %s%s" % (V(d + e, 2), V(a + e, 2), V(b + e, 2), V(d + e, 2), " neg_lo:[1,0,0] neg_hi:[1,0,0]" if neg else ""))
            return g
        fpos = -1 if late1 or not ffn or self.o("mid", 2) == 4 else self.o("fpos", 0)
        if fpos == 0: p += self.set_flag() + self.stamp(4)
        eadr = self.eadr()
        early = []
        hint = J("""s_bitcmp1_b32 {nt}, 2
s_cselect_b32 {t0}, {he}, {hs}
s_and_b32 {t1}, {nt}, 3
s_lshl_b32 {t1}, {t1}, 16
s_add_u32 {t0}, {t0}, {t1}
s_lshr_b32 {t1}, {wde}, 5
s_add_u32 {t0}, {t0}, {t1}
v_min_u32 v25, 2, {hi}
v_lshlrev_b32 v25, 11, v25
v_lshl_add_u32 v25, {l16}, 6, v25
buffer_load_dword a144, v25, {SWS}, {t0} offen sc1""")
        if self.o("hint", 0) == 1 and not late1: p += flat(sB[:4]) + hint
        if self.ef and not late1:
            p += flat(self.g_calc()) + self.g_store() + flat(sB[:4]) + J("s_lshr_b32 {t1}, {wde}, 5\nv_add_u32 v5, {t1}, {l16b}") + self.spin(self.POLL_LD) + self.stamp(7) + self.stamp(9, 3)
            for k in range(12):
                t, u = divmod(k, 3)
                early.append((J("s_add_u32 {ho}, {hs}, {o}", o=t * 65536 + u * 2048) if u != 1 else []) +
                             J("buffer_load_dwordx4 {r}, v5, {SWS}, {ho} offen offset:{o} sc1", tag="h%d" % k, r=V(192 + 4 * k, 4), o=2048 if u == 1 else 0))
        q = []
        for e in range(16): q += I("v_mul_f32_dpp v%d, v%d, v18 %s" % (PP + e, DD + e, dpp))
        q += pk("mul", EE, cA, DD) + pk("mul", EE + 8, cC, DD) + pk("fma", EE, cB, PP) + I("v_mov_b32 v%d, v%d\nv_mov_b32 v%d, v%d" % (cA, CA2, cB, CB2))
        q += pk("fma", EE + 8, cD, PP) + pk("fma", EE, cC, DD + 8, True) + pk("fma", EE + 8, cA, DD + 8) + pk("fma", EE, cD, PP + 8, True) + pk("fma", EE + 8, cB, PP + 8)
        p += W(single(q), early + pump(self.o("pump3", 0)))
        p += self.pack(PK, EE)
        mf = [I("%s %s, %s, %s, %s" % (MF, V(DD + 4 * kt, 4), V(PK + 4 * v, 4), A(192 + (2 * kt + v) * 4, 4), V(DD + 4 * kt, 4) if v else "0")) for v in range(2) for kt in range(4)]
        q = self.pack(PK + 4, EE + 8)
        p += q[:2]
        G = Gaps(mf); G.put(0, q[2:])
        if not late1: G.stream(sB[4 if self.ef else 0:15], 1, 8, spread=False)
        elif self.o("hp", 1) == 2 and ffn: G.put(1, I(self.POLL_LD, tag="poll"))
        p += G.out()
        if fpos == 1: p += self.set_flag() + self.stamp(4)
        for kt in range(4):
            p += cvt(UP + 2 * kt, DD + 4 * kt, DD + 4 * kt + 1) + cvt(UP + 2 * kt + 1, DD + 4 * kt + 2, DD + 4 * kt + 3)
            p += J("buffer_store_dwordx2 {r}, {xr}, {SWS}, s{so} offen sc1", tag="ust", r=V(UP + 2 * kt, 2), so=76 + kt)
        if self.o("hint", 0) == 2 and not late1: p += hint
        p += self.stamp(6) + self.stamp(8 if late1 else 5, 3)
        l = self.lab("nosig")
        usig = I("@wait ust gst rtab") + J("s_barrier\ns_cmp_lg_u32 {w}, 0") + \
               J("s_cbranch_scc1 {l}\ns_mov_b64 exec, 1\nbuffer_store_dword v19, v0, {SWS}, {wo0} offen sc1\ns_mov_b64 exec, -1\n{l}:", raw=True, l=l)
        if late1:
            if not ffn:
                gG = self.gen_G(136, True)
                p += W(gG[:8], pump(2)) + usig + W(gG[8:], pump(3)) + flat(pump(2)) + (eadr if self.ef else []) + I(self.POLL_LD, tag="poll") + flat(pump(9))
                usig = []
            else: p += W(gcs + self.gen_R(2, 160, LDS_RPF), pump(self.o("pumpb", 2))) if rip else flat(pump(self.o("pumpb", 2)))
            if rip: usig += J("v_add_u32 v9, {a}, {l16b}", a=LDS_RPF) + flat([I("ds_read_b128 %s, v9 offset:%d" % (A(224 + 4 * f, 4), f * 1024)) for f in range(8)])
            if self.o("hp", 1) == 3 and ffn: p += I(self.POLL_LD, tag="poll")
            p += flat(pump(self.o("pumpc", 0)))
            if self.o("upos", 0) == 0: p += usig
        elif self.ef:
            pass
        else:
            if fpos == 2: p += self.set_flag() + self.stamp(4)
            p += flat(self.g_calc()) + self.g_store() + flat(sB[15:])
            ue = self.o("ue", 2)
            gr = [[]] if self.o("r2p", 0) else self.gen_R(2, 160)
            if ue >= 3: place(gr, min(len(gr) - 1, self.o("pq", 0)), I(self.POLL_LD, tag="poll"))
            p += W(gr, pump(self.o("pumpa", 1)))
            r64 = flat([I("ds_read_b128 %s, v9 offset:%d" % (A(224 + 4 * f, 4), f * 1024)) for f in range(8)])
            if ue == 1: p += self.stamp(6, 3) + usig + r64 + self.stamp(7, 3)
            if ue < 3: p += I(self.POLL_LD, tag="poll")
            if ue in (2, 3): p += self.stamp(6, 3) + usig + ([] if ue == 3 else r64) + self.stamp(7, 3)
            if ue == 3: self.after_h = r64
            if ue == 4: self.after_h = usig + r64
            tpre = max(st["t"], min(st["d"], self.o("tpre0", 6 if ue < 3 else 0)))
            p += flat(self.TT(st["t"], tpre)); st["t"] = tpre
            p += flat(pump(self.o("pumpb", 2)))
            if ue == 0: p += usig + r64
            p += self.stamp(8, 3)
        xo = self.o("xo", 0)
        if xo > 0: p += J("v_lshl_add_u32 v44, {rot}, 10, {l16b}\nv_xor_b32 v45, 0x400, v44\nv_xor_b32 v46, 0x800, v44\nv_xor_b32 v47, 0xc00, v44\nv_and_b32 v4, 0x7ff, v44\nv_and_b32 v18, 0x7ff, v45")
        if not early:
            if not (self.o("strip", 0) & 8192 and ffn): p += self.spin(self.POLL_LD)
            p += self.stamp(7) + self.stamp(9, 3)
        if self.ef:
            r64 = [I("ds_read_b128 %s, v9 offset:%d" % (A(224 + 4 * f, 4), f * 1024)) for f in range(8)]
            if late1: return p + self.p4pair(ffn, st, pump, W, sB[4:14], [], [])
            if self.o("r2p", 0): return p + self.p4pair(ffn, st, pump, W, None, sB[15:] + r64, [usig])
            return p + self.p4pair(ffn, st, pump, W, None, sB[15:] + self.gen_R(2, 32), [usig] + r64)
        if self.pair: return p + self.p4pair(ffn, st, pump, W)
        NS = 16; na = self.o("na", 8)
        order = [(u, s_) for u0 in range(0, na, 2) for s_ in range(4) for u in (u0, u0 + 1)] + [(u, s_) for s_ in range(4) for u in range(na, 14)]
        pos_ = dict((x_, k) for k, x_ in enumerate(order))
        hb = [None]
        def hload(k):
            u, s_ = order[k]; gs = []; o = s_ * 65536 + u * 1024
            if hb[0] is None or not hb[0] <= o < hb[0] + 4096:
                hb[0] = o; gs.append(J("s_add_u32 {ho}, {hs}, {o}", o=o))
            return gs + [J("buffer_load_dwordx4 {r}, {l16b}, {SWS}, {ho} offen offset:{o} sc1", tag="h%d" % k, r=V(192 + 4 * (k % NS), 4), o=o - hb[0])]
        npre = self.o("npre", 12)
        redadr = []
        for dl in range(4):
            redadr += J("s_xor_b32 {t1}, {w}, {dl}\ns_mul_i32 {t1}, {t1}, 3072\ns_add_u32 {t1}, {t1}, {o}\nv_add_u32 v{r}, {t1}, {l16b}", dl=dl, o=76 * 1024 + max(0, dl - 1) * 1024, r=32 + dl)
        ro = [61440 if self.rip else 53248, 0, 12288, 24576]
        p += W([g for k in range(npre) for g in hload(k)], self.setupC())
        tpre = max(st["t"], min(st["d"], self.o("tpre", 4)))
        p += flat(self.TT(st["t"], tpre)); st["t"] = tpre
        if late1 and self.o("upos", 0) == 1: p += usig
        s5 = self.o("s5", 80); AO = GB; LA = self.o("la5", 10); PK5 = 36
        def m4(k, dl):
            u, s_ = order[k]; d = V(128 + (dl * 4 + s_) * 4, 4)
            return I("%s %s, %s, %s, %s" % (MF, d, A(self.wd_reg(u, dl), 4), V(192 + 4 * (k % NS), 4), d if u else "0"))
        ar = lambda k: A(self.wd_reg((k % 16) // 4, k % 4), 4)
        def m5(k):
            n, sg = divmod(k, 4); d = V(ACCV + 4 * sg, 4)
            return I("%s %s, %s, %s, %s" % (MF, d, ar(k), V(GB + 4 * n, 4), d if n else "0"))
        mf = []; at = {}; k5 = 0; fin = None
        for i in range(224):
            k, dl = divmod(i, 4)
            if order[k][0] == 13: dl = (dl + 1) % 4
            at[(k, i % 4)] = len(mf); mf.append(m4(k, dl))
            if i >= s5 and k5 < 64:
                at[k5] = len(mf); mf.append(m5(k5)); k5 += 1
            if k5 == 64 and fin is None and len(mf) >= at[63] + 12:
                fin = len(mf)
                mf += [I("%s %s, %s, %s, %s" % (MF, V(AO + 4 * a_, 4), V(PK5 + 4 * v, 4), A(224 + (2 * a_ + v) * 4, 4), V(AO + 4 * a_, 4) if v else "0")) for v in range(2) for a_ in range(4)]
        assert at[0] - LA >= 64 and na >= 4
        G = Gaps(mf); N = len(mf)
        for k in range(1, 56): G.put(at[(k, 0)] - 1, I("@must h%d" % k))
        for k in range(64):
            pos = at[k - LA] if k >= LA else at[0] - (LA - k)
            if k % 16 == 0: G.put(pos - 1, I("@must u%d\ns_barrier" % (k // 16)))
            G.put(pos, J("ds_read_b128 {r}, {vw} offset:{o}", tag="a%d" % k, r=ar(k), o=(k % 4) * 16384 + (k // 4) * 1024))
            if k % 2 == 0: G.put(at[k] - 1, I("@wait a%d" % (k + 1)))
        G.put(at[0] + 1, J("buffer_load_dwordx4 v[20:23], v8, {SWS}, {t0} offen sc1"))
        hd = self.o("hd", 48)
        def ud(c):
            return [J("s_add_u32 m0, {t3}, {o}", o=c * 4096)] + ([J("s_add_u32 {t2}, {t2}, 4096")] if c else []) + \
                   [J("buffer_load_dwordx4 {l16b}, {SWS}, {t2} offen offset:{o} sc1 lds", tag="u%d" % c, o=1024 * k) for k in range(4)]
        use = lambda u: at[(pos_[(u, 0)], 0)]
        occ = lambda c: max([u for u in range(14) if self.loc(u)[0] == 0 and self.loc(u)[2] == c] + [-1])
        items = [(at[(k, 0)], 1, k) for k in range(npre, 56)] + [(at[16 * c] - (2 if c else 1) * LA - 1, 0, c) for c in range(4)]
        for n_, u in enumerate(range(st["d"], 14)):
            lim = use(u) - 24
            if self.loc(u)[0] == 0: lim = min(lim, at[16 * self.loc(u)[2]] - 2 * LA - hd - 20)
            items.append((min(lim, hd + self.o("l0", 0) + n_ * self.o("lsp", 16)), 2, u))
        items.sort()
        last = 0; dpos = {}; upos_ = {}
        for need, kind, k in items:
            want = max(last, need - hd)
            if kind == 1:
                w_ = max(want, last + 1, at[(k - NS, 3)] if k >= NS else 0)
                last = G.stream(hload(k), w_, w_ + 4, spread=False)
            elif kind == 2:
                dpos[k] = want; last = G.stream(self.D(k), want + 1, want + 9); dpos[k, "e"] = last
            else:
                upos_[k] = want
                if k == 0:
                    G.put(max(0, want - self.o("pgap", 44)), I(self.POLL_LD, tag="poll"))
                    G.put(want, self.stamp(8) + I("@wait poll") + self.spin(self.POLL_LD, sleep=self.o("slu", 0)))
                last = G.stream(([I("@must t%d" % occ(k))] if occ(k) >= 0 else []) + ud(k), want + 1, want + 11)
        dl_ = {}
        for u in range(13, st["t"] - 1, -1):
            d_ = min([use(u) - 3] + [dpos[v] for v in range(14) if v in dpos and self.loc(v)[1] == u] + [upos_[c] for c in range(4) if occ(c) == u])
            dl_[u] = min(d_, dl_[u + 1] - 5) if u < 13 else d_
        e = 0; tearly = []
        for u in range(st["t"], 14):
            if dl_[u] < 8:
                assert u not in dpos
                tearly += self.T(u); continue
            a_ = max(e, dl_[u] - 14, 0)
            assert a_ > dpos.get((u, "e"), -1), (u, a_, dpos)
            e = G.stream(self.T(u), a_, dl_[u], spread=False)
            assert e <= dl_[u]
        p += flat(tearly)
        G.stream(single(redadr), 8, 60)
        def red_w(s_): return [I("ds_write_b128 v%d, %s offset:%d" % (32 + dl, V(128 + (dl * 4 + s_) * 4, 4), ro[s_]), tag="rw%d" % s_) for dl in (1, 2, 3)]
        def red_r(s_): return [I("ds_read_b128 %s, v32 offset:%d" % (V(128 + (dl * 4 + s_) * 4, 4), ro[s_] + (dl - 1) * 1024), tag="rr%d" % s_) for dl in (1, 2, 3)]
        def red_a(s_):
            b = 128 + 4 * s_
            return single([I("v_add_f32 v%d, v%d, v%d" % (b + o + r, b + o + r, b + o + q + r)) for o, q in ((0, 16), (32, 16), (0, 32)) for r in range(4)])
        def mix(a_):
            b = 128 + 4 * a_
            return single(I("\n".join("v_fma_f32 v%d, v%d, v%d, v%d" % (b + r, b + r, 20 + a_, AO + 4 * a_ + r) for r in range(4))) +
                          cvt(56 + 2 * a_, b, b + 1) + cvt(57 + 2 * a_, b + 2, b + 3) + I("ds_write_b64 v6, %s offset:%d" % (V(56 + 2 * a_, 2), a_ * 2048), tag="ow%d" % a_))
        G.stream(single(self.pack(PK5, ACCV) + self.pack(PK5 + 4, ACCV + 8)), at[63] + 4, fin - 1, spread=False)
        gm = I("\n".join("v_mul_f32 v%d, %s, v%d" % (GB + 16 + a_, fhex(2.0 ** -19), 20 + a_) for a_ in range(4)))
        gm += I("\n".join("v_sub_f32 v%d, 1.0, v%d" % (20 + a_, 20 + a_) for a_ in range(4)))
        bars = {}; rend = {}
        for s_ in range(3):
            e = at[(pos_[(13, s_)], 3)]
            e = G.stream(red_w(s_), e + 3, e + 9)
            bars[s_] = e + 4
            G.put(e + 4, I("@must rw%d t13%s\ns_barrier" % (s_, " ow1" if s_ == 2 else "")))
            e = G.stream(red_r(s_) + ([I("ds_read_b128 v[36:39], v7")] if s_ == 2 else []), e + 5, e + 10, spread=False)
            if s_ < 2:
                G.put(e + 5, I("@wait rr%d" % s_))
                rend[s_] = G.stream(red_a(s_), e + 6, e + 16, spread=False)
        e = G.stream(single(gm), fin, fin + 8, spread=False)
        e = G.stream(single(I("\n".join("v_mul_f32 v%d, v%d, v%d" % (AO + i, GB + 16 + i // 4, AO + i) for i in range(16)))), max(e, fin + 9), fin + 24, spread=False)
        e = G.stream(mix(0), max(e, rend[0]) + 1, bars[2] - 6, spread=False)
        e = G.stream(mix(1), max(e, rend[1]) + 1, bars[2] - 1, spread=False)
        assert e < bars[2]
        ost = lambda h_: J("buffer_store_dwordx4 {r}, {x}, {SOUT}, s{so} offen {f}", r=V(36 + 4 * h_, 4), so=76 + h_, f=("", "sc1", "nt")[self.o("ost", 1)])
        ra = red_a(2); nfit = max(0, min(12, 2 * (N - bars[2] - 11)))
        if nfit: G.stream(ra[:nfit], bars[2] + 10, N, spread=False)
        for i in range(10): G.put(min(32 * i, len(G) - 1), self.stamp(i, 2))
        p += G.out()
        p += self.stamp(9)
        p += ost(0) + flat(weave(red_w(3), ra[nfit:] + mix(2))) + I("@wait rw3\ns_barrier") + flat(red_r(3))
        for o, q in ((0, 16), (32, 16), (0, 32)):
            for hh in (0, 2): p += I("v_pk_add_f32 %s, %s, %s" % (V(140 + o + hh, 2), V(140 + o + hh, 2), V(140 + o + q + hh, 2)))
        p += flat(mix(3)) + I("@waitlg0\ns_barrier\nds_read_b128 v[40:43], v7 offset:4096") + ost(1)
        return p + self.ending(ffn)

    def p4pair(self, ffn, st, pump, W, ladr=None, fill=None, usig=None):
        NS = 16; hb = [None]; ef = self.ef
        order = [(t, u) for t in range(8) for u in range(7)]
        if ef: order = [(t, u) for t in range(4) for u in range(3)] + [(t, u) for t in range(4) for u in range(3, 7)] + [(t, u) for t in range(4, 8) for u in (0, 3, 1, 4, 2, 5, 6)]
        pos_ = dict((x_, k) for k, x_ in enumerate(order))
        def hload(k):
            t, u = order[k]; gs = []
            o = t * 65536 + (2 * (u % 3) if ef and u < 6 else u) * 1024
            if hb[0] is None or not hb[0] <= o < hb[0] + 4096:
                hb[0] = o; gs.append(J("s_add_u32 {ho}, {b}, {o}", o=o & 0x3ffff, b=NM["hs" if t < 4 else "he"]))
            return gs + [J("buffer_load_dwordx4 {r}, {a}, {SWS}, {ho} offen offset:{o} sc1", tag="h%d" % k, r=V(192 + 4 * (k % NS), 4), o=o - hb[0],
                           a=("v44", "v45")[u // 3] if ef and u < 6 else NM["l16b"])]
        npre = self.o("npre", 12)
        adr = []
        for dl in range(4):
            adr += J("s_xor_b32 {t1}, {w}, {dl}\ns_mul_i32 {t1}, {t1}, 3072\ns_add_u32 {t1}, {t1}, {o}\nv_add_u32 v{r}, {t1}, {l16b}", dl=dl, o=76 * 1024 + max(0, dl - 1) * 1024, r=32 + dl)
        adr += J("""s_lshl3_add_u32 {t1}, {bp}, {nt}
s_lshl_b32 {wo0}, {t1}, 7
s_add_u32 {wo0}, {wo0}, {pf}
s_lshl2_add_u32 s78, {t1}, {w}
s_lshl_b32 s78, s78, 12
s_xor_b32 s79, s78, {px}
s_add_u32 s78, s78, {pb}
s_add_u32 s79, s79, {pb}""", pf=WS_PF, pb=WS_P, px=self.pair << 17)
        ro = [61440 if self.rip else 53248, 0, 12288, 24576]
        sC = self.setupC()
        if ef:
            npre = 12
            p = J("s_lshr_b32 {t1}, {wde}, 5\nv_add_u32 v44, {t1}, {l16b}\nv_xor_b32 v45, 0x400, v44")
            if ladr is not None: p += flat([hload(k) for k in range(npre)]) + flat(ladr) + flat(pump(7))
            else: p = W(fill, pump(7)) + p
            p += flat(self.TT(st["t"], 3)); st["t"] = max(st["t"], 3)
        else:
            if self.o("hfirst", 0): p = flat(pump(7)) + flat([hload(k) for k in range(npre)]) + self.after_h + W(sC + single(adr), self.TT(st["t"], 7))
            else: p = flat(pump(7)) + W([g for k in range(npre) for g in hload(k)], sC + single(adr[:16])) + self.after_h + adr[16:] + flat(self.TT(st["t"], 7))
        s5 = self.o("s5", 150); AO = GB; LA = self.o("la5", 10); PK5 = 36; RC = GB + 24
        def m4(k, dl):
            t, u = order[k]; d = V(128 + (dl * 4 + t % 4) * 4, 4)
            return I("%s %s, %s, %s, %s" % (MF, d, A(self.wd_reg(u, dl), 4), V(192 + 4 * (k % NS), 4), d if u else "0"))
        ar = lambda k: A(80 + 4 * (k % 16), 4)
        def m5(k):
            n, sg = divmod(k, 4); d = V(ACCV + 4 * sg, 4)
            return I("%s %s, %s, %s, %s" % (MF, d, ar(k), V(GB + 4 * n, 4), d if n else "0"))
        mf = []; at = {}; k5 = 0; fin = None
        for i in range(224):
            k, dl = divmod(i, 4)
            if order[k][1] == 6: dl = (dl + 1) % 4
            at[(k, i % 4)] = len(mf); mf.append(m4(k, dl))
            for _ in range(self.o("r5", 2)):
              if i >= s5 and k5 < 64:
                at[k5] = len(mf); mf.append(m5(k5)); k5 += 1
            if k5 == 64 and fin is None and len(mf) >= at[63] + 12:
                fin = len(mf)
                mf += [I("%s %s, %s, %s, %s" % (MF, V(AO + 4 * a_, 4), V(PK5 + 4 * v, 4), A(224 + (2 * a_ + v) * 4, 4), V(AO + 4 * a_, 4) if v else "0")) for v in range(2) for a_ in range(4)]
        G = Gaps(mf); N = len(mf)
        for k in range(1, 56): G.put(at[(k, 0)] - 1, I("@must h%d" % k))
        for k in range(64):
            pos = at[k - LA] if k >= LA else at[0] - (LA - k)
            if k % 16 == 0: G.put(pos - 1, I("@must u%d\ns_barrier" % (k // 16)))
            G.put(pos, J("ds_read_b128 {r}, {vw} offset:{o}", tag="a%d" % k, r=ar(k), o=(k % 4) * 16384 + (k // 4) * 1024))
            if k % 2 == 0: G.put(at[k] - 1, I("@wait a%d" % (k + 1)))
        G.put(at[0] + 1, J("buffer_load_dwordx4 v[20:23], v8, {SWS}, {t0} offen sc1"))
        hd = self.o("hd", 48)
        def ud(c):
            return [J("s_add_u32 m0, {t3}, {o}", o=c * 4096)] + ([J("s_add_u32 {t2}, {t2}, 4096")] if c else []) + \
                   [J("buffer_load_dwordx4 {l16b}, {SWS}, {t2} offen offset:{o} sc1 lds", tag="u%d" % c, o=1024 * k) for k in range(4)]
        items = sorted([(at[(k, 0)], 1, k) for k in range(npre, 56)] + [((at[16 * c - LA] if c else at[0] - LA) - 1, 0, c) for c in range(4)])
        last = 0
        if ef:
            up = self.o("up", 8)
            if usig: G.put(up, usig[0] + self.stamp(6, 3))
            if usig and usig[1:]: G.stream(usig[1:], 70, 110)
            G.put(self.o("lp", 10), I(self.POLL_LD, tag="poll"))
            last = self.o("lc", 40)
            G.put(last, I("@wait poll") + self.spin(self.POLL_LD) + self.stamp(7, 3))
            G.stream(sC[:3], last + 1, last + 5, spread=False)
            e = G.stream(self.TT(st["t"], 7), 8, 46) if st["t"] < 7 else 0
            assert e < 47
            e = G.stream(single(adr[:16]) + sC[3:], 0, 62, spread=False)
            G.stream(single(adr[16:]), max(e, up) + 1, 70, spread=False)
        for need, kind, k in items:
            want = max(last, need - hd)
            if kind == 1:
                w_ = max(want, last + 1, at[(k - NS, 3)] if k >= NS else 0)
                last = G.stream(hload(k), w_, w_ + 4, spread=False)
            else:
                if k == 0:
                    G.put(max(self.o("lc", 40) + 6 if ef else 0, want - self.o("pgap", 44)), I(self.POLL_LD, tag="poll"))
                    G.put(want, self.stamp(8) + I("@wait poll") + self.spin(self.POLL_LD, sleep=self.o("slu", 0)))
                    G.stream(single(J("s_xor_b32 {wo1}, {wo0}, {o}\nv_mov_b32 {pa}, 0", o=self.pair << 10)), want + 1, want + 20)
                last = G.stream(ud(k), want + 1, want + 11)
        def red_w(t): return [I("ds_write_b128 v%d, %s offset:%d" % (32 + dl, V(128 + (dl * 4 + t % 4) * 4, 4), ro[t % 4]), tag="rw%d" % t) for dl in (1, 2, 3)]
        def red_r(t): return [I("ds_read_b128 %s, v32 offset:%d" % (V(128 + (dl * 4 + t % 4) * 4, 4), ro[t % 4] + (dl - 1) * 1024), tag="rr%d" % t) for dl in (1, 2, 3)]
        def red_a(t):
            b = 128 + 4 * (t % 4)
            return single([I("v_add_f32 v%d, v%d, v%d" % (b + o + r, b + o + r, b + o + q + r)) for o, q in ((0, 16), (32, 16), (0, 32)) for r in range(4)])
        mi = self.o("mi", 24)
        def mix(a_):
            b = 128 + 4 * a_
            return single(([] if mi else I("v_pk_add_f32 %s, %s, %s\nv_pk_add_f32 %s, %s, %s" % (V(b, 2), V(b, 2), V(RC + 4 * a_, 2), V(b + 2, 2), V(b + 2, 2), V(RC + 4 * a_ + 2, 2)))) +
                          I("\n".join("v_fma_f32 v%d, v%d, v%d, v%d" % (b + r, b + r, 20 + a_, AO + 4 * a_ + r) for r in range(4))) +
                          cvt(56 + 2 * a_, b, b + 1) + cvt(57 + 2 * a_, b + 2, b + 3) + I("ds_write_b64 v6, %s offset:%d" % (V(56 + 2 * a_, 2), a_ * 2048), tag="ow%d" % a_))
        left = []; sent = 0; b16 = self.o("b16", 1); wg = self.o("wg", 4)
        rounds = {0: [[0], [1], [2], [3], [4], [5], [6]], 1: [[0, 1], [2, 3], [4, 5], [6]], 2: [[0, 1], [2, 3], [4, 5, 6]], 3: [[0, 1, 2], [3], [4, 5, 6]]}[self.o("rnd", 1)]
        if len(rounds[0]) > 1: G.put(at[(pos_[(1, 6)], 0)] - self.o("eb", 10), I("@must t6\ns_barrier"))
        for rd_ in rounds:
            for t in rd_:
                e = at[(pos_[(t, 6)], 3)]
                e = G.stream(red_w(t), e + 3, e + (9 if t == rd_[-1] else 20))
            G.put(e + wg, I("@must rw%d t6\ns_barrier" % rd_[-1]))
            e = G.stream([g for t in rd_ for g in red_r(t)], e + wg + 1, e + wg + 2 + 4 * len(rd_), spread=False)
            e0_ = e + 5 - 3 * (len(rd_) - 1)
            for t in rd_:
                ra = [I("@wait rr%d" % t)] + red_a(t); nfit = 0 if left else max(0, min(13, 2 * (N - e0_ - 2)))
                if nfit: e0_ = G.stream(ra[:nfit], e0_, min(N, e0_ + 11), spread=False)
                left += ra[nfit:]
                if t < 4 and b16:
                    o = 24 + 4 * (t // 2) + 2 * (t & 1); b = 128 + 4 * t
                    e0_ = sent = G.stream([cvt(o, b, b + 1), cvt(o + 1, b + 2, b + 3)] + ([J("buffer_store_dwordx4 {r}, {l16b}, {SWS}, s79 offen offset:{o} sc1", tag="snd", r=V(o - 2, 4), o=(t // 2) * 1024)] if t & 1 else []), e0_, e0_ + 4, spread=False)
                elif t < 4: sent = G.stream([J("buffer_store_dwordx4 {r}, {l16b}, {SWS}, s79 offen offset:{o} sc1", tag="snd", r=V(128 + 4 * t, 4), o=t * 1024)], e0_ + 1, e0_ + 4)
                assert t >= 4 or sent + 2 < at[(pos_[(t + 4, 0)], 0)]
        l = self.lab("nop")
        fp = sent + self.o("sgap", 34)
        G.put(fp, I("@must snd") + J("s_barrier\ns_cmp_lg_u32 {w}, 0") +
              J("s_cbranch_scc1 {l}\ns_mov_b64 exec, 1\nbuffer_store_dword v19, v0, {SWS}, {wo0} offen sc1\ns_mov_b64 exec, -1\n{l}:", raw=True, l=l))
        rc = N - self.o("rc", 54); assert (b16 or rc > at[40]) and rc - self.o("rgap", 24) > fp
        G.put(rc - self.o("rgap", 24), I(self.POLL_LD, tag="poll"))
        G.put(fp, self.stamp(0, 5))
        G.put(rc, self.stamp(1, 5) + I("@wait poll") + self.spin(self.POLL_LD) + self.stamp(2, 5))
        G.stream([J("buffer_load_dwordx4 {r}, {l16b}, {SWS}, s78 offen offset:{o} sc1", r=V((24 if b16 else RC) + 4 * t, 4), o=t * 1024) for t in range(2 if b16 else 4)], rc + 1, rc + 6, spread=False)
        if b16 and not mi: left += single([J("v_lshlrev_b32 v{d0}, 16, v{s}\nv_and_b32 v{d1}, {hi16}, v{s}", d0=RC + 2 * i, d1=RC + 2 * i + 1, s=24 + i) for i in range(8)])
        G.stream(single(self.pack(PK5, ACCV) + self.pack(PK5 + 4, ACCV + 8)), at[63] + 4, fin - 1, spread=False)
        gm = I("\n".join("v_mul_f32 v%d, %s, v%d" % (GB + 16 + a_, fhex(2.0 ** -19), 20 + a_) for a_ in range(4)))
        gm += I("\n".join("v_sub_f32 v%d, 1.0, v%d" % (20 + a_, 20 + a_) for a_ in range(4)))
        e = G.stream(single(gm), fin, fin + 8, spread=False)
        e = G.stream(single(I("\n".join("v_mul_f32 v%d, v%d, v%d" % (AO + i, GB + 16 + i // 4, AO + i) for i in range(16)))), max(e, fin + 9), min(N, fin + (20 if mi else 30)), spread=False)
        m01 = mix(0) + mix(1)
        if mi:
            q = []
            for i in range(8):
                q += J("v_lshlrev_b32 v{d0}, 16, v{s}\nv_and_b32 v{s}, {hi16}, v{s}\nv_fmac_f32 v{a0}, v{g}, v{d0}\nv_fmac_f32 v{a1}, v{g}, v{s}", d0=RC + i, s=24 + i, g=20 + i // 2, a0=AO + 2 * i, a1=AO + 2 * i + 1)
            q = single(q[:16]) + m01 + single(q[16:]); nf = self.o("nf", 30)
            G.stream(q[:nf], max(e + 1, N - mi), N, spread=False); m01 = q[nf:]
        ost = lambda h_: J("buffer_store_dwordx4 {r}, {x}, {SOUT}, s{so} offen {f}", r=V(36 + 4 * h_, 4), so=76 + h_, f=("", "sc1", "nt")[self.o("ost", 1)])
        for i in range(10): G.put(min(32 * i, len(G) - 1), self.stamp(i, 2))
        go = G.out(); x_ = self.o("strip", 0)
        if x_ & 1024: go = [i for i in go if i.op != "s_barrier"]
        if x_ & 2048: go = [Ins("s_nop 0", i.tag) if i.cls == "ds" and i.tag and i.tag[:2] in ("rw", "rr") else i for i in go]
        if x_ & 16384: go = [i for i in go if not (i.cls == "mfma" and i.text.split()[1] in ("v[48:51],", "v[52:55],", "v[56:59],", "v[60:63],")) and not (i.tag and i.tag[0] == "a")]
        if x_ & 4096: go = [i for i in go if not (i.raw and "s_mem" not in i.op)]
        p += go
        p += self.stamp(9)
        nl = self.o("nl", 4)
        p += self.stamp(3, 5) + flat(left[:nl]) + self.stamp(4, 5) + flat(weave(red_w(7), left[nl:] + m01, self.o("nl2", 0))) + self.stamp(5, 5) + I("@wait rw7 ow1\ns_barrier") + self.stamp(6, 5) + flat(red_r(7)) + I("ds_read_b128 v[36:39], v7") + flat(mix(2))
        for o, q in ((0, 16), (32, 16), (0, 32)):
            for hh in (0, 2): p += I("v_pk_add_f32 %s, %s, %s" % (V(140 + o + hh, 2), V(140 + o + hh, 2), V(140 + o + q + hh, 2)))
        p += ost(0) + flat(mix(3)) + self.stamp(7, 5) + I("@waitlg0\ns_barrier") + self.stamp(8, 5) + I("ds_read_b128 v[40:43], v7 offset:4096") + ost(1) + self.stamp(9, 5)
        return p + self.ending(ffn)

    def ending(self, ffn):
        p = []
        if "diag" in self.kw:
            i = self.kw["diag"]; l = self.lab("dg"); who = self.o("who", 0)
            use = i >= 0 and (who == 0 or (who == 1) == ffn)
            p += I("@waitvm0") + self.stamp(10) + I("s_waitcnt lgkmcnt(0)")
            p += I("s_add_u32 s3, %s, 5000" % ("s%d" % (48 + 2 * i) if use else "s100"))
            if "dx" in self.kw: p += I("s_and_b32 s98, s2, 7\ns_cmp_eq_u32 s98, %d\ns_cselect_b32 s3, s3, s100" % self.kw["dx"])
            p += I("%s:\ns_sleep 1\ns_memrealtime s[98:99]\ns_waitcnt lgkmcnt(0)\ns_sub_u32 s98, s98, s3\ns_cmp_lt_i32 s98, 0\ns_cbranch_scc1 %s" % (l, l), raw=True)
        elif self.prof:
            p += I("@waitvm0") + self.stamp(10) + I("s_waitcnt lgkmcnt(0)")
            p += J("s_lshl_b32 s3, s2, 2\ns_add_u32 s3, s3, {w}\ns_lshl_b32 s3, s3, 6\ns_add_u32 s3, s3, {o}\nv_mov_b32 v32, s100", o=WS_PROF)
            for i in range(11): p += I("v_mov_b32 v%d, s%d" % (33 + i, 48 + 2 * i))
            p += I("s_mov_b64 exec, 1")
            for i in range(3): p += I("buffer_store_dwordx4 %s, v0, %s, s3 offen offset:%d" % (V(32 + 4 * i, 4), SWS, 16 * i))
        return p + I("s_endpgm")

    def text(self):
        st = {}
        hdr = open("gated_mix__spectral_gfnet__glu_gated_reglu__prompt.s.ref").read().split("; Override launch")[0]
        out = [hdr.rstrip(), "; One persistent launch: 256 workgroups (one per CU) x 4 waves. Written by my own generator scripts.",
               "; @launch grid=(256,1,1) block=(256,1,1) lds=163840", '.amdgcn_target "amdgcn-amd-amdhsa--gfx950"', ".text",
               ".globl " + NAME, ".p2align 8", ".type %s,@function" % NAME, NAME + ":"]
        prog = self.prologue() + self.p12f() + I("L_dft:") + self.p12d() + I("L_end:\ns_endpgm")
        x = self.o("strip", 0)
        if x & 1: prog = [i for i in prog if i.cls != "mfma"]
        if x & 2: prog = [i for i in prog if not (i.cls == "ds" and i.op.startswith("ds_read"))  or i.tag and not seen_tag(i.tag)]
        if x & 4: prog = [i if not (i.cls == "vmem" and i.tag == "pub") else Ins(i.text.replace("v14", "v0").replace("dwordx4", "dword").replace(i.text.split()[1], "v0,"), i.tag) for i in prog]
        import re as _re
        for bit, pat in ((8, r"d\d+$"), (16, r"h\d+"), (512, r"snd"), (32, r"u\d$"), (64, r"cld$"), (128, r"w\d$"), (256, r"x\d$")):
            if x & bit: prog = [Ins("s_nop 0", i.tag) if i.cls == "vmem" and i.tag and _re.match(pat, i.tag) and "sc1 lds" not in (i.text if bit == 256 else "") else i for i in prog]
        body = finalize(prog, st)
        if self.o("al", 1): body, st["align"] = align8(body)
        out += body
        out += ['.section .rodata,"a"', ".p2align 6", ".amdhsa_kernel " + NAME, "  .amdhsa_next_free_vgpr 512", "  .amdhsa_next_free_sgpr 102",
                "  .amdhsa_accum_offset 256", "  .amdhsa_group_segment_fixed_size 0", "  .amdhsa_kernarg_size 88", "  .amdhsa_user_sgpr_count 2",
                "  .amdhsa_user_sgpr_kernarg_segment_ptr 1", "  .amdhsa_system_sgpr_workgroup_id_x 1", "  .amdhsa_float_denorm_mode_32 3", ".end_amdhsa_kernel"]
        self.stats = st; self.body = body
        return "\n".join(out) + "\n"

def main(Gen):
    import argparse
    ap = argparse.ArgumentParser()
    ap.add_argument("out"); ap.add_argument("--prof", action="store_true"); ap.add_argument("--opt", default=""); ap.add_argument("--est", action="store_true")
    a = ap.parse_args()
    kw = dict((k, int(v)) for k, v in (x.split("=") for x in a.opt.split(",") if x))
    g = Gen(prof=a.prof, **kw)
    open(a.out, "w").write(g.text())
    print(g.stats)
    if a.est:
        row = []; gap = None; nm = 0; over = 0; skip = None
        for l in g.body:
            x = Ins(l.strip())
            if skip:
                if x.text == skip + ":": skip = None
                continue
            if x.op in ("s_cbranch_vccz", "s_cbranch_scc1") and "L_" not in x.text: skip = x.text.split()[1]
            if x.cls == "label":
                if x.text == "L_dft:": row.append(over); row.append("|"); nm = 0; over = 0; gap = None
                continue
            if x.cls == "mfma":
                if gap is not None and len(gap) < 14: over += gap_over(gap) + sum(int(y.text.split()[1]) for y in gap if y.op == "s_nop")
                gap = []; nm += 1
                if nm % 64 == 0: row.append(over); over = 0
            elif gap is not None: gap.append(x)
        print(row, over)

if __name__ == "__main__":
    main(Gen)
```

```python
import sys
sys.path.insert(0, "tools")
from prog import *

NAME = "gated_mix__spectral_gfnet__glu_gated_reglu__prompt_kernel"
WS_H, WS_X1, WS_U, WS_G, WS_FLAG, WS_CNT, WS_PROF = 0, 0x800000, 0xA00000, 0xC38000, 0xC10000, 0xC30000, 0xF000000
NCLR = 58 if 'ef=1' in ' '.join(sys.argv) else 50
WS_PF, WS_EF, WS_P = 0xC3A000, 0xC42000, 0xD00000
SPIN_LIMIT = 300000
MF = "v_mfma_f32_16x16x32_bf16"
SX, SWG, SWU, SWD, SWS, SOUT, SWR, SWI, SGW, SDBG = [S(8 + 4 * i, 4) for i in range(10)]
NM = dict(w="s4", b12="s5", ni="s6", rot="s7", xcd="s70", loc="s71", wds="s70", wde="s71", l3="s72", nt="s73", bp="s74", xn="s75",
          hs="s80", lw4="s80", wo0="s81", wo1="s82", he="s83", wb="s83", k="s94", lw="s84", wdo="s85", t0="s86", t1="s87", t2="s88", t3="s89",
          mask="s[90:91]", hi16="s92", ring="s93", ho="s94", clr="s95", jb="s0", sh="s1", m1="s[96:97]", m2="s[98:99]",
          l16="v1", hi="v2", x="v3", xr="v4", vw="v5", l16b="v14", wd="v15", p="v16", xr2="v16", pa="v17",
          SX=SX, SWG=SWG, SWU=SWU, SWD=SWD, SWS=SWS, SOUT=SOUT, SWR=SWR, SWI=SWI, SGW=SGW, SDBG=SDBG)
vWT = [6, 7, 8, 9]; vDT = [10, 11, 12, 13]; vXA = [22, 23]; vWD = [15, 29, 30, 31]
LDS_RPF, LDS_RPI, LDS_R64I, LDS_STG, LDS_RED = 128 * 1024, 136 * 1024, 144 * 1024, 152 * 1024, 64 * 1024
GB, CO, ACCV = 64, 32, 48
CA2, CB2 = 20, 21
RING = [192, 208, 224, 240, 32]

def J(text, tag=None, raw=False, **kw):
    d = dict(NM); d.update(kw)
    return I(text.format(**d), tag, raw)
def single(g): return [[x] for x in flat(g)]
def chunks(g):
    g = flat(g); out = []; i = 0
    while i < len(g):
        j = i
        if g[i].op.startswith("v_cmp") and ("s", 106) in g[i].dst:
            k = i + 1
            while k < len(g) and not (g[k].op.startswith("v_cmp") and ("s", 106) in g[k].dst):
                if ("s", 106) in g[k].src: j = k
                k += 1
            j = i
        while j + 1 < len(g) and g[j + 1].op.startswith(("s_cselect", "s_subb", "s_addc")): j += 1
        out.append(g[i:j + 1]); i = j + 1
    return out
def cvt(d, a, b): return I("v_cvt_pk_bf16_f32 v%d, v%d, v%d" % (d, a, b))

_seen = set()
def seen_tag(t):
    r = t in _seen; _seen.add(t); return r

class Gen:
    def __init__(self, prof=False, **kw):
        self.prof = prof; self.kw = kw; self.nl = 0; self.nsp = {}
        self.pair = kw.get("pair", 4); self.NU = 7 if self.pair else 14; self.ef = kw.get("ef", 0) and self.pair
    def o(self, k, d): return self.kw.get(k, d)
    def lab(self, b):
        self.nl += 1; return "L%s_%d" % (b, self.nl)
    def clk(self): return "s_memtime" if self.o("cyc", 0) else "s_memrealtime"
    def stamp(self, i, mode=0):
        if not self.prof or self.o("diag", i) != i or (self.o("pm", 0) != mode and i != 10): return []
        return I("%s %s" % (self.clk(), S(48 + 2 * i, 2)), raw=True)
    def srd(self, name, lo, size, back=0):
        b = int(name[2:name.index(":")])
        if back: g = I("s_sub_u32 s%d, s%d, %d\ns_subb_u32 s%d, s%d, 0" % (b, lo, back, b + 1, lo + 1))
        else: g = I("s_mov_b64 %s, %s" % (S(b, 2), S(lo, 2)))
        return g
    def srd_const(self, name, size):
        b = int(name[2:name.index(":")])
        return I("s_mov_b32 s%d, 0x%x\ns_mov_b32 s%d, 0x20000" % (b + 2, size, b + 3))
    def spin(self, load, sleep=None):
        if sleep is None: sleep = self.o("sl", 0)
        ok, sp = self.lab("ok"), self.lab("spin")
        cmp_ = "v_cmp_ne_u32 vcc, 1, v16"
        if self.prof and self.o("pm", 0) == 6 and not getattr(self, "_in", 0):
            self._in = 1; body = self.spin(load, sleep); self._in = 0
            k = self.nsp[self.ffn] = self.nsp.get(self.ffn, -1) + 1
            return I("s_mov_b32 s3, 0") + body + I("s_mul_i32 s3, s3, 100\ns_add_u32 s%d, s3, s100" % (48 + 2 * k))
        return I(cmp_) + I("s_cbranch_vccz %s" % ok, tag="first", raw=True) + I("""s_mov_b32 s3, 0
%s:
%s%s
s_waitcnt vmcnt(0)
%s
s_add_u32 s3, s3, 1
s_cmp_lt_u32 s3, %d
s_cbranch_vccz %s
s_cbranch_scc1 %s
%s:""" % (sp, "s_sleep %d\n" % sleep if sleep else "", load, cmp_, SPIN_LIMIT, ok, sp, ok), raw=True)

    def cheb(self, X, Y, K, pk=True):
        if not pk: return I("\n".join("v_fma_f32 v%d, v%d, v%d, -v%d" % (X + q, K, Y + q, X + q) for q in range(8)))
        return I("\n".join("v_pk_fma_f32 %s, %s, %s, %s neg_lo:[0,0,1] neg_hi:[0,0,1]" % (V(X + 2 * q, 2), V(K, 2), V(Y + 2 * q, 2), V(X + 2 * q, 2)) for q in range(4)))
    def direct(self, X, spec):
        g = []; src = []
        for i, (d, K, b) in enumerate(spec):
            if K == 0: src.append(b)
            else:
                g += I("v_fmamk_f32 v%d, %s, %s, %s" % (X + i, d, fhex(K), b)); src.append("v%d" % (X + i))
        return g + I("\n".join("v_cos_f32 v%d, %s" % (X + i, src[i]) for i in range(8)))
    def pack(self, dst, X, first=None):
        return flat([cvt(dst + q, first if (q == 0 and first) else X + 2 * q, X + 2 * q + 1) for q in range(4)])

    def gen_G(self, t, pk):
        X, Y, K = t, t + 8, t + 16
        d, a0 = V(t + 18), V(t + 19)
        pre = J("""s_lshl_b32 {t0}, {nt}, 6
s_lshl_b32 {t1}, {w}, 4
s_add_u32 {t0}, {t0}, {t1}
v_add_u32 {d}, {t0}, {l16}
v_cvt_f32_u32 {d}, {d}
v_mul_f32 {d}, {c512}, {d}
v_mul_f32 {k0}, 0x41800000, {d}
v_cos_f32 {k0}, {k0}
v_and_b32 {e0}, 2, {hi}
v_lshlrev_b32 {e0}, 2, {e0}
v_cvt_f32_u32 {e0}, {e0}
v_and_b32 {e1}, 1, {hi}
v_cvt_f32_u32 {a0}, {e1}
v_mul_f32 {a0}, 0x3e800000, {a0}
v_fmac_f32 {a0}, {d}, {e0}
v_add_f32 {k0}, {k0}, {k0}
v_and_b32 {e0}, {e1}, v0
v_mov_b32 {k1}, {k0}
v_lshl_or_b32 {e0}, {e0}, 31, 0.5""", d=d, a0=a0, c512=fhex(1 / 512), k0=V(K), k1=V(K + 1), e0=V(t + 20), e1=V(t + 21))
        kap = [2 * (i & 3) + (i >> 2) for i in range(8)]
        gs = [pre, self.direct(X, [(d, kap[i], a0) for i in range(8)]), self.direct(Y, [(d, 16 + kap[i], a0) for i in range(8)]),
              J("v_cmp_gt_u32 vcc, 2, {hi}") + self.pack(GB + 4, Y) + I("v_cndmask_b32 v%d, v%d, v%d, vcc" % (t + 20, X, t + 20)) + self.pack(GB, X, first=t + 20)]
        for n in range(2, 16):
            a, b = (X, Y) if n % 2 == 0 else (Y, X)
            gs.append(self.cheb(a, b, K, pk) + self.pack(GB + 4 * n, a))
        return gs

    def gen_R(self, part, t, base=None):
        X = t; r = [V(t + 8 + i) for i in range(14)]
        n = dict(q=r[0], k=r[1], ph=r[2], dl=r[3], b0=r[4], b1=r[5], d0=r[6], d1=r[7], o0=r[8], o1=r[9], qt=r[10], h2=r[11], hf=r[12], adr=r[13],
                 c=fhex(1 / 2048), c64=fhex(1 / 64), base=LDS_RPF + 8192 * part if base is None else base)
        g = J("""s_lshl_b32 {t0}, {w}, 11
s_add_u32 {t0}, {t0}, {base}
v_add_u32 {adr}, {t0}, {l16b}
v_cvt_f32_u32 {hf}, {hi}
v_mov_b32 {qt}, 0x3e800000""", **n)
        if part < 2: g += J("s_cmp_eq_u32 {bp}, 0\ns_cselect_b64 {m1}, -1, 0\ns_cselect_b32 {t1}, 32, 64")
        masks = J("s_and_b32 vcc_lo, s96, 0xaaaaaaaa\ns_mov_b32 vcc_hi, vcc_lo\ns_andn2_b64 {m2}, {m1}, vcc")
        if part == 0:
            g += J("""s_and_b32 {t0}, {w}, 1
s_lshl_b32 {t0}, {t0}, 4
v_add_u32 {q}, {t0}, {l16}
v_mul_u32_u24 {k}, {t1}, {q}
v_add_u32 {k}, {bp}, {k}
s_lshr_b32 {t2}, {w}, 1
s_cselect_b64 {m2}, -1, 0
v_cmp_eq_u32 vcc, 0, {k}
v_cvt_f32_u32 {ph}, {t2}
v_mul_f32 {ph}, 0xbe800000, {ph}
v_cvt_f32_u32 {dl}, {k}
v_mul_f32 {dl}, {c}, {dl}
s_and_b64 vcc, vcc, {m2}
v_cndmask_b32 {dl}, {dl}, 0.5, vcc
v_cndmask_b32 {ph}, {ph}, 0, vcc
v_add_f32 {h2}, {hf}, {hf}
v_fma_f32 {b0}, {dl}, {h2}, {ph}
v_add_f32 {b1}, {qt}, {b0}
v_cndmask_b32 {b1}, {b1}, {b0}, {m1}""", **n) + masks + J("""v_cndmask_b32 {d0}, {dl}, 0, vcc
v_cndmask_b32 {b0}, {b0}, {qt}, vcc
v_cndmask_b32 {d1}, {dl}, 0, {m2}
v_cndmask_b32 {b1}, {b1}, {qt}, {m2}""", **n)
            specs = [[((r[6], r[7])[i & 1], 16 * v + 8 * (i // 4) + (i % 4) // 2, (r[4], r[5])[i & 1]) for i in range(8)] for v in range(2)]
        elif part == 1:
            g += masks + J("""s_lshl_b32 {t0}, {w}, 3
v_lshrrev_b32 {q}, 1, {l16}
v_add_u32 {q}, {t0}, {q}
v_cvt_f32_u32 {k}, {q}
v_mul_f32 {k}, {c}, {k}
v_cvt_f32_u32 {ph}, {t1}
v_mul_f32 {dl}, {k}, {ph}
v_cvt_f32_u32 {ph}, {bp}
v_mul_f32 {b0}, {k}, {ph}
v_and_b32 {q}, 1, v0
v_cvt_f32_u32 {ph}, {q}
v_cndmask_b32 {ph}, {ph}, 0, {m1}
v_fmac_f32 {b0}, {qt}, {ph}
v_mul_f32 {ph}, 4.0, {hf}
v_fmac_f32 {b0}, {dl}, {ph}
v_sub_f32 {b1}, {b0}, {qt}
v_cndmask_b32 {d1}, {dl}, 0, {m2}
v_cndmask_b32 {o0}, {b0}, {qt}, {m2}
v_cndmask_b32 {o1}, {b1}, {qt}, {m2}
s_and_b64 {m2}, {m2}, 0xffff
v_cndmask_b32 {d0}, {dl}, 0, vcc
v_cndmask_b32 {b0}, {b0}, {qt}, vcc
v_cndmask_b32 {b1}, {b1}, {qt}, vcc
v_mul_f32 {k}, 0x44800000, {k}
v_cndmask_b32 {k}, {b1}, {k}, {m2}""", **n)
            specs = [[((r[6], r[7])[i & 1], 16 * (i // 4) + i % 4, ((r[4], r[5]), (r[8], r[9]))[i & 1][v]) for i in range(8)] for v in range(2)]
            specs[1][0] = (r[6], 0, r[1])
        else:
            g += J("""s_lshl_b32 {t0}, {w}, 4
v_add_u32 {q}, {t0}, {l16}
v_cvt_f32_u32 {q}, {q}
v_mul_f32 {dl}, {c64}, {q}
v_add_f32 {h2}, {hf}, {hf}
v_mul_f32 {b0}, {dl}, {h2}
v_sub_f32 {b1}, {b0}, {qt}
v_mul_f32 {q}, 0.5, {q}
s_mov_b64 {m2}, 0xffff
v_cndmask_b32 {q}, {b1}, {q}, {m2}""", **n)
            specs = [[(r[3], 16 * v + 8 * (i // 4) + (i % 4) // 2, (r[4], r[5])[i & 1]) for i in range(8)] for v in range(2)]
            specs[0][1] = (r[3], 0, r[0])
        for v in range(2):
            g += self.direct(X, specs[v]) + self.pack(X, X) + I("ds_write_b128 %s, %s offset:%d" % (r[13], V(X, 4), v * 1024), tag="rtab")
        return chunks(g)

    def gen_T(self):
        r = [V(112 + i) for i in range(8)]
        gs = [J("""s_lshr_b32 {t0}, {xn}, 1
s_lshl_b32 {t0}, {t0}, 2
s_add_u32 {t0}, {t0}, {w}
s_lshl_b32 {t0}, {t0}, 5
s_and_b32 {t1}, {xn}, 1
s_add_u32 {t0}, {t0}, {t1}
v_lshl_add_u32 {j}, {l16}, 1, {t0}
v_cvt_f32_u32 {d0}, {j}
v_cmp_eq_u32 vcc, 0, {j}
v_mul_f32 {d0}, {c}, {d0}
v_mov_b32 {b1}, 0x3e800000
s_lshl_b32 {t0}, {wb}, 6
v_lshl_add_u32 {h4}, {hi}, 2, {t0}
v_cvt_f32_u32 {h4}, {h4}
v_cndmask_b32 {d1}, {d0}, 0.5, vcc
v_cndmask_b32 {b1}, {b1}, 0, vcc
v_mul_f32 {b0}, {d0}, {h4}
v_fmac_f32 {b1}, {d1}, {h4}
v_mul_f32 v104, 0x42000000, {d0}
v_mul_f32 v106, 0x42000000, {d1}
v_cos_f32 v104, v104
v_cos_f32 v106, v106
s_lshl_b32 {t0}, {w}, 11
v_add_u32 {adr}, {t0}, {l16b}
v_add_f32 v104, v104, v104
v_add_f32 v106, v106, v106
v_mov_b32 v105, v104
v_mov_b32 v107, v106""", j=r[0], d0=r[2], d1=r[3], b0=r[4], b1=r[5], h4=r[6], adr=r[7], c=fhex(1 / 512))]
        for n in range(8):
            for tt in range(2):
                X, Y = 64 + 16 * tt, 72 + 16 * tt
                a, b = (X, Y) if n % 2 == 0 else (Y, X)
                g = self.direct(a, [(r[2 + tt], 32 * n + 16 * (i // 4) + i % 4, r[4 + tt]) for i in range(8)]) if n < 2 else self.cheb(a, b, 104 + 2 * tt, n < self.o("ntp", 8))
                gs.append(g + self.pack(96 + 4 * tt, a) + I("ds_write_b128 %s, %s offset:%d" % (r[7], V(96 + 4 * tt, 4), n * 8192 + tt * 1024), tag="ttab%d" % (n // 2)))
        sel = J("""s_lshl_b32 {t1}, {t1}, 15
v_lshrrev_b32 v24, 1, {hi}
v_mul_u32_u24 v24, {t1}, v24
v_or_b32 v24, 0x3f80, v24
v_and_b32 v25, 1, v0
v_lshlrev_b32 v25, 4, v25
v_lshlrev_b32 v24, v25, v24
v_lshrrev_b32 v25, 1, {l16}
v_and_b32 v26, 1, {hi}
v_lshlrev_b32 v27, 2, v26
v_xor_b32 v27, v25, v27
v_cmp_eq_u32 vcc, 0, v27
v_cmp_eq_u32 {m1}, 1, v27
v_cmp_eq_u32 {m2}, 2, v27
v_cndmask_b32 v20, 0, v24, vcc
v_cmp_eq_u32 vcc, 3, v27
v_cndmask_b32 v21, 0, v24, {m1}
v_cndmask_b32 v22, 0, v24, {m2}
v_cndmask_b32 v23, 0, v24, vcc
v_xor_b32 v24, v26, v25
v_lshlrev_b32 v24, 4, v24
v_lshl_add_u32 v24, {l16}, 7, v24
v_lshrrev_b32 v25, 1, {hi}
v_lshl_add_u32 v24, v25, 11, v24
v_add_u32 v6, {ring}, v24
v_xor_b32 v7, 32, v6
v_xor_b32 v8, 64, v6
v_xor_b32 v9, 0x60, v6""")
        late = J("""s_lshl_b32 {t0}, {w}, 4
v_add_u32 v24, {t0}, {l16}
v_lshrrev_b32 v18, 1, v24
v_cvt_f32_u32 v18, v18
v_mul_f32 v18, {c}, v18
v_and_b32 v19, 1, v24
v_cvt_f32_u32 v19, v19
v_mul_f32 v19, 0xbe800000, v19
v_cmp_eq_u32 vcc, 1, v24
v_lshlrev_b32 v24, 2, {hi}
v_cvt_f32_u32 v24, v24
s_lshl_b32 {t0}, {w}, 11
s_add_u32 {t0}, {t0}, {stg}
v_cndmask_b32 v18, v18, 0.5, vcc
v_cndmask_b32 v19, v19, 0, vcc
v_fmac_f32 v19, v18, v24
v_add_u32 {pa}, {t0}, {l16b}""", c=fhex(1 / 64), stg=LDS_STG)
        for v in range(2):
            late += self.direct(24, [("v18", 32 * v + 16 * (i // 4) + i % 4, "v19") for i in range(8)]) + self.pack(24, 24) + \
                    J("ds_write_b128 {pa}, v[24:27] offset:{o}", tag="r64f", o=v * 1024)
        return gs, sel, late

    def wd_setup(self):
        g = J("""v_lshrrev_b32 v24, 3, v0
v_bfe_u32 v25, v0, 1, 2
v_xor_b32 v25, v25, {hi}
v_lshlrev_b32 v25, 5, v25
v_lshl_add_u32 v25, v24, 10, v25
v_and_b32 v24, 1, v0
v_lshl_add_u32 {wd}, v24, 4, v25
v_add_u32 v29, 7168, {wd}
v_add_u32 v30, 7168, v29
v_add_u32 v31, 7168, v30
s_mul_i32 {wds}, {w}, {c}
s_lshl_b32 {t0}, {nt}, 7
s_add_u32 {wds}, {wds}, {t0}
s_add_u32 {wde}, {wds}, {c}
v_bfe_u32 v24, v0, 2, 3
v_lshrrev_b32 v25, 5, v0
v_lshlrev_b32 v25, 10, v25
v_lshl_add_u32 v25, v24, 7, v25
v_and_b32 v26, 3, v0
v_lshl_add_u32 v25, v26, 3, v25
v_add_u32 v25, {ring}, v25
v_lshrrev_b32 v24, 1, v24
v_xor_b32 v24, {w}, v24
v_lshl_add_u32 v10, v24, 5, v25
v_xor_b32 v11, 32, v10
v_xor_b32 v12, 64, v10
v_xor_b32 v13, 0x60, v10
s_mul_i32 {rot}, {nt}, {ra}""", c=448 * 1024, ra=self.o("rnt", 0))
        if self.pair:
            g = [x for x in g if x.cls != "salu"]
            return g + J("s_and_b32 {t0}, {bp}, {m}\ns_cselect_b32 {t0}, 28, 0\ns_mul_i32 {rot}, {w}, 7\ns_add_u32 {rot}, {rot}, {t0}\ns_lshl_b32 {wds}, {rot}, 8\ns_add_u32 {wds}, {wds}, {nt}\ns_lshl_b32 {wds}, {wds}, 7\ns_and_b32 {wde}, {rot}, 1\ns_lshl_b32 {wde}, {wde}, 15", m=self.pair)
        if self.o("rl3", 0) == 1: g += J("s_mul_i32 {t0}, {l3}, 7\ns_add_u32 {t0}, {t0}, 1\ns_lshr_b32 {t0}, {t0}, 1\ns_add_u32 {rot}, {rot}, {t0}")
        if self.o("rl3", 0) == 2: g += J("s_and_b32 {t0}, {l3}, 1\ns_mul_i32 {t0}, {t0}, 7\ns_add_u32 {rot}, {rot}, {t0}")
        if self.o("xo", 0) >= 0:
            return g[:-1] + J(("s_add_u32 {rot}, {nt}, {l3}" if self.o("xnt", 0) else "s_mov_b32 {rot}, {l3}") + "\ns_and_b32 {rot}, {rot}, {m}\ns_lshl_b32 {wde}, {rot}, 15", m=self.o("xo", 0))
        g += J("s_sub_u32 {t0}, {rot}, 14\ns_cselect_b32 {rot}, {rot}, {t0}\ns_lshl_b32 {t0}, {rot}, 15\ns_add_u32 {wdo}, {wds}, {t0}")
        return g
    def loc(self, u):
        if self.pair: return (1, u - 4 if u >= 4 else None, u % 4)
        a, n = (8, self.o("nA", 2)) if self.ffn else (4, 4)
        if a <= u < a + n: return (0, None, (u - a + 4 - n) % 4)
        r1 = [v for v in range(14) if not a <= v < a + n]; k = r1.index(u)
        return (1, r1[k - 4] if k >= 4 else None, k % 4)
    def D(self, u, pre=None):
        reg, prev, slot = (self.loc(u) + (u % 4,))[:3]; gs = []
        if self.ef and u < 6: gs += [J("s_xor_b32 {wdo}, {wde}, {o}", o=(2 * (u % 3) + u // 3) << 15), J("s_add_u32 {wdo}, {wdo}, {wds}")]
        elif self.pair: gs.append(J("s_add_u32 {wdo}, {wds}, {o}", o=u << 15))
        elif self.o("xo", 0) >= 0:
            if u == 12: gs.append(J("s_and_b32 {wde}, {wde}, 0x8000"))
            gs += [J("s_xor_b32 {wdo}, {wde}, {o}", o=u << 15), J("s_add_u32 {wdo}, {wdo}, {wds}")]
        elif u: gs += [J("s_add_u32 {wdo}, {wdo}, 0x8000"), J("s_cmp_ge_u32 {wdo}, {wde}\ns_cselect_b32 {wdo}, {wds}, {wdo}")]
        gs.append(J("s_add_u32 m0, {ring}, {o}", o=(slot * 4096 - (0 if reg else 65536)) & 0xFFFFFFFF))
        if prev is not None: gs.append(I("@must t%d" % prev))
        if pre: gs.append(pre)
        gs += [J("buffer_load_dwordx4 v{r}, {SWD}, {wdo} offen offset:{o} lds", tag="d%d" % u, r=vWD[k], o=1024 * k) for k in range(4)]
        return gs
    def wd_reg(self, u, dl): return (160 + 16 * u if u < 2 else 16 * (u - 2) if u < 12 else 16 * u) + 4 * dl
    def T(self, u):
        gs = []
        if self.loc(u)[0] != (self.loc(u - 1)[0] if u else 1): gs += single(I("\n".join("v_xor_b32 v%d, 0x10000, v%d" % (r, r) for r in vDT)))
        gs.append(I("@must d%d" % u))
        for dl in range(4):
            for j4 in range(2):
                gs.append(I("ds_read_b64_tr_b16 %s, v%d offset:%d" % (A(self.wd_reg(u, dl) + 2 * j4, 2), vDT[dl], (self.loc(u) + (u % 4,))[2] * 4096 + j4 * 2048), tag="t%d" % u))
        return gs
    def DD(self, a, b): return [g for u in range(a, b) for g in self.D(u)]
    def TT(self, a, b): return [g for u in range(a, b) for g in self.T(u)]

    def g_loads(self):
        return single(J("""s_lshl_b32 {t0}, {nt}, 2
s_add_u32 {t0}, {t0}, {w}
s_lshl_b32 {t0}, {t0}, 1
v_lshrrev_b32 v25, 5, v0
v_add_u32 v236, {t0}, v25
v_and_b32 v25, 3, v236
v_lshrrev_b32 v26, 2, v236
v_lshl_add_u32 v25, v25, 4, v26
v_and_b32 v233, 0x1f0, {l16b}
v_lshl_add_u32 v232, v25, 15, v233
v_lshl_add_u32 v232, {bp}, 10, v232
buffer_load_dwordx4 v[216:219], v232, {SX}, 0 offen offset:2048
buffer_load_dwordx4 v[220:223], v232, {SX}, 0 offen offset:2560
buffer_load_dwordx4 v[224:227], v233, {SGW}, 0 offen
buffer_load_dwordx4 v[228:231], v233, {SGW}, 0 offen offset:512""", tag="gld"))
    def g_calc(self):
        g = I("@wait gld")
        if self.o("gr", 1):
            for h in range(2):
                x_, w_ = 216 + 4 * h, 224 + 4 * h
                for i in range(4):
                    g += J("v_lshlrev_b32 v{a}, 16, v{x}\nv_and_b32 v{a1}, {hi16}, v{x}\nv_lshlrev_b32 v{b}, 16, v{w_}\nv_and_b32 v{b1}, {hi16}, v{w_}", a=240 + 2 * i, a1=241 + 2 * i, b=248 + 2 * i, b1=249 + 2 * i, x=x_ + i, w_=w_ + i)
                g += I("\n".join("v_pk_mul_f32 %s, %s, %s" % (V(240 + 2 * i, 2), V(240 + 2 * i, 2), V(248 + 2 * i, 2)) for i in range(4)))
                g += self.pack(x_, 240)
            g += J("s_mov_b32 s3, 0x3f803f80")
            g += I("\n".join("v_dot2_f32_bf16 v%d, v%d, s3, 0" % (232 + i, 216 + i) for i in range(4)))
            g += I("\n".join("v_dot2_f32_bf16 v%d, v%d, s3, v%d" % (232 + i, 220 + i, 232 + i) for i in range(4)))
        else:
            g += I("\n".join("v_dot2_f32_bf16 v%d, v%d, v%d, 0" % (232 + i, 216 + i, 224 + i) for i in range(4)))
            g += I("\n".join("v_dot2_f32_bf16 v%d, v%d, v%d, v%d" % (232 + i, 220 + i, 228 + i, 232 + i) for i in range(4)))
        g += I("v_lshlrev_b32 v236, 2, v236\nv_add_f32 v232, v232, v233\nv_add_f32 v234, v234, v235\nv_add_f32 v232, v232, v234")
        for sh in (1, 2, 4, 8):
            g += I("v_add_f32_dpp v232, v232, v232 row_shr:%d row_mask:0xf bank_mask:0xf bound_ctrl:1" % sh)
        g += I("v_add_f32_dpp v232, v232, v232 row_bcast:15 row_mask:0xa bank_mask:0xf")
        rnd = I("v_cvt_pk_bf16_f32 v232, 0, v232") if self.o("gr", 1) else []
        g += rnd + I("v_mul_f32 v232, 0xbfb8aa3b, v232\nv_exp_f32 v232, v232\nv_add_f32 v232, 1.0, v232\nv_rcp_f32 v232, v232") + (I("v_cvt_pk_bf16_f32 v232, 0, v232") if rnd else [])
        return single(g)
    def g_store(self):
        return J("s_lshl_b32 {t0}, {bp}, 8\ns_add_u32 {t0}, {t0}, {g}\ns_mov_b32 exec_lo, 0x80000000\ns_mov_b32 exec_hi, 0x80000000", g=WS_G) + \
               J("buffer_store_dword v232, v236, {SWS}, {t0} offen sc1", tag="gst") + I("s_mov_b64 exec, -1")
    def c_loads(self, acc=False):
        return chunks(J(self.creg(acc, """s_cmp_eq_u32 {bp}, 0
s_cselect_b32 {t1}, 32, 64
s_cselect_b64 {mask}, 0xffff, 0
s_and_b32 {t0}, {w}, 1
s_lshl_b32 {t0}, {t0}, 4
v_lshrrev_b32 v27, 2, v0
v_add_u32 v27, {t0}, v27
v_mul_u32_u24 v27, {t1}, v27
v_add_u32 v27, {bp}, v27
v_cmp_eq_u32 vcc, 0, v27
v_sub_u32 v28, 0x800, v27
v_mov_b32 v26, 0x400
s_cmp_lt_u32 {w}, 2
s_cselect_b64 {m1}, -1, 0
v_cndmask_b32 v28, v28, v26, vcc
v_cndmask_b32 v27, v28, v27, {m1}
v_mul_u32_u24 v27, 514, v27
v_and_b32 v28, 48, {l16b}
s_lshl_b32 {t2}, {jb}, 6
s_sub_u32 {t2}, {t2}, {sh}
v_add3_u32 v20, v28, v27, {t2}""")))
    def c_fetch(self, arr):
        l = self.lab("ev"); srd = (SWR, SWI)[arr]
        g = [J("s_cmp_eq_u32 {sh}, 0") + J("s_cbranch_scc1 {l}\nbuffer_load_dword v{d}, v20, {srd}, 0 offen offset:16\n{l}:", raw=True, l=l, d=40 + arr, srd=srd),
             J("buffer_load_dwordx4 {r}, v20, {srd}, 0 offen", tag="cld", r=V(32 + 4 * arr, 4), srd=srd)]
        if not self.ffn: g.append(J("buffer_load_ushort v{d}, v27, {srd}, 0 offen offset:512", tag="cld", d=42 + arr, srd=srd))
        return g
    def creg(self, acc, t): return t
    def c_stage(self):
        if self.cin:
            g = J("s_lshl_b32 {t2}, {w}, 10\ns_add_u32 {t2}, {t2}, {stg}\nv_add_u32 v28, {t2}, {l16b}\ns_mov_b32 {t2}, 0x05040100\ns_mov_b32 {t3}, 0x07060302\n@must cld", stg=self.cstg)
            for arr in range(2):
                s_ = 32 + 4 * arr; d_ = 24 if arr == 0 else 32
                g += flat([J("v_alignbyte_b32 v{a}, v{b}, v{a}, {sh}", a=s_ + i, b=s_ + i + 1 if i < 3 else 40 + arr) for i in range(4)])
                g += J("v_perm_b32 v{d0}, v{s1}, v{s0}, {t2}\nv_perm_b32 v{d1}, v{s3}, v{s2}, {t2}\nv_perm_b32 v{d2}, v{s1}, v{s0}, {t3}\nv_perm_b32 v{d3}, v{s3}, v{s2}, {t3}",
                       d0=d_, d1=d_ + 1, d2=d_ + 2, d3=d_ + 3, s0=s_, s1=s_ + 1, s2=s_ + 2, s3=s_ + 3)
                g += I("ds_write_b128 v28, %s offset:%d" % (V(d_, 4), arr * 4096), tag="rtab")
            return single(g)
        g = J("""s_mul_i32 {t0}, {w}, 1280
s_add_u32 {t0}, {t0}, {stg}
v_lshrrev_b32 v27, 2, v0
v_lshl_add_u32 v28, v27, 4, {l16b}
v_add_u32 v28, {t0}, v28
s_mov_b32 {t2}, 0x05040100
s_mov_b32 {t3}, 0x07060302
s_mov_b32 s96, 0x11111111
s_mov_b32 s97, 0x11111111
@wait cld""", stg=self.cstg)
        for arr in range(2):
            s_, d_ = 32 + 4 * arr, 192 + 4 * arr
            g += flat([J("v_alignbyte_b32 v{a}, v{b}, v{a}, {sh}", a=s_ + i, b=s_ + i + 1 if i < 3 else 40 + arr) for i in range(4)])
            g += J("v_perm_b32 v{d0}, v{s1}, v{s0}, {t2}\nv_perm_b32 v{d1}, v{s3}, v{s2}, {t2}\nv_perm_b32 v{d2}, v{s1}, v{s0}, {t3}\nv_perm_b32 v{d3}, v{s3}, v{s2}, {t3}",
                   d0=d_, d1=d_ + 1, d2=d_ + 2, d3=d_ + 3, s0=s_, s1=s_ + 1, s2=s_ + 2, s3=s_ + 3)
            g += I("ds_write_b128 v28, %s offset:%d" % (V(d_, 4), arr * 5120), tag="cst")
            if not self.ffn: g += J("v_and_or_b32 v{d}, v{d}, {hi16}, v{q}", d=d_, q=42 + arr)
        if self.ffn: return single([x for x in g if "0x11111111" not in x.text])
        return single(g) + [J("s_mov_b64 exec, {m1}") + I("ds_write_b64 v28, v[192:193] offset:64\nds_write_b64 v28, v[196:197] offset:5184", tag="cst") + I("s_mov_b64 exec, -1")]
    def c_calc(self):
        g = J("""s_or_b32 {t1}, {w}, {jb}
s_cselect_b32 {t1}, 4, 2
s_lshl_b32 {t0}, {w}, 4
v_and_b32 v26, 3, v0
v_cmp_eq_u32 vcc, {t1}, v26
v_and_b32 v28, 1, v0
v_lshl_add_u32 v28, v28, 3, {t0}
v_lshrrev_b32 v27, 2, v0
v_mul_u32_u24 v27, 80, v27
v_cndmask_b32 v28, v28, 64, vcc
s_mov_b32 {t0}, {stg}
v_add3_u32 v27, v27, v28, {t0}""", stg=self.cstg)
        rs = 80; tb = 192
        if self.cin:
            rs = 64; tb = 152
            g = J("s_lshl4_add_u32 {t0}, {w}, {stg}\nv_and_b32 v28, 1, v0\nv_lshl_add_u32 v28, v28, 3, {t0}\nv_lshrrev_b32 v27, 2, v0\nv_lshl_add_u32 v27, v27, 6, v28", stg=self.cstg)
        for th in range(2):
            for arr in range(2):
                for side in range(2):
                    g += I("ds_read_b64_tr_b16 %s, v27 offset:%d" % (V(tb + ((th * 2 + arr) * 2 + side) * 2, 2), (arr * 64 + side * 32 + th * 16) * rs), tag="crd")
        q = I("@wait crd")
        for th in range(2):
            for r in range(4):
                e = th * 4 + r
                t = tb + 16 + (e % 2) * 4
                for n, (arr, side) in enumerate([(0, 0), (0, 1), (1, 0), (1, 1)]):
                    src = tb + ((th * 2 + arr) * 2 + side) * 2 + r // 2
                    q += J("v_and_b32 v{d}, {hi16}, v{s}" if r & 1 else "v_lshlrev_b32 v{d}, 16, v{s}", d=t + n, s=src)
                a_, b_, c_, d_ = CO + e, CO + 8 + e, CO + 16 + e, CO + 24 + e
                q += I("v_add_f32 v%d, v%d, v%d\nv_add_f32 v%d, v%d, v%d\nv_sub_f32 v%d, v%d, v%d\nv_sub_f32 v%d, v%d, v%d" % (
                    a_, t, t + 1, b_, t + 2, t + 3, c_, t + 3, t + 2, d_, t, t + 1))
                if e == 0:
                    q += J("""v_cndmask_b32 v{a2}, v{a}, v{t1_}, {mask}
v_cndmask_b32 v{b2}, v{b}, v{t3_}, {mask}
v_cndmask_b32 v{a}, v{a}, v{t0_}, {mask}
v_cndmask_b32 v{b}, v{b}, v{t2_}, {mask}
v_cndmask_b32 v{c}, v{c}, 0, {mask}
v_cndmask_b32 v{d}, v{d}, 0, {mask}""", a2=CA2, b2=CB2, a=a_, b=b_, c=c_, d=d_, t0_=t, t1_=t + 1, t2_=t + 2, t3_=t + 3)
        return chunks(g), single(q)

    GATE_LD = "buffer_load_dword v16, v17, %s, 0 offen sc1" % SDBG
    POLL_LD = "buffer_load_dword v16, v17, %s, s82 offen sc1" % SWS
    def gate_ld(self):
        return single(J("v_min_u32 {pa}, {n}, v0\nv_lshlrev_b32 {pa}, 2, {pa}", n=NCLR - 1) + I(self.GATE_LD, tag="poll"))
    def x1_addr(self):
        return single(J("""s_lshr_b32 {t0}, {jb}, 2
s_lshl_b32 {t0}, {t0}, 8
s_lshl_b32 {t1}, {w}, 15
s_add_u32 {t0}, {t0}, {t1}
s_add_u32 {wo1}, {t0}, {fl}
v_lshrrev_b32 {pa}, 3, v0
v_lshlrev_b32 {pa}, 12, {pa}
v_bfe_u32 v28, v0, 2, 1
v_lshl_add_u32 {pa}, v28, 7, {pa}""", fl=WS_FLAG + 28 * 128))
    def rp_reads(self):
        return [J("v_add_u32 v19, {a}, {l16b}", a=LDS_RPF)] + \
               [I("ds_read_b128 %s, v19 offset:%d" % (A((224 if f < 8 else 160) + 4 * f, 4), f * 1024), tag="rp") for f in range(16)]
    def flag_addr(self):
        return J("s_lshl_b32 {wo0}, {b12}, 5\ns_add_u32 {wo0}, {wo0}, {ni}\ns_lshl_b32 {wo0}, {wo0}, 7\ns_add_u32 {wo0}, {wo0}, {fl}", fl=WS_FLAG)
    def set_flag(self):
        return I("v_mov_b32 v24, 1\n@wait pub\ns_mov_b64 exec, 1") + J("buffer_store_dword v24, v0, {SWS}, {wo0} offen sc1") + I("s_mov_b64 exec, -1")

    def prologue(self):
        p = []
        if self.prof: p += I("%s s[100:101]" % self.clk(), raw=True)
        p += J("""s_load_dwordx16 s[48:63], s[0:1], 0
s_cmp_ge_u32 s2, 256
s_cbranch_scc1 L_end
s_load_dwordx4 s[64:67], s[0:1], 64
s_load_dwordx2 s[68:69], s[0:1], 80
s_getpc_b64 {m1}
L_pc:
v_lshlrev_b32 v24, 3, v0
v_readfirstlane_b32 {w}, v0
s_lshr_b32 {loc}, s2, 3
v_lshl_add_u32 v24, {loc}, 11, v24
v_min_u32 v24, L_end-L_pc, v24
global_load_dword v31, v24, {m1}
v_and_b32 v0, 63, v0
v_and_b32 {l16}, 15, v0
v_lshrrev_b32 {hi}, 4, v0
s_lshr_b32 {w}, {w}, 6
s_and_b32 {xcd}, s2, 7
s_and_b32 {l3}, {loc}, 3
s_lshr_b32 {nt}, {loc}, 2
s_lshr_b32 {xn}, {xcd}, 1
s_lshl_b32 {bp}, {xcd}, 2
s_add_u32 {bp}, {bp}, {l3}
s_and_b32 {b12}, {bp}, 7
s_lshl_b32 {b12}, {b12}, 2
s_add_u32 {b12}, {b12}, {w}
s_lshl_b32 s76, {b12}, 10
v_lshrrev_b32 v25, 3, v0
v_and_b32 v24, 7, v0
v_xor_b32 v24, v24, {hi}
v_lshlrev_b32 v24, 4, v24
v_lshl_add_u32 {x}, v25, 15, v24
v_xor_b32 v18, 0x40040, {x}
v_subrev_u32 v18, 0x400, v18
s_lshl_b32 {ring}, {w}, 14
s_add_u32 {ring}, {ring}, 0x10000""")
        if "probe" in self.kw:
            k = self.kw["probe"]
            p += I("s_waitcnt lgkmcnt(0) vmcnt(0)\ns_mov_b64 s[44:45], s[%d:%d]\ns_mov_b32 s46, 0x100000\ns_mov_b32 s47, 0x20000" % (48 + 2 * k, 49 + 2 * k))
            p += J("s_lshl_b32 s3, s2, 2\ns_add_u32 s3, s3, {w}\ns_lshl_b32 s3, s3, 7\nv_mov_b32 v26, 0\ns_memrealtime s[96:97]\ns_waitcnt lgkmcnt(0)")
            if "pbw" in self.kw:
                p += I("s_mov_b32 s46, 0x10000000\ns_lshl_b32 s3, s3, 7\ns_add_u32 s3, s3, %d\nv_lshlrev_b32 v26, 4, v0" % (self.kw["pbw"] << 20))
                for i in range(16):
                    op = "buffer_store_dwordx4 v[128:131], v26, s[44:47], s3 offen sc1" if self.o("pst", 0) else "buffer_load_dwordx4 v[%d:%d], v26, s[44:47], s3 offen" % (128 + 4 * i, 131 + 4 * i)
                    p += I(op + "\ns_add_u32 s3, s3, 1024")
                p += I("s_waitcnt vmcnt(0)")
            else:
                for i in range(8): p += I("buffer_load_dword v27, v26, s[44:47], s3 offen\ns_waitcnt vmcnt(0)\ns_add_u32 s3, s3, 0x20000")
            p += I("s_memrealtime s[98:99]\ns_waitcnt lgkmcnt(0)\ns_sub_u32 s98, s98, s96\ns_add_u32 s100, s100, s98")
        p += self.srd_const(SX, 2097152 + 2048)
        p += J("s_cmp_eq_u32 {nt}, 7\ns_cbranch_scc1 L_dft")
        return p
    def common2(self):
        p = J("v_lshlrev_b32 {l16b}, 4, v0\ns_lshl_b32 {lw}, {loc}, 2\ns_add_u32 {lw}, {lw}, {w}\ns_mul_i32 s3, {xcd}, 112\ns_add_u32 {lw}, {lw}, s3\ns_lshl_b32 {lw}, {lw}, 11\ns_mov_b32 {hi16}, 0xffff0000\ns_add_u32 {jb}, {nt}, 1\ns_and_b32 {jb}, {jb}, 7\ns_and_b32 {sh}, {bp}, 1\ns_lshl_b32 {sh}, {sh}, 1")
        for nm, lo, sz in ((SWS, 68, 0x10000000), (SDBG, 66, 256), (SWD, 60, 1792 * 1024), (SOUT, 64, 2097152), (SWR, 50, 2048 * 514), (SWI, 52, 2048 * 514), (SGW, 62, 1024)):
            p += self.srd(nm, lo, sz) + self.srd_const(nm, sz)
        return p

    def p12f(self):
        self.ffn = True; self.cin = self.o("cin", 0); self.cstg = LDS_R64I if self.cin else LDS_RPF
        def kadv(du):
            kr = self.o("kr", 2)
            if kr == 4: return single(J("s_xor_b32 {k}, {k}, 1" if du & 1 else "s_xor_b32 {k}, {k}, 1\ns_add_u32 {k}, {k}, 2\ns_and_b32 {k}, {k}, 7"))
            if kr == 5: return single(J("s_xor_b32 {k}, {k}, %d" % (du ^ (du - 1))))
            return single(J("s_add_u32 {k}, {k}, 1\ns_and_b32 {k}, {k}, 7"))
        def wl(du):
            gs = []
            if du == 1: gs += kadv(du)
            gs += single(J("s_mul_i32 {wo0}, {k}, {c}\ns_add_u32 {wo0}, {wo0}, {wb}\ns_add_u32 {wo1}, {wo0}, {c2}", c=64 * 3584, c2=32 * 3584 - 2048))
            gs.append(J("s_add_u32 m0, {lw4}, {o}", o=(du % 4) * 16384))
            for h in range(2):
                for mat in range(2):
                    gs.append(J("buffer_load_dwordx4 {vw}, {srd}, {so} offen offset:{o} lds", tag="w%d" % du, srd=(SWG, SWU)[mat], so=NM["wo%d" % h], o=(2 * h + mat) * 1024))
            return gs
        def xl(du):
            gs = []
            if du >= 2: gs += kadv(du)
            gs += single(J("v_lshl_add_u32 {xr}, {k}, 7, {x}\nv_lshl_add_u32 {xr2}, {k}, 7, v18"))
            for m in range(4):
                if m % 2 == 0: gs.append(J("s_add_u32 m0, {ring}, {o}", o=(du % 2) * 8192 + m * 2048))
                for e in range(2):
                    g = J("buffer_load_dwordx4 {r}, {SX}, s{so} offen offset:{o} lds", tag="x%d" % du, r=NM[("xr", "xr2")[e]], so=76 + m, o=((m & 1) * 2 + e) * 1024)
                    if du >= 2 and m == 0 and e == 0: g = I("@need xf%d" % (du - 2)) + g
                    gs.append(g)
            return gs
        def xf(du):
            return [I("@wait x%d" % du)] + [I("ds_read_b128 %s, v%d offset:%d" % (A((du % 4) * 32 + h * 16 + m * 4, 4), vXA[h], (du % 2) * 8192 + m * 2048), tag="xf%d" % du)
                                           for h in range(2) for m in range(4)]
        p = J("""s_and_b32 {t0}, {nt}, {mp}
s_lshl_b32 {t0}, {t0}, 19
s_add_u32 s76, s76, {t0}
s_xor_b32 s77, s76, 0x80000
s_xor_b32 s79, s76, 0x180000
s_xor_b32 s78, s76, 0x100000
s_add_u32 s76, s76, 0x800
s_add_u32 s78, s78, 0x800
s_lshl_b32 {k}, {xcd}, 2
s_add_u32 {k}, {k}, {xcd}
s_and_b32 {k}, {k}, {km}
s_mul_i32 {ni}, {xn}, 7
s_add_u32 {ni}, {ni}, {nt}
s_mul_i32 {wb}, {w}, {c}
s_lshl_b32 {t0}, {ni}, 7
s_add_u32 {wb}, {wb}, {t0}
v_mul_u32_u24 v24, 3584, v25
s_and_b32 {t0}, {w}, 1
s_lshl_b32 {t0}, {t0}, 1
v_and_or_b32 v25, {hi}, 1, {t0}
v_bfe_u32 v26, v0, 1, 2
v_xor_b32 v25, v25, v26
v_lshl_add_u32 v24, v25, 5, v24
v_and_b32 v25, 1, v0
v_lshl_add_u32 {vw}, v25, 4, v24
s_lshl_b32 {lw4}, {w}, 12""", c=8 * 3584, mp=self.o("mp", 3), km=self.o("km", 6))
        kr = self.o("kr", 2)
        if kr == 4: p += J("s_lshr_b32 {t0}, {nt}, {sh}\ns_xor_b32 {t0}, {l3}, {t0}\ns_and_b32 {t0}, {t0}, 1\ns_add_u32 {k}, {k}, {t0}", sh=self.o("ksh", 2))
        if kr == 5: p += J("s_add_u32 {t0}, {l3}, {nt}\ns_and_b32 {t0}, {t0}, 3\ns_add_u32 {k}, {xcd}, {xn}\ns_and_b32 {k}, {k}, 1\ns_lshl2_add_u32 {k}, {k}, {t0}")
        if kr == 1: p += J("s_lshl_b32 {k}, {l3}, 1\ns_add_u32 {k}, {k}, {nt}\ns_and_b32 {k}, {k}, 7")
        if kr == 2: p += J("s_xor_b32 {t0}, {l3}, {nt}\ns_and_b32 {t0}, {t0}, 1\ns_lshl_b32 {t0}, {t0}, 2\ns_lshl_b32 {k}, {xcd}, 1\ns_add_u32 {k}, {k}, {xn}\ns_and_b32 {k}, {k}, 3\ns_add_u32 {k}, {k}, {t0}")
        if kr == 3: p += J("s_add_u32 {t0}, {l3}, {nt}\ns_and_b32 {t0}, {t0}, 3\ns_lshl_b32 {t0}, {t0}, 1\ns_add_u32 {k}, {xcd}, {xn}\ns_and_b32 {k}, {k}, 1\ns_add_u32 {k}, {k}, {t0}")
        p += self.srd_const(SWG, 512 * 3584) + self.srd_const(SWU, 512 * 3584 + 1024)
        w0 = wl(0); x0 = xl(0)
        p += flat(w0[:4] + x0[:2]) + self.srd(SWG, 56, 0) + self.srd(SWU, 58, 0, back=1024) + self.srd(SX, 48, 0, back=2048)
        p += flat(w0[4:]) + flat(x0[2:])
        p += self.common2()
        p += self.stamp(0)
        l = self.lab("noclr")
        p += J("s_sub_u32 s3, s2, 128\ns_cmp_lt_u32 s3, {n}\ns_cselect_b32 {clr}, {w}, 4", n=NCLR) + I("\n".join("v_accvgpr_write_b32 a%d, 0" % (180 + i) for i in range(4)))
        clear = J("s_cmp_eq_u32 {clr}, 4") + J("""s_cbranch_scc1 {l}
s_lshl2_add_u32 s3, s2, {w}
s_lshl_b32 s3, s3, 10
s_add_u32 s3, s3, {fl}
buffer_store_dwordx4 a[180:183], {l16b}, {SWS}, s3 offen sc1
{l}:""", raw=True, l=l, fl=WS_FLAG - 128 * 4096)
        st = [J("""v_lshrrev_b32 v24, 1, {l16}
v_xor_b32 v24, v24, {hi}
v_lshlrev_b32 v24, 4, v24
v_lshl_add_u32 v24, {l16}, 7, v24
v_add_u32 v22, {ring}, v24
v_xor_b32 v23, 64, v22
v_lshlrev_b32 v24, 12, {hi}
v_bfe_u32 v25, v0, 2, 2
v_lshl_add_u32 v24, v25, 7, v24
v_and_b32 v25, 3, v0
v_lshl_add_u32 v24, v25, 3, v24
v_bfe_u32 v25, v0, 3, 2
v_lshl_add_u32 v6, v25, 5, v24
v_xor_b32 v7, 32, v6
v_xor_b32 v8, 64, v6
v_xor_b32 v9, 0x60, v6""")]
        cl, gl = self.c_loads() + self.c_fetch(0) + self.c_fetch(1), self.g_loads()
        cpos = self.o("cpos", 2)
        gwt = [J("buffer_load_dword a171, {l16b}, {SGW}, 0 offen")]
        rip = self.rip = self.o("rip", 1) and self.o("x1late", 0)
        st = single(st) + cl[:-4] + self.gen_R(0, 128) + ([] if rip else self.gen_R(1, 160)) + (self.gen_R(2, 192) if self.o("r2p", 0) == 1 else [])
        l1 = wl(1) + xl(1); n1 = self.o("n1", 15) - (self.o("kr", 2) >= 4)
        p += flat(weave(st, l1[:n1], self.o("l1pos", 60 if rip else 130), len(st)))
        p += I("@wait w0 x0\ns_barrier")
        p += self.stamp(1)
        units = {0: "E0 L0 E1 L1 E2 L2 E3 E4 L3 E5 E6 L4 E7 L5 L6 L7", 1: "E0 L0 E1 L1 E2 L2 E3 L3 E4 E5 L4 E6 E7 L5 L6 L7",
                 2: "E0 L0 E1 L1 E2 L2 E3 L3 E4 E5 L4 E6 L5 E7 L6 L7", 3: "E0 L0 E1 L1 E2 L2 E3 L3 E4 L4 E5 L5 E6 E7 L6 L7"}[self.o("us", 1)].split()
        seq = [(2 * int(u[1]) + h, tau + (4 if u[0] == "L" else 0)) for u in units for h in range(2) for tau in range(4)]
        U = dict((u, 32 * i) for i, u in enumerate(units))
        LA = 5
        def rd(k):
            n, tau = seq[k]
            off = ((n // 2) % 4) * 16384 + ((n & 1) * 2 + (tau & 1)) * 1024
            return [I("ds_read_b64_tr_b16 %s, v%d offset:%d" % (A(128 + 4 * (k % 8) + 2 * j4, 2), vWT[tau // 2], off + 512 * j4), tag="f%d" % k) for j4 in range(2)]
        x0 = xf(0)
        p += flat(rd(0) + x0[:5] + rd(1) + rd(2) + x0[5:] + rd(3) + rd(4))
        mf = []
        for k, (n, tau) in enumerate(seq):
            for m in range(4):
                acc = V(128 + (tau * 4 + m) * 4, 4)
                mf.append(I("%s %s, %s, %s, %s" % (MF, acc, A(128 + 4 * (k % 8), 4), A(((n // 2) % 4) * 32 + (n & 1) * 16 + m * 4, 4), acc if n else "0")))
        G = Gaps(mf)
        for k in range(128):
            if k + LA < 128:
                r = rd(k + LA); G.put(4 * k, r[0]); G.put(4 * k + 2, r[1])
            if k % 2 == 1 and k + 1 < 128: G.put(4 * k + 3, I("@wait f%d" % (k + 2)))
        bar = {}
        for du in range(1, 8):
            bar[du] = U["E%d" % du] - 4 * LA - 1
            G.put(bar[du], I("@wait w%d rtab\ns_barrier" % du))
        lead = G.stream(l1[n1:], 0, 12, spread=False) if l1[n1:] else 0
        aa = [[0, 52, 104, 156, 208, 260], [0, 60, 118, 172, 224, 276], [0, 64, 124, 180, 234, 288], [0, 64, 128, 192, 250, 306], [0, 64, 128, 192, 256, 320], [0, 46, 110, 172, 230, 286], [0, 46, 104, 164, 222, 278]][self.o("aa", 2)]
        aa = dict(zip(range(2, 10), aa + [aa[-1] + 54, aa[-1] + 108]))
        xfe = {}; xfs = {}; span = {}
        for du in range(1, 8):
            e = min(aa[du + 2], U["E%d" % du]) - 2
            assert du < 4 or e - 18 >= U["L%d" % (du - 4)] + 32
            xfe[du] = G.stream(xf(du), e - 18, e); xfs[du] = e - 18
        last = lead
        for du in range(2, 8):
            a0 = max(aa[du], last + 1)
            last = G.stream(([clear] if du == self.o("clrdu", 2) else []) + xl(du), a0, a0 + (self.o("xs", 16) if self.o("xs0", 3) <= du <= self.o("xsd", 4) else 36))
            w0_ = last + 1
            if du >= 4: w0_ = max(w0_, min(b for b in bar.values() if b >= U["L%d" % (du - 4)] + 32) + 1)
            tr_ = {self.o("tdu", 4): [0]}.get(du, [])
            cd = self.o("cdu", 2)
            ex = [] if cpos != 2 else cl[-4:-2] + gwt if du == cd else cl[-2:] if du == cd + 1 else []
            if cpos == 3 and du == cd: ex = cl[-4:] + gwt
            last = G.stream(wl(du) + ex + [g for r in tr_ for g in self.touch(r)] + (self.touch3() if du == self.o("t3du", 6) else []) + (self.keep(du) if du == self.o("ka", 9) else []) + (self.retouch() if du == 7 else []) + (self.pretouch(178, 28) if du == self.o("ptd", 2) else []), w0_, w0_ + (self.o("wsp", 10) if self.o("xs0", 3) <= du <= self.o("xsd", 4) else 16) + 4 * len(tr_))
            assert last < bar[du] - 4, (du, last, bar[du])
            span[du] = (a0 if du > 2 else 0, last)
        vend = last
        l = self.lab("noann")
        ann = J("s_cmp_lg_u32 {clr}, 0") + J("""s_cbranch_scc1 {l}
v_mov_b32 v27, 1
s_lshl_b32 s3, s2, 2
s_sub_u32 s3, s3, 512
s_mov_b64 exec, 1
buffer_store_dword v27, v0, {SDBG}, s3 offen sc1
s_mov_b64 exec, -1
{l}:""", raw=True, l=l)
        G.put(bar[self.o("clrdu", 2)] + 2, ann)
        G.stream(self.rp_reads()[:9 if rip else 17], 130, 230)
        e0 = U["E7"] + 32
        e = G.stream(self.gate_ld() + (cl[-4:] if cpos == 0 else []), vend + 1, vend + 12)
        e1 = vend
        d0 = max(e, e1, xfe[6] + 4, vend + self.o("d0gap", 10))
        e = G.stream(self.D(0, I("@need xf6")) + self.D(1), d0, d0 + 32)
        d2 = max(e + 1, xfe[7] + 4)
        e = G.stream(self.D(2, I("@need xf7")) + self.D(3), d2, d2 + 32)
        G.stream(single(J("s_and_b32 {t0}, {nt}, {mp}\ns_lshl2_add_u32 {t2}, {b12}, {t0}\ns_lshl_b32 {t2}, {t2}, 5\ns_add_u32 {t2}, {t2}, {ni}\ns_lshl_b32 {t2}, {t2}, 11", mp=self.o("mp", 3)) + self.flag_addr()) + self.setupA() +
                 [I("@wait poll") + self.spin(self.GATE_LD)] + self.x1_addr(), e1 + 1, min(e0, self.o("xp", 495) + 30))
        late1 = self.o("x1late", 0)
        if not late1:
            G.put(self.o("xp", 495), I(self.POLL_LD, tag="poll"))
            G.stream(single(self.x1_pre()[:-1]), 490, 510)
        nin = self.o("nin", 1)
        t0_ = max(e + 1, U["L4"] + 32 if nin > 2 else 0, d0 + self.o("t0gap", 70))
        t0_ = min(t0_, 470)
        G.stream(self.TT(0, nin) + self.DD(4, 4 + nin), t0_, 506)
        gs_ = 18 - self.o("gsplit", 5)
        bulk = self.o("bulk", 0)
        if bulk:
            gs_ = 18; gp = self.gen_G(42, True); b1 = self.o("b1", 6); bo = self.o("bo", 2)
            stall = lambda du: min(bar[du], xfs[du]) - bo
            G.put(stall(1), flat(gp[:b1])); G.put(stall(2), flat(gp[b1:]))
            if self.o("r2p", 0) == 2: G.put(stall(3), flat(self.gen_R(2, 42)))
            G.stream(chunks(self.wd_setup()), 200, vend)
        elif self.o("fs", 0):
            q = (self.gen_R(2, 42) if self.o("r2p", 0) == 2 else []) + chunks(self.wd_setup()) + chunks(self.gen_G(42, False)[:gs_])
            e = 0
            for du, n in ((2, self.o("fs", 0)), (3, self.o("fs3", 0))):
                a_, b_ = span[du]
                for k, g in enumerate(q[:n]): G.put(a_ + k * (b_ - a_) // n, g)
                q = q[n:]
                if du == 2: m_ = self.o("fm", 20); G.stream(q[:m_], b_, span[3][0], spread=False); q = q[m_:]
            n4 = self.o("fs4", 0)
            if n4 or self.cin:
                m_ = self.o("fm", 20); G.stream(q[:m_], span[3][1], span[4][0], spread=False); q = q[m_:]
                q4 = q[:n4] + (self.c_stage() if self.cin else []); q = q[n4:]; a_, b_ = span[4]
                for k, g in enumerate(q4): G.put(a_ + k * (b_ - a_) // len(q4), g)
                if q: G.stream(q, self.o("gls", b_), e0, spread=False)
            else: G.stream(q, span[3][1] if self.o("fs3", 0) else span[3][0], e0, spread=False)
        elif self.o("ge", 0):
            ge = self.o("ge", 0); gn = self.gen_G(42, False)
            G.stream(chunks(self.wd_setup()) + chunks(gn[:ge]), 4, self.o("gee", 128), spread=False)
            if gs_ > ge: G.stream(chunks(gn[ge:gs_]), self.o("gls", 340), 500, spread=False)
        else: G.stream(chunks(self.wd_setup()) + chunks(self.gen_G(42, False)[:gs_]), 4, e0, spread=False)
        def epi(u, m, pk):
            g0, u0, g1_, u1 = [128 + ((4 * u + k) * 4 + m) * 4 for k in range(4)]
            g = []
            for gg in (g0, g1_): g += I("\n".join("v_max_f32 v%d, 0, v%d" % (gg + r, gg + r) for r in range(4)))
            for gg, uu in ((g0, u0), (g1_, u1)):
                if pk: g += I("v_pk_mul_f32 %s, %s, %s\nv_pk_mul_f32 %s, %s, %s" % (V(gg, 2), V(gg, 2), V(uu, 2), V(gg + 2, 2), V(gg + 2, 2), V(uu + 2, 2)))
                else: g += I("\n".join("v_mul_f32 v%d, v%d, v%d" % (gg + r, gg + r, uu + r) for r in range(4)))
            g += cvt(u0, g0, g0 + 1) + cvt(u0 + 1, g0 + 2, g0 + 3) + cvt(u0 + 2, g1_, g1_ + 1) + cvt(u0 + 3, g1_ + 2, g1_ + 3)
            return J("s_xor_b32 {t3}, {t2}, {o}", o=u * 1024 + m * 65536) + g + J("buffer_store_dwordx4 {r}, {l16b}, {SWS}, {t3} offen sc1", tag="pub" if u else "pue", r=V(u0, 4))
        G.stream(single([epi(0, m, False) for m in range(4)]), e0 + 2, min(512, e0 + self.o("espan", 60 if self.ef else 76)))
        if self.ef:
            l = self.lab("noe")
            G.put(self.o("efp", 509), I("@must pue") + J("s_barrier\ns_cmp_lg_u32 {w}, 0") + J("""s_cbranch_scc1 {l}
s_lshl3_add_u32 s3, {b12}, {ni}
s_lshl_b32 s3, s3, 7
s_add_u32 s3, s3, {ef}
v_mov_b32 v24, 1
s_mov_b64 exec, 1
buffer_store_dword v24, v0, {SWS}, s3 offen sc1
s_mov_b64 exec, -1
{l}:""", raw=True, l=l, ef=WS_EF))
        for i in range(8): G.put(64 * i, self.stamp(i, 1))
        G.put(480, self.stamp(8, 1)); G.put(511, self.stamp(9, 1))
        p += G.out()
        p += self.stamp(2)
        ep = [epi(1, m, True) for m in range(4)]
        if self.o("strip", 0) & 32768: ep = ep[:2]
        mid = self.o("mid", 2)
        if not late1: ep.insert(mid, self.x1_pre()[-1:] + self.x1_fetch())
        tpos = self.o("tep", 2); tt = self.TT(nin, 4) if tpos == 0 else []
        if self.cin: ep.append(flat(self.c_calc()[0]))
        p += flat(weave([[]] + ep, tt) if mid else weave(ep, tt))
        if late1: p += I(self.POLL_LD, tag="poll")
        elif self.ef: p += self.eadr() + I(self.POLL_LD, tag="poll")
        p += self.stamp(3) + self.stamp(0, 3)
        n1_ = min(8, 4 + nin + self.o("nw1", 0))
        p += ([] if self.cin else flat(self.c_stage())) + self.stamp(1, 3) + flat(weave(self.gen_G(42, True)[gs_:] + gl, self.DD(4 + nin, n1_)))
        if tpos == 1: p += flat(self.TT(nin, 4))
        return p + self.tail(True, nin if tpos == 2 else 4, n1_)

    def p12d(self):
        self.ffn = False; self.cstg = LDS_RPF; self.rip = 0; self.cin = 0
        def dma(s_):
            Q, m = divmod(s_, 4)
            gs = [J("s_add_u32 m0, {ring}, {o}", o=m * 4096)]
            if m == 0:
                gs = single(J("v_lshl_add_u32 {xr}, {k}, 7, {x}\nv_lshl_add_u32 {xr2}, {k}, 7, {vw}")) + gs
                if Q: gs = single(J("s_add_u32 {k}, {k}, 1\ns_and_b32 {k}, {k}, 3")) + gs
            for hf in range(2):
                for e in range(2):
                    g = J("buffer_load_dwordx4 {r}, {srd}, s{so} offen offset:{o} lds", tag="x_%d" % s_, r=NM[("xr", "xr2")[e]], srd=(SX, SWG)[hf], so=76 + m, o=(2 * hf + e) * 1024)
                    if Q and not hf and not e: g = I("@need xf_%d" % (s_ - 4)) + g
                    gs.append(g)
            return gs
        def raw(s_):
            return [I("@must x_%d" % s_)] + [I("ds_read_b128 %s, v%d offset:%d" % (A(16 * (s_ % 2) + 4 * f, 4), vWT[f], (s_ % 4) * 4096), tag="xf_%d" % s_) for f in range(4)]
        def fold(s_):
            return [I("%s %s, v[20:23], %s, 0" % (MF, V(48 + 4 * f, 4), A(16 * (s_ % 2) + 4 * f, 4))) for f in range(4)]
        def fcv(s_):
            return [cvt(32 + (s_ % 2) * 8 + q, 48 + 2 * q, 49 + 2 * q) for q in range(8)]
        def trd(Q):
            return [I("ds_read_b128 %s, %s offset:%d" % (A(64 + 64 * (Q % 2) + 4 * f, 4), NM["l16b"], Q * 16384 + f * 1024), tag="tq%d" % Q) for f in range(16)]
        p = I("@reset") + J("""s_add_u32 s76, s76, 0x800
s_add_u32 s77, s76, 0x80000
s_add_u32 s78, s76, 0x100000
s_add_u32 s79, s76, 0x180000
s_add_u32 {ni}, {xn}, 28
s_and_b32 {k}, {xcd}, {km}
s_mov_b32 {wb}, {k}
v_mov_b32 {vw}, v18
v_lshlrev_b32 {l16b}, 4, v0""", km=self.o("km", 6) & 2)
        tg, sel, late = self.gen_T()
        cl = self.c_loads(True)
        npk = self.o("npk", 0)
        p += self.srd_const(SWG, 2097152 + 3584) + flat(tg[:npk]) + I("s_waitcnt lgkmcnt(0)") + self.srd(SX, 48, 0, back=2048) + self.srd(SWG, 48, 0, back=3584)
        p += flat([dma(m) for m in range(3)])
        ntp = self.o("ntp", 8); tl = tg[1 + 2 * ntp:]; tg = tg[npk:1 + 2 * ntp]
        place(tg, len(tg) - self.o("d3", 1), dma(3))
        if self.o("pm", 0) == 4:
            p += self.common2()
            for i, k in enumerate((0, 1, 2, 3, 4, 5, 6, 7, 8)): place(tg, k, self.stamp(i, 4))
        p += flat(tg) + sel + (self.common2() if self.o("pm", 0) != 4 else []) + self.stamp(0) + self.stamp(9, 4)
        p += I("@waitlg0\ns_barrier") + self.stamp(1)
        t0_ = trd(0)
        p += flat(t0_[:8] + raw(0) + t0_[8:] + fold(0) + dma(4) + raw(1) + fcv(0))
        def mm(s_, h, tau):
            Q, m = divmod(s_, 4); acc = V(128 + (tau * 4 + m) * 4, 4)
            return I("%s %s, %s, %s, %s" % (MF, acc, V(32 + (s_ % 2) * 8 + 4 * h, 4), A(64 + 64 * (Q % 2) + (h * 8 + tau) * 4, 4), acc if Q or h else "0"))
        mf = []; at = {}
        for s_ in range(15):
            at[s_] = len(mf); mf += [mm(s_, 0, tau) for tau in range(6)]
            at["fold", s_ + 1] = len(mf); mf += fold(s_ + 1) + [mm(s_, 0, tau) for tau in (6, 7)] + [mm(s_, 1, tau) for tau in range(8)]
        at[15] = len(mf); mf += [mm(15, h, 4 * g + t) for g in range(2) for h in range(2) for t in range(4)]
        def s2(t):
            return [I("%s %s, %s, %s, %s" % (MF, V(128 + 16 * t + 4 * sg, 4), V(64 + 8 * t + 4 * v, 4), A(224 + (2 * sg + v) * 4, 4), V(128 + 16 * t + 4 * sg, 4) if v else "0"))
                    for v in range(2) for sg in range(4)]
        for t in range(8):
            at["s2", t] = len(mf); mf += s2(t)
        G = Gaps(mf)
        for s_ in range(1, 16):
            f = at["fold", s_]
            if s_ > 1: G.stream(raw(s_), f - self.o("rawa", 11), f - 4, spread=False)
            G.put(f - 1, I("@wait xf_%d" % s_))
            G.stream(fcv(s_), f + 6, f + 12, spread=False)
            if s_ + 4 < 16: G.stream(dma(s_ + 4) + (self.pretouch(46, 12) if s_ == 2 else []), f, f + 8)
        for Q in range(1, 4):
            G.stream(trd(Q), at[4 * Q - 4] + 2, at[4 * Q] - 8); G.put(at[4 * Q] - 1, I("@wait tq%d" % Q))
        G.stream(single(J("s_mul_i32 {wb}, {wb}, 0x40004000") + flat([J("v_xor_b32 v{r}, {wb}, v{r}", r=20 + i) for i in range(4)])), at["fold", 7] + 4, at["fold", 8] - 2, spread=False)
        for Q in range(ntp // 2, 4):
            G.stream(single(tl[4 * Q - 2 * ntp:4 * Q - 2 * ntp + 4]), at[4 * Q - 8] + 1, at[4 * Q - 4] - 6)
            G.put(at[4 * Q - 4] + 1, I("@must ttab%d\ns_barrier" % Q))
        e = G.stream((cl[:-4] if self.o("dcs", 16) < 16 else []) + single(late), 2 if ntp == 8 else at[8], at[12] + 6)
        rr = [I("@wait r64f\ns_barrier"), J("v_add_u32 v24, {a}, {l16b}", a=LDS_STG)] + [I("ds_read_b128 %s, v24 offset:%d" % (A(224 + 4 * f, 4), f * 1024)) for f in range(8)]
        G.stream(rr, e + 6, at[15])
        pre = J("""v_lshrrev_b32 v26, 2, {l16}
v_lshlrev_b32 v26, 17, v26
v_lshl_add_u32 v26, {hi}, 6, v26
v_and_b32 v25, 3, v0
v_lshl_add_u32 {xr}, v25, 4, v26
s_lshr_b32 s76, {xn}, 1
s_lshl_b32 s76, s76, 7
s_add_u32 s76, s76, {b12}
s_and_b32 {t0}, {xn}, 1
s_lshl1_add_u32 s76, s76, {t0}
s_lshl_b32 s76, s76, 8
s_add_u32 s76, s76, {x1}
s_add_u32 s77, s76, 0x80000
s_add_u32 s78, s76, 0x100000
s_add_u32 s79, s76, 0x180000""", x1=WS_X1) + self.flag_addr()
        G.stream(single(pre), e + 1, at[15])
        G.stream(self.gate_ld(), at["s2", 0] + 8, at["s2", 2])
        def cv(t, m): return [cvt(64 + 8 * t + 2 * m + i, 128 + 16 * t + 4 * m + 2 * i, 129 + 16 * t + 4 * m + 2 * i) for i in range(2)]
        for m in range(3):
            G.stream([g for t in range(8) for g in cv(t, m)], at[13 + m] + 1, at[13 + m] + (19 if m < 2 else 11), spread=False)
        G.stream([g for t in range(4) for g in cv(t, 3)], at[15] + 10, at["s2", 0] + 2, spread=False)
        G.stream([g for t in range(4, 8) for g in cv(t, 3)], at["s2", 0] + 3, at["s2", 2], spread=False)
        def st(tp):
            gs = []
            for sg in range(4):
                o = 32 + 16 * (tp % 2) + 4 * sg; d0 = 128 + 32 * tp + 4 * sg; d1 = d0 + 16
                gs += [cvt(o, d0, d0 + 1), cvt(o + 1, d0 + 2, d0 + 3), cvt(o + 2, d1, d1 + 1), cvt(o + 3, d1 + 2, d1 + 3),
                       J("buffer_store_dwordx4 {r}, {xr}, {SWS}, s{so} offen sc1", tag="pub", r=V(o, 4), so=76 + sg)]
                if tp < 3: gs.append(I("s_add_u32 s%d, s%d, 16384" % (76 + sg, 76 + sg)))
            return gs
        for tp in range(3):
            G.stream(st(tp), at["s2", 2 * tp + 2] + 1, at["s2", 2 * tp + 2] + 16, spread=False)
        for i in range(10): G.put(min(40 * i, len(G) - 1), self.stamp(i, 1))
        p += G.out()
        p += self.stamp(2)
        p += flat(st(3))
        p += self.stamp(3)
        p += self.spin(self.GATE_LD)
        p += self.wd_setup() + flat(self.gen_R(0, 128))
        p += self.set_flag()
        p += self.stamp(4)
        if self.o("dcs", 16) < 16: p += I("\n".join("v_accvgpr_read_b32 v%d, a%d" % (32 + i, 32 + i) for i in range(10)))
        else: p += flat(self.c_loads() + self.c_fetch(0) + self.c_fetch(1))
        p += flat(self.gen_R(1, 160))
        p += I("@waitlg0\ns_barrier")
        nd = self.o("dnd", 2)
        p += flat(weave(self.rp_reads() + self.x1_addr() + self.setupA(), self.DD(0, nd)))
        p += I("@wait rp\ns_barrier")
        p += flat(self.g_loads() + self.c_stage())
        p += I(self.POLL_LD, tag="poll")
        return p + self.tail(False, 0, nd)

    def touch(self, r):
        if r >= self.o("touch", 1): return []
        gs = [I("v_lshlrev_b32 v17, 5, v0")] if r == 0 else [J("s_add_u32 {lw}, {lw}, 0x38000"), J("s_sub_u32 s3, {lw}, 0x1c0000\ns_cselect_b32 {lw}, {lw}, s3")]
        return gs + [J("buffer_load_dword a{d}, v17, {SWD}, {lw} offen", d=160 + r)]
    def touch3(self):
        if not self.o("touch3", 1): return []
        return [J("s_lshr_b32 s3, s2, 3\ns_lshl2_add_u32 s3, s3, {w}\ns_lshl_b32 s3, s3, 14"), J("v_and_b32 v28, 60, v0"), J("v_lshlrev_b32 v28, 8, v28"),
                J("buffer_load_dword a172, v28, {SWD}, s3 offen offset:384")]
    def pretouch(self, d, r):
        pt = self.o("pt", 0); gs = []
        if pt & 1: gs += single(J("v_lshrrev_b32 v{r}, {a}, v0\nv_lshlrev_b32 v{r}, {b}, v{r}\ns_mov_b32 s3, 0x10f000\nbuffer_load_dword a{d}, v{r}, {SWS}, s3 offen", r=r, d=d, a=self.o("pta", 3), b=18 + self.o("pta", 3)))
        if pt & 4:
            g = self.o("ptg", 16); n = (17 << 20 >> g) // 128
            gs += single(J("v_min_u32 v{r}, {n}, v0\nv_lshlrev_b32 v{r}, {b}, v{r}\ns_lshr_b32 s3, s2, 3\ns_lshl2_add_u32 s3, s3, {w}\ns_lshl_b32 s3, s3, {g}\nbuffer_load_dword a{d}, v{r}, {SWS}, s3 offen offset:3968", r=r, d=d, n=n, b=g + 7, g=g))
        if pt & 2: gs += single(J("v_lshlrev_b32 v{r}, 19, {hi}\nbuffer_load_dword a{d}, v{r}, {SOUT}, 0 offen", r=r, d=d + 1))
        return gs
    def keep(self, du):
        sh = self.o("ksz", 5)
        if self.o("ksrc", 0) == 2: return [I("s_sleep %d" % sh)]
        if self.o("ksrc", 0) == 0:
            return single(J("s_lshl2_add_u32 s3, s2, {w}\ns_lshl_b32 s3, s3, {a}\ns_add_u32 s3, s3, {o}\nv_lshlrev_b32 v28, {b}, v0\nbuffer_load_dword a184, v28, {SWS}, s3 offen", o=32 << 20, a=sh + 6, b=sh))
        return chunks(J("s_lshr_b32 s3, s2, 3\ns_lshl2_add_u32 s3, s3, {w}\ns_lshl_b32 s3, s3, 13\nv_lshlrev_b32 v28, {b}, v0\nv_add_u32 v28, s3, v28\ns_and_b32 s3, {bp}, {m}\ns_cselect_b32 s3, 0xe0000, 0\nbuffer_load_dword a184, v28, {SWD}, s3 offen", b=sh, m=self.pair))
    def retouch(self):
        if not self.o("retouch", 1): return []
        l = self.lab("pc")
        return [J("s_getpc_b64 {m2}\n{l}:\ns_lshr_b32 s3, s2, 3\ns_lshl_b32 s3, s3, 2", l=l)] + single(J("""s_add_u32 s3, s3, {w}
s_lshl_b32 s3, s3, 9
v_lshl_add_u32 v28, v0, 3, s3
v_min_u32 v28, L_end-{l}, v28
global_load_dword a170, v28, {m2}""", l=l))

    def x1_pre(self):
        return J("""s_lshr_b32 {t0}, {bp}, 1
s_lshl3_add_u32 {t0}, {t0}, {jb}
s_lshl2_add_u32 {t0}, {t0}, {w}
s_lshl_b32 {t0}, {t0}, 7
s_and_b32 {t1}, {bp}, 1
s_add_u32 {t0}, {t0}, {t1}
s_lshl_b32 {t0}, {t0}, 5
s_add_u32 {t0}, {t0}, {x1}
v_and_b32 v26, 62, v0
v_lshl_add_u32 v26, v26, 4, {l16b}
v_add_u32 v25, 0x400, v26
s_lshl_b32 {t1}, {w}, 11
s_add_u32 m0, {t1}, {stg}""", x1=WS_X1, stg=LDS_STG)

    def eadr(self):
        return J("""s_xor_b32 {t1}, {bp}, {m}
s_lshr_b32 {t1}, {t1}, 2
s_lshl_b32 {t1}, {t1}, 6
s_add_u32 {t1}, {t1}, {rot}
s_add_u32 {t1}, {t1}, 1
s_lshr_b32 {t1}, {t1}, 1
s_lshl_b32 {t1}, {t1}, 7
s_add_u32 {wo1}, {t1}, {ef}
v_min_u32 {pa}, 2, {hi}
v_lshlrev_b32 {pa}, 7, {pa}""", m=self.pair, ef=WS_EF)
    def x1_fetch(self):
        return self.spin(self.POLL_LD) + J("buffer_load_dwordx4 v26, {SWS}, {t0} offen sc1 lds\nbuffer_load_dwordx4 v25, {SWS}, {t0} offen offset:1024 sc1 lds", tag="x1") + self.stamp(5)
    def setupA(self):
        return single(J("""s_lshl_b32 s76, {jb}, 1
s_lshr_b32 {t1}, {w}, 1
s_add_u32 s76, s76, {t1}
s_lshr_b32 {t1}, {bp}, 3
s_lshl_b32 {t1}, {t1}, 4
s_add_u32 s76, s76, {t1}
s_lshl_b32 s76, s76, 3
s_and_b32 {t1}, {bp}, 7
s_add_u32 s76, s76, {t1}
s_lshr_b32 {t1}, {bp}, 2
s_xor_b32 {t1}, {t1}, {w}
s_and_b32 {t1}, {t1}, 1
s_lshl1_add_u32 s76, s76, {t1}
s_lshl_b32 s76, s76, 6
s_add_u32 s76, s76, {u}
s_add_u32 s77, s76, 0x80000
s_add_u32 s78, s76, 0x100000
s_add_u32 s79, s76, 0x180000
v_lshrrev_b32 v24, 1, {l16}
v_lshlrev_b32 v26, 16, v24
v_and_b32 v25, 1, v0
v_lshl_add_u32 v26, v25, 5, v26
v_lshl_add_u32 {xr}, {hi}, 3, v26
s_lshl2_add_u32 {t0}, {jb}, {w}
v_and_or_b32 v28, v0, 7, {t0}
v_cmp_eq_u32 vcc, 0, v28
v_bfe_u32 v28, v0, 3, 1
v_xor_b32 v28, 1, v28
v_lshl_or_b32 v18, v28, 31, 1.0
s_lshl_b32 {t0}, {w}, 5
s_add_u32 {t0}, {t0}, {stg}
v_lshrrev_b32 v24, 3, v0
v_cndmask_b32 v18, v18, 0, vcc
v_lshl_add_u32 v19, v24, 8, {t0}
v_lshl_add_u32 v19, v25, 7, v19
v_bfe_u32 v25, v0, 1, 2
v_lshl_add_u32 v19, v25, 3, v19""", u=WS_U, stg=LDS_STG))
    def setupB(self):
        if self.pair: return single(J("""s_lshl_b32 {he}, {bp}, 8
s_add_u32 {he}, {he}, {rot}
s_lshl_b32 {he}, {he}, 10
s_xor_b32 {hs}, {he}, {hx}
s_andn2_b32 {t1}, {bp}, {m}
s_lshl_b32 {t1}, {t1}, 5
s_lshr_b32 {t0}, {rot}, 1
s_add_u32 {t0}, {t0}, {t1}
s_lshl_b32 {t0}, {t0}, 7
s_add_u32 {wo1}, {t0}, {fl}
v_lshrrev_b32 v24, 5, v0
v_mul_u32_u24 v24, {fx}, v24
v_bfe_u32 {pa}, v0, 3, 2
v_lshl_add_u32 {pa}, {pa}, 7, v24
@skip
s_lshl3_add_u32 {wo0}, {bp}, {nt}
s_lshl_b32 {wo0}, {wo0}, {ush}
s_add_u32 {wo0}, {wo0}, {cnt}
v_mov_b32 v19, 1
v_add_u32 v9, {r64}, {l16b}""", hx=self.pair << 18, m=self.pair, fx=self.pair << 12, fl=WS_FLAG, r64=LDS_R64I, cnt=WS_CNT, ush=self.o("ush", 5)))
        return single(J("""s_lshl_b32 {hs}, {bp}, 8
s_mul_i32 {t0}, {w}, 14
s_add_u32 {hs}, {hs}, {t0}
s_lshl_b32 {hs}, {hs}, 10
s_nop 0
s_nop 0
s_nop 0
s_mul_i32 {t0}, {w}, 7
s_lshl_b32 {t1}, {bp}, 5
s_add_u32 {t0}, {t0}, {t1}
s_lshl_b32 {t0}, {t0}, 7
s_add_u32 {wo1}, {t0}, {fl}
v_lshrrev_b32 v24, 3, v0
v_min_u32 {pa}, 6, v24
v_lshlrev_b32 {pa}, 7, {pa}
s_lshl3_add_u32 {wo0}, {bp}, {nt}
s_lshl_b32 {wo0}, {wo0}, {ush}
s_add_u32 {wo0}, {wo0}, {cnt}
v_mov_b32 v19, 1
v_add_u32 v9, {r64}, {l16b}""", hl=14 * 4096, fl=WS_FLAG, r64=LDS_R64I, cnt=WS_CNT, ush=self.o("ush", 5)))
    def setupC(self):
        return single(J("""s_lshl_b32 {wo1}, {w}, {ush6}
s_add_u32 {wo1}, {wo1}, {cnt}
v_lshlrev_b32 {pa}, {ush}, v0
s_lshl_b32 {t2}, {bp}, 16
s_lshl_b32 {t3}, {w}, 14
s_add_u32 {t2}, {t2}, {t3}
s_add_u32 {t2}, {t2}, {u}
s_lshl_b32 {t0}, {bp}, 8
s_add_u32 {t0}, {t0}, {g}
v_lshrrev_b32 v24, 1, {l16}
v_lshlrev_b32 v24, 7, v24
v_and_b32 v25, 1, v0
v_lshl_add_u32 v24, v25, 5, v24
v_lshrrev_b32 v27, 1, {hi}
v_bfe_u32 v28, v0, 3, 1
v_xor_b32 v28, v27, v28
v_lshl_add_u32 v24, v28, 6, v24
v_and_b32 v26, 1, {hi}
v_lshl_add_u32 {vw}, v26, 4, v24
v_lshrrev_b32 v24, 3, v0
v_xor_b32 v25, v24, v0
v_and_b32 v25, 7, v25
v_lshlrev_b32 v24, 15, v24
v_lshl_add_u32 {x}, v25, 4, v24
v_lshl_add_u32 v24, {w}, 1, v27
v_xor_b32 v24, v24, v0
v_and_b32 v24, 7, v24
v_lshlrev_b32 v24, 4, v24
v_lshl_add_u32 v24, {l16}, 7, v24
v_lshl_add_u32 v24, v26, 3, v24
v_add_u32 v6, {stg}, v24
s_lshl_b32 {t1}, {w}, 10
s_add_u32 {t1}, {t1}, {stg}
v_add_u32 v7, {t1}, {l16b}
v_lshlrev_b32 v8, 4, {l16}
s_lshl3_add_u32 s76, {bp}, {nt}
s_lshl_b32 s76, s76, 7
s_lshl_b32 {t1}, {w}, 18
s_add_u32 s76, s76, {t1}
s_add_u32 s77, s76, 0x100000""", u=WS_U, g=WS_G, stg=LDS_STG, cnt=WS_CNT, ush=self.o("ush", 5), ush6=self.o("ush", 5) + 6))
    def tail(self, ffn, nxt_t, nxt_d):
        st = dict(t=nxt_t, d=nxt_d)
        def pump(nd):
            gs = []
            for _ in range(nd):
                if st["d"] >= self.NU: break
                nx = self.loc(min(self.NU - 1, st["d"] + 1))[1]; pv = self.loc(st["d"])[1]
                while st["t"] <= max(-1 if nx is None else nx, -1 if pv is None else pv):
                    gs += self.T(st["t"]); st["t"] += 1
                gs += self.D(st["d"]); st["d"] += 1
            return gs
        def W(a, b): return flat(weave(a, b)) if b else flat(a)
        self.after_h = []
        c1, c2 = self.c_calc()
        p = flat(c1[:-8])
        mid2 = ffn and self.o("mid", 2) >= 2 and not self.o("x1late", 0)
        if self.cin: mid2 = True; p = []; c1 = []
        else: p += self.stamp(2, 3) + I("@wait cst\ns_barrier" if mid2 else "@wait x1 cst\ns_barrier") + self.stamp(3, 3)
        if ffn and not self.o("x1late", 0) and self.o("fpos", 0) == 3: p += self.set_flag() + self.stamp(4)
        XF, DD, PP, EE, PK, UP = 128, 136, 152, 168, 184, 128
        p += flat(c1[-8:])
        late1 = self.o("x1late", 0) or not ffn
        sB = self.setupB()
        if late1:
            rip = self.rip; gcs = self.g_calc() + [self.g_store()]
            nc2 = self.o("nc2", 71) if ffn else 71
            p += W(([] if rip else self.gen_R(2, 160)) + c2[:nc2], pump(self.o("pump0", 0) if ffn else 1))
            p += self.x1_pre() + self.stamp(4, 3)
            if ffn: p += self.set_flag() + self.stamp(4)
            p += self.x1_fetch() + self.stamp(5, 3)
            p += W(c2[nc2:] + (self.gen_R(1, 160, LDS_R64I) if rip else gcs) + sB[:18] + sB[19:], pump(self.o("pump1", 2)))
            p += self.stamp(6, 3) + I("@wait x1 rtab\ns_barrier") + self.stamp(7, 3)
            if self.o("hp", 1) == 0 and ffn: p += I(self.POLL_LD, tag="poll")
        if mid2:
            nc = self.o("nc3", 55)
            p += flat(c2[:nc]); c2 = c2[nc:]
            if self.o("mid", 2) == 4: p += self.set_flag() + self.stamp(4)
            p += I("@wait x1\ns_barrier")
        for k in range(4):
            p += I("ds_read_b64_tr_b16 %s, v19 offset:%d" % (V(XF + 2 * k, 2), 2048 * k))
        mf = [I("%s %s, %s, %s, %s" % (MF, V(DD + 4 * tau, 4), A(224 + (2 * tau + v) * 4, 4), V(XF + 4 * v, 4), V(DD + 4 * tau, 4) if v else "0")) for v in range(2) for tau in range(4)]
        if late1:
            G = Gaps(mf); pm = pump(self.o("pump2", 1))
            if pm: G.stream(pm, 0, 8)
            p += G.out() + sB[18] + flat([I("ds_read_b128 %s, v9 offset:%d" % (A((192 if rip else 224) + 4 * f, 4), f * 1024)) for f in range(8)])
            if self.o("hp", 1) == 1 and ffn: p += I(self.POLL_LD, tag="poll")
        elif mid2: p += flat(c2[:8]) + flat(weave(mf, c2[8:])) + self.stamp(4, 3)
        else: p += flat(weave(c2, mf, 12, 52)) + self.stamp(4, 3)
        dpp = "row_ror:8 row_mask:0xf bank_mask:0xf"
        cA, cB, cC, cD = CO, CO + 8, CO + 16, CO + 24
        def pk(op, d, a, b, neg=False):
            g = []
            for e in range(0, 8, 2):
                if op == "mul": g += I("v_pk_mul_f32 %s, %s, %s" % (V(d + e, 2), V(a + e, 2), V(b + e, 2)))
                else: g += I("v_pk_fma_f32 %s, %s, %s, %s%s" % (V(d + e, 2), V(a + e, 2), V(b + e, 2), V(d + e, 2), " neg_lo:[1,0,0] neg_hi:[1,0,0]" if neg else ""))
            return g
        fpos = -1 if late1 or not ffn or self.o("mid", 2) == 4 else self.o("fpos", 0)
        if fpos == 0: p += self.set_flag() + self.stamp(4)
        eadr = self.eadr()
        early = []
        hint = J("""s_bitcmp1_b32 {nt}, 2
s_cselect_b32 {t0}, {he}, {hs}
s_and_b32 {t1}, {nt}, 3
s_lshl_b32 {t1}, {t1}, 16
s_add_u32 {t0}, {t0}, {t1}
s_lshr_b32 {t1}, {wde}, 5
s_add_u32 {t0}, {t0}, {t1}
v_min_u32 v25, 2, {hi}
v_lshlrev_b32 v25, 11, v25
v_lshl_add_u32 v25, {l16}, 6, v25
buffer_load_dword a144, v25, {SWS}, {t0} offen sc1""")
        if self.o("hint", 0) == 1 and not late1: p += flat(sB[:4]) + hint
        if self.ef and not late1:
            p += flat(self.g_calc()) + self.g_store() + flat(sB[:4]) + J("s_lshr_b32 {t1}, {wde}, 5\nv_add_u32 v5, {t1}, {l16b}") + self.spin(self.POLL_LD) + self.stamp(7) + self.stamp(9, 3)
            for k in range(12):
                t, u = divmod(k, 3)
                early.append((J("s_add_u32 {ho}, {hs}, {o}", o=t * 65536 + u * 2048) if u != 1 else []) +
                             J("buffer_load_dwordx4 {r}, v5, {SWS}, {ho} offen offset:{o} sc1", tag="h%d" % k, r=V(192 + 4 * k, 4), o=2048 if u == 1 else 0))
        q = []
        for e in range(16): q += I("v_mul_f32_dpp v%d, v%d, v18 %s" % (PP + e, DD + e, dpp))
        q += pk("mul", EE, cA, DD) + pk("mul", EE + 8, cC, DD) + pk("fma", EE, cB, PP) + I("v_mov_b32 v%d, v%d\nv_mov_b32 v%d, v%d" % (cA, CA2, cB, CB2))
        q += pk("fma", EE + 8, cD, PP) + pk("fma", EE, cC, DD + 8, True) + pk("fma", EE + 8, cA, DD + 8) + pk("fma", EE, cD, PP + 8, True) + pk("fma", EE + 8, cB, PP + 8)
        p += W(single(q), early + pump(self.o("pump3", 0)))
        p += self.pack(PK, EE)
        mf = [I("%s %s, %s, %s, %s" % (MF, V(DD + 4 * kt, 4), V(PK + 4 * v, 4), A(192 + (2 * kt + v) * 4, 4), V(DD + 4 * kt, 4) if v else "0")) for v in range(2) for kt in range(4)]
        q = self.pack(PK + 4, EE + 8)
        p += q[:2]
        G = Gaps(mf); G.put(0, q[2:])
        if not late1: G.stream(sB[4 if self.ef else 0:15], 1, 8, spread=False)
        elif self.o("hp", 1) == 2 and ffn: G.put(1, I(self.POLL_LD, tag="poll"))
        p += G.out()
        if fpos == 1: p += self.set_flag() + self.stamp(4)
        for kt in range(4):
            p += cvt(UP + 2 * kt, DD + 4 * kt, DD + 4 * kt + 1) + cvt(UP + 2 * kt + 1, DD + 4 * kt + 2, DD + 4 * kt + 3)
            p += J("buffer_store_dwordx2 {r}, {xr}, {SWS}, s{so} offen sc1", tag="ust", r=V(UP + 2 * kt, 2), so=76 + kt)
        if self.o("hint", 0) == 2 and not late1: p += hint
        p += self.stamp(6) + self.stamp(8 if late1 else 5, 3)
        l = self.lab("nosig")
        usig = I("@wait ust gst rtab") + J("s_barrier\ns_cmp_lg_u32 {w}, 0") + \
               J("s_cbranch_scc1 {l}\ns_mov_b64 exec, 1\nbuffer_store_dword v19, v0, {SWS}, {wo0} offen sc1\ns_mov_b64 exec, -1\n{l}:", raw=True, l=l)
        if late1:
            if not ffn:
                gG = self.gen_G(136, True)
                p += W(gG[:8], pump(2)) + usig + W(gG[8:], pump(3)) + flat(pump(2)) + (eadr if self.ef else []) + I(self.POLL_LD, tag="poll") + flat(pump(9))
                usig = []
            else: p += W(gcs + self.gen_R(2, 160, LDS_RPF), pump(self.o("pumpb", 2))) if rip else flat(pump(self.o("pumpb", 2)))
            if rip: usig += J("v_add_u32 v9, {a}, {l16b}", a=LDS_RPF) + flat([I("ds_read_b128 %s, v9 offset:%d" % (A(224 + 4 * f, 4), f * 1024)) for f in range(8)])
            if self.o("hp", 1) == 3 and ffn: p += I(self.POLL_LD, tag="poll")
            p += flat(pump(self.o("pumpc", 0)))
            if self.o("upos", 0) == 0: p += usig
        elif self.ef:
            pass
        else:
            if fpos == 2: p += self.set_flag() + self.stamp(4)
            p += flat(self.g_calc()) + self.g_store() + flat(sB[15:])
            ue = self.o("ue", 3)
            gr = [[]] if self.o("r2p", 0) else self.gen_R(2, 160)
            if ue >= 3: place(gr, min(len(gr) - 1, self.o("pq", 30)), I(self.POLL_LD, tag="poll"))
            p += W(gr, pump(self.o("pumpa", 1)))
            r64 = flat([I("ds_read_b128 %s, v9 offset:%d" % (A(224 + 4 * f, 4), f * 1024)) for f in range(8)])
            if ue == 1: p += self.stamp(6, 3) + usig + r64 + self.stamp(7, 3)
            if ue < 3: p += I(self.POLL_LD, tag="poll")
            if ue in (2, 3): p += self.stamp(6, 3) + usig + ([] if ue == 3 else r64) + self.stamp(7, 3)
            if ue == 3: self.after_h = r64
            if ue == 4: self.after_h = usig + r64
            tpre = max(st["t"], min(st["d"], self.o("tpre0", 6 if ue < 3 else 0)))
            p += flat(self.TT(st["t"], tpre)); st["t"] = tpre
            p += flat(pump(self.o("pumpb", 2)))
            if ue == 0: p += usig + r64
            p += self.stamp(8, 3)
        xo = self.o("xo", 0)
        if xo > 0: p += J("v_lshl_add_u32 v44, {rot}, 10, {l16b}\nv_xor_b32 v45, 0x400, v44\nv_xor_b32 v46, 0x800, v44\nv_xor_b32 v47, 0xc00, v44\nv_and_b32 v4, 0x7ff, v44\nv_and_b32 v18, 0x7ff, v45")
        if not early:
            if not (self.o("strip", 0) & 8192 and ffn): p += self.spin(self.POLL_LD)
            p += self.stamp(7) + self.stamp(9, 3)
        if self.ef:
            r64 = [I("ds_read_b128 %s, v9 offset:%d" % (A(224 + 4 * f, 4), f * 1024)) for f in range(8)]
            if late1: return p + self.p4pair(ffn, st, pump, W, sB[4:14], [], [])
            if self.o("r2p", 0): return p + self.p4pair(ffn, st, pump, W, None, sB[15:] + r64, [usig])
            return p + self.p4pair(ffn, st, pump, W, None, sB[15:] + self.gen_R(2, 32), [usig] + r64)
        if self.pair: return p + self.p4pair(ffn, st, pump, W)
        NS = 16; na = self.o("na", 8)
        order = [(u, s_) for u0 in range(0, na, 2) for s_ in range(4) for u in (u0, u0 + 1)] + [(u, s_) for s_ in range(4) for u in range(na, 14)]
        pos_ = dict((x_, k) for k, x_ in enumerate(order))
        hb = [None]
        def hload(k):
            u, s_ = order[k]; gs = []; o = s_ * 65536 + u * 1024
            if hb[0] is None or not hb[0] <= o < hb[0] + 4096:
                hb[0] = o; gs.append(J("s_add_u32 {ho}, {hs}, {o}", o=o))
            return gs + [J("buffer_load_dwordx4 {r}, {l16b}, {SWS}, {ho} offen offset:{o} sc1", tag="h%d" % k, r=V(192 + 4 * (k % NS), 4), o=o - hb[0])]
        npre = self.o("npre", 12)
        redadr = []
        for dl in range(4):
            redadr += J("s_xor_b32 {t1}, {w}, {dl}\ns_mul_i32 {t1}, {t1}, 3072\ns_add_u32 {t1}, {t1}, {o}\nv_add_u32 v{r}, {t1}, {l16b}", dl=dl, o=76 * 1024 + max(0, dl - 1) * 1024, r=32 + dl)
        ro = [61440 if self.rip else 53248, 0, 12288, 24576]
        p += W([g for k in range(npre) for g in hload(k)], self.setupC())
        tpre = max(st["t"], min(st["d"], self.o("tpre", 4)))
        p += flat(self.TT(st["t"], tpre)); st["t"] = tpre
        if late1 and self.o("upos", 0) == 1: p += usig
        s5 = self.o("s5", 80); AO = GB; LA = self.o("la5", 10); PK5 = 36
        def m4(k, dl):
            u, s_ = order[k]; d = V(128 + (dl * 4 + s_) * 4, 4)
            return I("%s %s, %s, %s, %s" % (MF, d, A(self.wd_reg(u, dl), 4), V(192 + 4 * (k % NS), 4), d if u else "0"))
        ar = lambda k: A(self.wd_reg((k % 16) // 4, k % 4), 4)
        def m5(k):
            n, sg = divmod(k, 4); d = V(ACCV + 4 * sg, 4)
            return I("%s %s, %s, %s, %s" % (MF, d, ar(k), V(GB + 4 * n, 4), d if n else "0"))
        mf = []; at = {}; k5 = 0; fin = None
        for i in range(224):
            k, dl = divmod(i, 4)
            if order[k][0] == 13: dl = (dl + 1) % 4
            at[(k, i % 4)] = len(mf); mf.append(m4(k, dl))
            if i >= s5 and k5 < 64:
                at[k5] = len(mf); mf.append(m5(k5)); k5 += 1
            if k5 == 64 and fin is None and len(mf) >= at[63] + 12:
                fin = len(mf)
                mf += [I("%s %s, %s, %s, %s" % (MF, V(AO + 4 * a_, 4), V(PK5 + 4 * v, 4), A(224 + (2 * a_ + v) * 4, 4), V(AO + 4 * a_, 4) if v else "0")) for v in range(2) for a_ in range(4)]
        assert at[0] - LA >= 64 and na >= 4
        G = Gaps(mf); N = len(mf)
        for k in range(1, 56): G.put(at[(k, 0)] - 1, I("@must h%d" % k))
        for k in range(64):
            pos = at[k - LA] if k >= LA else at[0] - (LA - k)
            if k % 16 == 0: G.put(pos - 1, I("@must u%d\ns_barrier" % (k // 16)))
            G.put(pos, J("ds_read_b128 {r}, {vw} offset:{o}", tag="a%d" % k, r=ar(k), o=(k % 4) * 16384 + (k // 4) * 1024))
            if k % 2 == 0: G.put(at[k] - 1, I("@wait a%d" % (k + 1)))
        G.put(at[0] + 1, J("buffer_load_dwordx4 v[20:23], v8, {SWS}, {t0} offen sc1"))
        hd = self.o("hd", 48)
        def ud(c):
            return [J("s_add_u32 m0, {t3}, {o}", o=c * 4096)] + ([J("s_add_u32 {t2}, {t2}, 4096")] if c else []) + \
                   [J("buffer_load_dwordx4 {l16b}, {SWS}, {t2} offen offset:{o} sc1 lds", tag="u%d" % c, o=1024 * k) for k in range(4)]
        use = lambda u: at[(pos_[(u, 0)], 0)]
        occ = lambda c: max([u for u in range(14) if self.loc(u)[0] == 0 and self.loc(u)[2] == c] + [-1])
        items = [(at[(k, 0)], 1, k) for k in range(npre, 56)] + [(at[16 * c] - (2 if c else 1) * LA - 1, 0, c) for c in range(4)]
        for n_, u in enumerate(range(st["d"], 14)):
            lim = use(u) - 24
            if self.loc(u)[0] == 0: lim = min(lim, at[16 * self.loc(u)[2]] - 2 * LA - hd - 20)
            items.append((min(lim, hd + self.o("l0", 0) + n_ * self.o("lsp", 16)), 2, u))
        items.sort()
        last = 0; dpos = {}; upos_ = {}
        for need, kind, k in items:
            want = max(last, need - hd)
            if kind == 1:
                w_ = max(want, last + 1, at[(k - NS, 3)] if k >= NS else 0)
                last = G.stream(hload(k), w_, w_ + 4, spread=False)
            elif kind == 2:
                dpos[k] = want; last = G.stream(self.D(k), want + 1, want + 9); dpos[k, "e"] = last
            else:
                upos_[k] = want
                if k == 0:
                    G.put(max(0, want - self.o("pgap", 44)), I(self.POLL_LD, tag="poll"))
                    G.put(want, self.stamp(8) + I("@wait poll") + self.spin(self.POLL_LD, sleep=self.o("slu", 0)))
                last = G.stream(([I("@must t%d" % occ(k))] if occ(k) >= 0 else []) + ud(k), want + 1, want + 11)
        dl_ = {}
        for u in range(13, st["t"] - 1, -1):
            d_ = min([use(u) - 3] + [dpos[v] for v in range(14) if v in dpos and self.loc(v)[1] == u] + [upos_[c] for c in range(4) if occ(c) == u])
            dl_[u] = min(d_, dl_[u + 1] - 5) if u < 13 else d_
        e = 0; tearly = []
        for u in range(st["t"], 14):
            if dl_[u] < 8:
                assert u not in dpos
                tearly += self.T(u); continue
            a_ = max(e, dl_[u] - 14, 0)
            assert a_ > dpos.get((u, "e"), -1), (u, a_, dpos)
            e = G.stream(self.T(u), a_, dl_[u], spread=False)
            assert e <= dl_[u]
        p += flat(tearly)
        G.stream(single(redadr), 8, 60)
        def red_w(s_): return [I("ds_write_b128 v%d, %s offset:%d" % (32 + dl, V(128 + (dl * 4 + s_) * 4, 4), ro[s_]), tag="rw%d" % s_) for dl in (1, 2, 3)]
        def red_r(s_): return [I("ds_read_b128 %s, v32 offset:%d" % (V(128 + (dl * 4 + s_) * 4, 4), ro[s_] + (dl - 1) * 1024), tag="rr%d" % s_) for dl in (1, 2, 3)]
        def red_a(s_):
            b = 128 + 4 * s_
            return single([I("v_add_f32 v%d, v%d, v%d" % (b + o + r, b + o + r, b + o + q + r)) for o, q in ((0, 16), (32, 16), (0, 32)) for r in range(4)])
        def mix(a_):
            b = 128 + 4 * a_
            return single(I("\n".join("v_fma_f32 v%d, v%d, v%d, v%d" % (b + r, b + r, 20 + a_, AO + 4 * a_ + r) for r in range(4))) +
                          cvt(56 + 2 * a_, b, b + 1) + cvt(57 + 2 * a_, b + 2, b + 3) + I("ds_write_b64 v6, %s offset:%d" % (V(56 + 2 * a_, 2), a_ * 2048), tag="ow%d" % a_))
        G.stream(single(self.pack(PK5, ACCV) + self.pack(PK5 + 4, ACCV + 8)), at[63] + 4, fin - 1, spread=False)
        gm = I("\n".join("v_mul_f32 v%d, %s, v%d" % (GB + 16 + a_, fhex(2.0 ** -19), 20 + a_) for a_ in range(4)))
        gm += I("\n".join("v_sub_f32 v%d, 1.0, v%d" % (20 + a_, 20 + a_) for a_ in range(4)))
        bars = {}; rend = {}
        for s_ in range(3):
            e = at[(pos_[(13, s_)], 3)]
            e = G.stream(red_w(s_), e + 3, e + 9)
            bars[s_] = e + 4
            G.put(e + 4, I("@must rw%d t13%s\ns_barrier" % (s_, " ow1" if s_ == 2 else "")))
            e = G.stream(red_r(s_) + ([I("ds_read_b128 v[36:39], v7")] if s_ == 2 else []), e + 5, e + 10, spread=False)
            if s_ < 2:
                G.put(e + 5, I("@wait rr%d" % s_))
                rend[s_] = G.stream(red_a(s_), e + 6, e + 16, spread=False)
        e = G.stream(single(gm), fin, fin + 8, spread=False)
        e = G.stream(single(I("\n".join("v_mul_f32 v%d, v%d, v%d" % (AO + i, GB + 16 + i // 4, AO + i) for i in range(16)))), max(e, fin + 9), fin + 24, spread=False)
        e = G.stream(mix(0), max(e, rend[0]) + 1, bars[2] - 6, spread=False)
        e = G.stream(mix(1), max(e, rend[1]) + 1, bars[2] - 1, spread=False)
        assert e < bars[2]
        ost = lambda h_: J("buffer_store_dwordx4 {r}, {x}, {SOUT}, s{so} offen {f}", r=V(36 + 4 * h_, 4), so=76 + h_, f=("", "sc1", "nt")[self.o("ost", 1)])
        ra = red_a(2); nfit = max(0, min(12, 2 * (N - bars[2] - 11)))
        if nfit: G.stream(ra[:nfit], bars[2] + 10, N, spread=False)
        for i in range(10): G.put(min(32 * i, len(G) - 1), self.stamp(i, 2))
        p += G.out()
        p += self.stamp(9)
        p += ost(0) + flat(weave(red_w(3), ra[nfit:] + mix(2))) + I("@wait rw3\ns_barrier") + flat(red_r(3))
        for o, q in ((0, 16), (32, 16), (0, 32)):
            for hh in (0, 2): p += I("v_pk_add_f32 %s, %s, %s" % (V(140 + o + hh, 2), V(140 + o + hh, 2), V(140 + o + q + hh, 2)))
        p += flat(mix(3)) + I("@waitlg0\ns_barrier\nds_read_b128 v[40:43], v7 offset:4096") + ost(1)
        return p + self.ending(ffn)

    def p4pair(self, ffn, st, pump, W, ladr=None, fill=None, usig=None):
        NS = 16; hb = [None]; ef = self.ef
        order = [(t, u) for t in range(8) for u in range(7)]
        if ef: order = [(t, u) for t in range(4) for u in range(3)] + [(t, u) for t in range(4) for u in range(3, 7)] + [(t, u) for t in range(4, 8) for u in (0, 3, 1, 4, 2, 5, 6)]
        pos_ = dict((x_, k) for k, x_ in enumerate(order))
        def hload(k):
            t, u = order[k]; gs = []
            o = t * 65536 + (2 * (u % 3) if ef and u < 6 else u) * 1024
            if hb[0] is None or not hb[0] <= o < hb[0] + 4096:
                hb[0] = o; gs.append(J("s_add_u32 {ho}, {b}, {o}", o=o & 0x3ffff, b=NM["hs" if t < 4 else "he"]))
            return gs + [J("buffer_load_dwordx4 {r}, {a}, {SWS}, {ho} offen offset:{o} sc1", tag="h%d" % k, r=V(192 + 4 * (k % NS), 4), o=o - hb[0],
                           a=("v44", "v45")[u // 3] if ef and u < 6 else NM["l16b"])]
        npre = self.o("npre", 12)
        adr = []
        for dl in range(4):
            adr += J("s_xor_b32 {t1}, {w}, {dl}\ns_mul_i32 {t1}, {t1}, 3072\ns_add_u32 {t1}, {t1}, {o}\nv_add_u32 v{r}, {t1}, {l16b}", dl=dl, o=76 * 1024 + max(0, dl - 1) * 1024, r=32 + dl)
        adr += J("""s_lshl3_add_u32 {t1}, {bp}, {nt}
s_lshl_b32 {wo0}, {t1}, 7
s_add_u32 {wo0}, {wo0}, {pf}
s_lshl2_add_u32 s78, {t1}, {w}
s_lshl_b32 s78, s78, 12
s_xor_b32 s79, s78, {px}
s_add_u32 s78, s78, {pb}
s_add_u32 s79, s79, {pb}""", pf=WS_PF, pb=WS_P, px=self.pair << 17)
        ro = [61440 if self.rip else 53248, 0, 12288, 24576]
        sC = self.setupC()
        if ef:
            npre = 12
            p = J("s_lshr_b32 {t1}, {wde}, 5\nv_add_u32 v44, {t1}, {l16b}\nv_xor_b32 v45, 0x400, v44")
            if ladr is not None: p += flat([hload(k) for k in range(npre)]) + flat(ladr) + flat(pump(7))
            else: p = W(fill, pump(7)) + p
            p += flat(self.TT(st["t"], 3)); st["t"] = max(st["t"], 3)
        else:
            if self.o("hfirst", 0): p = flat(pump(7)) + flat([hload(k) for k in range(npre)]) + self.after_h + W(sC + single(adr), self.TT(st["t"], 7))
            else: p = flat(pump(7)) + W([g for k in range(npre) for g in hload(k)], sC + single(adr[:16])) + self.after_h + adr[16:] + flat(self.TT(st["t"], 7))
        s5 = self.o("s5", 150); AO = GB; LA = self.o("la5", 10); PK5 = 36; RC = GB + 24
        def m4(k, dl):
            t, u = order[k]; d = V(128 + (dl * 4 + t % 4) * 4, 4)
            return I("%s %s, %s, %s, %s" % (MF, d, A(self.wd_reg(u, dl), 4), V(192 + 4 * (k % NS), 4), d if u else "0"))
        ar = lambda k: A(80 + 4 * (k % 16), 4)
        def m5(k):
            n, sg = divmod(k, 4); d = V(ACCV + 4 * sg, 4)
            return I("%s %s, %s, %s, %s" % (MF, d, ar(k), V(GB + 4 * n, 4), d if n else "0"))
        mf = []; at = {}; k5 = 0; fin = None
        for i in range(224):
            k, dl = divmod(i, 4)
            if order[k][1] == 6: dl = (dl + 1) % 4
            at[(k, i % 4)] = len(mf); mf.append(m4(k, dl))
            for _ in range(self.o("r5", 2)):
              if i >= s5 and k5 < 64:
                at[k5] = len(mf); mf.append(m5(k5)); k5 += 1
            if k5 == 64 and fin is None and len(mf) >= at[63] + 12:
                fin = len(mf)
                mf += [I("%s %s, %s, %s, %s" % (MF, V(AO + 4 * a_, 4), V(PK5 + 4 * v, 4), A(224 + (2 * a_ + v) * 4, 4), V(AO + 4 * a_, 4) if v else "0")) for v in range(2) for a_ in range(4)]
        G = Gaps(mf); N = len(mf)
        for k in range(1, 56): G.put(at[(k, 0)] - 1, I("@must h%d" % k))
        for k in range(64):
            pos = at[k - LA] if k >= LA else at[0] - (LA - k)
            if k % 16 == 0: G.put(pos - 1, I("@must u%d\ns_barrier" % (k // 16)))
            G.put(pos, J("ds_read_b128 {r}, {vw} offset:{o}", tag="a%d" % k, r=ar(k), o=(k % 4) * 16384 + (k // 4) * 1024))
            if k % 2 == 0: G.put(at[k] - 1, I("@wait a%d" % (k + 1)))
        G.put(at[0] + 1, J("buffer_load_dwordx4 v[20:23], v8, {SWS}, {t0} offen sc1"))
        hd = self.o("hd", 48)
        def ud(c):
            return [J("s_add_u32 m0, {t3}, {o}", o=c * 4096)] + ([J("s_add_u32 {t2}, {t2}, 4096")] if c else []) + \
                   [J("buffer_load_dwordx4 {l16b}, {SWS}, {t2} offen offset:{o} sc1 lds", tag="u%d" % c, o=1024 * k) for k in range(4)]
        items = sorted([(at[(k, 0)], 1, k) for k in range(npre, 56)] + [((at[16 * c - LA] if c else at[0] - LA) - 1, 0, c) for c in range(4)])
        last = 0
        if ef:
            up = self.o("up", 8)
            if usig: G.put(up, usig[0] + self.stamp(6, 3))
            if usig and usig[1:]: G.stream(usig[1:], 70, 110)
            G.put(self.o("lp", 10), I(self.POLL_LD, tag="poll"))
            last = self.o("lc", 40)
            G.put(last, I("@wait poll") + self.spin(self.POLL_LD) + self.stamp(7, 3))
            G.stream(sC[:3], last + 1, last + 5, spread=False)
            e = G.stream(self.TT(st["t"], 7), 8, 46) if st["t"] < 7 else 0
            assert e < 47
            e = G.stream(single(adr[:16]) + sC[3:], 0, 62, spread=False)
            G.stream(single(adr[16:]), max(e, up) + 1, 70, spread=False)
        for need, kind, k in items:
            want = max(last, need - hd)
            if kind == 1:
                w_ = max(want, last + 1, at[(k - NS, 3)] if k >= NS else 0)
                last = G.stream(hload(k), w_, w_ + 4, spread=False)
            else:
                if k == 0:
                    G.put(max(self.o("lc", 40) + 6 if ef else 0, want - self.o("pgap", 44)), I(self.POLL_LD, tag="poll"))
                    G.put(want, self.stamp(8) + I("@wait poll") + self.spin(self.POLL_LD, sleep=self.o("slu", 0)))
                    G.stream(single(J("s_xor_b32 {wo1}, {wo0}, {o}\nv_mov_b32 {pa}, 0", o=self.pair << 10)), want + 1, want + 20)
                last = G.stream(ud(k), want + 1, want + 11)
        def red_w(t): return [I("ds_write_b128 v%d, %s offset:%d" % (32 + dl, V(128 + (dl * 4 + t % 4) * 4, 4), ro[t % 4]), tag="rw%d" % t) for dl in (1, 2, 3)]
        def red_r(t): return [I("ds_read_b128 %s, v32 offset:%d" % (V(128 + (dl * 4 + t % 4) * 4, 4), ro[t % 4] + (dl - 1) * 1024), tag="rr%d" % t) for dl in (1, 2, 3)]
        def red_a(t):
            b = 128 + 4 * (t % 4)
            return single([I("v_add_f32 v%d, v%d, v%d" % (b + o + r, b + o + r, b + o + q + r)) for o, q in ((0, 16), (32, 16), (0, 32)) for r in range(4)])
        mi = self.o("mi", 24)
        def mix(a_):
            b = 128 + 4 * a_
            return single(([] if mi else I("v_pk_add_f32 %s, %s, %s\nv_pk_add_f32 %s, %s, %s" % (V(b, 2), V(b, 2), V(RC + 4 * a_, 2), V(b + 2, 2), V(b + 2, 2), V(RC + 4 * a_ + 2, 2)))) +
                          I("\n".join("v_fma_f32 v%d, v%d, v%d, v%d" % (b + r, b + r, 20 + a_, AO + 4 * a_ + r) for r in range(4))) +
                          cvt(56 + 2 * a_, b, b + 1) + cvt(57 + 2 * a_, b + 2, b + 3) + I("ds_write_b64 v6, %s offset:%d" % (V(56 + 2 * a_, 2), a_ * 2048), tag="ow%d" % a_))
        left = []; sent = 0; b16 = self.o("b16", 1); wg = self.o("wg", 4)
        rounds = {0: [[0], [1], [2], [3], [4], [5], [6]], 1: [[0, 1], [2, 3], [4, 5], [6]], 2: [[0, 1], [2, 3], [4, 5, 6]], 3: [[0, 1, 2], [3], [4, 5, 6]]}[self.o("rnd", 1)]
        if len(rounds[0]) > 1: G.put(at[(pos_[(1, 6)], 0)] - self.o("eb", 10), I("@must t6\ns_barrier"))
        for rd_ in rounds:
            for t in rd_:
                e = at[(pos_[(t, 6)], 3)]
                e = G.stream(red_w(t), e + 3, e + (9 if t == rd_[-1] else 20))
            G.put(e + wg, I("@must rw%d t6\ns_barrier" % rd_[-1]))
            e = G.stream([g for t in rd_ for g in red_r(t)], e + wg + 1, e + wg + 2 + 4 * len(rd_), spread=False)
            e0_ = e + 5 - 3 * (len(rd_) - 1)
            for t in rd_:
                ra = [I("@wait rr%d" % t)] + red_a(t); nfit = 0 if left else max(0, min(13, 2 * (N - e0_ - 2)))
                if nfit: e0_ = G.stream(ra[:nfit], e0_, min(N, e0_ + 11), spread=False)
                left += ra[nfit:]
                if t < 4 and b16:
                    o = 24 + 4 * (t // 2) + 2 * (t & 1); b = 128 + 4 * t
                    e0_ = sent = G.stream([cvt(o, b, b + 1), cvt(o + 1, b + 2, b + 3)] + ([J("buffer_store_dwordx4 {r}, {l16b}, {SWS}, s79 offen offset:{o} sc1", tag="snd", r=V(o - 2, 4), o=(t // 2) * 1024)] if t & 1 else []), e0_, e0_ + 4, spread=False)
                elif t < 4: sent = G.stream([J("buffer_store_dwordx4 {r}, {l16b}, {SWS}, s79 offen offset:{o} sc1", tag="snd", r=V(128 + 4 * t, 4), o=t * 1024)], e0_ + 1, e0_ + 4)
                assert t >= 4 or sent + 2 < at[(pos_[(t + 4, 0)], 0)]
        l = self.lab("nop")
        fp = sent + self.o("sgap", 34)
        G.put(fp, I("@must snd") + J("s_barrier\ns_cmp_lg_u32 {w}, 0") +
              J("s_cbranch_scc1 {l}\ns_mov_b64 exec, 1\nbuffer_store_dword v19, v0, {SWS}, {wo0} offen sc1\ns_mov_b64 exec, -1\n{l}:", raw=True, l=l))
        rc = N - self.o("rc", 54); assert (b16 or rc > at[40]) and rc - self.o("rgap", 24) > fp
        G.put(rc - self.o("rgap", 24), I(self.POLL_LD, tag="poll"))
        G.put(fp, self.stamp(0, 5))
        G.put(rc, self.stamp(1, 5) + I("@wait poll") + self.spin(self.POLL_LD) + self.stamp(2, 5))
        G.stream([J("buffer_load_dwordx4 {r}, {l16b}, {SWS}, s78 offen offset:{o} sc1", r=V((24 if b16 else RC) + 4 * t, 4), o=t * 1024) for t in range(2 if b16 else 4)], rc + 1, rc + 6, spread=False)
        if b16 and not mi: left += single([J("v_lshlrev_b32 v{d0}, 16, v{s}\nv_and_b32 v{d1}, {hi16}, v{s}", d0=RC + 2 * i, d1=RC + 2 * i + 1, s=24 + i) for i in range(8)])
        G.stream(single(self.pack(PK5, ACCV) + self.pack(PK5 + 4, ACCV + 8)), at[63] + 4, fin - 1, spread=False)
        gm = I("\n".join("v_mul_f32 v%d, %s, v%d" % (GB + 16 + a_, fhex(2.0 ** -19), 20 + a_) for a_ in range(4)))
        gm += I("\n".join("v_sub_f32 v%d, 1.0, v%d" % (20 + a_, 20 + a_) for a_ in range(4)))
        e = G.stream(single(gm), fin, fin + 8, spread=False)
        e = G.stream(single(I("\n".join("v_mul_f32 v%d, v%d, v%d" % (AO + i, GB + 16 + i // 4, AO + i) for i in range(16)))), max(e, fin + 9), min(N, fin + (20 if mi else 30)), spread=False)
        m01 = mix(0) + mix(1)
        if mi:
            q = []
            for i in range(8):
                q += J("v_lshlrev_b32 v{d0}, 16, v{s}\nv_and_b32 v{s}, {hi16}, v{s}\nv_fmac_f32 v{a0}, v{g}, v{d0}\nv_fmac_f32 v{a1}, v{g}, v{s}", d0=RC + i, s=24 + i, g=20 + i // 2, a0=AO + 2 * i, a1=AO + 2 * i + 1)
            q = single(q[:16]) + m01 + single(q[16:]); nf = self.o("nf", 30)
            G.stream(q[:nf], max(e + 1, N - mi), N, spread=False); m01 = q[nf:]
        ost = lambda h_: J("buffer_store_dwordx4 {r}, {x}, {SOUT}, s{so} offen {f}", r=V(36 + 4 * h_, 4), so=76 + h_, f=("", "sc1", "nt")[self.o("ost", 1)])
        for i in range(10): G.put(min(32 * i, len(G) - 1), self.stamp(i, 2))
        go = G.out(); x_ = self.o("strip", 0)
        if x_ & 1024: go = [i for i in go if i.op != "s_barrier"]
        if x_ & 2048: go = [Ins("s_nop 0", i.tag) if i.cls == "ds" and i.tag and i.tag[:2] in ("rw", "rr") else i for i in go]
        if x_ & 16384: go = [i for i in go if not (i.cls == "mfma" and i.text.split()[1] in ("v[48:51],", "v[52:55],", "v[56:59],", "v[60:63],")) and not (i.tag and i.tag[0] == "a")]
        if x_ & 4096: go = [i for i in go if not (i.raw and "s_mem" not in i.op)]
        p += go
        p += self.stamp(9)
        nl = self.o("nl", 4)
        p += self.stamp(3, 5) + flat(left[:nl]) + self.stamp(4, 5) + flat(weave(red_w(7), left[nl:] + m01, self.o("nl2", 0))) + self.stamp(5, 5) + I("@wait rw7 ow1\ns_barrier") + self.stamp(6, 5) + flat(red_r(7)) + I("ds_read_b128 v[36:39], v7") + flat(mix(2))
        for o, q in ((0, 16), (32, 16), (0, 32)):
            for hh in (0, 2): p += I("v_pk_add_f32 %s, %s, %s" % (V(140 + o + hh, 2), V(140 + o + hh, 2), V(140 + o + q + hh, 2)))
        p += ost(0) + flat(mix(3)) + self.stamp(7, 5) + I("@waitlg0\ns_barrier") + self.stamp(8, 5) + I("ds_read_b128 v[40:43], v7 offset:4096") + ost(1) + self.stamp(9, 5)
        return p + self.ending(ffn)

    def ending(self, ffn):
        p = []
        if "diag" in self.kw:
            i = self.kw["diag"]; l = self.lab("dg"); who = self.o("who", 0)
            use = i >= 0 and (who == 0 or (who == 1) == ffn)
            p += I("@waitvm0") + self.stamp(10) + I("s_waitcnt lgkmcnt(0)")
            p += I("s_add_u32 s3, %s, 5000" % ("s%d" % (48 + 2 * i) if use else "s100"))
            if "dx" in self.kw: p += I("s_and_b32 s98, s2, 7\ns_cmp_eq_u32 s98, %d\ns_cselect_b32 s3, s3, s100" % self.kw["dx"])
            p += I("%s:\ns_sleep 1\ns_memrealtime s[98:99]\ns_waitcnt lgkmcnt(0)\ns_sub_u32 s98, s98, s3\ns_cmp_lt_i32 s98, 0\ns_cbranch_scc1 %s" % (l, l), raw=True)
        elif self.prof:
            p += I("@waitvm0") + self.stamp(10) + I("s_waitcnt lgkmcnt(0)")
            p += J("s_lshl_b32 s3, s2, 2\ns_add_u32 s3, s3, {w}\ns_lshl_b32 s3, s3, 6\ns_add_u32 s3, s3, {o}\nv_mov_b32 v32, s100", o=WS_PROF)
            for i in range(11): p += I("v_mov_b32 v%d, s%d" % (33 + i, 48 + 2 * i))
            p += I("s_mov_b64 exec, 1")
            for i in range(3): p += I("buffer_store_dwordx4 %s, v0, %s, s3 offen offset:%d" % (V(32 + 4 * i, 4), SWS, 16 * i))
        return p + I("s_endpgm")

    def text(self):
        st = {}
        hdr = open("gated_mix__spectral_gfnet__glu_gated_reglu__prompt.s.ref").read().split("; Override launch")[0]
        out = [hdr.rstrip(), "; One persistent launch: 256 workgroups (one per CU) x 4 waves. Written by my own generator scripts.",
               "; @launch grid=(256,1,1) block=(256,1,1) lds=163840", '.amdgcn_target "amdgcn-amd-amdhsa--gfx950"', ".text",
               ".globl " + NAME, ".p2align 8", ".type %s,@function" % NAME, NAME + ":"]
        prog = self.prologue() + self.p12f() + I("L_dft:") + self.p12d() + I("L_end:\ns_endpgm")
        x = self.o("strip", 0)
        if x & 1: prog = [i for i in prog if i.cls != "mfma"]
        if x & 2: prog = [i for i in prog if not (i.cls == "ds" and i.op.startswith("ds_read"))  or i.tag and not seen_tag(i.tag)]
        if x & 4: prog = [i if not (i.cls == "vmem" and i.tag == "pub") else Ins(i.text.replace("v14", "v0").replace("dwordx4", "dword").replace(i.text.split()[1], "v0,"), i.tag) for i in prog]
        import re as _re
        for bit, pat in ((8, r"d\d+$"), (16, r"h\d+"), (512, r"snd"), (32, r"u\d$"), (64, r"cld$"), (128, r"w\d$"), (256, r"x\d$")):
            if x & bit: prog = [Ins("s_nop 0", i.tag) if i.cls == "vmem" and i.tag and _re.match(pat, i.tag) and "sc1 lds" not in (i.text if bit == 256 else "") else i for i in prog]
        body = finalize(prog, st)
        if self.o("al", 1): body, st["align"] = align8(body)
        out += body
        out += ['.section .rodata,"a"', ".p2align 6", ".amdhsa_kernel " + NAME, "  .amdhsa_next_free_vgpr 512", "  .amdhsa_next_free_sgpr 102",
                "  .amdhsa_accum_offset 256", "  .amdhsa_group_segment_fixed_size 0", "  .amdhsa_kernarg_size 88", "  .amdhsa_user_sgpr_count 2",
                "  .amdhsa_user_sgpr_kernarg_segment_ptr 1", "  .amdhsa_system_sgpr_workgroup_id_x 1", "  .amdhsa_float_denorm_mode_32 3", ".end_amdhsa_kernel"]
        self.stats = st; self.body = body
        return "\n".join(out) + "\n"

def main(Gen):
    import argparse
    ap = argparse.ArgumentParser()
    ap.add_argument("out"); ap.add_argument("--prof", action="store_true"); ap.add_argument("--opt", default=""); ap.add_argument("--est", action="store_true")
    a = ap.parse_args()
    kw = dict((k, int(v)) for k, v in (x.split("=") for x in a.opt.split(",") if x))
    g = Gen(prof=a.prof, **kw)
    open(a.out, "w").write(g.text())
    print(g.stats)
    if a.est:
        row = []; gap = None; nm = 0; over = 0; skip = None
        for l in g.body:
            x = Ins(l.strip())
            if skip:
                if x.text == skip + ":": skip = None
                continue
            if x.op in ("s_cbranch_vccz", "s_cbranch_scc1") and "L_" not in x.text: skip = x.text.split()[1]
            if x.cls == "label":
                if x.text == "L_dft:": row.append(over); row.append("|"); nm = 0; over = 0; gap = None
                continue
            if x.cls == "mfma":
                if gap is not None and len(gap) < 14: over += gap_over(gap) + sum(int(y.text.split()[1]) for y in gap if y.op == "s_nop")
                gap = []; nm += 1
                if nm % 64 == 0: row.append(over); over = 0
            elif gap is not None: gap.append(x)
        print(row, over)

if __name__ == "__main__":
    main(Gen)
```

```python
import sys, re
sys.path.insert(0, "tools")
from prog import *

NAME = "gated_mix__spectral_gfnet__glu_gated_reglu__prompt_kernel"
WS_H, WS_X1, WS_U, WS_G, WS_FLAG, WS_CNT, WS_PROF = 0, 0x800000, 0xA00000, 0xC38000, 0xC10000, 0xC30000, 0xF000000
NCLR = 58 if re.search('ef=[12]', ' '.join(sys.argv)) else 50
WS_PF, WS_EF, WS_P = 0xC3A000, 0xC42000, 0xD00000
SPIN_LIMIT = 300000
MF = "v_mfma_f32_16x16x32_bf16"
SX, SWG, SWU, SWD, SWS, SOUT, SWR, SWI, SGW, SDBG = [S(8 + 4 * i, 4) for i in range(10)]
NM = dict(w="s4", b12="s5", ni="s6", rot="s7", xcd="s70", loc="s71", wds="s70", wde="s71", l3="s72", nt="s73", bp="s74", xn="s75",
          hs="s80", lw4="s80", wo0="s81", wo1="s82", he="s83", wb="s83", k="s94", lw="s84", wdo="s85", t0="s86", t1="s87", t2="s88", t3="s89",
          mask="s[90:91]", hi16="s92", ring="s93", ho="s94", clr="s95", jb="s0", sh="s1", m1="s[96:97]", m2="s[98:99]",
          l16="v1", hi="v2", x="v3", xr="v4", vw="v5", l16b="v14", wd="v15", p="v16", xr2="v16", pa="v17",
          SX=SX, SWG=SWG, SWU=SWU, SWD=SWD, SWS=SWS, SOUT=SOUT, SWR=SWR, SWI=SWI, SGW=SGW, SDBG=SDBG)
vWT = [6, 7, 8, 9]; vDT = [10, 11, 12, 13]; vXA = [22, 23]; vWD = [15, 29, 30, 31]
LDS_RPF, LDS_RPI, LDS_R64I, LDS_STG, LDS_RED = 128 * 1024, 136 * 1024, 144 * 1024, 152 * 1024, 64 * 1024
GB, CO, ACCV = 64, 32, 48
CA2, CB2 = 20, 21
RING = [192, 208, 224, 240, 32]

def J(text, tag=None, raw=False, **kw):
    d = dict(NM); d.update(kw)
    return I(text.format(**d), tag, raw)
def single(g): return [[x] for x in flat(g)]
def chunks(g):
    g = flat(g); out = []; i = 0
    while i < len(g):
        j = i
        if g[i].op.startswith("v_cmp") and ("s", 106) in g[i].dst:
            k = i + 1
            while k < len(g) and not (g[k].op.startswith("v_cmp") and ("s", 106) in g[k].dst):
                if ("s", 106) in g[k].src: j = k
                k += 1
            j = i
        while j + 1 < len(g) and g[j + 1].op.startswith(("s_cselect", "s_subb", "s_addc")): j += 1
        out.append(g[i:j + 1]); i = j + 1
    return out
def cvt(d, a, b): return I("v_cvt_pk_bf16_f32 v%d, v%d, v%d" % (d, a, b))

DOC = """;
; Rows s = 32a + b, row frequencies k = p + 64q; every DFT stage is a real bf16 MFMA product with fp32 accumulation,
; all cos/sin matrices are built in the kernel (v_cos plus a Chebyshev recurrence).
;   phase 1 (32 workgroups, L_dft): radix-2 fold + DFT along d, then the 64-point stage over a          -> X1 (d_ws)
; The flag words are cleared inside the launch; d_debug tells everyone when that is done."""
_seen = set()
def seen_tag(t):
    r = t in _seen; _seen.add(t); return r

class Gen:
    def __init__(self, prof=False, **kw):
        self.prof = prof; self.kw = kw; self.nl = 0; self.nsp = {}
        self.pair = kw.get("pair", 4); self.NU = 7 if self.pair else 14; self.ef = kw.get("ef", 0) if self.pair else 0
    def o(self, k, d): return self.kw.get(k, d)
    def lab(self, b):
        self.nl += 1; return "L%s_%d" % (b, self.nl)
    def clk(self): return "s_memtime" if self.o("cyc", 0) else "s_memrealtime"
    def stamp(self, i, mode=0):
        if not self.prof or self.o("diag", i) != i or (self.o("pm", 0) != mode and i != 10): return []
        return I("%s %s" % (self.clk(), S(48 + 2 * i, 2)), raw=True)
    def srd(self, name, lo, size, back=0):
        b = int(name[2:name.index(":")])
        if back: g = I("s_sub_u32 s%d, s%d, %d\ns_subb_u32 s%d, s%d, 0" % (b, lo, back, b + 1, lo + 1))
        else: g = I("s_mov_b64 %s, %s" % (S(b, 2), S(lo, 2)))
        return g
    def srd_const(self, name, size):
        b = int(name[2:name.index(":")])
        return I("s_mov_b32 s%d, 0x%x\ns_mov_b32 s%d, 0x20000" % (b + 2, size, b + 3))
    def spin(self, load, sleep=None):
        if sleep is None: sleep = self.o("sl", 0)
        ok, sp = self.lab("ok"), self.lab("spin")
        cmp_ = "v_cmp_ne_u32 vcc, 1, v16"
        if self.prof and self.o("pm", 0) == 6 and not getattr(self, "_in", 0):
            self._in = 1; body = self.spin(load, sleep); self._in = 0
            k = self.nsp[self.ffn] = self.nsp.get(self.ffn, -1) + 1
            return I("s_mov_b32 s3, 0") + body + I("s_mul_i32 s3, s3, 100\ns_add_u32 s%d, s3, s100" % (48 + 2 * k))
        return I(cmp_) + I("s_cbranch_vccz %s" % ok, tag="first", raw=True) + I("""s_mov_b32 s3, 0
%s:
%s%s
s_waitcnt vmcnt(0)
%s
s_add_u32 s3, s3, 1
s_cmp_lt_u32 s3, %d
s_cbranch_vccz %s
s_cbranch_scc1 %s
%s:""" % (sp, "s_sleep %d\n" % sleep if sleep else "", load, cmp_, SPIN_LIMIT, ok, sp, ok), raw=True)

    def cheb(self, X, Y, K, pk=True):
        if not pk: return I("\n".join("v_fma_f32 v%d, v%d, v%d, -v%d" % (X + q, K, Y + q, X + q) for q in range(8)))
        return I("\n".join("v_pk_fma_f32 %s, %s, %s, %s neg_lo:[0,0,1] neg_hi:[0,0,1]" % (V(X + 2 * q, 2), V(K, 2), V(Y + 2 * q, 2), V(X + 2 * q, 2)) for q in range(4)))
    def direct(self, X, spec):
        g = []; src = []
        for i, (d, K, b) in enumerate(spec):
            if K == 0: src.append(b)
            else:
                g += I("v_fmamk_f32 v%d, %s, %s, %s" % (X + i, d, fhex(K), b)); src.append("v%d" % (X + i))
        return g + I("\n".join("v_cos_f32 v%d, %s" % (X + i, src[i]) for i in range(8)))
    def pack(self, dst, X, first=None):
        return flat([cvt(dst + q, first if (q == 0 and first) else X + 2 * q, X + 2 * q + 1) for q in range(4)])

    def gen_G(self, t, pk):
        X, Y, K = t, t + 8, t + 16
        d, a0 = V(t + 18), V(t + 19)
        pre = J("""s_lshl_b32 {t0}, {nt}, 6
s_lshl_b32 {t1}, {w}, 4
s_add_u32 {t0}, {t0}, {t1}
v_add_u32 {d}, {t0}, {l16}
v_cvt_f32_u32 {d}, {d}
v_mul_f32 {d}, {c512}, {d}
v_mul_f32 {k0}, 0x41800000, {d}
v_cos_f32 {k0}, {k0}
v_and_b32 {e0}, 2, {hi}
v_lshlrev_b32 {e0}, 2, {e0}
v_cvt_f32_u32 {e0}, {e0}
v_and_b32 {e1}, 1, {hi}
v_cvt_f32_u32 {a0}, {e1}
v_mul_f32 {a0}, 0x3e800000, {a0}
v_fmac_f32 {a0}, {d}, {e0}
v_add_f32 {k0}, {k0}, {k0}
v_and_b32 {e0}, {e1}, v0
v_mov_b32 {k1}, {k0}
v_lshl_or_b32 {e0}, {e0}, 31, 0.5""", d=d, a0=a0, c512=fhex(1 / 512), k0=V(K), k1=V(K + 1), e0=V(t + 20), e1=V(t + 21))
        kap = [2 * (i & 3) + (i >> 2) for i in range(8)]
        gs = [pre, self.direct(X, [(d, kap[i], a0) for i in range(8)]), self.direct(Y, [(d, 16 + kap[i], a0) for i in range(8)]),
              J("v_cmp_gt_u32 vcc, 2, {hi}") + self.pack(GB + 4, Y) + I("v_cndmask_b32 v%d, v%d, v%d, vcc" % (t + 20, X, t + 20)) + self.pack(GB, X, first=t + 20)]
        for n in range(2, 16):
            a, b = (X, Y) if n % 2 == 0 else (Y, X)
            gs.append(self.cheb(a, b, K, pk) + self.pack(GB + 4 * n, a))
        return gs

    def gen_R(self, part, t, base=None):
        X = t; r = [V(t + 8 + i) for i in range(14)]
        n = dict(q=r[0], k=r[1], ph=r[2], dl=r[3], b0=r[4], b1=r[5], d0=r[6], d1=r[7], o0=r[8], o1=r[9], qt=r[10], h2=r[11], hf=r[12], adr=r[13],
                 c=fhex(1 / 2048), c64=fhex(1 / 64), base=LDS_RPF + 8192 * part if base is None else base)
        g = J("""s_lshl_b32 {t0}, {w}, 11
s_add_u32 {t0}, {t0}, {base}
v_add_u32 {adr}, {t0}, {l16b}
v_cvt_f32_u32 {hf}, {hi}
v_mov_b32 {qt}, 0x3e800000""", **n)
        if part < 2: g += J("s_cmp_eq_u32 {bp}, 0\ns_cselect_b64 {m1}, -1, 0\ns_cselect_b32 {t1}, 32, 64")
        masks = J("s_and_b32 vcc_lo, s96, 0xaaaaaaaa\ns_mov_b32 vcc_hi, vcc_lo\ns_andn2_b64 {m2}, {m1}, vcc")
        if part == 0:
            g += J("""s_and_b32 {t0}, {w}, 1
s_lshl_b32 {t0}, {t0}, 4
v_add_u32 {q}, {t0}, {l16}
v_mul_u32_u24 {k}, {t1}, {q}
v_add_u32 {k}, {bp}, {k}
s_lshr_b32 {t2}, {w}, 1
s_cselect_b64 {m2}, -1, 0
v_cmp_eq_u32 vcc, 0, {k}
v_cvt_f32_u32 {ph}, {t2}
v_mul_f32 {ph}, 0xbe800000, {ph}
v_cvt_f32_u32 {dl}, {k}
v_mul_f32 {dl}, {c}, {dl}
s_and_b64 vcc, vcc, {m2}
v_cndmask_b32 {dl}, {dl}, 0.5, vcc
v_cndmask_b32 {ph}, {ph}, 0, vcc
v_add_f32 {h2}, {hf}, {hf}
v_fma_f32 {b0}, {dl}, {h2}, {ph}
v_add_f32 {b1}, {qt}, {b0}
v_cndmask_b32 {b1}, {b1}, {b0}, {m1}""", **n) + masks + J("""v_cndmask_b32 {d0}, {dl}, 0, vcc
v_cndmask_b32 {b0}, {b0}, {qt}, vcc
v_cndmask_b32 {d1}, {dl}, 0, {m2}
v_cndmask_b32 {b1}, {b1}, {qt}, {m2}""", **n)
            specs = [[((r[6], r[7])[i & 1], 16 * v + 8 * (i // 4) + (i % 4) // 2, (r[4], r[5])[i & 1]) for i in range(8)] for v in range(2)]
        elif part == 1:
            g += masks + J("""s_lshl_b32 {t0}, {w}, 3
v_lshrrev_b32 {q}, 1, {l16}
v_add_u32 {q}, {t0}, {q}
v_cvt_f32_u32 {k}, {q}
v_mul_f32 {k}, {c}, {k}
v_cvt_f32_u32 {ph}, {t1}
v_mul_f32 {dl}, {k}, {ph}
v_cvt_f32_u32 {ph}, {bp}
v_mul_f32 {b0}, {k}, {ph}
v_and_b32 {q}, 1, v0
v_cvt_f32_u32 {ph}, {q}
v_cndmask_b32 {ph}, {ph}, 0, {m1}
v_fmac_f32 {b0}, {qt}, {ph}
v_mul_f32 {ph}, 4.0, {hf}
v_fmac_f32 {b0}, {dl}, {ph}
v_sub_f32 {b1}, {b0}, {qt}
v_cndmask_b32 {d1}, {dl}, 0, {m2}
v_cndmask_b32 {o0}, {b0}, {qt}, {m2}
v_cndmask_b32 {o1}, {b1}, {qt}, {m2}
s_and_b64 {m2}, {m2}, 0xffff
v_cndmask_b32 {d0}, {dl}, 0, vcc
v_cndmask_b32 {b0}, {b0}, {qt}, vcc
v_cndmask_b32 {b1}, {b1}, {qt}, vcc
v_mul_f32 {k}, 0x44800000, {k}
v_cndmask_b32 {k}, {b1}, {k}, {m2}""", **n)
            specs = [[((r[6], r[7])[i & 1], 16 * (i // 4) + i % 4, ((r[4], r[5]), (r[8], r[9]))[i & 1][v]) for i in range(8)] for v in range(2)]
            specs[1][0] = (r[6], 0, r[1])
        else:
            g += J("""s_lshl_b32 {t0}, {w}, 4
v_add_u32 {q}, {t0}, {l16}
v_cvt_f32_u32 {q}, {q}
v_mul_f32 {dl}, {c64}, {q}
v_add_f32 {h2}, {hf}, {hf}
v_mul_f32 {b0}, {dl}, {h2}
v_sub_f32 {b1}, {b0}, {qt}
v_mul_f32 {q}, 0.5, {q}
s_mov_b64 {m2}, 0xffff
v_cndmask_b32 {q}, {b1}, {q}, {m2}""", **n)
            specs = [[(r[3], 16 * v + 8 * (i // 4) + (i % 4) // 2, (r[4], r[5])[i & 1]) for i in range(8)] for v in range(2)]
            specs[0][1] = (r[3], 0, r[0])
        for v in range(2):
            g += self.direct(X, specs[v]) + self.pack(X, X) + I("ds_write_b128 %s, %s offset:%d" % (r[13], V(X, 4), v * 1024), tag="rtab")
        return chunks(g)

    def gen_T(self):
        r = [V(112 + i) for i in range(8)]
        gs = [J("""s_lshr_b32 {t0}, {xn}, 1
s_lshl_b32 {t0}, {t0}, 2
s_add_u32 {t0}, {t0}, {w}
s_lshl_b32 {t0}, {t0}, 5
s_and_b32 {t1}, {xn}, 1
s_add_u32 {t0}, {t0}, {t1}
v_lshl_add_u32 {j}, {l16}, 1, {t0}
v_cvt_f32_u32 {d0}, {j}
v_cmp_eq_u32 vcc, 0, {j}
v_mul_f32 {d0}, {c}, {d0}
v_mov_b32 {b1}, 0x3e800000
s_lshl_b32 {t0}, {wb}, 6
v_lshl_add_u32 {h4}, {hi}, 2, {t0}
v_cvt_f32_u32 {h4}, {h4}
v_cndmask_b32 {d1}, {d0}, 0.5, vcc
v_cndmask_b32 {b1}, {b1}, 0, vcc
v_mul_f32 {b0}, {d0}, {h4}
v_fmac_f32 {b1}, {d1}, {h4}
v_mul_f32 v104, 0x42000000, {d0}
v_mul_f32 v106, 0x42000000, {d1}
v_cos_f32 v104, v104
v_cos_f32 v106, v106
s_lshl_b32 {t0}, {w}, 11
v_add_u32 {adr}, {t0}, {l16b}
v_add_f32 v104, v104, v104
v_add_f32 v106, v106, v106
v_mov_b32 v105, v104
v_mov_b32 v107, v106""", j=r[0], d0=r[2], d1=r[3], b0=r[4], b1=r[5], h4=r[6], adr=r[7], c=fhex(1 / 512))]
        for n in range(8):
            for tt in range(2):
                X, Y = 64 + 16 * tt, 72 + 16 * tt
                a, b = (X, Y) if n % 2 == 0 else (Y, X)
                g = self.direct(a, [(r[2 + tt], 32 * n + 16 * (i // 4) + i % 4, r[4 + tt]) for i in range(8)]) if n < 2 else self.cheb(a, b, 104 + 2 * tt, n < self.o("ntp", 8))
                gs.append(g + self.pack(96 + 4 * tt, a) + I("ds_write_b128 %s, %s offset:%d" % (r[7], V(96 + 4 * tt, 4), n * 8192 + tt * 1024), tag="ttab%d" % (n // 2)))
        sel = J("""s_lshl_b32 {t1}, {t1}, 15
v_lshrrev_b32 v24, 1, {hi}
v_mul_u32_u24 v24, {t1}, v24
v_or_b32 v24, 0x3f80, v24
v_and_b32 v25, 1, v0
v_lshlrev_b32 v25, 4, v25
v_lshlrev_b32 v24, v25, v24
v_lshrrev_b32 v25, 1, {l16}
v_and_b32 v26, 1, {hi}
v_lshlrev_b32 v27, 2, v26
v_xor_b32 v27, v25, v27
v_cmp_eq_u32 vcc, 0, v27
v_cmp_eq_u32 {m1}, 1, v27
v_cmp_eq_u32 {m2}, 2, v27
v_cndmask_b32 v20, 0, v24, vcc
v_cmp_eq_u32 vcc, 3, v27
v_cndmask_b32 v21, 0, v24, {m1}
v_cndmask_b32 v22, 0, v24, {m2}
v_cndmask_b32 v23, 0, v24, vcc
v_xor_b32 v24, v26, v25
v_lshlrev_b32 v24, 4, v24
v_lshl_add_u32 v24, {l16}, 7, v24
v_lshrrev_b32 v25, 1, {hi}
v_lshl_add_u32 v24, v25, 11, v24
v_add_u32 v6, {ring}, v24
v_xor_b32 v7, 32, v6
v_xor_b32 v8, 64, v6
v_xor_b32 v9, 0x60, v6""")
        late = J("""s_lshl_b32 {t0}, {w}, 4
v_add_u32 v24, {t0}, {l16}
v_lshrrev_b32 v18, 1, v24
v_cvt_f32_u32 v18, v18
v_mul_f32 v18, {c}, v18
v_and_b32 v19, 1, v24
v_cvt_f32_u32 v19, v19
v_mul_f32 v19, 0xbe800000, v19
v_cmp_eq_u32 vcc, 1, v24
v_lshlrev_b32 v24, 2, {hi}
v_cvt_f32_u32 v24, v24
s_lshl_b32 {t0}, {w}, 11
s_add_u32 {t0}, {t0}, {stg}
v_cndmask_b32 v18, v18, 0.5, vcc
v_cndmask_b32 v19, v19, 0, vcc
v_fmac_f32 v19, v18, v24
v_add_u32 {pa}, {t0}, {l16b}""", c=fhex(1 / 64), stg=LDS_STG)
        for v in range(2):
            late += self.direct(24, [("v18", 32 * v + 16 * (i // 4) + i % 4, "v19") for i in range(8)]) + self.pack(24, 24) + \
                    J("ds_write_b128 {pa}, v[24:27] offset:{o}", tag="r64f", o=v * 1024)
        return gs, sel, late

    def wd_setup(self):
        g = J("""v_lshrrev_b32 v24, 3, v0
v_bfe_u32 v25, v0, 1, 2
v_xor_b32 v25, v25, {hi}
v_lshlrev_b32 v25, 5, v25
v_lshl_add_u32 v25, v24, 10, v25
v_and_b32 v24, 1, v0
v_lshl_add_u32 {wd}, v24, 4, v25
v_add_u32 v29, 7168, {wd}
v_add_u32 v30, 7168, v29
v_add_u32 v31, 7168, v30
s_mul_i32 {wds}, {w}, {c}
s_lshl_b32 {t0}, {nt}, 7
s_add_u32 {wds}, {wds}, {t0}
s_add_u32 {wde}, {wds}, {c}
v_bfe_u32 v24, v0, 2, 3
v_lshrrev_b32 v25, 5, v0
v_lshlrev_b32 v25, 10, v25
v_lshl_add_u32 v25, v24, 7, v25
v_and_b32 v26, 3, v0
v_lshl_add_u32 v25, v26, 3, v25
v_add_u32 v25, {ring}, v25
v_lshrrev_b32 v24, 1, v24
v_xor_b32 v24, {w}, v24
v_lshl_add_u32 v10, v24, 5, v25
v_xor_b32 v11, 32, v10
v_xor_b32 v12, 64, v10
v_xor_b32 v13, 0x60, v10
s_mul_i32 {rot}, {nt}, {ra}""", c=448 * 1024, ra=self.o("rnt", 0))
        if self.pair:
            g = [x for x in g if x.cls != "salu"]
            return g + J("s_and_b32 {t0}, {bp}, {m}\ns_cselect_b32 {t0}, 28, 0\ns_mul_i32 {rot}, {w}, 7\ns_add_u32 {rot}, {rot}, {t0}\ns_lshl_b32 {wds}, {rot}, 8\ns_add_u32 {wds}, {wds}, {nt}\ns_lshl_b32 {wds}, {wds}, 7\ns_and_b32 {wde}, {rot}, 1\ns_lshl_b32 {wde}, {wde}, 15", m=self.pair)
        if self.o("rl3", 0) == 1: g += J("s_mul_i32 {t0}, {l3}, 7\ns_add_u32 {t0}, {t0}, 1\ns_lshr_b32 {t0}, {t0}, 1\ns_add_u32 {rot}, {rot}, {t0}")
        if self.o("rl3", 0) == 2: g += J("s_and_b32 {t0}, {l3}, 1\ns_mul_i32 {t0}, {t0}, 7\ns_add_u32 {rot}, {rot}, {t0}")
        if self.o("xo", 0) >= 0:
            return g[:-1] + J(("s_add_u32 {rot}, {nt}, {l3}" if self.o("xnt", 0) else "s_mov_b32 {rot}, {l3}") + "\ns_and_b32 {rot}, {rot}, {m}\ns_lshl_b32 {wde}, {rot}, 15", m=self.o("xo", 0))
        g += J("s_sub_u32 {t0}, {rot}, 14\ns_cselect_b32 {rot}, {rot}, {t0}\ns_lshl_b32 {t0}, {rot}, 15\ns_add_u32 {wdo}, {wds}, {t0}")
        return g
    def loc(self, u):
        if self.pair: return (1, u - 4 if u >= 4 else None, u % 4)
        a, n = (8, self.o("nA", 2)) if self.ffn else (4, 4)
        if a <= u < a + n: return (0, None, (u - a + 4 - n) % 4)
        r1 = [v for v in range(14) if not a <= v < a + n]; k = r1.index(u)
        return (1, r1[k - 4] if k >= 4 else None, k % 4)
    def D(self, u, pre=None):
        reg, prev, slot = (self.loc(u) + (u % 4,))[:3]; gs = []
        if self.ef and u < 6: gs += [J("s_xor_b32 {wdo}, {wde}, {o}", o=(2 * (u % 3) + u // 3) << 15), J("s_add_u32 {wdo}, {wdo}, {wds}")]
        elif self.pair: gs.append(J("s_add_u32 {wdo}, {wds}, {o}", o=u << 15))
        elif self.o("xo", 0) >= 0:
            if u == 12: gs.append(J("s_and_b32 {wde}, {wde}, 0x8000"))
            gs += [J("s_xor_b32 {wdo}, {wde}, {o}", o=u << 15), J("s_add_u32 {wdo}, {wdo}, {wds}")]
        elif u: gs += [J("s_add_u32 {wdo}, {wdo}, 0x8000"), J("s_cmp_ge_u32 {wdo}, {wde}\ns_cselect_b32 {wdo}, {wds}, {wdo}")]
        gs.append(J("s_add_u32 m0, {ring}, {o}", o=(slot * 4096 - (0 if reg else 65536)) & 0xFFFFFFFF))
        if prev is not None: gs.append(I("@must t%d" % prev))
        if pre: gs.append(pre)
        gs += [J("buffer_load_dwordx4 v{r}, {SWD}, {wdo} offen offset:{o} lds", tag="d%d" % u, r=vWD[k], o=1024 * k) for k in range(4)]
        return gs
    def wd_reg(self, u, dl): return (160 + 16 * u if u < 2 else 16 * (u - 2) if u < 12 else 16 * u) + 4 * dl
    def T(self, u):
        gs = []
        if self.loc(u)[0] != (self.loc(u - 1)[0] if u else 1): gs += single(I("\n".join("v_xor_b32 v%d, 0x10000, v%d" % (r, r) for r in vDT)))
        gs.append(I("@must d%d" % u))
        for dl in range(4):
            for j4 in range(2):
                gs.append(I("ds_read_b64_tr_b16 %s, v%d offset:%d" % (A(self.wd_reg(u, dl) + 2 * j4, 2), vDT[dl], (self.loc(u) + (u % 4,))[2] * 4096 + j4 * 2048), tag="t%d" % u))
        return gs
    def DD(self, a, b): return [g for u in range(a, b) for g in self.D(u)]
    def TT(self, a, b): return [g for u in range(a, b) for g in self.T(u)]

    def gmap(self, gs, load):
        if not (self.ef == 2 and self.ffn): return gs
        def f(n):
            if 216 <= n < 232: return n + 24
            if n == 236: return 9
            if load and n in (232, 233): return n - 210
            if 232 <= n < 236: return n - 80
            if 240 <= n < 256: return n - 104
            return n
        def t(x):
            x = re.sub(r"v\[(\d+):(\d+)\]", lambda m: "@[%d:%d]" % (f(int(m.group(1))), f(int(m.group(2)))), x)
            return re.sub(r"\bv(\d+)", lambda m: "v%d" % f(int(m.group(1))), x).replace("@[", "v[")
        return [[Ins(t(i.text), i.tag, i.raw) for i in flat([g])] for g in gs]
    def g_loads(self): return self.gmap(self.g_loads_(), True)
    def g_calc(self): return self.gmap(self.g_calc_(), False)
    def g_store(self): return self.gmap([self.g_store_()], False)[0]
    def g_loads_(self):
        loc = self.o("gl", 1)
        return single(J(("s_lshl3_add_u32 {t0}, {xn}, {nt}" if loc else "s_lshl2_add_u32 {t0}, {nt}, {w}") + """
s_lshl_b32 {t0}, {t0}, 1
v_lshrrev_b32 v25, 5, v0
v_add_u32 v236, {t0}, v25
v_and_b32 v25, 3, v236
v_lshrrev_b32 v26, 2, v236
v_lshl_add_u32 v25, v25, 4, v26
v_and_b32 v233, 0x1f0, {l16b}
v_lshl_add_u32 v232, v25, 15, v233
v_lshl_add_u32 v232, {gb}, 10, v232
buffer_load_dwordx4 v[216:219], v232, {SX}, 0 offen offset:2048
buffer_load_dwordx4 v[220:223], v232, {SX}, 0 offen offset:2560
buffer_load_dwordx4 v[224:227], v233, {SGW}, 0 offen
buffer_load_dwordx4 v[228:231], v233, {SGW}, 0 offen offset:512""", tag="gld", gb=NM["b12" if loc else "bp"]))
    def g_calc_(self):
        g = I("@wait gld")
        if self.o("gr", 1):
            for h in range(2):
                x_, w_ = 216 + 4 * h, 224 + 4 * h
                for i in range(4):
                    g += J("v_lshlrev_b32 v{a}, 16, v{x}\nv_and_b32 v{a1}, {hi16}, v{x}\nv_lshlrev_b32 v{b}, 16, v{w_}\nv_and_b32 v{b1}, {hi16}, v{w_}", a=240 + 2 * i, a1=241 + 2 * i, b=248 + 2 * i, b1=249 + 2 * i, x=x_ + i, w_=w_ + i)
                g += I("\n".join("v_pk_mul_f32 %s, %s, %s" % (V(240 + 2 * i, 2), V(240 + 2 * i, 2), V(248 + 2 * i, 2)) for i in range(4)))
                g += self.pack(x_, 240)
            g += J("s_mov_b32 s3, 0x3f803f80")
            g += I("\n".join("v_dot2_f32_bf16 v%d, v%d, s3, 0" % (232 + i, 216 + i) for i in range(4)))
            g += I("\n".join("v_dot2_f32_bf16 v%d, v%d, s3, v%d" % (232 + i, 220 + i, 232 + i) for i in range(4)))
        else:
            g += I("\n".join("v_dot2_f32_bf16 v%d, v%d, v%d, 0" % (232 + i, 216 + i, 224 + i) for i in range(4)))
            g += I("\n".join("v_dot2_f32_bf16 v%d, v%d, v%d, v%d" % (232 + i, 220 + i, 228 + i, 232 + i) for i in range(4)))
        g += I("v_lshlrev_b32 v236, 2, v236\nv_add_f32 v232, v232, v233\nv_add_f32 v234, v234, v235\nv_add_f32 v232, v232, v234")
        for sh in (1, 2, 4, 8):
            g += I("v_add_f32_dpp v232, v232, v232 row_shr:%d row_mask:0xf bank_mask:0xf bound_ctrl:1" % sh)
        g += I("v_add_f32_dpp v232, v232, v232 row_bcast:15 row_mask:0xa bank_mask:0xf")
        rnd = I("v_cvt_pk_bf16_f32 v232, 0, v232") if self.o("gr", 1) else []
        g += rnd + I("v_mul_f32 v232, 0xbfb8aa3b, v232\nv_exp_f32 v232, v232\nv_add_f32 v232, 1.0, v232\nv_rcp_f32 v232, v232") + (I("v_cvt_pk_bf16_f32 v232, 0, v232") if rnd else [])
        return single(g)
    def g_store_(self):
        return J("s_lshl_b32 {t0}, {gb}, 8\ns_add_u32 {t0}, {t0}, {g}\ns_mov_b32 exec_lo, 0x80000000\ns_mov_b32 exec_hi, 0x80000000", g=WS_G, gb=NM["b12" if self.o("gl", 1) else "bp"]) + \
               J("buffer_store_dword v232, v236, {SWS}, {t0} offen sc1", tag="gst") + I("s_mov_b64 exec, -1")
    def c_loads(self, acc=False):
        return chunks(J(self.creg(acc, """s_cmp_eq_u32 {bp}, 0
s_cselect_b32 {t1}, 32, 64
s_cselect_b64 {mask}, 0xffff, 0
s_and_b32 {t0}, {w}, 1
s_lshl_b32 {t0}, {t0}, 4
v_lshrrev_b32 v27, 2, v0
v_add_u32 v27, {t0}, v27
v_mul_u32_u24 v27, {t1}, v27
v_add_u32 v27, {bp}, v27
v_cmp_eq_u32 vcc, 0, v27
v_sub_u32 v28, 0x800, v27
v_mov_b32 v26, 0x400
s_cmp_lt_u32 {w}, 2
s_cselect_b64 {m1}, -1, 0
v_cndmask_b32 v28, v28, v26, vcc
v_cndmask_b32 v27, v28, v27, {m1}
v_mul_u32_u24 v27, 514, v27
v_and_b32 v28, 48, {l16b}
s_lshl_b32 {t2}, {jb}, 6
s_sub_u32 {t2}, {t2}, {sh}
v_add3_u32 v20, v28, v27, {t2}""")))
    def c_fetch(self, arr):
        l = self.lab("ev"); srd = (SWR, SWI)[arr]
        g = [J("s_cmp_eq_u32 {sh}, 0") + J("s_cbranch_scc1 {l}\nbuffer_load_dword v{d}, v20, {srd}, 0 offen offset:16\n{l}:", raw=True, l=l, d=40 + arr, srd=srd),
             J("buffer_load_dwordx4 {r}, v20, {srd}, 0 offen", tag="cld", r=V(32 + 4 * arr, 4), srd=srd)]
        if not self.ffn: g.append(J("buffer_load_ushort v{d}, v27, {srd}, 0 offen offset:512", tag="cld", d=42 + arr, srd=srd))
        return g
    def creg(self, acc, t): return t
    def c_stage(self):
        if self.cin:
            g = J("s_lshl_b32 {t2}, {w}, 10\ns_add_u32 {t2}, {t2}, {stg}\nv_add_u32 v28, {t2}, {l16b}\ns_mov_b32 {t2}, 0x05040100\ns_mov_b32 {t3}, 0x07060302\n@must cld", stg=self.cstg)
            for arr in range(2):
                s_ = 32 + 4 * arr; d_ = 24 if arr == 0 else 32
                g += flat([J("v_alignbyte_b32 v{a}, v{b}, v{a}, {sh}", a=s_ + i, b=s_ + i + 1 if i < 3 else 40 + arr) for i in range(4)])
                g += J("v_perm_b32 v{d0}, v{s1}, v{s0}, {t2}\nv_perm_b32 v{d1}, v{s3}, v{s2}, {t2}\nv_perm_b32 v{d2}, v{s1}, v{s0}, {t3}\nv_perm_b32 v{d3}, v{s3}, v{s2}, {t3}",
                       d0=d_, d1=d_ + 1, d2=d_ + 2, d3=d_ + 3, s0=s_, s1=s_ + 1, s2=s_ + 2, s3=s_ + 3)
                g += I("ds_write_b128 v28, %s offset:%d" % (V(d_, 4), arr * 4096), tag="rtab")
            return single(g)
        g = J("""s_mul_i32 {t0}, {w}, 1280
s_add_u32 {t0}, {t0}, {stg}
v_lshrrev_b32 v27, 2, v0
v_lshl_add_u32 v28, v27, 4, {l16b}
v_add_u32 v28, {t0}, v28
s_mov_b32 {t2}, 0x05040100
s_mov_b32 {t3}, 0x07060302
s_mov_b32 s96, 0x11111111
s_mov_b32 s97, 0x11111111
@wait cld""", stg=self.cstg)
        for arr in range(2):
            s_, d_ = 32 + 4 * arr, 192 + 4 * arr
            g += flat([J("v_alignbyte_b32 v{a}, v{b}, v{a}, {sh}", a=s_ + i, b=s_ + i + 1 if i < 3 else 40 + arr) for i in range(4)])
            g += J("v_perm_b32 v{d0}, v{s1}, v{s0}, {t2}\nv_perm_b32 v{d1}, v{s3}, v{s2}, {t2}\nv_perm_b32 v{d2}, v{s1}, v{s0}, {t3}\nv_perm_b32 v{d3}, v{s3}, v{s2}, {t3}",
                   d0=d_, d1=d_ + 1, d2=d_ + 2, d3=d_ + 3, s0=s_, s1=s_ + 1, s2=s_ + 2, s3=s_ + 3)
            g += I("ds_write_b128 v28, %s offset:%d" % (V(d_, 4), arr * 5120), tag="cst")
            if not self.ffn: g += J("v_and_or_b32 v{d}, v{d}, {hi16}, v{q}", d=d_, q=42 + arr)
        if self.ffn: return single([x for x in g if "0x11111111" not in x.text])
        return single(g) + [J("s_mov_b64 exec, {m1}") + I("ds_write_b64 v28, v[192:193] offset:64\nds_write_b64 v28, v[196:197] offset:5184", tag="cst") + I("s_mov_b64 exec, -1")]
    def c_calc(self):
        g = J("""s_or_b32 {t1}, {w}, {jb}
s_cselect_b32 {t1}, 4, 2
s_lshl_b32 {t0}, {w}, 4
v_and_b32 v26, 3, v0
v_cmp_eq_u32 vcc, {t1}, v26
v_and_b32 v28, 1, v0
v_lshl_add_u32 v28, v28, 3, {t0}
v_lshrrev_b32 v27, 2, v0
v_mul_u32_u24 v27, 80, v27
v_cndmask_b32 v28, v28, 64, vcc
s_mov_b32 {t0}, {stg}
v_add3_u32 v27, v27, v28, {t0}""", stg=self.cstg)
        rs = 80; tb = 192
        if self.cin:
            rs = 64; tb = 152
            g = J("s_lshl4_add_u32 {t0}, {w}, {stg}\nv_and_b32 v28, 1, v0\nv_lshl_add_u32 v28, v28, 3, {t0}\nv_lshrrev_b32 v27, 2, v0\nv_lshl_add_u32 v27, v27, 6, v28", stg=self.cstg)
        for th in range(2):
            for arr in range(2):
                for side in range(2):
                    g += I("ds_read_b64_tr_b16 %s, v27 offset:%d" % (V(tb + ((th * 2 + arr) * 2 + side) * 2, 2), (arr * 64 + side * 32 + th * 16) * rs), tag="crd")
        q = I("@wait crd")
        for th in range(2):
            for r in range(4):
                e = th * 4 + r
                t = tb + 16 + (e % 2) * 4
                for n, (arr, side) in enumerate([(0, 0), (0, 1), (1, 0), (1, 1)]):
                    src = tb + ((th * 2 + arr) * 2 + side) * 2 + r // 2
                    q += J("v_and_b32 v{d}, {hi16}, v{s}" if r & 1 else "v_lshlrev_b32 v{d}, 16, v{s}", d=t + n, s=src)
                a_, b_, c_, d_ = CO + e, CO + 8 + e, CO + 16 + e, CO + 24 + e
                q += I("v_add_f32 v%d, v%d, v%d\nv_add_f32 v%d, v%d, v%d\nv_sub_f32 v%d, v%d, v%d\nv_sub_f32 v%d, v%d, v%d" % (
                    a_, t, t + 1, b_, t + 2, t + 3, c_, t + 3, t + 2, d_, t, t + 1))
                if e == 0:
                    q += J("""v_cndmask_b32 v{a2}, v{a}, v{t1_}, {mask}
v_cndmask_b32 v{b2}, v{b}, v{t3_}, {mask}
v_cndmask_b32 v{a}, v{a}, v{t0_}, {mask}
v_cndmask_b32 v{b}, v{b}, v{t2_}, {mask}
v_cndmask_b32 v{c}, v{c}, 0, {mask}
v_cndmask_b32 v{d}, v{d}, 0, {mask}""", a2=CA2, b2=CB2, a=a_, b=b_, c=c_, d=d_, t0_=t, t1_=t + 1, t2_=t + 2, t3_=t + 3)
        return chunks(g), single(q)

    GATE_LD = "buffer_load_dword v16, v17, %s, 0 offen sc1" % SDBG
    POLL_LD = "buffer_load_dword v16, v17, %s, s82 offen sc1" % SWS
    def gate_ld(self):
        return single(J("v_min_u32 {pa}, {n}, v0\nv_lshlrev_b32 {pa}, 2, {pa}", n=NCLR - 1) + I(self.GATE_LD, tag="poll"))
    def x1_addr(self):
        return single(J("""s_lshr_b32 {t0}, {jb}, 2
s_lshl_b32 {t0}, {t0}, 8
s_lshl_b32 {t1}, {w}, 15
s_add_u32 {t0}, {t0}, {t1}
s_add_u32 {wo1}, {t0}, {fl}
v_lshrrev_b32 {pa}, 3, v0
v_lshlrev_b32 {pa}, 12, {pa}
v_bfe_u32 v28, v0, 2, 1
v_lshl_add_u32 {pa}, v28, 7, {pa}""", fl=WS_FLAG + 28 * 128))
    def rp_reads(self):
        return [J("v_add_u32 v19, {a}, {l16b}", a=LDS_RPF)] + \
               [I("ds_read_b128 %s, v19 offset:%d" % (A((224 if f < 8 else 160) + 4 * f, 4), f * 1024), tag="rp") for f in range(16)]
    def flag_addr(self):
        return J("s_lshl_b32 {wo0}, {b12}, 5\ns_add_u32 {wo0}, {wo0}, {ni}\ns_lshl_b32 {wo0}, {wo0}, 7\ns_add_u32 {wo0}, {wo0}, {fl}", fl=WS_FLAG)
    def set_flag(self):
        return I("v_mov_b32 v24, 1\n@wait pub\ns_mov_b64 exec, 1") + J("buffer_store_dword v24, v0, {SWS}, {wo0} offen sc1") + I("s_mov_b64 exec, -1")

    def prologue(self):
        p = []
        if self.prof: p += I("%s s[100:101]" % self.clk(), raw=True)
        p += J("""s_load_dwordx16 s[48:63], s[0:1], 0
s_cmp_ge_u32 s2, 256
s_cbranch_scc1 L_end
s_load_dwordx4 s[64:67], s[0:1], 64
s_load_dwordx2 s[68:69], s[0:1], 80
s_getpc_b64 {m1}
L_pc:
v_lshlrev_b32 v24, 3, v0
v_readfirstlane_b32 {w}, v0
s_lshr_b32 {loc}, s2, 3
v_lshl_add_u32 v24, {loc}, 11, v24
v_min_u32 v24, L_end-L_pc, v24
global_load_dword v31, v24, {m1}
v_and_b32 v0, 63, v0
v_and_b32 {l16}, 15, v0
v_lshrrev_b32 {hi}, 4, v0
s_lshr_b32 {w}, {w}, 6
s_and_b32 {xcd}, s2, 7
s_and_b32 {l3}, {loc}, 3
s_lshr_b32 {nt}, {loc}, 2
s_lshr_b32 {xn}, {xcd}, 1
s_lshl_b32 {bp}, {xcd}, 2
s_add_u32 {bp}, {bp}, {l3}
s_and_b32 {b12}, {bp}, 7
s_lshl_b32 {b12}, {b12}, 2
s_add_u32 {b12}, {b12}, {w}
s_lshl_b32 s76, {b12}, 10
v_lshrrev_b32 v25, 3, v0
v_and_b32 v24, 7, v0
v_xor_b32 v24, v24, {hi}
v_lshlrev_b32 v24, 4, v24
v_lshl_add_u32 {x}, v25, 15, v24
v_xor_b32 v18, 0x40040, {x}
v_subrev_u32 v18, 0x400, v18
s_lshl_b32 {ring}, {w}, 14
s_add_u32 {ring}, {ring}, 0x10000""")
        if "probe" in self.kw:
            k = self.kw["probe"]
            p += I("s_waitcnt lgkmcnt(0) vmcnt(0)\ns_mov_b64 s[44:45], s[%d:%d]\ns_mov_b32 s46, 0x100000\ns_mov_b32 s47, 0x20000" % (48 + 2 * k, 49 + 2 * k))
            p += J("s_lshl_b32 s3, s2, 2\ns_add_u32 s3, s3, {w}\ns_lshl_b32 s3, s3, 7\nv_mov_b32 v26, 0\ns_memrealtime s[96:97]\ns_waitcnt lgkmcnt(0)")
            if "pbw" in self.kw:
                p += I("s_mov_b32 s46, 0x10000000\ns_lshl_b32 s3, s3, 7\ns_add_u32 s3, s3, %d\nv_lshlrev_b32 v26, 4, v0" % (self.kw["pbw"] << 20))
                for i in range(16):
                    op = "buffer_store_dwordx4 v[128:131], v26, s[44:47], s3 offen sc1" if self.o("pst", 0) else "buffer_load_dwordx4 v[%d:%d], v26, s[44:47], s3 offen" % (128 + 4 * i, 131 + 4 * i)
                    p += I(op + "\ns_add_u32 s3, s3, 1024")
                p += I("s_waitcnt vmcnt(0)")
            else:
                for i in range(8): p += I("buffer_load_dword v27, v26, s[44:47], s3 offen\ns_waitcnt vmcnt(0)\ns_add_u32 s3, s3, 0x20000")
            p += I("s_memrealtime s[98:99]\ns_waitcnt lgkmcnt(0)\ns_sub_u32 s98, s98, s96\ns_add_u32 s100, s100, s98")
        p += self.srd_const(SX, 2097152 + 2048)
        p += J("s_cmp_eq_u32 {nt}, 7\ns_cbranch_scc1 L_dft")
        return p
    def common2(self):
        p = J("v_lshlrev_b32 {l16b}, 4, v0\ns_lshl_b32 {lw}, {loc}, 2\ns_add_u32 {lw}, {lw}, {w}\ns_mul_i32 s3, {xcd}, 112\ns_add_u32 {lw}, {lw}, s3\ns_lshl_b32 {lw}, {lw}, 11\ns_mov_b32 {hi16}, 0xffff0000\ns_add_u32 {jb}, {nt}, 1\ns_and_b32 {jb}, {jb}, 7\ns_and_b32 {sh}, {bp}, 1\ns_lshl_b32 {sh}, {sh}, 1")
        for nm, lo, sz in ((SWS, 68, 0x10000000), (SDBG, 66, 256), (SWD, 60, 1792 * 1024), (SOUT, 64, 2097152), (SWR, 50, 2048 * 514), (SWI, 52, 2048 * 514), (SGW, 62, 1024)):
            p += self.srd(nm, lo, sz) + self.srd_const(nm, sz)
        return p

    def p12f(self):
        self.ffn = True; self.cin = self.o("cin", 0); self.cstg = LDS_R64I if self.cin else LDS_RPF
        def kadv(du):
            kr = self.o("kr", 2)
            if kr == 4: return single(J("s_xor_b32 {k}, {k}, 1" if du & 1 else "s_xor_b32 {k}, {k}, 1\ns_add_u32 {k}, {k}, 2\ns_and_b32 {k}, {k}, 7"))
            if kr == 5: return single(J("s_xor_b32 {k}, {k}, %d" % (du ^ (du - 1))))
            return single(J("s_add_u32 {k}, {k}, 1\ns_and_b32 {k}, {k}, 7"))
        def wl(du):
            gs = []
            if du == 1: gs += kadv(du)
            gs += single(J("s_mul_i32 {wo0}, {k}, {c}\ns_add_u32 {wo0}, {wo0}, {wb}\ns_add_u32 {wo1}, {wo0}, {c2}", c=64 * 3584, c2=32 * 3584 - 2048))
            gs.append(J("s_add_u32 m0, {lw4}, {o}", o=(du % 4) * 16384))
            for h in range(2):
                for mat in range(2):
                    gs.append(J("buffer_load_dwordx4 {vw}, {srd}, {so} offen offset:{o} lds", tag="w%d" % du, srd=(SWG, SWU)[mat], so=NM["wo%d" % h], o=(2 * h + mat) * 1024))
            return gs
        def xl(du):
            gs = []
            if du >= 2: gs += kadv(du)
            gs += single(J("v_lshl_add_u32 {xr}, {k}, 7, {x}\nv_lshl_add_u32 {xr2}, {k}, 7, v18"))
            for m in range(4):
                if m % 2 == 0: gs.append(J("s_add_u32 m0, {ring}, {o}", o=(du % 2) * 8192 + m * 2048))
                for e in range(2):
                    g = J("buffer_load_dwordx4 {r}, {SX}, s{so} offen offset:{o} lds", tag="x%d" % du, r=NM[("xr", "xr2")[e]], so=76 + m, o=((m & 1) * 2 + e) * 1024)
                    if du >= 2 and m == 0 and e == 0: g = I("@need xf%d" % (du - 2)) + g
                    gs.append(g)
            return gs
        def xf(du):
            return [I("@wait x%d" % du)] + [I("ds_read_b128 %s, v%d offset:%d" % (A((du % 4) * 32 + h * 16 + m * 4, 4), vXA[h], (du % 2) * 8192 + m * 2048), tag="xf%d" % du)
                                           for h in range(2) for m in range(4)]
        p = J("""s_and_b32 {t0}, {nt}, {mp}
s_lshl_b32 {t0}, {t0}, 19
s_add_u32 s76, s76, {t0}
s_xor_b32 s77, s76, 0x80000
s_xor_b32 s79, s76, 0x180000
s_xor_b32 s78, s76, 0x100000
s_add_u32 s76, s76, 0x800
s_add_u32 s78, s78, 0x800
s_lshl_b32 {k}, {xcd}, 2
s_add_u32 {k}, {k}, {xcd}
s_and_b32 {k}, {k}, {km}
s_mul_i32 {ni}, {xn}, 7
s_add_u32 {ni}, {ni}, {nt}
s_mul_i32 {wb}, {w}, {c}
s_lshl_b32 {t0}, {ni}, 7
s_add_u32 {wb}, {wb}, {t0}
v_mul_u32_u24 v24, 3584, v25
s_and_b32 {t0}, {w}, 1
s_lshl_b32 {t0}, {t0}, 1
v_and_or_b32 v25, {hi}, 1, {t0}
v_bfe_u32 v26, v0, 1, 2
v_xor_b32 v25, v25, v26
v_lshl_add_u32 v24, v25, 5, v24
v_and_b32 v25, 1, v0
v_lshl_add_u32 {vw}, v25, 4, v24
s_lshl_b32 {lw4}, {w}, 12""", c=8 * 3584, mp=self.o("mp", 3), km=self.o("km", 6))
        kr = self.o("kr", 2)
        if kr == 4: p += J("s_lshr_b32 {t0}, {nt}, {sh}\ns_xor_b32 {t0}, {l3}, {t0}\ns_and_b32 {t0}, {t0}, 1\ns_add_u32 {k}, {k}, {t0}", sh=self.o("ksh", 2))
        if kr == 5: p += J("s_add_u32 {t0}, {l3}, {nt}\ns_and_b32 {t0}, {t0}, 3\ns_add_u32 {k}, {xcd}, {xn}\ns_and_b32 {k}, {k}, 1\ns_lshl2_add_u32 {k}, {k}, {t0}")
        if kr == 1: p += J("s_lshl_b32 {k}, {l3}, 1\ns_add_u32 {k}, {k}, {nt}\ns_and_b32 {k}, {k}, 7")
        if kr == 2: p += J("s_xor_b32 {t0}, {l3}, {nt}\ns_and_b32 {t0}, {t0}, 1\ns_lshl_b32 {t0}, {t0}, 2\ns_lshl_b32 {k}, {xcd}, 1\ns_add_u32 {k}, {k}, {xn}\ns_and_b32 {k}, {k}, 3\ns_add_u32 {k}, {k}, {t0}")
        if kr == 3: p += J("s_add_u32 {t0}, {l3}, {nt}\ns_and_b32 {t0}, {t0}, 3\ns_lshl_b32 {t0}, {t0}, 1\ns_add_u32 {k}, {xcd}, {xn}\ns_and_b32 {k}, {k}, 1\ns_add_u32 {k}, {k}, {t0}")
        p += self.srd_const(SWG, 512 * 3584) + self.srd_const(SWU, 512 * 3584 + 1024)
        w0 = wl(0); x0 = xl(0)
        p += flat(w0[:4] + x0[:2]) + self.srd(SWG, 56, 0) + self.srd(SWU, 58, 0, back=1024) + self.srd(SX, 48, 0, back=2048)
        p += flat(w0[4:]) + flat(x0[2:])
        p += self.common2()
        p += self.stamp(0)
        l = self.lab("noclr")
        p += J("s_sub_u32 s3, s2, 128\ns_cmp_lt_u32 s3, {n}\ns_cselect_b32 {clr}, {w}, 4", n=NCLR) + I("\n".join("v_accvgpr_write_b32 a%d, 0" % (180 + i) for i in range(4)))
        clear = J("s_cmp_eq_u32 {clr}, 4") + J("""s_cbranch_scc1 {l}
s_lshl2_add_u32 s3, s2, {w}
s_lshl_b32 s3, s3, 10
s_add_u32 s3, s3, {fl}
buffer_store_dwordx4 a[180:183], {l16b}, {SWS}, s3 offen sc1
{l}:""", raw=True, l=l, fl=WS_FLAG - 128 * 4096)
        st = [J("""v_lshrrev_b32 v24, 1, {l16}
v_xor_b32 v24, v24, {hi}
v_lshlrev_b32 v24, 4, v24
v_lshl_add_u32 v24, {l16}, 7, v24
v_add_u32 v22, {ring}, v24
v_xor_b32 v23, 64, v22
v_lshlrev_b32 v24, 12, {hi}
v_bfe_u32 v25, v0, 2, 2
v_lshl_add_u32 v24, v25, 7, v24
v_and_b32 v25, 3, v0
v_lshl_add_u32 v24, v25, 3, v24
v_bfe_u32 v25, v0, 3, 2
v_lshl_add_u32 v6, v25, 5, v24
v_xor_b32 v7, 32, v6
v_xor_b32 v8, 64, v6
v_xor_b32 v9, 0x60, v6""")]
        cl, gl = self.c_loads() + self.c_fetch(0) + self.c_fetch(1), self.g_loads()
        cpos = self.o("cpos", 2)
        gwt = [J("buffer_load_dword a171, {l16b}, {SGW}, 0 offen")]
        rip = self.rip = self.o("rip", 1) and self.o("x1late", 0)
        st = single(st) + cl[:-4] + self.gen_R(0, 128) + ([] if rip else self.gen_R(1, 160)) + (self.gen_R(2, 192) if self.o("r2p", 0) == 1 else [])
        l1 = wl(1) + xl(1); n1 = self.o("n1", 15) - (self.o("kr", 2) >= 4)
        p += flat(weave(st, l1[:n1], self.o("l1pos", 60 if rip else 130), len(st)))
        p += I("@wait w0 x0\ns_barrier")
        p += self.stamp(1)
        units = {0: "E0 L0 E1 L1 E2 L2 E3 E4 L3 E5 E6 L4 E7 L5 L6 L7", 1: "E0 L0 E1 L1 E2 L2 E3 L3 E4 E5 L4 E6 E7 L5 L6 L7",
                 2: "E0 L0 E1 L1 E2 L2 E3 L3 E4 E5 L4 E6 L5 E7 L6 L7", 3: "E0 L0 E1 L1 E2 L2 E3 L3 E4 L4 E5 L5 E6 E7 L6 L7"}[self.o("us", 1)].split()
        seq = [(2 * int(u[1]) + h, tau + (4 if u[0] == "L" else 0)) for u in units for h in range(2) for tau in range(4)]
        U = dict((u, 32 * i) for i, u in enumerate(units))
        LA = 5
        nm = self.o("nm", 0); km = 128 - 8 * nm
        home = list(range(0, 32, 4)) + list(range(176, 192, 4)) + [128 + 4 * i for i in range(4)]
        fr = lambda k: 128 + 4 * (k % 8) if k < km else home[k - km]
        def rd(k):
            n, tau = seq[k]
            off = ((n // 2) % 4) * 16384 + ((n & 1) * 2 + (tau & 1)) * 1024
            return [I("ds_read_b64_tr_b16 %s, v%d offset:%d" % (A(fr(k) + 2 * j4, 2), vWT[tau // 2], off + 512 * j4), tag="f%d" % k) for j4 in range(2)]
        x0 = xf(0)
        p += flat(rd(0) + x0[:5] + rd(1) + rd(2) + x0[5:] + rd(3) + rd(4))
        mf = []
        for k, m in [(k, m) for k in range(km) for m in range(4)] + [(k, m) for m in range(4) for k in range(km, 128)]:
                n, tau = seq[k]
                acc = V(128 + (tau * 4 + m) * 4, 4)
                mf.append(I("%s %s, %s, %s, %s" % (MF, acc, A(fr(k), 4), A(((n // 2) % 4) * 32 + (n & 1) * 16 + m * 4, 4), acc if n else "0")))
        G = Gaps(mf)
        for k in range(128):
            if k + LA < km:
                r = rd(k + LA); G.put(4 * k, r[0]); G.put(4 * k + 2, r[1])
            if k % 2 == 1 and k + 1 < km: G.put(4 * k + 3, I("@wait f%d" % (k + 2)))
        if nm:
            assert self.o("nin", 1) <= 1 and self.o("tep", 2) == 2
            n_a = min(8 * nm, 12)
            G.stream([g for k in range(km, km + n_a) for g in rd(k)], 4 * km - (30 if nm == 1 else 58), 4 * km - (5 if nm == 1 else 14))
            if nm == 2: G.stream([g for k in range(km + 12, 128) for g in rd(k)], 4 * km - 13, 4 * km - 2, spread=False)
            G.put(4 * km - 1, I("@must f%d" % (km + n_a - 1)))
            if nm == 2: G.put(4 * km + 10, I("@must f127"))
        bar = {}
        for du in range(1, 8):
            bar[du] = U["E%d" % du] - 4 * LA - 1
            G.put(bar[du], I("@wait w%d rtab\ns_barrier" % du))
        lead = G.stream(l1[n1:], 0, 12, spread=False) if l1[n1:] else 0
        aa = [[0, 52, 104, 156, 208, 260], [0, 60, 118, 172, 224, 276], [0, 64, 124, 180, 234, 288], [0, 64, 128, 192, 250, 306], [0, 64, 128, 192, 256, 320], [0, 46, 110, 172, 230, 286], [0, 46, 104, 164, 222, 278]][self.o("aa", 2)]
        aa = dict(zip(range(2, 10), aa + [aa[-1] + 54, aa[-1] + 108]))
        xfe = {}; xfs = {}; span = {}
        for du in range(1, 8):
            e = min(aa[du + 2], U["E%d" % du]) - 2
            assert du < 4 or e - 18 >= U["L%d" % (du - 4)] + 32
            xfe[du] = G.stream(xf(du), e - 18, e); xfs[du] = e - 18
        last = lead
        for du in range(2, 8):
            a0 = max(aa[du], last + 1)
            last = G.stream(([clear] if du == self.o("clrdu", 2) else []) + xl(du), a0, a0 + (self.o("xs", 16) if self.o("xs0", 3) <= du <= self.o("xsd", 4) else 36))
            w0_ = last + 1
            if du >= 4: w0_ = max(w0_, min(b for b in bar.values() if b >= U["L%d" % (du - 4)] + 32) + 1)
            tr_ = {self.o("tdu", 4): [0]}.get(du, [])
            cd = self.o("cdu", 2)
            ex = [] if cpos != 2 else cl[-4:-2] + gwt if du == cd else cl[-2:] if du == cd + 1 else []
            if cpos == 3 and du == cd: ex = cl[-4:] + gwt
            last = G.stream(wl(du) + ex + [g for r in tr_ for g in self.touch(r)] + (self.touch3() if du == self.o("t3du", 6) else []) + (self.keep(du) if du == self.o("ka", 9) else []) + (self.retouch() if du == 7 else []) + (self.pretouch(178, 28) if du == self.o("ptd", 2) else []), w0_, w0_ + (self.o("wsp", 10) if self.o("xs0", 3) <= du <= self.o("xsd", 4) else 16) + 4 * len(tr_))
            assert last < bar[du] - 4, (du, last, bar[du])
            span[du] = (a0 if du > 2 else 0, last)
        vend = last
        l = self.lab("noann")
        ann = J("s_cmp_lg_u32 {clr}, 0") + J("""s_cbranch_scc1 {l}
v_mov_b32 v27, 1
s_lshl_b32 s3, s2, 2
s_sub_u32 s3, s3, 512
s_mov_b64 exec, 1
buffer_store_dword v27, v0, {SDBG}, s3 offen sc1
s_mov_b64 exec, -1
{l}:""", raw=True, l=l)
        G.put(bar[self.o("clrdu", 2)] + 2, ann)
        G.stream(self.rp_reads()[:9 if rip else 17], 130, 230)
        e0 = U["E7"] + 32
        e = G.stream(self.gate_ld() + (cl[-4:] if cpos == 0 else []), vend + 1, vend + 12)
        e1 = vend
        d0 = max(e, e1, xfe[6] + 4, vend + self.o("d0gap", 10))
        e = G.stream(self.D(0, I("@need xf6")) + self.D(1), d0, d0 + 32)
        d2 = max(e + 1, xfe[7] + 4)
        e = G.stream(self.D(2, I("@need xf7")) + self.D(3), d2, d2 + 32)
        G.stream(single(J("s_and_b32 {t0}, {nt}, {mp}\ns_lshl2_add_u32 {t2}, {b12}, {t0}\ns_lshl_b32 {t2}, {t2}, 5\ns_add_u32 {t2}, {t2}, {ni}\ns_lshl_b32 {t2}, {t2}, 11", mp=self.o("mp", 3)) + self.flag_addr()) + self.setupA() +
                 [I("@wait poll") + self.spin(self.GATE_LD)] + self.x1_addr(), e1 + 1, min(e0, self.o("xp", 492) + 30))
        late1 = self.o("x1late", 0)
        if not late1:
            G.put(self.o("xp", 492), I(self.POLL_LD, tag="poll"))
            xc = self.o("xc", 0)
            G.stream(single(self.x1_pre()[:-1]), (xc or 511) - 36, (xc or 511) - 1)
            if xc: G.put(xc, I("@wait poll") + self.x1_pre()[-1:] + self.x1_fetch())
        nin = self.o("nin", 1)
        t0_ = max(e + 1, U["L4"] + 32 if nin > 2 else 0, d0 + self.o("t0gap", 70))
        t0_ = min(t0_, 470)
        G.stream(self.TT(0, nin) + self.DD(4, 4 + nin), t0_, min(506, (self.o("xc", 0) or 999) - 2, self.o("tend", 440)))
        gs_ = 18 - self.o("gsplit", 5)
        bulk = self.o("bulk", 0)
        if bulk:
            gs_ = 18; gp = self.gen_G(42, True); b1 = self.o("b1", 6); bo = self.o("bo", 2)
            stall = lambda du: min(bar[du], xfs[du]) - bo
            G.put(stall(1), flat(gp[:b1])); G.put(stall(2), flat(gp[b1:]))
            if self.o("r2p", 0) == 2: G.put(stall(3), flat(self.gen_R(2, 42)))
            G.stream(chunks(self.wd_setup()), 200, vend)
        elif self.o("fs", 0):
            q = (self.gen_R(2, 42) if self.o("r2p", 0) == 2 else []) + chunks(self.wd_setup()) + chunks(self.gen_G(42, False)[:gs_])
            e = 0
            for du, n in ((2, self.o("fs", 0)), (3, self.o("fs3", 0))):
                a_, b_ = span[du]
                for k, g in enumerate(q[:n]): G.put(a_ + k * (b_ - a_) // n, g)
                q = q[n:]
                if du == 2: m_ = self.o("fm", 20); G.stream(q[:m_], b_, span[3][0], spread=False); q = q[m_:]
            n4 = self.o("fs4", 0)
            if n4 or self.cin:
                m_ = self.o("fm", 20); G.stream(q[:m_], span[3][1], span[4][0], spread=False); q = q[m_:]
                q4 = q[:n4] + (self.c_stage() if self.cin else []); q = q[n4:]; a_, b_ = span[4]
                for k, g in enumerate(q4): G.put(a_ + k * (b_ - a_) // len(q4), g)
                if q: G.stream(q, self.o("gls", b_), e0, spread=False)
            else: G.stream(q, span[3][1] if self.o("fs3", 0) else span[3][0], e0, spread=False)
        elif self.o("ge", 0):
            ge = self.o("ge", 0); gn = self.gen_G(42, False)
            G.stream(chunks(self.wd_setup()) + chunks(gn[:ge]), 4, self.o("gee", 128), spread=False)
            if gs_ > ge: G.stream(chunks(gn[ge:gs_]), self.o("gls", 340), 500, spread=False)
        else:
            if self.cin: G.stream(self.c_stage(), self.o("cs", 200), self.o("cs", 200) + 30)
            G.stream(chunks(self.wd_setup()) + chunks(self.gen_G(42, False)[:gs_]), 4, self.o("gend", e0), spread=False)
        def epi(u, m, pk):
            g0, u0, g1_, u1 = [128 + ((4 * u + k) * 4 + m) * 4 for k in range(4)]
            g = []
            for gg in (g0, g1_): g += I("\n".join("v_max_f32 v%d, 0, v%d" % (gg + r, gg + r) for r in range(4)))
            for gg, uu in ((g0, u0), (g1_, u1)):
                if pk: g += I("v_pk_mul_f32 %s, %s, %s\nv_pk_mul_f32 %s, %s, %s" % (V(gg, 2), V(gg, 2), V(uu, 2), V(gg + 2, 2), V(gg + 2, 2), V(uu + 2, 2)))
                else: g += I("\n".join("v_mul_f32 v%d, v%d, v%d" % (gg + r, gg + r, uu + r) for r in range(4)))
            g += cvt(u0, g0, g0 + 1) + cvt(u0 + 1, g0 + 2, g0 + 3) + cvt(u0 + 2, g1_, g1_ + 1) + cvt(u0 + 3, g1_ + 2, g1_ + 3)
            return J("s_xor_b32 {t3}, {t2}, {o}", o=u * 1024 + m * 65536) + g + J("buffer_store_dwordx4 {r}, {l16b}, {SWS}, {t3} offen sc1", tag="pub" if u else "pue", r=V(u0, 4))
        e_ = G.stream(single([epi(0, m, False) for m in range(4)]), e0 + 2, min(4 * km + 8 * nm, e0 + self.o("espan", 56)))
        for m in range(3 if nm else 0):
            a_ = 4 * km + 8 * nm * (m + 1) + 1
            G.stream(single(epi(1, m, False)), max(a_, e_ + 1), a_ + 8 * nm - (1 if m == 2 else 0), spread=False)
        if self.ef:
            l = self.lab("noe")
            self.eflag = (I("@must pue") + J("s_barrier\ns_cmp_lg_u32 {w}, 0") + J("""s_cbranch_scc1 {l}
s_lshl3_add_u32 s3, {b12}, {ni}
s_lshl_b32 s3, s3, 7
s_add_u32 s3, s3, {ef}
v_mov_b32 v24, 1
s_mov_b64 exec, 1
buffer_store_dword v24, v0, {SWS}, s3 offen sc1
s_mov_b64 exec, -1
{l}:""", raw=True, l=l, ef=WS_EF))
            if self.o("efp", 509) < 512: G.put(self.o("efp", 509), self.eflag)
        for i in range(8): G.put(64 * i, self.stamp(i, 1))
        G.put(480, self.stamp(8, 1)); G.put(511, self.stamp(9, 1))
        p += I("; ---- phase 2 main loop") + G.out() + I("; ---- late half of h, phase 3")
        p += self.stamp(2)
        ep = [epi(1, m, True) for m in range(3 if nm else 0, 4)]
        if self.o("strip", 0) & 32768: ep = ep[:2]
        mid = self.o("mid", 1)
        if not late1 and not self.o("xc", 0): ep.insert(min(mid, len(ep)) if not nm else (mid == 4), self.x1_pre()[-1:] + self.x1_fetch())
        if self.ef and self.o("efp", 509) >= 512: ep.insert(self.o("efp", 509) - 512, self.eflag)
        tpos = self.o("tep", 2); tt = self.TT(nin, 4) if tpos == 0 else []
        if self.cin: ep.append(flat(self.c_calc()[0]))
        p += flat(weave([[]] + ep, tt) if mid else weave(ep, tt))
        if late1: p += I(self.POLL_LD, tag="poll")
        elif self.ef: p += self.eadr() + (I(self.POLL_LD, tag="poll") if not self.o("epl", 0) else [])
        p += self.stamp(3) + self.stamp(0, 3)
        n1_ = min(8, 4 + nin + self.o("nw1", 0))
        p += ([] if self.cin else flat(self.c_stage())) + self.stamp(1, 3) + flat(weave(self.gen_G(42, True)[gs_:] + gl, self.DD(4 + nin, n1_)))
        if tpos == 1: p += flat(self.TT(nin, 4))
        return p + self.tail(True, nin if tpos == 2 else 4, n1_)

    def p12d(self):
        self.ffn = False; self.cstg = LDS_RPF; self.rip = 0; self.cin = 0
        def dma(s_):
            Q, m = divmod(s_, 4)
            gs = [J("s_add_u32 m0, {ring}, {o}", o=m * 4096)]
            if m == 0:
                gs = single(J("v_lshl_add_u32 {xr}, {k}, 7, {x}\nv_lshl_add_u32 {xr2}, {k}, 7, {vw}")) + gs
                if Q: gs = single(J("s_add_u32 {k}, {k}, 1\ns_and_b32 {k}, {k}, 3")) + gs
            for hf in range(2):
                for e in range(2):
                    g = J("buffer_load_dwordx4 {r}, {srd}, s{so} offen offset:{o} lds", tag="x_%d" % s_, r=NM[("xr", "xr2")[e]], srd=(SX, SWG)[hf], so=76 + m, o=(2 * hf + e) * 1024)
                    if Q and not hf and not e: g = I("@need xf_%d" % (s_ - 4)) + g
                    gs.append(g)
            return gs
        def raw(s_):
            return [I("@must x_%d" % s_)] + [I("ds_read_b128 %s, v%d offset:%d" % (A(16 * (s_ % 2) + 4 * f, 4), vWT[f], (s_ % 4) * 4096), tag="xf_%d" % s_) for f in range(4)]
        def fold(s_):
            return [I("%s %s, v[20:23], %s, 0" % (MF, V(48 + 4 * f, 4), A(16 * (s_ % 2) + 4 * f, 4))) for f in range(4)]
        def fcv(s_):
            return [cvt(32 + (s_ % 2) * 8 + q, 48 + 2 * q, 49 + 2 * q) for q in range(8)]
        def trd(Q):
            return [I("ds_read_b128 %s, %s offset:%d" % (A(64 + 64 * (Q % 2) + 4 * f, 4), NM["l16b"], Q * 16384 + f * 1024), tag="tq%d" % Q) for f in range(16)]
        p = I("@reset") + J("""s_add_u32 s76, s76, 0x800
s_add_u32 s77, s76, 0x80000
s_add_u32 s78, s76, 0x100000
s_add_u32 s79, s76, 0x180000
s_add_u32 {ni}, {xn}, 28
s_and_b32 {k}, {xcd}, {km}
s_mov_b32 {wb}, {k}
v_mov_b32 {vw}, v18
v_lshlrev_b32 {l16b}, 4, v0""", km=self.o("km", 6) & 2)
        tg, sel, late = self.gen_T()
        cl = self.c_loads(True)
        npk = self.o("npk", 0)
        p += self.srd_const(SWG, 2097152 + 3584) + flat(tg[:npk]) + I("s_waitcnt lgkmcnt(0)") + self.srd(SX, 48, 0, back=2048) + self.srd(SWG, 48, 0, back=3584)
        p += flat([dma(m) for m in range(3)])
        ntp = self.o("ntp", 8); tl = tg[1 + 2 * ntp:]; tg = tg[npk:1 + 2 * ntp]
        place(tg, len(tg) - self.o("d3", 1), dma(3))
        if self.o("pm", 0) == 4:
            p += self.common2()
            for i, k in enumerate((0, 1, 2, 3, 4, 5, 6, 7, 8)): place(tg, k, self.stamp(i, 4))
        p += flat(tg) + sel + (self.common2() if self.o("pm", 0) != 4 else []) + self.stamp(0) + self.stamp(9, 4)
        p += I("@waitlg0\ns_barrier") + self.stamp(1)
        t0_ = trd(0)
        p += flat(t0_[:8] + raw(0) + t0_[8:] + fold(0) + dma(4) + raw(1) + fcv(0))
        def mm(s_, h, tau):
            Q, m = divmod(s_, 4); acc = V(128 + (tau * 4 + m) * 4, 4)
            return I("%s %s, %s, %s, %s" % (MF, acc, V(32 + (s_ % 2) * 8 + 4 * h, 4), A(64 + 64 * (Q % 2) + (h * 8 + tau) * 4, 4), acc if Q or h else "0"))
        mf = []; at = {}
        for s_ in range(15):
            at[s_] = len(mf); mf += [mm(s_, 0, tau) for tau in range(6)]
            at["fold", s_ + 1] = len(mf); mf += fold(s_ + 1) + [mm(s_, 0, tau) for tau in (6, 7)] + [mm(s_, 1, tau) for tau in range(8)]
        at[15] = len(mf); mf += [mm(15, h, 4 * g + t) for g in range(2) for h in range(2) for t in range(4)]
        def s2(t):
            return [I("%s %s, %s, %s, %s" % (MF, V(128 + 16 * t + 4 * sg, 4), V(64 + 8 * t + 4 * v, 4), A(224 + (2 * sg + v) * 4, 4), V(128 + 16 * t + 4 * sg, 4) if v else "0"))
                    for v in range(2) for sg in range(4)]
        for t in range(8):
            at["s2", t] = len(mf); mf += s2(t)
        G = Gaps(mf)
        for s_ in range(1, 16):
            f = at["fold", s_]
            if s_ > 1: G.stream(raw(s_), f - self.o("rawa", 11), f - 4, spread=False)
            G.put(f - 1, I("@wait xf_%d" % s_))
            G.stream(fcv(s_), f + 6, f + 12, spread=False)
            if s_ + 4 < 16: G.stream(dma(s_ + 4) + (self.pretouch(46, 12) if s_ == 2 else []), f, f + 8)
        for Q in range(1, 4):
            G.stream(trd(Q), at[4 * Q - 4] + 2, at[4 * Q] - 8); G.put(at[4 * Q] - 1, I("@wait tq%d" % Q))
        G.stream(single(J("s_mul_i32 {wb}, {wb}, 0x40004000") + flat([J("v_xor_b32 v{r}, {wb}, v{r}", r=20 + i) for i in range(4)])), at["fold", 7] + 4, at["fold", 8] - 2, spread=False)
        for Q in range(ntp // 2, 4):
            G.stream(single(tl[4 * Q - 2 * ntp:4 * Q - 2 * ntp + 4]), at[4 * Q - 8] + 1, at[4 * Q - 4] - 6)
            G.put(at[4 * Q - 4] + 1, I("@must ttab%d\ns_barrier" % Q))
        e = G.stream((cl[:-4] if self.o("dcs", 16) < 16 else []) + single(late), 2 if ntp == 8 else at[8], at[12] + 6)
        rr = [I("@wait r64f\ns_barrier"), J("v_add_u32 v24, {a}, {l16b}", a=LDS_STG)] + [I("ds_read_b128 %s, v24 offset:%d" % (A(224 + 4 * f, 4), f * 1024)) for f in range(8)]
        G.stream(rr, e + 6, at[15])
        pre = J("""v_lshrrev_b32 v26, 2, {l16}
v_lshlrev_b32 v26, 17, v26
v_lshl_add_u32 v26, {hi}, 6, v26
v_and_b32 v25, 3, v0
v_lshl_add_u32 {xr}, v25, 4, v26
s_lshr_b32 s76, {xn}, 1
s_lshl_b32 s76, s76, 7
s_add_u32 s76, s76, {b12}
s_and_b32 {t0}, {xn}, 1
s_lshl1_add_u32 s76, s76, {t0}
s_lshl_b32 s76, s76, 8
s_add_u32 s76, s76, {x1}
s_add_u32 s77, s76, 0x80000
s_add_u32 s78, s76, 0x100000
s_add_u32 s79, s76, 0x180000""", x1=WS_X1) + self.flag_addr()
        G.stream(single(pre), e + 1, at[15])
        G.stream(self.gate_ld(), at["s2", 0] + 8, at["s2", 2])
        def cv(t, m): return [cvt(64 + 8 * t + 2 * m + i, 128 + 16 * t + 4 * m + 2 * i, 129 + 16 * t + 4 * m + 2 * i) for i in range(2)]
        for m in range(3):
            G.stream([g for t in range(8) for g in cv(t, m)], at[13 + m] + 1, at[13 + m] + (19 if m < 2 else 11), spread=False)
        G.stream([g for t in range(4) for g in cv(t, 3)], at[15] + 10, at["s2", 0] + 2, spread=False)
        G.stream([g for t in range(4, 8) for g in cv(t, 3)], at["s2", 0] + 3, at["s2", 2], spread=False)
        def st(tp):
            gs = []
            for sg in range(4):
                o = 32 + 16 * (tp % 2) + 4 * sg; d0 = 128 + 32 * tp + 4 * sg; d1 = d0 + 16
                gs += [cvt(o, d0, d0 + 1), cvt(o + 1, d0 + 2, d0 + 3), cvt(o + 2, d1, d1 + 1), cvt(o + 3, d1 + 2, d1 + 3),
                       J("buffer_store_dwordx4 {r}, {xr}, {SWS}, s{so} offen sc1", tag="pub", r=V(o, 4), so=76 + sg)]
                if tp < 3: gs.append(I("s_add_u32 s%d, s%d, 16384" % (76 + sg, 76 + sg)))
            return gs
        for tp in range(3):
            G.stream(st(tp), at["s2", 2 * tp + 2] + 1, at["s2", 2 * tp + 2] + 16, spread=False)
        for i in range(10): G.put(min(40 * i, len(G) - 1), self.stamp(i, 1))
        p += I("; ---- phase 1 main loop") + G.out() + I("; ---- tables, phase 3")
        p += self.stamp(2)
        p += flat(st(3))
        p += self.stamp(3)
        p += self.spin(self.GATE_LD)
        p += self.wd_setup() + flat(self.gen_R(0, 128))
        p += self.set_flag()
        p += self.stamp(4)
        if self.o("dcs", 16) < 16: p += I("\n".join("v_accvgpr_read_b32 v%d, a%d" % (32 + i, 32 + i) for i in range(10)))
        else: p += flat(self.c_loads() + self.c_fetch(0) + self.c_fetch(1))
        p += flat(self.gen_R(1, 160))
        p += I("@waitlg0\ns_barrier")
        nd = self.o("dnd", 2)
        p += flat(weave(self.rp_reads() + self.x1_addr() + self.setupA(), self.DD(0, nd)))
        p += I("@wait rp\ns_barrier")
        p += flat(self.g_loads() + self.c_stage())
        p += I(self.POLL_LD, tag="poll")
        return p + self.tail(False, 0, nd)

    def touch(self, r):
        if r >= self.o("touch", 1): return []
        gs = [I("v_lshlrev_b32 v17, 5, v0")] if r == 0 else [J("s_add_u32 {lw}, {lw}, 0x38000"), J("s_sub_u32 s3, {lw}, 0x1c0000\ns_cselect_b32 {lw}, {lw}, s3")]
        return gs + [J("buffer_load_dword a{d}, v17, {SWD}, {lw} offen", d=160 + r)]
    def touch3(self):
        if not self.o("touch3", 1): return []
        return [J("s_lshr_b32 s3, s2, 3\ns_lshl2_add_u32 s3, s3, {w}\ns_lshl_b32 s3, s3, 14"), J("v_and_b32 v28, 60, v0"), J("v_lshlrev_b32 v28, 8, v28"),
                J("buffer_load_dword a172, v28, {SWD}, s3 offen offset:384")]
    def pretouch(self, d, r):
        pt = self.o("pt", 0); gs = []
        if pt & 1: gs += single(J("v_lshrrev_b32 v{r}, {a}, v0\nv_lshlrev_b32 v{r}, {b}, v{r}\ns_mov_b32 s3, 0x10f000\nbuffer_load_dword a{d}, v{r}, {SWS}, s3 offen", r=r, d=d, a=self.o("pta", 3), b=18 + self.o("pta", 3)))
        if pt & 4:
            g = self.o("ptg", 16); n = (17 << 20 >> g) // 128
            gs += single(J("v_min_u32 v{r}, {n}, v0\nv_lshlrev_b32 v{r}, {b}, v{r}\ns_lshr_b32 s3, s2, 3\ns_lshl2_add_u32 s3, s3, {w}\ns_lshl_b32 s3, s3, {g}\nbuffer_load_dword a{d}, v{r}, {SWS}, s3 offen offset:3968", r=r, d=d, n=n, b=g + 7, g=g))
        if pt & 2: gs += single(J("v_lshlrev_b32 v{r}, 19, {hi}\nbuffer_load_dword a{d}, v{r}, {SOUT}, 0 offen", r=r, d=d + 1))
        return gs
    def keep(self, du):
        sh = self.o("ksz", 5)
        if self.o("ksrc", 0) == 2: return [I("s_sleep %d" % sh)]
        if self.o("ksrc", 0) == 0:
            return single(J("s_lshl2_add_u32 s3, s2, {w}\ns_lshl_b32 s3, s3, {a}\ns_add_u32 s3, s3, {o}\nv_lshlrev_b32 v28, {b}, v0\nbuffer_load_dword a184, v28, {SWS}, s3 offen", o=32 << 20, a=sh + 6, b=sh))
        return chunks(J("s_lshr_b32 s3, s2, 3\ns_lshl2_add_u32 s3, s3, {w}\ns_lshl_b32 s3, s3, 13\nv_lshlrev_b32 v28, {b}, v0\nv_add_u32 v28, s3, v28\ns_and_b32 s3, {bp}, {m}\ns_cselect_b32 s3, 0xe0000, 0\nbuffer_load_dword a184, v28, {SWD}, s3 offen", b=sh, m=self.pair))
    def retouch(self):
        if not self.o("retouch", 1): return []
        l = self.lab("pc")
        return [J("s_getpc_b64 {m2}\n{l}:\ns_lshr_b32 s3, s2, 3\ns_lshl_b32 s3, s3, 2", l=l)] + single(J("""s_add_u32 s3, s3, {w}
s_lshl_b32 s3, s3, 9
v_lshl_add_u32 v28, v0, 3, s3
v_min_u32 v28, L_end-{l}, v28
global_load_dword a170, v28, {m2}""", l=l))

    def x1_pre(self):
        return J("""s_lshr_b32 {t0}, {bp}, 1
s_lshl3_add_u32 {t0}, {t0}, {jb}
s_lshl2_add_u32 {t0}, {t0}, {w}
s_lshl_b32 {t0}, {t0}, 7
s_and_b32 {t1}, {bp}, 1
s_add_u32 {t0}, {t0}, {t1}
s_lshl_b32 {t0}, {t0}, 5
s_add_u32 {t0}, {t0}, {x1}
v_and_b32 v26, 62, v0
v_lshl_add_u32 v26, v26, 4, {l16b}
v_add_u32 v25, 0x400, v26
s_lshl_b32 {t1}, {w}, 11
s_add_u32 m0, {t1}, {stg}""", x1=WS_X1, stg=LDS_STG)

    def eadr(self):
        return J("""s_xor_b32 {t1}, {bp}, {m}
s_lshr_b32 {t1}, {t1}, 2
s_lshl_b32 {t1}, {t1}, 6
s_add_u32 {t1}, {t1}, {rot}
s_add_u32 {t1}, {t1}, 1
s_lshr_b32 {t1}, {t1}, 1
s_lshl_b32 {t1}, {t1}, 7
s_add_u32 {wo1}, {t1}, {ef}
v_min_u32 {pa}, 2, {hi}
v_lshlrev_b32 {pa}, 7, {pa}""", m=self.pair, ef=WS_EF)
    def x1_fetch(self):
        return self.spin(self.POLL_LD) + J("buffer_load_dwordx4 v26, {SWS}, {t0} offen sc1 lds\nbuffer_load_dwordx4 v25, {SWS}, {t0} offen offset:1024 sc1 lds", tag="x1") + self.stamp(5)
    def setupA(self):
        return single(J("""s_lshl_b32 s76, {jb}, 1
s_lshr_b32 {t1}, {w}, 1
s_add_u32 s76, s76, {t1}
s_lshr_b32 {t1}, {bp}, 3
s_lshl_b32 {t1}, {t1}, 4
s_add_u32 s76, s76, {t1}
s_lshl_b32 s76, s76, 3
s_and_b32 {t1}, {bp}, 7
s_add_u32 s76, s76, {t1}
s_lshr_b32 {t1}, {bp}, 2
s_xor_b32 {t1}, {t1}, {w}
s_and_b32 {t1}, {t1}, 1
s_lshl1_add_u32 s76, s76, {t1}
s_lshl_b32 s76, s76, 6
s_add_u32 s76, s76, {u}
s_add_u32 s77, s76, 0x80000
s_add_u32 s78, s76, 0x100000
s_add_u32 s79, s76, 0x180000
v_lshrrev_b32 v24, 1, {l16}
v_lshlrev_b32 v26, 16, v24
v_and_b32 v25, 1, v0
v_lshl_add_u32 v26, v25, 5, v26
{xra}
s_lshl2_add_u32 {t0}, {jb}, {w}
v_and_or_b32 v28, v0, 7, {t0}
v_cmp_eq_u32 vcc, 0, v28
v_bfe_u32 v28, v0, 3, 1
v_xor_b32 v28, 1, v28
v_lshl_or_b32 v18, v28, 31, 1.0
s_lshl_b32 {t0}, {w}, 5
s_add_u32 {t0}, {t0}, {stg}
v_lshrrev_b32 v24, 3, v0
v_cndmask_b32 v18, v18, 0, vcc
v_lshl_add_u32 v19, v24, 8, {t0}
v_lshl_add_u32 v19, v25, 7, v19
v_bfe_u32 v25, v0, 1, 2
v_lshl_add_u32 v19, v25, 3, v19""", u=WS_U, stg=LDS_STG,
            xra="v_and_b32 v28, 1, v2\nv_lshl_add_u32 v26, v28, 19, v26\nv_lshrrev_b32 v28, 1, v2\nv_lshl_add_u32 v4, v28, 4, v26" if self.o("u4", 1) else "v_lshl_add_u32 v4, v2, 3, v26"))
    def setupB(self):
        if self.pair: return single(J("""s_lshl_b32 {he}, {bp}, 8
s_add_u32 {he}, {he}, {rot}
s_lshl_b32 {he}, {he}, 10
s_xor_b32 {hs}, {he}, {hx}
s_andn2_b32 {t1}, {bp}, {m}
s_lshl_b32 {t1}, {t1}, 5
s_lshr_b32 {t0}, {rot}, 1
s_add_u32 {t0}, {t0}, {t1}
s_lshl_b32 {t0}, {t0}, 7
s_add_u32 {wo1}, {t0}, {fl}
v_lshrrev_b32 v24, 5, v0
v_mul_u32_u24 v24, {fx}, v24
v_bfe_u32 {pa}, v0, 3, 2
v_lshl_add_u32 {pa}, {pa}, 7, v24
@skip
s_lshl3_add_u32 {wo0}, {bp}, {nt}
s_lshl_b32 {wo0}, {wo0}, {ush}
s_add_u32 {wo0}, {wo0}, {cnt}
v_mov_b32 v19, 1
v_add_u32 v9, {r64}, {l16b}""", hx=self.pair << 18, m=self.pair, fx=self.pair << 12, fl=WS_FLAG, r64=LDS_R64I, cnt=WS_CNT, ush=self.o("ush", 5)))
        return single(J("""s_lshl_b32 {hs}, {bp}, 8
s_mul_i32 {t0}, {w}, 14
s_add_u32 {hs}, {hs}, {t0}
s_lshl_b32 {hs}, {hs}, 10
s_nop 0
s_nop 0
s_nop 0
s_mul_i32 {t0}, {w}, 7
s_lshl_b32 {t1}, {bp}, 5
s_add_u32 {t0}, {t0}, {t1}
s_lshl_b32 {t0}, {t0}, 7
s_add_u32 {wo1}, {t0}, {fl}
v_lshrrev_b32 v24, 3, v0
v_min_u32 {pa}, 6, v24
v_lshlrev_b32 {pa}, 7, {pa}
s_lshl3_add_u32 {wo0}, {bp}, {nt}
s_lshl_b32 {wo0}, {wo0}, {ush}
s_add_u32 {wo0}, {wo0}, {cnt}
v_mov_b32 v19, 1
v_add_u32 v9, {r64}, {l16b}""", hl=14 * 4096, fl=WS_FLAG, r64=LDS_R64I, cnt=WS_CNT, ush=self.o("ush", 5)))
    def setupC(self):
        return single(J("""s_lshl_b32 {wo1}, {w}, {ush6}
s_add_u32 {wo1}, {wo1}, {cnt}
v_lshlrev_b32 {pa}, {ush}, v0
s_lshl_b32 {t2}, {bp}, 16
s_lshl_b32 {t3}, {w}, 14
s_add_u32 {t2}, {t2}, {t3}
s_add_u32 {t2}, {t2}, {u}
s_lshl_b32 {t0}, {bp}, 8
s_add_u32 {t0}, {t0}, {g}
v_lshrrev_b32 v24, 1, {l16}
v_lshlrev_b32 v24, 7, v24
v_and_b32 v25, 1, v0
v_lshl_add_u32 v24, v25, 5, v24
v_lshrrev_b32 v27, 1, {hi}
v_bfe_u32 v28, v0, 3, 1
v_xor_b32 v28, v27, v28
v_lshl_add_u32 v24, v28, 6, v24
v_and_b32 v26, 1, {hi}
v_lshl_add_u32 {vw}, v26, 4, v24
v_lshrrev_b32 v24, 3, v0
v_xor_b32 v25, v24, v0
v_and_b32 v25, 7, v25
v_lshlrev_b32 v24, 15, v24
v_lshl_add_u32 {x}, v25, 4, v24
v_lshl_add_u32 v24, {w}, 1, v27
v_xor_b32 v24, v24, v0
v_and_b32 v24, 7, v24
v_lshlrev_b32 v24, 4, v24
v_lshl_add_u32 v24, {l16}, 7, v24
v_lshl_add_u32 v24, v26, 3, v24
v_add_u32 v6, {stg}, v24
s_lshl_b32 {t1}, {w}, 10
s_add_u32 {t1}, {t1}, {stg}
v_add_u32 v7, {t1}, {l16b}
v_lshlrev_b32 v8, 4, {l16}
s_lshl3_add_u32 s76, {bp}, {nt}
s_lshl_b32 s76, s76, 7
s_lshl_b32 {t1}, {w}, 18
s_add_u32 s76, s76, {t1}
s_add_u32 s77, s76, 0x100000""", u=WS_U, g=WS_G, stg=LDS_STG, cnt=WS_CNT, ush=self.o("ush", 5), ush6=self.o("ush", 5) + 6))
    def tail(self, ffn, nxt_t, nxt_d):
        st = dict(t=nxt_t, d=nxt_d)
        def pump(nd):
            gs = []
            for _ in range(nd):
                if st["d"] >= self.NU: break
                nx = self.loc(min(self.NU - 1, st["d"] + 1))[1]; pv = self.loc(st["d"])[1]
                while st["t"] <= max(-1 if nx is None else nx, -1 if pv is None else pv):
                    gs += self.T(st["t"]); st["t"] += 1
                gs += self.D(st["d"]); st["d"] += 1
            return gs
        def W(a, b): return flat(weave(a, b)) if b else flat(a)
        self.after_h = []
        c1, c2 = self.c_calc()
        p = flat(c1[:-8])
        mid2 = ffn and self.o("mid", 1) >= 2 and not self.o("x1late", 0)
        if self.cin: mid2 = True; p = []; c1 = []
        else: p += self.stamp(2, 3) + I("@wait cst\ns_barrier" if mid2 else "@wait x1 cst\ns_barrier") + self.stamp(3, 3)
        if ffn and not self.o("x1late", 0) and self.o("fpos", 0) == 3: p += self.set_flag() + self.stamp(4)
        XF, DD, PP, EE, PK, UP = 128, 136, 152, 168, 184, 128
        p += flat(c1[-8:])
        late1 = self.o("x1late", 0) or not ffn
        sB = self.setupB()
        if late1:
            rip = self.rip; gcs = self.g_calc() + [self.g_store()]
            nc2 = self.o("nc2", 71) if ffn else 71
            p += W(([] if rip else self.gen_R(2, 160)) + c2[:nc2], pump(self.o("pump0", 0) if ffn else 1))
            p += self.x1_pre() + self.stamp(4, 3)
            if ffn: p += self.set_flag() + self.stamp(4)
            p += self.x1_fetch() + self.stamp(5, 3)
            p += W(c2[nc2:] + (self.gen_R(1, 160, LDS_R64I) if rip else gcs) + sB[:18] + sB[19:], pump(self.o("pump1", 2)))
            p += self.stamp(6, 3) + I("@wait x1 rtab\ns_barrier") + self.stamp(7, 3)
            if self.o("hp", 1) == 0 and ffn: p += I(self.POLL_LD, tag="poll")
        if mid2:
            nc = self.o("nc3", 55)
            p += flat(c2[:nc]); c2 = c2[nc:]
            if self.o("mid", 1) == 4: p += self.set_flag() + self.stamp(4)
            p += I("@wait x1\ns_barrier")
        for k in range(4):
            p += I("ds_read_b64_tr_b16 %s, v19 offset:%d" % (V(XF + 2 * k, 2), 2048 * k))
        mf = [I("%s %s, %s, %s, %s" % (MF, V(DD + 4 * tau, 4), A(224 + (2 * tau + v) * 4, 4), V(XF + 4 * v, 4), V(DD + 4 * tau, 4) if v else "0")) for v in range(2) for tau in range(4)]
        if late1:
            G = Gaps(mf); pm = pump(self.o("pump2", 1))
            if pm: G.stream(pm, 0, 8)
            p += G.out() + sB[18] + flat([I("ds_read_b128 %s, v9 offset:%d" % (A((192 if rip else 224) + 4 * f, 4), f * 1024)) for f in range(8)])
            if self.o("hp", 1) == 1 and ffn: p += I(self.POLL_LD, tag="poll")
        elif mid2: p += flat(c2[:8]) + flat(weave(mf, c2[8:])) + self.stamp(4, 3)
        else:
            wv = weave(c2, mf, 12, 52)
            if ffn and self.o("fpos", 0) > 3: place(wv, self.o("fpos", 0), self.set_flag() + self.stamp(4))
            p += flat(wv) + self.stamp(4, 3)
        dpp = "row_ror:8 row_mask:0xf bank_mask:0xf"
        cA, cB, cC, cD = CO, CO + 8, CO + 16, CO + 24
        def pk(op, d, a, b, neg=False):
            g = []
            for e in range(0, 8, 2):
                if op == "mul": g += I("v_pk_mul_f32 %s, %s, %s" % (V(d + e, 2), V(a + e, 2), V(b + e, 2)))
                else: g += I("v_pk_fma_f32 %s, %s, %s, %s%s" % (V(d + e, 2), V(a + e, 2), V(b + e, 2), V(d + e, 2), " neg_lo:[1,0,0] neg_hi:[1,0,0]" if neg else ""))
            return g
        fpos = -1 if late1 or not ffn or self.o("mid", 1) == 4 else self.o("fpos", 0)
        if fpos == 0: p += self.set_flag() + self.stamp(4)
        eadr = self.eadr()
        if self.ef and not late1 and self.o("epl", 0): p += I(self.POLL_LD, tag="poll")
        early = []
        hint = J("""s_bitcmp1_b32 {nt}, 2
s_cselect_b32 {t0}, {he}, {hs}
s_and_b32 {t1}, {nt}, 3
s_lshl_b32 {t1}, {t1}, 16
s_add_u32 {t0}, {t0}, {t1}
s_lshr_b32 {t1}, {wde}, 5
s_add_u32 {t0}, {t0}, {t1}
v_min_u32 v25, 2, {hi}
v_lshlrev_b32 v25, 11, v25
v_lshl_add_u32 v25, {l16}, 6, v25
buffer_load_dword a144, v25, {SWS}, {t0} offen sc1""")
        if self.o("hint", 0) == 1 and not late1: p += flat(sB[:4]) + hint
        if self.ef == 1 and not late1:
            p += flat(self.g_calc()) + self.g_store() + flat(sB[:4]) + J("s_lshr_b32 {t1}, {wde}, 5\nv_add_u32 v5, {t1}, {l16b}") + self.spin(self.POLL_LD) + self.stamp(7) + self.stamp(9, 3)
            for k in range(12):
                t, u = divmod(k, 3)
                early.append((J("s_add_u32 {ho}, {hs}, {o}", o=t * 65536 + u * 2048) if u != 1 else []) +
                             J("buffer_load_dwordx4 {r}, v5, {SWS}, {ho} offen offset:{o} sc1", tag="h%d" % k, r=V(192 + 4 * k, 4), o=2048 if u == 1 else 0))
        q = []
        for e in range(16): q += I("v_mul_f32_dpp v%d, v%d, v18 %s" % (PP + e, DD + e, dpp))
        q += pk("mul", EE, cA, DD) + pk("mul", EE + 8, cC, DD) + pk("fma", EE, cB, PP) + I("v_mov_b32 v%d, v%d\nv_mov_b32 v%d, v%d" % (cA, CA2, cB, CB2))
        q += pk("fma", EE + 8, cD, PP) + pk("fma", EE, cC, DD + 8, True) + pk("fma", EE + 8, cA, DD + 8) + pk("fma", EE, cD, PP + 8, True) + pk("fma", EE + 8, cB, PP + 8)
        p += W(single(q), early + pump(self.o("pump3", 0)))
        p += self.pack(PK, EE)
        mf = [I("%s %s, %s, %s, %s" % (MF, V(DD + 4 * kt, 4), V(PK + 4 * v, 4), A(192 + (2 * kt + v) * 4, 4), V(DD + 4 * kt, 4) if v else "0")) for v in range(2) for kt in range(4)]
        q = self.pack(PK + 4, EE + 8)
        p += q[:2]
        G = Gaps(mf); G.put(0, q[2:])
        if not late1: G.stream(sB[:4] if self.ef == 2 else sB[4 if self.ef else 0:15], 1, 8, spread=False)
        elif self.o("hp", 1) == 2 and ffn: G.put(1, I(self.POLL_LD, tag="poll"))
        p += G.out()
        if fpos == 1: p += self.set_flag() + self.stamp(4)
        if self.o("u4", 1):
            p += self.pack(UP, DD) + self.pack(UP + 4, DD + 8)
            for j in range(2):
                p += I("v_permlane16_swap_b32 v%d, v%d\nv_permlane16_swap_b32 v%d, v%d" % (UP + 4 * j, UP + 4 * j + 2, UP + 4 * j + 1, UP + 4 * j + 3))
                p += J("buffer_store_dwordx4 {r}, {xr}, {SWS}, s{so} offen sc1", tag="ust", r=V(UP + 4 * j, 4), so=76 + 2 * j)
        for kt in range(0 if self.o("u4", 1) else 4):
            p += cvt(UP + 2 * kt, DD + 4 * kt, DD + 4 * kt + 1) + cvt(UP + 2 * kt + 1, DD + 4 * kt + 2, DD + 4 * kt + 3)
            p += J("buffer_store_dwordx2 {r}, {xr}, {SWS}, s{so} offen sc1", tag="ust", r=V(UP + 2 * kt, 2), so=76 + kt)
        if self.o("hint", 0) == 2 and not late1: p += hint
        p += self.stamp(6) + self.stamp(8 if late1 else 5, 3)
        l = self.lab("nosig")
        usig = I("@wait ust gst rtab") + J("s_barrier\ns_cmp_lg_u32 {w}, 0") + \
               J("s_cbranch_scc1 {l}\ns_mov_b64 exec, 1\nbuffer_store_dword v19, v0, {SWS}, {wo0} offen sc1\ns_mov_b64 exec, -1\n{l}:", raw=True, l=l)
        if late1:
            if not ffn:
                gG = self.gen_G(136, True)
                p += W(gG[:8], pump(2)) + usig + W(gG[8:], pump(3)) + flat(pump(2)) + (eadr if self.ef else []) + I(self.POLL_LD, tag="poll") + flat(pump(9))
                usig = []
            else: p += W(gcs + self.gen_R(2, 160, LDS_RPF), pump(self.o("pumpb", 2))) if rip else flat(pump(self.o("pumpb", 2)))
            if rip: usig += J("v_add_u32 v9, {a}, {l16b}", a=LDS_RPF) + flat([I("ds_read_b128 %s, v9 offset:%d" % (A(224 + 4 * f, 4), f * 1024)) for f in range(8)])
            if self.o("hp", 1) == 3 and ffn: p += I(self.POLL_LD, tag="poll")
            p += flat(pump(self.o("pumpc", 0)))
            if self.o("upos", 0) == 0: p += usig
        elif self.ef:
            pass
        else:
            if fpos == 2: p += self.set_flag() + self.stamp(4)
            p += flat(self.g_calc()) + self.g_store() + flat(sB[15:])
            ue = self.o("ue", 3)
            gr = [[]] if self.o("r2p", 0) else self.gen_R(2, 160)
            if ue >= 3: place(gr, min(len(gr) - 1, self.o("pq", 30)), I(self.POLL_LD, tag="poll"))
            p += W(gr, pump(self.o("pumpa", 2)))
            r64 = flat([I("ds_read_b128 %s, v9 offset:%d" % (A(224 + 4 * f, 4), f * 1024)) for f in range(8)])
            if ue == 1: p += self.stamp(6, 3) + usig + r64 + self.stamp(7, 3)
            if ue < 3: p += I(self.POLL_LD, tag="poll")
            if ue in (2, 3): p += self.stamp(6, 3) + usig + ([] if ue == 3 else r64) + self.stamp(7, 3)
            if ue == 3: self.after_h = r64
            if ue == 4: self.after_h = usig + r64
            tpre = max(st["t"], min(st["d"], self.o("tpre0", 6 if ue < 3 else 0)))
            p += flat(self.TT(st["t"], tpre)); st["t"] = tpre
            p += flat(pump(self.o("pumpb", 2)))
            if ue == 0: p += usig + r64
            p += self.stamp(8, 3)
        xo = self.o("xo", 0)
        if xo > 0: p += J("v_lshl_add_u32 v44, {rot}, 10, {l16b}\nv_xor_b32 v45, 0x400, v44\nv_xor_b32 v46, 0x800, v44\nv_xor_b32 v47, 0xc00, v44\nv_and_b32 v4, 0x7ff, v44\nv_and_b32 v18, 0x7ff, v45")
        if not early:
            if not (self.o("strip", 0) & 8192 and ffn): p += self.spin(self.POLL_LD)
            p += self.stamp(7) + self.stamp(9, 3)
        if self.ef:
            r64 = [I("ds_read_b128 %s, v9 offset:%d" % (A(224 + 4 * f, 4), f * 1024)) for f in range(8)]
            if late1: return p + self.p4pair(ffn, st, pump, W, sB[4:14], [], [])
            if self.ef == 2:
                q = self.g_calc() + [self.g_store()] + sB[4:] + weave(self.gen_R(2, 160), self.TT(st["t"], 4)); st["t"] = 4
                return p + self.p4pair(ffn, st, pump, W, q, [], [usig] + r64)
            if self.o("r2p", 0): return p + self.p4pair(ffn, st, pump, W, None, sB[15:] + r64, [usig])
            return p + self.p4pair(ffn, st, pump, W, None, sB[15:] + self.gen_R(2, 32), [usig] + r64)
        if self.pair: return p + self.p4pair(ffn, st, pump, W)
        NS = 16; na = self.o("na", 8)
        order = [(u, s_) for u0 in range(0, na, 2) for s_ in range(4) for u in (u0, u0 + 1)] + [(u, s_) for s_ in range(4) for u in range(na, 14)]
        pos_ = dict((x_, k) for k, x_ in enumerate(order))
        hb = [None]
        def hload(k):
            u, s_ = order[k]; gs = []; o = s_ * 65536 + u * 1024
            if hb[0] is None or not hb[0] <= o < hb[0] + 4096:
                hb[0] = o; gs.append(J("s_add_u32 {ho}, {hs}, {o}", o=o))
            return gs + [J("buffer_load_dwordx4 {r}, {l16b}, {SWS}, {ho} offen offset:{o} sc1", tag="h%d" % k, r=V(192 + 4 * (k % NS), 4), o=o - hb[0])]
        npre = self.o("npre", 12)
        redadr = []
        for dl in range(4):
            redadr += J("s_xor_b32 {t1}, {w}, {dl}\ns_mul_i32 {t1}, {t1}, 3072\ns_add_u32 {t1}, {t1}, {o}\nv_add_u32 v{r}, {t1}, {l16b}", dl=dl, o=76 * 1024 + max(0, dl - 1) * 1024, r=32 + dl)
        ro = [61440 if self.rip else 53248, 0, 12288, 24576]
        p += W([g for k in range(npre) for g in hload(k)], self.setupC())
        tpre = max(st["t"], min(st["d"], self.o("tpre", 4)))
        p += flat(self.TT(st["t"], tpre)); st["t"] = tpre
        if late1 and self.o("upos", 0) == 1: p += usig
        s5 = self.o("s5", 80); AO = GB; LA = self.o("la5", 10); PK5 = 36
        def m4(k, dl):
            u, s_ = order[k]; d = V(128 + (dl * 4 + s_) * 4, 4)
            return I("%s %s, %s, %s, %s" % (MF, d, A(self.wd_reg(u, dl), 4), V(192 + 4 * (k % NS), 4), d if u else "0"))
        ar = lambda k: A(self.wd_reg((k % 16) // 4, k % 4), 4)
        def m5(k):
            n, sg = divmod(k, 4); d = V(ACCV + 4 * sg, 4)
            return I("%s %s, %s, %s, %s" % (MF, d, ar(k), V(GB + 4 * n, 4), d if n else "0"))
        mf = []; at = {}; k5 = 0; fin = None
        for i in range(224):
            k, dl = divmod(i, 4)
            if order[k][0] == 13: dl = (dl + 1) % 4
            at[(k, i % 4)] = len(mf); mf.append(m4(k, dl))
            if i >= s5 and k5 < 64:
                at[k5] = len(mf); mf.append(m5(k5)); k5 += 1
            if k5 == 64 and fin is None and len(mf) >= at[63] + 12:
                fin = len(mf)
                mf += [I("%s %s, %s, %s, %s" % (MF, V(AO + 4 * a_, 4), V(PK5 + 4 * v, 4), A(224 + (2 * a_ + v) * 4, 4), V(AO + 4 * a_, 4) if v else "0")) for v in range(2) for a_ in range(4)]
        assert at[0] - LA >= 64 and na >= 4
        G = Gaps(mf); N = len(mf)
        for k in range(1, 56): G.put(at[(k, 0)] - 1, I("@must h%d" % k))
        for k in range(64):
            pos = at[k - LA] if k >= LA else at[0] - (LA - k)
            if k % 16 == 0: G.put(pos - 1, I("@must u%d\ns_barrier" % (k // 16)))
            G.put(pos, J("ds_read_b128 {r}, {vw} offset:{o}", tag="a%d" % k, r=ar(k), o=(k % 4) * 16384 + (k // 4) * 1024))
            if k % 2 == 0: G.put(at[k] - 1, I("@wait a%d" % (k + 1)))
        G.put(at[0] + 1, J("buffer_load_dwordx4 v[20:23], v8, {SWS}, {t0} offen sc1"))
        hd = self.o("hd", 48)
        def ud(c):
            return [J("s_add_u32 m0, {t3}, {o}", o=c * 4096)] + ([J("s_add_u32 {t2}, {t2}, 4096")] if c else []) + \
                   [J("buffer_load_dwordx4 {l16b}, {SWS}, {t2} offen offset:{o} sc1 lds", tag="u%d" % c, o=1024 * k) for k in range(4)]
        use = lambda u: at[(pos_[(u, 0)], 0)]
        occ = lambda c: max([u for u in range(14) if self.loc(u)[0] == 0 and self.loc(u)[2] == c] + [-1])
        items = [(at[(k, 0)], 1, k) for k in range(npre, 56)] + [(at[16 * c] - (2 if c else 1) * LA - 1, 0, c) for c in range(4)]
        for n_, u in enumerate(range(st["d"], 14)):
            lim = use(u) - 24
            if self.loc(u)[0] == 0: lim = min(lim, at[16 * self.loc(u)[2]] - 2 * LA - hd - 20)
            items.append((min(lim, hd + self.o("l0", 0) + n_ * self.o("lsp", 16)), 2, u))
        items.sort()
        last = 0; dpos = {}; upos_ = {}
        for need, kind, k in items:
            want = max(last, need - hd)
            if kind == 1:
                w_ = max(want, last + 1, at[(k - NS, 3)] if k >= NS else 0)
                last = G.stream(hload(k), w_, w_ + 4, spread=False)
            elif kind == 2:
                dpos[k] = want; last = G.stream(self.D(k), want + 1, want + 9); dpos[k, "e"] = last
            else:
                upos_[k] = want
                if k == 0:
                    G.put(max(0, want - self.o("pgap", 44)), I(self.POLL_LD, tag="poll"))
                    G.put(want, self.stamp(8) + I("@wait poll") + self.spin(self.POLL_LD, sleep=self.o("slu", 0)))
                last = G.stream(([I("@must t%d" % occ(k))] if occ(k) >= 0 else []) + ud(k), want + 1, want + 11)
        dl_ = {}
        for u in range(13, st["t"] - 1, -1):
            d_ = min([use(u) - 3] + [dpos[v] for v in range(14) if v in dpos and self.loc(v)[1] == u] + [upos_[c] for c in range(4) if occ(c) == u])
            dl_[u] = min(d_, dl_[u + 1] - 5) if u < 13 else d_
        e = 0; tearly = []
        for u in range(st["t"], 14):
            if dl_[u] < 8:
                assert u not in dpos
                tearly += self.T(u); continue
            a_ = max(e, dl_[u] - 14, 0)
            assert a_ > dpos.get((u, "e"), -1), (u, a_, dpos)
            e = G.stream(self.T(u), a_, dl_[u], spread=False)
            assert e <= dl_[u]
        p += flat(tearly)
        G.stream(single(redadr), 8, 60)
        def red_w(s_): return [I("ds_write_b128 v%d, %s offset:%d" % (32 + dl, V(128 + (dl * 4 + s_) * 4, 4), ro[s_]), tag="rw%d" % s_) for dl in (1, 2, 3)]
        def red_r(s_): return [I("ds_read_b128 %s, v32 offset:%d" % (V(128 + (dl * 4 + s_) * 4, 4), ro[s_] + (dl - 1) * 1024), tag="rr%d" % s_) for dl in (1, 2, 3)]
        def red_a(s_):
            b = 128 + 4 * s_
            return single([I("v_add_f32 v%d, v%d, v%d" % (b + o + r, b + o + r, b + o + q + r)) for o, q in ((0, 16), (32, 16), (0, 32)) for r in range(4)])
        def mix(a_):
            b = 128 + 4 * a_
            return single(I("\n".join("v_fma_f32 v%d, v%d, v%d, v%d" % (b + r, b + r, 20 + a_, AO + 4 * a_ + r) for r in range(4))) +
                          cvt(56 + 2 * a_, b, b + 1) + cvt(57 + 2 * a_, b + 2, b + 3) + I("ds_write_b64 v6, %s offset:%d" % (V(56 + 2 * a_, 2), a_ * 2048), tag="ow%d" % a_))
        G.stream(single(self.pack(PK5, ACCV) + self.pack(PK5 + 4, ACCV + 8)), at[63] + 4, fin - 1, spread=False)
        gm = I("\n".join("v_mul_f32 v%d, %s, v%d" % (GB + 16 + a_, fhex(2.0 ** -19), 20 + a_) for a_ in range(4)))
        gm += I("\n".join("v_sub_f32 v%d, 1.0, v%d" % (20 + a_, 20 + a_) for a_ in range(4)))
        bars = {}; rend = {}
        for s_ in range(3):
            e = at[(pos_[(13, s_)], 3)]
            e = G.stream(red_w(s_), e + 3, e + 9)
            bars[s_] = e + 4
            G.put(e + 4, I("@must rw%d t13%s\ns_barrier" % (s_, " ow1" if s_ == 2 else "")))
            e = G.stream(red_r(s_) + ([I("ds_read_b128 v[36:39], v7")] if s_ == 2 else []), e + 5, e + 10, spread=False)
            if s_ < 2:
                G.put(e + 5, I("@wait rr%d" % s_))
                rend[s_] = G.stream(red_a(s_), e + 6, e + 16, spread=False)
        e = G.stream(single(gm), fin, fin + 8, spread=False)
        e = G.stream(single(I("\n".join("v_mul_f32 v%d, v%d, v%d" % (AO + i, GB + 16 + i // 4, AO + i) for i in range(16)))), max(e, fin + 9), fin + 24, spread=False)
        e = G.stream(mix(0), max(e, rend[0]) + 1, bars[2] - 6, spread=False)
        e = G.stream(mix(1), max(e, rend[1]) + 1, bars[2] - 1, spread=False)
        assert e < bars[2]
        ost = lambda h_: J("buffer_store_dwordx4 {r}, {x}, {SOUT}, s{so} offen {f}", r=V(36 + 4 * h_, 4), so=76 + h_, f=("", "sc1", "nt", "sc0 sc1", "sc1 nt", "sc0 sc1 nt")[self.o("ost", 1)])
        ra = red_a(2); nfit = max(0, min(12, 2 * (N - bars[2] - 11)))
        if nfit: G.stream(ra[:nfit], bars[2] + 10, N, spread=False)
        for i in range(10): G.put(min(32 * i, len(G) - 1), self.stamp(i, 2))
        p += G.out()
        p += self.stamp(9)
        p += ost(0) + flat(weave(red_w(3), ra[nfit:] + mix(2))) + I("@wait rw3\ns_barrier") + flat(red_r(3))
        for o, q in ((0, 16), (32, 16), (0, 32)):
            for hh in (0, 2): p += I("v_pk_add_f32 %s, %s, %s" % (V(140 + o + hh, 2), V(140 + o + hh, 2), V(140 + o + q + hh, 2)))
        p += flat(mix(3)) + I("@waitlg0\ns_barrier\nds_read_b128 v[40:43], v7 offset:4096") + ost(1)
        return p + self.ending(ffn)

    def p4pair(self, ffn, st, pump, W, ladr=None, fill=None, usig=None):
        NS = 16; hb = [None]; ef = self.ef
        order = [(t, u) for t in range(8) for u in range(7)]
        if ef: order = [(t, u) for t in range(4) for u in range(3)] + [(t, u) for t in range(4) for u in range(3, 7)] + [(t, u) for t in range(4, 8) for u in (0, 3, 1, 4, 2, 5, 6)]
        pos_ = dict((x_, k) for k, x_ in enumerate(order))
        def hload(k):
            t, u = order[k]; gs = []
            o = t * 65536 + (2 * (u % 3) if ef and u < 6 else u) * 1024
            if hb[0] is None or not hb[0] <= o < hb[0] + 4096:
                hb[0] = o; gs.append(J("s_add_u32 {ho}, {b}, {o}", o=o & 0x3ffff, b=NM["hs" if t < 4 else "he"]))
            return gs + [J("buffer_load_dwordx4 {r}, {a}, {SWS}, {ho} offen offset:{o} sc1", tag="h%d" % k, r=V(192 + 4 * (k % NS), 4), o=o - hb[0],
                           a=("v44", "v45")[u // 3] if ef and u < 6 else NM["l16b"])]
        npre = self.o("npre", 12)
        adr = []
        for dl in range(4):
            adr += J("s_xor_b32 {t1}, {w}, {dl}\ns_mul_i32 {t1}, {t1}, 3072\ns_add_u32 {t1}, {t1}, {o}\nv_add_u32 v{r}, {t1}, {l16b}", dl=dl, o=76 * 1024 + max(0, dl - 1) * 1024, r=32 + dl)
        adr += J("""s_lshl3_add_u32 {t1}, {bp}, {nt}
s_lshl_b32 {wo0}, {t1}, 7
s_add_u32 {wo0}, {wo0}, {pf}
s_lshl2_add_u32 s78, {t1}, {w}
s_lshl_b32 s78, s78, 12
s_xor_b32 s79, s78, {px}
s_add_u32 s78, s78, {pb}
s_add_u32 s79, s79, {pb}""", pf=WS_PF, pb=WS_P, px=self.pair << 17)
        ro = [61440 if self.rip else 53248, 0, 12288, 24576]
        sC = self.setupC()
        if ef:
            npre = 12
            p = J("s_lshr_b32 {t1}, {wde}, 5\nv_add_u32 v44, {t1}, {l16b}\nv_xor_b32 v45, 0x400, v44")
            if ef == 2 and ffn:
                n0 = self.o("n0", 7); hl = [flat(hload(k)) for k in range(npre)]
                place(ladr, min(len(ladr) - 1, self.o("lq", 999)), I(self.POLL_LD, tag="poll") if self.o("lq", 999) < 999 else [])
                p += flat(hl[:n0]) + flat(weave(ladr, hl[n0:], self.o("h0", 90), len(ladr) - 5))
            elif ladr is not None: p += flat([hload(k) for k in range(npre)]) + flat(ladr) + (flat(pump(7)) if ef != 2 else [])
            else: p = W(fill, pump(7)) + p
            p += flat(self.TT(st["t"], 3)); st["t"] = max(st["t"], 3)
        else:
            if self.o("hfirst", 0): p = flat(pump(7)) + flat([hload(k) for k in range(npre)]) + self.after_h + W(sC + single(adr), self.TT(st["t"], 7))
            else: p = flat(pump(7)) + W([g for k in range(npre) for g in hload(k)], sC + single(adr[:16])) + self.after_h + adr[16:] + flat(self.TT(st["t"], 7))
        s5 = self.o("s5", 150); AO = GB; LA = self.o("la5", 10); PK5 = 36; RC = GB + 24
        def m4(k, dl):
            t, u = order[k]; d = V(128 + (dl * 4 + t % 4) * 4, 4)
            return I("%s %s, %s, %s, %s" % (MF, d, A(self.wd_reg(u, dl), 4), V(192 + 4 * (k % NS), 4), d if u else "0"))
        ar = lambda k: A(80 + 4 * (k % 16), 4)
        def m5(k):
            n, sg = divmod(k, 4); d = V(ACCV + 4 * sg, 4)
            return I("%s %s, %s, %s, %s" % (MF, d, ar(k), V(GB + 4 * n, 4), d if n else "0"))
        mf = []; at = {}; k5 = 0; fin = None
        for i in range(224):
            k, dl = divmod(i, 4)
            if order[k][1] == 6: dl = (dl + 1) % 4
            at[(k, i % 4)] = len(mf); mf.append(m4(k, dl))
            for _ in range(self.o("r5", 2)):
              if i >= s5 and k5 < 64:
                at[k5] = len(mf); mf.append(m5(k5)); k5 += 1
            if k5 == 64 and fin is None and len(mf) >= at[63] + 12:
                fin = len(mf)
                mf += [I("%s %s, %s, %s, %s" % (MF, V(AO + 4 * a_, 4), V(PK5 + 4 * v, 4), A(224 + (2 * a_ + v) * 4, 4), V(AO + 4 * a_, 4) if v else "0")) for v in range(2) for a_ in range(4)]
        G = Gaps(mf); N = len(mf)
        for k in range(1, 56): G.put(at[(k, 0)] - 1, I("@must h%d" % k))
        for k in range(64):
            pos = at[k - LA] if k >= LA else at[0] - (LA - k)
            if k % 16 == 0: G.put(pos - 1, I("@must u%d\ns_barrier" % (k // 16)))
            G.put(pos, J("ds_read_b128 {r}, {vw} offset:{o}", tag="a%d" % k, r=ar(k), o=(k % 4) * 16384 + (k // 4) * 1024))
            if k % 2 == 0: G.put(at[k] - 1, I("@wait a%d" % (k + 1)))
        G.put(at[0] + 1, J("buffer_load_dwordx4 v[20:23], v8, {SWS}, {t0} offen sc1"))
        hd = self.o("hd", 48)
        def ud(c):
            return [J("s_add_u32 m0, {t3}, {o}", o=c * 4096)] + ([J("s_add_u32 {t2}, {t2}, 4096")] if c else []) + \
                   [J("buffer_load_dwordx4 {l16b}, {SWS}, {t2} offen offset:{o} sc1 lds", tag="u%d" % c, o=1024 * k) for k in range(4)]
        items = sorted([(at[(k, 0)], 1, k) for k in range(npre, 56)] + [((at[16 * c - LA] if c else at[0] - LA) - 1 + self.o("ul", 0), 0, c) for c in range(4)])
        last = 0
        if ef:
            up = self.o("up", 8)
            if usig: G.put(up, usig[0] + self.stamp(6, 3))
            if usig and usig[1:]: G.stream(usig[1:], 70, 110)
            if not (ffn and self.o("lq", 999) < 999): G.put(self.o("lp", 10), I(self.POLL_LD, tag="poll"))
            last = self.o("lc", 40)
            G.put(last, I("@wait poll") + self.spin(self.POLL_LD) + self.stamp(7, 3))
            G.stream(sC[:3], last + 1, last + 5, spread=False)
            if ef == 2 and ffn:
                G.stream(pump(7), 1, 14, spread=False)
                for u in (4, 5, 6): G.stream(self.T(u), 26 + 10 * (u - 4), 36 + 10 * (u - 4), spread=False)
            else:
                e = G.stream(self.TT(st["t"], 7), self.o("tts", 8), 46) if st["t"] < 7 else 0
                assert e < 47
            e = G.stream(single(adr[:16]) + sC[3:], 0, 62, spread=False)
            G.stream(single(adr[16:]), max(e, up) + 1, 70, spread=False)
        for need, kind, k in items:
            want = max(last, need - hd)
            if kind == 1:
                w_ = max(want, last + 1, at[(k - NS, 3)] if k >= NS else 0)
                last = G.stream(hload(k), w_, w_ + 4, spread=False)
            else:
                if k == 0:
                    G.put(max(self.o("lc", 40) + 6 if ef else 0, want - self.o("pgap", 44)), I(self.POLL_LD, tag="poll"))
                    G.put(want, self.stamp(8) + I("@wait poll") + self.spin(self.POLL_LD, sleep=self.o("slu", 0)))
                    G.stream(single(J("s_xor_b32 {wo1}, {wo0}, {o}\nv_mov_b32 {pa}, 0", o=self.pair << 10)), want + 1, want + 20)
                last = G.stream(ud(k), want + 1, want + 11)
        def red_w(t): return [I("ds_write_b128 v%d, %s offset:%d" % (32 + dl, V(128 + (dl * 4 + t % 4) * 4, 4), ro[t % 4]), tag="rw%d" % t) for dl in (1, 2, 3)]
        def red_r(t): return [I("ds_read_b128 %s, v32 offset:%d" % (V(128 + (dl * 4 + t % 4) * 4, 4), ro[t % 4] + (dl - 1) * 1024), tag="rr%d" % t) for dl in (1, 2, 3)]
        def red_a(t):
            b = 128 + 4 * (t % 4)
            return single([I("v_add_f32 v%d, v%d, v%d" % (b + o + r, b + o + r, b + o + q + r)) for o, q in ((0, 16), (32, 16), (0, 32)) for r in range(4)])
        mi = self.o("mi", 24)
        def mix(a_):
            b = 128 + 4 * a_
            return single(([] if mi else I("v_pk_add_f32 %s, %s, %s\nv_pk_add_f32 %s, %s, %s" % (V(b, 2), V(b, 2), V(RC + 4 * a_, 2), V(b + 2, 2), V(b + 2, 2), V(RC + 4 * a_ + 2, 2)))) +
                          I("\n".join("v_fma_f32 v%d, v%d, v%d, v%d" % (b + r, b + r, 20 + a_, AO + 4 * a_ + r) for r in range(4))) +
                          cvt(56 + 2 * a_, b, b + 1) + cvt(57 + 2 * a_, b + 2, b + 3) + I("ds_write_b64 v6, %s offset:%d" % (V(56 + 2 * a_, 2), a_ * 2048), tag="ow%d" % a_))
        rdone = {}
        left = []; sent = 0; b16 = self.o("b16", 1); wg = self.o("wg", 4)
        rounds = {0: [[0], [1], [2], [3], [4], [5], [6]], 1: [[0, 1], [2, 3], [4, 5], [6]], 2: [[0, 1], [2, 3], [4, 5, 6]], 3: [[0, 1, 2], [3], [4, 5, 6]]}[self.o("rnd", 1)]
        if len(rounds[0]) > 1: G.put(at[(pos_[(1, 6)], 0)] - self.o("eb", 10), I("@must t6\ns_barrier"))
        for rd_ in rounds:
            for t in rd_:
                e = at[(pos_[(t, 6)], 3)]
                e = G.stream(red_w(t), e + 3, e + (9 if t == rd_[-1] else 20))
            G.put(e + wg, I("@must rw%d t6\ns_barrier" % rd_[-1]))
            e = G.stream([g for t in rd_ for g in red_r(t)], e + wg + 1, e + wg + 2 + 4 * len(rd_), spread=False)
            e0_ = e + 5 - 3 * (len(rd_) - 1)
            for t in rd_:
                ra = [I("@wait rr%d" % t)] + red_a(t); nfit = 0 if left else max(0, min(13, 2 * (N - e0_ - 2)))
                if nfit: e0_ = G.stream(ra[:nfit], e0_, min(N, e0_ + 11), spread=False)
                left += ra[nfit:]; rdone[t] = e0_ if nfit == 13 else N
                if t < 4 and b16:
                    o = 24 + 4 * (t // 2) + 2 * (t & 1); b = 128 + 4 * t
                    e0_ = sent = G.stream([cvt(o, b, b + 1), cvt(o + 1, b + 2, b + 3)] + ([J("buffer_store_dwordx4 {r}, {l16b}, {SWS}, s79 offen offset:{o} sc1", tag="snd", r=V(o - 2, 4), o=(t // 2) * 1024)] if t & 1 else []), e0_, e0_ + 4, spread=False)
                elif t < 4: sent = G.stream([J("buffer_store_dwordx4 {r}, {l16b}, {SWS}, s79 offen offset:{o} sc1", tag="snd", r=V(128 + 4 * t, 4), o=t * 1024)], e0_ + 1, e0_ + 4)
                assert t >= 4 or sent + 2 < at[(pos_[(t + 4, 0)], 0)]
        l = self.lab("nop")
        fp = sent + self.o("sgap", 30)
        G.put(fp, I("@must snd") + J("s_barrier\ns_cmp_lg_u32 {w}, 0") +
              J("s_cbranch_scc1 {l}\ns_mov_b64 exec, 1\nbuffer_store_dword v19, v0, {SWS}, {wo0} offen sc1\ns_mov_b64 exec, -1\n{l}:", raw=True, l=l))
        rc = N - self.o("rc", 54); assert (b16 or rc > at[40]) and rc - self.o("rgap", 24) > fp
        G.put(rc - self.o("rgap", 24), I(self.POLL_LD, tag="poll"))
        G.put(fp, self.stamp(0, 5))
        G.put(rc, self.stamp(1, 5) + I("@wait poll") + self.spin(self.POLL_LD) + self.stamp(2, 5))
        G.stream([J("buffer_load_dwordx4 {r}, {l16b}, {SWS}, s78 offen offset:{o} sc1", r=V((24 if b16 else RC) + 4 * t, 4), o=t * 1024) for t in range(2 if b16 else 4)], rc + 1, rc + 6, spread=False)
        if b16 and not mi: left += single([J("v_lshlrev_b32 v{d0}, 16, v{s}\nv_and_b32 v{d1}, {hi16}, v{s}", d0=RC + 2 * i, d1=RC + 2 * i + 1, s=24 + i) for i in range(8)])
        G.stream(single(self.pack(PK5, ACCV) + self.pack(PK5 + 4, ACCV + 8)), at[63] + 4, fin - 1, spread=False)
        gm = I("\n".join("v_mul_f32 v%d, %s, v%d" % (GB + 16 + a_, fhex(2.0 ** -19), 20 + a_) for a_ in range(4)))
        gm += I("\n".join("v_sub_f32 v%d, 1.0, v%d" % (20 + a_, 20 + a_) for a_ in range(4)))
        e = G.stream(single(gm), fin, fin + 8, spread=False)
        e = G.stream(single(I("\n".join("v_mul_f32 v%d, v%d, v%d" % (AO + i, GB + 16 + i // 4, AO + i) for i in range(16)))), max(e, fin + 9), min(N, fin + (20 if mi else 30)), spread=False)
        m01 = mix(0) + mix(1)
        if mi:
            q = []
            for i in range(8):
                q += J("v_lshlrev_b32 v{d0}, 16, v{s}\nv_and_b32 v{s}, {hi16}, v{s}\nv_fmac_f32 v{a0}, v{g}, v{d0}\nv_fmac_f32 v{a1}, v{g}, v{s}", d0=RC + i, s=24 + i, g=20 + i // 2, a0=AO + 2 * i, a1=AO + 2 * i + 1)
            q = single(q[:16]) + m01 + single(q[16:]); nf = self.o("nf", 30)
            assert max(e + 1, N - mi) > rdone[5] and max(e + 1, N - mi) > rc + 6
            G.stream(q[:nf], max(e + 1, N - mi), N, spread=False); m01 = q[nf:]
        ost = lambda h_: J("buffer_store_dwordx4 {r}, {x}, {SOUT}, s{so} offen {f}", r=V(36 + 4 * h_, 4), so=76 + h_, f=("", "sc1", "nt", "sc0 sc1", "sc1 nt", "sc0 sc1 nt")[self.o("ost", 1)])
        for i in range(10): G.put(min(32 * i, len(G) - 1), self.stamp(i, 2))
        go = G.out(); x_ = self.o("strip", 0)
        if x_ & 1024: go = [i for i in go if i.op != "s_barrier"]
        if x_ & 2048: go = [Ins("s_nop 0", i.tag) if i.cls == "ds" and i.tag and i.tag[:2] in ("rw", "rr") else i for i in go]
        if x_ & 16384: go = [i for i in go if not (i.cls == "mfma" and i.text.split()[1] in ("v[48:51],", "v[52:55],", "v[56:59],", "v[60:63],")) and not (i.tag and i.tag[0] == "a")]
        if x_ & 4096: go = [i for i in go if not (i.raw and "s_mem" not in i.op)]
        p += I("; ---- phases 4 and 5") + go + I("; ---- last partial sums, mix, store")
        p += self.stamp(9)
        nl = self.o("nl", 4)
        p += self.stamp(3, 5) + flat(left[:nl]) + self.stamp(4, 5) + flat(weave(red_w(7), left[nl:] + m01, self.o("nl2", 0))) + self.stamp(5, 5) + I("@wait rw7 ow1\ns_barrier") + self.stamp(6, 5) + flat(red_r(7)) + I("ds_read_b128 v[36:39], v7") + flat(mix(2))
        for o, q in ((0, 16), (32, 16), (0, 32)):
            for hh in (0, 2): p += I("v_pk_add_f32 %s, %s, %s" % (V(140 + o + hh, 2), V(140 + o + hh, 2), V(140 + o + q + hh, 2)))
        p += ost(0) + flat(mix(3)) + self.stamp(7, 5) + I("@waitlg0\ns_barrier") + self.stamp(8, 5) + I("ds_read_b128 v[40:43], v7 offset:4096") + ost(1) + self.stamp(9, 5)
        return p + self.ending(ffn)

    def ending(self, ffn):
        p = []
        if "diag" in self.kw:
            i = self.kw["diag"]; l = self.lab("dg"); who = self.o("who", 0)
            use = i >= 0 and (who == 0 or (who == 1) == ffn)
            p += I("@waitvm0") + self.stamp(10) + I("s_waitcnt lgkmcnt(0)")
            p += I("s_add_u32 s3, %s, 5000" % ("s%d" % (48 + 2 * i) if use else "s100"))
            if "dx" in self.kw: p += I("s_and_b32 s98, s2, 7\ns_cmp_eq_u32 s98, %d\ns_cselect_b32 s3, s3, s100" % self.kw["dx"])
            p += I("%s:\ns_sleep 1\ns_memrealtime s[98:99]\ns_waitcnt lgkmcnt(0)\ns_sub_u32 s98, s98, s3\ns_cmp_lt_i32 s98, 0\ns_cbranch_scc1 %s" % (l, l), raw=True)
        elif self.prof:
            p += I("@waitvm0") + self.stamp(10) + I("s_waitcnt lgkmcnt(0)")
            p += J("s_lshl_b32 s3, s2, 2\ns_add_u32 s3, s3, {w}\ns_lshl_b32 s3, s3, 6\ns_add_u32 s3, s3, {o}\nv_mov_b32 v32, s100", o=WS_PROF)
            for i in range(11): p += I("v_mov_b32 v%d, s%d" % (33 + i, 48 + 2 * i))
            p += I("s_mov_b64 exec, 1")
            for i in range(3): p += I("buffer_store_dwordx4 %s, v0, %s, s3 offen offset:%d" % (V(32 + 4 * i, 4), SWS, 16 * i))
        return p + I("s_endpgm")

    def text(self):
        st = {}
        hdr = open("gated_mix__spectral_gfnet__glu_gated_reglu__prompt.s.ref").read().split("; Override launch")[0]
        out = [hdr.rstrip(), DOC,
               "; @launch grid=(256,1,1) block=(256,1,1) lds=163840", '.amdgcn_target "amdgcn-amd-amdhsa--gfx950"', ".text",
               ".globl " + NAME, ".p2align 8", ".type %s,@function" % NAME, NAME + ":"]
        prog = self.prologue() + self.p12f() + I("L_dft:") + self.p12d() + I("L_end:\ns_endpgm")
        x = self.o("strip", 0)
        if x & 1: prog = [i for i in prog if i.cls != "mfma"]
        if x & 2: prog = [i for i in prog if not (i.cls == "ds" and i.op.startswith("ds_read"))  or i.tag and not seen_tag(i.tag)]
        if x & 4: prog = [i if not (i.cls == "vmem" and i.tag == "pub") else Ins(i.text.replace("v14", "v0").replace("dwordx4", "dword").replace(i.text.split()[1], "v0,"), i.tag) for i in prog]
        import re as _re
        for bit, pat in ((8, r"d\d+$"), (16, r"h\d+"), (512, r"snd"), (32, r"u\d$"), (64, r"cld$"), (128, r"w\d$"), (256, r"x\d$")):
            if x & bit: prog = [Ins("s_nop 0", i.tag) if i.cls == "vmem" and i.tag and _re.match(pat, i.tag) and "sc1 lds" not in (i.text if bit == 256 else "") else i for i in prog]
        body = finalize(prog, st)
        if self.o("al", 0): body, st["align"] = align8(body)
        out += body
        out += ['.section .rodata,"a"', ".p2align 6", ".amdhsa_kernel " + NAME, "  .amdhsa_next_free_vgpr 512", "  .amdhsa_next_free_sgpr 102",
                "  .amdhsa_accum_offset 256", "  .amdhsa_group_segment_fixed_size 0", "  .amdhsa_kernarg_size 88", "  .amdhsa_user_sgpr_count 2",
                "  .amdhsa_user_sgpr_kernarg_segment_ptr 1", "  .amdhsa_system_sgpr_workgroup_id_x 1", "  .amdhsa_float_denorm_mode_32 3", ".end_amdhsa_kernel"]
        self.stats = st; self.body = body
        return "\n".join(out) + "\n"

def main(Gen):
    import argparse
    ap = argparse.ArgumentParser()
    ap.add_argument("out"); ap.add_argument("--prof", action="store_true"); ap.add_argument("--opt", default=""); ap.add_argument("--est", action="store_true")
    a = ap.parse_args()
    kw = dict((k, int(v)) for k, v in (x.split("=") for x in a.opt.split(",") if x))
    g = Gen(prof=a.prof, **kw)
    open(a.out, "w").write(g.text())
    print(g.stats)
    if a.est:
        row = []; gap = None; nm = 0; over = 0; skip = None
        for l in g.body:
            x = Ins(l.strip())
            if skip:
                if x.text == skip + ":": skip = None
                continue
            if x.op in ("s_cbranch_vccz", "s_cbranch_scc1") and "L_" not in x.text: skip = x.text.split()[1]
            if x.cls == "label":
                if x.text == "L_dft:": row.append(over); row.append("|"); nm = 0; over = 0; gap = None
                continue
            if x.cls == "mfma":
                if gap is not None and len(gap) < 14: over += gap_over(gap) + sum(int(y.text.split()[1]) for y in gap if y.op == "s_nop")
                gap = []; nm += 1
                if nm % 64 == 0: row.append(over); over = 0
            elif gap is not None: gap.append(x)
        print(row, over)

if __name__ == "__main__":
    main(Gen)
```

```python
import sys, re
sys.path.insert(0, "tools")
from prog import *

NAME = "gated_mix__spectral_gfnet__glu_gated_reglu__prompt_kernel"
WS_H, WS_X1, WS_U, WS_G, WS_FLAG, WS_CNT, WS_PROF = 0, 0x800000, 0xA00000, 0xC38000, 0xC10000, 0xC30000, 0xF000000
NCLR = 58 if re.search('ef=[12]', ' '.join(sys.argv)) else 50
WS_PF, WS_EF, WS_P = 0xC3A000, 0xC42000, 0xD00000
SPIN_LIMIT = 300000
MF = "v_mfma_f32_16x16x32_bf16"
SX, SWG, SWU, SWD, SWS, SOUT, SWR, SWI, SGW, SDBG = [S(8 + 4 * i, 4) for i in range(10)]
NM = dict(w="s4", b12="s5", ni="s6", rot="s7", xcd="s70", loc="s71", wds="s70", wde="s71", l3="s72", nt="s73", bp="s74", xn="s75",
          hs="s80", lw4="s80", wo0="s81", wo1="s82", he="s83", wb="s83", k="s94", lw="s84", wdo="s85", t0="s86", t1="s87", t2="s88", t3="s89",
          mask="s[90:91]", hi16="s92", ring="s93", ho="s94", clr="s95", jb="s0", sh="s1", m1="s[96:97]", m2="s[98:99]",
          l16="v1", hi="v2", x="v3", xr="v4", vw="v5", l16b="v14", wd="v15", p="v16", xr2="v16", pa="v17",
          SX=SX, SWG=SWG, SWU=SWU, SWD=SWD, SWS=SWS, SOUT=SOUT, SWR=SWR, SWI=SWI, SGW=SGW, SDBG=SDBG)
vWT = [6, 7, 8, 9]; vDT = [10, 11, 12, 13]; vXA = [22, 23]; vWD = [15, 29, 30, 31]
LDS_RPF, LDS_RPI, LDS_R64I, LDS_STG, LDS_RED = 128 * 1024, 136 * 1024, 144 * 1024, 152 * 1024, 64 * 1024
GB, CO, ACCV = 64, 32, 48
CA2, CB2 = 20, 21
RING = [192, 208, 224, 240, 32]

def J(text, tag=None, raw=False, **kw):
    d = dict(NM); d.update(kw)
    return I(text.format(**d), tag, raw)
def single(g): return [[x] for x in flat(g)]
def chunks(g):
    g = flat(g); out = []; i = 0
    while i < len(g):
        j = i
        if g[i].op.startswith("v_cmp") and ("s", 106) in g[i].dst:
            k = i + 1
            while k < len(g) and not (g[k].op.startswith("v_cmp") and ("s", 106) in g[k].dst):
                if ("s", 106) in g[k].src: j = k
                k += 1
            j = i
        while j + 1 < len(g) and g[j + 1].op.startswith(("s_cselect", "s_subb", "s_addc")): j += 1
        out.append(g[i:j + 1]); i = j + 1
    return out
def cvt(d, a, b): return I("v_cvt_pk_bf16_f32 v%d, v%d, v%d" % (d, a, b))

DOC = """;
; Rows s = 32a + b, row frequencies k = p + 64q; every DFT stage is a real bf16 MFMA product with fp32 accumulation,
; all cos/sin matrices are built in the kernel (v_cos plus a Chebyshev recurrence).
;   phase 1 (32 workgroups, L_dft): radix-2 fold + DFT along d, then the 64-point stage over a          -> X1 (d_ws)
; The flag words are cleared inside the launch; d_debug tells everyone when that is done."""
_seen = set()
def seen_tag(t):
    r = t in _seen; _seen.add(t); return r

class Gen:
    def __init__(self, prof=False, **kw):
        self.prof = prof; self.kw = kw; self.nl = 0; self.nsp = {}
        self.pair = kw.get("pair", 4); self.NU = 7 if self.pair else 14; self.ef = kw.get("ef", 0) if self.pair else 0
    def o(self, k, d): return self.kw.get(k, d)
    def lab(self, b):
        self.nl += 1; return "L%s_%d" % (b, self.nl)
    def clk(self): return "s_memtime" if self.o("cyc", 0) else "s_memrealtime"
    def stamp(self, i, mode=0):
        if not self.prof or self.o("diag", i) != i or (self.o("pm", 0) != mode and i != 10): return []
        return I("%s %s" % (self.clk(), S(48 + 2 * i, 2)), raw=True)
    def srd(self, name, lo, size, back=0):
        b = int(name[2:name.index(":")])
        if back: g = I("s_sub_u32 s%d, s%d, %d\ns_subb_u32 s%d, s%d, 0" % (b, lo, back, b + 1, lo + 1))
        else: g = I("s_mov_b64 %s, %s" % (S(b, 2), S(lo, 2)))
        return g
    def srd_const(self, name, size):
        b = int(name[2:name.index(":")])
        return I("s_mov_b32 s%d, 0x%x\ns_mov_b32 s%d, 0x20000" % (b + 2, size, b + 3))
    def spin(self, load, sleep=None):
        if sleep is None: sleep = self.o("sl", 0)
        ok, sp = self.lab("ok"), self.lab("spin")
        cmp_ = "v_cmp_ne_u32 vcc, 1, v16"
        if self.prof and self.o("pm", 0) == 6 and not getattr(self, "_in", 0):
            self._in = 1; body = self.spin(load, sleep); self._in = 0
            k = self.nsp[self.ffn] = self.nsp.get(self.ffn, -1) + 1
            return I("s_mov_b32 s3, 0") + body + I("s_mul_i32 s3, s3, 100\ns_add_u32 s%d, s3, s100" % (48 + 2 * k))
        return I(cmp_) + I("s_cbranch_vccz %s" % ok, tag="first", raw=True) + I("""s_mov_b32 s3, 0
%s:
%s%s
s_waitcnt vmcnt(0)
%s
s_add_u32 s3, s3, 1
s_cmp_lt_u32 s3, %d
s_cbranch_vccz %s
s_cbranch_scc1 %s
%s:""" % (sp, "s_sleep %d\n" % sleep if sleep else "", load, cmp_, SPIN_LIMIT, ok, sp, ok), raw=True)

    def cheb(self, X, Y, K, pk=True):
        if not pk: return I("\n".join("v_fma_f32 v%d, v%d, v%d, -v%d" % (X + q, K, Y + q, X + q) for q in range(8)))
        return I("\n".join("v_pk_fma_f32 %s, %s, %s, %s neg_lo:[0,0,1] neg_hi:[0,0,1]" % (V(X + 2 * q, 2), V(K, 2), V(Y + 2 * q, 2), V(X + 2 * q, 2)) for q in range(4)))
    def direct(self, X, spec):
        g = []; src = []
        for i, (d, K, b) in enumerate(spec):
            if K == 0: src.append(b)
            else:
                g += I("v_fmamk_f32 v%d, %s, %s, %s" % (X + i, d, fhex(K), b)); src.append("v%d" % (X + i))
        return g + I("\n".join("v_cos_f32 v%d, %s" % (X + i, src[i]) for i in range(8)))
    def pack(self, dst, X, first=None):
        return flat([cvt(dst + q, first if (q == 0 and first) else X + 2 * q, X + 2 * q + 1) for q in range(4)])

    def gen_G(self, t, pk):
        X, Y, K = t, t + 8, t + 16
        d, a0 = V(t + 18), V(t + 19)
        pre = J("""s_lshl_b32 {t0}, {nt}, 6
s_lshl_b32 {t1}, {w}, 4
s_add_u32 {t0}, {t0}, {t1}
v_add_u32 {d}, {t0}, {l16}
v_cvt_f32_u32 {d}, {d}
v_mul_f32 {d}, {c512}, {d}
v_mul_f32 {k0}, 0x41800000, {d}
v_cos_f32 {k0}, {k0}
v_and_b32 {e0}, 2, {hi}
v_lshlrev_b32 {e0}, 2, {e0}
v_cvt_f32_u32 {e0}, {e0}
v_and_b32 {e1}, 1, {hi}
v_cvt_f32_u32 {a0}, {e1}
v_mul_f32 {a0}, 0x3e800000, {a0}
v_fmac_f32 {a0}, {d}, {e0}
v_add_f32 {k0}, {k0}, {k0}
v_and_b32 {e0}, {e1}, v0
v_mov_b32 {k1}, {k0}
v_lshl_or_b32 {e0}, {e0}, 31, 0.5""", d=d, a0=a0, c512=fhex(1 / 512), k0=V(K), k1=V(K + 1), e0=V(t + 20), e1=V(t + 21))
        kap = [2 * (i & 3) + (i >> 2) for i in range(8)]
        gs = [pre, self.direct(X, [(d, kap[i], a0) for i in range(8)]), self.direct(Y, [(d, 16 + kap[i], a0) for i in range(8)]),
              J("v_cmp_gt_u32 vcc, 2, {hi}") + self.pack(GB + 4, Y) + I("v_cndmask_b32 v%d, v%d, v%d, vcc" % (t + 20, X, t + 20)) + self.pack(GB, X, first=t + 20)]
        for n in range(2, 16):
            a, b = (X, Y) if n % 2 == 0 else (Y, X)
            gs.append(self.cheb(a, b, K, pk) + self.pack(GB + 4 * n, a))
        return gs

    def gen_R(self, part, t, base=None):
        X = t; r = [V(t + 8 + i) for i in range(14)]
        n = dict(q=r[0], k=r[1], ph=r[2], dl=r[3], b0=r[4], b1=r[5], d0=r[6], d1=r[7], o0=r[8], o1=r[9], qt=r[10], h2=r[11], hf=r[12], adr=r[13],
                 c=fhex(1 / 2048), c64=fhex(1 / 64), base=LDS_RPF + 8192 * part if base is None else base)
        g = J("""s_lshl_b32 {t0}, {w}, 11
s_add_u32 {t0}, {t0}, {base}
v_add_u32 {adr}, {t0}, {l16b}
v_cvt_f32_u32 {hf}, {hi}
v_mov_b32 {qt}, 0x3e800000""", **n)
        if part < 2: g += J("s_cmp_eq_u32 {bp}, 0\ns_cselect_b64 {m1}, -1, 0\ns_cselect_b32 {t1}, 32, 64")
        masks = J("s_and_b32 vcc_lo, s96, 0xaaaaaaaa\ns_mov_b32 vcc_hi, vcc_lo\ns_andn2_b64 {m2}, {m1}, vcc")
        if part == 0:
            g += J("""s_and_b32 {t0}, {w}, 1
s_lshl_b32 {t0}, {t0}, 4
v_add_u32 {q}, {t0}, {l16}
v_mul_u32_u24 {k}, {t1}, {q}
v_add_u32 {k}, {bp}, {k}
s_lshr_b32 {t2}, {w}, 1
s_cselect_b64 {m2}, -1, 0
v_cmp_eq_u32 vcc, 0, {k}
v_cvt_f32_u32 {ph}, {t2}
v_mul_f32 {ph}, 0xbe800000, {ph}
v_cvt_f32_u32 {dl}, {k}
v_mul_f32 {dl}, {c}, {dl}
s_and_b64 vcc, vcc, {m2}
v_cndmask_b32 {dl}, {dl}, 0.5, vcc
v_cndmask_b32 {ph}, {ph}, 0, vcc
v_add_f32 {h2}, {hf}, {hf}
v_fma_f32 {b0}, {dl}, {h2}, {ph}
v_add_f32 {b1}, {qt}, {b0}
v_cndmask_b32 {b1}, {b1}, {b0}, {m1}""", **n) + masks + J("""v_cndmask_b32 {d0}, {dl}, 0, vcc
v_cndmask_b32 {b0}, {b0}, {qt}, vcc
v_cndmask_b32 {d1}, {dl}, 0, {m2}
v_cndmask_b32 {b1}, {b1}, {qt}, {m2}""", **n)
            specs = [[((r[6], r[7])[i & 1], 16 * v + 8 * (i // 4) + (i % 4) // 2, (r[4], r[5])[i & 1]) for i in range(8)] for v in range(2)]
        elif part == 1:
            g += masks + J("""s_lshl_b32 {t0}, {w}, 3
v_lshrrev_b32 {q}, 1, {l16}
v_add_u32 {q}, {t0}, {q}
v_cvt_f32_u32 {k}, {q}
v_mul_f32 {k}, {c}, {k}
v_cvt_f32_u32 {ph}, {t1}
v_mul_f32 {dl}, {k}, {ph}
v_cvt_f32_u32 {ph}, {bp}
v_mul_f32 {b0}, {k}, {ph}
v_and_b32 {q}, 1, v0
v_cvt_f32_u32 {ph}, {q}
v_cndmask_b32 {ph}, {ph}, 0, {m1}
v_fmac_f32 {b0}, {qt}, {ph}
v_mul_f32 {ph}, 4.0, {hf}
v_fmac_f32 {b0}, {dl}, {ph}
v_sub_f32 {b1}, {b0}, {qt}
v_cndmask_b32 {d1}, {dl}, 0, {m2}
v_cndmask_b32 {o0}, {b0}, {qt}, {m2}
v_cndmask_b32 {o1}, {b1}, {qt}, {m2}
s_and_b64 {m2}, {m2}, 0xffff
v_cndmask_b32 {d0}, {dl}, 0, vcc
v_cndmask_b32 {b0}, {b0}, {qt}, vcc
v_cndmask_b32 {b1}, {b1}, {qt}, vcc
v_mul_f32 {k}, 0x44800000, {k}
v_cndmask_b32 {k}, {b1}, {k}, {m2}""", **n)
            specs = [[((r[6], r[7])[i & 1], 16 * (i // 4) + i % 4, ((r[4], r[5]), (r[8], r[9]))[i & 1][v]) for i in range(8)] for v in range(2)]
            specs[1][0] = (r[6], 0, r[1])
        else:
            g += J("""s_lshl_b32 {t0}, {w}, 4
v_add_u32 {q}, {t0}, {l16}
v_cvt_f32_u32 {q}, {q}
v_mul_f32 {dl}, {c64}, {q}
v_add_f32 {h2}, {hf}, {hf}
v_mul_f32 {b0}, {dl}, {h2}
v_sub_f32 {b1}, {b0}, {qt}
v_mul_f32 {q}, 0.5, {q}
s_mov_b64 {m2}, 0xffff
v_cndmask_b32 {q}, {b1}, {q}, {m2}""", **n)
            specs = [[(r[3], 16 * v + 8 * (i // 4) + (i % 4) // 2, (r[4], r[5])[i & 1]) for i in range(8)] for v in range(2)]
            specs[0][1] = (r[3], 0, r[0])
        for v in range(2):
            g += self.direct(X, specs[v]) + self.pack(X, X) + I("ds_write_b128 %s, %s offset:%d" % (r[13], V(X, 4), v * 1024), tag="rtab")
        return chunks(g)

    def gen_T(self):
        r = [V(112 + i) for i in range(8)]
        gs = [J("""s_lshr_b32 {t0}, {xn}, 1
s_lshl_b32 {t0}, {t0}, 2
s_add_u32 {t0}, {t0}, {w}
s_lshl_b32 {t0}, {t0}, 5
s_and_b32 {t1}, {xn}, 1
s_add_u32 {t0}, {t0}, {t1}
v_lshl_add_u32 {j}, {l16}, 1, {t0}
v_cvt_f32_u32 {d0}, {j}
v_cmp_eq_u32 vcc, 0, {j}
v_mul_f32 {d0}, {c}, {d0}
v_mov_b32 {b1}, 0x3e800000
s_lshl_b32 {t0}, {wb}, 6
v_lshl_add_u32 {h4}, {hi}, 2, {t0}
v_cvt_f32_u32 {h4}, {h4}
v_cndmask_b32 {d1}, {d0}, 0.5, vcc
v_cndmask_b32 {b1}, {b1}, 0, vcc
v_mul_f32 {b0}, {d0}, {h4}
v_fmac_f32 {b1}, {d1}, {h4}
v_mul_f32 v104, 0x42000000, {d0}
v_mul_f32 v106, 0x42000000, {d1}
v_cos_f32 v104, v104
v_cos_f32 v106, v106
s_lshl_b32 {t0}, {w}, 11
v_add_u32 {adr}, {t0}, {l16b}
v_add_f32 v104, v104, v104
v_add_f32 v106, v106, v106
v_mov_b32 v105, v104
v_mov_b32 v107, v106""", j=r[0], d0=r[2], d1=r[3], b0=r[4], b1=r[5], h4=r[6], adr=r[7], c=fhex(1 / 512))]
        for n in range(8):
            for tt in range(2):
                X, Y = 64 + 16 * tt, 72 + 16 * tt
                a, b = (X, Y) if n % 2 == 0 else (Y, X)
                g = self.direct(a, [(r[2 + tt], 32 * n + 16 * (i // 4) + i % 4, r[4 + tt]) for i in range(8)]) if n < 2 else self.cheb(a, b, 104 + 2 * tt, n < self.o("ntp", 8))
                gs.append(g + self.pack(96 + 4 * tt, a) + I("ds_write_b128 %s, %s offset:%d" % (r[7], V(96 + 4 * tt, 4), n * 8192 + tt * 1024), tag="ttab%d" % (n // 2)))
        sel = J("""s_lshl_b32 {t1}, {t1}, 15
v_lshrrev_b32 v24, 1, {hi}
v_mul_u32_u24 v24, {t1}, v24
v_or_b32 v24, 0x3f80, v24
v_and_b32 v25, 1, v0
v_lshlrev_b32 v25, 4, v25
v_lshlrev_b32 v24, v25, v24
v_lshrrev_b32 v25, 1, {l16}
v_and_b32 v26, 1, {hi}
v_lshlrev_b32 v27, 2, v26
v_xor_b32 v27, v25, v27
v_cmp_eq_u32 vcc, 0, v27
v_cmp_eq_u32 {m1}, 1, v27
v_cmp_eq_u32 {m2}, 2, v27
v_cndmask_b32 v20, 0, v24, vcc
v_cmp_eq_u32 vcc, 3, v27
v_cndmask_b32 v21, 0, v24, {m1}
v_cndmask_b32 v22, 0, v24, {m2}
v_cndmask_b32 v23, 0, v24, vcc
v_xor_b32 v24, v26, v25
v_lshlrev_b32 v24, 4, v24
v_lshl_add_u32 v24, {l16}, 7, v24
v_lshrrev_b32 v25, 1, {hi}
v_lshl_add_u32 v24, v25, 11, v24
v_add_u32 v6, {ring}, v24
v_xor_b32 v7, 32, v6
v_xor_b32 v8, 64, v6
v_xor_b32 v9, 0x60, v6""")
        late = J("""s_lshl_b32 {t0}, {w}, 4
v_add_u32 v24, {t0}, {l16}
v_lshrrev_b32 v18, 1, v24
v_cvt_f32_u32 v18, v18
v_mul_f32 v18, {c}, v18
v_and_b32 v19, 1, v24
v_cvt_f32_u32 v19, v19
v_mul_f32 v19, 0xbe800000, v19
v_cmp_eq_u32 vcc, 1, v24
v_lshlrev_b32 v24, 2, {hi}
v_cvt_f32_u32 v24, v24
s_lshl_b32 {t0}, {w}, 11
s_add_u32 {t0}, {t0}, {stg}
v_cndmask_b32 v18, v18, 0.5, vcc
v_cndmask_b32 v19, v19, 0, vcc
v_fmac_f32 v19, v18, v24
v_add_u32 {pa}, {t0}, {l16b}""", c=fhex(1 / 64), stg=LDS_STG)
        for v in range(2):
            late += self.direct(24, [("v18", 32 * v + 16 * (i // 4) + i % 4, "v19") for i in range(8)]) + self.pack(24, 24) + \
                    J("ds_write_b128 {pa}, v[24:27] offset:{o}", tag="r64f", o=v * 1024)
        return gs, sel, late

    def wd_setup(self):
        g = J("""v_lshrrev_b32 v24, 3, v0
v_bfe_u32 v25, v0, 1, 2
v_xor_b32 v25, v25, {hi}
v_lshlrev_b32 v25, 5, v25
v_lshl_add_u32 v25, v24, 10, v25
v_and_b32 v24, 1, v0
v_lshl_add_u32 {wd}, v24, 4, v25
v_add_u32 v29, 7168, {wd}
v_add_u32 v30, 7168, v29
v_add_u32 v31, 7168, v30
s_mul_i32 {wds}, {w}, {c}
s_lshl_b32 {t0}, {nt}, 7
s_add_u32 {wds}, {wds}, {t0}
s_add_u32 {wde}, {wds}, {c}
v_bfe_u32 v24, v0, 2, 3
v_lshrrev_b32 v25, 5, v0
v_lshlrev_b32 v25, 10, v25
v_lshl_add_u32 v25, v24, 7, v25
v_and_b32 v26, 3, v0
v_lshl_add_u32 v25, v26, 3, v25
v_add_u32 v25, {ring}, v25
v_lshrrev_b32 v24, 1, v24
v_xor_b32 v24, {w}, v24
v_lshl_add_u32 v10, v24, 5, v25
v_xor_b32 v11, 32, v10
v_xor_b32 v12, 64, v10
v_xor_b32 v13, 0x60, v10
s_mul_i32 {rot}, {nt}, {ra}""", c=448 * 1024, ra=self.o("rnt", 0))
        if self.pair:
            g = [x for x in g if x.cls != "salu"]
            return g + J("s_and_b32 {t0}, {bp}, {m}\ns_cselect_b32 {t0}, 28, 0\ns_mul_i32 {rot}, {w}, 7\ns_add_u32 {rot}, {rot}, {t0}\ns_lshl_b32 {wds}, {rot}, 8\ns_add_u32 {wds}, {wds}, {nt}\ns_lshl_b32 {wds}, {wds}, 7\ns_and_b32 {wde}, {rot}, 1\ns_lshl_b32 {wde}, {wde}, 15", m=self.pair)
        if self.o("rl3", 0) == 1: g += J("s_mul_i32 {t0}, {l3}, 7\ns_add_u32 {t0}, {t0}, 1\ns_lshr_b32 {t0}, {t0}, 1\ns_add_u32 {rot}, {rot}, {t0}")
        if self.o("rl3", 0) == 2: g += J("s_and_b32 {t0}, {l3}, 1\ns_mul_i32 {t0}, {t0}, 7\ns_add_u32 {rot}, {rot}, {t0}")
        if self.o("xo", 0) >= 0:
            return g[:-1] + J(("s_add_u32 {rot}, {nt}, {l3}" if self.o("xnt", 0) else "s_mov_b32 {rot}, {l3}") + "\ns_and_b32 {rot}, {rot}, {m}\ns_lshl_b32 {wde}, {rot}, 15", m=self.o("xo", 0))
        g += J("s_sub_u32 {t0}, {rot}, 14\ns_cselect_b32 {rot}, {rot}, {t0}\ns_lshl_b32 {t0}, {rot}, 15\ns_add_u32 {wdo}, {wds}, {t0}")
        return g
    def loc(self, u):
        if self.pair: return (1, u - 4 if u >= 4 else None, u % 4)
        a, n = (8, self.o("nA", 2)) if self.ffn else (4, 4)
        if a <= u < a + n: return (0, None, (u - a + 4 - n) % 4)
        r1 = [v for v in range(14) if not a <= v < a + n]; k = r1.index(u)
        return (1, r1[k - 4] if k >= 4 else None, k % 4)
    def D(self, u, pre=None):
        reg, prev, slot = (self.loc(u) + (u % 4,))[:3]; gs = []
        if self.ef and u < 6: gs += [J("s_xor_b32 {wdo}, {wde}, {o}", o=(2 * (u % 3) + u // 3) << 15), J("s_add_u32 {wdo}, {wdo}, {wds}")]
        elif self.pair: gs.append(J("s_add_u32 {wdo}, {wds}, {o}", o=u << 15))
        elif self.o("xo", 0) >= 0:
            if u == 12: gs.append(J("s_and_b32 {wde}, {wde}, 0x8000"))
            gs += [J("s_xor_b32 {wdo}, {wde}, {o}", o=u << 15), J("s_add_u32 {wdo}, {wdo}, {wds}")]
        elif u: gs += [J("s_add_u32 {wdo}, {wdo}, 0x8000"), J("s_cmp_ge_u32 {wdo}, {wde}\ns_cselect_b32 {wdo}, {wds}, {wdo}")]
        gs.append(J("s_add_u32 m0, {ring}, {o}", o=(slot * 4096 - (0 if reg else 65536)) & 0xFFFFFFFF))
        if prev is not None: gs.append(I("@must t%d" % prev))
        if pre: gs.append(pre)
        gs += [J("buffer_load_dwordx4 v{r}, {SWD}, {wdo} offen offset:{o} lds", tag="d%d" % u, r=vWD[k], o=1024 * k) for k in range(4)]
        return gs
    def wd_reg(self, u, dl): return (160 + 16 * u if u < 2 else 16 * (u - 2) if u < 12 else 16 * u) + 4 * dl
    def T(self, u):
        gs = []
        if self.loc(u)[0] != (self.loc(u - 1)[0] if u else 1): gs += single(I("\n".join("v_xor_b32 v%d, 0x10000, v%d" % (r, r) for r in vDT)))
        gs.append(I("@must d%d" % u))
        for dl in range(4):
            for j4 in range(2):
                gs.append(I("ds_read_b64_tr_b16 %s, v%d offset:%d" % (A(self.wd_reg(u, dl) + 2 * j4, 2), vDT[dl], (self.loc(u) + (u % 4,))[2] * 4096 + j4 * 2048), tag="t%d" % u))
        return gs
    def DD(self, a, b): return [g for u in range(a, b) for g in self.D(u)]
    def TT(self, a, b): return [g for u in range(a, b) for g in self.T(u)]

    def gmap(self, gs, load):
        if not (self.ef == 2 and self.ffn): return gs
        def f(n):
            if 216 <= n < 232: return n + 24
            if n == 236: return 9
            if load and n in (232, 233): return n - 210
            if 232 <= n < 236: return n - 80
            if 240 <= n < 256: return n - 104
            return n
        def t(x):
            x = re.sub(r"v\[(\d+):(\d+)\]", lambda m: "@[%d:%d]" % (f(int(m.group(1))), f(int(m.group(2)))), x)
            return re.sub(r"\bv(\d+)", lambda m: "v%d" % f(int(m.group(1))), x).replace("@[", "v[")
        return [[Ins(t(i.text), i.tag, i.raw) for i in flat([g])] for g in gs]
    def g_loads(self): return self.gmap(self.g_loads_(), True)
    def g_calc(self): return self.gmap(self.g_calc_(), False)
    def g_store(self): return self.gmap([self.g_store_()], False)[0]
    def g_loads_(self):
        loc = self.o("gl", 1)
        return single(J(("s_lshl3_add_u32 {t0}, {xn}, {nt}" if loc else "s_lshl2_add_u32 {t0}, {nt}, {w}") + """
s_lshl_b32 {t0}, {t0}, 1
v_lshrrev_b32 v25, 5, v0
v_add_u32 v236, {t0}, v25
v_and_b32 v25, 3, v236
v_lshrrev_b32 v26, 2, v236
v_lshl_add_u32 v25, v25, 4, v26
v_and_b32 v233, 0x1f0, {l16b}
v_lshl_add_u32 v232, v25, 15, v233
v_lshl_add_u32 v232, {gb}, 10, v232
buffer_load_dwordx4 v[216:219], v232, {SX}, 0 offen offset:2048
buffer_load_dwordx4 v[220:223], v232, {SX}, 0 offen offset:2560
buffer_load_dwordx4 v[224:227], v233, {SGW}, 0 offen
buffer_load_dwordx4 v[228:231], v233, {SGW}, 0 offen offset:512""", tag="gld", gb=NM["b12" if loc else "bp"]))
    def g_calc_(self):
        g = I("@wait gld")
        if self.o("gr", 1):
            for h in range(2):
                x_, w_ = 216 + 4 * h, 224 + 4 * h
                for i in range(4):
                    g += J("v_lshlrev_b32 v{a}, 16, v{x}\nv_and_b32 v{a1}, {hi16}, v{x}\nv_lshlrev_b32 v{b}, 16, v{w_}\nv_and_b32 v{b1}, {hi16}, v{w_}", a=240 + 2 * i, a1=241 + 2 * i, b=248 + 2 * i, b1=249 + 2 * i, x=x_ + i, w_=w_ + i)
                g += I("\n".join("v_pk_mul_f32 %s, %s, %s" % (V(240 + 2 * i, 2), V(240 + 2 * i, 2), V(248 + 2 * i, 2)) for i in range(4)))
                g += self.pack(x_, 240)
            g += J("s_mov_b32 s3, 0x3f803f80")
            g += I("\n".join("v_dot2_f32_bf16 v%d, v%d, s3, 0" % (232 + i, 216 + i) for i in range(4)))
            g += I("\n".join("v_dot2_f32_bf16 v%d, v%d, s3, v%d" % (232 + i, 220 + i, 232 + i) for i in range(4)))
        else:
            g += I("\n".join("v_dot2_f32_bf16 v%d, v%d, v%d, 0" % (232 + i, 216 + i, 224 + i) for i in range(4)))
            g += I("\n".join("v_dot2_f32_bf16 v%d, v%d, v%d, v%d" % (232 + i, 220 + i, 228 + i, 232 + i) for i in range(4)))
        g += I("v_lshlrev_b32 v236, 2, v236\nv_add_f32 v232, v232, v233\nv_add_f32 v234, v234, v235\nv_add_f32 v232, v232, v234")
        for sh in (1, 2, 4, 8):
            g += I("v_add_f32_dpp v232, v232, v232 row_shr:%d row_mask:0xf bank_mask:0xf bound_ctrl:1" % sh)
        g += I("v_add_f32_dpp v232, v232, v232 row_bcast:15 row_mask:0xa bank_mask:0xf")
        rnd = I("v_cvt_pk_bf16_f32 v232, 0, v232") if self.o("gr", 1) else []
        g += rnd + I("v_mul_f32 v232, 0xbfb8aa3b, v232\nv_exp_f32 v232, v232\nv_add_f32 v232, 1.0, v232\nv_rcp_f32 v232, v232") + (I("v_cvt_pk_bf16_f32 v232, 0, v232") if rnd else [])
        return single(g)
    def g_store_(self):
        return J("s_lshl_b32 {t0}, {gb}, 8\ns_add_u32 {t0}, {t0}, {g}\ns_mov_b32 exec_lo, 0x80000000\ns_mov_b32 exec_hi, 0x80000000", g=WS_G, gb=NM["b12" if self.o("gl", 1) else "bp"]) + \
               J("buffer_store_dword v232, v236, {SWS}, {t0} offen sc1", tag="gst") + I("s_mov_b64 exec, -1")
    def c_loads(self, acc=False):
        return chunks(J(self.creg(acc, """s_cmp_eq_u32 {bp}, 0
s_cselect_b32 {t1}, 32, 64
s_cselect_b64 {mask}, 0xffff, 0
s_and_b32 {t0}, {w}, 1
s_lshl_b32 {t0}, {t0}, 4
v_lshrrev_b32 v27, 2, v0
v_add_u32 v27, {t0}, v27
v_mul_u32_u24 v27, {t1}, v27
v_add_u32 v27, {bp}, v27
v_cmp_eq_u32 vcc, 0, v27
v_sub_u32 v28, 0x800, v27
v_mov_b32 v26, 0x400
s_cmp_lt_u32 {w}, 2
s_cselect_b64 {m1}, -1, 0
v_cndmask_b32 v28, v28, v26, vcc
v_cndmask_b32 v27, v28, v27, {m1}
v_mul_u32_u24 v27, 514, v27
v_and_b32 v28, 48, {l16b}
s_lshl_b32 {t2}, {jb}, 6
s_sub_u32 {t2}, {t2}, {sh}
v_add3_u32 v20, v28, v27, {t2}""")))
    def c_fetch(self, arr):
        l = self.lab("ev"); srd = (SWR, SWI)[arr]
        g = [J("s_cmp_eq_u32 {sh}, 0") + J("s_cbranch_scc1 {l}\nbuffer_load_dword v{d}, v20, {srd}, 0 offen offset:16\n{l}:", raw=True, l=l, d=40 + arr, srd=srd),
             J("buffer_load_dwordx4 {r}, v20, {srd}, 0 offen", tag="cld", r=V(32 + 4 * arr, 4), srd=srd)]
        if not self.ffn: g.append(J("buffer_load_ushort v{d}, v27, {srd}, 0 offen offset:512", tag="cld", d=42 + arr, srd=srd))
        return g
    def creg(self, acc, t): return t
    def c_stage(self):
        if self.cin:
            g = J("s_lshl_b32 {t2}, {w}, 10\ns_add_u32 {t2}, {t2}, {stg}\nv_add_u32 v28, {t2}, {l16b}\ns_mov_b32 {t2}, 0x05040100\ns_mov_b32 {t3}, 0x07060302\n@must cld", stg=self.cstg)
            for arr in range(2):
                s_ = 32 + 4 * arr; d_ = 24 if arr == 0 else 32
                g += flat([J("v_alignbyte_b32 v{a}, v{b}, v{a}, {sh}", a=s_ + i, b=s_ + i + 1 if i < 3 else 40 + arr) for i in range(4)])
                g += J("v_perm_b32 v{d0}, v{s1}, v{s0}, {t2}\nv_perm_b32 v{d1}, v{s3}, v{s2}, {t2}\nv_perm_b32 v{d2}, v{s1}, v{s0}, {t3}\nv_perm_b32 v{d3}, v{s3}, v{s2}, {t3}",
                       d0=d_, d1=d_ + 1, d2=d_ + 2, d3=d_ + 3, s0=s_, s1=s_ + 1, s2=s_ + 2, s3=s_ + 3)
                g += I("ds_write_b128 v28, %s offset:%d" % (V(d_, 4), arr * 4096), tag="rtab")
            return single(g)
        g = J("""s_mul_i32 {t0}, {w}, 1280
s_add_u32 {t0}, {t0}, {stg}
v_lshrrev_b32 v27, 2, v0
v_lshl_add_u32 v28, v27, 4, {l16b}
v_add_u32 v28, {t0}, v28
s_mov_b32 {t2}, 0x05040100
s_mov_b32 {t3}, 0x07060302
s_mov_b32 s96, 0x11111111
s_mov_b32 s97, 0x11111111
@wait cld""", stg=self.cstg)
        for arr in range(2):
            s_, d_ = 32 + 4 * arr, 192 + 4 * arr
            g += flat([J("v_alignbyte_b32 v{a}, v{b}, v{a}, {sh}", a=s_ + i, b=s_ + i + 1 if i < 3 else 40 + arr) for i in range(4)])
            g += J("v_perm_b32 v{d0}, v{s1}, v{s0}, {t2}\nv_perm_b32 v{d1}, v{s3}, v{s2}, {t2}\nv_perm_b32 v{d2}, v{s1}, v{s0}, {t3}\nv_perm_b32 v{d3}, v{s3}, v{s2}, {t3}",
                   d0=d_, d1=d_ + 1, d2=d_ + 2, d3=d_ + 3, s0=s_, s1=s_ + 1, s2=s_ + 2, s3=s_ + 3)
            g += I("ds_write_b128 v28, %s offset:%d" % (V(d_, 4), arr * 5120), tag="cst")
            if not self.ffn: g += J("v_and_or_b32 v{d}, v{d}, {hi16}, v{q}", d=d_, q=42 + arr)
        if self.ffn: return single([x for x in g if "0x11111111" not in x.text])
        return single(g) + [J("s_mov_b64 exec, {m1}") + I("ds_write_b64 v28, v[192:193] offset:64\nds_write_b64 v28, v[196:197] offset:5184", tag="cst") + I("s_mov_b64 exec, -1")]
    def c_calc(self):
        g = J("""s_or_b32 {t1}, {w}, {jb}
s_cselect_b32 {t1}, 4, 2
s_lshl_b32 {t0}, {w}, 4
v_and_b32 v26, 3, v0
v_cmp_eq_u32 vcc, {t1}, v26
v_and_b32 v28, 1, v0
v_lshl_add_u32 v28, v28, 3, {t0}
v_lshrrev_b32 v27, 2, v0
v_mul_u32_u24 v27, 80, v27
v_cndmask_b32 v28, v28, 64, vcc
s_mov_b32 {t0}, {stg}
v_add3_u32 v27, v27, v28, {t0}""", stg=self.cstg)
        rs = 80; tb = 192
        if self.cin:
            rs = 64; tb = 152
            g = J("s_lshl4_add_u32 {t0}, {w}, {stg}\nv_and_b32 v28, 1, v0\nv_lshl_add_u32 v28, v28, 3, {t0}\nv_lshrrev_b32 v27, 2, v0\nv_lshl_add_u32 v27, v27, 6, v28", stg=self.cstg)
        for th in range(2):
            for arr in range(2):
                for side in range(2):
                    g += I("ds_read_b64_tr_b16 %s, v27 offset:%d" % (V(tb + ((th * 2 + arr) * 2 + side) * 2, 2), (arr * 64 + side * 32 + th * 16) * rs), tag="crd")
        q = I("@wait crd")
        for th in range(2):
            for r in range(4):
                e = th * 4 + r
                t = tb + 16 + (e % 2) * 4
                for n, (arr, side) in enumerate([(0, 0), (0, 1), (1, 0), (1, 1)]):
                    src = tb + ((th * 2 + arr) * 2 + side) * 2 + r // 2
                    q += J("v_and_b32 v{d}, {hi16}, v{s}" if r & 1 else "v_lshlrev_b32 v{d}, 16, v{s}", d=t + n, s=src)
                a_, b_, c_, d_ = CO + e, CO + 8 + e, CO + 16 + e, CO + 24 + e
                q += I("v_add_f32 v%d, v%d, v%d\nv_add_f32 v%d, v%d, v%d\nv_sub_f32 v%d, v%d, v%d\nv_sub_f32 v%d, v%d, v%d" % (
                    a_, t, t + 1, b_, t + 2, t + 3, c_, t + 3, t + 2, d_, t, t + 1))
                if e == 0:
                    q += J("""v_cndmask_b32 v{a2}, v{a}, v{t1_}, {mask}
v_cndmask_b32 v{b2}, v{b}, v{t3_}, {mask}
v_cndmask_b32 v{a}, v{a}, v{t0_}, {mask}
v_cndmask_b32 v{b}, v{b}, v{t2_}, {mask}
v_cndmask_b32 v{c}, v{c}, 0, {mask}
v_cndmask_b32 v{d}, v{d}, 0, {mask}""", a2=CA2, b2=CB2, a=a_, b=b_, c=c_, d=d_, t0_=t, t1_=t + 1, t2_=t + 2, t3_=t + 3)
        return chunks(g), single(q)

    GATE_LD = "buffer_load_dword v16, v17, %s, 0 offen sc1" % SDBG
    POLL_LD = "buffer_load_dword v16, v17, %s, s82 offen sc1" % SWS
    def gate_ld(self):
        return single(J("v_min_u32 {pa}, {n}, v0\nv_lshlrev_b32 {pa}, 2, {pa}", n=NCLR - 1) + I(self.GATE_LD, tag="poll"))
    def x1_addr(self):
        return single(J("""s_lshr_b32 {t0}, {jb}, 2
s_lshl_b32 {t0}, {t0}, 8
s_lshl_b32 {t1}, {w}, 15
s_add_u32 {t0}, {t0}, {t1}
s_add_u32 {wo1}, {t0}, {fl}
v_lshrrev_b32 {pa}, 3, v0
v_lshlrev_b32 {pa}, 12, {pa}
v_bfe_u32 v28, v0, 2, 1
v_lshl_add_u32 {pa}, v28, 7, {pa}""", fl=WS_FLAG + 28 * 128))
    def rp_reads(self):
        return [J("v_add_u32 v19, {a}, {l16b}", a=LDS_RPF)] + \
               [I("ds_read_b128 %s, v19 offset:%d" % (A((224 if f < 8 else 160) + 4 * f, 4), f * 1024), tag="rp") for f in range(16)]
    def flag_addr(self):
        return J("s_lshl_b32 {wo0}, {b12}, 5\ns_add_u32 {wo0}, {wo0}, {ni}\ns_lshl_b32 {wo0}, {wo0}, 7\ns_add_u32 {wo0}, {wo0}, {fl}", fl=WS_FLAG)
    def set_flag(self):
        return I("v_mov_b32 v24, 1\n@wait pub\ns_mov_b64 exec, 1") + J("buffer_store_dword v24, v0, {SWS}, {wo0} offen sc1") + I("s_mov_b64 exec, -1")

    def prologue(self):
        p = []
        if self.prof: p += I("%s s[100:101]" % self.clk(), raw=True)
        p += J("""s_load_dwordx16 s[48:63], s[0:1], 0
s_cmp_ge_u32 s2, 256
s_cbranch_scc1 L_end
s_load_dwordx4 s[64:67], s[0:1], 64
s_load_dwordx2 s[68:69], s[0:1], 80
s_getpc_b64 {m1}
L_pc:
v_lshlrev_b32 v24, 3, v0
v_readfirstlane_b32 {w}, v0
s_lshr_b32 {loc}, s2, 3
v_lshl_add_u32 v24, {loc}, 11, v24
v_min_u32 v24, L_end-L_pc, v24
global_load_dword v31, v24, {m1}
v_and_b32 v0, 63, v0
v_and_b32 {l16}, 15, v0
v_lshrrev_b32 {hi}, 4, v0
s_lshr_b32 {w}, {w}, 6
s_and_b32 {xcd}, s2, 7
s_and_b32 {l3}, {loc}, 3
s_lshr_b32 {nt}, {loc}, 2
s_lshr_b32 {xn}, {xcd}, 1
s_lshl_b32 {bp}, {xcd}, 2
s_add_u32 {bp}, {bp}, {l3}
s_and_b32 {b12}, {bp}, 7
s_lshl_b32 {b12}, {b12}, 2
s_add_u32 {b12}, {b12}, {w}
s_lshl_b32 s76, {b12}, 10
v_lshrrev_b32 v25, 3, v0
v_and_b32 v24, 7, v0
v_xor_b32 v24, v24, {hi}
v_lshlrev_b32 v24, 4, v24
v_lshl_add_u32 {x}, v25, 15, v24
v_xor_b32 v18, 0x40040, {x}
v_subrev_u32 v18, 0x400, v18
s_lshl_b32 {ring}, {w}, 14
s_add_u32 {ring}, {ring}, 0x10000""")
        if "probe" in self.kw:
            k = self.kw["probe"]
            p += I("s_waitcnt lgkmcnt(0) vmcnt(0)\ns_mov_b64 s[44:45], s[%d:%d]\ns_mov_b32 s46, 0x100000\ns_mov_b32 s47, 0x20000" % (48 + 2 * k, 49 + 2 * k))
            p += J("s_lshl_b32 s3, s2, 2\ns_add_u32 s3, s3, {w}\ns_lshl_b32 s3, s3, 7\nv_mov_b32 v26, 0\ns_memrealtime s[96:97]\ns_waitcnt lgkmcnt(0)")
            if "pbw" in self.kw:
                p += I("s_mov_b32 s46, 0x10000000\ns_lshl_b32 s3, s3, 7\ns_add_u32 s3, s3, %d\nv_lshlrev_b32 v26, 4, v0" % (self.kw["pbw"] << 20))
                for i in range(16):
                    op = "buffer_store_dwordx4 v[128:131], v26, s[44:47], s3 offen sc1" if self.o("pst", 0) else "buffer_load_dwordx4 v[%d:%d], v26, s[44:47], s3 offen" % (128 + 4 * i, 131 + 4 * i)
                    p += I(op + "\ns_add_u32 s3, s3, 1024")
                p += I("s_waitcnt vmcnt(0)")
            else:
                for i in range(8): p += I("buffer_load_dword v27, v26, s[44:47], s3 offen\ns_waitcnt vmcnt(0)\ns_add_u32 s3, s3, 0x20000")
            p += I("s_memrealtime s[98:99]\ns_waitcnt lgkmcnt(0)\ns_sub_u32 s98, s98, s96\ns_add_u32 s100, s100, s98")
        p += self.srd_const(SX, 2097152 + 2048)
        p += J("s_cmp_eq_u32 {nt}, 7\ns_cbranch_scc1 L_dft")
        return p
    def common2(self):
        p = J("v_lshlrev_b32 {l16b}, 4, v0\ns_lshl_b32 {lw}, {loc}, 2\ns_add_u32 {lw}, {lw}, {w}\ns_mul_i32 s3, {xcd}, 112\ns_add_u32 {lw}, {lw}, s3\ns_lshl_b32 {lw}, {lw}, 11\ns_mov_b32 {hi16}, 0xffff0000\ns_add_u32 {jb}, {nt}, 1\ns_and_b32 {jb}, {jb}, 7\ns_and_b32 {sh}, {bp}, 1\ns_lshl_b32 {sh}, {sh}, 1")
        for nm, lo, sz in ((SWS, 68, 0x10000000), (SDBG, 66, 256), (SWD, 60, 1792 * 1024), (SOUT, 64, 2097152), (SWR, 50, 2048 * 514), (SWI, 52, 2048 * 514), (SGW, 62, 1024)):
            p += self.srd(nm, lo, sz) + self.srd_const(nm, sz)
        return p

    def p12f(self):
        self.ffn = True; self.cin = self.o("cin", 0); self.cstg = LDS_R64I if self.cin else LDS_RPF
        def kadv(du):
            kr = self.o("kr", 6)
            if kr == 4: return single(J("s_xor_b32 {k}, {k}, 1" if du & 1 else "s_xor_b32 {k}, {k}, 1\ns_add_u32 {k}, {k}, 2\ns_and_b32 {k}, {k}, 7"))
            if kr == 5: return single(J("s_xor_b32 {k}, {k}, %d" % (du ^ (du - 1))))
            return single(J("s_add_u32 {k}, {k}, 1\ns_and_b32 {k}, {k}, 7"))
        def wl(du):
            gs = []
            if du == 1: gs += kadv(du)
            gs += single(J("s_mul_i32 {wo0}, {k}, {c}\ns_add_u32 {wo0}, {wo0}, {wb}\ns_add_u32 {wo1}, {wo0}, {c2}", c=64 * 3584, c2=32 * 3584 - 2048))
            gs.append(J("s_add_u32 m0, {lw4}, {o}", o=(du % 4) * 16384))
            for h in range(2):
                for mat in range(2):
                    gs.append(J("buffer_load_dwordx4 {vw}, {srd}, {so} offen offset:{o} lds", tag="w%d" % du, srd=(SWG, SWU)[mat], so=NM["wo%d" % h], o=(2 * h + mat) * 1024))
            return gs
        def xl(du):
            gs = []
            if du >= 2: gs += kadv(du)
            gs += single(J("v_lshl_add_u32 {xr}, {k}, 7, {x}\nv_lshl_add_u32 {xr2}, {k}, 7, v18"))
            for m in range(4):
                if m % 2 == 0: gs.append(J("s_add_u32 m0, {ring}, {o}", o=(du % 2) * 8192 + m * 2048))
                for e in range(2):
                    g = J("buffer_load_dwordx4 {r}, {SX}, s{so} offen offset:{o} lds", tag="x%d" % du, r=NM[("xr", "xr2")[e]], so=76 + m, o=((m & 1) * 2 + e) * 1024)
                    if du >= 2 and m == 0 and e == 0: g = I("@need xf%d" % (du - 2)) + g
                    gs.append(g)
            return gs
        def xf(du):
            return [I("@wait x%d" % du)] + [I("ds_read_b128 %s, v%d offset:%d" % (A((du % 4) * 32 + h * 16 + m * 4, 4), vXA[h], (du % 2) * 8192 + m * 2048), tag="xf%d" % du)
                                           for h in range(2) for m in range(4)]
        p = J("""s_bfe_u32 {t0}, {nt}, {mp}
s_lshl_b32 {t0}, {t0}, 19
s_add_u32 s76, s76, {t0}
s_xor_b32 s77, s76, 0x80000
s_xor_b32 s79, s76, 0x180000
s_xor_b32 s78, s76, 0x100000
s_add_u32 s76, s76, 0x800
s_add_u32 s78, s78, 0x800
s_lshl_b32 {k}, {xcd}, 2
s_add_u32 {k}, {k}, {xcd}
s_and_b32 {k}, {k}, {km}
s_mul_i32 {ni}, {xn}, 7
s_add_u32 {ni}, {ni}, {nt}
s_mul_i32 {wb}, {w}, {c}
s_lshl_b32 {t0}, {ni}, 7
s_add_u32 {wb}, {wb}, {t0}
v_mul_u32_u24 v24, 3584, v25
s_and_b32 {t0}, {w}, 1
s_lshl_b32 {t0}, {t0}, 1
v_and_or_b32 v25, {hi}, 1, {t0}
v_bfe_u32 v26, v0, 1, 2
v_xor_b32 v25, v25, v26
v_lshl_add_u32 v24, v25, 5, v24
v_and_b32 v25, 1, v0
v_lshl_add_u32 {vw}, v25, 4, v24
s_lshl_b32 {lw4}, {w}, 12""", c=8 * 3584, mp=(self.o("mp", 3).bit_length() << 16) | self.o("msh", 1), km=self.o("km", 6))
        kr = self.o("kr", 6)
        if kr == 4: p += J("s_lshr_b32 {t0}, {nt}, {sh}\ns_xor_b32 {t0}, {l3}, {t0}\ns_and_b32 {t0}, {t0}, 1\ns_add_u32 {k}, {k}, {t0}", sh=self.o("ksh", 2))
        if kr == 5: p += J("s_add_u32 {t0}, {l3}, {nt}\ns_and_b32 {t0}, {t0}, 3\ns_add_u32 {k}, {xcd}, {xn}\ns_and_b32 {k}, {k}, 1\ns_lshl2_add_u32 {k}, {k}, {t0}")
        if kr == 1: p += J("s_lshl_b32 {k}, {l3}, 1\ns_add_u32 {k}, {k}, {nt}\ns_and_b32 {k}, {k}, 7")
        if kr == 2: p += J("s_xor_b32 {t0}, {l3}, {nt}\ns_and_b32 {t0}, {t0}, 1\ns_lshl_b32 {t0}, {t0}, 2\ns_lshl_b32 {k}, {xcd}, 1\ns_add_u32 {k}, {k}, {xn}\ns_and_b32 {k}, {k}, 3\ns_add_u32 {k}, {k}, {t0}")
        if kr == 6: p += J("s_xor_b32 {t0}, {l3}, {nt}\ns_and_b32 {t0}, {t0}, 1\ns_lshl_b32 {k}, {xcd}, 2\ns_lshr_b32 {k}, {tab}, {k}\ns_and_b32 {k}, {k}, 3\ns_lshl2_add_u32 {k}, {t0}, {k}", tab=int(str(self.o("ktab", 12021220)), 16))
        if kr == 3: p += J("s_add_u32 {t0}, {l3}, {nt}\ns_and_b32 {t0}, {t0}, 3\ns_lshl_b32 {t0}, {t0}, 1\ns_add_u32 {k}, {xcd}, {xn}\ns_and_b32 {k}, {k}, 1\ns_add_u32 {k}, {k}, {t0}")
        p += self.srd_const(SWG, 512 * 3584) + self.srd_const(SWU, 512 * 3584 + 1024)
        w0 = wl(0); x0 = xl(0)
        p += flat(w0[:4] + x0[:2]) + self.srd(SWG, 56, 0) + self.srd(SWU, 58, 0, back=1024) + self.srd(SX, 48, 0, back=2048)
        xt = J("s_mul_i32 s3, {nt}, {c}\ns_add_u32 s3, s3, {b12}\ns_lshl_b32 s3, s3, 10\nv_lshrrev_b32 v26, 2, v0\nv_min_u32 v26, 9, v26\nv_lshlrev_b32 v26, 15, v26\nbuffer_load_dword a173, v26, {SX}, s3 offen offset:2432", c=9 * 32)
        xtp = self.o("xt3", 0)
        p += flat(w0[4:]) + (xt if xtp == 1 and False else []) + flat(x0[2:]) + (xt if xtp == 1 else [])
        p += self.common2()
        p += self.stamp(0)
        l = self.lab("noclr")
        p += J("s_sub_u32 s3, s2, 128\ns_cmp_lt_u32 s3, {n}\ns_cselect_b32 {clr}, {w}, 4", n=NCLR) + I("\n".join("v_accvgpr_write_b32 a%d, 0" % (180 + i) for i in range(4)))
        clear = J("s_cmp_eq_u32 {clr}, 4") + J("""s_cbranch_scc1 {l}
s_lshl2_add_u32 s3, s2, {w}
s_lshl_b32 s3, s3, 10
s_add_u32 s3, s3, {fl}
buffer_store_dwordx4 a[180:183], {l16b}, {SWS}, s3 offen sc1
{l}:""", raw=True, l=l, fl=WS_FLAG - 128 * 4096)
        st = [J("""v_lshrrev_b32 v24, 1, {l16}
v_xor_b32 v24, v24, {hi}
v_lshlrev_b32 v24, 4, v24
v_lshl_add_u32 v24, {l16}, 7, v24
v_add_u32 v22, {ring}, v24
v_xor_b32 v23, 64, v22
v_lshlrev_b32 v24, 12, {hi}
v_bfe_u32 v25, v0, 2, 2
v_lshl_add_u32 v24, v25, 7, v24
v_and_b32 v25, 3, v0
v_lshl_add_u32 v24, v25, 3, v24
v_bfe_u32 v25, v0, 3, 2
v_lshl_add_u32 v6, v25, 5, v24
v_xor_b32 v7, 32, v6
v_xor_b32 v8, 64, v6
v_xor_b32 v9, 0x60, v6""")]
        cl, gl = self.c_loads() + self.c_fetch(0) + self.c_fetch(1), self.g_loads()
        cpos = self.o("cpos", 2)
        gwt = [J("buffer_load_dword a171, {l16b}, {SGW}, 0 offen")]
        rip = self.rip = self.o("rip", 1) and self.o("x1late", 0)
        st = single(st) + cl[:-4] + self.gen_R(0, 128) + ([] if rip else self.gen_R(1, 160)) + (self.gen_R(2, 192) if self.o("r2p", 0) == 1 else [])
        l1 = ([xt] if xtp == 2 else []) + wl(1) + ([xt] if xtp == 3 else []) + xl(1); n1 = (xtp >= 2) +  self.o("n1", 15) - (self.o("kr", 6) in (4, 5))
        p += flat(weave(st, l1[:n1], self.o("l1pos", 60 if rip else 130), len(st)))
        p += I("@wait w0 x0\ns_barrier")
        p += self.stamp(1)
        units = {0: "E0 L0 E1 L1 E2 L2 E3 E4 L3 E5 E6 L4 E7 L5 L6 L7", 1: "E0 L0 E1 L1 E2 L2 E3 L3 E4 E5 L4 E6 E7 L5 L6 L7",
                 2: "E0 L0 E1 L1 E2 L2 E3 L3 E4 E5 L4 E6 L5 E7 L6 L7", 3: "E0 L0 E1 L1 E2 L2 E3 L3 E4 L4 E5 L5 E6 E7 L6 L7"}[self.o("us", 1)].split()
        seq = [(2 * int(u[1]) + h, tau + (4 if u[0] == "L" else 0)) for u in units for h in range(2) for tau in range(4)]
        U = dict((u, 32 * i) for i, u in enumerate(units))
        LA = 5
        nm = self.o("nm", 0); km = 128 - 8 * nm
        home = list(range(0, 32, 4)) + list(range(176, 192, 4)) + [128 + 4 * i for i in range(4)]
        fr = lambda k: 128 + 4 * (k % 8) if k < km else home[k - km]
        def rd(k):
            n, tau = seq[k]
            off = ((n // 2) % 4) * 16384 + ((n & 1) * 2 + (tau & 1)) * 1024
            return [I("ds_read_b64_tr_b16 %s, v%d offset:%d" % (A(fr(k) + 2 * j4, 2), vWT[tau // 2], off + 512 * j4), tag="f%d" % k) for j4 in range(2)]
        x0 = xf(0)
        p += flat(rd(0) + x0[:5] + rd(1) + rd(2) + x0[5:] + rd(3) + rd(4))
        mf = []
        for k, m in [(k, m) for k in range(km) for m in range(4)] + [(k, m) for m in range(4) for k in range(km, 128)]:
                n, tau = seq[k]
                acc = V(128 + (tau * 4 + m) * 4, 4)
                mf.append(I("%s %s, %s, %s, %s" % (MF, acc, A(fr(k), 4), A(((n // 2) % 4) * 32 + (n & 1) * 16 + m * 4, 4), acc if n else "0")))
        G = Gaps(mf)
        for k in range(128):
            if k + LA < km:
                r = rd(k + LA); G.put(4 * k, r[0]); G.put(4 * k + 2, r[1])
            if k % 2 == 1 and k + 1 < km: G.put(4 * k + 3, I("@wait f%d" % (k + 2)))
        if nm:
            assert self.o("nin", 1) <= 1 and self.o("tep", 2) == 2
            n_a = min(8 * nm, 12)
            G.stream([g for k in range(km, km + n_a) for g in rd(k)], 4 * km - (30 if nm == 1 else 58), 4 * km - (5 if nm == 1 else 14))
            if nm == 2: G.stream([g for k in range(km + 12, 128) for g in rd(k)], 4 * km - 13, 4 * km - 2, spread=False)
            G.put(4 * km - 1, I("@must f%d" % (km + n_a - 1)))
            if nm == 2: G.put(4 * km + 10, I("@must f127"))
        bar = {}
        for du in range(1, 8):
            bar[du] = U["E%d" % du] - 4 * LA - 1
            G.put(bar[du], I("@wait w%d rtab\ns_barrier" % du))
        lead = G.stream(l1[n1:], 0, 12, spread=False) if l1[n1:] else 0
        aa = [[0, 52, 104, 156, 208, 260], [0, 60, 118, 172, 224, 276], [0, 64, 124, 180, 234, 288], [0, 64, 128, 192, 250, 306], [0, 64, 128, 192, 256, 320], [0, 46, 110, 172, 230, 286], [0, 46, 104, 164, 222, 278]][self.o("aa", 2)]
        aa = dict(zip(range(2, 10), aa + [aa[-1] + 54, aa[-1] + 108]))
        xfe = {}; xfs = {}; span = {}
        for du in range(1, 8):
            e = min(aa[du + 2], U["E%d" % du]) - 2
            assert du < 4 or e - 18 >= U["L%d" % (du - 4)] + 32
            xfe[du] = G.stream(xf(du), e - 18, e); xfs[du] = e - 18
        last = lead
        for du in range(2, 8):
            a0 = max(aa[du], last + 1)
            last = G.stream(([clear] if du == self.o("clrdu", 2) else []) + xl(du), a0, a0 + (self.o("xs", 16) if self.o("xs0", 3) <= du <= self.o("xsd", 4) else 36))
            w0_ = last + 1
            if du >= 4: w0_ = max(w0_, min(b for b in bar.values() if b >= U["L%d" % (du - 4)] + 32) + 1)
            tr_ = {self.o("tdu", 4): [0]}.get(du, [])
            cd = self.o("cdu", 2)
            ex = [] if cpos != 2 else cl[-4:-2] + gwt if du == cd else cl[-2:] if du == cd + 1 else []
            if cpos == 3 and du == cd: ex = cl[-4:] + gwt
            last = G.stream(wl(du) + ex + [g for r in tr_ for g in self.touch(r)] + (self.touch3() if du == self.o("t3du", 6) else []) + (self.keep(du) if du == self.o("ka", 9) else []) + (self.retouch() if du == 7 else []) + (self.pretouch(178, 28) if du == self.o("ptd", 2) else []), w0_, w0_ + (self.o("wsp", 10) if self.o("xs0", 3) <= du <= self.o("xsd", 4) else 16) + 4 * len(tr_))
            assert last < bar[du] - 4, (du, last, bar[du])
            span[du] = (a0 if du > 2 else 0, last)
        vend = last
        l = self.lab("noann")
        ann = J("s_cmp_lg_u32 {clr}, 0") + J("""s_cbranch_scc1 {l}
v_mov_b32 v27, 1
s_lshl_b32 s3, s2, 2
s_sub_u32 s3, s3, 512
s_mov_b64 exec, 1
buffer_store_dword v27, v0, {SDBG}, s3 offen sc1
s_mov_b64 exec, -1
{l}:""", raw=True, l=l)
        G.put(bar[self.o("clrdu", 2)] + 2, ann)
        G.stream(self.rp_reads()[:9 if rip else 17], 130, 230)
        e0 = U["E7"] + 32
        e = G.stream(self.gate_ld() + (cl[-4:] if cpos == 0 else []), vend + 1, vend + 12)
        e1 = vend
        d0 = max(e, e1, xfe[6] + 4, vend + self.o("d0gap", 10))
        e = G.stream(self.D(0, I("@need xf6")) + self.D(1), d0, d0 + 32)
        d2 = max(e + 1, xfe[7] + 4)
        e = G.stream(self.D(2, I("@need xf7")) + self.D(3), d2, d2 + 32)
        G.stream(single(J("s_bfe_u32 {t0}, {nt}, {mp}\ns_lshl2_add_u32 {t2}, {b12}, {t0}\ns_lshl_b32 {t2}, {t2}, 5\ns_add_u32 {t2}, {t2}, {ni}\ns_lshl_b32 {t2}, {t2}, 11", mp=(self.o("mp", 3).bit_length() << 16) | self.o("msh", 1)) + self.flag_addr()) + self.setupA() +
                 [I("@wait poll") + self.spin(self.GATE_LD)] + self.x1_addr(), e1 + 1, min(e0, self.o("xp", 492) + 30))
        late1 = self.o("x1late", 0)
        if not late1:
            G.put(self.o("xp", 492), I(self.POLL_LD, tag="poll"))
            xc = self.o("xc", 0)
            G.stream(single(self.x1_pre()[:-1]), (xc or 511) - 36, (xc or 511) - 1)
            if xc: G.put(xc, I("@wait poll") + self.x1_pre()[-1:] + self.x1_fetch())
        nin = self.o("nin", 1)
        t0_ = max(e + 1, U["L4"] + 32 if nin > 2 else 0, d0 + self.o("t0gap", 70))
        t0_ = min(t0_, 470)
        G.stream(self.TT(0, nin) + self.DD(4, 4 + nin), t0_, min(506, (self.o("xc", 0) or 999) - 2, self.o("tend", 440)))
        gs_ = 18 - self.o("gsplit", 5)
        bulk = self.o("bulk", 0)
        if bulk:
            gs_ = 18; gp = self.gen_G(42, True); b1 = self.o("b1", 6); bo = self.o("bo", 2)
            stall = lambda du: min(bar[du], xfs[du]) - bo
            G.put(stall(1), flat(gp[:b1])); G.put(stall(2), flat(gp[b1:]))
            if self.o("r2p", 0) == 2: G.put(stall(3), flat(self.gen_R(2, 42)))
            G.stream(chunks(self.wd_setup()), 200, vend)
        elif self.o("fs", 0):
            q = (self.gen_R(2, 42) if self.o("r2p", 0) == 2 else []) + chunks(self.wd_setup()) + chunks(self.gen_G(42, False)[:gs_])
            e = 0
            for du, n in ((2, self.o("fs", 0)), (3, self.o("fs3", 0))):
                a_, b_ = span[du]
                for k, g in enumerate(q[:n]): G.put(a_ + k * (b_ - a_) // n, g)
                q = q[n:]
                if du == 2: m_ = self.o("fm", 20); G.stream(q[:m_], b_, span[3][0], spread=False); q = q[m_:]
            n4 = self.o("fs4", 0)
            if n4 or self.cin:
                m_ = self.o("fm", 20); G.stream(q[:m_], span[3][1], span[4][0], spread=False); q = q[m_:]
                q4 = q[:n4] + (self.c_stage() if self.cin else []); q = q[n4:]; a_, b_ = span[4]
                for k, g in enumerate(q4): G.put(a_ + k * (b_ - a_) // len(q4), g)
                if q: G.stream(q, self.o("gls", b_), e0, spread=False)
            else: G.stream(q, span[3][1] if self.o("fs3", 0) else span[3][0], e0, spread=False)
        elif self.o("ge", 0):
            ge = self.o("ge", 0); gn = self.gen_G(42, False)
            G.stream(chunks(self.wd_setup()) + chunks(gn[:ge]), 4, self.o("gee", 128), spread=False)
            if gs_ > ge: G.stream(chunks(gn[ge:gs_]), self.o("gls", 340), 500, spread=False)
        else:
            if self.cin: G.stream(self.c_stage(), self.o("cs", 200), self.o("cs", 200) + 30)
            G.stream(chunks(self.wd_setup()) + chunks(self.gen_G(42, False)[:gs_]), 4, self.o("gend", e0), spread=False)
        def epi(u, m, pk):
            g0, u0, g1_, u1 = [128 + ((4 * u + k) * 4 + m) * 4 for k in range(4)]
            g = []
            for gg in (g0, g1_): g += I("\n".join("v_max_f32 v%d, 0, v%d" % (gg + r, gg + r) for r in range(4)))
            for gg, uu in ((g0, u0), (g1_, u1)):
                if pk: g += I("v_pk_mul_f32 %s, %s, %s\nv_pk_mul_f32 %s, %s, %s" % (V(gg, 2), V(gg, 2), V(uu, 2), V(gg + 2, 2), V(gg + 2, 2), V(uu + 2, 2)))
                else: g += I("\n".join("v_mul_f32 v%d, v%d, v%d" % (gg + r, gg + r, uu + r) for r in range(4)))
            g += cvt(u0, g0, g0 + 1) + cvt(u0 + 1, g0 + 2, g0 + 3) + cvt(u0 + 2, g1_, g1_ + 1) + cvt(u0 + 3, g1_ + 2, g1_ + 3)
            return J("s_xor_b32 {t3}, {t2}, {o}", o=u * 1024 + m * 65536) + g + J("buffer_store_dwordx4 {r}, {l16b}, {SWS}, {t3} offen sc1", tag="pub" if u else "pue", r=V(u0, 4))
        e_ = G.stream(single([epi(0, m, False) for m in range(4)]), e0 + 2, min(4 * km + 8 * nm, e0 + self.o("espan", 56)))
        for m in range(3 if nm else 0):
            a_ = 4 * km + 8 * nm * (m + 1) + 1
            G.stream(single(epi(1, m, False)), max(a_, e_ + 1), a_ + 8 * nm - (1 if m == 2 else 0), spread=False)
        if self.ef:
            l = self.lab("noe")
            self.eflag = (I("@must pue") + J("s_barrier\ns_cmp_lg_u32 {w}, 0") + J("""s_cbranch_scc1 {l}
s_lshl3_add_u32 s3, {b12}, {ni}
s_lshl_b32 s3, s3, 7
s_add_u32 s3, s3, {ef}
v_mov_b32 v24, 1
s_mov_b64 exec, 1
buffer_store_dword v24, v0, {SWS}, s3 offen sc1
s_mov_b64 exec, -1
{l}:""", raw=True, l=l, ef=WS_EF))
            if self.o("efp", 509) < 512: G.put(self.o("efp", 509), self.eflag)
        for i in range(8): G.put(64 * i, self.stamp(i, 1))
        G.put(480, self.stamp(8, 1)); G.put(511, self.stamp(9, 1))
        p += I("; ---- phase 2 main loop") + G.out() + I("; ---- late half of h, phase 3")
        p += self.stamp(2)
        ep = [epi(1, m, True) for m in range(3 if nm else 0, 4)]
        if self.o("strip", 0) & 32768: ep = ep[:2]
        mid = self.o("mid", 1)
        if not late1 and not self.o("xc", 0): ep.insert(min(mid, len(ep)) if not nm else (mid == 4), self.x1_pre()[-1:] + self.x1_fetch())
        if self.ef and self.o("efp", 509) >= 512: ep.insert(self.o("efp", 509) - 512, self.eflag)
        tpos = self.o("tep", 2); tt = self.TT(nin, 4) if tpos == 0 else []
        if self.cin: ep.append(flat(self.c_calc()[0]))
        p += flat(weave([[]] + ep, tt) if mid else weave(ep, tt))
        if late1: p += I(self.POLL_LD, tag="poll")
        elif self.ef: p += self.eadr() + (I(self.POLL_LD, tag="poll") if not self.o("epl", 0) else [])
        p += self.stamp(3) + self.stamp(0, 3)
        n1_ = min(8, 4 + nin + self.o("nw1", 0))
        p += ([] if self.cin else flat(self.c_stage())) + self.stamp(1, 3) + flat(weave(self.gen_G(42, True)[gs_:] + gl, self.DD(4 + nin, n1_)))
        if tpos == 1: p += flat(self.TT(nin, 4))
        return p + self.tail(True, nin if tpos == 2 else 4, n1_)

    def p12d(self):
        self.ffn = False; self.cstg = LDS_RPF; self.rip = 0; self.cin = 0
        def dma(s_):
            Q, m = divmod(s_, 4)
            gs = [J("s_add_u32 m0, {ring}, {o}", o=m * 4096)]
            if m == 0:
                gs = single(J("v_lshl_add_u32 {xr}, {k}, 7, {x}\nv_lshl_add_u32 {xr2}, {k}, 7, {vw}")) + gs
                if Q: gs = single(J("s_add_u32 {k}, {k}, 1\ns_and_b32 {k}, {k}, 3")) + gs
            for hf in range(2):
                for e in range(2):
                    g = J("buffer_load_dwordx4 {r}, {srd}, s{so} offen offset:{o} lds", tag="x_%d" % s_, r=NM[("xr", "xr2")[e]], srd=(SX, SWG)[hf], so=76 + m, o=(2 * hf + e) * 1024)
                    if Q and not hf and not e: g = I("@need xf_%d" % (s_ - 4)) + g
                    gs.append(g)
            return gs
        def raw(s_):
            return [I("@must x_%d" % s_)] + [I("ds_read_b128 %s, v%d offset:%d" % (A(16 * (s_ % 2) + 4 * f, 4), vWT[f], (s_ % 4) * 4096), tag="xf_%d" % s_) for f in range(4)]
        def fold(s_):
            return [I("%s %s, v[20:23], %s, 0" % (MF, V(48 + 4 * f, 4), A(16 * (s_ % 2) + 4 * f, 4))) for f in range(4)]
        def fcv(s_):
            return [cvt(32 + (s_ % 2) * 8 + q, 48 + 2 * q, 49 + 2 * q) for q in range(8)]
        def trd(Q):
            return [I("ds_read_b128 %s, %s offset:%d" % (A(64 + 64 * (Q % 2) + 4 * f, 4), NM["l16b"], Q * 16384 + f * 1024), tag="tq%d" % Q) for f in range(16)]
        p = I("@reset") + J("""s_add_u32 s76, s76, 0x800
s_add_u32 s77, s76, 0x80000
s_add_u32 s78, s76, 0x100000
s_add_u32 s79, s76, 0x180000
s_add_u32 {ni}, {xn}, 28
s_and_b32 {k}, {xcd}, {km}
s_mov_b32 {wb}, {k}
v_mov_b32 {vw}, v18
v_lshlrev_b32 {l16b}, 4, v0""", km=self.o("km", 6) & 2)
        tg, sel, late = self.gen_T()
        cl = self.c_loads(True)
        npk = self.o("npk", 0)
        p += self.srd_const(SWG, 2097152 + 3584) + flat(tg[:npk]) + I("s_waitcnt lgkmcnt(0)") + self.srd(SX, 48, 0, back=2048) + self.srd(SWG, 48, 0, back=3584)
        p += flat([dma(m) for m in range(3)])
        ntp = self.o("ntp", 8); tl = tg[1 + 2 * ntp:]; tg = tg[npk:1 + 2 * ntp]
        place(tg, len(tg) - self.o("d3", 1), dma(3))
        if self.o("pm", 0) == 4:
            p += self.common2()
            for i, k in enumerate((0, 1, 2, 3, 4, 5, 6, 7, 8)): place(tg, k, self.stamp(i, 4))
        p += flat(tg) + sel + (self.common2() if self.o("pm", 0) != 4 else []) + self.stamp(0) + self.stamp(9, 4)
        p += I("@waitlg0\ns_barrier") + self.stamp(1)
        t0_ = trd(0)
        p += flat(t0_[:8] + raw(0) + t0_[8:] + fold(0) + dma(4) + raw(1) + fcv(0))
        def mm(s_, h, tau):
            Q, m = divmod(s_, 4); acc = V(128 + (tau * 4 + m) * 4, 4)
            return I("%s %s, %s, %s, %s" % (MF, acc, V(32 + (s_ % 2) * 8 + 4 * h, 4), A(64 + 64 * (Q % 2) + (h * 8 + tau) * 4, 4), acc if Q or h else "0"))
        mf = []; at = {}
        for s_ in range(15):
            at[s_] = len(mf); mf += [mm(s_, 0, tau) for tau in range(6)]
            at["fold", s_ + 1] = len(mf); mf += fold(s_ + 1) + [mm(s_, 0, tau) for tau in (6, 7)] + [mm(s_, 1, tau) for tau in range(8)]
        at[15] = len(mf); mf += [mm(15, h, 4 * g + t) for g in range(2) for h in range(2) for t in range(4)]
        def s2(t):
            return [I("%s %s, %s, %s, %s" % (MF, V(128 + 16 * t + 4 * sg, 4), V(64 + 8 * t + 4 * v, 4), A(224 + (2 * sg + v) * 4, 4), V(128 + 16 * t + 4 * sg, 4) if v else "0"))
                    for v in range(2) for sg in range(4)]
        for t in range(8):
            at["s2", t] = len(mf); mf += s2(t)
        G = Gaps(mf)
        for s_ in range(1, 16):
            f = at["fold", s_]
            if s_ > 1: G.stream(raw(s_), f - self.o("rawa", 11), f - 4, spread=False)
            G.put(f - 1, I("@wait xf_%d" % s_))
            G.stream(fcv(s_), f + 6, f + 12, spread=False)
            if s_ + 4 < 16: G.stream(dma(s_ + 4) + (self.pretouch(46, 12) if s_ == 2 else []), f, f + 8)
        for Q in range(1, 4):
            G.stream(trd(Q), at[4 * Q - 4] + 2, at[4 * Q] - 8); G.put(at[4 * Q] - 1, I("@wait tq%d" % Q))
        G.stream(single(J("s_mul_i32 {wb}, {wb}, 0x40004000") + flat([J("v_xor_b32 v{r}, {wb}, v{r}", r=20 + i) for i in range(4)])), at["fold", 7] + 4, at["fold", 8] - 2, spread=False)
        for Q in range(ntp // 2, 4):
            G.stream(single(tl[4 * Q - 2 * ntp:4 * Q - 2 * ntp + 4]), at[4 * Q - 8] + 1, at[4 * Q - 4] - 6)
            G.put(at[4 * Q - 4] + 1, I("@must ttab%d\ns_barrier" % Q))
        e = G.stream((cl[:-4] if self.o("dcs", 16) < 16 else []) + single(late), 2 if ntp == 8 else at[8], at[12] + 6)
        rr = [I("@wait r64f\ns_barrier"), J("v_add_u32 v24, {a}, {l16b}", a=LDS_STG)] + [I("ds_read_b128 %s, v24 offset:%d" % (A(224 + 4 * f, 4), f * 1024)) for f in range(8)]
        G.stream(rr, e + 6, at[15])
        pre = J("""v_lshrrev_b32 v26, 2, {l16}
v_lshlrev_b32 v26, 17, v26
v_lshl_add_u32 v26, {hi}, 6, v26
v_and_b32 v25, 3, v0
v_lshl_add_u32 {xr}, v25, 4, v26
s_lshr_b32 s76, {xn}, 1
s_lshl_b32 s76, s76, 7
s_add_u32 s76, s76, {b12}
s_and_b32 {t0}, {xn}, 1
s_lshl1_add_u32 s76, s76, {t0}
s_lshl_b32 s76, s76, 8
s_add_u32 s76, s76, {x1}
s_add_u32 s77, s76, 0x80000
s_add_u32 s78, s76, 0x100000
s_add_u32 s79, s76, 0x180000""", x1=WS_X1) + self.flag_addr()
        G.stream(single(pre), e + 1, at[15])
        G.stream(self.gate_ld(), at["s2", 0] + 8, at["s2", 2])
        def cv(t, m): return [cvt(64 + 8 * t + 2 * m + i, 128 + 16 * t + 4 * m + 2 * i, 129 + 16 * t + 4 * m + 2 * i) for i in range(2)]
        for m in range(3):
            G.stream([g for t in range(8) for g in cv(t, m)], at[13 + m] + 1, at[13 + m] + (19 if m < 2 else 11), spread=False)
        G.stream([g for t in range(4) for g in cv(t, 3)], at[15] + 10, at["s2", 0] + 2, spread=False)
        G.stream([g for t in range(4, 8) for g in cv(t, 3)], at["s2", 0] + 3, at["s2", 2], spread=False)
        def st(tp):
            gs = []
            for sg in range(4):
                o = 32 + 16 * (tp % 2) + 4 * sg; d0 = 128 + 32 * tp + 4 * sg; d1 = d0 + 16
                gs += [cvt(o, d0, d0 + 1), cvt(o + 1, d0 + 2, d0 + 3), cvt(o + 2, d1, d1 + 1), cvt(o + 3, d1 + 2, d1 + 3),
                       J("buffer_store_dwordx4 {r}, {xr}, {SWS}, s{so} offen sc1", tag="pub", r=V(o, 4), so=76 + sg)]
                if tp < 3: gs.append(I("s_add_u32 s%d, s%d, 16384" % (76 + sg, 76 + sg)))
            return gs
        for tp in range(3):
            G.stream(st(tp), at["s2", 2 * tp + 2] + 1, at["s2", 2 * tp + 2] + 16, spread=False)
        for i in range(10): G.put(min(40 * i, len(G) - 1), self.stamp(i, 1))
        p += I("; ---- phase 1 main loop") + G.out() + I("; ---- tables, phase 3")
        p += self.stamp(2)
        p += flat(st(3))
        p += self.stamp(3)
        p += self.spin(self.GATE_LD)
        p += self.wd_setup() + flat(self.gen_R(0, 128))
        p += self.set_flag()
        p += self.stamp(4)
        if self.o("dcs", 16) < 16: p += I("\n".join("v_accvgpr_read_b32 v%d, a%d" % (32 + i, 32 + i) for i in range(10)))
        else: p += flat(self.c_loads() + self.c_fetch(0) + self.c_fetch(1))
        p += flat(self.gen_R(1, 160))
        p += I("@waitlg0\ns_barrier")
        nd = self.o("dnd", 2)
        p += flat(weave(self.rp_reads() + self.x1_addr() + self.setupA(), self.DD(0, nd)))
        p += I("@wait rp\ns_barrier")
        p += flat(self.g_loads() + self.c_stage())
        p += I(self.POLL_LD, tag="poll")
        return p + self.tail(False, 0, nd)

    def touch(self, r):
        if r >= self.o("touch", 1): return []
        gs = [I("v_lshlrev_b32 v17, 5, v0")] if r == 0 else [J("s_add_u32 {lw}, {lw}, 0x38000"), J("s_sub_u32 s3, {lw}, 0x1c0000\ns_cselect_b32 {lw}, {lw}, s3")]
        return gs + [J("buffer_load_dword a{d}, v17, {SWD}, {lw} offen", d=160 + r)]
    def touch3(self):
        if not self.o("touch3", 1): return []
        return [J("s_lshr_b32 s3, s2, 3\ns_lshl2_add_u32 s3, s3, {w}\ns_lshl_b32 s3, s3, 14"), J("v_and_b32 v28, 60, v0"), J("v_lshlrev_b32 v28, 8, v28"),
                J("buffer_load_dword a172, v28, {SWD}, s3 offen offset:384")]
    def pretouch(self, d, r):
        pt = self.o("pt", 0); gs = []
        if pt & 1: gs += single(J("v_lshrrev_b32 v{r}, {a}, v0\nv_lshlrev_b32 v{r}, {b}, v{r}\ns_mov_b32 s3, 0x10f000\nbuffer_load_dword a{d}, v{r}, {SWS}, s3 offen", r=r, d=d, a=self.o("pta", 3), b=18 + self.o("pta", 3)))
        if pt & 4:
            g = self.o("ptg", 16); n = (17 << 20 >> g) // 128
            gs += single(J("v_min_u32 v{r}, {n}, v0\nv_lshlrev_b32 v{r}, {b}, v{r}\ns_lshr_b32 s3, s2, 3\ns_lshl2_add_u32 s3, s3, {w}\ns_lshl_b32 s3, s3, {g}\nbuffer_load_dword a{d}, v{r}, {SWS}, s3 offen offset:3968", r=r, d=d, n=n, b=g + 7, g=g))
        if pt & 2: gs += single(J("v_lshlrev_b32 v{r}, 19, {hi}\nbuffer_load_dword a{d}, v{r}, {SOUT}, 0 offen", r=r, d=d + 1))
        return gs
    def keep(self, du):
        sh = self.o("ksz", 5)
        if self.o("ksrc", 0) == 2: return [I("s_sleep %d" % sh)]
        if self.o("ksrc", 0) == 0:
            return single(J("s_lshl2_add_u32 s3, s2, {w}\ns_lshl_b32 s3, s3, {a}\ns_add_u32 s3, s3, {o}\nv_lshlrev_b32 v28, {b}, v0\nbuffer_load_dword a184, v28, {SWS}, s3 offen", o=32 << 20, a=sh + 6, b=sh))
        return chunks(J("s_lshr_b32 s3, s2, 3\ns_lshl2_add_u32 s3, s3, {w}\ns_lshl_b32 s3, s3, 13\nv_lshlrev_b32 v28, {b}, v0\nv_add_u32 v28, s3, v28\ns_and_b32 s3, {bp}, {m}\ns_cselect_b32 s3, 0xe0000, 0\nbuffer_load_dword a184, v28, {SWD}, s3 offen", b=sh, m=self.pair))
    def retouch(self):
        if not self.o("retouch", 1): return []
        l = self.lab("pc")
        return [J("s_getpc_b64 {m2}\n{l}:\ns_lshr_b32 s3, s2, 3\ns_lshl_b32 s3, s3, 2", l=l)] + single(J("""s_add_u32 s3, s3, {w}
s_lshl_b32 s3, s3, 9
v_lshl_add_u32 v28, v0, 3, s3
v_min_u32 v28, L_end-{l}, v28
global_load_dword a170, v28, {m2}""", l=l))

    def x1_pre(self):
        return J("""s_lshr_b32 {t0}, {bp}, 1
s_lshl3_add_u32 {t0}, {t0}, {jb}
s_lshl2_add_u32 {t0}, {t0}, {w}
s_lshl_b32 {t0}, {t0}, 7
s_and_b32 {t1}, {bp}, 1
s_add_u32 {t0}, {t0}, {t1}
s_lshl_b32 {t0}, {t0}, 5
s_add_u32 {t0}, {t0}, {x1}
v_and_b32 v26, 62, v0
v_lshl_add_u32 v26, v26, 4, {l16b}
v_add_u32 v25, 0x400, v26
s_lshl_b32 {t1}, {w}, 11
s_add_u32 m0, {t1}, {stg}""", x1=WS_X1, stg=LDS_STG)

    def eadr(self):
        return J("""s_xor_b32 {t1}, {bp}, {m}
s_lshr_b32 {t1}, {t1}, 2
s_lshl_b32 {t1}, {t1}, 6
s_add_u32 {t1}, {t1}, {rot}
s_add_u32 {t1}, {t1}, 1
s_lshr_b32 {t1}, {t1}, 1
s_lshl_b32 {t1}, {t1}, 7
s_add_u32 {wo1}, {t1}, {ef}
v_min_u32 {pa}, 2, {hi}
v_lshlrev_b32 {pa}, 7, {pa}""", m=self.pair, ef=WS_EF)
    def x1_fetch(self):
        return self.spin(self.POLL_LD) + J("buffer_load_dwordx4 v26, {SWS}, {t0} offen sc1 lds\nbuffer_load_dwordx4 v25, {SWS}, {t0} offen offset:1024 sc1 lds", tag="x1") + self.stamp(5)
    def setupA(self):
        return single(J("""s_lshl_b32 s76, {jb}, 1
s_lshr_b32 {t1}, {w}, 1
s_add_u32 s76, s76, {t1}
s_lshr_b32 {t1}, {bp}, 3
s_lshl_b32 {t1}, {t1}, 4
s_add_u32 s76, s76, {t1}
s_lshl_b32 s76, s76, 3
s_and_b32 {t1}, {bp}, 7
s_add_u32 s76, s76, {t1}
s_lshr_b32 {t1}, {bp}, 2
s_xor_b32 {t1}, {t1}, {w}
s_and_b32 {t1}, {t1}, 1
s_lshl1_add_u32 s76, s76, {t1}
s_lshl_b32 s76, s76, 6
s_add_u32 s76, s76, {u}
s_add_u32 s77, s76, 0x80000
s_add_u32 s78, s76, 0x100000
s_add_u32 s79, s76, 0x180000
v_lshrrev_b32 v24, 1, {l16}
v_lshlrev_b32 v26, 16, v24
v_and_b32 v25, 1, v0
v_lshl_add_u32 v26, v25, 5, v26
{xra}
s_lshl2_add_u32 {t0}, {jb}, {w}
v_and_or_b32 v28, v0, 7, {t0}
v_cmp_eq_u32 vcc, 0, v28
v_bfe_u32 v28, v0, 3, 1
v_xor_b32 v28, 1, v28
v_lshl_or_b32 v18, v28, 31, 1.0
s_lshl_b32 {t0}, {w}, 5
s_add_u32 {t0}, {t0}, {stg}
v_lshrrev_b32 v24, 3, v0
v_cndmask_b32 v18, v18, 0, vcc
v_lshl_add_u32 v19, v24, 8, {t0}
v_lshl_add_u32 v19, v25, 7, v19
v_bfe_u32 v25, v0, 1, 2
v_lshl_add_u32 v19, v25, 3, v19""", u=WS_U, stg=LDS_STG,
            xra="v_and_b32 v28, 1, v2\nv_lshl_add_u32 v26, v28, 19, v26\nv_lshrrev_b32 v28, 1, v2\nv_lshl_add_u32 v4, v28, 4, v26" if self.o("u4", 1) else "v_lshl_add_u32 v4, v2, 3, v26"))
    def setupB(self):
        if self.pair: return single(J("""s_lshl_b32 {he}, {bp}, 8
s_add_u32 {he}, {he}, {rot}
s_lshl_b32 {he}, {he}, 10
s_xor_b32 {hs}, {he}, {hx}
s_andn2_b32 {t1}, {bp}, {m}
s_lshl_b32 {t1}, {t1}, 5
s_lshr_b32 {t0}, {rot}, 1
s_add_u32 {t0}, {t0}, {t1}
s_lshl_b32 {t0}, {t0}, 7
s_add_u32 {wo1}, {t0}, {fl}
v_lshrrev_b32 v24, 5, v0
v_mul_u32_u24 v24, {fx}, v24
v_bfe_u32 {pa}, v0, 3, 2
v_lshl_add_u32 {pa}, {pa}, 7, v24
@skip
s_lshl3_add_u32 {wo0}, {bp}, {nt}
s_lshl_b32 {wo0}, {wo0}, {ush}
s_add_u32 {wo0}, {wo0}, {cnt}
v_mov_b32 v19, 1
v_add_u32 v9, {r64}, {l16b}""", hx=self.pair << 18, m=self.pair, fx=self.pair << 12, fl=WS_FLAG, r64=LDS_R64I, cnt=WS_CNT, ush=self.o("ush", 5)))
        return single(J("""s_lshl_b32 {hs}, {bp}, 8
s_mul_i32 {t0}, {w}, 14
s_add_u32 {hs}, {hs}, {t0}
s_lshl_b32 {hs}, {hs}, 10
s_nop 0
s_nop 0
s_nop 0
s_mul_i32 {t0}, {w}, 7
s_lshl_b32 {t1}, {bp}, 5
s_add_u32 {t0}, {t0}, {t1}
s_lshl_b32 {t0}, {t0}, 7
s_add_u32 {wo1}, {t0}, {fl}
v_lshrrev_b32 v24, 3, v0
v_min_u32 {pa}, 6, v24
v_lshlrev_b32 {pa}, 7, {pa}
s_lshl3_add_u32 {wo0}, {bp}, {nt}
s_lshl_b32 {wo0}, {wo0}, {ush}
s_add_u32 {wo0}, {wo0}, {cnt}
v_mov_b32 v19, 1
v_add_u32 v9, {r64}, {l16b}""", hl=14 * 4096, fl=WS_FLAG, r64=LDS_R64I, cnt=WS_CNT, ush=self.o("ush", 5)))
    def setupC(self):
        return single(J("""s_lshl_b32 {wo1}, {w}, {ush6}
s_add_u32 {wo1}, {wo1}, {cnt}
v_lshlrev_b32 {pa}, {ush}, v0
s_lshl_b32 {t2}, {bp}, 16
s_lshl_b32 {t3}, {w}, 14
s_add_u32 {t2}, {t2}, {t3}
s_add_u32 {t2}, {t2}, {u}
s_lshl_b32 {t0}, {bp}, 8
s_add_u32 {t0}, {t0}, {g}
v_lshrrev_b32 v24, 1, {l16}
v_lshlrev_b32 v24, 7, v24
v_and_b32 v25, 1, v0
v_lshl_add_u32 v24, v25, 5, v24
v_lshrrev_b32 v27, 1, {hi}
v_bfe_u32 v28, v0, 3, 1
v_xor_b32 v28, v27, v28
v_lshl_add_u32 v24, v28, 6, v24
v_and_b32 v26, 1, {hi}
v_lshl_add_u32 {vw}, v26, 4, v24
v_lshrrev_b32 v24, 3, v0
v_xor_b32 v25, v24, v0
v_and_b32 v25, 7, v25
v_lshlrev_b32 v24, 15, v24
v_lshl_add_u32 {x}, v25, 4, v24
v_lshl_add_u32 v24, {w}, 1, v27
v_xor_b32 v24, v24, v0
v_and_b32 v24, 7, v24
v_lshlrev_b32 v24, 4, v24
v_lshl_add_u32 v24, {l16}, 7, v24
v_lshl_add_u32 v24, v26, 3, v24
v_add_u32 v6, {stg}, v24
s_lshl_b32 {t1}, {w}, 10
s_add_u32 {t1}, {t1}, {stg}
v_add_u32 v7, {t1}, {l16b}
v_lshlrev_b32 v8, 4, {l16}
s_lshl3_add_u32 s76, {bp}, {nt}
s_lshl_b32 s76, s76, 7
s_lshl_b32 {t1}, {w}, 18
s_add_u32 s76, s76, {t1}
s_add_u32 s77, s76, 0x100000""", u=WS_U, g=WS_G, stg=LDS_STG, cnt=WS_CNT, ush=self.o("ush", 5), ush6=self.o("ush", 5) + 6))
    def tail(self, ffn, nxt_t, nxt_d):
        st = dict(t=nxt_t, d=nxt_d)
        def pump(nd):
            gs = []
            for _ in range(nd):
                if st["d"] >= self.NU: break
                nx = self.loc(min(self.NU - 1, st["d"] + 1))[1]; pv = self.loc(st["d"])[1]
                while st["t"] <= max(-1 if nx is None else nx, -1 if pv is None else pv):
                    gs += self.T(st["t"]); st["t"] += 1
                gs += self.D(st["d"]); st["d"] += 1
            return gs
        def W(a, b): return flat(weave(a, b)) if b else flat(a)
        self.after_h = []
        c1, c2 = self.c_calc()
        p = flat(c1[:-8])
        mid2 = ffn and self.o("mid", 1) >= 2 and not self.o("x1late", 0)
        if self.cin: mid2 = True; p = []; c1 = []
        else: p += self.stamp(2, 3) + I("@wait cst\ns_barrier" if mid2 else "@wait x1 cst\ns_barrier") + self.stamp(3, 3)
        if ffn and not self.o("x1late", 0) and self.o("fpos", 0) == 3: p += self.set_flag() + self.stamp(4)
        XF, DD, PP, EE, PK, UP = 128, 136, 152, 168, 184, 128
        p += flat(c1[-8:])
        late1 = self.o("x1late", 0) or not ffn
        sB = self.setupB()
        if late1:
            rip = self.rip; gcs = self.g_calc() + [self.g_store()]
            nc2 = self.o("nc2", 71) if ffn else 71
            p += W(([] if rip else self.gen_R(2, 160)) + c2[:nc2], pump(self.o("pump0", 0) if ffn else 1))
            p += self.x1_pre() + self.stamp(4, 3)
            if ffn: p += self.set_flag() + self.stamp(4)
            p += self.x1_fetch() + self.stamp(5, 3)
            p += W(c2[nc2:] + (self.gen_R(1, 160, LDS_R64I) if rip else gcs) + sB[:18] + sB[19:], pump(self.o("pump1", 2)))
            p += self.stamp(6, 3) + I("@wait x1 rtab\ns_barrier") + self.stamp(7, 3)
            if self.o("hp", 1) == 0 and ffn: p += I(self.POLL_LD, tag="poll")
        if mid2:
            nc = self.o("nc3", 55)
            p += flat(c2[:nc]); c2 = c2[nc:]
            if self.o("mid", 1) == 4: p += self.set_flag() + self.stamp(4)
            p += I("@wait x1\ns_barrier")
        for k in range(4):
            p += I("ds_read_b64_tr_b16 %s, v19 offset:%d" % (V(XF + 2 * k, 2), 2048 * k))
        mf = [I("%s %s, %s, %s, %s" % (MF, V(DD + 4 * tau, 4), A(224 + (2 * tau + v) * 4, 4), V(XF + 4 * v, 4), V(DD + 4 * tau, 4) if v else "0")) for v in range(2) for tau in range(4)]
        if late1:
            G = Gaps(mf); pm = pump(self.o("pump2", 1))
            if pm: G.stream(pm, 0, 8)
            p += G.out() + sB[18] + flat([I("ds_read_b128 %s, v9 offset:%d" % (A((192 if rip else 224) + 4 * f, 4), f * 1024)) for f in range(8)])
            if self.o("hp", 1) == 1 and ffn: p += I(self.POLL_LD, tag="poll")
        elif mid2: p += flat(c2[:8]) + flat(weave(mf, c2[8:])) + self.stamp(4, 3)
        else:
            wv = weave(c2, mf, 12, 52)
            if ffn and self.o("fpos", 0) > 3: place(wv, self.o("fpos", 0), self.set_flag() + self.stamp(4))
            p += flat(wv) + self.stamp(4, 3)
        dpp = "row_ror:8 row_mask:0xf bank_mask:0xf"
        cA, cB, cC, cD = CO, CO + 8, CO + 16, CO + 24
        def pk(op, d, a, b, neg=False):
            g = []
            for e in range(0, 8, 2):
                if op == "mul": g += I("v_pk_mul_f32 %s, %s, %s" % (V(d + e, 2), V(a + e, 2), V(b + e, 2)))
                else: g += I("v_pk_fma_f32 %s, %s, %s, %s%s" % (V(d + e, 2), V(a + e, 2), V(b + e, 2), V(d + e, 2), " neg_lo:[1,0,0] neg_hi:[1,0,0]" if neg else ""))
            return g
        fpos = -1 if late1 or not ffn or self.o("mid", 1) == 4 else self.o("fpos", 0)
        if fpos == 0: p += self.set_flag() + self.stamp(4)
        eadr = self.eadr()
        if self.ef and not late1 and self.o("epl", 0): p += I(self.POLL_LD, tag="poll")
        early = []
        hint = J("""s_bitcmp1_b32 {nt}, 2
s_cselect_b32 {t0}, {he}, {hs}
s_and_b32 {t1}, {nt}, 3
s_lshl_b32 {t1}, {t1}, 16
s_add_u32 {t0}, {t0}, {t1}
s_lshr_b32 {t1}, {wde}, 5
s_add_u32 {t0}, {t0}, {t1}
v_min_u32 v25, 2, {hi}
v_lshlrev_b32 v25, 11, v25
v_lshl_add_u32 v25, {l16}, 6, v25
buffer_load_dword a144, v25, {SWS}, {t0} offen sc1""")
        if self.o("hint", 0) == 1 and not late1: p += flat(sB[:4]) + hint
        if self.ef == 1 and not late1:
            p += flat(self.g_calc()) + self.g_store() + flat(sB[:4]) + J("s_lshr_b32 {t1}, {wde}, 5\nv_add_u32 v5, {t1}, {l16b}") + self.spin(self.POLL_LD) + self.stamp(7) + self.stamp(9, 3)
            for k in range(12):
                t, u = divmod(k, 3)
                early.append((J("s_add_u32 {ho}, {hs}, {o}", o=t * 65536 + u * 2048) if u != 1 else []) +
                             J("buffer_load_dwordx4 {r}, v5, {SWS}, {ho} offen offset:{o} sc1", tag="h%d" % k, r=V(192 + 4 * k, 4), o=2048 if u == 1 else 0))
        q = []
        for e in range(16): q += I("v_mul_f32_dpp v%d, v%d, v18 %s" % (PP + e, DD + e, dpp))
        q += pk("mul", EE, cA, DD) + pk("mul", EE + 8, cC, DD) + pk("fma", EE, cB, PP) + I("v_mov_b32 v%d, v%d\nv_mov_b32 v%d, v%d" % (cA, CA2, cB, CB2))
        q += pk("fma", EE + 8, cD, PP) + pk("fma", EE, cC, DD + 8, True) + pk("fma", EE + 8, cA, DD + 8) + pk("fma", EE, cD, PP + 8, True) + pk("fma", EE + 8, cB, PP + 8)
        p += W(single(q), early + pump(self.o("pump3", 0)))
        p += self.pack(PK, EE)
        mf = [I("%s %s, %s, %s, %s" % (MF, V(DD + 4 * kt, 4), V(PK + 4 * v, 4), A(192 + (2 * kt + v) * 4, 4), V(DD + 4 * kt, 4) if v else "0")) for v in range(2) for kt in range(4)]
        q = self.pack(PK + 4, EE + 8)
        p += q[:2]
        G = Gaps(mf); G.put(0, q[2:])
        if not late1: G.stream(sB[:4] if self.ef == 2 else sB[4 if self.ef else 0:15], 1, 8, spread=False)
        elif self.o("hp", 1) == 2 and ffn: G.put(1, I(self.POLL_LD, tag="poll"))
        p += G.out()
        if fpos == 1: p += self.set_flag() + self.stamp(4)
        if self.o("u4", 1):
            p += self.pack(UP, DD) + self.pack(UP + 4, DD + 8)
            for j in range(2):
                p += I("v_permlane16_swap_b32 v%d, v%d\nv_permlane16_swap_b32 v%d, v%d" % (UP + 4 * j, UP + 4 * j + 2, UP + 4 * j + 1, UP + 4 * j + 3))
                p += J("buffer_store_dwordx4 {r}, {xr}, {SWS}, s{so} offen sc1", tag="ust", r=V(UP + 4 * j, 4), so=76 + 2 * j)
        for kt in range(0 if self.o("u4", 1) else 4):
            p += cvt(UP + 2 * kt, DD + 4 * kt, DD + 4 * kt + 1) + cvt(UP + 2 * kt + 1, DD + 4 * kt + 2, DD + 4 * kt + 3)
            p += J("buffer_store_dwordx2 {r}, {xr}, {SWS}, s{so} offen sc1", tag="ust", r=V(UP + 2 * kt, 2), so=76 + kt)
        if self.o("hint", 0) == 2 and not late1: p += hint
        p += self.stamp(6) + self.stamp(8 if late1 else 5, 3)
        l = self.lab("nosig")
        usig = I("@wait ust gst rtab") + J("s_barrier\ns_cmp_lg_u32 {w}, 0") + \
               J("s_cbranch_scc1 {l}\ns_mov_b64 exec, 1\nbuffer_store_dword v19, v0, {SWS}, {wo0} offen sc1\ns_mov_b64 exec, -1\n{l}:", raw=True, l=l)
        if late1:
            if not ffn:
                gG = self.gen_G(136, True)
                p += W(gG[:8], pump(2)) + usig + W(gG[8:], pump(3)) + flat(pump(2)) + (eadr if self.ef else []) + I(self.POLL_LD, tag="poll") + flat(pump(9))
                usig = []
            else: p += W(gcs + self.gen_R(2, 160, LDS_RPF), pump(self.o("pumpb", 2))) if rip else flat(pump(self.o("pumpb", 2)))
            if rip: usig += J("v_add_u32 v9, {a}, {l16b}", a=LDS_RPF) + flat([I("ds_read_b128 %s, v9 offset:%d" % (A(224 + 4 * f, 4), f * 1024)) for f in range(8)])
            if self.o("hp", 1) == 3 and ffn: p += I(self.POLL_LD, tag="poll")
            p += flat(pump(self.o("pumpc", 0)))
            if self.o("upos", 0) == 0: p += usig
        elif self.ef:
            pass
        else:
            if fpos == 2: p += self.set_flag() + self.stamp(4)
            p += flat(self.g_calc()) + self.g_store() + flat(sB[15:])
            ue = self.o("ue", 3)
            gr = [[]] if self.o("r2p", 0) else self.gen_R(2, 160)
            if ue >= 3: place(gr, min(len(gr) - 1, self.o("pq", 30)), I(self.POLL_LD, tag="poll"))
            p += W(gr, pump(self.o("pumpa", 2)))
            r64 = flat([I("ds_read_b128 %s, v9 offset:%d" % (A(224 + 4 * f, 4), f * 1024)) for f in range(8)])
            if ue == 1: p += self.stamp(6, 3) + usig + r64 + self.stamp(7, 3)
            if ue < 3: p += I(self.POLL_LD, tag="poll")
            if ue in (2, 3): p += self.stamp(6, 3) + usig + ([] if ue == 3 else r64) + self.stamp(7, 3)
            if ue == 3: self.after_h = r64
            if ue == 4: self.after_h = usig + r64
            tpre = max(st["t"], min(st["d"], self.o("tpre0", 6 if ue < 3 else 0)))
            p += flat(self.TT(st["t"], tpre)); st["t"] = tpre
            p += flat(pump(self.o("pumpb", 2)))
            if ue == 0: p += usig + r64
            p += self.stamp(8, 3)
        xo = self.o("xo", 0)
        if xo > 0: p += J("v_lshl_add_u32 v44, {rot}, 10, {l16b}\nv_xor_b32 v45, 0x400, v44\nv_xor_b32 v46, 0x800, v44\nv_xor_b32 v47, 0xc00, v44\nv_and_b32 v4, 0x7ff, v44\nv_and_b32 v18, 0x7ff, v45")
        if not early:
            if not (self.o("strip", 0) & 8192 and ffn): p += self.spin(self.POLL_LD)
            p += self.stamp(7) + self.stamp(9, 3)
        if self.ef:
            r64 = [I("ds_read_b128 %s, v9 offset:%d" % (A(224 + 4 * f, 4), f * 1024)) for f in range(8)]
            if late1: return p + self.p4pair(ffn, st, pump, W, sB[4:14], [], [])
            if self.ef == 2:
                q = self.g_calc() + [self.g_store()] + sB[4:] + weave(self.gen_R(2, 160), self.TT(st["t"], 4)); st["t"] = 4
                return p + self.p4pair(ffn, st, pump, W, q, [], [usig] + r64)
            if self.o("r2p", 0): return p + self.p4pair(ffn, st, pump, W, None, sB[15:] + r64, [usig])
            return p + self.p4pair(ffn, st, pump, W, None, sB[15:] + self.gen_R(2, 32), [usig] + r64)
        if self.pair: return p + self.p4pair(ffn, st, pump, W)
        NS = 16; na = self.o("na", 8)
        order = [(u, s_) for u0 in range(0, na, 2) for s_ in range(4) for u in (u0, u0 + 1)] + [(u, s_) for s_ in range(4) for u in range(na, 14)]
        pos_ = dict((x_, k) for k, x_ in enumerate(order))
        hb = [None]
        def hload(k):
            u, s_ = order[k]; gs = []; o = s_ * 65536 + u * 1024
            if hb[0] is None or not hb[0] <= o < hb[0] + 4096:
                hb[0] = o; gs.append(J("s_add_u32 {ho}, {hs}, {o}", o=o))
            return gs + [J("buffer_load_dwordx4 {r}, {l16b}, {SWS}, {ho} offen offset:{o} sc1", tag="h%d" % k, r=V(192 + 4 * (k % NS), 4), o=o - hb[0])]
        npre = self.o("npre", 12)
        redadr = []
        for dl in range(4):
            redadr += J("s_xor_b32 {t1}, {w}, {dl}\ns_mul_i32 {t1}, {t1}, 3072\ns_add_u32 {t1}, {t1}, {o}\nv_add_u32 v{r}, {t1}, {l16b}", dl=dl, o=76 * 1024 + max(0, dl - 1) * 1024, r=32 + dl)
        ro = [61440 if self.rip else 53248, 0, 12288, 24576]
        p += W([g for k in range(npre) for g in hload(k)], self.setupC())
        tpre = max(st["t"], min(st["d"], self.o("tpre", 4)))
        p += flat(self.TT(st["t"], tpre)); st["t"] = tpre
        if late1 and self.o("upos", 0) == 1: p += usig
        s5 = self.o("s5", 80); AO = GB; LA = self.o("la5", 10); PK5 = 36
        def m4(k, dl):
            u, s_ = order[k]; d = V(128 + (dl * 4 + s_) * 4, 4)
            return I("%s %s, %s, %s, %s" % (MF, d, A(self.wd_reg(u, dl), 4), V(192 + 4 * (k % NS), 4), d if u else "0"))
        ar = lambda k: A(self.wd_reg((k % 16) // 4, k % 4), 4)
        def m5(k):
            n, sg = divmod(k, 4); d = V(ACCV + 4 * sg, 4)
            return I("%s %s, %s, %s, %s" % (MF, d, ar(k), V(GB + 4 * n, 4), d if n else "0"))
        mf = []; at = {}; k5 = 0; fin = None
        for i in range(224):
            k, dl = divmod(i, 4)
            if order[k][0] == 13: dl = (dl + 1) % 4
            at[(k, i % 4)] = len(mf); mf.append(m4(k, dl))
            if i >= s5 and k5 < 64:
                at[k5] = len(mf); mf.append(m5(k5)); k5 += 1
            if k5 == 64 and fin is None and len(mf) >= at[63] + 12:
                fin = len(mf)
                mf += [I("%s %s, %s, %s, %s" % (MF, V(AO + 4 * a_, 4), V(PK5 + 4 * v, 4), A(224 + (2 * a_ + v) * 4, 4), V(AO + 4 * a_, 4) if v else "0")) for v in range(2) for a_ in range(4)]
        assert at[0] - LA >= 64 and na >= 4
        G = Gaps(mf); N = len(mf)
        for k in range(1, 56): G.put(at[(k, 0)] - 1, I("@must h%d" % k))
        for k in range(64):
            pos = at[k - LA] if k >= LA else at[0] - (LA - k)
            if k % 16 == 0: G.put(pos - 1, I("@must u%d\ns_barrier" % (k // 16)))
            G.put(pos, J("ds_read_b128 {r}, {vw} offset:{o}", tag="a%d" % k, r=ar(k), o=(k % 4) * 16384 + (k // 4) * 1024))
            if k % 2 == 0: G.put(at[k] - 1, I("@wait a%d" % (k + 1)))
        G.put(at[0] + 1, J("buffer_load_dwordx4 v[20:23], v8, {SWS}, {t0} offen sc1"))
        hd = self.o("hd", 48)
        def ud(c):
            return [J("s_add_u32 m0, {t3}, {o}", o=c * 4096)] + ([J("s_add_u32 {t2}, {t2}, 4096")] if c else []) + \
                   [J("buffer_load_dwordx4 {l16b}, {SWS}, {t2} offen offset:{o} sc1 lds", tag="u%d" % c, o=1024 * k) for k in range(4)]
        use = lambda u: at[(pos_[(u, 0)], 0)]
        occ = lambda c: max([u for u in range(14) if self.loc(u)[0] == 0 and self.loc(u)[2] == c] + [-1])
        items = [(at[(k, 0)], 1, k) for k in range(npre, 56)] + [(at[16 * c] - (2 if c else 1) * LA - 1, 0, c) for c in range(4)]
        for n_, u in enumerate(range(st["d"], 14)):
            lim = use(u) - 24
            if self.loc(u)[0] == 0: lim = min(lim, at[16 * self.loc(u)[2]] - 2 * LA - hd - 20)
            items.append((min(lim, hd + self.o("l0", 0) + n_ * self.o("lsp", 16)), 2, u))
        items.sort()
        last = 0; dpos = {}; upos_ = {}
        for need, kind, k in items:
            want = max(last, need - hd)
            if kind == 1:
                w_ = max(want, last + 1, at[(k - NS, 3)] if k >= NS else 0)
                last = G.stream(hload(k), w_, w_ + 4, spread=False)
            elif kind == 2:
                dpos[k] = want; last = G.stream(self.D(k), want + 1, want + 9); dpos[k, "e"] = last
            else:
                upos_[k] = want
                if k == 0:
                    G.put(max(0, want - self.o("pgap", 44)), I(self.POLL_LD, tag="poll"))
                    G.put(want, self.stamp(8) + I("@wait poll") + self.spin(self.POLL_LD, sleep=self.o("slu", 0)))
                last = G.stream(([I("@must t%d" % occ(k))] if occ(k) >= 0 else []) + ud(k), want + 1, want + 11)
        dl_ = {}
        for u in range(13, st["t"] - 1, -1):
            d_ = min([use(u) - 3] + [dpos[v] for v in range(14) if v in dpos and self.loc(v)[1] == u] + [upos_[c] for c in range(4) if occ(c) == u])
            dl_[u] = min(d_, dl_[u + 1] - 5) if u < 13 else d_
        e = 0; tearly = []
        for u in range(st["t"], 14):
            if dl_[u] < 8:
                assert u not in dpos
                tearly += self.T(u); continue
            a_ = max(e, dl_[u] - 14, 0)
            assert a_ > dpos.get((u, "e"), -1), (u, a_, dpos)
            e = G.stream(self.T(u), a_, dl_[u], spread=False)
            assert e <= dl_[u]
        p += flat(tearly)
        G.stream(single(redadr), 8, 60)
        def red_w(s_): return [I("ds_write_b128 v%d, %s offset:%d" % (32 + dl, V(128 + (dl * 4 + s_) * 4, 4), ro[s_]), tag="rw%d" % s_) for dl in (1, 2, 3)]
        def red_r(s_): return [I("ds_read_b128 %s, v32 offset:%d" % (V(128 + (dl * 4 + s_) * 4, 4), ro[s_] + (dl - 1) * 1024), tag="rr%d" % s_) for dl in (1, 2, 3)]
        def red_a(s_):
            b = 128 + 4 * s_
            return single([I("v_add_f32 v%d, v%d, v%d" % (b + o + r, b + o + r, b + o + q + r)) for o, q in ((0, 16), (32, 16), (0, 32)) for r in range(4)])
        def mix(a_):
            b = 128 + 4 * a_
            return single(I("\n".join("v_fma_f32 v%d, v%d, v%d, v%d" % (b + r, b + r, 20 + a_, AO + 4 * a_ + r) for r in range(4))) +
                          cvt(56 + 2 * a_, b, b + 1) + cvt(57 + 2 * a_, b + 2, b + 3) + I("ds_write_b64 v6, %s offset:%d" % (V(56 + 2 * a_, 2), a_ * 2048), tag="ow%d" % a_))
        G.stream(single(self.pack(PK5, ACCV) + self.pack(PK5 + 4, ACCV + 8)), at[63] + 4, fin - 1, spread=False)
        gm = I("\n".join("v_mul_f32 v%d, %s, v%d" % (GB + 16 + a_, fhex(2.0 ** -19), 20 + a_) for a_ in range(4)))
        gm += I("\n".join("v_sub_f32 v%d, 1.0, v%d" % (20 + a_, 20 + a_) for a_ in range(4)))
        bars = {}; rend = {}
        for s_ in range(3):
            e = at[(pos_[(13, s_)], 3)]
            e = G.stream(red_w(s_), e + 3, e + 9)
            bars[s_] = e + 4
            G.put(e + 4, I("@must rw%d t13%s\ns_barrier" % (s_, " ow1" if s_ == 2 else "")))
            e = G.stream(red_r(s_) + ([I("ds_read_b128 v[36:39], v7")] if s_ == 2 else []), e + 5, e + 10, spread=False)
            if s_ < 2:
                G.put(e + 5, I("@wait rr%d" % s_))
                rend[s_] = G.stream(red_a(s_), e + 6, e + 16, spread=False)
        e = G.stream(single(gm), fin, fin + 8, spread=False)
        e = G.stream(single(I("\n".join("v_mul_f32 v%d, v%d, v%d" % (AO + i, GB + 16 + i // 4, AO + i) for i in range(16)))), max(e, fin + 9), fin + 24, spread=False)
        e = G.stream(mix(0), max(e, rend[0]) + 1, bars[2] - 6, spread=False)
        e = G.stream(mix(1), max(e, rend[1]) + 1, bars[2] - 1, spread=False)
        assert e < bars[2]
        ost = lambda h_: J("buffer_store_dwordx4 {r}, {x}, {SOUT}, s{so} offen {f}", r=V(36 + 4 * h_, 4), so=76 + h_, f=("", "sc1", "nt", "sc0 sc1", "sc1 nt", "sc0 sc1 nt")[self.o("ost", 1)])
        ra = red_a(2); nfit = max(0, min(12, 2 * (N - bars[2] - 11)))
        if nfit: G.stream(ra[:nfit], bars[2] + 10, N, spread=False)
        for i in range(10): G.put(min(32 * i, len(G) - 1), self.stamp(i, 2))
        p += G.out()
        p += self.stamp(9)
        p += ost(0) + flat(weave(red_w(3), ra[nfit:] + mix(2))) + I("@wait rw3\ns_barrier") + flat(red_r(3))
        for o, q in ((0, 16), (32, 16), (0, 32)):
            for hh in (0, 2): p += I("v_pk_add_f32 %s, %s, %s" % (V(140 + o + hh, 2), V(140 + o + hh, 2), V(140 + o + q + hh, 2)))
        p += flat(mix(3)) + I("@waitlg0\ns_barrier\nds_read_b128 v[40:43], v7 offset:4096") + ost(1)
        return p + self.ending(ffn)

    def p4pair(self, ffn, st, pump, W, ladr=None, fill=None, usig=None):
        NS = 16; hb = [None]; ef = self.ef
        order = [(t, u) for t in range(8) for u in range(7)]
        if ef: order = [(t, u) for t in range(4) for u in range(3)] + [(t, u) for t in range(4) for u in range(3, 7)] + [(t, u) for t in range(4, 8) for u in (0, 3, 1, 4, 2, 5, 6)]
        pos_ = dict((x_, k) for k, x_ in enumerate(order))
        def hload(k):
            t, u = order[k]; gs = []
            o = t * 65536 + (2 * (u % 3) if ef and u < 6 else u) * 1024
            if hb[0] is None or not hb[0] <= o < hb[0] + 4096:
                hb[0] = o; gs.append(J("s_add_u32 {ho}, {b}, {o}", o=o & 0x3ffff, b=NM["hs" if t < 4 else "he"]))
            return gs + [J("buffer_load_dwordx4 {r}, {a}, {SWS}, {ho} offen offset:{o} sc1", tag="h%d" % k, r=V(192 + 4 * (k % NS), 4), o=o - hb[0],
                           a=("v44", "v45")[u // 3] if ef and u < 6 else NM["l16b"])]
        npre = self.o("npre", 12)
        adr = []
        for dl in range(4):
            adr += J("s_xor_b32 {t1}, {w}, {dl}\ns_mul_i32 {t1}, {t1}, 3072\ns_add_u32 {t1}, {t1}, {o}\nv_add_u32 v{r}, {t1}, {l16b}", dl=dl, o=76 * 1024 + max(0, dl - 1) * 1024, r=32 + dl)
        adr += J("""s_lshl3_add_u32 {t1}, {bp}, {nt}
s_lshl_b32 {wo0}, {t1}, 7
s_add_u32 {wo0}, {wo0}, {pf}
s_lshl2_add_u32 s78, {t1}, {w}
s_lshl_b32 s78, s78, 12
s_xor_b32 s79, s78, {px}
s_add_u32 s78, s78, {pb}
s_add_u32 s79, s79, {pb}""", pf=WS_PF, pb=WS_P, px=self.pair << 17)
        ro = [61440 if self.rip else 53248, 0, 12288, 24576]
        sC = self.setupC()
        if ef:
            npre = 12
            p = J("s_lshr_b32 {t1}, {wde}, 5\nv_add_u32 v44, {t1}, {l16b}\nv_xor_b32 v45, 0x400, v44")
            if ef == 2 and ffn:
                n0 = self.o("n0", 7); hl = [flat(hload(k)) for k in range(npre)]
                place(ladr, min(len(ladr) - 1, self.o("lq", 999)), I(self.POLL_LD, tag="poll") if self.o("lq", 999) < 999 else [])
                p += flat(hl[:n0]) + flat(weave(ladr, hl[n0:], self.o("h0", 90), len(ladr) - 5))
            elif ladr is not None: p += flat([hload(k) for k in range(npre)]) + flat(ladr) + (flat(pump(7)) if ef != 2 else [])
            else: p = W(fill, pump(7)) + p
            p += flat(self.TT(st["t"], 3)); st["t"] = max(st["t"], 3)
        else:
            if self.o("hfirst", 0): p = flat(pump(7)) + flat([hload(k) for k in range(npre)]) + self.after_h + W(sC + single(adr), self.TT(st["t"], 7))
            else: p = flat(pump(7)) + W([g for k in range(npre) for g in hload(k)], sC + single(adr[:16])) + self.after_h + adr[16:] + flat(self.TT(st["t"], 7))
        s5 = self.o("s5", 150); AO = GB; LA = self.o("la5", 10); PK5 = 36; RC = GB + 24
        def m4(k, dl):
            t, u = order[k]; d = V(128 + (dl * 4 + t % 4) * 4, 4)
            return I("%s %s, %s, %s, %s" % (MF, d, A(self.wd_reg(u, dl), 4), V(192 + 4 * (k % NS), 4), d if u else "0"))
        ar = lambda k: A(80 + 4 * (k % 16), 4)
        def m5(k):
            n, sg = divmod(k, 4); d = V(ACCV + 4 * sg, 4)
            return I("%s %s, %s, %s, %s" % (MF, d, ar(k), V(GB + 4 * n, 4), d if n else "0"))
        mf = []; at = {}; k5 = 0; fin = None
        for i in range(224):
            k, dl = divmod(i, 4)
            if order[k][1] == 6: dl = (dl + 1) % 4
            at[(k, i % 4)] = len(mf); mf.append(m4(k, dl))
            for _ in range(self.o("r5", 2)):
              if i >= s5 and k5 < 64:
                at[k5] = len(mf); mf.append(m5(k5)); k5 += 1
            if k5 == 64 and fin is None and len(mf) >= at[63] + 12:
                fin = len(mf)
                mf += [I("%s %s, %s, %s, %s" % (MF, V(AO + 4 * a_, 4), V(PK5 + 4 * v, 4), A(224 + (2 * a_ + v) * 4, 4), V(AO + 4 * a_, 4) if v else "0")) for v in range(2) for a_ in range(4)]
        G = Gaps(mf); N = len(mf)
        for k in range(1, 56): G.put(at[(k, 0)] - 1, I("@must h%d" % k))
        for k in range(64):
            pos = at[k - LA] if k >= LA else at[0] - (LA - k)
            if k % 16 == 0: G.put(pos - 1, I("@must u%d\ns_barrier" % (k // 16)))
            G.put(pos, J("ds_read_b128 {r}, {vw} offset:{o}", tag="a%d" % k, r=ar(k), o=(k % 4) * 16384 + (k // 4) * 1024))
            if k % 2 == 0: G.put(at[k] - 1, I("@wait a%d" % (k + 1)))
        G.put(at[0] + 1, J("buffer_load_dwordx4 v[20:23], v8, {SWS}, {t0} offen sc1"))
        hd = self.o("hd", 48)
        def ud(c):
            return [J("s_add_u32 m0, {t3}, {o}", o=c * 4096)] + ([J("s_add_u32 {t2}, {t2}, 4096")] if c else []) + \
                   [J("buffer_load_dwordx4 {l16b}, {SWS}, {t2} offen offset:{o} sc1 lds", tag="u%d" % c, o=1024 * k) for k in range(4)]
        items = sorted([(at[(k, 0)], 1, k) for k in range(npre, 56)] + [((at[16 * c - LA] if c else at[0] - LA) - 1 + self.o("ul", 0), 0, c) for c in range(4)])
        last = 0
        if ef:
            up = self.o("up", 8)
            if usig: G.put(up, usig[0] + self.stamp(6, 3))
            if usig and usig[1:]: G.stream(usig[1:], 70, 110)
            if not (ffn and self.o("lq", 999) < 999): G.put(self.o("lp", 10), I(self.POLL_LD, tag="poll"))
            last = self.o("lc", 40)
            G.put(last, I("@wait poll") + self.spin(self.POLL_LD) + self.stamp(7, 3))
            G.stream(sC[:3], last + 1, last + 5, spread=False)
            if ef == 2 and ffn:
                G.stream(pump(7), 1, 14, spread=False)
                for u in (4, 5, 6): G.stream(self.T(u), 26 + 10 * (u - 4), 36 + 10 * (u - 4), spread=False)
            else:
                e = G.stream(self.TT(st["t"], 7), self.o("tts", 8), 46) if st["t"] < 7 else 0
                assert e < 47
            e = G.stream(single(adr[:16]) + sC[3:], 0, 62, spread=False)
            G.stream(single(adr[16:]), max(e, up) + 1, 70, spread=False)
        for need, kind, k in items:
            want = max(last, need - hd)
            if kind == 1:
                w_ = max(want, last + 1, at[(k - NS, 3)] if k >= NS else 0)
                last = G.stream(hload(k), w_, w_ + 4, spread=False)
            else:
                if k == 0:
                    G.put(max(self.o("lc", 40) + 6 if ef else 0, want - self.o("pgap", 44)), I(self.POLL_LD, tag="poll"))
                    G.put(want, self.stamp(8) + I("@wait poll") + self.spin(self.POLL_LD, sleep=self.o("slu", 0)))
                    G.stream(single(J("s_xor_b32 {wo1}, {wo0}, {o}\nv_mov_b32 {pa}, 0", o=self.pair << 10)), want + 1, want + 20)
                last = G.stream(ud(k), want + 1, want + 11)
        def red_w(t): return [I("ds_write_b128 v%d, %s offset:%d" % (32 + dl, V(128 + (dl * 4 + t % 4) * 4, 4), ro[t % 4]), tag="rw%d" % t) for dl in (1, 2, 3)]
        def red_r(t): return [I("ds_read_b128 %s, v32 offset:%d" % (V(128 + (dl * 4 + t % 4) * 4, 4), ro[t % 4] + (dl - 1) * 1024), tag="rr%d" % t) for dl in (1, 2, 3)]
        def red_a(t):
            b = 128 + 4 * (t % 4)
            return single([I("v_add_f32 v%d, v%d, v%d" % (b + o + r, b + o + r, b + o + q + r)) for o, q in ((0, 16), (32, 16), (0, 32)) for r in range(4)])
        mi = self.o("mi", 24)
        def mix(a_):
            b = 128 + 4 * a_
            return single(([] if mi else I("v_pk_add_f32 %s, %s, %s\nv_pk_add_f32 %s, %s, %s" % (V(b, 2), V(b, 2), V(RC + 4 * a_, 2), V(b + 2, 2), V(b + 2, 2), V(RC + 4 * a_ + 2, 2)))) +
                          I("\n".join("v_fma_f32 v%d, v%d, v%d, v%d" % (b + r, b + r, 20 + a_, AO + 4 * a_ + r) for r in range(4))) +
                          cvt(56 + 2 * a_, b, b + 1) + cvt(57 + 2 * a_, b + 2, b + 3) + I("ds_write_b64 v6, %s offset:%d" % (V(56 + 2 * a_, 2), a_ * 2048), tag="ow%d" % a_))
        rdone = {}
        left = []; sent = 0; b16 = self.o("b16", 1); wg = self.o("wg", 4)
        rounds = {0: [[0], [1], [2], [3], [4], [5], [6]], 1: [[0, 1], [2, 3], [4, 5], [6]], 2: [[0, 1], [2, 3], [4, 5, 6]], 3: [[0, 1, 2], [3], [4, 5, 6]]}[self.o("rnd", 1)]
        if len(rounds[0]) > 1: G.put(at[(pos_[(1, 6)], 0)] - self.o("eb", 10), I("@must t6\ns_barrier"))
        for rd_ in rounds:
            for t in rd_:
                e = at[(pos_[(t, 6)], 3)]
                e = G.stream(red_w(t), e + 3, e + (9 if t == rd_[-1] else 20))
            G.put(e + wg, I("@must rw%d t6\ns_barrier" % rd_[-1]))
            e = G.stream([g for t in rd_ for g in red_r(t)], e + wg + 1, e + wg + 2 + 4 * len(rd_), spread=False)
            e0_ = e + 5 - 3 * (len(rd_) - 1)
            for t in rd_:
                ra = [I("@wait rr%d" % t)] + red_a(t); nfit = 0 if left else max(0, min(13, 2 * (N - e0_ - 2)))
                if nfit: e0_ = G.stream(ra[:nfit], e0_, min(N, e0_ + 11), spread=False)
                left += ra[nfit:]; rdone[t] = e0_ if nfit == 13 else N
                if t < 4 and b16:
                    o = 24 + 4 * (t // 2) + 2 * (t & 1); b = 128 + 4 * t
                    e0_ = sent = G.stream([cvt(o, b, b + 1), cvt(o + 1, b + 2, b + 3)] + ([J("buffer_store_dwordx4 {r}, {l16b}, {SWS}, s79 offen offset:{o} sc1", tag="snd", r=V(o - 2, 4), o=(t // 2) * 1024)] if t & 1 else []), e0_, e0_ + 4, spread=False)
                elif t < 4: sent = G.stream([J("buffer_store_dwordx4 {r}, {l16b}, {SWS}, s79 offen offset:{o} sc1", tag="snd", r=V(128 + 4 * t, 4), o=t * 1024)], e0_ + 1, e0_ + 4)
                assert t >= 4 or sent + 2 < at[(pos_[(t + 4, 0)], 0)]
        l = self.lab("nop")
        fp = sent + self.o("sgap", 30)
        G.put(fp, I("@must snd") + J("s_barrier\ns_cmp_lg_u32 {w}, 0") +
              J("s_cbranch_scc1 {l}\ns_mov_b64 exec, 1\nbuffer_store_dword v19, v0, {SWS}, {wo0} offen sc1\ns_mov_b64 exec, -1\n{l}:", raw=True, l=l))
        rc = N - self.o("rc", 54); assert (b16 or rc > at[40]) and rc - self.o("rgap", 24) > fp
        G.put(rc - self.o("rgap", 24), I(self.POLL_LD, tag="poll"))
        G.put(fp, self.stamp(0, 5))
        G.put(rc, self.stamp(1, 5) + I("@wait poll") + self.spin(self.POLL_LD) + self.stamp(2, 5))
        G.stream([J("buffer_load_dwordx4 {r}, {l16b}, {SWS}, s78 offen offset:{o} sc1", r=V((24 if b16 else RC) + 4 * t, 4), o=t * 1024) for t in range(2 if b16 else 4)], rc + 1, rc + 6, spread=False)
        if b16 and not mi: left += single([J("v_lshlrev_b32 v{d0}, 16, v{s}\nv_and_b32 v{d1}, {hi16}, v{s}", d0=RC + 2 * i, d1=RC + 2 * i + 1, s=24 + i) for i in range(8)])
        G.stream(single(self.pack(PK5, ACCV) + self.pack(PK5 + 4, ACCV + 8)), at[63] + 4, fin - 1, spread=False)
        gm = I("\n".join("v_mul_f32 v%d, %s, v%d" % (GB + 16 + a_, fhex(2.0 ** -19), 20 + a_) for a_ in range(4)))
        gm += I("\n".join("v_sub_f32 v%d, 1.0, v%d" % (20 + a_, 20 + a_) for a_ in range(4)))
        e = G.stream(single(gm), fin, fin + 8, spread=False)
        e = G.stream(single(I("\n".join("v_mul_f32 v%d, v%d, v%d" % (AO + i, GB + 16 + i // 4, AO + i) for i in range(16)))), max(e, fin + 9), min(N, fin + (20 if mi else 30)), spread=False)
        m01 = mix(0) + mix(1)
        if mi:
            q = []
            for i in range(8):
                q += J("v_lshlrev_b32 v{d0}, 16, v{s}\nv_and_b32 v{s}, {hi16}, v{s}\nv_fmac_f32 v{a0}, v{g}, v{d0}\nv_fmac_f32 v{a1}, v{g}, v{s}", d0=RC + i, s=24 + i, g=20 + i // 2, a0=AO + 2 * i, a1=AO + 2 * i + 1)
            q = single(q[:16]) + m01 + single(q[16:]); nf = self.o("nf", 30)
            assert max(e + 1, N - mi) > rdone[5] and max(e + 1, N - mi) > rc + 6
            G.stream(q[:nf], max(e + 1, N - mi), N, spread=False); m01 = q[nf:]
        ost = lambda h_: J("buffer_store_dwordx4 {r}, {x}, {SOUT}, s{so} offen {f}", r=V(36 + 4 * h_, 4), so=76 + h_, f=("", "sc1", "nt", "sc0 sc1", "sc1 nt", "sc0 sc1 nt")[self.o("ost", 1)])
        for i in range(10): G.put(min(32 * i, len(G) - 1), self.stamp(i, 2))
        go = G.out(); x_ = self.o("strip", 0)
        if x_ & 1024: go = [i for i in go if i.op != "s_barrier"]
        if x_ & 2048: go = [Ins("s_nop 0", i.tag) if i.cls == "ds" and i.tag and i.tag[:2] in ("rw", "rr") else i for i in go]
        if x_ & 16384: go = [i for i in go if not (i.cls == "mfma" and i.text.split()[1] in ("v[48:51],", "v[52:55],", "v[56:59],", "v[60:63],")) and not (i.tag and i.tag[0] == "a")]
        if x_ & 4096: go = [i for i in go if not (i.raw and "s_mem" not in i.op)]
        p += I("; ---- phases 4 and 5") + go + I("; ---- last partial sums, mix, store")
        p += self.stamp(9)
        nl = self.o("nl", 4)
        p += self.stamp(3, 5) + flat(left[:nl]) + self.stamp(4, 5) + flat(weave(red_w(7), left[nl:] + m01, self.o("nl2", 0))) + self.stamp(5, 5) + I("@wait rw7 ow1\ns_barrier") + self.stamp(6, 5) + flat(red_r(7)) + I("ds_read_b128 v[36:39], v7") + flat(mix(2))
        for o, q in ((0, 16), (32, 16), (0, 32)):
            for hh in (0, 2): p += I("v_pk_add_f32 %s, %s, %s" % (V(140 + o + hh, 2), V(140 + o + hh, 2), V(140 + o + q + hh, 2)))
        p += ost(0) + flat(mix(3)) + self.stamp(7, 5) + I("@waitlg0\ns_barrier") + self.stamp(8, 5) + I("ds_read_b128 v[40:43], v7 offset:4096") + ost(1) + self.stamp(9, 5)
        return p + self.ending(ffn)

    def ending(self, ffn):
        p = []
        if "diag" in self.kw:
            i = self.kw["diag"]; l = self.lab("dg"); who = self.o("who", 0)
            use = i >= 0 and (who == 0 or (who == 1) == ffn)
            p += I("@waitvm0") + self.stamp(10) + I("s_waitcnt lgkmcnt(0)")
            p += I("s_add_u32 s3, %s, 5000" % ("s%d" % (48 + 2 * i) if use else "s100"))
            if "dx" in self.kw: p += I("s_and_b32 s98, s2, 7\ns_cmp_eq_u32 s98, %d\ns_cselect_b32 s3, s3, s100" % self.kw["dx"])
            p += I("%s:\ns_sleep 1\ns_memrealtime s[98:99]\ns_waitcnt lgkmcnt(0)\ns_sub_u32 s98, s98, s3\ns_cmp_lt_i32 s98, 0\ns_cbranch_scc1 %s" % (l, l), raw=True)
        elif self.prof:
            p += I("@waitvm0") + self.stamp(10) + I("s_waitcnt lgkmcnt(0)")
            p += J("s_lshl_b32 s3, s2, 2\ns_add_u32 s3, s3, {w}\ns_lshl_b32 s3, s3, 6\ns_add_u32 s3, s3, {o}\nv_mov_b32 v32, s100", o=WS_PROF)
            for i in range(11): p += I("v_mov_b32 v%d, s%d" % (33 + i, 48 + 2 * i))
            p += I("s_mov_b64 exec, 1")
            for i in range(3): p += I("buffer_store_dwordx4 %s, v0, %s, s3 offen offset:%d" % (V(32 + 4 * i, 4), SWS, 16 * i))
        return p + I("s_endpgm")

    def text(self):
        st = {}
        hdr = open("gated_mix__spectral_gfnet__glu_gated_reglu__prompt.s.ref").read().split("; Override launch")[0]
        out = [hdr.rstrip(), DOC,
               "; @launch grid=(256,1,1) block=(256,1,1) lds=163840", '.amdgcn_target "amdgcn-amd-amdhsa--gfx950"', ".text",
               ".globl " + NAME, ".p2align 8", ".type %s,@function" % NAME, NAME + ":"]
        prog = self.prologue() + self.p12f() + I("L_dft:") + self.p12d() + I("L_end:\ns_endpgm")
        x = self.o("strip", 0)
        if x & 1: prog = [i for i in prog if i.cls != "mfma"]
        if x & 2: prog = [i for i in prog if not (i.cls == "ds" and i.op.startswith("ds_read"))  or i.tag and not seen_tag(i.tag)]
        if x & 4: prog = [i if not (i.cls == "vmem" and i.tag == "pub") else Ins(i.text.replace("v14", "v0").replace("dwordx4", "dword").replace(i.text.split()[1], "v0,"), i.tag) for i in prog]
        import re as _re
        for bit, pat in ((8, r"d\d+$"), (16, r"h\d+"), (512, r"snd"), (32, r"u\d$"), (64, r"cld$"), (128, r"w\d$"), (256, r"x\d$")):
            if x & bit: prog = [Ins("s_nop 0", i.tag) if i.cls == "vmem" and i.tag and _re.match(pat, i.tag) and "sc1 lds" not in (i.text if bit == 256 else "") else i for i in prog]
        body = finalize(prog, st)
        if self.o("al", 0): body, st["align"] = align8(body)
        out += body
        out += ['.section .rodata,"a"', ".p2align 6", ".amdhsa_kernel " + NAME, "  .amdhsa_next_free_vgpr 512", "  .amdhsa_next_free_sgpr 102",
                "  .amdhsa_accum_offset 256", "  .amdhsa_group_segment_fixed_size 0", "  .amdhsa_kernarg_size 88", "  .amdhsa_user_sgpr_count 2",
                "  .amdhsa_user_sgpr_kernarg_segment_ptr 1", "  .amdhsa_system_sgpr_workgroup_id_x 1", "  .amdhsa_float_denorm_mode_32 3", ".end_amdhsa_kernel"]
        self.stats = st; self.body = body
        return "\n".join(out) + "\n"

def main(Gen):
    import argparse
    ap = argparse.ArgumentParser()
    ap.add_argument("out"); ap.add_argument("--prof", action="store_true"); ap.add_argument("--opt", default=""); ap.add_argument("--est", action="store_true")
    a = ap.parse_args()
    kw = dict((k, int(v)) for k, v in (x.split("=") for x in a.opt.split(",") if x))
    g = Gen(prof=a.prof, **kw)
    open(a.out, "w").write(g.text())
    print(g.stats)
    if a.est:
        row = []; gap = None; nm = 0; over = 0; skip = None
        for l in g.body:
            x = Ins(l.strip())
            if skip:
                if x.text == skip + ":": skip = None
                continue
            if x.op in ("s_cbranch_vccz", "s_cbranch_scc1") and "L_" not in x.text: skip = x.text.split()[1]
            if x.cls == "label":
                if x.text == "L_dft:": row.append(over); row.append("|"); nm = 0; over = 0; gap = None
                continue
            if x.cls == "mfma":
                if gap is not None and len(gap) < 14: over += gap_over(gap) + sum(int(y.text.split()[1]) for y in gap if y.op == "s_nop")
                gap = []; nm += 1
                if nm % 64 == 0: row.append(over); over = 0
            elif gap is not None: gap.append(x)
        print(row, over)

if __name__ == "__main__":
    main(Gen)
```

```python
import sys, re
sys.path.insert(0, "tools")
from prog import *

NAME = "gated_mix__spectral_gfnet__glu_gated_reglu__prompt_kernel"
WS_H, WS_X1, WS_U, WS_G, WS_FLAG, WS_CNT, WS_PROF = 0, 0x800000, 0xA00000, 0xC38000, 0xC10000, 0xC30000, 0xF000000
NCLR = 58 if re.search('ef=[12]', ' '.join(sys.argv)) else 50
WS_PF, WS_EF, WS_P = 0xC3A000, 0xC42000, 0xD00000
SPIN_LIMIT = 300000
MF = "v_mfma_f32_16x16x32_bf16"
SX, SWG, SWU, SWD, SWS, SOUT, SWR, SWI, SGW, SDBG = [S(8 + 4 * i, 4) for i in range(10)]
NM = dict(w="s4", b12="s5", ni="s6", rot="s7", xcd="s70", loc="s71", wds="s70", wde="s71", l3="s72", nt="s73", bp="s74", xn="s75",
          hs="s80", lw4="s80", wo0="s81", wo1="s82", he="s83", wb="s83", k="s94", lw="s84", wdo="s85", t0="s86", t1="s87", t2="s88", t3="s89",
          mask="s[90:91]", hi16="s92", ring="s93", ho="s94", clr="s95", jb="s0", sh="s1", m1="s[96:97]", m2="s[98:99]",
          l16="v1", hi="v2", x="v3", xr="v4", vw="v5", l16b="v14", wd="v15", p="v16", xr2="v16", pa="v17",
          SX=SX, SWG=SWG, SWU=SWU, SWD=SWD, SWS=SWS, SOUT=SOUT, SWR=SWR, SWI=SWI, SGW=SGW, SDBG=SDBG)
vWT = [6, 7, 8, 9]; vDT = [10, 11, 12, 13]; vXA = [22, 23]; vWD = [15, 29, 30, 31]
LDS_RPF, LDS_RPI, LDS_R64I, LDS_STG, LDS_RED = 128 * 1024, 136 * 1024, 144 * 1024, 152 * 1024, 64 * 1024
GB, CO, ACCV = 64, 32, 48
CA2, CB2 = 20, 21
RING = [192, 208, 224, 240, 32]

def J(text, tag=None, raw=False, **kw):
    d = dict(NM); d.update(kw)
    return I(text.format(**d), tag, raw)
def single(g): return [[x] for x in flat(g)]
def chunks(g):
    g = flat(g); out = []; i = 0
    while i < len(g):
        j = i
        if g[i].op.startswith("v_cmp") and ("s", 106) in g[i].dst:
            k = i + 1
            while k < len(g) and not (g[k].op.startswith("v_cmp") and ("s", 106) in g[k].dst):
                if ("s", 106) in g[k].src: j = k
                k += 1
            j = i
        while j + 1 < len(g) and g[j + 1].op.startswith(("s_cselect", "s_subb", "s_addc")): j += 1
        out.append(g[i:j + 1]); i = j + 1
    return out
def cvt(d, a, b): return I("v_cvt_pk_bf16_f32 v%d, v%d, v%d" % (d, a, b))

DOC = """;
; Rows s = 32a + b, row frequencies k = p + 64q; every DFT stage is a real bf16 MFMA product with fp32 accumulation,
; all cos/sin matrices are built in the kernel (v_cos plus a Chebyshev recurrence).
;   phase 1 (32 workgroups, L_dft): radix-2 fold + DFT along d, then the 64-point stage over a          -> X1 (d_ws)
; The flag words are cleared inside the launch; d_debug tells everyone when that is done."""
_seen = set()
def seen_tag(t):
    r = t in _seen; _seen.add(t); return r

class Gen:
    def __init__(self, prof=False, **kw):
        self.prof = prof; self.kw = kw; self.nl = 0; self.nsp = {}
        self.pair = kw.get("pair", 4); self.NU = 7 if self.pair else 14; self.ef = kw.get("ef", 0) if self.pair else 0
    def o(self, k, d): return self.kw.get(k, d)
    def lab(self, b):
        self.nl += 1; return "L%s_%d" % (b, self.nl)
    def clk(self): return "s_memtime" if self.o("cyc", 0) else "s_memrealtime"
    def stamp(self, i, mode=0):
        if not self.prof or self.o("diag", i) != i or (self.o("pm", 0) != mode and i != 10): return []
        return I("%s %s" % (self.clk(), S(48 + 2 * i, 2)), raw=True)
    def srd(self, name, lo, size, back=0):
        b = int(name[2:name.index(":")])
        if back: g = I("s_sub_u32 s%d, s%d, %d\ns_subb_u32 s%d, s%d, 0" % (b, lo, back, b + 1, lo + 1))
        else: g = I("s_mov_b64 %s, %s" % (S(b, 2), S(lo, 2)))
        return g
    def srd_const(self, name, size):
        b = int(name[2:name.index(":")])
        return I("s_mov_b32 s%d, 0x%x\ns_mov_b32 s%d, 0x20000" % (b + 2, size, b + 3))
    def spin(self, load, sleep=None):
        if sleep is None: sleep = self.o("sl", 0)
        ok, sp = self.lab("ok"), self.lab("spin")
        cmp_ = "v_cmp_ne_u32 vcc, 1, v16"
        if self.prof and self.o("pm", 0) == 6 and not getattr(self, "_in", 0):
            self._in = 1; body = self.spin(load, sleep); self._in = 0
            k = self.nsp[self.ffn] = self.nsp.get(self.ffn, -1) + 1
            return I("s_mov_b32 s3, 0") + body + I("s_mul_i32 s3, s3, 100\ns_add_u32 s%d, s3, s100" % (48 + 2 * k))
        return I(cmp_) + I("s_cbranch_vccz %s" % ok, tag="first", raw=True) + I("""s_mov_b32 s3, 0
%s:
%s%s
s_waitcnt vmcnt(0)
%s
s_add_u32 s3, s3, 1
s_cmp_lt_u32 s3, %d
s_cbranch_vccz %s
s_cbranch_scc1 %s
%s:""" % (sp, "s_sleep %d\n" % sleep if sleep else "", load, cmp_, SPIN_LIMIT, ok, sp, ok), raw=True)

    def cheb(self, X, Y, K, pk=True):
        if not pk: return I("\n".join("v_fma_f32 v%d, v%d, v%d, -v%d" % (X + q, K, Y + q, X + q) for q in range(8)))
        return I("\n".join("v_pk_fma_f32 %s, %s, %s, %s neg_lo:[0,0,1] neg_hi:[0,0,1]" % (V(X + 2 * q, 2), V(K, 2), V(Y + 2 * q, 2), V(X + 2 * q, 2)) for q in range(4)))
    def direct(self, X, spec):
        g = []; src = []
        for i, (d, K, b) in enumerate(spec):
            if K == 0: src.append(b)
            else:
                g += I("v_fmamk_f32 v%d, %s, %s, %s" % (X + i, d, fhex(K), b)); src.append("v%d" % (X + i))
        return g + I("\n".join("v_cos_f32 v%d, %s" % (X + i, src[i]) for i in range(8)))
    def pack(self, dst, X, first=None):
        return flat([cvt(dst + q, first if (q == 0 and first) else X + 2 * q, X + 2 * q + 1) for q in range(4)])

    def gen_G(self, t, pk):
        X, Y, K = t, t + 8, t + 16
        d, a0 = V(t + 18), V(t + 19)
        pre = J("""s_lshl_b32 {t0}, {nt}, 6
s_lshl_b32 {t1}, {w}, 4
s_add_u32 {t0}, {t0}, {t1}
v_add_u32 {d}, {t0}, {l16}
v_cvt_f32_u32 {d}, {d}
v_mul_f32 {d}, {c512}, {d}
v_mul_f32 {k0}, 0x41800000, {d}
v_cos_f32 {k0}, {k0}
v_and_b32 {e0}, 2, {hi}
v_lshlrev_b32 {e0}, 2, {e0}
v_cvt_f32_u32 {e0}, {e0}
v_and_b32 {e1}, 1, {hi}
v_cvt_f32_u32 {a0}, {e1}
v_mul_f32 {a0}, 0x3e800000, {a0}
v_fmac_f32 {a0}, {d}, {e0}
v_add_f32 {k0}, {k0}, {k0}
v_and_b32 {e0}, {e1}, v0
v_mov_b32 {k1}, {k0}
v_lshl_or_b32 {e0}, {e0}, 31, 0.5""", d=d, a0=a0, c512=fhex(1 / 512), k0=V(K), k1=V(K + 1), e0=V(t + 20), e1=V(t + 21))
        kap = [2 * (i & 3) + (i >> 2) for i in range(8)]
        gs = [pre, self.direct(X, [(d, kap[i], a0) for i in range(8)]), self.direct(Y, [(d, 16 + kap[i], a0) for i in range(8)]),
              J("v_cmp_gt_u32 vcc, 2, {hi}") + self.pack(GB + 4, Y) + I("v_cndmask_b32 v%d, v%d, v%d, vcc" % (t + 20, X, t + 20)) + self.pack(GB, X, first=t + 20)]
        for n in range(2, 16):
            a, b = (X, Y) if n % 2 == 0 else (Y, X)
            gs.append(self.cheb(a, b, K, pk) + self.pack(GB + 4 * n, a))
        return gs

    def gen_R(self, part, t, base=None):
        X = t; r = [V(t + 8 + i) for i in range(14)]
        n = dict(q=r[0], k=r[1], ph=r[2], dl=r[3], b0=r[4], b1=r[5], d0=r[6], d1=r[7], o0=r[8], o1=r[9], qt=r[10], h2=r[11], hf=r[12], adr=r[13],
                 c=fhex(1 / 2048), c64=fhex(1 / 64), base=LDS_RPF + 8192 * part if base is None else base)
        g = J("""s_lshl_b32 {t0}, {w}, 11
s_add_u32 {t0}, {t0}, {base}
v_add_u32 {adr}, {t0}, {l16b}
v_cvt_f32_u32 {hf}, {hi}
v_mov_b32 {qt}, 0x3e800000""", **n)
        if part < 2: g += J("s_cmp_eq_u32 {bp}, 0\ns_cselect_b64 {m1}, -1, 0\ns_cselect_b32 {t1}, 32, 64")
        masks = J("s_and_b32 vcc_lo, s96, 0xaaaaaaaa\ns_mov_b32 vcc_hi, vcc_lo\ns_andn2_b64 {m2}, {m1}, vcc")
        if part == 0:
            g += J("""s_and_b32 {t0}, {w}, 1
s_lshl_b32 {t0}, {t0}, 4
v_add_u32 {q}, {t0}, {l16}
v_mul_u32_u24 {k}, {t1}, {q}
v_add_u32 {k}, {bp}, {k}
s_lshr_b32 {t2}, {w}, 1
s_cselect_b64 {m2}, -1, 0
v_cmp_eq_u32 vcc, 0, {k}
v_cvt_f32_u32 {ph}, {t2}
v_mul_f32 {ph}, 0xbe800000, {ph}
v_cvt_f32_u32 {dl}, {k}
v_mul_f32 {dl}, {c}, {dl}
s_and_b64 vcc, vcc, {m2}
v_cndmask_b32 {dl}, {dl}, 0.5, vcc
v_cndmask_b32 {ph}, {ph}, 0, vcc
v_add_f32 {h2}, {hf}, {hf}
v_fma_f32 {b0}, {dl}, {h2}, {ph}
v_add_f32 {b1}, {qt}, {b0}
v_cndmask_b32 {b1}, {b1}, {b0}, {m1}""", **n) + masks + J("""v_cndmask_b32 {d0}, {dl}, 0, vcc
v_cndmask_b32 {b0}, {b0}, {qt}, vcc
v_cndmask_b32 {d1}, {dl}, 0, {m2}
v_cndmask_b32 {b1}, {b1}, {qt}, {m2}""", **n)
            specs = [[((r[6], r[7])[i & 1], 16 * v + 8 * (i // 4) + (i % 4) // 2, (r[4], r[5])[i & 1]) for i in range(8)] for v in range(2)]
        elif part == 1:
            g += masks + J("""s_lshl_b32 {t0}, {w}, 3
v_lshrrev_b32 {q}, 1, {l16}
v_add_u32 {q}, {t0}, {q}
v_cvt_f32_u32 {k}, {q}
v_mul_f32 {k}, {c}, {k}
v_cvt_f32_u32 {ph}, {t1}
v_mul_f32 {dl}, {k}, {ph}
v_cvt_f32_u32 {ph}, {bp}
v_mul_f32 {b0}, {k}, {ph}
v_and_b32 {q}, 1, v0
v_cvt_f32_u32 {ph}, {q}
v_cndmask_b32 {ph}, {ph}, 0, {m1}
v_fmac_f32 {b0}, {qt}, {ph}
v_mul_f32 {ph}, 4.0, {hf}
v_fmac_f32 {b0}, {dl}, {ph}
v_sub_f32 {b1}, {b0}, {qt}
v_cndmask_b32 {d1}, {dl}, 0, {m2}
v_cndmask_b32 {o0}, {b0}, {qt}, {m2}
v_cndmask_b32 {o1}, {b1}, {qt}, {m2}
s_and_b64 {m2}, {m2}, 0xffff
v_cndmask_b32 {d0}, {dl}, 0, vcc
v_cndmask_b32 {b0}, {b0}, {qt}, vcc
v_cndmask_b32 {b1}, {b1}, {qt}, vcc
v_mul_f32 {k}, 0x44800000, {k}
v_cndmask_b32 {k}, {b1}, {k}, {m2}""", **n)
            specs = [[((r[6], r[7])[i & 1], 16 * (i // 4) + i % 4, ((r[4], r[5]), (r[8], r[9]))[i & 1][v]) for i in range(8)] for v in range(2)]
            specs[1][0] = (r[6], 0, r[1])
        else:
            g += J("""s_lshl_b32 {t0}, {w}, 4
v_add_u32 {q}, {t0}, {l16}
v_cvt_f32_u32 {q}, {q}
v_mul_f32 {dl}, {c64}, {q}
v_add_f32 {h2}, {hf}, {hf}
v_mul_f32 {b0}, {dl}, {h2}
v_sub_f32 {b1}, {b0}, {qt}
v_mul_f32 {q}, 0.5, {q}
s_mov_b64 {m2}, 0xffff
v_cndmask_b32 {q}, {b1}, {q}, {m2}""", **n)
            specs = [[(r[3], 16 * v + 8 * (i // 4) + (i % 4) // 2, (r[4], r[5])[i & 1]) for i in range(8)] for v in range(2)]
            specs[0][1] = (r[3], 0, r[0])
        for v in range(2):
            g += self.direct(X, specs[v]) + self.pack(X, X) + I("ds_write_b128 %s, %s offset:%d" % (r[13], V(X, 4), v * 1024), tag="rtab")
        return chunks(g)

    def gen_T(self):
        r = [V(112 + i) for i in range(8)]
        gs = [J("""s_lshr_b32 {t0}, {xn}, 1
s_lshl_b32 {t0}, {t0}, 2
s_add_u32 {t0}, {t0}, {w}
s_lshl_b32 {t0}, {t0}, 5
s_and_b32 {t1}, {xn}, 1
s_add_u32 {t0}, {t0}, {t1}
v_lshl_add_u32 {j}, {l16}, 1, {t0}
v_cvt_f32_u32 {d0}, {j}
v_cmp_eq_u32 vcc, 0, {j}
v_mul_f32 {d0}, {c}, {d0}
v_mov_b32 {b1}, 0x3e800000
s_lshl_b32 {t0}, {wb}, 6
v_lshl_add_u32 {h4}, {hi}, 2, {t0}
v_cvt_f32_u32 {h4}, {h4}
v_cndmask_b32 {d1}, {d0}, 0.5, vcc
v_cndmask_b32 {b1}, {b1}, 0, vcc
v_mul_f32 {b0}, {d0}, {h4}
v_fmac_f32 {b1}, {d1}, {h4}
v_mul_f32 v104, 0x42000000, {d0}
v_mul_f32 v106, 0x42000000, {d1}
v_cos_f32 v104, v104
v_cos_f32 v106, v106
s_lshl_b32 {t0}, {w}, 11
v_add_u32 {adr}, {t0}, {l16b}
v_add_f32 v104, v104, v104
v_add_f32 v106, v106, v106
v_mov_b32 v105, v104
v_mov_b32 v107, v106""", j=r[0], d0=r[2], d1=r[3], b0=r[4], b1=r[5], h4=r[6], adr=r[7], c=fhex(1 / 512))]
        for n in range(8):
            for tt in range(2):
                X, Y = 64 + 16 * tt, 72 + 16 * tt
                a, b = (X, Y) if n % 2 == 0 else (Y, X)
                g = self.direct(a, [(r[2 + tt], 32 * n + 16 * (i // 4) + i % 4, r[4 + tt]) for i in range(8)]) if n < 2 else self.cheb(a, b, 104 + 2 * tt, n < self.o("ntp", 8))
                gs.append(g + self.pack(96 + 4 * tt, a) + I("ds_write_b128 %s, %s offset:%d" % (r[7], V(96 + 4 * tt, 4), n * 8192 + tt * 1024), tag="ttab%d" % (n // 2)))
        sel = J("""s_lshl_b32 {t1}, {t1}, 15
v_lshrrev_b32 v24, 1, {hi}
v_mul_u32_u24 v24, {t1}, v24
v_or_b32 v24, 0x3f80, v24
v_and_b32 v25, 1, v0
v_lshlrev_b32 v25, 4, v25
v_lshlrev_b32 v24, v25, v24
v_lshrrev_b32 v25, 1, {l16}
v_and_b32 v26, 1, {hi}
v_lshlrev_b32 v27, 2, v26
v_xor_b32 v27, v25, v27
v_cmp_eq_u32 vcc, 0, v27
v_cmp_eq_u32 {m1}, 1, v27
v_cmp_eq_u32 {m2}, 2, v27
v_cndmask_b32 v20, 0, v24, vcc
v_cmp_eq_u32 vcc, 3, v27
v_cndmask_b32 v21, 0, v24, {m1}
v_cndmask_b32 v22, 0, v24, {m2}
v_cndmask_b32 v23, 0, v24, vcc
v_xor_b32 v24, v26, v25
v_lshlrev_b32 v24, 4, v24
v_lshl_add_u32 v24, {l16}, 7, v24
v_lshrrev_b32 v25, 1, {hi}
v_lshl_add_u32 v24, v25, 11, v24
v_add_u32 v6, {ring}, v24
v_xor_b32 v7, 32, v6
v_xor_b32 v8, 64, v6
v_xor_b32 v9, 0x60, v6""")
        late = J("""s_lshl_b32 {t0}, {w}, 4
v_add_u32 v24, {t0}, {l16}
v_lshrrev_b32 v18, 1, v24
v_cvt_f32_u32 v18, v18
v_mul_f32 v18, {c}, v18
v_and_b32 v19, 1, v24
v_cvt_f32_u32 v19, v19
v_mul_f32 v19, 0xbe800000, v19
v_cmp_eq_u32 vcc, 1, v24
v_lshlrev_b32 v24, 2, {hi}
v_cvt_f32_u32 v24, v24
s_lshl_b32 {t0}, {w}, 11
s_add_u32 {t0}, {t0}, {stg}
v_cndmask_b32 v18, v18, 0.5, vcc
v_cndmask_b32 v19, v19, 0, vcc
v_fmac_f32 v19, v18, v24
v_add_u32 {pa}, {t0}, {l16b}""", c=fhex(1 / 64), stg=LDS_STG)
        for v in range(2):
            d_ = 10 if v == 0 and self.o("rw", 0) else 24
            wr_ = J("ds_write_b128 {pa}, {r} offset:{o}", tag="r64f", o=v * 1024, r=V(d_, 4))
            late += self.direct(24, [("v18", 32 * v + 16 * (i // 4) + i % 4, "v19") for i in range(8)]) + self.pack(d_, 24) + ([] if self.o("rw", 0) else wr_)
            self.r64w = (self.r64w if v else []) + [wr_]
        return gs, sel, late

    def wd_setup(self):
        g = J("""v_lshrrev_b32 v24, 3, v0
v_bfe_u32 v25, v0, 1, 2
v_xor_b32 v25, v25, {hi}
v_lshlrev_b32 v25, 5, v25
v_lshl_add_u32 v25, v24, 10, v25
v_and_b32 v24, 1, v0
v_lshl_add_u32 {wd}, v24, 4, v25
v_add_u32 v29, 7168, {wd}
v_add_u32 v30, 7168, v29
v_add_u32 v31, 7168, v30
s_mul_i32 {wds}, {w}, {c}
s_lshl_b32 {t0}, {nt}, 7
s_add_u32 {wds}, {wds}, {t0}
s_add_u32 {wde}, {wds}, {c}
v_bfe_u32 v24, v0, 2, 3
v_lshrrev_b32 v25, 5, v0
v_lshlrev_b32 v25, 10, v25
v_lshl_add_u32 v25, v24, 7, v25
v_and_b32 v26, 3, v0
v_lshl_add_u32 v25, v26, 3, v25
v_add_u32 v25, {ring}, v25
v_lshrrev_b32 v24, 1, v24
v_xor_b32 v24, {w}, v24
v_lshl_add_u32 v10, v24, 5, v25
v_xor_b32 v11, 32, v10
v_xor_b32 v12, 64, v10
v_xor_b32 v13, 0x60, v10
s_mul_i32 {rot}, {nt}, {ra}""", c=448 * 1024, ra=self.o("rnt", 0))
        if self.pair:
            g = [x for x in g if x.cls != "salu"]
            return g + J("s_and_b32 {t0}, {bp}, {m}\ns_cselect_b32 {t0}, 28, 0\ns_mul_i32 {rot}, {w}, 7\ns_add_u32 {rot}, {rot}, {t0}\ns_lshl_b32 {wds}, {rot}, 8\ns_add_u32 {wds}, {wds}, {nt}\ns_lshl_b32 {wds}, {wds}, 7\ns_and_b32 {wde}, {rot}, 1\ns_lshl_b32 {wde}, {wde}, 15", m=self.pair)
        if self.o("rl3", 0) == 1: g += J("s_mul_i32 {t0}, {l3}, 7\ns_add_u32 {t0}, {t0}, 1\ns_lshr_b32 {t0}, {t0}, 1\ns_add_u32 {rot}, {rot}, {t0}")
        if self.o("rl3", 0) == 2: g += J("s_and_b32 {t0}, {l3}, 1\ns_mul_i32 {t0}, {t0}, 7\ns_add_u32 {rot}, {rot}, {t0}")
        if self.o("xo", 0) >= 0:
            return g[:-1] + J(("s_add_u32 {rot}, {nt}, {l3}" if self.o("xnt", 0) else "s_mov_b32 {rot}, {l3}") + "\ns_and_b32 {rot}, {rot}, {m}\ns_lshl_b32 {wde}, {rot}, 15", m=self.o("xo", 0))
        g += J("s_sub_u32 {t0}, {rot}, 14\ns_cselect_b32 {rot}, {rot}, {t0}\ns_lshl_b32 {t0}, {rot}, 15\ns_add_u32 {wdo}, {wds}, {t0}")
        return g
    def loc(self, u):
        if self.pair: return (1, u - 4 if u >= 4 else None, u % 4)
        a, n = (8, self.o("nA", 2)) if self.ffn else (4, 4)
        if a <= u < a + n: return (0, None, (u - a + 4 - n) % 4)
        r1 = [v for v in range(14) if not a <= v < a + n]; k = r1.index(u)
        return (1, r1[k - 4] if k >= 4 else None, k % 4)
    def D(self, u, pre=None):
        reg, prev, slot = (self.loc(u) + (u % 4,))[:3]; gs = []
        if self.ef and u < 6: gs += [J("s_xor_b32 {wdo}, {wde}, {o}", o=(2 * (u % 3) + u // 3) << 15), J("s_add_u32 {wdo}, {wdo}, {wds}")]
        elif self.pair: gs.append(J("s_add_u32 {wdo}, {wds}, {o}", o=u << 15))
        elif self.o("xo", 0) >= 0:
            if u == 12: gs.append(J("s_and_b32 {wde}, {wde}, 0x8000"))
            gs += [J("s_xor_b32 {wdo}, {wde}, {o}", o=u << 15), J("s_add_u32 {wdo}, {wdo}, {wds}")]
        elif u: gs += [J("s_add_u32 {wdo}, {wdo}, 0x8000"), J("s_cmp_ge_u32 {wdo}, {wde}\ns_cselect_b32 {wdo}, {wds}, {wdo}")]
        gs.append(J("s_add_u32 m0, {ring}, {o}", o=(slot * 4096 - (0 if reg else 65536)) & 0xFFFFFFFF))
        if prev is not None: gs.append(I("@must t%d" % prev))
        if pre: gs.append(pre)
        gs += [J("buffer_load_dwordx4 v{r}, {SWD}, {wdo} offen offset:{o} lds", tag="d%d" % u, r=vWD[k], o=1024 * k) for k in range(4)]
        return gs
    def wd_reg(self, u, dl): return (160 + 16 * u if u < 2 else 16 * (u - 2) if u < 12 else 16 * u) + 4 * dl
    def T(self, u):
        gs = []
        if self.loc(u)[0] != (self.loc(u - 1)[0] if u else 1): gs += single(I("\n".join("v_xor_b32 v%d, 0x10000, v%d" % (r, r) for r in vDT)))
        gs.append(I("@must d%d" % u))
        for dl in range(4):
            for j4 in range(2):
                gs.append(I("ds_read_b64_tr_b16 %s, v%d offset:%d" % (A(self.wd_reg(u, dl) + 2 * j4, 2), vDT[dl], (self.loc(u) + (u % 4,))[2] * 4096 + j4 * 2048), tag="t%d" % u))
        return gs
    def DD(self, a, b): return [g for u in range(a, b) for g in self.D(u)]
    def TT(self, a, b): return [g for u in range(a, b) for g in self.T(u)]

    def gmap(self, gs, load):
        if not (self.ef == 2 and self.ffn): return gs
        def f(n):
            if 216 <= n < 232: return n + 24
            if n == 236: return 9
            if load and n in (232, 233): return n - 210
            if 232 <= n < 236: return n - 80
            if 240 <= n < 256: return n - 104
            return n
        def t(x):
            x = re.sub(r"v\[(\d+):(\d+)\]", lambda m: "@[%d:%d]" % (f(int(m.group(1))), f(int(m.group(2)))), x)
            return re.sub(r"\bv(\d+)", lambda m: "v%d" % f(int(m.group(1))), x).replace("@[", "v[")
        return [[Ins(t(i.text), i.tag, i.raw) for i in flat([g])] for g in gs]
    def g_loads(self): return self.gmap(self.g_loads_(), True)
    def g_calc(self): return self.gmap(self.g_calc_(), False)
    def g_store(self): return self.gmap([self.g_store_()], False)[0]
    def g_loads_(self):
        loc = self.o("gl", 1)
        return single(J(("s_lshl3_add_u32 {t0}, {xn}, {nt}" if loc else "s_lshl2_add_u32 {t0}, {nt}, {w}") + """
s_lshl_b32 {t0}, {t0}, 1
v_lshrrev_b32 v25, 5, v0
v_add_u32 v236, {t0}, v25
v_and_b32 v25, 3, v236
v_lshrrev_b32 v26, 2, v236
v_lshl_add_u32 v25, v25, 4, v26
v_and_b32 v233, 0x1f0, {l16b}
v_lshl_add_u32 v232, v25, 15, v233
v_lshl_add_u32 v232, {gb}, 10, v232
buffer_load_dwordx4 v[216:219], v232, {SX}, 0 offen offset:2048
buffer_load_dwordx4 v[220:223], v232, {SX}, 0 offen offset:2560
buffer_load_dwordx4 v[224:227], v233, {SGW}, 0 offen
buffer_load_dwordx4 v[228:231], v233, {SGW}, 0 offen offset:512""", tag="gld", gb=NM["b12" if loc else "bp"]))
    def g_calc_(self):
        g = I("@wait gld")
        if self.o("gr", 1):
            for h in range(2):
                x_, w_ = 216 + 4 * h, 224 + 4 * h
                for i in range(4):
                    g += J("v_lshlrev_b32 v{a}, 16, v{x}\nv_and_b32 v{a1}, {hi16}, v{x}\nv_lshlrev_b32 v{b}, 16, v{w_}\nv_and_b32 v{b1}, {hi16}, v{w_}", a=240 + 2 * i, a1=241 + 2 * i, b=248 + 2 * i, b1=249 + 2 * i, x=x_ + i, w_=w_ + i)
                g += I("\n".join("v_pk_mul_f32 %s, %s, %s" % (V(240 + 2 * i, 2), V(240 + 2 * i, 2), V(248 + 2 * i, 2)) for i in range(4)))
                g += self.pack(x_, 240)
            g += J("s_mov_b32 s3, 0x3f803f80")
            g += I("\n".join("v_dot2_f32_bf16 v%d, v%d, s3, 0" % (232 + i, 216 + i) for i in range(4)))
            g += I("\n".join("v_dot2_f32_bf16 v%d, v%d, s3, v%d" % (232 + i, 220 + i, 232 + i) for i in range(4)))
        else:
            g += I("\n".join("v_dot2_f32_bf16 v%d, v%d, v%d, 0" % (232 + i, 216 + i, 224 + i) for i in range(4)))
            g += I("\n".join("v_dot2_f32_bf16 v%d, v%d, v%d, v%d" % (232 + i, 220 + i, 228 + i, 232 + i) for i in range(4)))
        g += I("v_lshlrev_b32 v236, 2, v236\nv_add_f32 v232, v232, v233\nv_add_f32 v234, v234, v235\nv_add_f32 v232, v232, v234")
        for sh in (1, 2, 4, 8):
            g += I("v_add_f32_dpp v232, v232, v232 row_shr:%d row_mask:0xf bank_mask:0xf bound_ctrl:1" % sh)
        g += I("v_add_f32_dpp v232, v232, v232 row_bcast:15 row_mask:0xa bank_mask:0xf")
        rnd = I("v_cvt_pk_bf16_f32 v232, 0, v232") if self.o("gr", 1) else []
        g += rnd + I("v_mul_f32 v232, 0xbfb8aa3b, v232\nv_exp_f32 v232, v232\nv_add_f32 v232, 1.0, v232\nv_rcp_f32 v232, v232") + (I("v_cvt_pk_bf16_f32 v232, 0, v232") if rnd else [])
        return single(g)
    def g_store_(self):
        return J("s_lshl_b32 {t0}, {gb}, 8\ns_add_u32 {t0}, {t0}, {g}\ns_mov_b32 exec_lo, 0x80000000\ns_mov_b32 exec_hi, 0x80000000", g=WS_G, gb=NM["b12" if self.o("gl", 1) else "bp"]) + \
               J("buffer_store_dword v232, v236, {SWS}, {t0} offen sc1", tag="gst") + I("s_mov_b64 exec, -1")
    def c_loads(self, acc=False):
        return chunks(J(self.creg(acc, """s_cmp_eq_u32 {bp}, 0
s_cselect_b32 {t1}, 32, 64
s_cselect_b64 {mask}, 0xffff, 0
s_and_b32 {t0}, {w}, 1
s_lshl_b32 {t0}, {t0}, 4
v_lshrrev_b32 v27, 2, v0
v_add_u32 v27, {t0}, v27
v_mul_u32_u24 v27, {t1}, v27
v_add_u32 v27, {bp}, v27
v_cmp_eq_u32 vcc, 0, v27
v_sub_u32 v28, 0x800, v27
v_mov_b32 v26, 0x400
s_cmp_lt_u32 {w}, 2
s_cselect_b64 {m1}, -1, 0
v_cndmask_b32 v28, v28, v26, vcc
v_cndmask_b32 v27, v28, v27, {m1}
v_mul_u32_u24 v27, 514, v27
v_and_b32 v28, 48, {l16b}
s_lshl_b32 {t2}, {jb}, 6
s_sub_u32 {t2}, {t2}, {sh}
v_add3_u32 v20, v28, v27, {t2}""")))
    def c_fetch(self, arr):
        l = self.lab("ev"); srd = (SWR, SWI)[arr]
        g = [J("s_cmp_eq_u32 {sh}, 0") + J("s_cbranch_scc1 {l}\nbuffer_load_dword v{d}, v20, {srd}, 0 offen offset:16\n{l}:", raw=True, l=l, d=40 + arr, srd=srd),
             J("buffer_load_dwordx4 {r}, v20, {srd}, 0 offen", tag="cld", r=V(32 + 4 * arr, 4), srd=srd)]
        if not self.ffn: g.append(J("buffer_load_ushort v{d}, v27, {srd}, 0 offen offset:512", tag="cld", d=42 + arr, srd=srd))
        return g
    def creg(self, acc, t): return t
    def c_stage(self):
        if self.cin:
            g = J("s_lshl_b32 {t2}, {w}, 10\ns_add_u32 {t2}, {t2}, {stg}\nv_add_u32 v28, {t2}, {l16b}\ns_mov_b32 {t2}, 0x05040100\ns_mov_b32 {t3}, 0x07060302\n@must cld", stg=self.cstg)
            for arr in range(2):
                s_ = 32 + 4 * arr; d_ = 24 if arr == 0 else 32
                g += flat([J("v_alignbyte_b32 v{a}, v{b}, v{a}, {sh}", a=s_ + i, b=s_ + i + 1 if i < 3 else 40 + arr) for i in range(4)])
                g += J("v_perm_b32 v{d0}, v{s1}, v{s0}, {t2}\nv_perm_b32 v{d1}, v{s3}, v{s2}, {t2}\nv_perm_b32 v{d2}, v{s1}, v{s0}, {t3}\nv_perm_b32 v{d3}, v{s3}, v{s2}, {t3}",
                       d0=d_, d1=d_ + 1, d2=d_ + 2, d3=d_ + 3, s0=s_, s1=s_ + 1, s2=s_ + 2, s3=s_ + 3)
                g += I("ds_write_b128 v28, %s offset:%d" % (V(d_, 4), arr * 4096), tag="rtab")
            return single(g)
        g = J("""s_mul_i32 {t0}, {w}, 1280
s_add_u32 {t0}, {t0}, {stg}
v_lshrrev_b32 v27, 2, v0
v_lshl_add_u32 v28, v27, 4, {l16b}
v_add_u32 v28, {t0}, v28
s_mov_b32 {t2}, 0x05040100
s_mov_b32 {t3}, 0x07060302
s_mov_b32 s96, 0x11111111
s_mov_b32 s97, 0x11111111
@wait cld""", stg=self.cstg)
        for arr in range(2):
            s_, d_ = 32 + 4 * arr, 192 + 4 * arr
            g += flat([J("v_alignbyte_b32 v{a}, v{b}, v{a}, {sh}", a=s_ + i, b=s_ + i + 1 if i < 3 else 40 + arr) for i in range(4)])
            g += J("v_perm_b32 v{d0}, v{s1}, v{s0}, {t2}\nv_perm_b32 v{d1}, v{s3}, v{s2}, {t2}\nv_perm_b32 v{d2}, v{s1}, v{s0}, {t3}\nv_perm_b32 v{d3}, v{s3}, v{s2}, {t3}",
                   d0=d_, d1=d_ + 1, d2=d_ + 2, d3=d_ + 3, s0=s_, s1=s_ + 1, s2=s_ + 2, s3=s_ + 3)
            g += I("ds_write_b128 v28, %s offset:%d" % (V(d_, 4), arr * 5120), tag="cst")
            if not self.ffn: g += J("v_and_or_b32 v{d}, v{d}, {hi16}, v{q}", d=d_, q=42 + arr)
        if self.ffn: return single([x for x in g if "0x11111111" not in x.text])
        return single(g) + [J("s_mov_b64 exec, {m1}") + I("ds_write_b64 v28, v[192:193] offset:64\nds_write_b64 v28, v[196:197] offset:5184", tag="cst") + I("s_mov_b64 exec, -1")]
    def c_calc(self):
        g = J("""s_or_b32 {t1}, {w}, {jb}
s_cselect_b32 {t1}, 4, 2
s_lshl_b32 {t0}, {w}, 4
v_and_b32 v26, 3, v0
v_cmp_eq_u32 vcc, {t1}, v26
v_and_b32 v28, 1, v0
v_lshl_add_u32 v28, v28, 3, {t0}
v_lshrrev_b32 v27, 2, v0
v_mul_u32_u24 v27, 80, v27
v_cndmask_b32 v28, v28, 64, vcc
s_mov_b32 {t0}, {stg}
v_add3_u32 v27, v27, v28, {t0}""", stg=self.cstg)
        rs = 80; tb = 192
        if self.cin:
            rs = 64; tb = 152
            g = J("s_lshl4_add_u32 {t0}, {w}, {stg}\nv_and_b32 v28, 1, v0\nv_lshl_add_u32 v28, v28, 3, {t0}\nv_lshrrev_b32 v27, 2, v0\nv_lshl_add_u32 v27, v27, 6, v28", stg=self.cstg)
        for th in range(2):
            for arr in range(2):
                for side in range(2):
                    g += I("ds_read_b64_tr_b16 %s, v27 offset:%d" % (V(tb + ((th * 2 + arr) * 2 + side) * 2, 2), (arr * 64 + side * 32 + th * 16) * rs), tag="crd")
        q = I("@wait crd")
        for th in range(2):
            for r in range(4):
                e = th * 4 + r
                t = tb + 16 + (e % 2) * 4
                for n, (arr, side) in enumerate([(0, 0), (0, 1), (1, 0), (1, 1)]):
                    src = tb + ((th * 2 + arr) * 2 + side) * 2 + r // 2
                    q += J("v_and_b32 v{d}, {hi16}, v{s}" if r & 1 else "v_lshlrev_b32 v{d}, 16, v{s}", d=t + n, s=src)
                a_, b_, c_, d_ = CO + e, CO + 8 + e, CO + 16 + e, CO + 24 + e
                q += I("v_add_f32 v%d, v%d, v%d\nv_add_f32 v%d, v%d, v%d\nv_sub_f32 v%d, v%d, v%d\nv_sub_f32 v%d, v%d, v%d" % (
                    a_, t, t + 1, b_, t + 2, t + 3, c_, t + 3, t + 2, d_, t, t + 1))
                if e == 0:
                    q += J("""v_cndmask_b32 v{a2}, v{a}, v{t1_}, {mask}
v_cndmask_b32 v{b2}, v{b}, v{t3_}, {mask}
v_cndmask_b32 v{a}, v{a}, v{t0_}, {mask}
v_cndmask_b32 v{b}, v{b}, v{t2_}, {mask}
v_cndmask_b32 v{c}, v{c}, 0, {mask}
v_cndmask_b32 v{d}, v{d}, 0, {mask}""", a2=CA2, b2=CB2, a=a_, b=b_, c=c_, d=d_, t0_=t, t1_=t + 1, t2_=t + 2, t3_=t + 3)
        return chunks(g), single(q)

    GATE_LD = "buffer_load_dword v16, v17, %s, 0 offen sc1" % SDBG
    POLL_LD = "buffer_load_dword v16, v17, %s, s82 offen sc1" % SWS
    def gate_ld(self):
        return single(J("v_min_u32 {pa}, {n}, v0\nv_lshlrev_b32 {pa}, 2, {pa}", n=NCLR - 1) + I(self.GATE_LD, tag="poll"))
    def x1_addr(self):
        return single(J("""s_lshr_b32 {t0}, {jb}, 2
s_lshl_b32 {t0}, {t0}, 8
s_lshl_b32 {t1}, {w}, 15
s_add_u32 {t0}, {t0}, {t1}
s_add_u32 {wo1}, {t0}, {fl}
v_lshrrev_b32 {pa}, 3, v0
v_lshlrev_b32 {pa}, 12, {pa}
v_bfe_u32 v28, v0, 2, 1
v_lshl_add_u32 {pa}, v28, 7, {pa}""", fl=WS_FLAG + 28 * 128))
    def rp_reads(self):
        return [J("v_add_u32 v19, {a}, {l16b}", a=LDS_RPF)] + \
               [I("ds_read_b128 %s, v19 offset:%d" % (A((224 if f < 8 else 160) + 4 * f, 4), f * 1024), tag="rp") for f in range(16)]
    def flag_addr(self):
        return J("s_lshl_b32 {wo0}, {b12}, 5\ns_add_u32 {wo0}, {wo0}, {ni}\ns_lshl_b32 {wo0}, {wo0}, 7\ns_add_u32 {wo0}, {wo0}, {fl}", fl=WS_FLAG)
    def set_flag(self):
        return I("v_mov_b32 v24, 1\n@wait pub\ns_mov_b64 exec, 1") + J("buffer_store_dword v24, v0, {SWS}, {wo0} offen sc1") + I("s_mov_b64 exec, -1")

    def prologue(self):
        p = []
        if self.prof: p += I("%s s[100:101]" % self.clk(), raw=True)
        p += J("""s_load_dwordx16 s[48:63], s[0:1], 0
s_cmp_ge_u32 s2, 256
s_cbranch_scc1 L_end
s_load_dwordx4 s[64:67], s[0:1], 64
s_load_dwordx2 s[68:69], s[0:1], 80
s_getpc_b64 {m1}
L_pc:
v_lshlrev_b32 v24, 3, v0
v_readfirstlane_b32 {w}, v0
s_lshr_b32 {loc}, s2, 3
v_lshl_add_u32 v24, {loc}, 11, v24
v_min_u32 v24, L_end-L_pc, v24
global_load_dword v31, v24, {m1}
v_and_b32 v0, 63, v0
v_and_b32 {l16}, 15, v0
v_lshrrev_b32 {hi}, 4, v0
s_lshr_b32 {w}, {w}, 6
s_and_b32 {xcd}, s2, 7
s_and_b32 {l3}, {loc}, 3
s_lshr_b32 {nt}, {loc}, 2
s_lshr_b32 {xn}, {xcd}, 1
s_lshl_b32 {bp}, {xcd}, 2
s_add_u32 {bp}, {bp}, {l3}
s_and_b32 {b12}, {bp}, 7
s_lshl_b32 {b12}, {b12}, 2
s_add_u32 {b12}, {b12}, {w}
s_lshl_b32 s76, {b12}, 10
v_lshrrev_b32 v25, 3, v0
v_and_b32 v24, 7, v0
v_xor_b32 v24, v24, {hi}
v_lshlrev_b32 v24, 4, v24
v_lshl_add_u32 {x}, v25, 15, v24
v_xor_b32 v18, 0x40040, {x}
v_subrev_u32 v18, 0x400, v18
s_lshl_b32 {ring}, {w}, 14
s_add_u32 {ring}, {ring}, 0x10000""")
        if "probe" in self.kw:
            k = self.kw["probe"]
            p += I("s_waitcnt lgkmcnt(0) vmcnt(0)\ns_mov_b64 s[44:45], s[%d:%d]\ns_mov_b32 s46, 0x100000\ns_mov_b32 s47, 0x20000" % (48 + 2 * k, 49 + 2 * k))
            p += J("s_lshl_b32 s3, s2, 2\ns_add_u32 s3, s3, {w}\ns_lshl_b32 s3, s3, 7\nv_mov_b32 v26, 0\ns_memrealtime s[96:97]\ns_waitcnt lgkmcnt(0)")
            if "pbw" in self.kw:
                p += I("s_mov_b32 s46, 0x10000000\ns_lshl_b32 s3, s3, 7\ns_add_u32 s3, s3, %d\nv_lshlrev_b32 v26, 4, v0" % (self.kw["pbw"] << 20))
                for i in range(16):
                    op = "buffer_store_dwordx4 v[128:131], v26, s[44:47], s3 offen sc1" if self.o("pst", 0) else "buffer_load_dwordx4 v[%d:%d], v26, s[44:47], s3 offen" % (128 + 4 * i, 131 + 4 * i)
                    p += I(op + "\ns_add_u32 s3, s3, 1024")
                p += I("s_waitcnt vmcnt(0)")
            else:
                for i in range(8): p += I("buffer_load_dword v27, v26, s[44:47], s3 offen\ns_waitcnt vmcnt(0)\ns_add_u32 s3, s3, 0x20000")
            p += I("s_memrealtime s[98:99]\ns_waitcnt lgkmcnt(0)\ns_sub_u32 s98, s98, s96\ns_add_u32 s100, s100, s98")
        p += self.srd_const(SX, 2097152 + 2048)
        p += J("s_cmp_eq_u32 {nt}, 7\ns_cbranch_scc1 L_dft")
        return p
    def common2(self):
        p = J("v_lshlrev_b32 {l16b}, 4, v0\ns_lshl_b32 {lw}, {loc}, 2\ns_add_u32 {lw}, {lw}, {w}\ns_mul_i32 s3, {xcd}, 112\ns_add_u32 {lw}, {lw}, s3\ns_lshl_b32 {lw}, {lw}, 11\ns_mov_b32 {hi16}, 0xffff0000\ns_add_u32 {jb}, {nt}, 1\ns_and_b32 {jb}, {jb}, 7\ns_and_b32 {sh}, {bp}, 1\ns_lshl_b32 {sh}, {sh}, 1")
        for nm, lo, sz in ((SWS, 68, 0x10000000), (SDBG, 66, 256), (SWD, 60, 1792 * 1024), (SOUT, 64, 2097152), (SWR, 50, 2048 * 514), (SWI, 52, 2048 * 514), (SGW, 62, 1024)):
            p += self.srd(nm, lo, sz) + self.srd_const(nm, sz)
        return p

    def p12f(self):
        self.ffn = True; self.cin = self.o("cin", 0); self.cstg = LDS_R64I if self.cin else LDS_RPF
        def kadv(du):
            kr = self.o("kr", 6)
            if kr == 4: return single(J("s_xor_b32 {k}, {k}, 1" if du & 1 else "s_xor_b32 {k}, {k}, 1\ns_add_u32 {k}, {k}, 2\ns_and_b32 {k}, {k}, 7"))
            if kr == 5: return single(J("s_xor_b32 {k}, {k}, %d" % (du ^ (du - 1))))
            return single(J("s_add_u32 {k}, {k}, 1\ns_and_b32 {k}, {k}, 7"))
        def wl(du):
            gs = []
            if du == 1: gs += kadv(du)
            gs += single(J("s_mul_i32 {wo0}, {k}, {c}\ns_add_u32 {wo0}, {wo0}, {wb}\ns_add_u32 {wo1}, {wo0}, {c2}", c=64 * 3584, c2=32 * 3584 - 2048))
            gs.append(J("s_add_u32 m0, {lw4}, {o}", o=(du % 4) * 16384))
            for h in range(2):
                for mat in range(2):
                    gs.append(J("buffer_load_dwordx4 {vw}, {srd}, {so} offen offset:{o} lds", tag="w%d" % du, srd=(SWG, SWU)[mat], so=NM["wo%d" % h], o=(2 * h + mat) * 1024))
            return gs
        def xl(du):
            gs = []
            if du >= 2: gs += kadv(du)
            gs += single(J("v_lshl_add_u32 {xr}, {k}, 7, {x}\nv_lshl_add_u32 {xr2}, {k}, 7, v18"))
            for m in range(4):
                if m % 2 == 0: gs.append(J("s_add_u32 m0, {ring}, {o}", o=(du % 2) * 8192 + m * 2048))
                for e in range(2):
                    g = J("buffer_load_dwordx4 {r}, {SX}, s{so} offen offset:{o} lds", tag="x%d" % du, r=NM[("xr", "xr2")[e]], so=76 + m, o=((m & 1) * 2 + e) * 1024)
                    if du >= 2 and m == 0 and e == 0: g = I("@need xf%d" % (du - 2)) + g
                    gs.append(g)
            return gs
        def xf(du):
            return [I("@wait x%d" % du)] + [I("ds_read_b128 %s, v%d offset:%d" % (A((du % 4) * 32 + h * 16 + m * 4, 4), vXA[h], (du % 2) * 8192 + m * 2048), tag="xf%d" % du)
                                           for h in range(2) for m in range(4)]
        p = J("""s_bfe_u32 {t0}, {nt}, {mp}
s_lshl_b32 {t0}, {t0}, 19
s_add_u32 s76, s76, {t0}
s_xor_b32 s77, s76, 0x80000
s_xor_b32 s79, s76, 0x180000
s_xor_b32 s78, s76, 0x100000
s_add_u32 s76, s76, 0x800
s_add_u32 s78, s78, 0x800
s_lshl_b32 {k}, {xcd}, 2
s_add_u32 {k}, {k}, {xcd}
s_and_b32 {k}, {k}, {km}
s_mul_i32 {ni}, {xn}, 7
s_add_u32 {ni}, {ni}, {nt}
s_mul_i32 {wb}, {w}, {c}
s_lshl_b32 {t0}, {ni}, 7
s_add_u32 {wb}, {wb}, {t0}
v_mul_u32_u24 v24, 3584, v25
s_and_b32 {t0}, {w}, 1
s_lshl_b32 {t0}, {t0}, 1
v_and_or_b32 v25, {hi}, 1, {t0}
v_bfe_u32 v26, v0, 1, 2
v_xor_b32 v25, v25, v26
v_lshl_add_u32 v24, v25, 5, v24
v_and_b32 v25, 1, v0
v_lshl_add_u32 {vw}, v25, 4, v24
s_lshl_b32 {lw4}, {w}, 12""", c=8 * 3584, mp=(self.o("mp", 3).bit_length() << 16) | self.o("msh", 1), km=self.o("km", 6))
        kr = self.o("kr", 6)
        if kr == 4: p += J("s_lshr_b32 {t0}, {nt}, {sh}\ns_xor_b32 {t0}, {l3}, {t0}\ns_and_b32 {t0}, {t0}, 1\ns_add_u32 {k}, {k}, {t0}", sh=self.o("ksh", 2))
        if kr == 5: p += J("s_add_u32 {t0}, {l3}, {nt}\ns_and_b32 {t0}, {t0}, 3\ns_add_u32 {k}, {xcd}, {xn}\ns_and_b32 {k}, {k}, 1\ns_lshl2_add_u32 {k}, {k}, {t0}")
        if kr == 1: p += J("s_lshl_b32 {k}, {l3}, 1\ns_add_u32 {k}, {k}, {nt}\ns_and_b32 {k}, {k}, 7")
        if kr == 2: p += J("s_xor_b32 {t0}, {l3}, {nt}\ns_and_b32 {t0}, {t0}, 1\ns_lshl_b32 {t0}, {t0}, 2\ns_lshl_b32 {k}, {xcd}, 1\ns_add_u32 {k}, {k}, {xn}\ns_and_b32 {k}, {k}, 3\ns_add_u32 {k}, {k}, {t0}")
        if kr == 6: p += J("s_xor_b32 {t0}, {l3}, {nt}\ns_and_b32 {t0}, {t0}, 1\ns_lshl_b32 {k}, {xcd}, 2\ns_lshr_b32 {k}, {tab}, {k}\ns_and_b32 {k}, {k}, 3\ns_lshl2_add_u32 {k}, {t0}, {k}", tab=int(str(self.o("ktab", 12021220)), 16))
        if kr == 3: p += J("s_add_u32 {t0}, {l3}, {nt}\ns_and_b32 {t0}, {t0}, 3\ns_lshl_b32 {t0}, {t0}, 1\ns_add_u32 {k}, {xcd}, {xn}\ns_and_b32 {k}, {k}, 1\ns_add_u32 {k}, {k}, {t0}")
        p += self.srd_const(SWG, 512 * 3584) + self.srd_const(SWU, 512 * 3584 + 1024)
        w0 = wl(0); x0 = xl(0)
        p += flat(w0[:4] + x0[:2]) + self.srd(SWG, 56, 0) + self.srd(SWU, 58, 0, back=1024) + self.srd(SX, 48, 0, back=2048)
        xt = J("s_mul_i32 s3, {nt}, {c}\ns_add_u32 s3, s3, {b12}\ns_lshl_b32 s3, s3, 10\nv_lshrrev_b32 v26, 2, v0\nv_min_u32 v26, 9, v26\nv_lshlrev_b32 v26, 15, v26\nbuffer_load_dword a173, v26, {SX}, s3 offen offset:2432", c=9 * 32)
        xtp = self.o("xt3", 0)
        p += flat(w0[4:]) + (xt if xtp == 1 and False else []) + flat(x0[2:]) + (xt if xtp == 1 else [])
        p += self.common2()
        p += self.stamp(0)
        l = self.lab("noclr")
        p += J("s_sub_u32 s3, s2, 128\ns_cmp_lt_u32 s3, {n}\ns_cselect_b32 {clr}, {w}, 4", n=NCLR) + I("\n".join("v_accvgpr_write_b32 a%d, 0" % (180 + i) for i in range(4)))
        clear = J("s_cmp_eq_u32 {clr}, 4") + J("""s_cbranch_scc1 {l}
s_lshl2_add_u32 s3, s2, {w}
s_lshl_b32 s3, s3, 10
s_add_u32 s3, s3, {fl}
buffer_store_dwordx4 a[180:183], {l16b}, {SWS}, s3 offen sc1
{l}:""", raw=True, l=l, fl=WS_FLAG - 128 * 4096)
        st = [J("""v_lshrrev_b32 v24, 1, {l16}
v_xor_b32 v24, v24, {hi}
v_lshlrev_b32 v24, 4, v24
v_lshl_add_u32 v24, {l16}, 7, v24
v_add_u32 v22, {ring}, v24
v_xor_b32 v23, 64, v22
v_lshlrev_b32 v24, 12, {hi}
v_bfe_u32 v25, v0, 2, 2
v_lshl_add_u32 v24, v25, 7, v24
v_and_b32 v25, 3, v0
v_lshl_add_u32 v24, v25, 3, v24
v_bfe_u32 v25, v0, 3, 2
v_lshl_add_u32 v6, v25, 5, v24
v_xor_b32 v7, 32, v6
v_xor_b32 v8, 64, v6
v_xor_b32 v9, 0x60, v6""")]
        cl, gl = self.c_loads() + self.c_fetch(0) + self.c_fetch(1), self.g_loads()
        cpos = self.o("cpos", 2)
        gwt = [J("buffer_load_dword a171, {l16b}, {SGW}, 0 offen")]
        rip = self.rip = self.o("rip", 1) and self.o("x1late", 0)
        st = single(st) + cl[:-4] + self.gen_R(0, 128) + ([] if rip else self.gen_R(1, 160)) + (self.gen_R(2, 192) if self.o("r2p", 0) == 1 else [])
        l1 = ([xt] if xtp == 2 else []) + wl(1) + ([xt] if xtp == 3 else []) + xl(1); n1 = (xtp >= 2) +  self.o("n1", 15) - (self.o("kr", 6) in (4, 5))
        p += flat(weave(st, l1[:n1], self.o("l1pos", 60 if rip else 130), len(st)))
        p += I("@wait w0 x0\ns_barrier")
        p += self.stamp(1)
        units = {0: "E0 L0 E1 L1 E2 L2 E3 E4 L3 E5 E6 L4 E7 L5 L6 L7", 1: "E0 L0 E1 L1 E2 L2 E3 L3 E4 E5 L4 E6 E7 L5 L6 L7",
                 2: "E0 L0 E1 L1 E2 L2 E3 L3 E4 E5 L4 E6 L5 E7 L6 L7", 3: "E0 L0 E1 L1 E2 L2 E3 L3 E4 L4 E5 L5 E6 E7 L6 L7"}[self.o("us", 1)].split()
        seq = [(2 * int(u[1]) + h, tau + (4 if u[0] == "L" else 0)) for u in units for h in range(2) for tau in range(4)]
        U = dict((u, 32 * i) for i, u in enumerate(units))
        LA = 5
        nm = self.o("nm", 0); km = 128 - 8 * nm
        home = list(range(0, 32, 4)) + list(range(176, 192, 4)) + [128 + 4 * i for i in range(4)]
        fr = lambda k: 128 + 4 * (k % 8) if k < km else home[k - km]
        def rd(k):
            n, tau = seq[k]
            off = ((n // 2) % 4) * 16384 + ((n & 1) * 2 + (tau & 1)) * 1024
            return [I("ds_read_b64_tr_b16 %s, v%d offset:%d" % (A(fr(k) + 2 * j4, 2), vWT[tau // 2], off + 512 * j4), tag="f%d" % k) for j4 in range(2)]
        x0 = xf(0)
        p += flat(rd(0) + x0[:5] + rd(1) + rd(2) + x0[5:] + rd(3) + rd(4))
        mf = []
        for k, m in [(k, m) for k in range(km) for m in range(4)] + [(k, m) for m in range(4) for k in range(km, 128)]:
                n, tau = seq[k]
                acc = V(128 + (tau * 4 + m) * 4, 4)
                mf.append(I("%s %s, %s, %s, %s" % (MF, acc, A(fr(k), 4), A(((n // 2) % 4) * 32 + (n & 1) * 16 + m * 4, 4), acc if n else "0")))
        G = Gaps(mf)
        for k in range(128):
            if k + LA < km:
                r = rd(k + LA); G.put(4 * k, r[0]); G.put(4 * k + 2, r[1])
            if k % 2 == 1 and k + 1 < km: G.put(4 * k + 3, I("@wait f%d" % (k + 2)))
        if nm:
            assert self.o("nin", 1) <= 1 and self.o("tep", 2) == 2
            n_a = min(8 * nm, 12)
            G.stream([g for k in range(km, km + n_a) for g in rd(k)], 4 * km - (30 if nm == 1 else 58), 4 * km - (5 if nm == 1 else 14))
            if nm == 2: G.stream([g for k in range(km + 12, 128) for g in rd(k)], 4 * km - 13, 4 * km - 2, spread=False)
            G.put(4 * km - 1, I("@must f%d" % (km + n_a - 1)))
            if nm == 2: G.put(4 * km + 10, I("@must f127"))
        bar = {}
        for du in range(1, 8):
            bar[du] = U["E%d" % du] - 4 * LA - 1
            G.put(bar[du], I("@wait w%d rtab\ns_barrier" % du))
        lead = G.stream(l1[n1:], 0, 12, spread=False) if l1[n1:] else 0
        aa = [[0, 52, 104, 156, 208, 260], [0, 60, 118, 172, 224, 276], [0, 64, 124, 180, 234, 288], [0, 64, 128, 192, 250, 306], [0, 64, 128, 192, 256, 320], [0, 46, 110, 172, 230, 286], [0, 46, 104, 164, 222, 278]][self.o("aa", 2)]
        aa = dict(zip(range(2, 10), aa + [aa[-1] + 54, aa[-1] + 108]))
        xfe = {}; xfs = {}; span = {}
        for du in range(1, 8):
            e = min(aa[du + 2], U["E%d" % du]) - 2
            assert du < 4 or e - 18 >= U["L%d" % (du - 4)] + 32
            xfe[du] = G.stream(xf(du), e - 18, e); xfs[du] = e - 18
        last = lead
        for du in range(2, 8):
            a0 = max(aa[du], last + 1)
            last = G.stream(([clear] if du == self.o("clrdu", 2) else []) + xl(du), a0, a0 + (self.o("xs", 16) if self.o("xs0", 3) <= du <= self.o("xsd", 4) else 36))
            w0_ = last + 1
            if du >= 4: w0_ = max(w0_, min(b for b in bar.values() if b >= U["L%d" % (du - 4)] + 32) + 1)
            tr_ = {self.o("tdu", 4): [0]}.get(du, [])
            cd = self.o("cdu", 2)
            ex = [] if cpos != 2 else cl[-4:-2] + gwt if du == cd else cl[-2:] if du == cd + 1 else []
            if cpos == 3 and du == cd: ex = cl[-4:] + gwt
            last = G.stream(wl(du) + ex + [g for r in tr_ for g in self.touch(r)] + (self.touch3() if du == self.o("t3du", 6) else []) + (self.keep(du) if du == self.o("ka", 9) else []) + (self.retouch() if du == 7 else []) + (self.pretouch(178, 28) if du == self.o("ptd", 2) else []), w0_, w0_ + (self.o("wsp", 10) if self.o("xs0", 3) <= du <= self.o("xsd", 4) else 16) + 4 * len(tr_))
            assert last < bar[du] - 4, (du, last, bar[du])
            span[du] = (a0 if du > 2 else 0, last)
        vend = last
        l = self.lab("noann")
        ann = J("s_cmp_lg_u32 {clr}, 0") + J("""s_cbranch_scc1 {l}
v_mov_b32 v27, 1
s_lshl_b32 s3, s2, 2
s_sub_u32 s3, s3, 512
s_mov_b64 exec, 1
buffer_store_dword v27, v0, {SDBG}, s3 offen sc1
s_mov_b64 exec, -1
{l}:""", raw=True, l=l)
        G.put(bar[self.o("clrdu", 2)] + 2, ann)
        G.stream(self.rp_reads()[:9 if rip else 17], 130, 230)
        e0 = U["E7"] + 32
        e = G.stream(self.gate_ld() + (cl[-4:] if cpos == 0 else []), vend + 1, vend + 12)
        e1 = vend
        d0 = max(e, e1, xfe[6] + 4, vend + self.o("d0gap", 10))
        e = G.stream(self.D(0, I("@need xf6")) + self.D(1), d0, d0 + 32)
        d2 = max(e + 1, xfe[7] + 4)
        e = G.stream(self.D(2, I("@need xf7")) + self.D(3), d2, d2 + 32)
        G.stream(single(J("s_bfe_u32 {t0}, {nt}, {mp}\ns_lshl2_add_u32 {t2}, {b12}, {t0}\ns_lshl_b32 {t2}, {t2}, 5\ns_add_u32 {t2}, {t2}, {ni}\ns_lshl_b32 {t2}, {t2}, 11", mp=(self.o("mp", 3).bit_length() << 16) | self.o("msh", 1)) + self.flag_addr()) + self.setupA() +
                 [I("@wait poll") + self.spin(self.GATE_LD)] + self.x1_addr(), e1 + 1, min(e0, self.o("xp", 492) + 30))
        late1 = self.o("x1late", 0)
        if not late1:
            G.put(self.o("xp", 492), I(self.POLL_LD, tag="poll"))
            xc = self.o("xc", 0)
            G.stream(single(self.x1_pre()[:-1]), (xc or 511) - 36, (xc or 511) - 1)
            if xc: G.put(xc, I("@wait poll") + self.x1_pre()[-1:] + self.x1_fetch())
        nin = self.o("nin", 1)
        t0_ = max(e + 1, U["L4"] + 32 if nin > 2 else 0, d0 + self.o("t0gap", 70))
        t0_ = min(t0_, 470)
        G.stream(self.TT(0, nin) + self.DD(4, 4 + nin), t0_, min(506, (self.o("xc", 0) or 999) - 2, self.o("tend", 440)))
        gs_ = 18 - self.o("gsplit", 5)
        bulk = self.o("bulk", 0)
        if bulk:
            gs_ = 18; gp = self.gen_G(42, True); b1 = self.o("b1", 6); bo = self.o("bo", 2)
            stall = lambda du: min(bar[du], xfs[du]) - bo
            G.put(stall(1), flat(gp[:b1])); G.put(stall(2), flat(gp[b1:]))
            if self.o("r2p", 0) == 2: G.put(stall(3), flat(self.gen_R(2, 42)))
            G.stream(chunks(self.wd_setup()), 200, vend)
        elif self.o("fs", 0):
            q = (self.gen_R(2, 42) if self.o("r2p", 0) == 2 else []) + chunks(self.wd_setup()) + chunks(self.gen_G(42, False)[:gs_])
            e = 0
            for du, n in ((2, self.o("fs", 0)), (3, self.o("fs3", 0))):
                a_, b_ = span[du]
                for k, g in enumerate(q[:n]): G.put(a_ + k * (b_ - a_) // n, g)
                q = q[n:]
                if du == 2: m_ = self.o("fm", 20); G.stream(q[:m_], b_, span[3][0], spread=False); q = q[m_:]
            n4 = self.o("fs4", 0)
            if n4 or self.cin:
                m_ = self.o("fm", 20); G.stream(q[:m_], span[3][1], span[4][0], spread=False); q = q[m_:]
                q4 = q[:n4] + (self.c_stage() if self.cin else []); q = q[n4:]; a_, b_ = span[4]
                for k, g in enumerate(q4): G.put(a_ + k * (b_ - a_) // len(q4), g)
                if q: G.stream(q, self.o("gls", b_), e0, spread=False)
            else: G.stream(q, span[3][1] if self.o("fs3", 0) else span[3][0], e0, spread=False)
        elif self.o("ge", 0):
            ge = self.o("ge", 0); gn = self.gen_G(42, False)
            G.stream(chunks(self.wd_setup()) + chunks(gn[:ge]), 4, self.o("gee", 128), spread=False)
            if gs_ > ge: G.stream(chunks(gn[ge:gs_]), self.o("gls", 340), 500, spread=False)
        else:
            if self.cin: G.stream(self.c_stage(), self.o("cs", 200), self.o("cs", 200) + 30)
            G.stream(chunks(self.wd_setup()) + chunks(self.gen_G(42, False)[:gs_]), 4, self.o("gend", e0), spread=False)
        def epi(u, m, pk):
            g0, u0, g1_, u1 = [128 + ((4 * u + k) * 4 + m) * 4 for k in range(4)]
            g = []
            for gg in (g0, g1_): g += I("\n".join("v_max_f32 v%d, 0, v%d" % (gg + r, gg + r) for r in range(4)))
            for gg, uu in ((g0, u0), (g1_, u1)):
                if pk: g += I("v_pk_mul_f32 %s, %s, %s\nv_pk_mul_f32 %s, %s, %s" % (V(gg, 2), V(gg, 2), V(uu, 2), V(gg + 2, 2), V(gg + 2, 2), V(uu + 2, 2)))
                else: g += I("\n".join("v_mul_f32 v%d, v%d, v%d" % (gg + r, gg + r, uu + r) for r in range(4)))
            g += cvt(u0, g0, g0 + 1) + cvt(u0 + 1, g0 + 2, g0 + 3) + cvt(u0 + 2, g1_, g1_ + 1) + cvt(u0 + 3, g1_ + 2, g1_ + 3)
            return J("s_xor_b32 {t3}, {t2}, {o}", o=u * 1024 + m * 65536) + g + J("buffer_store_dwordx4 {r}, {l16b}, {SWS}, {t3} offen sc1", tag="pub" if u else "pue", r=V(u0, 4))
        e_ = G.stream(single([epi(0, m, False) for m in range(4)]), e0 + 2, min(4 * km + 8 * nm, e0 + self.o("espan", 56)))
        for m in range(3 if nm else 0):
            a_ = 4 * km + 8 * nm * (m + 1) + 1
            G.stream(single(epi(1, m, False)), max(a_, e_ + 1), a_ + 8 * nm - (1 if m == 2 else 0), spread=False)
        if self.ef:
            l = self.lab("noe")
            self.eflag = (I("@must pue") + J("s_barrier\ns_cmp_lg_u32 {w}, 0") + J("""s_cbranch_scc1 {l}
s_lshl3_add_u32 s3, {b12}, {ni}
s_lshl_b32 s3, s3, 7
s_add_u32 s3, s3, {ef}
v_mov_b32 v24, 1
s_mov_b64 exec, 1
buffer_store_dword v24, v0, {SWS}, s3 offen sc1
s_mov_b64 exec, -1
{l}:""", raw=True, l=l, ef=WS_EF))
            if self.o("efp", 509) < 512: G.put(self.o("efp", 509), self.eflag)
        for i in range(8): G.put(64 * i, self.stamp(i, 1))
        G.put(480, self.stamp(8, 1)); G.put(511, self.stamp(9, 1))
        p += I("; ---- phase 2 main loop") + G.out() + I("; ---- late half of h, phase 3")
        p += self.stamp(2)
        ep = [epi(1, m, True) for m in range(3 if nm else 0, 4)]
        if self.o("strip", 0) & 32768: ep = ep[:2]
        mid = self.o("mid", 1)
        if not late1 and not self.o("xc", 0): ep.insert(min(mid, len(ep)) if not nm else (mid == 4), self.x1_pre()[-1:] + self.x1_fetch())
        if self.ef and self.o("efp", 509) >= 512: ep.insert(self.o("efp", 509) - 512, self.eflag)
        tpos = self.o("tep", 2); tt = self.TT(nin, 4) if tpos == 0 else []
        if self.cin: ep.append(flat(self.c_calc()[0]))
        p += flat(weave([[]] + ep, tt) if mid else weave(ep, tt))
        if late1: p += I(self.POLL_LD, tag="poll")
        elif self.ef: p += self.eadr() + (I(self.POLL_LD, tag="poll") if not self.o("epl", 0) else [])
        p += self.stamp(3) + self.stamp(0, 3)
        n1_ = min(8, 4 + nin + self.o("nw1", 0))
        p += ([] if self.cin else flat(self.c_stage())) + self.stamp(1, 3) + flat(weave(self.gen_G(42, True)[gs_:] + gl, self.DD(4 + nin, n1_)))
        if tpos == 1: p += flat(self.TT(nin, 4))
        return p + self.tail(True, nin if tpos == 2 else 4, n1_)

    def p12d(self):
        self.ffn = False; self.cstg = LDS_RPF; self.rip = 0; self.cin = 0
        def dma(s_):
            Q, m = divmod(s_, 4)
            gs = [J("s_add_u32 m0, {ring}, {o}", o=m * 4096)]
            if m == 0:
                gs = single(J("v_lshl_add_u32 {xr}, {k}, 7, {x}\nv_lshl_add_u32 {xr2}, {k}, 7, {vw}")) + gs
                if Q: gs = single(J("s_add_u32 {k}, {k}, 1\ns_and_b32 {k}, {k}, 3")) + gs
            for hf in range(2):
                for e in range(2):
                    g = J("buffer_load_dwordx4 {r}, {srd}, s{so} offen offset:{o} lds", tag="x_%d" % s_, r=NM[("xr", "xr2")[e]], srd=(SX, SWG)[hf], so=76 + m, o=(2 * hf + e) * 1024)
                    if Q and not hf and not e: g = I("@need xf_%d" % (s_ - 4)) + g
                    gs.append(g)
            return gs
        def raw(s_):
            return [I("@must x_%d" % s_)] + [I("ds_read_b128 %s, v%d offset:%d" % (A(16 * (s_ % 2) + 4 * f, 4), vWT[f], (s_ % 4) * 4096), tag="xf_%d" % s_) for f in range(4)]
        def fold(s_):
            return [I("%s %s, v[20:23], %s, 0" % (MF, V(48 + 4 * f, 4), A(16 * (s_ % 2) + 4 * f, 4))) for f in range(4)]
        def fcv(s_):
            return [cvt(32 + (s_ % 2) * 8 + q, 48 + 2 * q, 49 + 2 * q) for q in range(8)]
        def trd(Q):
            return [I("ds_read_b128 %s, %s offset:%d" % (A(64 + 64 * (Q % 2) + 4 * f, 4), NM["l16b"], Q * 16384 + f * 1024), tag="tq%d" % Q) for f in range(16)]
        p = I("@reset") + J("""s_add_u32 s76, s76, 0x800
s_add_u32 s77, s76, 0x80000
s_add_u32 s78, s76, 0x100000
s_add_u32 s79, s76, 0x180000
s_add_u32 {ni}, {xn}, 28
s_and_b32 {k}, {xcd}, {km}
s_mov_b32 {wb}, {k}
v_mov_b32 {vw}, v18
v_lshlrev_b32 {l16b}, 4, v0""", km=self.o("km", 6) & 2)
        tg, sel, late = self.gen_T()
        cl = self.c_loads(True)
        npk = self.o("npk", 0)
        p += self.srd_const(SWG, 2097152 + 3584) + flat(tg[:npk]) + I("s_waitcnt lgkmcnt(0)") + self.srd(SX, 48, 0, back=2048) + self.srd(SWG, 48, 0, back=3584)
        p += flat([dma(m) for m in range(3)])
        ntp = self.o("ntp", 8); tl = tg[1 + 2 * ntp:]; tg = tg[npk:1 + 2 * ntp]
        place(tg, len(tg) - self.o("d3", 1), dma(3))
        if self.o("pm", 0) == 4:
            p += self.common2()
            for i, k in enumerate((0, 1, 2, 3, 4, 5, 6, 7, 8)): place(tg, k, self.stamp(i, 4))
        p += flat(tg) + sel + (self.common2() if self.o("pm", 0) != 4 else []) + self.stamp(0) + self.stamp(9, 4)
        p += I("@waitlg0\ns_barrier") + self.stamp(1)
        t0_ = trd(0)
        p += flat(t0_[:8] + raw(0) + t0_[8:] + fold(0) + dma(4) + raw(1) + fcv(0))
        def mm(s_, h, tau):
            Q, m = divmod(s_, 4); acc = V(128 + (tau * 4 + m) * 4, 4)
            return I("%s %s, %s, %s, %s" % (MF, acc, V(32 + (s_ % 2) * 8 + 4 * h, 4), A(64 + 64 * (Q % 2) + (h * 8 + tau) * 4, 4), acc if Q or h else "0"))
        mf = []; at = {}
        for s_ in range(15):
            at[s_] = len(mf); mf += [mm(s_, 0, tau) for tau in range(6)]
            at["fold", s_ + 1] = len(mf); mf += fold(s_ + 1) + [mm(s_, 0, tau) for tau in (6, 7)] + [mm(s_, 1, tau) for tau in range(8)]
        at[15] = len(mf); mf += [mm(15, h, 4 * g + t) for g in range(2) for h in range(2) for t in range(4)]
        def s2(t):
            return [I("%s %s, %s, %s, %s" % (MF, V(128 + 16 * t + 4 * sg, 4), V(64 + 8 * t + 4 * v, 4), A(224 + (2 * sg + v) * 4, 4), V(128 + 16 * t + 4 * sg, 4) if v else "0"))
                    for v in range(2) for sg in range(4)]
        for t in range(8):
            at["s2", t] = len(mf); mf += s2(t)
        G = Gaps(mf)
        for s_ in range(1, 16):
            f = at["fold", s_]
            if s_ > 1: G.stream(raw(s_), f - self.o("rawa", 11), f - 4, spread=False)
            G.put(f - 1, I("@wait xf_%d" % s_))
            G.stream(fcv(s_), f + 6, f + 12, spread=False)
            if s_ + 4 < 16: G.stream(dma(s_ + 4) + (self.pretouch(46, 12) if s_ == 2 else []), f, f + 8)
        for Q in range(1, 4):
            G.stream(trd(Q), at[4 * Q - 4] + 2, at[4 * Q] - 8); G.put(at[4 * Q] - 1, I("@wait tq%d" % Q))
        G.stream(single(J("s_mul_i32 {wb}, {wb}, 0x40004000") + flat([J("v_xor_b32 v{r}, {wb}, v{r}", r=20 + i) for i in range(4)])), at["fold", 7] + 4, at["fold", 8] - 2, spread=False)
        for Q in range(ntp // 2, 4):
            G.stream(single(tl[4 * Q - 2 * ntp:4 * Q - 2 * ntp + 4]), at[4 * Q - 8] + 1, at[4 * Q - 4] - 6)
            G.put(at[4 * Q - 4] + 1, I("@must ttab%d\ns_barrier" % Q))
        e = G.stream((cl[:-4] if self.o("dcs", 16) < 16 else []) + single(late), 2 if ntp == 8 else at[8], at[12] + 6)
        if self.o("rw", 0) == 1:
            e = G.stream(self.r64w, max(e + 1, at[self.o("rwb", 13)] + 10), at[self.o("rwb", 13)] + 16)
        rr = [I("@wait r64f\ns_barrier"), J("v_add_u32 v24, {a}, {l16b}", a=LDS_STG)] + [I("ds_read_b128 %s, v24 offset:%d" % (A(224 + 4 * f, 4), f * 1024)) for f in range(8)]
        G.stream(rr, e + 6, max(at[15], e + 24))
        pre = J("""v_lshrrev_b32 v26, 2, {l16}
v_lshlrev_b32 v26, 17, v26
v_lshl_add_u32 v26, {hi}, 6, v26
v_and_b32 v25, 3, v0
v_lshl_add_u32 {xr}, v25, 4, v26
s_lshr_b32 s76, {xn}, 1
s_lshl_b32 s76, s76, 7
s_add_u32 s76, s76, {b12}
s_and_b32 {t0}, {xn}, 1
s_lshl1_add_u32 s76, s76, {t0}
s_lshl_b32 s76, s76, 8
s_add_u32 s76, s76, {x1}
s_add_u32 s77, s76, 0x80000
s_add_u32 s78, s76, 0x100000
s_add_u32 s79, s76, 0x180000""", x1=WS_X1) + self.flag_addr()
        G.stream(single(pre), e + 1, at["s2", 1] if self.o("rw", 0) else at[15])
        G.stream(self.gate_ld(), at["s2", 0] + 8, at["s2", 2])
        def cv(t, m): return [cvt(64 + 8 * t + 2 * m + i, 128 + 16 * t + 4 * m + 2 * i, 129 + 16 * t + 4 * m + 2 * i) for i in range(2)]
        for m in range(3):
            G.stream([g for t in range(8) for g in cv(t, m)], at[13 + m] + 1, at[13 + m] + (19 if m < 2 else 11), spread=False)
        G.stream([g for t in range(4) for g in cv(t, 3)], at[15] + 10, at["s2", 0] + 2, spread=False)
        G.stream([g for t in range(4, 8) for g in cv(t, 3)], at["s2", 0] + 3, at["s2", 2], spread=False)
        def st(tp):
            gs = []
            for sg in range(4):
                o = 32 + 16 * (tp % 2) + 4 * sg; d0 = 128 + 32 * tp + 4 * sg; d1 = d0 + 16
                gs += [cvt(o, d0, d0 + 1), cvt(o + 1, d0 + 2, d0 + 3), cvt(o + 2, d1, d1 + 1), cvt(o + 3, d1 + 2, d1 + 3),
                       J("buffer_store_dwordx4 {r}, {xr}, {SWS}, s{so} offen sc1", tag="pub", r=V(o, 4), so=76 + sg)]
                if tp < 3: gs.append(I("s_add_u32 s%d, s%d, 16384" % (76 + sg, 76 + sg)))
            return gs
        for tp in range(3):
            G.stream(st(tp), at["s2", 2 * tp + 2] + 1, at["s2", 2 * tp + 2] + 16, spread=False)
        for i in range(10): G.put(min(40 * i, len(G) - 1), self.stamp(i, 1))
        p += I("; ---- phase 1 main loop") + G.out() + I("; ---- tables, phase 3")
        p += self.stamp(2)
        p += flat(st(3))
        p += self.stamp(3)
        p += self.spin(self.GATE_LD)
        q = chunks(self.wd_setup()) + self.gen_R(0, 128); nq = self.o("nq", 999)
        p += flat(q[:nq])
        p += self.set_flag()
        p += self.stamp(4) + flat(q[nq:])
        if self.o("dcs", 16) < 16: p += I("\n".join("v_accvgpr_read_b32 v%d, a%d" % (32 + i, 32 + i) for i in range(10)))
        else: p += flat(self.c_loads() + self.c_fetch(0) + self.c_fetch(1))
        p += flat(self.gen_R(1, 160))
        p += I("@waitlg0\ns_barrier")
        nd = self.o("dnd", 2)
        p += flat(weave(self.rp_reads() + self.x1_addr() + self.setupA(), self.DD(0, nd)))
        p += I("@wait rp\ns_barrier")
        p += flat(self.g_loads() + self.c_stage())
        p += I(self.POLL_LD, tag="poll")
        return p + self.tail(False, 0, nd)

    def touch(self, r):
        if r >= self.o("touch", 1): return []
        gs = [I("v_lshlrev_b32 v17, 5, v0")] if r == 0 else [J("s_add_u32 {lw}, {lw}, 0x38000"), J("s_sub_u32 s3, {lw}, 0x1c0000\ns_cselect_b32 {lw}, {lw}, s3")]
        return gs + [J("buffer_load_dword a{d}, v17, {SWD}, {lw} offen", d=160 + r)]
    def touch3(self):
        if not self.o("touch3", 1): return []
        return [J("s_lshr_b32 s3, s2, 3\ns_lshl2_add_u32 s3, s3, {w}\ns_lshl_b32 s3, s3, 14"), J("v_and_b32 v28, 60, v0"), J("v_lshlrev_b32 v28, 8, v28"),
                J("buffer_load_dword a172, v28, {SWD}, s3 offen offset:384")]
    def pretouch(self, d, r):
        pt = self.o("pt", 0); gs = []
        if pt & 1: gs += single(J("v_lshrrev_b32 v{r}, {a}, v0\nv_lshlrev_b32 v{r}, {b}, v{r}\ns_mov_b32 s3, 0x10f000\nbuffer_load_dword a{d}, v{r}, {SWS}, s3 offen", r=r, d=d, a=self.o("pta", 3), b=18 + self.o("pta", 3)))
        if pt & 4:
            g = self.o("ptg", 16); n = (17 << 20 >> g) // 128
            gs += single(J("v_min_u32 v{r}, {n}, v0\nv_lshlrev_b32 v{r}, {b}, v{r}\ns_lshr_b32 s3, s2, 3\ns_lshl2_add_u32 s3, s3, {w}\ns_lshl_b32 s3, s3, {g}\nbuffer_load_dword a{d}, v{r}, {SWS}, s3 offen offset:3968", r=r, d=d, n=n, b=g + 7, g=g))
        if pt & 2: gs += single(J("v_lshlrev_b32 v{r}, 19, {hi}\nbuffer_load_dword a{d}, v{r}, {SOUT}, 0 offen", r=r, d=d + 1))
        return gs
    def keep(self, du):
        sh = self.o("ksz", 5)
        if self.o("ksrc", 0) == 2: return [I("s_sleep %d" % sh)]
        if self.o("ksrc", 0) == 0:
            return single(J("s_lshl2_add_u32 s3, s2, {w}\ns_lshl_b32 s3, s3, {a}\ns_add_u32 s3, s3, {o}\nv_lshlrev_b32 v28, {b}, v0\nbuffer_load_dword a184, v28, {SWS}, s3 offen", o=32 << 20, a=sh + 6, b=sh))
        return chunks(J("s_lshr_b32 s3, s2, 3\ns_lshl2_add_u32 s3, s3, {w}\ns_lshl_b32 s3, s3, 13\nv_lshlrev_b32 v28, {b}, v0\nv_add_u32 v28, s3, v28\ns_and_b32 s3, {bp}, {m}\ns_cselect_b32 s3, 0xe0000, 0\nbuffer_load_dword a184, v28, {SWD}, s3 offen", b=sh, m=self.pair))
    def retouch(self):
        if not self.o("retouch", 1): return []
        l = self.lab("pc")
        return [J("s_getpc_b64 {m2}\n{l}:\ns_lshr_b32 s3, s2, 3\ns_lshl_b32 s3, s3, 2", l=l)] + single(J("""s_add_u32 s3, s3, {w}
s_lshl_b32 s3, s3, 9
v_lshl_add_u32 v28, v0, 3, s3
v_min_u32 v28, L_end-{l}, v28
global_load_dword a170, v28, {m2}""", l=l))

    def x1_pre(self):
        return J("""s_lshr_b32 {t0}, {bp}, 1
s_lshl3_add_u32 {t0}, {t0}, {jb}
s_lshl2_add_u32 {t0}, {t0}, {w}
s_lshl_b32 {t0}, {t0}, 7
s_and_b32 {t1}, {bp}, 1
s_add_u32 {t0}, {t0}, {t1}
s_lshl_b32 {t0}, {t0}, 5
s_add_u32 {t0}, {t0}, {x1}
v_and_b32 v26, 62, v0
v_lshl_add_u32 v26, v26, 4, {l16b}
v_add_u32 v25, 0x400, v26
s_lshl_b32 {t1}, {w}, 11
s_add_u32 m0, {t1}, {stg}""", x1=WS_X1, stg=LDS_STG)

    def eadr(self):
        return J("""s_xor_b32 {t1}, {bp}, {m}
s_lshr_b32 {t1}, {t1}, 2
s_lshl_b32 {t1}, {t1}, 6
s_add_u32 {t1}, {t1}, {rot}
s_add_u32 {t1}, {t1}, 1
s_lshr_b32 {t1}, {t1}, 1
s_lshl_b32 {t1}, {t1}, 7
s_add_u32 {wo1}, {t1}, {ef}
v_min_u32 {pa}, 2, {hi}
v_lshlrev_b32 {pa}, 7, {pa}""", m=self.pair, ef=WS_EF)
    def x1_fetch(self):
        return self.spin(self.POLL_LD) + J("buffer_load_dwordx4 v26, {SWS}, {t0} offen sc1 lds\nbuffer_load_dwordx4 v25, {SWS}, {t0} offen offset:1024 sc1 lds", tag="x1") + self.stamp(5)
    def setupA(self):
        return single(J("""s_lshl_b32 s76, {jb}, 1
s_lshr_b32 {t1}, {w}, 1
s_add_u32 s76, s76, {t1}
s_lshr_b32 {t1}, {bp}, 3
s_lshl_b32 {t1}, {t1}, 4
s_add_u32 s76, s76, {t1}
s_lshl_b32 s76, s76, 3
s_and_b32 {t1}, {bp}, 7
s_add_u32 s76, s76, {t1}
s_lshr_b32 {t1}, {bp}, 2
s_xor_b32 {t1}, {t1}, {w}
s_and_b32 {t1}, {t1}, 1
s_lshl1_add_u32 s76, s76, {t1}
s_lshl_b32 s76, s76, 6
s_add_u32 s76, s76, {u}
s_add_u32 s77, s76, 0x80000
s_add_u32 s78, s76, 0x100000
s_add_u32 s79, s76, 0x180000
v_lshrrev_b32 v24, 1, {l16}
v_lshlrev_b32 v26, 16, v24
v_and_b32 v25, 1, v0
v_lshl_add_u32 v26, v25, 5, v26
{xra}
s_lshl2_add_u32 {t0}, {jb}, {w}
v_and_or_b32 v28, v0, 7, {t0}
v_cmp_eq_u32 vcc, 0, v28
v_bfe_u32 v28, v0, 3, 1
v_xor_b32 v28, 1, v28
v_lshl_or_b32 v18, v28, 31, 1.0
s_lshl_b32 {t0}, {w}, 5
s_add_u32 {t0}, {t0}, {stg}
v_lshrrev_b32 v24, 3, v0
v_cndmask_b32 v18, v18, 0, vcc
v_lshl_add_u32 v19, v24, 8, {t0}
v_lshl_add_u32 v19, v25, 7, v19
v_bfe_u32 v25, v0, 1, 2
v_lshl_add_u32 v19, v25, 3, v19""", u=WS_U, stg=LDS_STG,
            xra="v_and_b32 v28, 1, v2\nv_lshl_add_u32 v26, v28, 19, v26\nv_lshrrev_b32 v28, 1, v2\nv_lshl_add_u32 v4, v28, 4, v26" if self.o("u4", 1) else "v_lshl_add_u32 v4, v2, 3, v26"))
    def setupB(self):
        if self.pair: return single(J("""s_lshl_b32 {he}, {bp}, 8
s_add_u32 {he}, {he}, {rot}
s_lshl_b32 {he}, {he}, 10
s_xor_b32 {hs}, {he}, {hx}
s_andn2_b32 {t1}, {bp}, {m}
s_lshl_b32 {t1}, {t1}, 5
s_lshr_b32 {t0}, {rot}, 1
s_add_u32 {t0}, {t0}, {t1}
s_lshl_b32 {t0}, {t0}, 7
s_add_u32 {wo1}, {t0}, {fl}
v_lshrrev_b32 v24, 5, v0
v_mul_u32_u24 v24, {fx}, v24
v_bfe_u32 {pa}, v0, 3, 2
v_lshl_add_u32 {pa}, {pa}, 7, v24
@skip
s_lshl3_add_u32 {wo0}, {bp}, {nt}
s_lshl_b32 {wo0}, {wo0}, {ush}
s_add_u32 {wo0}, {wo0}, {cnt}
v_mov_b32 v19, 1
v_add_u32 v9, {r64}, {l16b}""", hx=self.pair << 18, m=self.pair, fx=self.pair << 12, fl=WS_FLAG, r64=LDS_R64I, cnt=WS_CNT, ush=self.o("ush", 5)))
        return single(J("""s_lshl_b32 {hs}, {bp}, 8
s_mul_i32 {t0}, {w}, 14
s_add_u32 {hs}, {hs}, {t0}
s_lshl_b32 {hs}, {hs}, 10
s_nop 0
s_nop 0
s_nop 0
s_mul_i32 {t0}, {w}, 7
s_lshl_b32 {t1}, {bp}, 5
s_add_u32 {t0}, {t0}, {t1}
s_lshl_b32 {t0}, {t0}, 7
s_add_u32 {wo1}, {t0}, {fl}
v_lshrrev_b32 v24, 3, v0
v_min_u32 {pa}, 6, v24
v_lshlrev_b32 {pa}, 7, {pa}
s_lshl3_add_u32 {wo0}, {bp}, {nt}
s_lshl_b32 {wo0}, {wo0}, {ush}
s_add_u32 {wo0}, {wo0}, {cnt}
v_mov_b32 v19, 1
v_add_u32 v9, {r64}, {l16b}""", hl=14 * 4096, fl=WS_FLAG, r64=LDS_R64I, cnt=WS_CNT, ush=self.o("ush", 5)))
    def setupC(self):
        return single(J("""s_lshl_b32 {wo1}, {w}, {ush6}
s_add_u32 {wo1}, {wo1}, {cnt}
v_lshlrev_b32 {pa}, {ush}, v0
s_lshl_b32 {t2}, {bp}, 16
s_lshl_b32 {t3}, {w}, 14
s_add_u32 {t2}, {t2}, {t3}
s_add_u32 {t2}, {t2}, {u}
s_lshl_b32 {t0}, {bp}, 8
s_add_u32 {t0}, {t0}, {g}
v_lshrrev_b32 v24, 1, {l16}
v_lshlrev_b32 v24, 7, v24
v_and_b32 v25, 1, v0
v_lshl_add_u32 v24, v25, 5, v24
v_lshrrev_b32 v27, 1, {hi}
v_bfe_u32 v28, v0, 3, 1
v_xor_b32 v28, v27, v28
v_lshl_add_u32 v24, v28, 6, v24
v_and_b32 v26, 1, {hi}
v_lshl_add_u32 {vw}, v26, 4, v24
v_lshrrev_b32 v24, 3, v0
v_xor_b32 v25, v24, v0
v_and_b32 v25, 7, v25
v_lshlrev_b32 v24, 15, v24
v_lshl_add_u32 {x}, v25, 4, v24
v_lshl_add_u32 v24, {w}, 1, v27
v_xor_b32 v24, v24, v0
v_and_b32 v24, 7, v24
v_lshlrev_b32 v24, 4, v24
v_lshl_add_u32 v24, {l16}, 7, v24
v_lshl_add_u32 v24, v26, 3, v24
v_add_u32 v6, {stg}, v24
s_lshl_b32 {t1}, {w}, 10
s_add_u32 {t1}, {t1}, {stg}
v_add_u32 v7, {t1}, {l16b}
v_lshlrev_b32 v8, 4, {l16}
s_lshl3_add_u32 s76, {bp}, {nt}
s_lshl_b32 s76, s76, 7
s_lshl_b32 {t1}, {w}, 18
s_add_u32 s76, s76, {t1}
s_add_u32 s77, s76, 0x100000""", u=WS_U, g=WS_G, stg=LDS_STG, cnt=WS_CNT, ush=self.o("ush", 5), ush6=self.o("ush", 5) + 6))
    def tail(self, ffn, nxt_t, nxt_d):
        st = dict(t=nxt_t, d=nxt_d)
        def pump(nd):
            gs = []
            for _ in range(nd):
                if st["d"] >= self.NU: break
                nx = self.loc(min(self.NU - 1, st["d"] + 1))[1]; pv = self.loc(st["d"])[1]
                while st["t"] <= max(-1 if nx is None else nx, -1 if pv is None else pv):
                    gs += self.T(st["t"]); st["t"] += 1
                gs += self.D(st["d"]); st["d"] += 1
            return gs
        def W(a, b): return flat(weave(a, b)) if b else flat(a)
        self.after_h = []
        c1, c2 = self.c_calc()
        p = flat(c1[:-8])
        mid2 = ffn and self.o("mid", 1) >= 2 and not self.o("x1late", 0)
        if self.cin: mid2 = True; p = []; c1 = []
        else: p += self.stamp(2, 3) + I("@wait cst\ns_barrier" if mid2 else "@wait x1 cst\ns_barrier") + self.stamp(3, 3)
        if ffn and not self.o("x1late", 0) and self.o("fpos", 0) == 3: p += self.set_flag() + self.stamp(4)
        XF, DD, PP, EE, PK, UP = 128, 136, 152, 168, 184, 128
        p += flat(c1[-8:])
        late1 = self.o("x1late", 0) or not ffn
        sB = self.setupB()
        if late1:
            rip = self.rip; gcs = self.g_calc() + [self.g_store()]
            nc2 = self.o("nc2", 71) if ffn else 71
            p += W(([] if rip else self.gen_R(2, 160)) + c2[:nc2], pump(self.o("pump0", 0) if ffn else 1))
            p += self.x1_pre() + self.stamp(4, 3)
            if ffn: p += self.set_flag() + self.stamp(4)
            p += self.x1_fetch() + self.stamp(5, 3)
            p += W(c2[nc2:] + (self.gen_R(1, 160, LDS_R64I) if rip else gcs) + sB[:18] + sB[19:], pump(self.o("pump1", 2)))
            p += self.stamp(6, 3) + I("@wait x1 rtab\ns_barrier") + self.stamp(7, 3)
            if self.o("hp", 1) == 0 and ffn: p += I(self.POLL_LD, tag="poll")
        if mid2:
            nc = self.o("nc3", 55)
            p += flat(c2[:nc]); c2 = c2[nc:]
            if self.o("mid", 1) == 4: p += self.set_flag() + self.stamp(4)
            p += I("@wait x1\ns_barrier")
        for k in range(4):
            p += I("ds_read_b64_tr_b16 %s, v19 offset:%d" % (V(XF + 2 * k, 2), 2048 * k))
        mf = [I("%s %s, %s, %s, %s" % (MF, V(DD + 4 * tau, 4), A(224 + (2 * tau + v) * 4, 4), V(XF + 4 * v, 4), V(DD + 4 * tau, 4) if v else "0")) for v in range(2) for tau in range(4)]
        if late1:
            G = Gaps(mf); pm = pump(self.o("pump2", 1))
            if pm: G.stream(pm, 0, 8)
            p += G.out() + sB[18] + flat([I("ds_read_b128 %s, v9 offset:%d" % (A((192 if rip else 224) + 4 * f, 4), f * 1024)) for f in range(8)])
            if self.o("hp", 1) == 1 and ffn: p += I(self.POLL_LD, tag="poll")
        elif mid2: p += flat(c2[:8]) + flat(weave(mf, c2[8:])) + self.stamp(4, 3)
        else:
            wv = weave(c2, mf, 12, 52)
            if ffn and self.o("fpos", 0) > 3: place(wv, self.o("fpos", 0), self.set_flag() + self.stamp(4))
            p += flat(wv) + self.stamp(4, 3)
        dpp = "row_ror:8 row_mask:0xf bank_mask:0xf"
        cA, cB, cC, cD = CO, CO + 8, CO + 16, CO + 24
        def pk(op, d, a, b, neg=False):
            g = []
            for e in range(0, 8, 2):
                if op == "mul": g += I("v_pk_mul_f32 %s, %s, %s" % (V(d + e, 2), V(a + e, 2), V(b + e, 2)))
                else: g += I("v_pk_fma_f32 %s, %s, %s, %s%s" % (V(d + e, 2), V(a + e, 2), V(b + e, 2), V(d + e, 2), " neg_lo:[1,0,0] neg_hi:[1,0,0]" if neg else ""))
            return g
        fpos = -1 if late1 or not ffn or self.o("mid", 1) == 4 else self.o("fpos", 0)
        if fpos == 0: p += self.set_flag() + self.stamp(4)
        eadr = self.eadr()
        if self.ef and not late1 and self.o("epl", 0): p += I(self.POLL_LD, tag="poll")
        early = []
        hint = J("""s_bitcmp1_b32 {nt}, 2
s_cselect_b32 {t0}, {he}, {hs}
s_and_b32 {t1}, {nt}, 3
s_lshl_b32 {t1}, {t1}, 16
s_add_u32 {t0}, {t0}, {t1}
s_lshr_b32 {t1}, {wde}, 5
s_add_u32 {t0}, {t0}, {t1}
v_min_u32 v25, 2, {hi}
v_lshlrev_b32 v25, 11, v25
v_lshl_add_u32 v25, {l16}, 6, v25
buffer_load_dword a144, v25, {SWS}, {t0} offen sc1""")
        if self.o("hint", 0) == 1 and not late1: p += flat(sB[:4]) + hint
        if self.ef == 1 and not late1:
            p += flat(self.g_calc()) + self.g_store() + flat(sB[:4]) + J("s_lshr_b32 {t1}, {wde}, 5\nv_add_u32 v5, {t1}, {l16b}") + self.spin(self.POLL_LD) + self.stamp(7) + self.stamp(9, 3)
            for k in range(12):
                t, u = divmod(k, 3)
                early.append((J("s_add_u32 {ho}, {hs}, {o}", o=t * 65536 + u * 2048) if u != 1 else []) +
                             J("buffer_load_dwordx4 {r}, v5, {SWS}, {ho} offen offset:{o} sc1", tag="h%d" % k, r=V(192 + 4 * k, 4), o=2048 if u == 1 else 0))
        q = []
        for e in range(16): q += I("v_mul_f32_dpp v%d, v%d, v18 %s" % (PP + e, DD + e, dpp))
        q += pk("mul", EE, cA, DD) + pk("mul", EE + 8, cC, DD) + pk("fma", EE, cB, PP) + I("v_mov_b32 v%d, v%d\nv_mov_b32 v%d, v%d" % (cA, CA2, cB, CB2))
        q += pk("fma", EE + 8, cD, PP) + pk("fma", EE, cC, DD + 8, True) + pk("fma", EE + 8, cA, DD + 8) + pk("fma", EE, cD, PP + 8, True) + pk("fma", EE + 8, cB, PP + 8)
        p += W(single(q), early + pump(self.o("pump3", 0)))
        p += self.pack(PK, EE)
        mf = [I("%s %s, %s, %s, %s" % (MF, V(DD + 4 * kt, 4), V(PK + 4 * v, 4), A(192 + (2 * kt + v) * 4, 4), V(DD + 4 * kt, 4) if v else "0")) for v in range(2) for kt in range(4)]
        q = self.pack(PK + 4, EE + 8)
        p += q[:2]
        G = Gaps(mf); G.put(0, q[2:])
        if not late1: G.stream(sB[:4] if self.ef == 2 else sB[4 if self.ef else 0:15], 1, 8, spread=False)
        elif self.o("hp", 1) == 2 and ffn: G.put(1, I(self.POLL_LD, tag="poll"))
        p += G.out()
        if fpos == 1: p += self.set_flag() + self.stamp(4)
        if self.o("u4", 1):
            p += self.pack(UP, DD) + self.pack(UP + 4, DD + 8)
            for j in range(2):
                p += I("v_permlane16_swap_b32 v%d, v%d\nv_permlane16_swap_b32 v%d, v%d" % (UP + 4 * j, UP + 4 * j + 2, UP + 4 * j + 1, UP + 4 * j + 3))
                p += J("buffer_store_dwordx4 {r}, {xr}, {SWS}, s{so} offen sc1", tag="ust", r=V(UP + 4 * j, 4), so=76 + 2 * j)
        for kt in range(0 if self.o("u4", 1) else 4):
            p += cvt(UP + 2 * kt, DD + 4 * kt, DD + 4 * kt + 1) + cvt(UP + 2 * kt + 1, DD + 4 * kt + 2, DD + 4 * kt + 3)
            p += J("buffer_store_dwordx2 {r}, {xr}, {SWS}, s{so} offen sc1", tag="ust", r=V(UP + 2 * kt, 2), so=76 + kt)
        if self.o("hint", 0) == 2 and not late1: p += hint
        p += self.stamp(6) + self.stamp(8 if late1 else 5, 3)
        l = self.lab("nosig")
        usig = I("@wait ust gst rtab") + J("s_barrier\ns_cmp_lg_u32 {w}, 0") + \
               J("s_cbranch_scc1 {l}\ns_mov_b64 exec, 1\nbuffer_store_dword v19, v0, {SWS}, {wo0} offen sc1\ns_mov_b64 exec, -1\n{l}:", raw=True, l=l)
        if late1:
            if not ffn:
                gG = self.gen_G(136, True)
                p += W(gG[:8], pump(2)) + usig + W(gG[8:], pump(3)) + flat(pump(2)) + (eadr if self.ef else []) + I(self.POLL_LD, tag="poll") + flat(pump(9))
                usig = []
            else: p += W(gcs + self.gen_R(2, 160, LDS_RPF), pump(self.o("pumpb", 2))) if rip else flat(pump(self.o("pumpb", 2)))
            if rip: usig += J("v_add_u32 v9, {a}, {l16b}", a=LDS_RPF) + flat([I("ds_read_b128 %s, v9 offset:%d" % (A(224 + 4 * f, 4), f * 1024)) for f in range(8)])
            if self.o("hp", 1) == 3 and ffn: p += I(self.POLL_LD, tag="poll")
            p += flat(pump(self.o("pumpc", 0)))
            if self.o("upos", 0) == 0: p += usig
        elif self.ef:
            pass
        else:
            if fpos == 2: p += self.set_flag() + self.stamp(4)
            p += flat(self.g_calc()) + self.g_store() + flat(sB[15:])
            ue = self.o("ue", 3)
            gr = [[]] if self.o("r2p", 0) else self.gen_R(2, 160)
            if ue >= 3: place(gr, min(len(gr) - 1, self.o("pq", 30)), I(self.POLL_LD, tag="poll"))
            p += W(gr, pump(self.o("pumpa", 2)))
            r64 = flat([I("ds_read_b128 %s, v9 offset:%d" % (A(224 + 4 * f, 4), f * 1024)) for f in range(8)])
            if ue == 1: p += self.stamp(6, 3) + usig + r64 + self.stamp(7, 3)
            if ue < 3: p += I(self.POLL_LD, tag="poll")
            if ue in (2, 3): p += self.stamp(6, 3) + usig + ([] if ue == 3 else r64) + self.stamp(7, 3)
            if ue == 3: self.after_h = r64
            if ue == 4: self.after_h = usig + r64
            tpre = max(st["t"], min(st["d"], self.o("tpre0", 6 if ue < 3 else 0)))
            p += flat(self.TT(st["t"], tpre)); st["t"] = tpre
            p += flat(pump(self.o("pumpb", 2)))
            if ue == 0: p += usig + r64
            p += self.stamp(8, 3)
        xo = self.o("xo", 0)
        if xo > 0: p += J("v_lshl_add_u32 v44, {rot}, 10, {l16b}\nv_xor_b32 v45, 0x400, v44\nv_xor_b32 v46, 0x800, v44\nv_xor_b32 v47, 0xc00, v44\nv_and_b32 v4, 0x7ff, v44\nv_and_b32 v18, 0x7ff, v45")
        if not early:
            if not (self.o("strip", 0) & 8192 and ffn): p += self.spin(self.POLL_LD)
            p += self.stamp(7) + self.stamp(9, 3)
        if self.ef:
            r64 = [I("ds_read_b128 %s, v9 offset:%d" % (A(224 + 4 * f, 4), f * 1024)) for f in range(8)]
            if late1: return p + self.p4pair(ffn, st, pump, W, sB[4:14], [], [])
            if self.ef == 2:
                q = self.g_calc() + [self.g_store()] + sB[4:] + weave(self.gen_R(2, 160), self.TT(st["t"], 4)); st["t"] = 4
                return p + self.p4pair(ffn, st, pump, W, q, [], [usig] + r64)
            if self.o("r2p", 0): return p + self.p4pair(ffn, st, pump, W, None, sB[15:] + r64, [usig])
            return p + self.p4pair(ffn, st, pump, W, None, sB[15:] + self.gen_R(2, 32), [usig] + r64)
        if self.pair: return p + self.p4pair(ffn, st, pump, W)
        NS = 16; na = self.o("na", 8)
        order = [(u, s_) for u0 in range(0, na, 2) for s_ in range(4) for u in (u0, u0 + 1)] + [(u, s_) for s_ in range(4) for u in range(na, 14)]
        pos_ = dict((x_, k) for k, x_ in enumerate(order))
        hb = [None]
        def hload(k):
            u, s_ = order[k]; gs = []; o = s_ * 65536 + u * 1024
            if hb[0] is None or not hb[0] <= o < hb[0] + 4096:
                hb[0] = o; gs.append(J("s_add_u32 {ho}, {hs}, {o}", o=o))
            return gs + [J("buffer_load_dwordx4 {r}, {l16b}, {SWS}, {ho} offen offset:{o} sc1", tag="h%d" % k, r=V(192 + 4 * (k % NS), 4), o=o - hb[0])]
        npre = self.o("npre", 12)
        redadr = []
        for dl in range(4):
            redadr += J("s_xor_b32 {t1}, {w}, {dl}\ns_mul_i32 {t1}, {t1}, 3072\ns_add_u32 {t1}, {t1}, {o}\nv_add_u32 v{r}, {t1}, {l16b}", dl=dl, o=76 * 1024 + max(0, dl - 1) * 1024, r=32 + dl)
        ro = [61440 if self.rip else 53248, 0, 12288, 24576]
        p += W([g for k in range(npre) for g in hload(k)], self.setupC())
        tpre = max(st["t"], min(st["d"], self.o("tpre", 4)))
        p += flat(self.TT(st["t"], tpre)); st["t"] = tpre
        if late1 and self.o("upos", 0) == 1: p += usig
        s5 = self.o("s5", 80); AO = GB; LA = self.o("la5", 10); PK5 = 36
        def m4(k, dl):
            u, s_ = order[k]; d = V(128 + (dl * 4 + s_) * 4, 4)
            return I("%s %s, %s, %s, %s" % (MF, d, A(self.wd_reg(u, dl), 4), V(192 + 4 * (k % NS), 4), d if u else "0"))
        ar = lambda k: A(self.wd_reg((k % 16) // 4, k % 4), 4)
        def m5(k):
            n, sg = divmod(k, 4); d = V(ACCV + 4 * sg, 4)
            return I("%s %s, %s, %s, %s" % (MF, d, ar(k), V(GB + 4 * n, 4), d if n else "0"))
        mf = []; at = {}; k5 = 0; fin = None
        for i in range(224):
            k, dl = divmod(i, 4)
            if order[k][0] == 13: dl = (dl + 1) % 4
            at[(k, i % 4)] = len(mf); mf.append(m4(k, dl))
            if i >= s5 and k5 < 64:
                at[k5] = len(mf); mf.append(m5(k5)); k5 += 1
            if k5 == 64 and fin is None and len(mf) >= at[63] + 12:
                fin = len(mf)
                mf += [I("%s %s, %s, %s, %s" % (MF, V(AO + 4 * a_, 4), V(PK5 + 4 * v, 4), A(224 + (2 * a_ + v) * 4, 4), V(AO + 4 * a_, 4) if v else "0")) for v in range(2) for a_ in range(4)]
        assert at[0] - LA >= 64 and na >= 4
        G = Gaps(mf); N = len(mf)
        for k in range(1, 56): G.put(at[(k, 0)] - 1, I("@must h%d" % k))
        for k in range(64):
            pos = at[k - LA] if k >= LA else at[0] - (LA - k)
            if k % 16 == 0: G.put(pos - 1, I("@must u%d\ns_barrier" % (k // 16)))
            G.put(pos, J("ds_read_b128 {r}, {vw} offset:{o}", tag="a%d" % k, r=ar(k), o=(k % 4) * 16384 + (k // 4) * 1024))
            if k % 2 == 0: G.put(at[k] - 1, I("@wait a%d" % (k + 1)))
        G.put(at[0] + 1, J("buffer_load_dwordx4 v[20:23], v8, {SWS}, {t0} offen sc1"))
        hd = self.o("hd", 48)
        def ud(c):
            return [J("s_add_u32 m0, {t3}, {o}", o=c * 4096)] + ([J("s_add_u32 {t2}, {t2}, 4096")] if c else []) + \
                   [J("buffer_load_dwordx4 {l16b}, {SWS}, {t2} offen offset:{o} sc1 lds", tag="u%d" % c, o=1024 * k) for k in range(4)]
        use = lambda u: at[(pos_[(u, 0)], 0)]
        occ = lambda c: max([u for u in range(14) if self.loc(u)[0] == 0 and self.loc(u)[2] == c] + [-1])
        items = [(at[(k, 0)], 1, k) for k in range(npre, 56)] + [(at[16 * c] - (2 if c else 1) * LA - 1, 0, c) for c in range(4)]
        for n_, u in enumerate(range(st["d"], 14)):
            lim = use(u) - 24
            if self.loc(u)[0] == 0: lim = min(lim, at[16 * self.loc(u)[2]] - 2 * LA - hd - 20)
            items.append((min(lim, hd + self.o("l0", 0) + n_ * self.o("lsp", 16)), 2, u))
        items.sort()
        last = 0; dpos = {}; upos_ = {}
        for need, kind, k in items:
            want = max(last, need - hd)
            if kind == 1:
                w_ = max(want, last + 1, at[(k - NS, 3)] if k >= NS else 0)
                last = G.stream(hload(k), w_, w_ + 4, spread=False)
            elif kind == 2:
                dpos[k] = want; last = G.stream(self.D(k), want + 1, want + 9); dpos[k, "e"] = last
            else:
                upos_[k] = want
                if k == 0:
                    G.put(max(0, want - self.o("pgap", 44)), I(self.POLL_LD, tag="poll"))
                    G.put(want, self.stamp(8) + I("@wait poll") + self.spin(self.POLL_LD, sleep=self.o("slu", 0)))
                last = G.stream(([I("@must t%d" % occ(k))] if occ(k) >= 0 else []) + ud(k), want + 1, want + 11)
        dl_ = {}
        for u in range(13, st["t"] - 1, -1):
            d_ = min([use(u) - 3] + [dpos[v] for v in range(14) if v in dpos and self.loc(v)[1] == u] + [upos_[c] for c in range(4) if occ(c) == u])
            dl_[u] = min(d_, dl_[u + 1] - 5) if u < 13 else d_
        e = 0; tearly = []
        for u in range(st["t"], 14):
            if dl_[u] < 8:
                assert u not in dpos
                tearly += self.T(u); continue
            a_ = max(e, dl_[u] - 14, 0)
            assert a_ > dpos.get((u, "e"), -1), (u, a_, dpos)
            e = G.stream(self.T(u), a_, dl_[u], spread=False)
            assert e <= dl_[u]
        p += flat(tearly)
        G.stream(single(redadr), 8, 60)
        def red_w(s_): return [I("ds_write_b128 v%d, %s offset:%d" % (32 + dl, V(128 + (dl * 4 + s_) * 4, 4), ro[s_]), tag="rw%d" % s_) for dl in (1, 2, 3)]
        def red_r(s_): return [I("ds_read_b128 %s, v32 offset:%d" % (V(128 + (dl * 4 + s_) * 4, 4), ro[s_] + (dl - 1) * 1024), tag="rr%d" % s_) for dl in (1, 2, 3)]
        def red_a(s_):
            b = 128 + 4 * s_
            return single([I("v_add_f32 v%d, v%d, v%d" % (b + o + r, b + o + r, b + o + q + r)) for o, q in ((0, 16), (32, 16), (0, 32)) for r in range(4)])
        def mix(a_):
            b = 128 + 4 * a_
            return single(I("\n".join("v_fma_f32 v%d, v%d, v%d, v%d" % (b + r, b + r, 20 + a_, AO + 4 * a_ + r) for r in range(4))) +
                          cvt(56 + 2 * a_, b, b + 1) + cvt(57 + 2 * a_, b + 2, b + 3) + I("ds_write_b64 v6, %s offset:%d" % (V(56 + 2 * a_, 2), a_ * 2048), tag="ow%d" % a_))
        G.stream(single(self.pack(PK5, ACCV) + self.pack(PK5 + 4, ACCV + 8)), at[63] + 4, fin - 1, spread=False)
        gm = I("\n".join("v_mul_f32 v%d, %s, v%d" % (GB + 16 + a_, fhex(2.0 ** -19), 20 + a_) for a_ in range(4)))
        gm += I("\n".join("v_sub_f32 v%d, 1.0, v%d" % (20 + a_, 20 + a_) for a_ in range(4)))
        bars = {}; rend = {}
        for s_ in range(3):
            e = at[(pos_[(13, s_)], 3)]
            e = G.stream(red_w(s_), e + 3, e + 9)
            bars[s_] = e + 4
            G.put(e + 4, I("@must rw%d t13%s\ns_barrier" % (s_, " ow1" if s_ == 2 else "")))
            e = G.stream(red_r(s_) + ([I("ds_read_b128 v[36:39], v7")] if s_ == 2 else []), e + 5, e + 10, spread=False)
            if s_ < 2:
                G.put(e + 5, I("@wait rr%d" % s_))
                rend[s_] = G.stream(red_a(s_), e + 6, e + 16, spread=False)
        e = G.stream(single(gm), fin, fin + 8, spread=False)
        e = G.stream(single(I("\n".join("v_mul_f32 v%d, v%d, v%d" % (AO + i, GB + 16 + i // 4, AO + i) for i in range(16)))), max(e, fin + 9), fin + 24, spread=False)
        e = G.stream(mix(0), max(e, rend[0]) + 1, bars[2] - 6, spread=False)
        e = G.stream(mix(1), max(e, rend[1]) + 1, bars[2] - 1, spread=False)
        assert e < bars[2]
        ost = lambda h_: J("buffer_store_dwordx4 {r}, {x}, {SOUT}, s{so} offen {f}", r=V(36 + 4 * h_, 4), so=76 + h_, f=("", "sc1", "nt", "sc0 sc1", "sc1 nt", "sc0 sc1 nt")[self.o("ost", 1)])
        ra = red_a(2); nfit = max(0, min(12, 2 * (N - bars[2] - 11)))
        if nfit: G.stream(ra[:nfit], bars[2] + 10, N, spread=False)
        for i in range(10): G.put(min(32 * i, len(G) - 1), self.stamp(i, 2))
        p += G.out()
        p += self.stamp(9)
        p += ost(0) + flat(weave(red_w(3), ra[nfit:] + mix(2))) + I("@wait rw3\ns_barrier") + flat(red_r(3))
        for o, q in ((0, 16), (32, 16), (0, 32)):
            for hh in (0, 2): p += I("v_pk_add_f32 %s, %s, %s" % (V(140 + o + hh, 2), V(140 + o + hh, 2), V(140 + o + q + hh, 2)))
        p += flat(mix(3)) + I("@waitlg0\ns_barrier\nds_read_b128 v[40:43], v7 offset:4096") + ost(1)
        return p + self.ending(ffn)

    def p4pair(self, ffn, st, pump, W, ladr=None, fill=None, usig=None):
        NS = 16; hb = [None]; ef = self.ef
        order = [(t, u) for t in range(8) for u in range(7)]
        if ef: order = [(t, u) for t in range(4) for u in range(3)] + [(t, u) for t in range(4) for u in range(3, 7)] + [(t, u) for t in range(4, 8) for u in (0, 3, 1, 4, 2, 5, 6)]
        pos_ = dict((x_, k) for k, x_ in enumerate(order))
        def hload(k):
            t, u = order[k]; gs = []
            o = t * 65536 + (2 * (u % 3) if ef and u < 6 else u) * 1024
            if hb[0] is None or not hb[0] <= o < hb[0] + 4096:
                hb[0] = o; gs.append(J("s_add_u32 {ho}, {b}, {o}", o=o & 0x3ffff, b=NM["hs" if t < 4 else "he"]))
            return gs + [J("buffer_load_dwordx4 {r}, {a}, {SWS}, {ho} offen offset:{o} sc1", tag="h%d" % k, r=V(192 + 4 * (k % NS), 4), o=o - hb[0],
                           a=("v44", "v45")[u // 3] if ef and u < 6 else NM["l16b"])]
        npre = self.o("npre", 12)
        adr = []
        for dl in range(4):
            adr += J("s_xor_b32 {t1}, {w}, {dl}\ns_mul_i32 {t1}, {t1}, 3072\ns_add_u32 {t1}, {t1}, {o}\nv_add_u32 v{r}, {t1}, {l16b}", dl=dl, o=76 * 1024 + max(0, dl - 1) * 1024, r=32 + dl)
        adr += J("""s_lshl3_add_u32 {t1}, {bp}, {nt}
s_lshl_b32 {wo0}, {t1}, 7
s_add_u32 {wo0}, {wo0}, {pf}
s_lshl2_add_u32 s78, {t1}, {w}
s_lshl_b32 s78, s78, 12
s_xor_b32 s79, s78, {px}
s_add_u32 s78, s78, {pb}
s_add_u32 s79, s79, {pb}""", pf=WS_PF, pb=WS_P, px=self.pair << 17)
        ro = [61440 if self.rip else 53248, 0, 12288, 24576]
        sC = self.setupC()
        if ef:
            npre = 12
            p = J("s_lshr_b32 {t1}, {wde}, 5\nv_add_u32 v44, {t1}, {l16b}\nv_xor_b32 v45, 0x400, v44")
            if ef == 2 and ffn:
                n0 = self.o("n0", 7); hl = [flat(hload(k)) for k in range(npre)]
                place(ladr, min(len(ladr) - 1, self.o("lq", 999)), I(self.POLL_LD, tag="poll") if self.o("lq", 999) < 999 else [])
                p += flat(hl[:n0]) + flat(weave(ladr, hl[n0:], self.o("h0", 90), len(ladr) - 5))
            elif ladr is not None: p += flat([hload(k) for k in range(npre)]) + flat(ladr) + (flat(pump(7)) if ef != 2 else [])
            else: p = W(fill, pump(7)) + p
            p += flat(self.TT(st["t"], 3)); st["t"] = max(st["t"], 3)
        else:
            if self.o("hfirst", 0): p = flat(pump(7)) + flat([hload(k) for k in range(npre)]) + self.after_h + W(sC + single(adr), self.TT(st["t"], 7))
            else: p = flat(pump(7)) + W([g for k in range(npre) for g in hload(k)], sC + single(adr[:16])) + self.after_h + adr[16:] + flat(self.TT(st["t"], 7))
        s5 = self.o("s5", 150); AO = GB; LA = self.o("la5", 10); PK5 = 36; RC = GB + 24
        def m4(k, dl):
            t, u = order[k]; d = V(128 + (dl * 4 + t % 4) * 4, 4)
            return I("%s %s, %s, %s, %s" % (MF, d, A(self.wd_reg(u, dl), 4), V(192 + 4 * (k % NS), 4), d if u else "0"))
        ar = lambda k: A(80 + 4 * (k % 16), 4)
        def m5(k):
            n, sg = divmod(k, 4); d = V(ACCV + 4 * sg, 4)
            return I("%s %s, %s, %s, %s" % (MF, d, ar(k), V(GB + 4 * n, 4), d if n else "0"))
        mf = []; at = {}; k5 = 0; fin = None
        for i in range(224):
            k, dl = divmod(i, 4)
            if order[k][1] == 6: dl = (dl + 1) % 4
            at[(k, i % 4)] = len(mf); mf.append(m4(k, dl))
            for _ in range(self.o("r5", 2)):
              if i >= s5 and k5 < 64:
                at[k5] = len(mf); mf.append(m5(k5)); k5 += 1
            if k5 == 64 and fin is None and len(mf) >= at[63] + 12:
                fin = len(mf)
                mf += [I("%s %s, %s, %s, %s" % (MF, V(AO + 4 * a_, 4), V(PK5 + 4 * v, 4), A(224 + (2 * a_ + v) * 4, 4), V(AO + 4 * a_, 4) if v else "0")) for v in range(2) for a_ in range(4)]
        G = Gaps(mf); N = len(mf)
        for k in range(1, 56): G.put(at[(k, 0)] - 1, I("@must h%d" % k))
        for k in range(64):
            pos = at[k - LA] if k >= LA else at[0] - (LA - k)
            if k % 16 == 0: G.put(pos - 1, I("@must u%d\ns_barrier" % (k // 16)))
            G.put(pos, J("ds_read_b128 {r}, {vw} offset:{o}", tag="a%d" % k, r=ar(k), o=(k % 4) * 16384 + (k // 4) * 1024))
            if k % 2 == 0: G.put(at[k] - 1, I("@wait a%d" % (k + 1)))
        G.put(at[0] + 1, J("buffer_load_dwordx4 v[20:23], v8, {SWS}, {t0} offen sc1"))
        hd = self.o("hd", 48)
        def ud(c):
            return [J("s_add_u32 m0, {t3}, {o}", o=c * 4096)] + ([J("s_add_u32 {t2}, {t2}, 4096")] if c else []) + \
                   [J("buffer_load_dwordx4 {l16b}, {SWS}, {t2} offen offset:{o} sc1 lds", tag="u%d" % c, o=1024 * k) for k in range(4)]
        items = sorted([(at[(k, 0)], 1, k) for k in range(npre, 56)] + [((at[16 * c - LA] if c else at[0] - LA) - 1 + self.o("ul", 0), 0, c) for c in range(4)])
        last = 0
        if ef:
            up = self.o("up", 8)
            if usig: G.put(up, usig[0] + self.stamp(6, 3))
            if usig and usig[1:]: G.stream(usig[1:], 70, 110)
            if not (ffn and self.o("lq", 999) < 999): G.put(self.o("lp", 10), I(self.POLL_LD, tag="poll"))
            last = self.o("lc", 40)
            G.put(last, I("@wait poll") + self.spin(self.POLL_LD) + self.stamp(7, 3))
            G.stream(sC[:3], last + 1, last + 5, spread=False)
            if ef == 2 and ffn:
                G.stream(pump(7), 1, 14, spread=False)
                for u in (4, 5, 6): G.stream(self.T(u), 26 + 10 * (u - 4), 36 + 10 * (u - 4), spread=False)
            else:
                e = G.stream(self.TT(st["t"], 7), self.o("tts", 8), 46) if st["t"] < 7 else 0
                assert e < 47
            e = G.stream(single(adr[:16]) + sC[3:], 0, 62, spread=False)
            G.stream(single(adr[16:]), max(e, up) + 1, 70, spread=False)
        for need, kind, k in items:
            want = max(last, need - hd)
            if kind == 1:
                w_ = max(want, last + 1, at[(k - NS, 3)] if k >= NS else 0)
                last = G.stream(hload(k), w_, w_ + 4, spread=False)
            else:
                if k == 0:
                    G.put(max(self.o("lc", 40) + 6 if ef else 0, want - self.o("pgap", 44)), I(self.POLL_LD, tag="poll"))
                    G.put(want, self.stamp(8) + I("@wait poll") + self.spin(self.POLL_LD, sleep=self.o("slu", 0)))
                    G.stream(single(J("s_xor_b32 {wo1}, {wo0}, {o}\nv_mov_b32 {pa}, 0", o=self.pair << 10)), want + 1, want + 20)
                last = G.stream(ud(k), want + 1, want + 11)
        def red_w(t): return [I("ds_write_b128 v%d, %s offset:%d" % (32 + dl, V(128 + (dl * 4 + t % 4) * 4, 4), ro[t % 4]), tag="rw%d" % t) for dl in (1, 2, 3)]
        def red_r(t): return [I("ds_read_b128 %s, v32 offset:%d" % (V(128 + (dl * 4 + t % 4) * 4, 4), ro[t % 4] + (dl - 1) * 1024), tag="rr%d" % t) for dl in (1, 2, 3)]
        def red_a(t):
            b = 128 + 4 * (t % 4)
            return single([I("v_add_f32 v%d, v%d, v%d" % (b + o + r, b + o + r, b + o + q + r)) for o, q in ((0, 16), (32, 16), (0, 32)) for r in range(4)])
        mi = self.o("mi", 24)
        def mix(a_):
            b = 128 + 4 * a_
            return single(([] if mi else I("v_pk_add_f32 %s, %s, %s\nv_pk_add_f32 %s, %s, %s" % (V(b, 2), V(b, 2), V(RC + 4 * a_, 2), V(b + 2, 2), V(b + 2, 2), V(RC + 4 * a_ + 2, 2)))) +
                          I("\n".join("v_fma_f32 v%d, v%d, v%d, v%d" % (b + r, b + r, 20 + a_, AO + 4 * a_ + r) for r in range(4))) +
                          cvt(56 + 2 * a_, b, b + 1) + cvt(57 + 2 * a_, b + 2, b + 3) + I("ds_write_b64 v6, %s offset:%d" % (V(56 + 2 * a_, 2), a_ * 2048), tag="ow%d" % a_))
        rdone = {}
        left = []; sent = 0; b16 = self.o("b16", 1); wg = self.o("wg", 4)
        rounds = {0: [[0], [1], [2], [3], [4], [5], [6]], 1: [[0, 1], [2, 3], [4, 5], [6]], 2: [[0, 1], [2, 3], [4, 5, 6]], 3: [[0, 1, 2], [3], [4, 5, 6]]}[self.o("rnd", 1)]
        if len(rounds[0]) > 1: G.put(at[(pos_[(1, 6)], 0)] - self.o("eb", 10), I("@must t6\ns_barrier"))
        for rd_ in rounds:
            for t in rd_:
                e = at[(pos_[(t, 6)], 3)]
                e = G.stream(red_w(t), e + 3, e + (9 if t == rd_[-1] else 20))
            G.put(e + wg, I("@must rw%d t6\ns_barrier" % rd_[-1]))
            e = G.stream([g for t in rd_ for g in red_r(t)], e + wg + 1, e + wg + 2 + 4 * len(rd_), spread=False)
            e0_ = e + 5 - 3 * (len(rd_) - 1)
            for t in rd_:
                ra = [I("@wait rr%d" % t)] + red_a(t); nfit = 0 if left else max(0, min(13, 2 * (N - e0_ - 2)))
                if nfit: e0_ = G.stream(ra[:nfit], e0_, min(N, e0_ + 11), spread=False)
                left += ra[nfit:]; rdone[t] = e0_ if nfit == 13 else N
                if t < 4 and b16:
                    o = 24 + 4 * (t // 2) + 2 * (t & 1); b = 128 + 4 * t
                    e0_ = sent = G.stream([cvt(o, b, b + 1), cvt(o + 1, b + 2, b + 3)] + ([J("buffer_store_dwordx4 {r}, {l16b}, {SWS}, s79 offen offset:{o} sc1", tag="snd", r=V(o - 2, 4), o=(t // 2) * 1024)] if t & 1 else []), e0_, e0_ + 4, spread=False)
                elif t < 4: sent = G.stream([J("buffer_store_dwordx4 {r}, {l16b}, {SWS}, s79 offen offset:{o} sc1", tag="snd", r=V(128 + 4 * t, 4), o=t * 1024)], e0_ + 1, e0_ + 4)
                assert t >= 4 or sent + 2 < at[(pos_[(t + 4, 0)], 0)]
        l = self.lab("nop")
        fp = sent + self.o("sgap", 30)
        G.put(fp, I("@must snd") + J("s_barrier\ns_cmp_lg_u32 {w}, 0") +
              J("s_cbranch_scc1 {l}\ns_mov_b64 exec, 1\nbuffer_store_dword v19, v0, {SWS}, {wo0} offen sc1\ns_mov_b64 exec, -1\n{l}:", raw=True, l=l))
        rc = N - self.o("rc", 54); assert (b16 or rc > at[40]) and rc - self.o("rgap", 24) > fp
        G.put(rc - self.o("rgap", 24), I(self.POLL_LD, tag="poll"))
        G.put(fp, self.stamp(0, 5))
        G.put(rc, self.stamp(1, 5) + I("@wait poll") + self.spin(self.POLL_LD) + self.stamp(2, 5))
        G.stream([J("buffer_load_dwordx4 {r}, {l16b}, {SWS}, s78 offen offset:{o} sc1", r=V((24 if b16 else RC) + 4 * t, 4), o=t * 1024) for t in range(2 if b16 else 4)], rc + 1, rc + 6, spread=False)
        if b16 and not mi: left += single([J("v_lshlrev_b32 v{d0}, 16, v{s}\nv_and_b32 v{d1}, {hi16}, v{s}", d0=RC + 2 * i, d1=RC + 2 * i + 1, s=24 + i) for i in range(8)])
        G.stream(single(self.pack(PK5, ACCV) + self.pack(PK5 + 4, ACCV + 8)), at[63] + 4, fin - 1, spread=False)
        gm = I("\n".join("v_mul_f32 v%d, %s, v%d" % (GB + 16 + a_, fhex(2.0 ** -19), 20 + a_) for a_ in range(4)))
        gm += I("\n".join("v_sub_f32 v%d, 1.0, v%d" % (20 + a_, 20 + a_) for a_ in range(4)))
        e = G.stream(single(gm), fin, fin + 8, spread=False)
        e = G.stream(single(I("\n".join("v_mul_f32 v%d, v%d, v%d" % (AO + i, GB + 16 + i // 4, AO + i) for i in range(16)))), max(e, fin + 9), min(N, fin + (20 if mi else 30)), spread=False)
        m01 = mix(0) + mix(1)
        if mi:
            q = []
            for i in range(8):
                q += J("v_lshlrev_b32 v{d0}, 16, v{s}\nv_and_b32 v{s}, {hi16}, v{s}\nv_fmac_f32 v{a0}, v{g}, v{d0}\nv_fmac_f32 v{a1}, v{g}, v{s}", d0=RC + i, s=24 + i, g=20 + i // 2, a0=AO + 2 * i, a1=AO + 2 * i + 1)
            q = single(q[:16]) + m01 + single(q[16:]); nf = self.o("nf", 30)
            assert max(e + 1, N - mi) > rdone[5] and max(e + 1, N - mi) > rc + 6
            G.stream(q[:nf], max(e + 1, N - mi), N, spread=False); m01 = q[nf:]
        ost = lambda h_: J("buffer_store_dwordx4 {r}, {x}, {SOUT}, s{so} offen {f}", r=V(36 + 4 * h_, 4), so=76 + h_, f=("", "sc1", "nt", "sc0 sc1", "sc1 nt", "sc0 sc1 nt")[self.o("ost", 1)])
        for i in range(10): G.put(min(32 * i, len(G) - 1), self.stamp(i, 2))
        go = G.out(); x_ = self.o("strip", 0)
        if x_ & 1024: go = [i for i in go if i.op != "s_barrier"]
        if x_ & 2048: go = [Ins("s_nop 0", i.tag) if i.cls == "ds" and i.tag and i.tag[:2] in ("rw", "rr") else i for i in go]
        if x_ & 16384: go = [i for i in go if not (i.cls == "mfma" and i.text.split()[1] in ("v[48:51],", "v[52:55],", "v[56:59],", "v[60:63],")) and not (i.tag and i.tag[0] == "a")]
        if x_ & 4096: go = [i for i in go if not (i.raw and "s_mem" not in i.op)]
        p += I("; ---- phases 4 and 5") + go + I("; ---- last partial sums, mix, store")
        p += self.stamp(9)
        nl = self.o("nl", 4)
        p += self.stamp(3, 5) + flat(left[:nl]) + self.stamp(4, 5) + flat(weave(red_w(7), left[nl:] + m01, self.o("nl2", 0))) + self.stamp(5, 5) + I("@wait rw7 ow1\ns_barrier") + self.stamp(6, 5) + flat(red_r(7)) + I("ds_read_b128 v[36:39], v7") + flat(mix(2))
        for o, q in ((0, 16), (32, 16), (0, 32)):
            for hh in (0, 2): p += I("v_pk_add_f32 %s, %s, %s" % (V(140 + o + hh, 2), V(140 + o + hh, 2), V(140 + o + q + hh, 2)))
        p += ost(0) + flat(mix(3)) + self.stamp(7, 5) + I("@waitlg0\ns_barrier") + self.stamp(8, 5) + I("ds_read_b128 v[40:43], v7 offset:4096") + ost(1) + self.stamp(9, 5)
        return p + self.ending(ffn)

    def ending(self, ffn):
        p = []
        if "diag" in self.kw:
            i = self.kw["diag"]; l = self.lab("dg"); who = self.o("who", 0)
            use = i >= 0 and (who == 0 or (who == 1) == ffn)
            p += I("@waitvm0") + self.stamp(10) + I("s_waitcnt lgkmcnt(0)")
            p += I("s_add_u32 s3, %s, 5000" % ("s%d" % (48 + 2 * i) if use else "s100"))
            if "dx" in self.kw: p += I("s_and_b32 s98, s2, 7\ns_cmp_eq_u32 s98, %d\ns_cselect_b32 s3, s3, s100" % self.kw["dx"])
            p += I("%s:\ns_sleep 1\ns_memrealtime s[98:99]\ns_waitcnt lgkmcnt(0)\ns_sub_u32 s98, s98, s3\ns_cmp_lt_i32 s98, 0\ns_cbranch_scc1 %s" % (l, l), raw=True)
        elif self.prof:
            p += I("@waitvm0") + self.stamp(10) + I("s_waitcnt lgkmcnt(0)")
            p += J("s_lshl_b32 s3, s2, 2\ns_add_u32 s3, s3, {w}\ns_lshl_b32 s3, s3, 6\ns_add_u32 s3, s3, {o}\nv_mov_b32 v32, s100", o=WS_PROF)
            for i in range(11): p += I("v_mov_b32 v%d, s%d" % (33 + i, 48 + 2 * i))
            p += I("s_mov_b64 exec, 1")
            for i in range(3): p += I("buffer_store_dwordx4 %s, v0, %s, s3 offen offset:%d" % (V(32 + 4 * i, 4), SWS, 16 * i))
        return p + I("s_endpgm")

    def text(self):
        st = {}
        hdr = open("gated_mix__spectral_gfnet__glu_gated_reglu__prompt.s.ref").read().split("; Override launch")[0]
        out = [hdr.rstrip(), DOC,
               "; @launch grid=(256,1,1) block=(256,1,1) lds=163840", '.amdgcn_target "amdgcn-amd-amdhsa--gfx950"', ".text",
               ".globl " + NAME, ".p2align 8", ".type %s,@function" % NAME, NAME + ":"]
        prog = self.prologue() + self.p12f() + I("L_dft:") + self.p12d() + I("L_end:\ns_endpgm")
        x = self.o("strip", 0)
        if x & 1: prog = [i for i in prog if i.cls != "mfma"]
        if x & 2: prog = [i for i in prog if not (i.cls == "ds" and i.op.startswith("ds_read"))  or i.tag and not seen_tag(i.tag)]
        if x & 4: prog = [i if not (i.cls == "vmem" and i.tag == "pub") else Ins(i.text.replace("v14", "v0").replace("dwordx4", "dword").replace(i.text.split()[1], "v0,"), i.tag) for i in prog]
        import re as _re
        for bit, pat in ((8, r"d\d+$"), (16, r"h\d+"), (512, r"snd"), (32, r"u\d$"), (64, r"cld$"), (128, r"w\d$"), (256, r"x\d$")):
            if x & bit: prog = [Ins("s_nop 0", i.tag) if i.cls == "vmem" and i.tag and _re.match(pat, i.tag) and "sc1 lds" not in (i.text if bit == 256 else "") else i for i in prog]
        body = finalize(prog, st)
        if self.o("al", 0): body, st["align"] = align8(body)
        out += body
        out += ['.section .rodata,"a"', ".p2align 6", ".amdhsa_kernel " + NAME, "  .amdhsa_next_free_vgpr 512", "  .amdhsa_next_free_sgpr 102",
                "  .amdhsa_accum_offset 256", "  .amdhsa_group_segment_fixed_size 0", "  .amdhsa_kernarg_size 88", "  .amdhsa_user_sgpr_count 2",
                "  .amdhsa_user_sgpr_kernarg_segment_ptr 1", "  .amdhsa_system_sgpr_workgroup_id_x 1", "  .amdhsa_float_denorm_mode_32 3", ".end_amdhsa_kernel"]
        self.stats = st; self.body = body
        return "\n".join(out) + "\n"

def main(Gen):
    import argparse
    ap = argparse.ArgumentParser()
    ap.add_argument("out"); ap.add_argument("--prof", action="store_true"); ap.add_argument("--opt", default=""); ap.add_argument("--est", action="store_true")
    a = ap.parse_args()
    kw = dict((k, int(v)) for k, v in (x.split("=") for x in a.opt.split(",") if x))
    g = Gen(prof=a.prof, **kw)
    open(a.out, "w").write(g.text())
    print(g.stats)
    if a.est:
        row = []; gap = None; nm = 0; over = 0; skip = None
        for l in g.body:
            x = Ins(l.strip())
            if skip:
                if x.text == skip + ":": skip = None
                continue
            if x.op in ("s_cbranch_vccz", "s_cbranch_scc1") and "L_" not in x.text: skip = x.text.split()[1]
            if x.cls == "label":
                if x.text == "L_dft:": row.append(over); row.append("|"); nm = 0; over = 0; gap = None
                continue
            if x.cls == "mfma":
                if gap is not None and len(gap) < 14: over += gap_over(gap) + sum(int(y.text.split()[1]) for y in gap if y.op == "s_nop")
                gap = []; nm += 1
                if nm % 64 == 0: row.append(over); over = 0
            elif gap is not None: gap.append(x)
        print(row, over)

if __name__ == "__main__":
    main(Gen)
```
